```python
import torch

def _softmax(x, axis=-1):
    return torch.softmax(x, dim=axis)

def _gelu(x):
    return torch.nn.functional.gelu(x, approximate='tanh')

def _silu(x):
    return torch.nn.functional.silu(x)

def _sigmoid(x):
    return torch.sigmoid(x)

def _layernorm(x, axis=-1, eps=1e-05):
    m = x.mean(dim=axis, keepdim=True)
    v = x.var(dim=axis, keepdim=True, unbiased=False)
    return (x - m) / torch.sqrt(v + eps)

def _scatter_add(tgt, idx, src, axis=0):
    return tgt.clone().index_add_(axis, idx, src)

def _segment_sum(src, seg, n):
    out = torch.zeros((n,) + src.shape[1:], dtype=src.dtype)
    return out.index_add_(0, seg, src)

def _pad(x, pw):
    flat = tuple((v for pair in reversed(pw) for v in pair))
    return torch.nn.functional.pad(x, flat)
kernel_name = 'concat_heads__linear_attn_block__memory_aug_recurrent_mem_tr__prompt'

def setup_inputs():

    _w = lambda a: (lambda t: t.to(torch.bfloat16) if t.is_floating_point() else t)(torch.as_tensor(a))

    def _A_setup():
        B, S, D = (1, 2048, 448)
        return {'x': _w((lambda *s: torch.randn(*s, dtype=torch.bfloat16) * 0.05)(B, S, D)), 'wqkv': _w((lambda *s: torch.randn(*s, dtype=torch.bfloat16) * 1.6)(D, 3 * D)), 'wo': _w((lambda *s: torch.randn(*s, dtype=torch.bfloat16) * 0.1)(D, D))}
    _A_in = _A_setup()

    def _B_setup():
        B, S, Dm = (1, 2048, 448)
        H, Dh = (16, 256)
        M, seg = (8, 32)
        seg = min(seg, S)
        S = S // seg * seg
        return {'x': _w((lambda *s: torch.randn(*s, dtype=torch.bfloat16) * 0.05)(B, S, Dm)), 'mem0': _w((lambda *s: torch.randn(*s, dtype=torch.bfloat16) * 0.8)(B, M, Dm)), 'Wq': _w((lambda *s: torch.randn(*s, dtype=torch.bfloat16) * 1.6)(Dm, H, Dh) * Dm ** (-0.5)), 'Wk': _w((lambda *s: torch.randn(*s, dtype=torch.bfloat16) * 1.6)(Dm, H, Dh) * Dm ** (-0.5)), 'Wv': _w((lambda *s: torch.randn(*s, dtype=torch.bfloat16) * 0.8)(Dm, H, Dh) * Dm ** (-0.5)), 'Wo': _w((lambda *s: torch.randn(*s, dtype=torch.bfloat16) * 0.8)(H, Dh, Dm) * (H * Dh) ** (-0.5)), 'seg_len': seg}
    _B_in = _B_setup()
    return {'A_x': _A_in['x'], 'A_wqkv': _A_in['wqkv'], 'A_wo': _A_in['wo'], 'B_x': _B_in['x'], 'B_mem0': _B_in['mem0'], 'B_Wq': _B_in['Wq'], 'B_Wk': _B_in['Wk'], 'B_Wv': _B_in['Wv'], 'B_Wo': _B_in['Wo'], 'B_seg_len': _B_in['seg_len']}

def reference(A_x, A_wqkv, A_wo, B_x, B_mem0, B_Wq, B_Wk, B_Wv, B_Wo, B_seg_len):

    def _A_ref(x, wqkv, wo):
        B, S, D = x.shape
        H = 16
        Dh = D // H
        qkv = (lambda x, *d: x.permute(*d))((x @ wqkv).reshape(B, S, 3, H, Dh), 2, 0, 3, 1, 4)
        q, k, v = (qkv[0], qkv[1], qkv[2])
        phi = lambda t: torch.where(t > 0, t + 1, torch.exp(t)) + 1e-06
        pq, pk = (phi(q), phi(k))
        kv = torch.einsum('bhsd,bhse->bhde', pk, v)
        z = torch.einsum('bhsd->bhd', pk)
        num = torch.einsum('bhqd,bhde->bhqe', pq, kv)
        den = torch.einsum('bhqd,bhd->bhq', pq, z)[..., None] + 1e-06
        o = num / den
        return (lambda x, *d: x.permute(*d))(o, 0, 2, 1, 3).reshape(B, S, D) @ wo

    def _B_ref(x, mem0, Wq, Wk, Wv, Wo, seg_len):
        B, S, Dm = x.shape
        H, Dh = (Wq.shape[1], Wq.shape[2])
        M = mem0.shape[1]
        scale = Dh ** (-0.5)
        n_seg = S // seg_len
        L = M + seg_len
        idx = torch.arange(L)
        mask = (idx[:, None] < M) | (idx[:, None] >= idx[None, :])
        mem = mem0
        outs = []
        for s in range(n_seg):
            xs = x[:, s * seg_len:(s + 1) * seg_len, :].clone()
            h = torch.concatenate([mem, xs], axis=1)
            q = torch.einsum('btd,dhe->bhte', h, Wq)
            k = torch.einsum('btd,dhe->bhte', h, Wk)
            v = torch.einsum('btd,dhe->bhte', h, Wv)
            scores = torch.einsum('bhqe,bhke->bhqk', q, k) * scale
            scores = torch.where(mask[None, None], scores, -1000000000.0)
            p = _softmax(scores, axis=-1)
            o = torch.einsum('bhqk,bhke->bhqe', p, v)
            o = torch.einsum('bhte,hed->btd', o, Wo)
            mem = o[:, :M, :].clone()
            outs.append(o[:, M:, :])
        return torch.concatenate(outs, axis=1)
    a = _A_ref(A_x, A_wqkv, A_wo)
    b = _B_ref(B_x, B_mem0, B_Wq, B_Wk, B_Wv, B_Wo, B_seg_len)
    return torch.concatenate([a, b], axis=-1)
```

```python
class Asm:
    def __init__(self):
        self.lines = []
        self.uid = 0
    def __call__(self, *ls):
        for l in ls:
            if isinstance(l, (list, tuple)):
                self(*l)
            elif l:
                for x in l.split("\n"):
                    x = x.strip()
                    if x: self.lines.append(("" if x.endswith(":") or x.startswith(".") else "    ") + x)
    def label(self, base):
        self.uid += 1
        return f"L{base}_{self.uid}"
    def text(self):
        return "\n".join(self.lines) + "\n"

def v(a, n=1): return f"v{a}" if n == 1 else f"v[{a}:{a+n-1}]"
def a_(a, n=1): return f"a{a}" if n == 1 else f"a[{a}:{a+n-1}]"
def s(a, n=1): return f"s{a}" if n == 1 else f"s[{a}:{a+n-1}]"

def kernel_begin(A, name):
    A(f".globl {name}", ".p2align 8", f".type {name},@function", f"{name}:")

def kernel_desc(name, vgpr=512, accum=256, sgpr=102):
    return f""".section .rodata,"a"
.p2align 6
.amdhsa_kernel {name}
  .amdhsa_next_free_vgpr {vgpr}
  .amdhsa_next_free_sgpr {sgpr}
  .amdhsa_accum_offset {accum}
  .amdhsa_group_segment_fixed_size 0
  .amdhsa_kernarg_size 104
  .amdhsa_user_sgpr_count 2
  .amdhsa_user_sgpr_kernarg_segment_ptr 1
  .amdhsa_system_sgpr_workgroup_id_x 1
.end_amdhsa_kernel
.text
"""

def srd(A, d, karg_off, nbytes, tmp=None):
    A(f"s_load_dwordx2 {s(d,2)}, s[0:1], {karg_off}")
    A(f"s_mov_b32 {s(d+2)}, {nbytes:#x}", f"s_mov_b32 {s(d+3)}, 0x00020000")
```

```python
from asm import *
from model import *

def k1_kernel(A, name):
    WS, W1, W2, XB, M0S, WQ, WO = 4, 8, 12, 16, 20, 24, 28
    S_W, S_MH, S_H, S_RH, S_CQ, S_T, S_T2, S_G, S_OUT = range(32, 41)
    VL, VG, VN, T, T2, VA, VLW, VLR, VL16 = range(1, 10)
    GS, ES = 272, 1088
    BIMG = 0
    AIMG = 56*ES
    kernel_begin(A, name)
    Lexit = A.label("k1exit")
    A("s_cmp_ge_u32 s2, 256", f"s_cbranch_scc1 {Lexit}")
    A(f"s_and_b32 {s(S_T)}, s2, 7", f"s_lshl_b32 {s(S_MH)}, {s(S_T)}, 2", f"s_lshr_b32 {s(S_T)}, s2, 6", f"s_add_u32 {s(S_MH)}, {s(S_MH)}, {s(S_T)}",
      f"s_and_b32 {s(S_H)}, {s(S_MH)}, 15", f"s_bfe_u32 {s(S_RH)}, s2, 0x10005", f"s_bfe_u32 {s(S_CQ)}, s2, 0x20003")
    srd(A, WS, 96, 0x10000000); srd(A, XB, 24, 1835008); srd(A, M0S, 32, 7168); srd(A, WQ, 8, 448*1344*2); srd(A, WO, 16, 448*448*2)
    LmB, LmJ = A.label("matB"), A.label("matJ")
    A(f"s_cmp_ge_u32 {s(S_MH)}, 16", f"s_cbranch_scc1 {LmB}")
    srd(A, W1, 40, 3670016); srd(A, W2, 48, 3670016)
    A(f"s_branch {LmJ}", f"{LmB}:")
    srd(A, W1, 56, 3670016); srd(A, W2, 64, 3670016)
    A(f"{LmJ}:")
    A("v_lshrrev_b32 v1, 6, v0", "s_nop 0", f"v_readfirstlane_b32 {s(S_W)}, v1")
    A(f"v_and_b32 {v(VL)}, 63, v0", f"v_lshrrev_b32 {v(VG)}, 4, {v(VL)}", f"v_and_b32 {v(VN)}, 15, {v(VL)}", f"v_lshlrev_b32 {v(VL16)}, 4, {v(VL)}")
    A(f"v_lshrrev_b32 {v(T)}, 5, {v(VL)}", f"v_lshlrev_b32 {v(VA)}, 13, {v(T)}", f"v_and_b32 {v(T2)}, 31, {v(VL)}", f"v_lshl_add_u32 {v(VA)}, {v(T2)}, 4, {v(VA)}")
    A(f"v_mul_u32_u24 {v(VLW)}, {GS}, {v(T2)}", f"v_lshl_add_u32 {v(VLW)}, {v(T)}, 4, {v(VLW)}")
    A(f"v_mul_u32_u24 {v(VLR)}, {GS}, {v(VG)}", f"v_lshl_add_u32 {v(VLR)}, {v(VN)}, 4, {v(VLR)}")
    A("s_waitcnt lgkmcnt(0)")
    AST = 16
    A(f"s_mul_i32 {s(S_T)}, {s(S_RH)}, 7", f"s_add_u32 {s(S_T)}, {s(S_T)}, {s(S_W)}", f"s_lshl_b32 {s(S_OUT)}, {s(S_T)}, 10",
      f"s_lshl_b32 {s(S_T)}, {s(S_T)}, 18", f"s_lshl_b32 {s(S_T2)}, {s(S_H)}, 9", f"s_add_u32 {s(S_G)}, {s(S_T)}, {s(S_T2)}")
    for j in range(16):
        A(f"buffer_load_dwordx4 {v(AST+4*j,4)}, {v(VA)}, {s(W1,4)}, {s(S_G)} offen", f"s_add_u32 {s(S_G)}, {s(S_G)}, 16384")
    BST = 144
    LB2, LB3 = A.label("b2"), A.label("b3")
    A(f"s_cmp_ge_u32 {s(S_MH)}, 16", f"s_cbranch_scc1 {LB2}")
    A(f"s_mul_i32 {s(S_T)}, {s(S_CQ)}, 112", f"s_mul_i32 {s(S_T2)}, {s(S_W)}, 28", f"s_add_u32 {s(S_T)}, {s(S_T)}, {s(S_T2)}", f"s_lshl_b32 {s(S_T)}, {s(S_T)}, 13",
      f"s_lshl_b32 {s(S_T2)}, {s(S_H)}, 9", f"s_add_u32 {s(S_T)}, {s(S_T)}, {s(S_T2)}")
    for j in range(14):
        A(f"buffer_load_dwordx4 {v(BST+4*j,4)}, {v(VA)}, {s(W2,4)}, {s(S_T)} offen", f"s_add_u32 {s(S_T)}, {s(S_T)}, 16384")
    def second_A():
        A(f"s_add_u32 {s(S_G)}, {s(S_G)}, {3*32*8192}", f"s_cmp_eq_u32 {s(S_W)}, 3", f"s_cselect_b32 {s(S_G)}, 0x40000000, {s(S_G)}")
        for j in range(16):
            A(f"buffer_load_dwordx4 {v(AST+64+4*j,4)}, {v(VA)}, {s(W1,4)}, {s(S_G)} offen", f"s_add_u32 {s(S_G)}, {s(S_G)}, 16384")
    second_A()
    A("s_waitcnt vmcnt(16)")
    A(f"s_mul_i32 {s(S_T)}, {s(S_W)}, 28")
    for j in range(14):
        A(f"s_add_u32 {s(S_T2)}, {s(S_T)}, {2*j}", f"s_lshr_b32 s41, {s(S_T2)}, 4", f"s_mul_i32 s41, s41, {8*ES}", f"s_and_b32 {s(S_T2)}, {s(S_T2)}, 15", f"s_lshl_b32 {s(S_T2)}, {s(S_T2)}, 4",
          f"s_add_u32 s41, s41, {s(S_T2)}", f"v_add_u32 {v(T)}, s41, {v(VLW)}", f"ds_write_b128 {v(T)}, {v(BST+4*j,4)} offset:{BIMG}")
    A(f"s_branch {LB3}", f"{LB2}:")
    A(f"v_mul_u32_u24 {v(T)}, {8*896}, {v(VG)}", f"v_lshl_add_u32 {v(T)}, {v(VN)}, 1, {v(T)}")
    A(f"s_mul_i32 {s(S_T)}, {s(S_H)}, 229376", f"s_mul_i32 {s(S_T2)}, {s(S_CQ)}, 224", f"s_add_u32 {s(S_T)}, {s(S_T)}, {s(S_T2)}",
      f"s_mul_i32 {s(S_T2)}, {s(S_W)}, {64*896}", f"s_add_u32 {s(S_T)}, {s(S_T)}, {s(S_T2)}")
    n = 0
    for ee in range(2):
        for j in range(8):
            A(f"s_add_u32 {s(S_T2)}, {s(S_T)}, {(32*ee + j)*896}")
            for cb in range(7):
                A(f"buffer_load_ushort {v(BST + 56*(j % 2) + 4*(cb*2+ee) + j//2)}, {v(T)}, {s(W2,4)}, {s(S_T2)} offen offset:{32*cb}")
                n += 1
            if j % 4 == 3: A("s_waitcnt vmcnt(28)")
    second_A()
    A("s_waitcnt vmcnt(16)")
    for r in range(56): A(f"v_lshl_or_b32 {v(BST+r)}, {v(BST+56+r)}, 16, {v(BST+r)}")
    A(f"s_mul_i32 {s(S_T)}, {s(S_W)}, {2*ES}", f"v_add_u32 {v(T)}, {s(S_T)}, {v(VLR)}")
    for cb in range(7):
        for ee in range(2):
            A(f"ds_write_b128 {v(T)}, {v(BST+4*(cb*2+ee),4)} offset:{BIMG + (cb*8+ee)*ES}")
    A(f"{LB3}:")
    A(f"s_mul_i32 {s(S_T)}, {s(S_W)}, {16*ES}", f"s_add_u32 {s(S_T)}, {s(S_T)}, {AIMG}", f"v_add_u32 {v(T)}, {s(S_T)}, {v(VLW)}", f"v_add_u32 {v(T2)}, {s(S_T)}, {v(VLR)}")
    for half in range(2):
        if half == 1: A("s_waitcnt vmcnt(0)")
        for j in range(16):
            r = 2*j; a, t, b = r // 8, (r // 4) % 2, r % 4
            A(f"ds_write_b128 {v(T)}, {v(AST+64*half+4*j,4)} offset:{t*8*ES + (4*a+b)*16}")
        for f in range(16):
            A(f"ds_read_b128 {a_(64*half+4*f,4)}, {v(T2)} offset:{f*ES}")
            if f % 8 == 7: A("s_waitcnt lgkmcnt(0)")
    A("s_barrier")
    ACC = 16; BF = 144
    rdB = lambda i: f"ds_read_b128 {v(BF + 4*(i % 4), 4)}, {v(VLR)} offset:{BIMG + i*ES}"
    for i in range(3): A(rdB(i))
    for i in range(56):
        cb, es = i // 8, i % 8
        if i + 3 < 56: A(rdB(i+3), "s_waitcnt lgkmcnt(3)")
        else: A(f"s_waitcnt lgkmcnt({55-i})")
        for half in range(2):
            for t in range(2):
                d = ACC + 16*cb + 8*half + 4*t
                A(f"v_mfma_f32_16x16x32_bf16 {v(d,4)}, {a_(64*half + 32*t + 4*es, 4)}, {v(BF + 4*(i % 4), 4)}, " + ("0" if es == 0 else v(d,4)))
    A(f"s_mul_i32 {s(S_T)}, {s(S_H)}, 28", f"s_mul_i32 {s(S_T2)}, {s(S_CQ)}, 7", f"s_add_u32 {s(S_T)}, {s(S_T)}, {s(S_T2)}", f"s_mul_i32 {s(S_T)}, {s(S_T)}, 14336",
      f"s_add_u32 {s(S_OUT)}, {s(S_OUT)}, {s(S_T)}", f"s_cmp_ge_u32 {s(S_MH)}, 16", f"s_cselect_b32 {s(S_T)}, {WB_OFF:#x}, {WA_OFF:#x}", f"s_add_u32 {s(S_OUT)}, {s(S_OUT)}, {s(S_T)}")
    sc = np.float32(LOG2E / 16).view(np.uint32)
    A(f"s_cmp_ge_u32 {s(S_MH)}, 16", f"s_cselect_b32 s41, 1.0, {int(sc):#x}")
    A(f"s_add_u32 {s(S_G)}, {s(S_OUT)}, 4096", f"s_cmp_eq_u32 {s(S_W)}, 3", f"s_cselect_b32 {s(S_G)}, 0x40000000, {s(S_G)}", "s_nop 4")
    for cb in range(7):
        for half in range(2):
            d = ACC + 16*cb + 8*half
            for r in range(8): A(f"v_mul_f32 {v(d+r)}, s41, {v(d+r)}")
            for r in range(4): A(f"v_cvt_pk_bf16_f32 {v(d+r)}, {v(d+2*r)}, {v(d+2*r+1)}")
            so = S_OUT if half == 0 else S_G
            A(f"buffer_store_dwordx4 {v(d,4)}, {v(VL16)}, {s(WS,4)}, {s(so)} offen", f"s_add_u32 {s(so)}, {s(so)}, 14336")
    GW = 42
    A(f"s_lshl_b32 {s(GW)}, s2, 2", f"s_add_u32 {s(GW)}, {s(GW)}, {s(S_W)}")
    for r in range(4): A(f"v_mov_b32 {v(200+r)}, -1", f"v_mov_b32 {v(204+r)}, 0")
    A(f"s_mul_i32 {s(S_T)}, {s(GW)}, 3072", f"s_add_u32 {s(S_T)}, {s(S_T)}, {MEMF_OFF:#x}")
    Lsk = A.label("nofill")
    for j in range(3):
        A(f"buffer_store_dwordx4 {v(200,4)}, {v(VL16)}, {s(WS,4)}, {s(S_T)} offen offset:{1024*j}")
    A(f"s_cmp_ge_u32 {s(GW)}, {ZERO_BYTES//1024}", f"s_cbranch_scc1 {Lsk}")
    A(f"s_lshl_b32 {s(S_T)}, {s(GW)}, 10", f"s_add_u32 {s(S_T)}, {s(S_T)}, {ZERO_OFF:#x}", f"buffer_store_dwordx4 {v(204,4)}, {v(VL16)}, {s(WS,4)}, {s(S_T)} offen")
    A(f"{Lsk}:")
    Lx = A.label("noxs")
    A(f"s_cmp_ge_u32 {s(GW)}, 896", f"s_cbranch_scc1 {Lx}")
    A(f"s_mul_i32 {s(S_T)}, {s(GW)}, 9363", f"s_lshr_b32 {s(S_T)}, {s(S_T)}, 16",
      f"s_mul_i32 {s(S_T2)}, {s(S_T)}, 7", f"s_sub_u32 {s(S_T2)}, {s(GW)}, {s(S_T2)}",
      f"s_lshl_b32 {s(S_T2)}, {s(S_T2)}, 5", f"s_and_b32 s41, {s(S_T)}, 1", f"s_mul_i32 s41, s41, 896", f"s_add_u32 {s(S_T2)}, {s(S_T2)}, s41",
      f"s_lshr_b32 {s(S_T)}, {s(S_T)}, 1", f"s_mul_i32 {s(S_T)}, {s(S_T)}, 28672", f"s_add_u32 {s(S_T)}, {s(S_T)}, {s(S_T2)}")
    A(f"v_lshrrev_b32 {v(T)}, 3, {v(VN)}", f"v_lshlrev_b32 {v(T2)}, 4, {v(T)}", f"v_and_b32 {v(T)}, 3, {v(VN)}", f"v_lshl_add_u32 {v(T2)}, {v(T)}, 2, {v(T2)}",
      f"v_bfe_u32 {v(T)}, {v(VN)}, 2, 1", f"v_lshl_add_u32 {v(T2)}, {v(T)}, 1, {v(T2)}", f"v_mul_u32_u24 {v(T2)}, 896, {v(T2)}",
      f"v_mul_u32_u24 {v(T)}, 224, {v(VG)}", f"v_add_u32 {v(T2)}, {v(T2)}, {v(T)}")
    A(f"buffer_load_dwordx4 {v(208,4)}, {v(T2)}, {s(XB,4)}, {s(S_T)} offen", f"buffer_load_dwordx4 {v(212,4)}, {v(T2)}, {s(XB,4)}, {s(S_T)} offen offset:16", "s_waitcnt vmcnt(0)")
    b = 208
    A(f"v_swap_b32 {v(b+1)}, {v(b+2)}", f"v_swap_b32 {v(b+2)}, {v(b+4)}", f"v_swap_b32 {v(b+3)}, {v(b+6)}", f"v_swap_b32 {v(b+6)}, {v(b+5)}")
    A(f"s_lshl_b32 {s(S_T)}, {s(GW)}, 11", f"s_add_u32 {s(S_T)}, {s(S_T)}, {XS_OFF:#x}",
      f"buffer_store_dwordx4 {v(208,4)}, {v(VL16)}, {s(WS,4)}, {s(S_T)} offen", f"buffer_store_dwordx4 {v(212,4)}, {v(VL16)}, {s(WS,4)}, {s(S_T)} offen offset:1024")
    A(f"{Lx}:")
    comb = [f"v_lshl_or_b32 {v(216+r)}, {v(224+r)}, 16, {v(216+r)}" for r in range(4)]
    def wq_task(fs):
        A(f"s_mul_i32 {s(S_T)}, {s(fs)}, 18725", f"s_lshr_b32 {s(S_T)}, {s(S_T)}, 18",
          f"s_mul_i32 {s(S_T2)}, {s(S_T)}, 14", f"s_sub_u32 {s(S_T2)}, {s(fs)}, {s(S_T2)}", f"s_mul_i32 {s(S_T2)}, {s(S_T2)}, {32*2688}",
          f"s_lshr_b32 s41, {s(S_T)}, 1", f"s_mul_i32 s41, s41, 56", f"s_add_u32 {s(S_T2)}, {s(S_T2)}, s41",
          f"s_and_b32 {s(S_T)}, {s(S_T)}, 1", f"s_lshl_b32 {s(S_T)}, {s(S_T)}, 2")
        A(f"v_lshrrev_b32 {v(T)}, 2, {v(VN)}", f"v_lshlrev_b32 {v(T2)}, 3, {v(T)}", f"v_and_b32 {v(T)}, 3, {v(VN)}", f"v_add3_u32 {v(T2)}, {v(T2)}, {v(T)}, {s(S_T)}",
          f"v_cmp_lt_u32 vcc, 27, {v(T2)}", f"v_lshlrev_b32 {v(T2)}, 1, {v(T2)}", f"v_mul_u32_u24 {v(T)}, {8*2688}, {v(VG)}", f"v_add_u32 {v(T2)}, {v(T2)}, {v(T)}",
          f"v_mov_b32 {v(T)}, 0x40000000", f"v_cndmask_b32 {v(T2)}, {v(T2)}, {v(T)}, vcc")
        for j in range(8):
            A(f"buffer_load_ushort {v(216 + 8*(j % 2) + j//2)}, {v(T2)}, {s(WQ,4)}, {s(S_T2)} offen", f"s_add_u32 {s(S_T2)}, {s(S_T2)}, 2688")
        A(f"s_lshl_b32 {s(S_T)}, {s(fs)}, 10", f"s_add_u32 {s(S_T)}, {s(S_T)}, {WQF_OFF:#x}", "s_waitcnt vmcnt(0)", comb,
          f"buffer_store_dwordx4 {v(216,4)}, {v(VL16)}, {s(WS,4)}, {s(S_T)} offen", "s_nop 1")
    wq_task(GW)
    L2, L3 = A.label("wq2"), A.label("wo")
    A(f"s_cmp_ge_u32 {s(GW)}, 320", f"s_cbranch_scc1 {L2}", f"s_add_u32 s43, {s(GW)}, 1024")
    wq_task(43)
    A(f"s_branch {L3}", f"{L2}:")
    A(f"s_sub_u32 s43, {s(GW)}, 320", f"s_cmp_ge_u32 s43, 448", f"s_cbranch_scc1 {L3}")
    A(f"s_lshr_b32 {s(S_T)}, s43, 4", f"s_lshl_b32 {s(S_T)}, {s(S_T)}, 5", f"s_and_b32 {s(S_T2)}, s43, 15", f"s_mul_i32 {s(S_T2)}, {s(S_T2)}, {28*896}", f"s_add_u32 {s(S_T2)}, {s(S_T2)}, {s(S_T)}")
    A(f"v_mul_u32_u24 {v(T2)}, {8*896}, {v(VG)}", f"v_lshl_add_u32 {v(T2)}, {v(VN)}, 1, {v(T2)}",
      f"v_cmp_eq_u32 vcc, 3, {v(VG)}", f"v_mov_b32 {v(T)}, 0x40000000", "s_nop 0", f"v_cndmask_b32 {v(T)}, {v(T2)}, {v(T)}, vcc")
    for j in range(8):
        A(f"buffer_load_ushort {v(216 + 8*(j % 2) + j//2)}, {v(T2 if j < 4 else T)}, {s(WO,4)}, {s(S_T2)} offen", f"s_add_u32 {s(S_T2)}, {s(S_T2)}, 896")
    A(f"s_lshl_b32 {s(S_T)}, s43, 10", f"s_add_u32 {s(S_T)}, {s(S_T)}, {WOF_OFF:#x}", "s_waitcnt vmcnt(0)", comb,
      f"buffer_store_dwordx4 {v(216,4)}, {v(VL16)}, {s(WS,4)}, {s(S_T)} offen")
    A(f"{L3}:")
    def own(k): return k // 3
    specials = [(k, "mem", k) for k in range(7)] + [((MEMS_OFF-MEMF_OFF)//1024 + k, "mem", k) for k in range(7)]
    A(f"v_lshrrev_b32 {v(T)}, 1, {v(VN)}", f"v_mul_u32_u24 {v(T2)}, 896, {v(T)}", f"v_lshl_add_u32 {v(T2)}, {v(VG)}, 5, {v(T2)}", f"v_and_b32 {v(T)}, 1, {v(VN)}", f"v_lshl_add_u32 {v(T2)}, {v(T)}, 2, {v(T2)}")
    for k, kind, kb in specials:
        Ln = A.label("sp")
        A(f"s_cmp_lg_u32 {s(GW)}, {own(k)}", f"s_cbranch_scc1 {Ln}")
        A(f"s_mov_b32 {s(S_T)}, {MEMF_OFF + k*1024:#x}")
        if kind == "mem":
            for q in range(4): A(f"buffer_load_dword {v(232+q)}, {v(T2)}, {s(M0S,4)}, 0 offen offset:{128*kb + 8*q}")
            A("s_waitcnt vmcnt(0)")
            for q in range(4): A(f"v_min_u32 {v(232+q)}, -2, {v(232+q)}")
            A(f"buffer_store_dwordx4 {v(232,4)}, {v(VL16)}, {s(WS,4)}, {s(S_T)} offen", "s_nop 1")
        else:
            A("s_waitcnt vmcnt(0)", f"buffer_store_dwordx4 {v(204,4)}, {v(VL16)}, {s(WS,4)}, {s(S_T)} offen")
        A(f"{Ln}:")
    A(f"{Lexit}:", "s_endpgm")
    A(kernel_desc(name))
K1_LDS = 56*1088 + 64*1088
```

```python
import numpy as np
D=448; H=16; DH=256; NSEG=64; SEG=32; M=8
WA_OFF=0x0; WB_OFF=0x700000; VOX_OFF=0xE00000
MEMF_OFF=0x2A00000; PF_OFF=0x2A80000; MEMS_OFF=0x2B80000; PS_OFF=0x2C00000; ALT=0x180000
VPE_OFF=0x2D00000; PX_OFF=0x3400000
PROF_OFF=0x3700000
XS_OFF=0x3800000
WQF_OFF=0x3A00000
WOF_OFF=0x3C00000
KV_OFF=0x3D00000
FLG_OFF=0x3D20000
FV_OFF=FLG_OFF; FX_OFF=FLG_OFF+0x4000; CV_OFF=FLG_OFF+0x8000; CL_OFF=FLG_OFF+0xC000
FLAGP_OFF=0x3D40000
ZERO_OFF=KV_OFF; ZERO_BYTES=0x30000
LOG2E=1.4426950408889634

def bf16_bits(x):
    u = np.ascontiguousarray(x, np.float32).view(np.uint32)
    r = (u + 0x7FFF + ((u >> 16) & 1)) >> 16
    return r.astype(np.uint16)
def from_bits(b):
    return (b.astype(np.uint32) << 16).view(np.float32)
def rbf(x): return from_bits(bf16_bits(x))

def wfrag(W):
    b = bf16_bits(W).reshape(14, 4, 8, 28, 16)
    return np.ascontiguousarray(b.transpose(3, 0, 1, 4, 2)).reshape(28, 14, 64, 8)

def voxfrag(VO):
    b = bf16_bits(VO).reshape(64, 4, 8, 16, 28, 16)
    return np.ascontiguousarray(b.transpose(0, 4, 3, 1, 5, 2)).reshape(64, 28, 16, 64, 8)

def memslot(mem):
    b = bf16_bits(mem).reshape(8, 28, 4, 2, 2)
    return np.ascontiguousarray(b.transpose(1, 0, 3, 2, 4)).reshape(-1)
def memslot_inv(bits):
    b = bits[:3584].reshape(28, 8, 2, 4, 2).transpose(1, 0, 3, 2, 4).reshape(8, 448)
    return from_bits(np.ascontiguousarray(b))

def prep(inp):
    Wq, Wk, Wv, Wo = inp['B_Wq'], inp['B_Wk'], inp['B_Wv'], inp['B_Wo']
    A = np.stack([rbf((Wq[:, h, :] @ Wk[:, h, :].T) * np.float32(LOG2E / 16)) for h in range(H)])
    B = np.stack([rbf(Wv[:, h, :] @ Wo[h]) for h in range(H)])
    return A, B

def recur_model(inp, A, B, VO, nsteps=63):
    x = inp['B_x'][0]; mem = inp['B_mem0'][0]
    mems = [mem]; Ps = []
    for s in range(nsteps):
        xs = x[32*s:32*s+32]
        h = np.concatenate([mem, xs])
        out = np.zeros((8, D), np.float32); Pl = []
        for hh in range(H):
            T = rbf(mem @ A[hh])
            S = T @ h.T
            e = np.exp2(S - S.max(1, keepdims=True)); P = rbf(e / e.sum(1, keepdims=True))
            Vp = rbf(mem @ B[hh])
            out += P[:, :8] @ Vp + P[:, 8:] @ VO[32*s:32*s+32, hh]
            Pl.append(P)
        mem = rbf(out); mems.append(mem); Ps.append(np.stack(Pl))
    return mems, Ps

def xsfrag(x):
    b = bf16_bits(x).reshape(64, 2, 4, 2, 2, 4, 7, 4, 2, 2)
    r = b.transpose(0, 4, 6, 8, 5, 1, 3, 2, 7, 9)
    return np.ascontiguousarray(r).reshape(-1)

def rho(t, m): return 8*(m//4) + 4*t + (m % 4)

def wqf(wqkv):
    out = np.zeros((96, 14, 64, 8), np.uint16); b = bf16_bits(wqkv)
    for sec in range(3):
        for h in range(16):
            for t in range(2):
                for n in range(16):
                    e = rho(t, n)
                    if e < 28:
                        col = b[:, sec*448 + h*28 + e].reshape(14, 4, 8)
                        for g in range(4): out[sec*32 + h*2 + t, :, g*16 + n, :] = col[:, g, :]
    return out
def wof(wo):
    out = np.zeros((28, 16, 64, 8), np.uint16); b = bf16_bits(wo)
    for h in range(16):
        for g in range(4):
            for j in range(8):
                e = 8*g + j
                if e < 28: out[:, h, g*16:(g+1)*16, j] = b[h*28 + e].reshape(28, 16)
    return out
```

```python
from asm import *
from model import *

WS, XB, DBG = 4, 8, 12
S_WAVE, S_ROLE, S_STEP, S_MEM, S_MEM2, S_P, S_X, S_VOX, S_TO, S_TMP, S_TMP2, S_P2, S_MEMN = range(16, 29)
S_PROF = 30
NSTEPS = 63
TIMEOUT = 40000

def smf(d, a, b, idx, hi=False):
    return f"v_smfmac_f32_16x16x64_bf16 {v(d,4)}, {v(a,4)}, {b}, {v(idx)}" + (" abid:1" if hi else "")

def wreg(f, n=8, sub=0):
    return a_(8*f + sub, n) if f < 32 else v(120 + 8*(f-32) + sub, n)

def lane_consts(A, VL, VG, VN):
    A(f"v_and_b32 {v(VL)}, 63, v0", f"v_lshrrev_b32 {v(VG)}, 4, {v(VL)}", f"v_and_b32 {v(VN)}, 15, {v(VL)}")

def mem_lane_off(A, dst, VG, VN, t):
    A(f"v_lshlrev_b32 {v(dst)}, 8, {v(VG)}", f"v_lshl_add_u32 {v(dst)}, {v(VN)}, 4, {v(dst)}")

def idx_const(A, dst, VN, t):
    A(f"v_and_b32 {v(t)}, 1, {v(VN)}", f"v_mul_u32_u24 {v(dst)}, 0xAAAA, {v(t)}",
      f"v_lshrrev_b32 {v(t)}, 3, {v(VN)}", f"v_mul_u32_u24 {v(t)}, 0xAAAA, {v(t)}",
      f"v_lshl_add_u32 {v(dst)}, {v(t)}, 16, {v(dst)}", f"v_add_u32 {v(dst)}, 0x44444444, {v(dst)}")

def memload(dst, voff, kb):
    so = S_MEM if kb < 4 else S_MEM2
    return f"buffer_load_dwordx4 {v(dst,4)}, {v(voff)}, {s(WS,4)}, {s(so)} offen offset:{(kb%4)*1024} sc1"

def chk4(t, r, first=True):
    if first:
        return [f"v_max3_u32 {v(t)}, {v(r)}, {v(r+1)}, {v(r+2)}", f"v_max_u32 {v(t)}, {v(t)}, {v(r+3)}"]
    return [f"v_max3_u32 {v(t)}, {v(t)}, {v(r)}, {v(r+1)}", f"v_max3_u32 {v(t)}, {v(t)}, {v(r+2)}, {v(r+3)}"]

def timeout_step(A, again, abort):
    A(f"s_sub_u32 {s(S_TO)}, {s(S_TO)}, 1", f"s_cbranch_scc1 {abort}", f"s_branch {again}")

def prof(A, slot, on):
    if on:
        A(f"s_memtime {s(S_PROF+2*slot,2)}")

def prof_flush(A, n, vt, vz, role_wave_off):
    A("s_waitcnt lgkmcnt(0)")
    A(f"s_lshl_b32 {s(S_TMP)}, {s(S_ROLE)}, 2", f"s_add_u32 {s(S_TMP)}, {s(S_TMP)}, {s(S_WAVE)}", f"s_lshl_b32 {s(S_TMP)}, {s(S_TMP)}, 6",
      f"s_add_u32 {s(S_TMP)}, {s(S_TMP)}, {s(S_STEP)}", f"s_lshl_b32 {s(S_TMP)}, {s(S_TMP)}, 6", f"s_add_u32 {s(S_TMP)}, {s(S_TMP)}, {PROF_OFF:#x}")
    A(f"v_mov_b32 {v(vz)}, 0")
    for k in range(n):
        A(f"v_mov_b32 {v(vt)}, {s(S_PROF+2*k)}", f"buffer_store_dword {v(vt)}, {v(vz)}, {s(WS,4)}, {s(S_TMP)} offen offset:{4*k}")

def emit_slots(A, slots):
    for sl in slots:
        A(sl['m']); A(sl['pre']); A(sl['valu']); A(sl['post'])

TIMG = 0
TW = 1808
MIMG = 8192
XIMG = 16384
RS = 208
XSL = 20480
A_SLEEP = 0
FROFF = 14336
FULL = 0
PB2 = 0
LDFL = 0
F1GO = 1
VOXS = 3
STAMP = 1
XS0 = 1
XSN = 20
D1 = 110
D2 = 5
F2D = 0
F2OFF = 10240
F1OFF = 12288
APW = 0
BPW = 3
F1W = 2
X_NODMA = 0
X_NOH = 0
X_NOTR = 0
X_NOCONV = 0
X_NOB1 = 0
B_SLEEP_M = 4
B_SLEEP_P = 0

def nops(n):
    out = []
    while n > 0:
        k = min(n, 16); out.append(f"s_nop {k-1}"); n -= k
    return out

def flag_poll(A, regs, voff, soff, off, abort, tag):
    Lp, Lgo = A.label(tag + "fp"), A.label(tag + "go")
    ld = lambda r: f"buffer_load_dword {v(r)}, {v(voff)}, {s(WS,4)}, {s(soff)} offen offset:{off} sc1"
    n = len(regs)
    for r in regs: A(ld(r), "s_nop 11")
    A(f"{Lp}:")
    for r in regs:
        A(f"s_waitcnt vmcnt({n-1})", f"v_cmp_eq_u32 vcc, -1, {v(r)}", f"s_cbranch_vccz {Lgo}", ld(r))
    timeout_step(A, Lp, abort)
    A(f"{Lgo}:")

def mkslots(ms):
    return [dict(m=m, pre=[], valu=[], post=[]) for m in ms]

def role_A(A, w, abort, profile=False):
    MEMR, ACC, HT = 0, 28, 56
    IDX, VMEM, VTW, VTR, VH, VX, TMP, TMP2 = range(112, 120)
    VG, VN, VL = 1, 2, 3
    ko = [(2*w + i) % 7 for i in range(7)]
    lane_consts(A, VL, VG, VN)
    idx_const(A, IDX, VN, TMP)
    mem_lane_off(A, VMEM, VG, VN, TMP)
    A(f"v_lshlrev_b32 {v(VTW)}, 4, {v(VN)}", f"v_lshl_add_u32 {v(VTW)}, {v(VG)}, 2, {v(VTW)}", f"v_add_u32 {v(VTW)}, {TIMG + w*TW}, {v(VTW)}")
    A(f"v_and_b32 {v(TMP)}, 1, {v(VG)}", f"v_mul_u32_u24 {v(VTR)}, {2*TW}, {v(TMP)}",
      f"v_lshrrev_b32 {v(TMP)}, 3, {v(VN)}", f"v_lshl_add_u32 {v(VTR)}, {v(TMP)}, 7, {v(VTR)}",
      f"v_bfe_u32 {v(TMP)}, {v(VN)}, 1, 1", f"v_lshl_add_u32 {v(VTR)}, {v(TMP)}, 6, {v(VTR)}",
      f"v_lshrrev_b32 {v(TMP)}, 1, {v(VG)}", f"v_lshl_add_u32 {v(VTR)}, {v(TMP)}, 5, {v(VTR)}",
      f"v_bfe_u32 {v(TMP)}, {v(VN)}, 2, 1", f"v_lshl_add_u32 {v(VTR)}, {v(TMP)}, 4, {v(VTR)}",
      f"v_and_b32 {v(TMP)}, 1, {v(VN)}", f"v_lshl_add_u32 {v(VTR)}, {v(TMP)}, 3, {v(VTR)}")
    if TIMG: A(f"v_add_u32 {v(VTR)}, {TIMG}, {v(VTR)}")
    if w < 3:
        A(f"v_and_b32 {v(TMP)}, 1, {v(VG)}", f"v_mul_u32_u24 {v(VX)}, {4*RS}, {v(TMP)}",
          f"v_lshrrev_b32 {v(TMP)}, 1, {v(VG)}", f"v_mul_u32_u24 {v(TMP)}, {2*RS}, {v(TMP)}", f"v_add_u32 {v(VX)}, {v(VX)}, {v(TMP)}",
          f"v_lshl_add_u32 {v(VX)}, {v(VN)}, {3 if w < 2 else 2}, {v(VX)}", f"v_add_u32 {v(VX)}, {XIMG + (4*w if w < 2 else 128)}, {v(VX)}")
    if w < 2:
        A(f"v_lshlrev_b32 {v(VH)}, 4, {v(VL)}")
    elif w == 2:
        A(f"v_mul_u32_u24 {v(VH)}, 1792, {v(VG)}", f"v_and_b32 {v(TMP)}, 7, {v(VN)}", f"v_lshl_add_u32 {v(VH)}, {v(TMP)}, 5, {v(VH)}",
          f"v_add_u32 {v(VH)}, {MIMG}, {v(VH)}")
    else:
        PXO, PMO = HT + 40, HT + 41
        A(f"v_lshrrev_b32 {v(TMP2)}, 3, {v(VL)}", f"v_mul_u32_u24 {v(VH)}, {RS}, {v(TMP2)}", f"v_and_b32 {v(TMP)}, 7, {v(VL)}",
          f"v_lshl_add_u32 {v(VX)}, {v(TMP)}, 4, {v(VH)}", f"v_add_u32 {v(VX)}, {XIMG}, {v(VX)}",
          f"v_lshl_add_u32 {v(VH)}, {v(TMP)}, 2, {v(VH)}", f"v_add_u32 {v(VH)}, {XIMG + 128}, {v(VH)}")
        A(f"v_and_b32 {v(TMP)}, 3, {v(VL)}", f"v_lshlrev_b32 {v(PXO)}, 3, {v(TMP)}", f"v_lshl_add_u32 {v(PXO)}, {v(TMP2)}, 5, {v(PXO)}",
          f"v_bfe_u32 {v(TMP)}, {v(VL)}, 2, 1", f"v_lshl_add_u32 {v(PXO)}, {v(TMP)}, 8, {v(PXO)}",
          f"s_lshl_b32 {s(S_TMP)}, {s(S_ROLE)}, 9", f"v_add_u32 {v(PXO)}, {s(S_TMP)}, {v(PXO)}")
        A(f"v_lshlrev_b32 {v(PMO)}, 5, {v(TMP2)}",
          f"v_bfe_u32 {v(TMP)}, {v(VL)}, 2, 1", f"v_lshl_add_u32 {v(PMO)}, {v(TMP)}, 8, {v(PMO)}",
          f"v_bfe_u32 {v(TMP)}, {v(VL)}, 1, 1", f"v_lshl_add_u32 {v(PMO)}, {v(TMP)}, 3, {v(PMO)}",
          f"s_lshr_b32 {s(S_TMP)}, {s(S_ROLE)}, 2", f"s_lshl_b32 {s(S_TMP)}, {s(S_TMP)}, 9",
          f"s_and_b32 {s(S_TMP2)}, {s(S_ROLE)}, 1", f"s_lshl_b32 {s(S_TMP2)}, {s(S_TMP2)}, 4", f"s_add_u32 {s(S_TMP)}, {s(S_TMP)}, {s(S_TMP2)}",
          f"s_bfe_u32 {s(S_TMP2)}, {s(S_ROLE)}, 0x10001", f"s_lshl_b32 {s(S_TMP2)}, {s(S_TMP2)}, 2", f"s_add_u32 {s(S_TMP)}, {s(S_TMP)}, {s(S_TMP2)}",
          f"s_add_u32 {s(S_TMP)}, {s(S_TMP)}, 8192", f"v_add_u32 {v(PMO)}, {s(S_TMP)}, {v(PMO)}")
        A(f"v_and_b32 {v(TMP)}, 1, {v(VL)}", f"v_lshl_add_u32 {v(PMO)}, {v(TMP)}, 30, {v(PMO)}")
    if w == APW:
        A(f"v_min_u32 {v(TMP)}, 13, {v(VN)}", f"v_lshlrev_b32 {v(TMP2)}, 2, {v(TMP)}", f"s_lshl_b32 {s(S_TMP)}, {s(S_ROLE)}, 7", f"s_add_u32 {s(S_TMP)}, {s(S_TMP)}, {F1OFF}", f"v_add_u32 {v(TMP2)}, {s(S_TMP)}, {v(TMP2)}")
    if w == 2:
        A(f"v_lshlrev_b32 {v(TMP2)}, 7, {v(VL)}", f"s_lshl_b32 {s(S_TMP)}, {s(S_ROLE)}, 2", f"s_add_u32 {s(S_TMP)}, {s(S_TMP)}, {F2OFF}", f"v_add_u32 {v(TMP2)}, {s(S_TMP)}, {v(TMP2)}",
          f"v_cmp_lt_u32 vcc, 13, {v(VL)}", f"v_mov_b32 {v(TMP)}, 0x40000000", "s_nop 0", f"v_cndmask_b32 {v(TMP2)}, {v(TMP2)}, {v(TMP)}, vcc")
    A(f"v_lshlrev_b32 {v(TMP)}, 4, {v(VL)}")
    A(f"s_mul_i32 {s(S_TMP)}, {s(S_ROLE)}, {28*14336}", f"s_add_u32 {s(S_TMP)}, {s(S_TMP)}, {WA_OFF + 7*w*14336}")
    for cb in range(7):
        for p in range(7):
            f = cb*7 + p
            off = cb*14336 + ko[p]*2048
            A(f"s_add_u32 {s(S_TMP2)}, {s(S_TMP)}, {off}")
            for hi in range(2):
                A(f"buffer_load_dwordx4 {wreg(f,4,4*hi)}, {v(TMP)}, {s(WS,4)}, {s(S_TMP2)} offen offset:{1024*hi}")
        if cb >= 2: A("s_waitcnt vmcnt(28)")
    A(f"s_mov_b32 {s(S_STEP)}, 0", f"s_mov_b32 {s(S_MEM)}, {MEMF_OFF:#x}", f"s_mov_b32 {s(S_MEM2)}, {MEMF_OFF+4096:#x}",
      f"s_mov_b32 {s(S_P)}, {PF_OFF:#x}", f"s_mov_b32 {s(S_X)}, {XS_OFF + 14336*(w%2):#x}", f"s_mov_b32 {s(S_TO)}, {TIMEOUT}")
    Lstep = A.label(f"A{w}step"); Lpoll = A.label(f"A{w}poll")
    A(f"s_mov_b32 {s(S_PROF+16)}, 0")
    if STAMP and w == 3: A("s_waitcnt vmcnt(0)", "s_memrealtime s[50:51]", "s_memtime s[54:55]")
    A(f"{Lstep}:")
    for r in range(28): A(f"v_mov_b32 {v(ACC+r)}, 0")
    if A_SLEEP: A(f"s_sleep {A_SLEEP}")
    if w == APW:
        flag_poll(A, [8, 9, 10, 11], TMP2, S_P, 0, abort, "A")
        A(nops(D1))
    A("s_barrier")
    prof(A, 0, profile)
    A(f"{Lpoll}:")
    if profile: A(f"s_add_u32 {s(S_PROF+16)}, {s(S_PROF+16)}, 256")
    for p in range(2): A(memload(MEMR+4*p, VMEM, ko[p]))
    A("s_waitcnt vmcnt(1)", chk4(TMP, MEMR), f"v_cmp_eq_u32 vcc, -1, {v(TMP)}")
    Lok = A.label("ok")
    A(f"s_cbranch_vccz {Lok}")
    timeout_step(A, Lpoll, abort)
    A(f"{Lok}:")
    prof(A, 1, profile)
    order = [(cb, p) for p in range(2) for cb in range(7)] + [(cb, p) for cb in range(7) for p in range(2, 7)]
    slots = mkslots([smf(ACC+4*cb, MEMR+4*p, wreg(cb*7+p), IDX) for cb, p in order])
    wr = lambda p: f"ds_write_b128 {v(VMEM)}, {v(MEMR+4*p,4)} offset:{MIMG + ko[p]*1024}"
    Lr, Lb = A.label("retry"), A.label("back")
    slots[0]['pre'].append("s_waitcnt vmcnt(0)")
    c1 = chk4(TMP, MEMR+4) + [f"v_cmp_eq_u32 vcc, -1, {v(TMP)}"]
    for i, o in enumerate(c1): slots[i]['valu'].append(o)
    slots[3]['valu'].append(wr(0))
    slots[4]['pre'] += [f"s_cbranch_vccnz {Lr}", f"{Lb}:"]
    if w < 3: slots[4]['valu'].append(wr(1))
    B0 = 9
    slots[B0]['pre'] += ["s_waitcnt lgkmcnt(0)", "s_barrier"]
    rdm = lambda p: f"ds_read_b128 {v(MEMR+4*p,4)}, {v(VMEM)} offset:{MIMG + ko[p]*1024}"
    slots[B0]['post'].append(rdm(2))
    for p in range(3, 7): slots[B0 + p - 2]['pre'].append(rdm(p))
    for p in range(2, 7): slots[14 + p - 3]['post'].append(f"s_waitcnt lgkmcnt({6-p})")
    if w == 2 and not X_NOH:
        for j in range(14):
            slots[19 + j]['pre'].append(f"ds_read_b128 {v(HT+4*j,4)}, {v(VH)} offset:{256*(j//2)+16*(j%2)}")
    def ldh(k): return []
    if w < 2 and not X_NODMA:
        for j in range(14):
            sl = XS0 + (j*XSN)//14
            if j % 4 == 0: slots[sl]['pre'].append(f"s_add_u32 {s(S_TMP)}, {s(S_X)}, {1024*j}")
            slots[sl]['post' if sl == B0 else 'pre'].append(f"buffer_load_dwordx4 {v(HT+4*j,4)}, {v(VH)}, {s(WS,4)}, {s(S_TMP)} offen offset:{1024*(j%4)}")
        slots[48]['pre'].append("s_waitcnt vmcnt(0)")
    def conv(cb):
        r = ACC + 4*cb
        return [f"v_add_f32 {v(r)}, {v(r)}, {v(r+1)}", f"v_add_f32 {v(r+2)}, {v(r+2)}, {v(r+3)}",
                f"v_cvt_pk_bf16_f32 {v(r)}, {v(r)}, {v(r+2)}", f"ds_write_b32 {v(VTW)}, {v(r)} offset:{256*cb}"]
    for cb in range(0 if X_NOCONV else 6):
        st = 14 + 5*cb + 4 + 2
        for i, o in enumerate(conv(cb)): slots[st+i]['valu'].append(o)
    SACC = ACC
    if w < 3:
        for r in range(4): slots[24 + 5*r]['valu'].append(f"v_mov_b32 {v(SACC+3-r)}, 0")
    TF = lambda k: MEMR + 4*k if k < 2 else ACC + 4*(k-1)
    def trread(k):
        return [f"ds_read_b64_tr_b16 {v(TF(k)+2*u,2)}, {v(VTR)} offset:{256*k + TW*u}" for u in range(2)]
    B1 = 42
    if not X_NOB1: slots[B1]['pre'] += ["s_waitcnt lgkmcnt(0)", "s_barrier"]
    if w < 3 and not X_NOTR:
        rs = [r for k in range(4) for r in trread(k)]
        for i, r in enumerate(rs): slots[B1 + 1 + (i*6)//8]['pre'].append(r)
    if profile:
        for st, sl in ((2, 13), (3, 27), (4, 48)):
            slots[sl]['pre'].append(f"s_memtime {s(S_PROF+2*st,2)}")
    emit_slots(A, slots)
    c6 = conv(6)
    if w < 3:
        sm = [smf(SACC, TF(k), v(HT+8*k, 8), IDX, True) for k in range(7)]
        A("s_waitcnt lgkmcnt(5)", sm[0], sm[1], c6[0], c6[1], c6[2], c6[3], "s_waitcnt lgkmcnt(2)", sm[2], ldh(0), sm[3], ldh(1))
        A("s_waitcnt lgkmcnt(0)", "s_barrier")
        prof(A, 5, profile)
        for k in range(4, 7): A(trread(k))
        A(ldh(2), ldh(3))
        for k in range(4, 7):
            A(f"s_waitcnt lgkmcnt({2*(6-k)})", sm[k])
        A("s_nop 7")
        A(f"v_permlane32_swap_b32 {v(SACC)}, {v(SACC+2)}", f"v_permlane32_swap_b32 {v(SACC+1)}, {v(SACC+3)}",
          f"v_add_f32 {v(SACC)}, {v(SACC)}, {v(SACC+2)}", f"v_add_f32 {v(SACC+1)}, {v(SACC+1)}, {v(SACC+3)}",
          f"ds_write2_b32 {v(VX)}, {v(SACC)}, {v(SACC+1)} offset0:0 offset1:{RS//4}", "s_waitcnt lgkmcnt(0)", "s_barrier")
        prof(A, 6, profile)
        A(ldh(6))
        if w == 2:
            A(nops(F2D), f"buffer_store_dword {v(IDX)}, {v(TMP2)}, {s(WS,4)}, {s(S_P)} offen")
        prof(A, 7, profile)
        A("s_barrier")
    else:
        A("s_nop 6", c6)
        A("s_waitcnt lgkmcnt(0)", "s_barrier")
        prof(A, 5, profile)
        A("s_barrier")
        X0 = HT; XM = HT+4; MX, L = HT+8, HT+9; N0 = HT+12
        A(f"ds_read_b128 {v(X0,4)}, {v(VX)}", f"ds_read_b32 {v(XM)}, {v(VH)}")
        prof(A, 6, profile)
        A("s_waitcnt lgkmcnt(0)")
        A(f"v_max3_f32 {v(MX)}, {v(X0)}, {v(X0+1)}, {v(X0+2)}", f"v_max3_f32 {v(MX)}, {v(MX)}, {v(X0+3)}, {v(XM)}")
        dpps = ["quad_perm:[1,0,3,2]", "quad_perm:[2,3,0,1]", "row_half_mirror"]
        for d in dpps: A("s_nop 1", f"v_max_f32_dpp {v(MX)}, {v(MX)}, {v(MX)} {d} row_mask:0xf bank_mask:0xf")
        for j in range(5): A(f"v_sub_f32 {v(X0+j)}, {v(X0+j)}, {v(MX)}")
        for j in range(5): A(f"v_exp_f32 {v(X0+j)}, {v(X0+j)}")
        A(f"v_add_f32 {v(L)}, {v(X0)}, {v(X0+1)}", f"v_add_f32 {v(MX)}, {v(X0+2)}, {v(X0+3)}",
          f"v_add_f32 {v(L)}, {v(L)}, {v(XM)}", f"v_add_f32 {v(L)}, {v(L)}, {v(MX)}")
        for d in dpps: A("s_nop 1", f"v_add_f32_dpp {v(L)}, {v(L)}, {v(L)} {d} row_mask:0xf bank_mask:0xf")
        A(f"v_rcp_f32 {v(L)}, {v(L)}", "s_nop 0")
        A(f"v_mul_f32_e64 {v(X0)}, {v(X0)}, {v(L)} clamp", f"v_mul_f32 {v(X0+1)}, {v(X0+1)}, {v(L)}",
          f"v_mul_f32_e64 {v(X0+2)}, {v(X0+2)}, {v(L)} clamp", f"v_mul_f32 {v(X0+3)}, {v(X0+3)}, {v(L)}",
          f"v_cvt_pk_bf16_f32 {v(N0)}, {v(X0)}, {v(X0+1)}", f"v_cvt_pk_bf16_f32 {v(N0+1)}, {v(X0+2)}, {v(X0+3)}",
          f"v_mul_f32_dpp {v(N0+3)}, {v(XM)}, {v(L)} quad_perm:[1,0,3,2] row_mask:0xf bank_mask:0xf",
          f"buffer_store_dwordx2 {v(N0,2)}, {v(PXO)}, {s(WS,4)}, {s(S_P)} offen",
          f"v_mul_f32_e64 {v(XM)}, {v(XM)}, {v(L)} clamp",
          f"v_cvt_pk_bf16_f32 {v(N0+2)}, {v(XM)}, {v(N0+3)}",
          f"buffer_store_dword {v(N0+2)}, {v(PMO)}, {s(WS,4)}, {s(S_P)} offen")
        prof(A, 7, profile)
        A("s_barrier")
    if profile:
        prof_flush(A, 9, TMP, MEMR, 0)
        A(f"s_mov_b32 {s(S_PROF+16)}, 0")
    A(f"s_add_u32 {s(S_MEM)}, {s(S_MEM)}, 8192", f"s_add_u32 {s(S_MEM2)}, {s(S_MEM2)}, 8192", f"s_add_u32 {s(S_P)}, {s(S_P)}, 16384",
      f"s_add_u32 {s(S_X)}, {s(S_X)}, {32*896}",
      f"s_add_u32 {s(S_STEP)}, {s(S_STEP)}, 1", f"s_cmp_lt_u32 {s(S_STEP)}, {NSTEPS}", f"s_cbranch_scc1 {Lstep}")
    if STAMP and w == 3:
        A("s_memrealtime s[52:53]", "s_memtime s[56:57]", "s_waitcnt lgkmcnt(0)", "s_sub_u32 s52, s52, s50", "s_sub_u32 s56, s56, s54", "v_mov_b32 v0, s52", "v_mov_b32 v1, s56",
          f"s_lshl_b32 {s(S_TMP)}, {s(S_ROLE)}, 3", f"buffer_store_dwordx2 v[0:1], off, {s(DBG,4)}, {s(S_TMP)} offset:64")
    A("s_endpgm")
    A(f"{Lr}:")
    if profile: A(f"s_add_u32 {s(S_PROF+16)}, {s(S_PROF+16)}, 1")
    A(memload(MEMR+4, VMEM, ko[1]), "s_waitcnt vmcnt(0)", chk4(TMP, MEMR+4), f"v_cmp_eq_u32 vcc, -1, {v(TMP)}", f"s_cbranch_vccz {Lb}")
    timeout_step(A, Lr, abort)

BW7 = 0
RIMG = 65536
BMIMG = 57344

def role_B(A, w, abort, profile=False):
    MEMR, ACC, VP, SB, VOX, PACC = 0, 28, 36, 44, 60, 92
    IDX, VMEM, VPX, VL16, VRW, VRR, VL4, TMP, TMP2 = range(100, 109)
    R0 = 110
    VG, VN, VL = 1, 2, 3
    c, M = w % 2, w // 2
    own = [2*w, 2*w+1] if w < 3 else [6]
    lane_consts(A, VL, VG, VN)
    idx_const(A, IDX, VN, TMP)
    mem_lane_off(A, VMEM, VG, VN, TMP)
    A(f"v_add_u32 {v(VPX)}, {2048*w}, {v(VMEM)}")
    A(f"v_lshlrev_b32 {v(VL16)}, 4, {v(VL)}", f"v_lshlrev_b32 {v(VL4)}, 2, {v(VL)}")
    A(f"v_lshlrev_b32 {v(VRW)}, 7, {v(VG)}", f"v_lshl_add_u32 {v(VRW)}, {v(VN)}, 2, {v(VRW)}", f"v_add_u32 {v(VRW)}, {RIMG + 1024*w}, {v(VRW)}")
    A(f"v_lshrrev_b32 {v(TMP)}, 3, {v(VL)}", f"v_lshlrev_b32 {v(VRR)}, 6, {v(TMP)}",
      f"v_and_b32 {v(TMP)}, 3, {v(VL)}", f"v_lshl_add_u32 {v(VRR)}, {v(TMP)}, 4, {v(VRR)}",
      f"v_bfe_u32 {v(TMP)}, {v(VL)}, 2, 1", f"v_lshl_add_u32 {v(VRR)}, {v(TMP)}, 3, {v(VRR)}",
      f"v_add_u32 {v(VRR)}, {RIMG + 512*c}, {v(VRR)}")
    VF2 = 109
    A(f"s_sub_u32 {s(S_TMP)}, {s(S_ROLE)}, 16")
    if w == BPW:
        A(f"v_lshlrev_b32 {v(VF2)}, 2, {v(VN)}", f"s_lshl_b32 {s(S_TMP)}, {s(S_TMP)}, 7", f"s_add_u32 {s(S_TMP)}, {s(S_TMP)}, {F2OFF}", f"v_add_u32 {v(VF2)}, {s(S_TMP)}, {v(VF2)}")
    if w == F1W:
        A(f"v_lshlrev_b32 {v(VF2)}, 7, {v(VL)}", f"s_lshl_b32 {s(S_TMP)}, {s(S_TMP)}, 2", f"s_add_u32 {s(S_TMP)}, {s(S_TMP)}, {F1OFF + 16384}", f"v_add_u32 {v(VF2)}, {s(S_TMP)}, {v(VF2)}",
          f"v_cmp_lt_u32 vcc, 15, {v(VL)}", f"v_mov_b32 {v(TMP)}, 0x40000000", "s_nop 0", f"v_cndmask_b32 {v(VF2)}, {v(VF2)}, {v(TMP)}, vcc")
    A(f"s_sub_u32 {s(S_TMP)}, {s(S_ROLE)}, 16", f"s_mul_i32 {s(S_VOX)}, {s(S_TMP)}, {2*16*1024}",
      f"s_lshl_b32 {s(S_MEMN)}, {s(S_TMP)}, 9", f"s_add_u32 {s(S_MEMN)}, {s(S_MEMN)}, {MEMF_OFF + 8192 + 256*c:#x}",
      f"s_mul_i32 {s(S_TMP)}, {s(S_TMP)}, {2*14336}", f"s_add_u32 {s(S_TMP)}, {s(S_TMP)}, {WB_OFF + (8*M*28 + c)*14336:#x}",
      f"s_add_u32 {s(S_VOX)}, {s(S_VOX)}, {VOX_OFF + 4*w*1024:#x}")
    for kb in range(7):
        A(f"s_add_u32 {s(S_TMP2)}, {s(S_TMP)}, {7*28*14336 + kb*2048}")
        for hi in range(2):
            A(f"buffer_load_dwordx4 {v(4+8*kb+4*hi,4)}, {v(VL16)}, {s(WS,4)}, {s(S_TMP2)} offen offset:{1024*hi}")
    for u in range(7):
        for kb in range(7):
            f = u*7 + kb
            A(f"s_add_u32 {s(S_TMP2)}, {s(S_TMP)}, {u*28*14336 + kb*2048}")
            for hi in range(2):
                A(f"buffer_load_dwordx4 {wreg(f,4,4*hi)}, {v(VL16)}, {s(WS,4)}, {s(S_TMP2)} offen offset:{1024*hi}")
        if u >= 1: A("s_waitcnt vmcnt(28)")
        if u == 1:
            for j in range(14): A(f"ds_write_b128 {v(VL16)}, {v(4+4*j,4)} offset:{BW7 + w*14336 + j*1024}")
    A(f"s_mov_b32 {s(S_STEP)}, 0", f"s_mov_b32 {s(S_MEM)}, {MEMF_OFF:#x}", f"s_mov_b32 {s(S_MEM2)}, {MEMF_OFF+4096:#x}",
      f"s_mov_b32 {s(S_P)}, {PF_OFF:#x}", f"s_mov_b32 {s(S_P2)}, {PF_OFF + 8192 + 1024*M:#x}", f"s_mov_b32 {s(S_TO)}, {TIMEOUT}")
    S_EM, S_EV, S_EF, S_EFN, S_EVN, S_EFA, S_FR = range(64, 71)
    ONE = 111
    A(f"s_mov_b32 {s(S_EM)}, 0x40000000", f"s_mov_b32 {s(S_EV)}, 0x40000000", f"s_mov_b32 {s(S_EF)}, 0x40000000", f"s_mov_b32 {s(S_EFN)}, 0x40000000",
      f"s_sub_u32 {s(S_TMP)}, {s(S_ROLE)}, 16", f"s_lshl_b32 {s(S_EVN)}, {s(S_TMP)}, 13", f"s_add_u32 {s(S_EVN)}, {s(S_EVN)}, {VPE_OFF + 4096*c + 2048*M:#x}",
      f"s_lshl_b32 {s(S_EFA)}, {s(S_TMP)}, 4", f"s_add_u32 {s(S_EFA)}, {s(S_EFA)}, {FV_OFF + 4*w:#x}", f"v_mov_b32 {v(ONE)}, 1", f"v_mov_b32 {v(R0)}, 0",
      f"s_mov_b32 {s(S_FR)}, {PF_OFF + FROFF:#x}")
    for r in range(8): A(f"v_mov_b32 {v(VP+r)}, 0")
    A("s_waitcnt vmcnt(0) lgkmcnt(0)")
    A(f"s_mov_b32 {s(S_PROF+10)}, 0")
    Lstep, Lpoll, Lok2, Lpp, Lbad = [A.label(f"B{w}{x}") for x in ("step", "poll", "ok2", "pp", "bad")]
    A(f"{Lstep}:")
    if B_SLEEP_M: A(f"s_sleep {B_SLEEP_M}")
    for r in range(8): A(f"v_mov_b32 {v(ACC+r)}, 0")
    mreg = lambda kb: MEMR + 4*kb
    A(f"{Lpoll}:")
    for kb in own: A(memload(mreg(kb), VMEM, kb))
    if FULL and w == 3: A(f"buffer_load_dword {v(TMP)}, off, {s(WS,4)}, {s(S_FR)} sc1")
    A("s_waitcnt vmcnt(0)")
    for i, kb in enumerate(own): A(chk4(TMP, mreg(kb), i == 0 and not (FULL and w == 3)))
    A(f"v_cmp_eq_u32 vcc, -1, {v(TMP)}", f"s_cbranch_vccz {Lok2}")
    timeout_step(A, Lpoll, abort)
    A(f"{Lok2}:")
    for kb in own: A(f"ds_write_b128 {v(VMEM)}, {v(mreg(kb),4)} offset:{BMIMG + kb*1024}")
    A("s_waitcnt lgkmcnt(0)", "s_barrier")
    for kb in range(7):
        if kb not in own: A(f"ds_read_b128 {v(mreg(kb),4)}, {v(VMEM)} offset:{BMIMG + kb*1024}")
    if not PB2: prof(A, 1, profile)
    A(f"s_add_u32 {s(S_TMP)}, {s(S_VOX)}, 16384")
    voxl = [f"buffer_load_dwordx4 {v(VOX + 16*(hh//2) + 8*cc + 4*(hh%2), 4)}, {v(VL16)}, {s(WS,4)}, {s(S_VOX if cc == 0 else S_TMP)} offen offset:{1024*hh} sc1" for cc in range(2) for hh in range(4)]
    vpst = lambda so: [f"buffer_store_dwordx4 {v(VP+4*k,4)}, {v(VL16)}, {s(WS,4)}, {s(so)} offen offset:{1024*k} sc1" for k in range(2)]
    flst = lambda so: f"buffer_store_dword {v(ONE)}, off, {s(WS,4)}, {s(so)} sc1"
    if FULL:
        if w < 2: A(f"buffer_store_dword {v(R0)}, {v(VL4)}, {s(WS,4)}, {s(S_EM)} offen sc1")
        A(vpst(S_EV), flst(S_EF))
    A("s_waitcnt lgkmcnt(0)")
    AC7 = 112
    ms = []
    for u in range(7):
        for kb in range(7): ms.append(smf(ACC + 4*(u % 2), mreg(kb), wreg(u*7+kb), IDX))
        ms.append(smf(AC7, mreg(u), v(SB, 8), IDX))
    slots = mkslots(ms)
    rd = lambda kb: [f"ds_read_b128 {v(SB + 4*hi, 4)}, {v(VL16)} offset:{BW7 + w*14336 + kb*2048 + hi*1024}" for hi in range(2)]
    for u in range(7):
        slots[8*u]['pre'] += rd(u)
        slots[8*u+6]['pre'].append("s_waitcnt lgkmcnt(0)")
    for j, l in enumerate(voxl): slots[1 + VOXS*j]['pre'].append(l)
    for j in range(4): slots[j]['valu'].append(f"v_mov_b32 {v(AC7+j)}, 0")
    cv = lambda r, u: [f"v_add_f32 {v(r)}, {v(r)}, {v(r+1)}", f"v_add_f32 {v(r+2)}, {v(r+2)}, {v(r+3)}", f"v_cvt_pk_bf16_f32 {v(VP+u)}, {v(r)}, {v(r+2)}"]
    for u in range(6):
        r = ACC + 4*(u % 2)
        st = 8*(u+1)
        for i, o in enumerate(cv(r, u)): slots[st+i]['valu'].append(o)
        if u < 5:
            for j in range(4): slots[st+3+j]['valu'].append(f"v_mov_b32 {v(r+j)}, 0")
    emit_slots(A, slots)
    A("s_nop 6", cv(ACC, 6), cv(AC7, 7))
    Lfin = A.label("Bfin")
    if FULL: A(f"s_cmp_eq_u32 {s(S_STEP)}, {NSTEPS}", f"s_cbranch_scc1 {Lfin}")
    if not PB2: prof(A, 2, profile)
    if B_SLEEP_P: A(f"s_sleep {B_SLEEP_P}")
    if w == BPW:
        flag_poll(A, [12, 13, 14, 15], VF2, S_P, 0, abort, "B")
        A(nops(D2))
    A("s_barrier")
    prof(A, 0, profile)
    if w == F1W and F1GO: A(f"buffer_store_dword {v(IDX)}, {v(VF2)}, {s(WS,4)}, {s(S_P)} offen")
    A(f"{Lpp}:")
    if profile: A(f"s_add_u32 {s(S_PROF+10)}, {s(S_PROF+10)}, 1")
    A(f"buffer_load_dwordx4 {v(0,4)}, {v(VPX)}, {s(WS,4)}, {s(S_P)} offen sc1",
      f"buffer_load_dwordx4 {v(4,4)}, {v(VPX)}, {s(WS,4)}, {s(S_P)} offen offset:1024 sc1",
      f"buffer_load_dwordx4 {v(8,4)}, {v(VMEM)}, {s(WS,4)}, {s(S_P2)} offen sc1")
    for r in range(8): A(f"v_mov_b32 {v(PACC+r)}, 0")
    ck = chk4(TMP, 0) + chk4(TMP, 4, False) + chk4(TMP, 8, False) + [f"v_cmp_eq_u32 vcc, -1, {v(TMP)}"]
    o = 1 - c
    e = 1 if w == F1W and not F1GO else 0
    f1st = f"buffer_store_dword {v(IDX)}, {v(VF2)}, {s(WS,4)}, {s(S_P)} offen" if e else ""
    A("s_waitcnt vmcnt(2)")
    prof(A, 3, profile)
    A(smf(PACC + 4*o, 0, v(VOX + 8*o, 8), IDX), f1st, ck[0], smf(PACC + 4*c, 0, v(VOX + 8*c, 8), IDX), f"s_waitcnt vmcnt({1+e})", ck[1],
      smf(PACC + 4*o, 4, v(VOX + 16 + 8*o, 8), IDX), ck[2], smf(PACC + 4*c, 4, v(VOX + 16 + 8*c, 8), IDX), f"s_waitcnt vmcnt({e})", (f"s_memtime {s(S_PROF+2,2)}" if profile and PB2 else ""), ck[3],
      smf(PACC + 4*c, 8, v(VP, 8), IDX), ck[4], ck[5], ck[6])
    def fin(cc):
        r = PACC + 4*cc
        return [f"v_add_f32 {v(r)}, {v(r)}, {v(r+1)}", f"v_add_f32 {v(r+2)}, {v(r+2)}, {v(r+3)}"], f"ds_write2_b32 {v(VRW)}, {v(r)}, {v(r+2)} offset0:{128*cc} offset1:{128*cc+16}"
    fo, fc = fin(o), fin(c)
    A(fo[0], f"s_cbranch_vccnz {Lbad}", fo[1], "s_nop 0", fc[0], fc[1])
    A("s_waitcnt lgkmcnt(0)", "s_barrier")
    if PB2: prof(A, 2, profile)
    if w < 2:
        A(f"ds_read2st64_b64 {v(12,4)}, {v(VRR)} offset0:0 offset1:2", f"ds_read2st64_b64 {v(16,4)}, {v(VRR)} offset0:4 offset1:6",
          "s_waitcnt lgkmcnt(1)", f"v_add_f32 v12, v12, v14", f"v_add_f32 v13, v13, v15",
          "s_waitcnt lgkmcnt(0)", f"v_add_f32 v16, v16, v18", f"v_add_f32 v17, v17, v19",
          f"v_add_f32 v12, v12, v16", f"v_add_f32 v13, v13, v17",
          f"v_cvt_pk_bf16_f32 {v(R0)}, v12, v13", f"v_min_u32 {v(R0)}, -2, {v(R0)}",
          f"buffer_store_dword {v(R0)}, {v(VL4)}, {s(WS,4)}, {s(S_MEMN)} offen")
    if FULL:
        A(f"s_add_u32 {s(S_EM)}, {s(S_MEMN)}, {ALT:#x}", f"s_mov_b32 {s(S_EV)}, {s(S_EVN)}", f"s_add_u32 {s(S_EVN)}, {s(S_EVN)}, 114688",
          f"s_mov_b32 {s(S_EF)}, {s(S_EFN)}", f"s_mov_b32 {s(S_EFN)}, {s(S_EFA)}", f"s_add_u32 {s(S_EFA)}, {s(S_EFA)}, 256", f"s_add_u32 {s(S_FR)}, {s(S_FR)}, 16384")
        if w < 2:
            Lq = A.label("Bq")
            A(f"s_cmp_lg_u32 {s(S_STEP)}, {NSTEPS-1}", f"s_cbranch_scc1 {Lq}", f"buffer_store_dword {v(R0)}, {v(VL4)}, {s(WS,4)}, {s(S_EM)} offen sc1", f"{Lq}:")
    prof(A, 4, profile)
    if profile:
        prof_flush(A, 6, TMP, TMP2, 0)
        A(f"s_mov_b32 {s(S_PROF+10)}, 0")
    A(f"s_add_u32 {s(S_MEM)}, {s(S_MEM)}, 8192", f"s_add_u32 {s(S_MEM2)}, {s(S_MEM2)}, 8192", f"s_add_u32 {s(S_MEMN)}, {s(S_MEMN)}, 8192",
      f"s_add_u32 {s(S_P)}, {s(S_P)}, 16384", f"s_add_u32 {s(S_P2)}, {s(S_P2)}, 16384", f"s_add_u32 {s(S_VOX)}, {s(S_VOX)}, {28*16*1024}",
      f"s_add_u32 {s(S_STEP)}, {s(S_STEP)}, 1", f"s_cmp_lt_u32 {s(S_STEP)}, {NSTEPS + FULL}", f"s_cbranch_scc1 {Lstep}", "s_endpgm")
    if FULL:
        A(f"{Lfin}:", vpst(S_EVN), "s_waitcnt vmcnt(2)", flst(S_EFN), "s_waitcnt vmcnt(1)", flst(S_EFA), "s_endpgm")
    A(f"{Lbad}:", "s_nop 3")
    timeout_step(A, Lpp, abort)

def role_PF(A, abort):
    AHEAD = 2
    A("; ---------------- prefetcher")
    A("v_and_b32 v3, 63, v0", "v_lshlrev_b32 v1, 7, v3", "v_mov_b32 v2, 0")
    A(f"s_sub_u32 {s(S_TMP2)}, {s(S_ROLE)}, 30", f"s_lshl_b32 {s(S_TMP2)}, {s(S_TMP2)}, 2", f"s_add_u32 {s(S_TMP2)}, {s(S_TMP2)}, {s(S_WAVE)}")
    A(f"s_lshl_b32 {s(S_TMP2)}, {s(S_TMP2)}, 13")
    A(f"s_mov_b32 {s(S_STEP)}, 0", f"s_mov_b32 {s(S_TO)}, {TIMEOUT}")
    if FULL:
        Lnp, Lk, Lkp, Lkg = [A.label(x) for x in ("pfn", "pfk", "pfkp", "pfkg")]
        A(f"s_cmp_lg_u32 {s(S_TMP2)}, {7*8192}", f"s_cbranch_scc1 {Lnp}")
        A(f"s_mov_b32 {s(S_X)}, {CV_OFF:#x}", f"s_mov_b32 {s(S_P)}, {PF_OFF + FROFF:#x}", f"s_mov_b32 {s(S_P2)}, {PS_OFF + FROFF:#x}", f"s_mov_b32 {s(S_TO)}, 300000")
        A(f"{Lkp}:", f"buffer_load_dword v4, off, {s(WS,4)}, {s(S_X)} sc1", "s_waitcnt vmcnt(0)", "v_cmp_ne_u32 vcc, 16, v4", f"s_cbranch_vccz {Lkg}", "s_sleep 2")
        timeout_step(A, Lkp, abort)
        A(f"{Lkg}:", f"buffer_store_dword v2, off, {s(WS,4)}, {s(S_P)}", f"buffer_store_dword v2, off, {s(WS,4)}, {s(S_P2)} sc1",
          f"s_add_u32 {s(S_X)}, {s(S_X)}, 256", f"s_add_u32 {s(S_P)}, {s(S_P)}, 16384", f"s_add_u32 {s(S_P2)}, {s(S_P2)}, 16384",
          f"s_add_u32 {s(S_STEP)}, {s(S_STEP)}, 1", f"s_cmp_lt_u32 {s(S_STEP)}, 64", f"s_cbranch_scc1 {Lkp}", "s_endpgm", f"{Lnp}:")
        A(f"s_mov_b32 {s(S_P)}, {CV_OFF:#x}", f"s_mov_b32 {s(S_TO)}, 300000")
    A(f"s_add_u32 {s(S_X)}, {s(S_TMP2)}, {XS_OFF:#x}", f"s_mov_b32 {s(S_P2)}, 28672")
    L1, L2 = A.label("pf1"), A.label("pf2")
    A(f"s_cmp_lt_u32 {s(S_TMP2)}, {4*8192}", f"s_cbranch_scc1 {L2}")
    A(f"s_mov_b32 {s(S_X)}, {MEMF_OFF + 8192:#x}", f"s_mov_b32 {s(S_P2)}, 8192")
    A(f"s_cmp_eq_u32 {s(S_TMP2)}, {4*8192}", f"s_cbranch_scc1 {L2}")
    A(f"s_and_b32 {s(S_X)}, {s(S_TMP2)}, 8192", f"s_add_u32 {s(S_X)}, {s(S_X)}, {PF_OFF:#x}", f"s_mov_b32 {s(S_P2)}, 16384")
    A(f"{L2}:")
    A(f"s_add_u32 {s(S_VOX)}, {s(S_TMP2)}, {VOX_OFF:#x}", f"s_mov_b32 {s(S_MEM)}, {MEMF_OFF - AHEAD*8192:#x}")
    Lstep, Lpoll, Lgo = A.label("pfstep"), A.label("pfpoll"), A.label("pfgo")
    A(f"{Lstep}:", f"s_cmp_lt_u32 {s(S_STEP)}, {AHEAD+1}", f"s_cbranch_scc1 {Lgo}")
    A(f"{Lpoll}:", f"buffer_load_dword v4, v2, {s(WS,4)}, {s(S_MEM)} offen sc1", "s_waitcnt vmcnt(0)", "v_cmp_eq_u32 vcc, -1, v4", f"s_cbranch_vccz {Lgo}", "s_sleep 2")
    timeout_step(A, Lpoll, abort)
    A(f"{Lgo}:")
    A(f"buffer_load_dword v5, v1, {s(WS,4)}, {s(S_X)} offen sc1")
    if FULL:
        Lc, Lcg = A.label("pfc"), A.label("pfcg")
        A(f"{Lc}:", f"buffer_load_dword v4, off, {s(WS,4)}, {s(S_P)} sc1", "s_waitcnt vmcnt(0)", "v_cmp_ne_u32 vcc, 16, v4", f"s_cbranch_vccz {Lcg}", "s_sleep 2")
        timeout_step(A, Lc, abort)
        A(f"{Lcg}:", f"s_add_u32 {s(S_P)}, {s(S_P)}, 256")
    for j in range(PF_VOX):
        A(f"s_add_u32 {s(S_TMP)}, {s(S_VOX)}, {65536*j}", f"buffer_load_dword v{6+j}, v1, {s(WS,4)}, {s(S_TMP)} offen sc1")
    A(f"s_add_u32 {s(S_X)}, {s(S_X)}, {s(S_P2)}", f"s_add_u32 {s(S_VOX)}, {s(S_VOX)}, {28*16*1024}", f"s_add_u32 {s(S_MEM)}, {s(S_MEM)}, 8192",
      "s_waitcnt vmcnt(0)",
      f"s_add_u32 {s(S_STEP)}, {s(S_STEP)}, 1", f"s_cmp_lt_u32 {s(S_STEP)}, {NSTEPS}", f"s_cbranch_scc1 {Lstep}", "s_endpgm")

PF_VOX = 2
def rec_kernel(A, name, profile=False):
    kernel_begin(A, name)
    Lexit = A.label("exit")
    A("s_cmp_ge_u32 s2, 256", f"s_cbranch_scc1 {Lexit}")
    srd(A, WS, 96, 0x10000000); srd(A, XB, 24, 1835008); srd(A, DBG, 88, 256)
    A(f"s_getreg_b32 {s(S_TMP)}, hwreg(HW_REG_XCC_ID)", f"s_and_b32 {s(S_TMP)}, {s(S_TMP)}, 15", f"s_cmp_lg_u32 {s(S_TMP)}, 0", f"s_cbranch_scc1 {Lexit}")
    A("v_lshrrev_b32 v1, 6, v0", "s_nop 0", f"v_readfirstlane_b32 {s(S_WAVE)}, v1", "s_waitcnt lgkmcnt(0)")
    Lw = A.label("notw0")
    A(f"s_cmp_lg_u32 {s(S_WAVE)}, 0", f"s_cbranch_scc1 {Lw}")
    A("v_mov_b32 v1, 1", "v_mov_b32 v2, 0", "s_mov_b64 exec, 1",
      f"buffer_atomic_add v1, v2, {s(DBG,4)}, 0 offen sc0", "s_waitcnt vmcnt(0)", "ds_write_b32 v2, v1 offset:32768", "s_waitcnt lgkmcnt(0)", "s_mov_b64 exec, -1")
    A(f"{Lw}:", "s_barrier", "v_mov_b32 v2, 0", "ds_read_b32 v1, v2 offset:32768", "s_waitcnt lgkmcnt(0)", f"v_readfirstlane_b32 {s(S_ROLE)}, v1", "s_barrier")
    LPF = A.label("rolePF")
    A(f"s_cmp_ge_u32 {s(S_ROLE)}, 32", f"s_cbranch_scc1 {Lexit}")
    A(f"s_cmp_ge_u32 {s(S_ROLE)}, 30", f"s_cbranch_scc1 {LPF}")
    LB = A.label("roleB")
    A(f"s_cmp_ge_u32 {s(S_ROLE)}, 16", f"s_cbranch_scc1 {LB}")
    for R, fn in (("A", role_A), ("B", role_B)):
        if R == "B": A(f"{LB}:")
        Ls = [A.label(f"{R}w{w}") for w in range(4)]
        for w in range(1, 4):
            A(f"s_cmp_eq_u32 {s(S_WAVE)}, {w}", f"s_cbranch_scc1 {Ls[w]}")
        for w in range(4):
            A(f"{Ls[w]}:")
            fn(A, w, Lexit, profile)
    A(f"{LPF}:")
    role_PF(A, Lexit)
    A(f"{Lexit}:", "s_endpgm")
    A(kernel_desc(name))

def generate(path, profile=False, **kw):
    g = globals(); saved = {k: g[k] for k in kw}
    g.update(kw)
    A = Asm()
    A("; @launch kernel=rec_kernel grid=(256,1,1) block=(256,1,1) lds=131072")
    A('.amdgcn_target "amdgcn-amd-amdhsa--gfx950"', ".text")
    rec_kernel(A, "rec_kernel", profile=bool(profile))
    t = A.text().replace("    ; @launch", "; @launch")
    if profile == 2: t = t.replace("s_memtime", "s_memrealtime")
    if LDFL == 1: t = t.replace(" sc1\n", " nt\n")
    if LDFL == 2: t = t.replace(" sc1\n", " sc0 sc1\n")
    open(path, "w").write(t)
    g.update(saved)

if __name__ == "__main__":
    import sys
    generate(sys.argv[1], len(sys.argv) > 2)
```

```python
from asm import *
from model import *
from rec import WS, XB, DBG, S_WAVE, S_ROLE, S_TO, S_TMP, S_TMP2, wreg, timeout_step, TIMEOUT
OUT, XA = 48, 52
S_SEG, S_H, S_A, S_B, S_C, S_D, S_BUF = range(56, 63)
NV, NX, NPG = 4, 3, 3
RP = 912
XBUF = 32*RP
W_TIMEOUT = 300000

def mfma(d, a, b, c=None, k16=False):
    op = "v_mfma_f32_16x16x16_bf16" if k16 else "v_mfma_f32_16x16x32_bf16"
    return f"{op} {v(d,4)}, {a}, {b}, " + (v(d,4) if c is None else c)
def wr4(f):
    return a_(4*f, 4) if f < 64 else v(120 + 4*(f-64), 4)

def lanes(A, VL, VG, VN, VL16):
    A(f"v_and_b32 {v(VL)}, 63, v0", f"v_lshrrev_b32 {v(VG)}, 4, {v(VL)}", f"v_and_b32 {v(VN)}, 15, {v(VL)}", f"v_lshlrev_b32 {v(VL16)}, 4, {v(VL)}")

def load_weights(A, base, VL16):
    A(f"s_mul_i32 {s(S_TMP)}, {s(S_H)}, {28*14336}", f"s_mul_i32 {s(S_TMP2)}, {s(S_WAVE)}, {7*14336}", f"s_add_u32 {s(S_TMP)}, {s(S_TMP)}, {s(S_TMP2)}",
      f"s_add_u32 {s(S_TMP)}, {s(S_TMP)}, {base:#x}")
    for f in range(98):
        A(f"buffer_load_dwordx4 {wr4(f)}, {v(VL16)}, {s(WS,4)}, {s(S_TMP)} offen offset:{1024*(f%4)}")
        if f % 4 == 3: A(f"s_add_u32 {s(S_TMP)}, {s(S_TMP)}, 4096")
        if f % 16 == 15 and f > 30: A("s_waitcnt vmcnt(32)")

def dma_x(A, seg_s, buf_s, VL16, XB=XB):
    A(f"s_mul_i32 {s(S_TMP)}, {s(seg_s)}, 28672", f"s_mul_i32 {s(S_TMP2)}, {s(S_WAVE)}, {8*896}", f"s_add_u32 {s(S_TMP)}, {s(S_TMP)}, {s(S_TMP2)}",
      f"s_mul_i32 {s(S_TMP2)}, {s(S_WAVE)}, {8*RP}", f"s_add_u32 {s(S_TMP2)}, {s(S_TMP2)}, {s(buf_s)}",
      "s_mov_b32 exec_hi, 0x00ffffff")
    for r in range(8):
        A(f"s_mov_b32 m0, {s(S_TMP2)}", f"s_add_u32 {s(S_TMP2)}, {s(S_TMP2)}, {RP}", f"buffer_load_dwordx4 {v(VL16)}, {s(XB,4)}, {s(S_TMP)} offen lds", f"s_add_u32 {s(S_TMP)}, {s(S_TMP)}, 896")
    A("s_mov_b32 exec_hi, -1")

def poll_eq(A, vt, voff, soff, want, abort, tag, ne=False):
    Lp, Lgo = A.label(tag + "p"), A.label(tag + "go")
    A(f"{Lp}:", f"buffer_load_dword {v(vt)}, {v(voff)}, {s(WS,4)}, {s(soff)} offen sc1", "s_waitcnt vmcnt(0)",
      f"v_cmp_{'eq' if ne else 'ne'}_u32 vcc, {want}, {v(vt)}", f"s_cbranch_vccz {Lgo}", "s_sleep 1")
    timeout_step(A, Lp, abort)
    A(f"{Lgo}:")

def gemm_seg(A, ACC, FR, VRD, x_is_A):
    rd = lambda ks: [f"ds_read_b128 {v(FR + 8*(ks % 2) + 4*t, 4)}, {v(VRD+t)} offset:{64*ks}" for t in range(2)]
    A(rd(0))
    for ks in range(14):
        if ks + 1 < 14: A(rd(ks+1), "s_waitcnt lgkmcnt(2)")
        else: A("s_waitcnt lgkmcnt(0)")
        for cb in range(7):
            for t in range(2):
                xf, wf = v(FR + 8*(ks % 2) + 4*t, 4), wr4(cb*14 + ks)
                a, b = (xf, wf) if x_is_A else (wf, xf)
                A(mfma(ACC + 8*cb + 4*t, a, b, "0" if ks == 0 else None))

def role_V(A, abort):
    VL, VG, VN, VL16, T, VR0, VR1, VRD = 1, 2, 3, 4, 5, 6, 7, 8
    ACC, FR = 16, 72
    A("; ---------------- role V")
    lanes(A, VL, VG, VN, VL16)
    A(f"s_and_b32 {s(S_H)}, {s(S_ROLE)}, 15", f"s_lshr_b32 {s(S_SEG)}, {s(S_ROLE)}, 4", f"s_mov_b32 {s(S_BUF)}, 0")
    dma_x(A, S_SEG, S_BUF, VL16)
    load_weights(A, WB_OFF, VL16)
    A(f"v_lshrrev_b32 {v(T)}, 2, {v(VN)}", f"v_lshlrev_b32 {v(VR0)}, 3, {v(T)}", f"v_and_b32 {v(T)}, 3, {v(VN)}", f"v_add_u32 {v(VR0)}, {v(VR0)}, {v(T)}",
      f"v_mul_u32_u24 {v(VR0)}, {RP}, {v(VR0)}", f"v_lshl_add_u32 {v(VR0)}, {v(VG)}, 4, {v(VR0)}", f"v_add_u32 {v(VR1)}, {4*RP}, {v(VR0)}")
    Lp = A.label("Vloop")
    A("s_waitcnt vmcnt(0)", "s_barrier")
    A(f"{Lp}:")
    A(f"v_add_u32 {v(VRD)}, {s(S_BUF)}, {v(VR0)}", f"v_add_u32 {v(VRD+1)}, {s(S_BUF)}, {v(VR1)}")
    A(f"s_xor_b32 {s(S_BUF)}, {s(S_BUF)}, {32768}", f"s_add_u32 {s(S_A)}, {s(S_SEG)}, {NV}")
    dma_x(A, S_A, S_BUF, VL16)
    gemm_seg(A, ACC, FR, VRD, True)
    A(f"s_mul_i32 {s(S_TMP)}, {s(S_SEG)}, 458752", f"s_mul_i32 {s(S_TMP2)}, {s(S_WAVE)}, {7*16384}", f"s_add_u32 {s(S_TMP)}, {s(S_TMP)}, {s(S_TMP2)}",
      f"s_lshl_b32 {s(S_TMP2)}, {s(S_H)}, 10", f"s_add_u32 {s(S_TMP)}, {s(S_TMP)}, {s(S_TMP2)}", f"s_add_u32 {s(S_TMP)}, {s(S_TMP)}, {VOX_OFF:#x}", "s_nop 2")
    for cb in range(7):
        d = ACC + 8*cb
        for r in range(4): A(f"v_cvt_pk_bf16_f32 {v(d+r)}, {v(d+2*r)}, {v(d+2*r+1)}")
        A(f"buffer_store_dwordx4 {v(d,4)}, {v(VL16)}, {s(WS,4)}, {s(S_TMP)} offen sc1", f"s_add_u32 {s(S_TMP)}, {s(S_TMP)}, 16384")
    A("s_waitcnt vmcnt(0)", "s_barrier")
    Ln = A.label("Vns")
    A(f"s_cmp_lg_u32 {s(S_WAVE)}, 0", f"s_cbranch_scc1 {Ln}")
    A(f"s_lshl_b32 {s(S_TMP)}, {s(S_SEG)}, 8", f"s_add_u32 {s(S_TMP)}, {s(S_TMP)}, {CV_OFF:#x}", f"v_mov_b32 {v(T)}, 1", "s_mov_b64 exec, 1",
      f"buffer_atomic_add {v(T)}, off, {s(WS,4)}, {s(S_TMP)} sc1", "s_mov_b64 exec, -1")
    A(f"{Ln}:")
    A(f"s_add_u32 {s(S_SEG)}, {s(S_SEG)}, {NV}", f"s_cmp_lt_u32 {s(S_SEG)}, 64", f"s_cbranch_scc1 {Lp}", "s_endpgm")

XMIMG = 65536
XRED = 73728

def role_X(A, abort):
    VL, VG, VN, VL16, T, VR0, VK0, VRD, VRD1, VKD, VKM, VRW, VRR, VMW, T2 = range(1, 16)
    ACC, FR, SX, KF = 16, 72, 88, 104
    A("; ---------------- role X")
    lanes(A, VL, VG, VN, VL16)
    A(f"s_and_b32 {s(S_H)}, {s(S_ROLE)}, 15", f"s_lshr_b32 {s(S_SEG)}, {s(S_ROLE)}, 4", f"s_mov_b32 {s(S_BUF)}, 0", f"s_mov_b32 {s(S_TO)}, {W_TIMEOUT}")
    dma_x(A, S_SEG, S_BUF, VL16)
    load_weights(A, WA_OFF, VL16)
    A(f"v_mul_u32_u24 {v(VR0)}, {RP}, {v(VN)}", f"v_lshl_add_u32 {v(VR0)}, {v(VG)}, 4, {v(VR0)}")
    A(f"v_lshrrev_b32 {v(T)}, 2, {v(VN)}", f"v_lshlrev_b32 {v(VK0)}, 3, {v(T)}", f"v_and_b32 {v(T)}, 3, {v(VN)}", f"v_add_u32 {v(VK0)}, {v(VK0)}, {v(T)}",
      f"v_mul_u32_u24 {v(VK0)}, {RP}, {v(VK0)}", f"v_lshl_add_u32 {v(VK0)}, {v(VG)}, 3, {v(VK0)}", f"s_mul_i32 {s(S_TMP)}, {s(S_WAVE)}, 224", f"v_add_u32 {v(VK0)}, {s(S_TMP)}, {v(VK0)}")
    A(f"v_lshrrev_b32 {v(T)}, 2, {v(VN)}", f"v_lshlrev_b32 {v(VKM)}, 6, {v(T)}", f"v_and_b32 {v(T)}, 1, {v(VN)}", f"v_lshl_add_u32 {v(VKM)}, {v(T)}, 5, {v(VKM)}",
      f"v_lshl_add_u32 {v(VKM)}, {v(VG)}, 2, {v(VKM)}", f"s_mul_i32 {s(S_TMP)}, {s(S_WAVE)}, 1792", f"s_add_u32 {s(S_TMP)}, {s(S_TMP)}, {XMIMG}", f"v_add_u32 {v(VKM)}, {s(S_TMP)}, {v(VKM)}")
    A(f"v_add_u32 {v(VMW)}, {s(S_TMP)}, {v(VL16)}")
    A(f"s_lshl_b32 {s(S_TMP)}, {s(S_WAVE)}, 12", f"s_add_u32 {s(S_TMP)}, {s(S_TMP)}, {XRED}", f"v_add_u32 {v(VRW)}, {s(S_TMP)}, {v(VL16)}")
    A(f"s_lshl_b32 {s(S_TMP)}, {s(S_WAVE)}, 10", f"s_add_u32 {s(S_TMP)}, {s(S_TMP)}, {XRED}", f"v_add_u32 {v(VRR)}, {s(S_TMP)}, {v(VL16)}")
    Lp = A.label("Xloop")
    A("s_waitcnt vmcnt(0)", "s_barrier")
    A(f"{Lp}:")
    A(f"v_add_u32 {v(VRD)}, {s(S_BUF)}, {v(VR0)}", f"v_add_u32 {v(VRD1)}, {16*RP}, {v(VRD)}", f"v_add_u32 {v(VKD)}, {s(S_BUF)}, {v(VK0)}")
    A(f"s_xor_b32 {s(S_BUF)}, {s(S_BUF)}, {32768}", f"s_add_u32 {s(S_A)}, {s(S_SEG)}, {NX}")
    dma_x(A, S_A, S_BUF, VL16)
    gemm_seg(A, ACC, FR, VRD, False)
    A("s_nop 7")
    for cb in range(7):
        for t in range(2):
            d = ACC + 8*cb + 4*t
            A(f"v_cvt_pk_bf16_f32 {v(d)}, {v(d)}, {v(d+1)}", f"v_cvt_pk_bf16_f32 {v(d+1)}, {v(d+2)}, {v(d+3)}")
    for cb in range(7):
        kf = KF + 4*(cb % 4)
        A(f"ds_read_b64 {v(kf,2)}, {v(VKD)} offset:{32*cb}", f"ds_read_b64 {v(kf+2,2)}, {v(VKD)} offset:{32*cb + 4*RP}", "s_waitcnt lgkmcnt(0)")
        for kt in range(2):
            for t in range(2):
                A(mfma(SX + 8*kt + 4*t, v(kf+2*kt, 2), v(ACC + 8*cb + 4*t, 2), "0" if cb == 0 else None, k16=True))
    A("s_nop 7")
    for kt in range(2):
        for t in range(2): A(f"ds_write_b128 {v(VRW)}, {v(SX + 8*kt + 4*t, 4)} offset:{2048*kt + 1024*t}")
    A("s_waitcnt lgkmcnt(0)", "s_barrier")
    L1 = A.label("Xr1")
    A(f"s_cmp_ge_u32 {s(S_WAVE)}, 2", f"s_cbranch_scc1 {L1}")
    for kt in range(2):
        for w in range(4): A(f"ds_read_b128 {v(FR + 4*w, 4)}, {v(VRR)} offset:{4096*w + 2048*kt}")
        A("s_waitcnt lgkmcnt(0)")
        for r in range(4):
            A(f"v_add_f32 {v(FR+r)}, {v(FR+r)}, {v(FR+4+r)}", f"v_add_f32 {v(FR+8+r)}, {v(FR+8+r)}, {v(FR+12+r)}", f"v_add_f32 {v(SX+4*kt+r)}, {v(FR+r)}, {v(FR+8+r)}")
    A(f"s_lshl_b32 {s(S_TMP)}, {s(S_WAVE)}, 4", f"v_add_u32 {v(T)}, {s(S_TMP)}, {v(VN)}", f"v_lshlrev_b32 {v(T2)}, 3, {v(VG)}", f"v_sub_u32 {v(T)}, {v(T)}, {v(T2)}", f"v_mov_b32 {v(T2)}, 0xf149f2ca")
    for j in range(8):
        A(f"v_cmp_le_i32 vcc, {j}, {v(T)}", "s_nop 1", f"v_cndmask_b32 {v(SX+j)}, {v(T2)}, {v(SX+j)}, vcc")
    A(f"{L1}:")
    Lm, Lmo = A.label("Xm"), A.label("Xmo")
    A(f"s_lshl_b32 {s(S_B)}, {s(S_SEG)}, 13", f"s_mul_i32 {s(S_TMP)}, {s(S_WAVE)}, 1792", f"s_add_u32 {s(S_B)}, {s(S_B)}, {s(S_TMP)}", f"s_add_u32 {s(S_B)}, {s(S_B)}, {MEMS_OFF:#x}")
    A(f"{Lm}:", f"buffer_load_dwordx4 {v(KF,4)}, {v(VL16)}, {s(WS,4)}, {s(S_B)} offen sc1", f"buffer_load_dwordx4 {v(KF+4,4)}, {v(VL16)}, {s(WS,4)}, {s(S_B)} offen offset:768 sc1",
      "s_waitcnt vmcnt(0)", f"v_max3_u32 {v(T)}, {v(KF)}, {v(KF+1)}, {v(KF+2)}", f"v_max3_u32 {v(T)}, {v(T)}, {v(KF+3)}, {v(KF+4)}", f"v_max3_u32 {v(T)}, {v(T)}, {v(KF+5)}, {v(KF+6)}",
      f"v_max_u32 {v(T)}, {v(T)}, {v(KF+7)}", f"v_cmp_eq_u32 vcc, -1, {v(T)}", f"s_cbranch_vccz {Lmo}", "s_sleep 1")
    timeout_step(A, Lm, abort)
    A(f"{Lmo}:", f"ds_write_b128 {v(VMW)}, {v(KF,4)}", f"ds_write_b128 {v(VMW)}, {v(KF+4,4)} offset:768")
    for cb in range(7):
        A(f"v_add_u32 {v(T)}, {256*cb}, {v(VKM)}", f"ds_read2_b32 {v(FR+2*cb,2)}, {v(T)} offset0:0 offset1:4")
    A("s_waitcnt lgkmcnt(0)")
    for cb in range(7):
        for t in range(2):
            A(mfma(SX + 8 + 4*t, v(FR+2*cb, 2), v(ACC + 8*cb + 4*t, 2), "0" if cb == 0 else None, k16=True))
    A("s_barrier")
    A("s_nop 6")
    for t in range(2): A(f"ds_write_b64 {v(VRW)}, {v(SX + 8 + 4*t, 2)} offset:{1024*t}")
    A("s_waitcnt lgkmcnt(0)", "s_barrier")
    L2 = A.label("Xr2")
    A(f"s_cmp_ge_u32 {s(S_WAVE)}, 2", f"s_cbranch_scc1 {L2}")
    for w in range(4): A(f"ds_read_b64 {v(FR + 2*w, 2)}, {v(VRR)} offset:{4096*w}")
    A("s_waitcnt lgkmcnt(0)")
    for r in range(2):
        A(f"v_add_f32 {v(FR+r)}, {v(FR+r)}, {v(FR+2+r)}", f"v_add_f32 {v(FR+4+r)}, {v(FR+4+r)}, {v(FR+6+r)}", f"v_add_f32 {v(SX+8+r)}, {v(FR+r)}, {v(FR+4+r)}")
    A(f"v_max3_f32 {v(T)}, {v(SX)}, {v(SX+1)}, {v(SX+2)}", f"v_max3_f32 {v(T)}, {v(T)}, {v(SX+3)}, {v(SX+4)}", f"v_max3_f32 {v(T)}, {v(T)}, {v(SX+5)}, {v(SX+6)}",
      f"v_max3_f32 {v(T)}, {v(T)}, {v(SX+7)}, {v(SX+8)}", f"v_max_f32 {v(T)}, {v(T)}, {v(SX+9)}")
    def xred(op):
        for sw in ("v_permlane16_swap_b32", "v_permlane32_swap_b32"):
            A(f"v_mov_b32 {v(T2)}, {v(T)}", "s_nop 1", f"{sw} {v(T)}, {v(T2)}", f"{op} {v(T)}, {v(T)}, {v(T2)}")
    xred("v_max_f32")
    for j in range(10): A(f"v_sub_f32 {v(SX+j)}, {v(SX+j)}, {v(T)}")
    for j in range(10): A(f"v_exp_f32 {v(SX+j)}, {v(SX+j)}")
    A(f"v_add_f32 {v(T)}, {v(SX)}, {v(SX+1)}")
    for j in range(2, 10): A(f"v_add_f32 {v(T)}, {v(T)}, {v(SX+j)}")
    xred("v_add_f32")
    A(f"v_rcp_f32 {v(T)}, {v(T)}", "s_nop 0")
    for j in range(10): A(f"v_mul_f32 {v(SX+j)}, {v(SX+j)}, {v(T)}")
    for r in range(5): A(f"v_cvt_pk_bf16_f32 {v(FR+r)}, {v(SX+2*r)}, {v(SX+2*r+1)}")
    A(f"s_mul_i32 {s(S_TMP)}, {s(S_SEG)}, 40960", f"s_mul_i32 {s(S_TMP2)}, {s(S_WAVE)}, 20480", f"s_add_u32 {s(S_TMP)}, {s(S_TMP)}, {s(S_TMP2)}", f"s_add_u32 {s(S_TMP)}, {s(S_TMP)}, {PX_OFF:#x}",
      f"s_lshl_b32 {s(S_TMP2)}, {s(S_H)}, 10", f"s_add_u32 {s(S_TMP2)}, {s(S_TMP2)}, {s(S_TMP)}",
      f"buffer_store_dwordx4 {v(FR,4)}, {v(VL16)}, {s(WS,4)}, {s(S_TMP2)} offen sc1",
      f"s_lshr_b32 {s(S_TMP2)}, {s(S_H)}, 2", f"s_lshl_b32 {s(S_TMP2)}, {s(S_TMP2)}, 10", f"s_add_u32 {s(S_TMP)}, {s(S_TMP)}, {s(S_TMP2)}",
      f"s_and_b32 {s(S_TMP2)}, {s(S_H)}, 3", f"s_lshl_b32 {s(S_TMP2)}, {s(S_TMP2)}, 2", f"s_add_u32 {s(S_TMP)}, {s(S_TMP)}, {s(S_TMP2)}", f"s_add_u32 {s(S_TMP)}, {s(S_TMP)}, 16384",
      f"buffer_store_dword {v(FR+4)}, {v(VL16)}, {s(WS,4)}, {s(S_TMP)} offen sc1")
    A(f"s_lshl_b32 {s(S_TMP)}, {s(S_SEG)}, 7", f"s_lshl_b32 {s(S_TMP2)}, {s(S_WAVE)}, 6", f"s_add_u32 {s(S_TMP)}, {s(S_TMP)}, {s(S_TMP2)}", f"s_lshl_b32 {s(S_TMP2)}, {s(S_H)}, 2",
      f"s_add_u32 {s(S_TMP)}, {s(S_TMP)}, {s(S_TMP2)}", f"s_add_u32 {s(S_TMP)}, {s(S_TMP)}, {FX_OFF:#x}", f"v_mov_b32 {v(T)}, 1",
      "s_waitcnt vmcnt(0)", "s_mov_b64 exec, 1", f"buffer_store_dword {v(T)}, off, {s(WS,4)}, {s(S_TMP)} sc1", "s_mov_b64 exec, -1")
    A(f"{L2}:")
    A("s_barrier")
    A(f"s_add_u32 {s(S_SEG)}, {s(S_SEG)}, {NX}", f"s_cmp_lt_u32 {s(S_SEG)}, 64", f"s_cbranch_scc1 {Lp}", "s_endpgm")

def role_PV(A, abort):
    VL, VG, VN, VL16, T, VZ, VF1, VF2, VRW, VRR, VO_ = range(1, 12)
    VOX, VP, PF_, ACC, RD = 16, 80, 96, 116, 132
    S_T, S_J = S_C, S_D
    lanes(A, VL, VG, VN, VL16)
    A(f"s_mul_i32 {s(S_SEG)}, {s(S_ROLE)}, 4682", f"s_lshr_b32 {s(S_SEG)}, {s(S_SEG)}, 16", f"s_mul_i32 {s(S_TMP)}, {s(S_SEG)}, 14", f"s_sub_u32 {s(S_TMP)}, {s(S_ROLE)}, {s(S_TMP)}",
      f"s_and_b32 {s(S_T)}, {s(S_TMP)}, 1", f"s_lshr_b32 {s(S_J)}, {s(S_TMP)}, 1", f"s_mov_b32 {s(S_TO)}, {W_TIMEOUT}")
    A(f"v_mov_b32 {v(VZ)}, 0")
    A(f"v_and_b32 {v(T)}, 3, {v(VL)}", f"v_lshlrev_b32 {v(VF1)}, 2, {v(T)}", f"s_lshl_b32 {s(S_TMP)}, {s(S_T)}, 6", f"s_lshl_b32 {s(S_TMP2)}, {s(S_WAVE)}, 4", f"s_add_u32 {s(S_TMP)}, {s(S_TMP)}, {s(S_TMP2)}",
      f"v_add_u32 {v(VF1)}, {s(S_TMP)}, {v(VF1)}")
    A(f"v_and_b32 {v(T)}, 7, {v(VL)}", f"v_lshlrev_b32 {v(VF2)}, 2, {v(T)}", f"s_lshl_b32 {s(S_TMP)}, {s(S_J)}, 5", f"v_add_u32 {v(VF2)}, {s(S_TMP)}, {v(VF2)}")
    A(f"s_lshl_b32 {s(S_TMP)}, {s(S_WAVE)}, 12", f"v_add_u32 {v(VRW)}, {s(S_TMP)}, {v(VL16)}", f"s_lshl_b32 {s(S_TMP)}, {s(S_WAVE)}, 10", f"v_add_u32 {v(VRR)}, {s(S_TMP)}, {v(VL16)}")
    A(f"v_mul_u32_u24 {v(VO_)}, 1792, {v(VN)}", f"v_lshl_add_u32 {v(VO_)}, {v(VG)}, 3, {v(VO_)}", f"s_mul_i32 {s(S_TMP)}, {s(S_T)}, {16*1792}", f"s_lshl_b32 {s(S_TMP2)}, {s(S_J)}, 7",
      f"s_add_u32 {s(S_TMP)}, {s(S_TMP)}, {s(S_TMP2)}", f"s_lshl_b32 {s(S_TMP2)}, {s(S_WAVE)}, 5", f"s_add_u32 {s(S_TMP)}, {s(S_TMP)}, {s(S_TMP2)}", f"s_add_u32 {s(S_TMP)}, {s(S_TMP)}, 896",
      f"v_add_u32 {v(VO_)}, {s(S_TMP)}, {v(VO_)}")
    Lp = A.label("PVloop")
    A(f"{Lp}:")
    A(f"s_lshl_b32 {s(S_A)}, {s(S_SEG)}, 8", f"s_add_u32 {s(S_A)}, {s(S_A)}, {CV_OFF:#x}")
    poll_eq(A, T, VZ, S_A, 16, abort, "cv")
    A(f"s_mul_i32 {s(S_TMP)}, {s(S_SEG)}, 458752", f"s_lshl_b32 {s(S_TMP2)}, {s(S_J)}, 16", f"s_add_u32 {s(S_TMP)}, {s(S_TMP)}, {s(S_TMP2)}", f"s_lshl_b32 {s(S_TMP2)}, {s(S_WAVE)}, 12",
      f"s_add_u32 {s(S_TMP)}, {s(S_TMP)}, {s(S_TMP2)}", f"s_add_u32 {s(S_TMP)}, {s(S_TMP)}, {VOX_OFF:#x}")
    for cc in range(4):
        for hh in range(4): A(f"buffer_load_dwordx4 {v(VOX + 16*cc + 4*hh, 4)}, {v(VL16)}, {s(WS,4)}, {s(S_TMP)} offen offset:{1024*hh} sc1")
        A(f"s_add_u32 {s(S_TMP)}, {s(S_TMP)}, 16384")
    A(f"s_lshl_b32 {s(S_A)}, {s(S_SEG)}, 7", f"s_add_u32 {s(S_A)}, {s(S_A)}, {FX_OFF:#x}")
    poll_eq(A, T, VF1, S_A, 1, abort, "fx")
    A(f"s_mul_i32 {s(S_TMP)}, {s(S_SEG)}, 40960", f"s_mul_i32 {s(S_TMP2)}, {s(S_T)}, 20480", f"s_add_u32 {s(S_TMP)}, {s(S_TMP)}, {s(S_TMP2)}", f"s_add_u32 {s(S_TMP)}, {s(S_TMP)}, {PX_OFF:#x}",
      f"s_lshl_b32 {s(S_TMP2)}, {s(S_WAVE)}, 12", f"s_add_u32 {s(S_TMP2)}, {s(S_TMP2)}, {s(S_TMP)}")
    for hh in range(4): A(f"buffer_load_dwordx4 {v(PF_ + 4*hh, 4)}, {v(VL16)}, {s(WS,4)}, {s(S_TMP2)} offen offset:{1024*hh} sc1")
    A(f"s_lshl_b32 {s(S_TMP2)}, {s(S_WAVE)}, 10", f"s_add_u32 {s(S_TMP)}, {s(S_TMP)}, {s(S_TMP2)}", f"s_add_u32 {s(S_TMP)}, {s(S_TMP)}, 16384",
      f"buffer_load_dwordx4 {v(PF_ + 16, 4)}, {v(VL16)}, {s(WS,4)}, {s(S_TMP)} offen sc1")
    A(f"s_lshl_b32 {s(S_A)}, {s(S_SEG)}, 8", f"s_add_u32 {s(S_A)}, {s(S_A)}, {FV_OFF:#x}")
    poll_eq(A, T, VF2, S_A, 1, abort, "fv")
    A(f"s_mul_i32 {s(S_TMP)}, {s(S_SEG)}, 114688", f"s_lshl_b32 {s(S_TMP2)}, {s(S_J)}, 14", f"s_add_u32 {s(S_TMP)}, {s(S_TMP)}, {s(S_TMP2)}", f"s_lshl_b32 {s(S_TMP2)}, {s(S_WAVE)}, 10",
      f"s_add_u32 {s(S_TMP)}, {s(S_TMP)}, {s(S_TMP2)}", f"s_add_u32 {s(S_TMP)}, {s(S_TMP)}, {VPE_OFF:#x}")
    for cc in range(4):
        A(f"buffer_load_dwordx4 {v(VP + 4*cc, 4)}, {v(VL16)}, {s(WS,4)}, {s(S_TMP)} offen sc1", f"s_add_u32 {s(S_TMP)}, {s(S_TMP)}, 4096")
    for hh in range(4):
        for cc in range(4): A(mfma(ACC + 4*cc, v(VOX + 16*cc + 4*hh, 4), v(PF_ + 4*hh, 4), "0" if hh == 0 else None))
    A("s_waitcnt vmcnt(0)")
    for cc in range(4): A(mfma(ACC + 4*cc, v(VP + 4*cc, 4), v(PF_ + 16, 4)))
    A("s_nop 7")
    for cc in range(4): A(f"ds_write_b128 {v(VRW)}, {v(ACC + 4*cc, 4)} offset:{1024*cc}")
    A("s_waitcnt lgkmcnt(0)", "s_barrier")
    for w in range(4): A(f"ds_read_b128 {v(RD + 4*w, 4)}, {v(VRR)} offset:{4096*w}")
    A("s_waitcnt lgkmcnt(0)", "s_barrier")
    for r in range(4):
        A(f"v_add_f32 {v(RD+r)}, {v(RD+r)}, {v(RD+4+r)}", f"v_add_f32 {v(RD+8+r)}, {v(RD+8+r)}, {v(RD+12+r)}", f"v_add_f32 {v(RD+r)}, {v(RD+r)}, {v(RD+8+r)}")
    A(f"v_cvt_pk_bf16_f32 {v(RD+4)}, {v(RD)}, {v(RD+1)}", f"v_cvt_pk_bf16_f32 {v(RD+5)}, {v(RD+2)}, {v(RD+3)}",
      f"s_mul_i32 {s(S_TMP)}, {s(S_SEG)}, {32*1792}", f"buffer_store_dwordx2 {v(RD+4,2)}, {v(VO_)}, {s(OUT,4)}, {s(S_TMP)} offen")
    A(f"s_add_u32 {s(S_SEG)}, {s(S_SEG)}, {NPG}", f"s_cmp_lt_u32 {s(S_SEG)}, 64", f"s_cbranch_scc1 {Lp}", "s_endpgm")

LOIMG = 32768

def role_L(A, abort):
    VL, VG, VN, VL16, T, T2, VR0, VL4, VMK, VON, VO_, VZ, VOA = range(1, 14)
    TB = [16, 72, 128, 184]
    W_ = 240
    PK = 112
    S_W, S_IT, S_KV, S_L2E, S_EPS = S_A, S_B, S_C, S_D, S_H
    A("; ---------------- role L")
    lanes(A, VL, VG, VN, VL16)
    A(f"s_mov_b32 {s(S_BUF)}, 0", f"s_mov_b32 {s(S_TO)}, {W_TIMEOUT}", f"s_mov_b32 {s(S_L2E)}, 0x3fb8aa3b", f"s_mov_b32 {s(S_EPS)}, 0x358637bd")
    dma_x(A, S_ROLE, S_BUF, VL16, XA)
    A(f"v_lshlrev_b32 {v(VL4)}, 2, {v(VL)}", f"v_mov_b32 {v(VZ)}, 0")
    A(f"v_lshrrev_b32 {v(T)}, 2, {v(VN)}", f"v_lshlrev_b32 {v(T2)}, 3, {v(T)}", f"v_and_b32 {v(T)}, 3, {v(VN)}", f"v_add_u32 {v(T2)}, {v(T2)}, {v(T)}",
      f"v_mul_u32_u24 {v(VR0)}, {RP}, {v(T2)}", f"v_lshl_add_u32 {v(VR0)}, {v(VG)}, 4, {v(VR0)}",
      f"v_mul_u32_u24 {v(VO_)}, 1792, {v(T2)}", f"v_lshl_add_u32 {v(VO_)}, {v(VG)}, 3, {v(VO_)}",
      f"s_mul_i32 {s(S_TMP)}, {s(S_ROLE)}, {32*1792}", f"s_mul_i32 {s(S_TMP2)}, {s(S_WAVE)}, 224", f"s_add_u32 {s(S_TMP)}, {s(S_TMP)}, {s(S_TMP2)}", f"v_add_u32 {v(VO_)}, {s(S_TMP)}, {v(VO_)}")
    A(f"v_cmp_gt_u32 vcc, 12, {v(VN)}", "s_nop 1", f"v_cndmask_b32 {v(VMK)}, 0, -1, vcc", f"v_mov_b32 {v(T)}, 0x3f803f80", f"v_cmp_eq_u32 vcc, 12, {v(VN)}", "s_nop 1", f"v_cndmask_b32 {v(VON)}, 0, {v(T)}, vcc")
    A(f"s_lshl_b32 {s(S_TMP)}, {s(S_WAVE)}, 13", f"s_add_u32 {s(S_TMP)}, {s(S_TMP)}, {LOIMG}", f"v_add_u32 {v(VOA)}, {s(S_TMP)}, {v(VL16)}")
    def ldtile(b, off):
        o = [f"s_add_u32 {s(S_TMP)}, {s(S_W)}, {off}"]
        for ks in range(14):
            o.append(f"buffer_load_dwordx4 {v(TB[b]+4*ks,4)}, {v(VL16)}, {s(WS,4)}, {s(S_TMP)} offen offset:{1024*(ks%4)}")
            if ks % 4 == 3: o.append(f"s_add_u32 {s(S_TMP)}, {s(S_TMP)}, 4096")
        return o
    KO, VOF = 32*14336, 64*14336
    toff = [KO, KO + 14336, VOF, VOF + 14336]
    A(f"s_mul_i32 {s(S_W)}, {s(S_WAVE)}, {8*14336}", f"s_add_u32 {s(S_W)}, {s(S_W)}, {WQF_OFF:#x}")
    A("s_waitcnt vmcnt(0)", "s_barrier")
    for b in range(4): A(ldtile(b, toff[b]))
    for tt in range(2):
        for ks in range(14): A(f"ds_read_b128 {a_(56*tt + 4*ks, 4)}, {v(VR0)} offset:{64*ks + 4*RP*tt}")
        A("s_waitcnt lgkmcnt(0)")
    xf = lambda tt, ks: a_(56*tt + 4*ks, 4)
    def phi_pair(dst, a, b, t0):
        p, q, e, f = t0, t0+1, t0+2, t0+3
        return [f"v_cvt_pk_bf16_f32 {v(q)}, {v(a)}, {v(b)}", f"v_lshlrev_b32 {v(p)}, 16, {v(q)}", f"v_and_b32 {v(q)}, 0xffff0000, {v(q)}",
                f"v_mul_f32 {v(e)}, {s(S_L2E)}, {v(p)}", f"v_mul_f32 {v(f)}, {s(S_L2E)}, {v(q)}", f"v_exp_f32 {v(e)}, {v(e)}", f"v_exp_f32 {v(f)}, {v(f)}",
                f"v_add_f32 {v(p)}, 1.0, {v(p)}", f"v_add_f32 {v(q)}, 1.0, {v(q)}", f"v_med3_f32 {v(p)}, {v(p)}, {v(e)}, 1.0", f"v_med3_f32 {v(q)}, {v(q)}, {v(f)}, 1.0",
                f"v_cvt_pk_bf16_f32 {v(q)}, {v(p)}, {v(q)}", f"v_lshlrev_b32 {v(p)}, 16, {v(q)}", f"v_and_b32 {v(q)}, 0xffff0000, {v(q)}",
                f"v_add_f32 {v(p)}, {s(S_EPS)}, {v(p)}", f"v_add_f32 {v(q)}, {s(S_EPS)}, {v(q)}", f"v_cvt_pk_bf16_f32 {v(dst)}, {v(p)}, {v(q)}"]
    A(f"s_mov_b32 {s(S_IT)}, 0", f"s_lshl_b32 {s(S_KV)}, {s(S_WAVE)}, 14", f"s_add_u32 {s(S_KV)}, {s(S_KV)}, {KV_OFF:#x}")
    L1 = A.label("L1")
    A(f"{L1}:")
    A(f"s_add_u32 {s(S_W)}, {s(S_W)}, {2*14336}")
    for b in range(4):
        A("s_waitcnt vmcnt(42)")
        for ks in range(14):
            for tt in range(2): A(mfma(W_ + 4*tt, xf(tt, ks), v(TB[b]+4*ks, 4), "0" if ks == 0 else None))
        A(ldtile(b, toff[b]))
        for r in range(4):
            if b < 2:
                A(phi_pair(W_+8, W_+2*r, W_+2*r+1, W_+9))
                if b == 1: A(f"v_and_b32 {v(W_+8)}, {v(W_+8)}, {v(VMK)}")
            else:
                A(f"v_cvt_pk_bf16_f32 {v(W_+8)}, {v(W_+2*r)}, {v(W_+2*r+1)}")
                if b == 3: A(f"v_or_b32 {v(W_+8)}, {v(W_+8)}, {v(VON)}")
            A(f"v_accvgpr_write_b32 {a_(112 + 4*b + r)}, {v(W_+8)}")
    A("s_nop 1")
    for td in range(2):
        for te in range(2): A(mfma(W_ + 8*td + 4*te, a_(112 + 4*td, 4), a_(120 + 4*te, 4), "0"))
    A("s_waitcnt vmcnt(40)", "s_nop 7")
    for r in range(16): A(f"buffer_atomic_add_f32 {v(W_+r)}, {v(VL4)}, {s(WS,4)}, {s(S_KV)} offen offset:{256*r}")
    A(f"s_add_u32 {s(S_KV)}, {s(S_KV)}, 4096", f"s_add_u32 {s(S_IT)}, {s(S_IT)}, 1", f"s_cmp_lt_u32 {s(S_IT)}, 4", f"s_cbranch_scc1 {L1}")
    A("s_waitcnt vmcnt(0)", "s_barrier")
    Ln = A.label("Lns")
    A(f"s_mov_b32 {s(S_KV)}, {CL_OFF:#x}", f"s_cmp_lg_u32 {s(S_WAVE)}, 0", f"s_cbranch_scc1 {Ln}")
    A(f"v_mov_b32 {v(T)}, 1", "s_mov_b64 exec, 1", f"buffer_atomic_add {v(T)}, off, {s(WS,4)}, {s(S_KV)} sc1", "s_mov_b64 exec, -1")
    A(f"{Ln}:")
    A(f"s_mul_i32 {s(S_W)}, {s(S_WAVE)}, {8*14336}", f"s_add_u32 {s(S_W)}, {s(S_W)}, {WQF_OFF:#x}")
    for b in range(2): A(ldtile(b, 14336*b))
    poll_eq(A, T, VZ, S_KV, 64, abort, "cl")
    A(f"s_mov_b32 {s(S_IT)}, 0", f"s_lshl_b32 {s(S_KV)}, {s(S_WAVE)}, 14", f"s_add_u32 {s(S_KV)}, {s(S_KV)}, {KV_OFF:#x}")
    Q, KVR, KVT, ZO, PQ, NUM, DEN, TMPS = 128, 144, 160, 168, 172, 180, 188, 192
    L2 = A.label("L2")
    A(f"{L2}:")
    for r in range(16): A(f"buffer_load_dword {v(KVR+r)}, {v(VL4)}, {s(WS,4)}, {s(S_KV)} offen offset:{256*r} sc1")
    A(f"s_add_u32 {s(S_W)}, {s(S_W)}, {2*14336}", "s_waitcnt vmcnt(16)")
    for b in range(2):
        for ks in range(14):
            for tt in range(2): A(mfma(Q + 8*tt + 4*b, v(TB[b]+4*ks, 4), xf(tt, ks), "0" if ks == 0 else None))
    A("s_waitcnt vmcnt(0)")
    for b in range(2): A(ldtile(b, 14336*b))
    for tt in range(2):
        for r in range(4): A(phi_pair(PQ + 4*tt + r, Q + 8*tt + 2*r, Q + 8*tt + 2*r + 1, TMPS))
    for te in range(2):
        for td in range(2):
            for p in range(2): A(f"v_cvt_pk_bf16_f32 {v(KVT + 4*te + 2*td + p)}, {v(KVR + 8*td + 4*te + 2*p)}, {v(KVR + 8*td + 4*te + 2*p + 1)}")
    A("s_nop 1")
    for r in range(4): A(f"v_mov_b32_dpp {v(ZO+r)}, {v(KVT+4+r)} row_newbcast:12 row_mask:0xf bank_mask:0xf")
    A("s_nop 1")
    for tt in range(2):
        for te in range(2): A(mfma(NUM + 4*te, v(KVT + 4*te, 4), v(PQ + 4*tt, 4), "0"))
        A(mfma(DEN, v(ZO, 4), v(PQ + 4*tt, 4), "0"), "s_nop 7")
        d, u = TMPS, TMPS+1
        A(f"v_cvt_pk_bf16_f32 {v(d)}, {v(DEN)}, {v(DEN)}", f"v_and_b32 {v(d)}, 0xffff0000, {v(d)}", f"v_add_f32 {v(d)}, {s(S_EPS)}, {v(d)}",
          f"v_cvt_pk_bf16_f32 {v(d)}, {v(d)}, {v(d)}", f"v_and_b32 {v(d)}, 0xffff0000, {v(d)}", f"v_rcp_f32 {v(d)}, {v(d)}")
        for r in range(4):
            A(f"v_cvt_pk_bf16_f32 {v(u+1)}, {v(NUM+2*r)}, {v(NUM+2*r+1)}", f"v_lshlrev_b32 {v(u)}, 16, {v(u+1)}", f"v_and_b32 {v(u+1)}, 0xffff0000, {v(u+1)}",
              f"v_mul_f32 {v(u)}, {v(u)}, {v(d)}", f"v_mul_f32 {v(u+1)}, {v(u+1)}, {v(d)}", f"v_cvt_pk_bf16_f32 {v(TMPS+4+r)}, {v(u)}, {v(u+1)}")
        A(f"ds_write_b128 {v(VOA)}, {v(TMPS+4,4)} offset:{1024*tt}", "s_waitcnt lgkmcnt(0)")
    A(f"v_add_u32 {v(VOA)}, 2048, {v(VOA)}")
    A(f"s_add_u32 {s(S_KV)}, {s(S_KV)}, 4096", f"s_add_u32 {s(S_IT)}, {s(S_IT)}, 1", f"s_cmp_lt_u32 {s(S_IT)}, 4", f"s_cbranch_scc1 {L2}")
    A("s_waitcnt vmcnt(0)", "s_barrier")
    A(f"s_mul_i32 {s(S_W)}, {s(S_WAVE)}, {7*16384}", f"s_add_u32 {s(S_W)}, {s(S_W)}, {WOF_OFF:#x}")
    def ldwo(c):
        o = []
        for h in range(16):
            if h % 4 == 0: o.append(f"s_add_u32 {s(S_TMP)}, {s(S_W)}, {16384*c + 1024*h}")
            o.append(f"buffer_load_dwordx4 {v(16 + 64*(c % 3) + 4*h, 4)}, {v(VL16)}, {s(WS,4)}, {s(S_TMP)} offen offset:{1024*(h%4)}")
        return o
    A(ldwo(0), ldwo(1))
    for f in range(32):
        A(f"ds_read_b128 {a_(4*f, 4)}, {v(VL16)} offset:{LOIMG + 1024*f}")
        if f % 8 == 7: A("s_waitcnt lgkmcnt(0)")
    for c in range(7):
        if c + 2 < 7: A(ldwo(c+2))
        nyoung = 16*min(2, 6-c) + (2 if c >= 1 else 0) * 0
        A(f"s_waitcnt vmcnt({16*min(2, 6-c)})")
        for h in range(16):
            for tt in range(2): A(mfma(W_ + 4*tt, v(16 + 64*(c % 3) + 4*h, 4), a_(8*h + 4*tt, 4), "0" if h == 0 else None))
        A("s_nop 7")
        for tt in range(2):
            A(f"v_cvt_pk_bf16_f32 {v(W_+8+2*tt)}, {v(W_+4*tt)}, {v(W_+4*tt+1)}", f"v_cvt_pk_bf16_f32 {v(W_+9+2*tt)}, {v(W_+4*tt+2)}, {v(W_+4*tt+3)}")
        A(f"s_mov_b32 {s(S_TMP)}, {4*1792}",
          f"buffer_store_dwordx2 {v(W_+8,2)}, {v(VO_)}, {s(OUT,4)}, 0 offen offset:{32*c}", f"buffer_store_dwordx2 {v(W_+10,2)}, {v(VO_)}, {s(OUT,4)}, {s(S_TMP)} offen offset:{32*c}")
    A("s_endpgm")
```

```python
import sys
from asm import *
from model import *
import k1, rec, workers
from rec import WS, XB, DBG, S_WAVE, S_ROLE, S_TMP, S_TMP2
from workers import OUT, XA

def main_kernel(A, name, profile=False):
    NV, NX, NPG = workers.NV, workers.NX, workers.NPG
    kernel_begin(A, name)
    Lexit = A.label("exit")
    A("s_cmp_ge_u32 s2, 256", f"s_cbranch_scc1 {Lexit}")
    srd(A, WS, 96, 0x10000000); srd(A, XB, 24, 1835008); srd(A, DBG, 88, 256); srd(A, OUT, 80, 2048*896*2); srd(A, XA, 0, 1835008)
    A("v_lshrrev_b32 v1, 6, v0", "s_nop 0", f"v_readfirstlane_b32 {s(S_WAVE)}, v1", "s_waitcnt lgkmcnt(0)")
    Lw, Lwk, Ltm, Ld = A.label("notw0"), A.label("wk"), A.label("tm"), A.label("rd")
    A(f"s_cmp_lg_u32 {s(S_WAVE)}, 0", f"s_cbranch_scc1 {Lw}")
    def ticket(off):
        A("v_mov_b32 v1, 1", f"buffer_atomic_add v1, off, {s(DBG,4)}, 0 offset:{off} sc0", "s_waitcnt vmcnt(0)", f"v_readfirstlane_b32 {s(S_TMP2)}, v1")
    A("s_mov_b64 exec, 1")
    A(f"s_getreg_b32 {s(S_TMP)}, hwreg(HW_REG_XCC_ID)", f"s_and_b32 {s(S_TMP)}, {s(S_TMP)}, 15", f"s_cmp_lg_u32 {s(S_TMP)}, 0", f"s_cbranch_scc1 {Lwk}")
    ticket(0)
    A(f"s_cmp_lt_u32 {s(S_TMP2)}, 32", f"s_cbranch_scc1 {Ld}")
    ticket(4)
    A(f"s_add_u32 {s(S_TMP2)}, {s(S_TMP2)}, 32", f"s_branch {Ld}")
    A(f"{Lwk}:")
    ticket(4)
    A(f"s_add_u32 {s(S_TMP2)}, {s(S_TMP2)}, 32", f"s_cmp_lt_u32 {s(S_TMP2)}, 256", f"s_cbranch_scc1 {Ld}")
    ticket(0)
    A(f"s_cmp_lt_u32 {s(S_TMP2)}, 32", f"s_cselect_b32 {s(S_TMP2)}, {s(S_TMP2)}, 1000")
    A(f"{Ld}:", f"v_mov_b32 v1, {s(S_TMP2)}", "v_mov_b32 v2, 0x1f000", "ds_write_b32 v2, v1", "s_waitcnt lgkmcnt(0)", "s_mov_b64 exec, -1")
    A(f"{Lw}:", "s_barrier", "v_mov_b32 v2, 0x1f000", "ds_read_b32 v1, v2", "s_waitcnt lgkmcnt(0)", f"v_readfirstlane_b32 {s(S_ROLE)}, v1")
    ranges = [("A", 16), ("B", 30), ("PF", 32), ("V", 32 + 16*NV), ("X", 32 + 16*NV + 16*NX), ("PV", 32 + 16*NV + 16*NX + 14*NPG), ("L", 32 + 16*NV + 16*NX + 14*NPG + 64)]
    assert ranges[-1][1] <= 256
    L = {n: A.label("role" + n) for n, _ in ranges}
    J = {n: A.label("jmp" + n) for n, _ in ranges}
    for n, hi in ranges: A(f"s_cmp_lt_u32 {s(S_ROLE)}, {hi}", f"s_cbranch_scc1 {J[n]}")
    A(f"{Lexit}:", "s_endpgm")
    lo = 0
    for n, hi in ranges:
        A(f"{J[n]}:")
        if n in ("V", "X", "PV", "L"): A(f"s_sub_u32 {s(S_ROLE)}, {s(S_ROLE)}, {lo}")
        A(f"s_branch {L[n]}")
        lo = hi
    for R, fn in (("A", rec.role_A), ("B", rec.role_B)):
        A(f"{L[R]}:")
        Ls = [A.label(f"{R}w{w}") for w in range(4)]
        for w in range(1, 4): A(f"s_cmp_eq_u32 {s(S_WAVE)}, {w}", f"s_cbranch_scc1 {Ls[w]}")
        for w in range(4):
            A(f"{Ls[w]}:"); fn(A, w, Lexit, profile)
    Lx2 = A.label("exit2")
    for R, fn in (("PF", rec.role_PF), ("V", workers.role_V), ("X", workers.role_X), ("PV", workers.role_PV), ("L", workers.role_L)):
        A(f"{L[R]}:"); fn(A, Lx2)
    A(f"{Lx2}:", "s_endpgm")
    A(kernel_desc(name))

HDR = open("concat_heads__linear_attn_block__memory_aug_recurrent_mem_tr__prompt.s.ref").read().split("; Override launch")[0] if len(sys.argv) > 2 and sys.argv[2] == "final" else ""
def generate(path, parts=("k1", "main"), **kw):
    A = Asm()
    hdr = []
    if "k1" in parts: hdr.append(f"; @launch kernel=prep_kernel grid=(256,1,1) block=(256,1,1) lds={k1.K1_LDS}")
    if "main" in parts: hdr.append("; @launch kernel=main_kernel grid=(256,1,1) block=(256,1,1) lds=131072")
    A('.amdgcn_target "amdgcn-amd-amdhsa--gfx950"', ".text")
    g = vars(rec); saved = dict(g); g.update(FULL=1, TIMEOUT=300000); g.update(kw)
    if "k1" in parts: k1.k1_kernel(A, "prep_kernel")
    if "main" in parts: main_kernel(A, "main_kernel")
    g.update({k: saved[k] for k in list(kw) + ["FULL", "TIMEOUT"]})
    open(path, "w").write(HDR + "\n".join(hdr) + "\n" + A.text())
if __name__ == "__main__":
    generate(sys.argv[1], STAMP=0 if HDR else 1)
```

```python
from asm import *
from model import *

WS, XB, DBG = 4, 8, 12
S_WAVE, S_ROLE, S_STEP, S_MEM, S_MEM2, S_P, S_X, S_VOX, S_TO, S_TMP, S_TMP2, S_P2, S_MEMN = range(16, 29)
S_PROF = 30
NSTEPS = 63
PACCUM = 0
PMASK = 255
TIMEOUT = 40000

def smf(d, a, b, idx, hi=False):
    return f"v_smfmac_f32_16x16x64_bf16 {v(d,4)}, {v(a,4)}, {b}, {v(idx)}" + (" abid:1" if hi else "")

def wreg(f, n=8, sub=0):
    return a_(8*f + sub, n) if f < 32 else v(120 + 8*(f-32) + sub, n)

def lane_consts(A, VL, VG, VN):
    A(f"v_and_b32 {v(VL)}, 63, v0", f"v_lshrrev_b32 {v(VG)}, 4, {v(VL)}", f"v_and_b32 {v(VN)}, 15, {v(VL)}")

def mem_lane_off(A, dst, VG, VN, t):
    A(f"v_lshlrev_b32 {v(dst)}, 8, {v(VG)}", f"v_lshl_add_u32 {v(dst)}, {v(VN)}, 4, {v(dst)}")

def idx_const(A, dst, VN, t):
    A(f"v_and_b32 {v(t)}, 1, {v(VN)}", f"v_mul_u32_u24 {v(dst)}, 0xAAAA, {v(t)}",
      f"v_lshrrev_b32 {v(t)}, 3, {v(VN)}", f"v_mul_u32_u24 {v(t)}, 0xAAAA, {v(t)}",
      f"v_lshl_add_u32 {v(dst)}, {v(t)}, 16, {v(dst)}", f"v_add_u32 {v(dst)}, 0x44444444, {v(dst)}")

def memload(dst, voff, kb):
    so = S_MEM if kb < 4 else S_MEM2
    return f"buffer_load_dwordx4 {v(dst,4)}, {v(voff)}, {s(WS,4)}, {s(so)} offen offset:{(kb%4)*1024} sc1"

def chk4(t, r, first=True):
    if first:
        return [f"v_max3_u32 {v(t)}, {v(r)}, {v(r+1)}, {v(r+2)}", f"v_max_u32 {v(t)}, {v(t)}, {v(r+3)}"]
    return [f"v_max3_u32 {v(t)}, {v(t)}, {v(r)}, {v(r+1)}", f"v_max3_u32 {v(t)}, {v(t)}, {v(r+2)}, {v(r+3)}"]

def timeout_step(A, again, abort):
    A(f"s_sub_u32 {s(S_TO)}, {s(S_TO)}, 1", f"s_cbranch_scc1 {abort}", f"s_branch {again}")

def prof(A, slot, on):
    if on and (PMASK >> slot) & 1:
        A(f"s_memtime {s(S_PROF+2*slot,2)}")

def prof_flush(A, n, vt, vz, role_wave_off):
    A("s_waitcnt lgkmcnt(0)")
    A(f"s_lshl_b32 {s(S_TMP)}, {s(S_ROLE)}, 2", f"s_add_u32 {s(S_TMP)}, {s(S_TMP)}, {s(S_WAVE)}", f"s_lshl_b32 {s(S_TMP)}, {s(S_TMP)}, 6",
      f"s_add_u32 {s(S_TMP)}, {s(S_TMP)}, {s(S_STEP)}", f"s_lshl_b32 {s(S_TMP)}, {s(S_TMP)}, 6", f"s_add_u32 {s(S_TMP)}, {s(S_TMP)}, {PROF_OFF:#x}")
    A(f"v_mov_b32 {v(vz)}, 0")
    for k in range(n):
        A(f"v_mov_b32 {v(vt)}, {s(S_PROF+2*k)}", f"buffer_store_dword {v(vt)}, {v(vz)}, {s(WS,4)}, {s(S_TMP)} offen offset:{4*k}")

def prof_acc(A, n):
    A("s_memtime s[72:73]", "s_waitcnt lgkmcnt(0)")
    for k in range(n):
        A(f"s_sub_u32 {s(S_TMP)}, {s(S_PROF+2*k)}, s71", f"s_add_u32 s{74+k}, s{74+k}, {s(S_TMP)}")
    A(f"s_sub_u32 {s(S_TMP)}, s72, s71", f"s_add_u32 s{74+n}, s{74+n}, {s(S_TMP)}", "s_mov_b32 s71, s72" if PACCUM == 1 else "s_mov_b32 s71, 0")
    Lz = A.label("pz")
    A(f"s_cmp_lg_u32 {s(S_STEP)}, 12", f"s_cbranch_scc1 {Lz}")
    for k in range(n+1): A(f"s_mov_b32 s{74+k}, 0")
    A(f"{Lz}:")
def prof_acc_out(A, n):
    A(f"s_lshl_b32 {s(S_TMP)}, {s(S_ROLE)}, 2", f"s_add_u32 {s(S_TMP)}, {s(S_TMP)}, {s(S_WAVE)}", f"s_lshl_b32 {s(S_TMP)}, {s(S_TMP)}, 6", f"s_add_u32 {s(S_TMP)}, {s(S_TMP)}, {PROF_OFF:#x}")
    for k in range(n+1):
        A(f"v_mov_b32 v0, s{74+k}", f"buffer_store_dword v0, off, {s(WS,4)}, {s(S_TMP)} offset:{4*k}")

def emit_slots(A, slots):
    for sl in slots:
        A(sl['m']); A(sl['pre']); A(sl['valu']); A(sl['post'])

TIMG = 0
TW = 1808
MIMG = 8192
XIMG = 16384
RS = 256
XSL = 20480
A_SLEEP = 0
FS0 = 0
FSD = 0
B1S = 38
B2S = 47
TRN = 6
X_NOPM = 0
PFA = 3
ATOUCH = 2
VPRE = 0
BTOUCH = 0
BT0 = 0
BTA = 1
TCH0 = 14
TAHEAD = 1
TGATE = 2
XPRE = 14
XPG = 8
X_NOVOX = 0
X_NOV = 0
FPD = 4
PGAP = 30
WARM = 0
B0S = 10
F2AT = 0
XSCR = 0
EXW = 6
TLM = 0
FROFF = 14336
F1AT = 2
FULL = 0
PB2 = 0
LDFL = 0
F1GO = 1
VOXS = 3
STAMP = 1
XS0 = 10
XSN = 20
D1 = 120
D2 = 22
F2D = 40
F2OFF = 10240
F1OFF = 12288
APW = 2
BPW = 3
F1W = 2
X_NODMA = 0
X_NOH = 0
X_NOTR = 0
X_NOCONV = 0
X_NOB1 = 0
B_SLEEP_M = 4
B_SLEEP_P = 0

def nops(n):
    out = []
    while n > 0:
        k = min(n, 16); out.append(f"s_nop {k-1}"); n -= k
    return out

def flag_ld(r, voff, soff, off):
    return f"buffer_load_dword {v(r)}, {v(voff)}, {s(WS,4)}, {s(soff)} offen offset:{off} sc1"
def flag_poll(A, regs, voff, soff, off, abort, tag, primed=False):
    Lp, Lgo = A.label(tag + "fp"), A.label(tag + "go")
    ld = lambda r: flag_ld(r, voff, soff, off)
    n = len(regs)
    if not primed:
        for r in regs: A(ld(r), f"s_nop {48 // n - 1}")
    A(f"{Lp}:")
    for r in regs:
        A(f"s_waitcnt vmcnt({n-1})", f"v_cmp_eq_u32 vcc, -1, {v(r)}", f"s_cbranch_vccz {Lgo}", ld(r))
    timeout_step(A, Lp, abort)
    A(f"{Lgo}:")

def mkslots(ms):
    return [dict(m=m, pre=[], valu=[], post=[]) for m in ms]

def role_A(A, w, abort, profile=False):
    MEMR, ACC, HT = 0, 28, 56
    IDX, VMEM, VTW, VTR, VH, VX, TMP, TMP2 = range(112, 120)
    VG, VN, VL = 1, 2, 3
    ko = [(2*w + i) % 7 for i in range(7)]
    lane_consts(A, VL, VG, VN)
    idx_const(A, IDX, VN, TMP)
    mem_lane_off(A, VMEM, VG, VN, TMP)
    A(f"v_lshlrev_b32 {v(VTW)}, 4, {v(VN)}", f"v_lshl_add_u32 {v(VTW)}, {v(VG)}, 2, {v(VTW)}", f"v_add_u32 {v(VTW)}, {TIMG + w*TW}, {v(VTW)}")
    A(f"v_and_b32 {v(TMP)}, 1, {v(VG)}", f"v_mul_u32_u24 {v(VTR)}, {2*TW}, {v(TMP)}",
      f"v_lshrrev_b32 {v(TMP)}, 3, {v(VN)}", f"v_lshl_add_u32 {v(VTR)}, {v(TMP)}, 7, {v(VTR)}",
      f"v_bfe_u32 {v(TMP)}, {v(VN)}, 1, 1", f"v_lshl_add_u32 {v(VTR)}, {v(TMP)}, 6, {v(VTR)}",
      f"v_lshrrev_b32 {v(TMP)}, 1, {v(VG)}", f"v_lshl_add_u32 {v(VTR)}, {v(TMP)}, 5, {v(VTR)}",
      f"v_bfe_u32 {v(TMP)}, {v(VN)}, 2, 1", f"v_lshl_add_u32 {v(VTR)}, {v(TMP)}, 4, {v(VTR)}",
      f"v_and_b32 {v(TMP)}, 1, {v(VN)}", f"v_lshl_add_u32 {v(VTR)}, {v(TMP)}, 3, {v(VTR)}")
    if TIMG: A(f"v_add_u32 {v(VTR)}, {TIMG}, {v(VTR)}")
    if w < 3:
        A(f"v_lshlrev_b32 {v(VX)}, 10, {v(VG)}",
          f"v_lshl_add_u32 {v(VX)}, {v(VN)}, {3 if w < 2 else 2}, {v(VX)}", f"v_add_u32 {v(VX)}, {XIMG + (4*w if w < 2 else 128)}, {v(VX)}")
    if w < 2:
        A(f"v_lshlrev_b32 {v(VH)}, 4, {v(VL)}")
    elif w == 2:
        A(f"v_mul_u32_u24 {v(VH)}, 1792, {v(VG)}", f"v_and_b32 {v(TMP)}, 7, {v(VN)}", f"v_lshl_add_u32 {v(VH)}, {v(TMP)}, 5, {v(VH)}",
          f"v_add_u32 {v(VH)}, {MIMG}, {v(VH)}")
    else:
        PXO, PMO = HT + 40, HT + 41
        A(f"v_lshrrev_b32 {v(TMP2)}, 3, {v(VL)}", f"v_mul_u32_u24 {v(VH)}, {RS}, {v(TMP2)}", f"v_and_b32 {v(TMP)}, 7, {v(VL)}",
          f"v_lshl_add_u32 {v(VX)}, {v(TMP)}, 4, {v(VH)}", f"v_add_u32 {v(VX)}, {XIMG}, {v(VX)}",
          f"v_lshl_add_u32 {v(VH)}, {v(TMP)}, 2, {v(VH)}", f"v_add_u32 {v(VH)}, {XIMG + 128}, {v(VH)}")
        A(f"v_and_b32 {v(TMP)}, 3, {v(VL)}", f"v_lshlrev_b32 {v(PXO)}, 3, {v(TMP)}", f"v_lshl_add_u32 {v(PXO)}, {v(TMP2)}, 5, {v(PXO)}",
          f"v_bfe_u32 {v(TMP)}, {v(VL)}, 2, 1", f"v_lshl_add_u32 {v(PXO)}, {v(TMP)}, 8, {v(PXO)}",
          f"s_lshl_b32 {s(S_TMP)}, {s(S_ROLE)}, 9", f"v_add_u32 {v(PXO)}, {s(S_TMP)}, {v(PXO)}")
        A(f"v_lshlrev_b32 {v(PMO)}, 5, {v(TMP2)}",
          f"v_bfe_u32 {v(TMP)}, {v(VL)}, 2, 1", f"v_lshl_add_u32 {v(PMO)}, {v(TMP)}, 8, {v(PMO)}",
          f"v_bfe_u32 {v(TMP)}, {v(VL)}, 1, 1", f"v_lshl_add_u32 {v(PMO)}, {v(TMP)}, 3, {v(PMO)}",
          f"s_lshr_b32 {s(S_TMP)}, {s(S_ROLE)}, 2", f"s_lshl_b32 {s(S_TMP)}, {s(S_TMP)}, 9",
          f"s_and_b32 {s(S_TMP2)}, {s(S_ROLE)}, 1", f"s_lshl_b32 {s(S_TMP2)}, {s(S_TMP2)}, 4", f"s_add_u32 {s(S_TMP)}, {s(S_TMP)}, {s(S_TMP2)}",
          f"s_bfe_u32 {s(S_TMP2)}, {s(S_ROLE)}, 0x10001", f"s_lshl_b32 {s(S_TMP2)}, {s(S_TMP2)}, 2", f"s_add_u32 {s(S_TMP)}, {s(S_TMP)}, {s(S_TMP2)}",
          f"s_add_u32 {s(S_TMP)}, {s(S_TMP)}, 8192", f"v_add_u32 {v(PMO)}, {s(S_TMP)}, {v(PMO)}")
        A(f"v_and_b32 {v(TMP)}, 1, {v(VL)}", f"v_lshl_add_u32 {v(PMO)}, {v(TMP)}, 30, {v(PMO)}")
    if w == APW:
        A(f"v_min_u32 {v(TMP2)}, 27, {v(VL)}", f"v_lshlrev_b32 {v(TMP2)}, 2, {v(TMP2)}", f"s_lshr_b32 {s(S_TMP)}, {s(S_ROLE)}, 2", f"s_lshl_b32 {s(S_TMP)}, {s(S_TMP)}, 8", f"s_add_u32 {s(S_TMP)}, {s(S_TMP)}, {F1OFF}", f"v_add_u32 {v(TMP2)}, {s(S_TMP)}, {v(TMP2)}")
    if w == 3:
        A(f"v_lshlrev_b32 {v(TMP2)}, 7, {v(VL)}", f"s_lshl_b32 {s(S_TMP)}, {s(S_ROLE)}, 2", f"s_add_u32 {s(S_TMP)}, {s(S_TMP)}, {F2OFF}", f"v_add_u32 {v(TMP2)}, {s(S_TMP)}, {v(TMP2)}",
          f"v_cmp_lt_u32 vcc, 13, {v(VL)}", f"v_mov_b32 {v(TMP)}, 0x40000000", "s_nop 0", f"v_cndmask_b32 {v(TMP2)}, {v(TMP2)}, {v(TMP)}, vcc")
    A(f"v_lshlrev_b32 {v(TMP)}, 4, {v(VL)}")
    A(f"s_mul_i32 {s(S_TMP)}, {s(S_ROLE)}, {28*14336}", f"s_add_u32 {s(S_TMP)}, {s(S_TMP)}, {WA_OFF + 7*w*14336}")
    for cb in range(7):
        for p in range(7):
            f = cb*7 + p
            off = cb*14336 + ko[p]*2048
            A(f"s_add_u32 {s(S_TMP2)}, {s(S_TMP)}, {off}")
            for hi in range(2):
                A(f"buffer_load_dwordx4 {wreg(f,4,4*hi)}, {v(TMP)}, {s(WS,4)}, {s(S_TMP2)} offen offset:{1024*hi}")
        if cb >= 2: A("s_waitcnt vmcnt(28)")
    A(f"s_mov_b32 {s(S_STEP)}, 0", f"s_mov_b32 {s(S_MEM)}, {MEMF_OFF:#x}", f"s_mov_b32 {s(S_MEM2)}, {MEMF_OFF+4096:#x}",
      f"s_mov_b32 {s(S_P)}, {PF_OFF:#x}", f"s_mov_b32 {s(S_X)}, {XS_OFF + 14336*(w%2):#x}", f"s_mov_b32 {s(S_TO)}, {TIMEOUT}")
    Lstep = A.label(f"A{w}step"); Lpoll = A.label(f"A{w}poll")
    if w == 3:
        A(f"v_lshlrev_b32 {v(HT+43)}, 7, {v(VL)}", f"s_lshl_b32 {s(S_VOX)}, {s(S_ROLE)}, 14", f"s_add_u32 {s(S_VOX)}, {s(S_VOX)}, {VOX_OFF + 458752*TAHEAD + 8192:#x}",
          f"s_cmp_lt_u32 {s(S_ROLE)}, 12", f"s_cselect_b32 s59, {16*16384}, 0x40000000")
        A(f"s_cmp_lt_u32 {s(S_ROLE)}, 7", f"s_cselect_b32 s61, {ALT:#x}, 0x40000000", f"s_min_u32 {s(S_TMP)}, {s(S_ROLE)}, 6",
          f"s_lshl_b32 {s(S_TMP)}, {s(S_TMP)}, 10", f"v_add_u32 {v(HT+47)}, {s(S_TMP)}, {v(VMEM)}")
    if w < 2:
        for j in range(XPRE):
            if j % 4 == 0: A(f"s_add_u32 {s(S_TMP)}, {s(S_X)}, {1024*j}")
            A(f"buffer_load_dwordx4 {v(HT+4*j,4)}, {v(VH)}, {s(WS,4)}, {s(S_TMP)} offen offset:{1024*(j%4)}")
    A(f"s_mov_b32 {s(S_PROF+16)}, 0")
    if STAMP: A("s_mov_b32 s58, 0")
    if STAMP and w == 3: A("s_waitcnt vmcnt(0)", "s_memrealtime s[50:51]", "s_memtime s[54:55]")
    if TLM: A("s_waitcnt vmcnt(0)", "s_memrealtime s[92:93]")
    for r in range(28): A(f"v_mov_b32 {v(ACC+r)}, 0")
    if w == 3: A("s_mov_b32 s60, 0x40000000" if FULL else f"s_mov_b32 s60, {s(S_VOX)}")
    A(f"{Lstep}:")
    prof(A, 0, profile)
    Ljoin, Lfail = A.label("join"), A.label("fail")
    nd = 2 if w < 3 else 1
    def issue():
        o = [memload(MEMR + 4*p, VMEM, ko[p]) for p in range(2)]
        for p in range(nd):
            kb = ko[p]
            o += [f"s_mov_b32 m0, {MIMG + (kb - kb % 4)*1024}", "s_nop 0", f"buffer_load_dwordx4 {v(VMEM)}, {s(WS,4)}, {s(S_MEM if kb < 4 else S_MEM2)} offen offset:{(kb%4)*1024} sc1 lds"]
        return o
    B0 = B0S
    rdm = lambda p: f"ds_read_b128 {v(MEMR+4*p,4)}, {v(VMEM)} offset:{MIMG + ko[p]*1024}"
    xsl = []
    xld = lambda j: f"buffer_load_dwordx4 {v(HT+4*j,4)}, {v(VH)}, {s(WS,4)}, {s(S_TMP)} offen offset:{1024*(j%4)}"
    if w < 2 and not X_NODMA:
        nin = 14 - XPRE
        for jj in range(nin):
            j = XPRE + jj
            sl = XS0 + (jj*XSN)//nin
            if j % 4 == 0 or jj == 0: xsl.append((sl, f"s_add_u32 {s(S_TMP)}, {s(S_X)}, {1024*(j - j % 4)}"))
            xsl.append((sl, xld(j)))
    horder = [(0, 0), (1, 0), (2, 0), (0, 1), (1, 1), (2, 1), (3, 0), (3, 1)] + [(cb, 0) for cb in (4, 5, 6)] + [(cb, 1) for cb in (4, 5, 6)]
    A(issue())
    A(f"{Lpoll}:")
    if profile: A(f"s_add_u32 {s(S_PROF+16)}, {s(S_PROF+16)}, 256")
    A(f"s_waitcnt vmcnt({1 + nd})")
    prof(A, 1, profile)
    hs = mkslots([smf(ACC+4*cb, MEMR + 4*p, wreg(cb*7+p), IDX) for cb, p in horder])
    c0, c1 = chk4(TMP, MEMR), chk4(TMP, MEMR + 4, False)
    hs[0]['valu'].append(c0[0]); hs[1]['valu'].append(c0[1]); hs[2]['pre'].append(f"s_waitcnt vmcnt({nd})")
    hs[2]['valu'].append(c1[0]); hs[3]['valu'].append(c1[1]); hs[4]['valu'].append(f"v_cmp_eq_u32 vcc, -1, {v(TMP)}")
    hs[6]['pre'].append(f"s_cbranch_vccnz {Lfail}")
    hs[B0]['pre'] += ["s_waitcnt vmcnt(0)", "s_barrier", rdm(2)]
    for p in range(3, 7): hs[min(13, B0 + p - 2)]['pre'].append(rdm(p))
    hs[13]['pre'].append("s_waitcnt lgkmcnt(4)")
    for sl, o in xsl:
        if sl < 14: hs[sl]['pre'].append(o)
    if profile and PMASK & 4 and not FSD: hs[13]['pre'].append(f"s_memtime {s(S_PROF+4,2)}")
    if profile and FSD:
        for k in range(5):
            if FS0 + k*FSD < 14: hs[FS0 + k*FSD]['pre'].insert(0, f"s_memtime {s(S_PROF+4+2*k,2)}")
    emit_slots(A, hs)
    A(f"{Ljoin}:")
    order = [(cb, p) for p in range(2) for cb in range(7)] + [(cb, p) for cb in range(7) for p in range(2, 7)]
    slots = mkslots([smf(ACC+4*cb, MEMR+4*p, wreg(cb*7+p), IDX) for cb, p in order])
    for p in range(3, 7): slots[14 + p - 3]['pre'].append(f"s_waitcnt lgkmcnt({6-p})")
    for sl, o in xsl:
        if sl >= 14: slots[sl]['pre'].append(o)
    if w == 2:
        for j in range(14):
            slots[19 + j]['pre'].append(f"ds_read_b128 {v(HT+4*j,4)}, {v(VH)} offset:{256*(j//2)+16*(j%2)}")
    if w == 3 and FULL and EXW == 6:
        slots[19]['pre'] += [f"ds_read_b128 {v(HT+48,4)}, {v(HT+47)} offset:{MIMG}", f"s_add_u32 s62, {s(S_MEM)}, s61"]
        slots[24]['pre'] += ["s_waitcnt lgkmcnt(1)", f"buffer_store_dwordx4 {v(HT+48,4)}, {v(HT+47)}, {s(WS,4)}, s62 offen sc1"]
    if w == 3 and ATOUCH:
        for i in range(ATOUCH):
            slots[TCH0 + 2*i]['pre'] += [f"s_add_u32 {s(S_TMP)}, s60, {'s59' if i else 0}", f"buffer_load_dword {v(HT+44+i)}, {v(HT+43)}, {s(WS,4)}, {s(S_TMP)} offen sc1"]
    def conv(cb):
        r = ACC + 4*cb
        return [f"v_add_f32 {v(r)}, {v(r)}, {v(r+1)}", f"v_add_f32 {v(r+2)}, {v(r+2)}, {v(r+3)}",
                f"v_cvt_pk_bf16_f32 {v(r)}, {v(r)}, {v(r+2)}", f"ds_write_b32 {v(VTW)}, {v(r)} offset:{256*cb}"]
    for cb in range(6):
        st = 14 + 5*cb + 4 + 2
        for i, o in enumerate(conv(cb)): slots[st+i]['valu'].append(o)
    SACC = ACC
    if w < 3:
        for r in range(4): slots[24 + 5*r]['valu'].append(f"v_mov_b32 {v(SACC+3-r)}, 0")
    TF = lambda k: MEMR + 4*k if k < 2 else ACC + 4*(k-1)
    def trread(k):
        return [f"ds_read_b64_tr_b16 {v(TF(k)+2*u,2)}, {v(VTR)} offset:{256*k + TW*u}" for u in range(2)]
    slots[B1S]['pre'] += [f"s_waitcnt lgkmcnt({1 if B1S > 38 else 0})", "s_barrier"]
    slots[B2S]['pre'] += ["s_waitcnt lgkmcnt(0)", "s_barrier"]
    if w < 3:
        rs = [r for k in range(3) for r in trread(k)]
        for i, r in enumerate(rs): slots[B1S + 1 + (i*TRN)//6]['pre'].append(r)
        slots[48]['pre'] += trread(3)
    if profile and FSD:
        for k in range(5):
            if 14 <= FS0 + k*FSD < 49: slots[FS0 + k*FSD]['pre'].insert(0, f"s_memtime {s(S_PROF+4+2*k,2)}")
    elif profile:
        for st, sl in ((3, 27), (4, 48)):
            if (PMASK >> st) & 1: slots[sl]['pre'].append(f"s_memtime {s(S_PROF+2*st,2)}")
    emit_slots(A, slots[14:])
    c6 = conv(6)
    if w < 3:
        sm = [smf(SACC, TF(k), v(HT+8*k, 8), IDX, True) for k in range(7)]
        vw = (lambda n: f"s_waitcnt vmcnt({n})") if w < 2 else (lambda n: "")
        A(vw(10), sm[0], trread(4), "s_nop 1", c6[0], c6[1], c6[2], c6[3], sm[1], vw(8), sm[2], "s_waitcnt lgkmcnt(4)", vw(6), sm[3], "s_waitcnt lgkmcnt(1)", vw(4), sm[4])
        A("s_waitcnt lgkmcnt(0)", "s_barrier")
        prof(A, 5, profile)
        for k in range(5, 7): A(trread(k))
        A(vw(0))
        for k in range(5, 7):
            A(f"s_waitcnt lgkmcnt({2*(6-k)})", sm[k])
        A("s_nop 7")
        A(f"ds_write2st64_b32 {v(VX)}, {v(SACC)}, {v(SACC+1)} offset0:0 offset1:1",
          f"ds_write2st64_b32 {v(VX)}, {v(SACC+2)}, {v(SACC+3)} offset0:2 offset1:3", "s_waitcnt lgkmcnt(0)", "s_barrier")
        prof(A, 6, profile)
        prof(A, 7, profile)
    else:
        A("s_nop 6", c6)
        A("s_waitcnt lgkmcnt(0)", "s_barrier")
        prof(A, 5, profile)
        A(nops(F2D), f"buffer_store_dword {v(IDX)}, {v(TMP2)}, {s(WS,4)}, {s(S_P)} offen")
        A("s_barrier")
        X0 = HT; XM = HT+4; MX, L = HT+8, HT+9; N0 = HT+12
        Lslow, Lnorm = A.label("slow"), A.label("norm")
        Y0 = HT + 20; RAW = HT + 28
        A(f"ds_read_b128 {v(X0,4)}, {v(VX)}", f"ds_read_b128 {v(Y0,4)}, {v(VX)} offset:2048", f"ds_read2st64_b32 {v(Y0+4,2)}, {v(VH)} offset0:0 offset1:8")
        prof(A, 6, profile)
        A("s_waitcnt lgkmcnt(1)")
        for j in range(4): A(f"v_add_f32 {v(RAW+j)}, {v(X0+j)}, {v(Y0+j)}")
        A("s_waitcnt lgkmcnt(0)", f"v_add_f32 {v(RAW+4)}, {v(Y0+4)}, {v(Y0+5)}")
        for j in range(5): A(f"v_exp_f32 {v(X0+j)}, {v(RAW+j)}")
        dpps = ["quad_perm:[1,0,3,2]", "quad_perm:[2,3,0,1]", "row_half_mirror"]
        def norm_store(check):
            A(f"v_add_f32 {v(L)}, {v(X0)}, {v(X0+1)}", f"v_add_f32 {v(MX)}, {v(X0+2)}, {v(X0+3)}",
              f"v_add_f32 {v(L)}, {v(L)}, {v(MX)}", f"v_add_f32 {v(L)}, {v(L)}, {v(XM)}")
            for d in dpps: A("s_nop 1", f"v_add_f32_dpp {v(L)}, {v(L)}, {v(L)} {d} row_mask:0xf bank_mask:0xf")
            A(f"v_rcp_f32 {v(N0+5)}, {v(L)}")
            if check: A(f"v_subrev_u32 {v(MX)}, 0x21800000, {v(L)}", f"v_cmp_lt_u32 vcc, 0x3c000000, {v(MX)}")
            else: A("s_nop 0")
            R = N0 + 5
            A(f"v_mul_f32_e64 {v(X0)}, {v(X0)}, {v(R)} clamp", f"v_mul_f32 {v(X0+1)}, {v(X0+1)}, {v(R)}",
              f"v_mul_f32_e64 {v(X0+2)}, {v(X0+2)}, {v(R)} clamp", f"v_mul_f32 {v(X0+3)}, {v(X0+3)}, {v(R)}",
              f"v_cvt_pk_bf16_f32 {v(N0)}, {v(X0)}, {v(X0+1)}", f"v_cvt_pk_bf16_f32 {v(N0+1)}, {v(X0+2)}, {v(X0+3)}",
              f"v_mul_f32_dpp {v(N0+3)}, {v(XM)}, {v(R)} quad_perm:[1,0,3,2] row_mask:0xf bank_mask:0xf")
            if check: A(f"s_cbranch_vccnz {Lslow}")
            A(f"v_mul_f32_e64 {v(XM)}, {v(XM)}, {v(R)} clamp",
              f"buffer_store_dwordx2 {v(N0,2)}, {v(PXO)}, {s(WS,4)}, {s(S_P)} offen",
              f"v_cvt_pk_bf16_f32 {v(N0+2)}, {v(XM)}, {v(N0+3)}",
              f"buffer_store_dword {v(N0+2)}, {v(PMO)}, {s(WS,4)}, {s(S_P)} offen")
        norm_store(True)
        A(f"{Lnorm}:")
        prof(A, 7, profile)
    if profile and PACCUM: prof_acc(A, 8)
    elif profile:
        prof_flush(A, 9, TMP, MEMR, 0)
        A(f"s_mov_b32 {s(S_PROF+16)}, 0")
    A("s_barrier")
    for r in range(28): A(f"v_mov_b32 {v(ACC+r)}, 0")
    if XPRE:
        if w < 2:
            for j in range(XPRE):
                if j % 4 == 0: A(f"s_add_u32 {s(S_TMP)}, {s(S_X)}, {28672 + 1024*j}")
                A(xld(j), nops(XPG))
    if w == 3:
        A(f"s_add_u32 s60, {s(S_VOX)}, 458752")
        if FULL:
            A(f"s_add_u32 {s(S_TMP)}, {s(S_P)}, {16384*(TAHEAD+1) + FROFF}", f"buffer_load_dword {v(TMP)}, off, {s(WS,4)}, {s(S_TMP)} sc1", "s_waitcnt vmcnt(0)",
              f"v_readfirstlane_b32 {s(S_TMP)}, {v(TMP)}", f"s_cmp_eq_u32 {s(S_TMP)}, 15", "s_cselect_b32 s60, s60, 0x40000000")
        if FULL and EXW == 5:
            A(f"ds_read_b128 {v(HT+48,4)}, {v(HT+47)} offset:{MIMG}", f"s_add_u32 {s(S_TMP)}, {s(S_MEM)}, s61", "s_waitcnt lgkmcnt(0)",
              f"buffer_store_dwordx4 {v(HT+48,4)}, {v(HT+47)}, {s(WS,4)}, {s(S_TMP)} offen sc1")
    if w == APW:
        if TGATE != 1: flag_poll(A, list(range(8, 8 + FPD)), TMP2, S_P, 0, abort, "A")
        A(nops(D1))
    A("s_barrier")
    if TLM:
        Lt = A.label("tl")
        A(f"s_lshl_b32 {s(S_TMP)}, {s(S_ROLE)}, 2", f"s_add_u32 {s(S_TMP)}, {s(S_TMP)}, {w}", f"s_cmp_lg_u32 {s(S_STEP)}, {s(S_TMP)}", f"s_cbranch_scc1 {Lt}", "s_memrealtime s[94:95]", f"{Lt}:")
    A(f"s_add_u32 {s(S_MEM)}, {s(S_MEM)}, 8192", f"s_add_u32 {s(S_MEM2)}, {s(S_MEM2)}, 8192", f"s_add_u32 {s(S_P)}, {s(S_P)}, 16384",
      f"s_add_u32 {s(S_X)}, {s(S_X)}, {32*896}", f"s_add_u32 {s(S_VOX)}, {s(S_VOX)}, 458752",
      f"s_add_u32 {s(S_STEP)}, {s(S_STEP)}, 1", f"s_cmp_lt_u32 {s(S_STEP)}, {NSTEPS}", f"s_cbranch_scc1 {Lstep}")
    if profile and PACCUM: prof_acc_out(A, 8)
    if STAMP: A("v_mov_b32 v0, s58", "s_mov_b64 exec, 1", f"buffer_atomic_add v0, off, {s(DBG,4)}, 0 offset:52", "s_mov_b64 exec, -1")
    if STAMP and w == 3:
        A("s_memrealtime s[52:53]", "s_memtime s[56:57]", "s_waitcnt lgkmcnt(0)", "s_sub_u32 s52, s52, s50", "s_sub_u32 s56, s56, s54", "v_mov_b32 v0, s52", "v_mov_b32 v1, s56",
          f"s_lshl_b32 {s(S_TMP)}, {s(S_ROLE)}, 3", f"buffer_store_dwordx2 v[0:1], off, {s(DBG,4)}, {s(S_TMP)} offset:64")
    A("s_endpgm")
    A(f"{Lfail}:", issue(), f"s_sub_u32 {s(S_TO)}, {s(S_TO)}, 1", f"s_cbranch_scc1 {abort}")
    if STAMP: A(f"s_add_u32 s58, s58, 1")
    for r in range(16): A(f"v_mov_b32 {v(ACC+r)}, 0")
    A(f"s_branch {Lpoll}")
    if w == 3:
        A(f"{Lslow}:")
        A(f"v_max3_f32 {v(MX)}, {v(RAW)}, {v(RAW+1)}, {v(RAW+2)}", f"v_max3_f32 {v(MX)}, {v(MX)}, {v(RAW+3)}, {v(RAW+4)}")
        for d in dpps: A("s_nop 1", f"v_max_f32_dpp {v(MX)}, {v(MX)}, {v(MX)} {d} row_mask:0xf bank_mask:0xf")
        for j in range(5): A(f"v_sub_f32 {v(X0+j)}, {v(RAW+j)}, {v(MX)}")
        for j in range(5): A(f"v_exp_f32 {v(X0+j)}, {v(X0+j)}")
        A("s_nop 0")
        norm_store(False)
        A(f"s_branch {Lnorm}")

BW7 = 0
BMIMG = 57344
BVIMG = 65536
DB = 15

def role_B(A, w, abort, profile=False):
    pv = w < 2
    c, M = w % 2, w // 2
    NR = 6 if pv else 8
    WV0 = 256 - 8*(7*NR - 32)
    wrg = lambda f, n=8, sub=0: a_(8*f + sub, n) if f < 32 else v(WV0 + 8*(f-32) + sub, n)
    MEMR, ACC, VP = 0, 40, 48
    IDX, VL16, TMP, TMP2, VLV, VF2 = range(56, 62)
    if pv:
        VP2, VOX, SB, AC7, PACC, VST, R0 = 64, 72, 136, 152, 160, 164, 165
        assert 166 <= WV0
    VG, VN, VL = 1, 2, 3
    own = [2*w, 2*w+1] if w < 3 else [6]
    lane_consts(A, VL, VG, VN)
    idx_const(A, IDX, VN, TMP)
    A(f"v_lshlrev_b32 {v(VL16)}, 4, {v(VL)}", f"v_add_u32 {v(VLV)}, {BVIMG + 2048*c}, {v(VL16)}")
    A(f"s_sub_u32 {s(S_TMP)}, {s(S_ROLE)}, 16")
    if pv:
        A(f"v_lshlrev_b32 {v(VF2)}, 2, {v(VN)}", f"s_lshl_b32 {s(S_TMP2)}, {s(S_TMP)}, 7", f"s_add_u32 {s(S_TMP2)}, {s(S_TMP2)}, {F2OFF - 8192}", f"v_add_u32 {v(VF2)}, {s(S_TMP2)}, {v(VF2)}")
        VF1 = 166
        A(f"v_lshlrev_b32 {v(VF1)}, 8, {v(VL)}", f"s_lshl_b32 {s(S_TMP2)}, {s(S_TMP)}, 3", f"s_add_u32 {s(S_TMP2)}, {s(S_TMP2)}, {F1OFF - 8192 + 4*c}", f"v_add_u32 {v(VF1)}, {s(S_TMP2)}, {v(VF1)}",
          f"v_cmp_lt_u32 vcc, 3, {v(VL)}", f"v_mov_b32 {v(TMP)}, 0x40000000", "s_nop 0", f"v_cndmask_b32 {v(VF1)}, {v(VF1)}, {v(TMP)}, vcc")
        A(f"v_lshlrev_b32 {v(VST)}, 6, {v(VG)}", f"v_and_b32 {v(TMP)}, 1, {v(VN)}", f"v_lshl_add_u32 {v(VST)}, {v(TMP)}, 5, {v(VST)}",
          f"v_bfe_u32 {v(TMP)}, {v(VN)}, 1, 1", f"v_lshl_add_u32 {v(VST)}, {v(TMP)}, 4, {v(VST)}", f"v_lshrrev_b32 {v(TMP)}, 2, {v(VN)}", f"v_lshl_add_u32 {v(VST)}, {v(TMP)}, 2, {v(VST)}")
    A(f"s_mul_i32 {s(S_VOX)}, {s(S_TMP)}, {2*16*1024}",
      f"s_lshl_b32 {s(S_MEMN)}, {s(S_TMP)}, 9", f"s_add_u32 {s(S_MEMN)}, {s(S_MEMN)}, {MEMF_OFF + 8192 + 256*c:#x}",
      f"s_mul_i32 {s(S_TMP)}, {s(S_TMP)}, {2*14336}", f"s_add_u32 {s(S_TMP)}, {s(S_TMP)}, {WB_OFF + (8*M*28 + c)*14336:#x}",
      f"s_add_u32 {s(S_VOX)}, {s(S_VOX)}, {VOX_OFF + 16384*c:#x}")
    if pv:
        for u in (6, 7):
            for kb in range(7):
                A(f"s_add_u32 {s(S_TMP2)}, {s(S_TMP)}, {u*28*14336 + kb*2048}")
                for hi in range(2):
                    A(f"buffer_load_dwordx4 {v(64+8*kb+4*hi,4)}, {v(VL16)}, {s(WS,4)}, {s(S_TMP2)} offen offset:{1024*hi}")
            A("s_waitcnt vmcnt(0)")
            for j in range(14): A(f"ds_write_b128 {v(VL16)}, {v(64+4*j,4)} offset:{BW7 + (2*w + u - 6)*14336 + j*1024}")
            A("s_waitcnt lgkmcnt(0)")
    for u in range(NR):
        for kb in range(7):
            f = u*7 + kb
            A(f"s_add_u32 {s(S_TMP2)}, {s(S_TMP)}, {u*28*14336 + kb*2048}")
            for hi in range(2):
                A(f"buffer_load_dwordx4 {wrg(f,4,4*hi)}, {v(VL16)}, {s(WS,4)}, {s(S_TMP2)} offen offset:{1024*hi}")
        if u >= 2: A("s_waitcnt vmcnt(28)")
    A(f"s_mov_b32 {s(S_STEP)}, 0", f"s_mov_b32 {s(S_MEM)}, {MEMF_OFF:#x}", f"s_mov_b32 {s(S_MEM2)}, {MEMF_OFF+4096:#x}",
      f"s_mov_b32 {s(S_P)}, {PF_OFF:#x}", f"s_mov_b32 {s(S_X)}, {PF_OFF + 4096:#x}", f"s_mov_b32 {s(S_P2)}, {PF_OFF + 8192:#x}", f"s_mov_b32 {s(S_TO)}, {TIMEOUT}")
    S_EM, S_FR, S_ODD = 64, 65, 66
    A(f"s_mov_b32 {s(S_FR)}, {PF_OFF + FROFF:#x}", f"s_mov_b32 {s(S_ODD)}, 0xaaaaaaaa", f"s_mov_b32 {s(S_ODD+1)}, 0xaaaaaaaa")
    A("s_waitcnt vmcnt(0) lgkmcnt(0)")
    if TLM: A("s_memrealtime s[92:93]")
    A(f"s_mov_b32 {s(S_PROF+10)}, 0")
    if STAMP and w == 0: A("s_memtime s[54:55]")
    Lstep, Lpoll, Lok2 = [A.label(f"B{w}{x}") for x in ("step", "poll", "ok2")]
    mreg = lambda kb: MEMR + 4*kb
    mld = lambda kb: memload(mreg(kb), VL16, kb)
    if pv:
        voxld = lambda hh: f"buffer_load_dwordx4 {v(VOX + 4*hh, 4)}, {v(VL16)}, {s(WS,4)}, {s(S_TMP)} offen offset:{1024*(hh%4)} sc1"
        def voxpre(add):
            for hh in range(VPRE):
                if hh % 4 == 0: A(f"s_add_u32 {s(S_TMP)}, {s(S_VOX)}, {add + 1024*hh}")
                A(voxld(hh))
        voxpre(0)
    else:
        A(f"v_lshlrev_b32 {v(VF2)}, 3, {v(VL16)}")
        A(f"s_sub_u32 {s(S_TMP)}, {s(S_ROLE)}, 16", f"s_cmp_lt_u32 {s(S_TMP)}, 7", f"s_cselect_b32 s70, {ALT:#x}, 0x40000000", f"s_min_u32 {s(S_TMP)}, {s(S_TMP)}, 6",
          f"s_lshl_b32 {s(S_TMP)}, {s(S_TMP)}, 10", f"v_add_u32 {v(32)}, {s(S_TMP)}, {v(VL16)}")
    A(f"{Lstep}:")
    A(f"{Lpoll}:")
    for kb in own: A(mld(kb))
    if FULL and w == 3: A(f"buffer_load_dword {v(TMP)}, off, {s(WS,4)}, {s(S_FR)} sc1")
    for r in range(8): A(f"v_mov_b32 {v(ACC+r)}, 0")
    if pv:
        for j in range(8): A(f"v_mov_b32 {v(AC7+j)}, 0")
    A("s_waitcnt vmcnt(0)")
    for kb in own: A(f"ds_write_b128 {v(VL16)}, {v(mreg(kb),4)} offset:{BMIMG + kb*1024}")
    if FULL and w == 3: A(f"v_cmp_ne_u32 vcc, 15, {v(TMP)}", "s_nop 1", f"v_cndmask_b32 {v(TMP)}, 0, -1, vcc")
    for i, kb in enumerate(own): A(chk4(TMP, mreg(kb), i == 0 and not (FULL and w == 3)))
    A(f"v_cmp_eq_u32 vcc, -1, {v(TMP)}", f"s_cbranch_vccz {Lok2}")
    timeout_step(A, Lpoll, abort)
    A(f"{Lok2}:")
    if PACCUM: prof(A, 6, profile)
    A("s_waitcnt lgkmcnt(0)", "s_barrier")
    korder = own + [kb for kb in range(7) if kb not in own]
    for kb in korder[len(own):]: A(f"ds_read_b128 {v(mreg(kb),4)}, {v(VL16)} offset:{BMIMG + kb*1024}")
    if not PB2: prof(A, 1, profile)
    cv = lambda r, u: [f"v_add_f32 {v(r)}, {v(r)}, {v(r+1)}", f"v_add_f32 {v(r+2)}, {v(r+2)}, {v(r+3)}", f"v_cvt_pk_bf16_f32 {v(VP+u)}, {v(r)}, {v(r+2)}"]
    ms, ustart = [], []
    if pv:
        reg = [(u, kb) for u in range(6) for kb in korder]
        stq = [(u, kb) for kb in korder for u in (6, 7)]
        seq = []
        for i, x in enumerate(reg):
            seq.append(x)
            if i % 3 == 2: seq.append(stq[i // 3])
    else:
        seq = [(u, kb) for u in range(8) for kb in korder]
    nst = 0
    for (u, kb) in seq:
        if u < NR: ms.append(smf(ACC + 4*(u % 2), mreg(kb), wrg(u*7+kb), IDX))
        else:
            ms.append(smf(AC7 + 4*(u-6), mreg(kb), v(SB + 8*(nst % 2), 8), IDX)); nst += 1
    slots = mkslots(ms)
    slots[len(own)-1]['post'].append("s_waitcnt lgkmcnt(0)")
    last = {u: max(i for i, x in enumerate(seq) if x[0] == u) for u in range(8)}
    first = {u: min(i for i, x in enumerate(seq) if x[0] == u) for u in range(8)}
    tail = []
    for u in range(NR):
        r = ACC + 4*(u % 2)
        ops = cv(r, u) + ([f"v_mov_b32 {v(r+j)}, 0" for j in range(4)] if u + 2 < NR else [])
        st = last[u] + 2
        if st + 3 > len(slots): tail += ops; continue
        lim = first[u+2] - 2 if u + 2 < NR else len(slots) - 1
        for i, o in enumerate(ops): slots[min(st + i, lim)]['valu'].append(o)
    if pv:
        sts = [i for i, x in enumerate(seq) if x[0] >= 6]
        rd = lambda n: [f"ds_read_b128 {v(SB + 8*(n % 2) + 4*hi, 4)}, {v(VL16)} offset:{BW7 + (2*w + seq[sts[n]][0] - 6)*14336 + seq[sts[n]][1]*2048 + hi*1024}" for hi in range(2)]
        A(rd(0), rd(1))
        for n, i in enumerate(sts):
            if n + 2 < 14: slots[i+1]['pre'] += rd(n+2)
            if n >= 2: slots[i-1]['pre'].append(f"s_waitcnt lgkmcnt({2 if n + 1 < 14 else 0})")
        for hh in range(VPRE, 0 if X_NOVOX else 16):
            sl = 2 + VOXS*(hh - VPRE)
            if hh % 4 == 0: slots[sl]['pre'].append(f"s_add_u32 {s(S_TMP)}, {s(S_VOX)}, {1024*hh}")
            slots[sl]['pre'].append(voxld(hh))
        tail += cv(AC7, 6) + cv(AC7+4, 7)
        FR_ = list(range(28, 28 + FPD))
        for i, r in enumerate(FR_): slots[55 - 3*(FPD - 1 - i)]['pre'].append(flag_ld(r, VF2, S_P2, 0))
        for r in range(4): slots[40 + r]['valu'].append(f"v_mov_b32 {v(PACC+r)}, 0")
    if not pv:
        for i in range(BTOUCH):
            slots[BT0 + 2*i]['pre'] += [f"s_add_u32 {s(S_TMP)}, {s(S_VOX)}, {458752*BTA + 8192*(i + 2 - BTOUCH)}", f"buffer_load_dword {v(62+i)}, {v(VF2)}, {s(WS,4)}, {s(S_TMP)} offen sc1"]
    if FULL and w == EXW:
        A(f"ds_read_b128 {v(28,4)}, {v(32)} offset:{BMIMG}", f"s_add_u32 {s(S_EM)}, {s(S_MEM)}, s70")
        slots[3]['pre'].append(f"buffer_store_dwordx4 {v(28,4)}, {v(32)}, {s(WS,4)}, {s(S_EM)} offen sc1")
    if profile and FSD:
        for k in range(5):
            if FS0 + k*FSD < 56: slots[FS0 + k*FSD]['pre'].insert(0, f"s_memtime {s(S_PROF+4+2*k,2)}")
    if X_NOV:
        for sl in slots: sl['m'] = ""
    emit_slots(A, slots)
    if PACCUM: prof(A, 7, profile)
    A("s_nop 7", tail)
    if not pv:
        A(f"ds_write_b128 {v(VLV)}, {v(VP,4)}", f"ds_write_b128 {v(VLV)}, {v(VP+4,4)} offset:1024", "s_waitcnt lgkmcnt(0)")
    A("s_barrier")
    if not PB2: prof(A, 2, profile)
    if not pv:
        A("s_barrier", nops(DB))
    else:
        A(f"ds_read_b128 {v(VP2,4)}, {v(VLV)}", f"ds_read_b128 {v(VP2+4,4)}, {v(VLV)} offset:1024")
        flag_poll(A, FR_, VF2, S_P2, 0, abort, "B", primed=True)
        if TGATE == 2: A(f"buffer_store_dword {v(IDX)}, {v(VF1)}, {s(WS,4)}, {s(S_P2)} offen")
        A(nops(D2))
        prof(A, 0, profile)
        porder = [(c*4 + i) % 8 for i in range(8)] + [8, 9]
        pld = lambda k: f"buffer_load_dwordx4 {v(4*k,4)}, {v(VL16)}, {s(WS,4)}, {s([S_P, S_X, S_P2][k//4])} offen offset:{1024*(k%4)} sc1"
        bop = lambda k: v(VOX + 8*k, 8) if k < 8 else v(VP if k == 8 else VP2, 8)
        Lpp, Lbad = A.label("pp"), A.label("bad")
        A(f"{Lpp}:")
        if profile and not FSD: A(f"s_add_u32 {s(S_PROF+10)}, {s(S_PROF+10)}, 1")
        for k in porder: A(pld(k))
        A("s_waitcnt lgkmcnt(0)")
        for i, k in enumerate(porder):
            A(f"s_waitcnt vmcnt({9-i})")
            if i == 0: prof(A, 3, profile)
            if i == 9 and PB2: prof(A, 1, profile)
            A(smf(PACC, 4*k, bop(k), IDX))
        Lgood = A.label("good")
        a, b = PACC, PACC+2
        A(f"s_mov_b64 vcc, {s(S_ODD,2)}", "s_nop 6")
        A(f"v_add_f32 {v(a)}, {v(a)}, {v(a+1)}", f"v_add_f32 {v(b)}, {v(b)}, {v(b+1)}", f"v_cmp_u_f32 {s(68,2)}, {v(a)}, {v(b)}",
          f"v_cndmask_b32_dpp {v(b+1)}, {v(a)}, {v(b)}, vcc quad_perm:[1,0,3,2] row_mask:0xf bank_mask:0xf", "s_not_b64 vcc, vcc",
          f"v_cndmask_b32_dpp {v(a+1)}, {v(b)}, {v(a)}, vcc quad_perm:[1,0,3,2] row_mask:0xf bank_mask:0xf",
          f"s_cmp_lg_u64 {s(68,2)}, 0", f"v_cvt_pk_bf16_f32 {v(R0)}, {v(a+1)}, {v(b+1)}", f"s_cbranch_scc1 {Lbad}", f"{Lgood}:",
          f"buffer_store_dword {v(R0)}, {v(VST)}, {s(WS,4)}, {s(S_MEMN)} offen")
        if FULL:
            Lq = A.label("Bq")
            A(f"s_add_u32 {s(S_EM)}, {s(S_MEMN)}, {ALT:#x}", f"s_cmp_lg_u32 {s(S_STEP)}, {NSTEPS-1}", f"s_cbranch_scc1 {Lq}", f"buffer_store_dword {v(R0)}, {v(VST)}, {s(WS,4)}, {s(S_EM)} offen sc1", f"{Lq}:")
        prof(A, 4, profile)
        A("s_barrier")
        voxpre(458752)
        A(nops(max(0, DB - 4*VPRE)))
    if profile and PACCUM: prof_acc(A, 8)
    elif profile:
        prof_flush(A, 6, TMP, TMP2, 0)
        A(f"s_mov_b32 {s(S_PROF+10)}, 0")
    A(f"s_add_u32 {s(S_MEM)}, {s(S_MEM)}, 8192", f"s_add_u32 {s(S_MEM2)}, {s(S_MEM2)}, 8192", f"s_add_u32 {s(S_MEMN)}, {s(S_MEMN)}, 8192",
      f"s_add_u32 {s(S_P)}, {s(S_P)}, 16384", f"s_add_u32 {s(S_P2)}, {s(S_P2)}, 16384", f"s_add_u32 {s(S_X)}, {s(S_X)}, 16384", f"s_add_u32 {s(S_VOX)}, {s(S_VOX)}, {28*16*1024}",
      f"s_add_u32 {s(S_FR)}, {s(S_FR)}, 16384",
      f"s_add_u32 {s(S_STEP)}, {s(S_STEP)}, 1", f"s_cmp_lt_u32 {s(S_STEP)}, {NSTEPS}", f"s_cbranch_scc1 {Lstep}")
    if profile and PACCUM: prof_acc_out(A, 8)
    if STAMP and w == 0:
        A("s_memtime s[56:57]", "s_waitcnt lgkmcnt(0)", "s_sub_u32 s56, s56, s54", "v_mov_b32 v1, s56",
          f"s_lshl_b32 {s(S_TMP)}, {s(S_ROLE)}, 2", f"buffer_store_dword v1, off, {s(DBG,4)}, {s(S_TMP)} offset:128")
    A("s_endpgm")
    if pv:
        A(f"{Lbad}:")
        for k in range(10): A(chk4(TMP, 4*k, k == 0))
        A(f"v_min_u32 {v(R0)}, -2, {v(R0)}", f"v_cmp_eq_u32 vcc, -1, {v(TMP)}", f"s_cbranch_vccz {Lgood}")
        if STAMP: A("v_mov_b32 v63, 1", "s_mov_b64 exec, 1", f"buffer_atomic_add v63, off, {s(DBG,4)}, 0 offset:48", "s_mov_b64 exec, -1")
        for r in range(4): A(f"v_mov_b32 {v(PACC+r)}, 0")
        timeout_step(A, Lpp, abort)

def role_PF(A, abort):
    AHEAD = PFA
    A("; ---------------- prefetcher")
    A("v_and_b32 v3, 63, v0", "v_lshlrev_b32 v1, 7, v3", "v_mov_b32 v2, 0", "v_mov_b32 v12, 0")
    A(f"s_sub_u32 {s(S_TMP2)}, {s(S_ROLE)}, 30", f"s_lshl_b32 {s(S_TMP2)}, {s(S_TMP2)}, 2", f"s_add_u32 {s(S_TMP2)}, {s(S_TMP2)}, {s(S_WAVE)}")
    A(f"s_lshl_b32 {s(S_TMP2)}, {s(S_TMP2)}, 13")
    A(f"s_mov_b32 {s(S_STEP)}, 0", f"s_mov_b32 {s(S_TO)}, {TIMEOUT}")
    if FULL:
        A(f"s_mov_b32 {s(S_P)}, {PF_OFF + FROFF:#x}")
    A(f"s_add_u32 {s(S_X)}, {s(S_TMP2)}, {XS_OFF:#x}", f"s_mov_b32 {s(S_P2)}, 28672")
    L1, L2 = A.label("pf1"), A.label("pf2")
    A(f"s_cmp_lt_u32 {s(S_TMP2)}, {4*8192}", f"s_cbranch_scc1 {L2}")
    A(f"s_mov_b32 {s(S_X)}, {MEMF_OFF + 8192:#x}", f"s_mov_b32 {s(S_P2)}, 8192")
    A(f"s_cmp_eq_u32 {s(S_TMP2)}, {4*8192}", f"s_cbranch_scc1 {L2}")
    A(f"s_and_b32 {s(S_X)}, {s(S_TMP2)}, 8192", f"s_add_u32 {s(S_X)}, {s(S_X)}, {PF_OFF:#x}", f"s_mov_b32 {s(S_P2)}, 16384")
    A(f"{L2}:")
    A(f"s_lshl_b32 {s(S_VOX)}, {s(S_TMP2)}, 1", f"s_add_u32 {s(S_VOX)}, {s(S_VOX)}, {VOX_OFF:#x}", f"s_mov_b32 s70, 0x40000000",
      f"s_cmp_eq_u32 {s(S_TMP2)}, {2*8192}", f"s_cselect_b32 s70, {(24-2)*16384}, s70", f"s_cmp_eq_u32 {s(S_TMP2)}, {3*8192}", f"s_cselect_b32 s70, {(25-3)*16384}, s70",
      f"s_cmp_eq_u32 {s(S_TMP2)}, {6*8192}", f"s_cselect_b32 s70, {(26-6)*16384}, s70", f"s_cmp_eq_u32 {s(S_TMP2)}, {7*8192}", f"s_cselect_b32 s70, {(27-7)*16384}, s70",
      f"s_cselect_b32 {s(S_X)}, 0x40000000, {s(S_X)}", f"s_mov_b32 {s(S_MEM)}, {MEMF_OFF - AHEAD*8192:#x}")
    Lstep, Lpoll, Lgo = A.label("pfstep"), A.label("pfpoll"), A.label("pfgo")
    A(f"{Lstep}:", f"s_cmp_lt_u32 {s(S_STEP)}, {AHEAD+1}", f"s_cbranch_scc1 {Lgo}")
    A(f"{Lpoll}:", f"buffer_load_dword v4, v2, {s(WS,4)}, {s(S_MEM)} offen sc1", "s_waitcnt vmcnt(0)", "v_cmp_eq_u32 vcc, -1, v4", f"s_cbranch_vccz {Lgo}", "s_sleep 2")
    timeout_step(A, Lpoll, abort)
    A(f"{Lgo}:")
    if FULL:
        Lc, Lcg = A.label("pfc"), A.label("pfcg")
        A("v_cmp_ne_u32 vcc, 15, v12", f"s_cbranch_vccz {Lcg}")
        A(f"{Lc}:", f"buffer_load_dword v12, off, {s(WS,4)}, {s(S_P)} sc1", "s_waitcnt vmcnt(0)", "v_cmp_ne_u32 vcc, 15, v12", f"s_cbranch_vccz {Lcg}", "s_sleep 2")
        timeout_step(A, Lc, abort)
        A(f"{Lcg}:", f"s_add_u32 {s(S_P)}, {s(S_P)}, 16384", f"buffer_load_dword v12, off, {s(WS,4)}, {s(S_P)} sc1")
    A(f"buffer_load_dword v5, v1, {s(WS,4)}, {s(S_X)} offen sc1")
    for j in range(PF_VOX):
        A(f"s_add_u32 {s(S_TMP)}, {s(S_VOX)}, {131072*j if j < 3 else 's70'}", f"buffer_load_dword v{6+j}, v1, {s(WS,4)}, {s(S_TMP)} offen sc1")
    A(f"s_add_u32 {s(S_X)}, {s(S_X)}, {s(S_P2)}", f"s_add_u32 {s(S_VOX)}, {s(S_VOX)}, {28*16*1024}", f"s_add_u32 {s(S_MEM)}, {s(S_MEM)}, 8192",
      "s_waitcnt vmcnt(0)",
      f"s_add_u32 {s(S_STEP)}, {s(S_STEP)}, 1", f"s_cmp_lt_u32 {s(S_STEP)}, {NSTEPS}", f"s_cbranch_scc1 {Lstep}", "s_endpgm")

PF_VOX = 4
def rec_kernel(A, name, profile=False):
    kernel_begin(A, name)
    Lexit = A.label("exit")
    A("s_cmp_ge_u32 s2, 256", f"s_cbranch_scc1 {Lexit}")
    srd(A, WS, 96, 0x10000000); srd(A, XB, 24, 1835008); srd(A, DBG, 88, 256)
    A(f"s_getreg_b32 {s(S_TMP)}, hwreg(HW_REG_XCC_ID)", f"s_and_b32 {s(S_TMP)}, {s(S_TMP)}, 15", f"s_cmp_lg_u32 {s(S_TMP)}, 0", f"s_cbranch_scc1 {Lexit}")
    A("v_lshrrev_b32 v1, 6, v0", "s_nop 0", f"v_readfirstlane_b32 {s(S_WAVE)}, v1", "s_waitcnt lgkmcnt(0)")
    Lw = A.label("notw0")
    A(f"s_cmp_lg_u32 {s(S_WAVE)}, 0", f"s_cbranch_scc1 {Lw}")
    A("v_mov_b32 v1, 1", "v_mov_b32 v2, 0", "s_mov_b64 exec, 1",
      f"buffer_atomic_add v1, v2, {s(DBG,4)}, 0 offen sc0", "s_waitcnt vmcnt(0)", "ds_write_b32 v2, v1 offset:32768", "s_waitcnt lgkmcnt(0)", "s_mov_b64 exec, -1")
    A(f"{Lw}:", "s_barrier", "v_mov_b32 v2, 0", "ds_read_b32 v1, v2 offset:32768", "s_waitcnt lgkmcnt(0)", f"v_readfirstlane_b32 {s(S_ROLE)}, v1", "s_barrier")
    LPF = A.label("rolePF")
    A(f"s_cmp_ge_u32 {s(S_ROLE)}, 32", f"s_cbranch_scc1 {Lexit}")
    A(f"s_cmp_ge_u32 {s(S_ROLE)}, 30", f"s_cbranch_scc1 {LPF}")
    LB = A.label("roleB")
    A(f"s_cmp_ge_u32 {s(S_ROLE)}, 16", f"s_cbranch_scc1 {LB}")
    for R, fn in (("A", role_A), ("B", role_B)):
        if R == "B": A(f"{LB}:")
        Ls = [A.label(f"{R}w{w}") for w in range(4)]
        for w in range(1, 4):
            A(f"s_cmp_eq_u32 {s(S_WAVE)}, {w}", f"s_cbranch_scc1 {Ls[w]}")
        for w in range(4):
            A(f"{Ls[w]}:")
            fn(A, w, Lexit, profile)
    A(f"{LPF}:")
    role_PF(A, Lexit)
    A(f"{Lexit}:", "s_endpgm")
    A(kernel_desc(name))

def generate(path, profile=False, **kw):
    g = globals(); saved = {k: g[k] for k in kw}
    g.update(kw)
    A = Asm()
    A("; @launch kernel=rec_kernel grid=(256,1,1) block=(256,1,1) lds=131072")
    A('.amdgcn_target "amdgcn-amd-amdhsa--gfx950"', ".text")
    rec_kernel(A, "rec_kernel", profile=bool(profile))
    t = A.text().replace("    ; @launch", "; @launch")
    if profile == 2: t = t.replace("s_memtime", "s_memrealtime")
    if LDFL == 1: t = t.replace(" sc1\n", " nt\n")
    if LDFL == 2: t = t.replace(" sc1\n", " sc0 sc1\n")
    open(path, "w").write(t)
    g.update(saved)

if __name__ == "__main__":
    import sys
    generate(sys.argv[1], len(sys.argv) > 2)
```

```python
from asm import *
from model import *
from rec import WS, XB, DBG, S_WAVE, S_ROLE, S_TO, S_TMP, S_TMP2, wreg, timeout_step, TIMEOUT, idx_const, chk4, smf, FROFF
OUT, XA = 48, 52
S_SEG, S_H, S_A, S_B, S_C, S_D, S_BUF = range(56, 63)
NV, NX, NPG = 4, 3, 3
RP = 912
XBUF = 32*RP
W_TIMEOUT = 300000
WSLEEP = 4
TLM = 0

def mfma(d, a, b, c=None, k16=False):
    op = "v_mfma_f32_16x16x16_bf16" if k16 else "v_mfma_f32_16x16x32_bf16"
    return f"{op} {v(d,4)}, {a}, {b}, " + (v(d,4) if c is None else c)
def wr4(f):
    return a_(4*f, 4) if f < 64 else v(120 + 4*(f-64), 4)

def lanes(A, VL, VG, VN, VL16):
    A(f"v_and_b32 {v(VL)}, 63, v0", f"v_lshrrev_b32 {v(VG)}, 4, {v(VL)}", f"v_and_b32 {v(VN)}, 15, {v(VL)}", f"v_lshlrev_b32 {v(VL16)}, 4, {v(VL)}")

def load_weights(A, base, VL16):
    A(f"s_mul_i32 {s(S_TMP)}, {s(S_H)}, {28*14336}", f"s_mul_i32 {s(S_TMP2)}, {s(S_WAVE)}, {7*14336}", f"s_add_u32 {s(S_TMP)}, {s(S_TMP)}, {s(S_TMP2)}",
      f"s_add_u32 {s(S_TMP)}, {s(S_TMP)}, {base:#x}")
    for f in range(98):
        A(f"buffer_load_dwordx4 {wr4(f)}, {v(VL16)}, {s(WS,4)}, {s(S_TMP)} offen offset:{1024*(f%4)}")
        if f % 4 == 3: A(f"s_add_u32 {s(S_TMP)}, {s(S_TMP)}, 4096")
        if f % 16 == 15 and f > 30: A("s_waitcnt vmcnt(32)")

def dma_x(A, seg_s, buf_s, VL16, XB=XB):
    A(f"s_mul_i32 {s(S_TMP)}, {s(seg_s)}, 28672", f"s_mul_i32 {s(S_TMP2)}, {s(S_WAVE)}, {8*896}", f"s_add_u32 {s(S_TMP)}, {s(S_TMP)}, {s(S_TMP2)}",
      f"s_mul_i32 {s(S_TMP2)}, {s(S_WAVE)}, {8*RP}", f"s_add_u32 {s(S_TMP2)}, {s(S_TMP2)}, {s(buf_s)}",
      "s_mov_b32 exec_hi, 0x00ffffff")
    for r in range(8):
        A(f"s_mov_b32 m0, {s(S_TMP2)}", f"s_add_u32 {s(S_TMP2)}, {s(S_TMP2)}, {RP}", f"buffer_load_dwordx4 {v(VL16)}, {s(XB,4)}, {s(S_TMP)} offen lds", f"s_add_u32 {s(S_TMP)}, {s(S_TMP)}, 896")
    A("s_mov_b32 exec_hi, -1")

def poll_eq(A, vt, voff, soff, want, abort, tag, ne=False):
    Lp, Lgo = A.label(tag + "p"), A.label(tag + "go")
    A(f"{Lp}:", f"buffer_load_dword {v(vt)}, {v(voff)}, {s(WS,4)}, {s(soff)} offen sc1", "s_waitcnt vmcnt(0)",
      f"v_cmp_{'eq' if ne else 'ne'}_u32 vcc, {want}, {v(vt)}", f"s_cbranch_vccz {Lgo}", f"s_sleep {WSLEEP}")
    timeout_step(A, Lp, abort)
    A(f"{Lgo}:")

def divmod_const(A, q, r, x, d):
    m = (65536 + d - 1) // d
    assert all((i*m) >> 16 == i // d for i in range(256))
    A(f"s_mul_i32 {s(q)}, {s(x)}, {m}", f"s_lshr_b32 {s(q)}, {s(q)}, 16", f"s_mul_i32 {s(r)}, {s(q)}, {d}", f"s_sub_u32 {s(r)}, {s(x)}, {s(r)}")

VMID = 8
def gemm_seg(A, ACC, FR, VRD, x_is_A, hook=None):
    rd = lambda ks: [f"ds_read_b128 {v(FR + 8*(ks % 2) + 4*t, 4)}, {v(VRD+t)} offset:{64*ks}" for t in range(2)]
    A(rd(0))
    for ks in range(14):
        if hook and hook[0] == ks: hook[1]()
        if ks + 1 < 14: A(rd(ks+1), "s_waitcnt lgkmcnt(2)")
        else: A("s_waitcnt lgkmcnt(0)")
        for cb in range(7):
            for t in range(2):
                xf, wf = v(FR + 8*(ks % 2) + 4*t, 4), wr4(cb*14 + ks)
                a, b = (xf, wf) if x_is_A else (wf, xf)
                A(mfma(ACC + 8*cb + 4*t, a, b, "0" if ks == 0 else None))

def role_V(A, abort):
    VL, VG, VN, VL16, T, VR0, VR1, VRD, VRD1, IDX = range(1, 11)
    ACC, FR, PK = 16, 72, 88
    S_J, S_PREV = S_C, S_D
    A("; ---------------- role V")
    lanes(A, VL, VG, VN, VL16)
    divmod_const(A, S_H, S_SEG, S_ROLE, NV)
    A(f"s_mov_b32 {s(S_J)}, {s(S_SEG)}", f"s_mov_b32 {s(S_BUF)}, 0", f"s_mov_b32 {s(S_PREV)}, 0x40000000", f"s_mov_b32 {s(S_TO)}, {W_TIMEOUT}")
    dma_x(A, S_SEG, S_BUF, VL16)
    load_weights(A, WB_OFF, VL16)
    A(f"v_lshrrev_b32 {v(T)}, 2, {v(VN)}", f"v_lshlrev_b32 {v(VR0)}, 3, {v(T)}", f"v_and_b32 {v(T)}, 3, {v(VN)}", f"v_add_u32 {v(VR0)}, {v(VR0)}, {v(T)}",
      f"v_mul_u32_u24 {v(VR0)}, {RP}, {v(VR0)}", f"v_lshl_add_u32 {v(VR0)}, {v(VG)}, 4, {v(VR0)}", f"v_add_u32 {v(VR1)}, {4*RP}, {v(VR0)}")
    idx_const(A, IDX, VN, T)
    def signal(so):
        A(f"s_cmp_eq_u32 {s(S_WAVE)}, 0", f"s_cselect_b32 {s(S_B)}, {s(so)}, 0x40000000",
          f"v_mov_b32 {v(T)}, 1", "s_mov_b64 exec, 1", f"buffer_atomic_add {v(T)}, off, {s(WS,4)}, {s(S_B)} sc1", "s_mov_b64 exec, -1", "s_nop 3")
    Lp = A.label("Vloop")
    A("s_waitcnt vmcnt(0)", "s_barrier")
    if TLM: A("s_memrealtime s[92:93]")
    A(f"{Lp}:")
    A(f"v_add_u32 {v(VRD)}, {s(S_BUF)}, {v(VR0)}", f"v_add_u32 {v(VRD+1)}, {s(S_BUF)}, {v(VR1)}")
    A(f"s_xor_b32 {s(S_BUF)}, {s(S_BUF)}, {32768}", f"s_add_u32 {s(S_A)}, {s(S_SEG)}, {NV}")
    dma_x(A, S_A, S_BUF, VL16)
    def mid():
        A("s_waitcnt vmcnt(8)", "s_barrier")
        signal(S_PREV)
    gemm_seg(A, ACC, FR, VRD, True, hook=(VMID, mid))
    A(f"s_mul_i32 {s(S_TMP)}, {s(S_SEG)}, 458752", f"s_mul_i32 {s(S_TMP2)}, {s(S_WAVE)}, {7*16384}", f"s_add_u32 {s(S_TMP)}, {s(S_TMP)}, {s(S_TMP2)}",
      f"s_lshl_b32 {s(S_TMP2)}, {s(S_H)}, 10", f"s_add_u32 {s(S_TMP)}, {s(S_TMP)}, {s(S_TMP2)}", f"s_add_u32 {s(S_TMP)}, {s(S_TMP)}, {VOX_OFF:#x}",
      f"s_lshl_b32 {s(S_PREV)}, {s(S_SEG)}, 14", f"s_add_u32 {s(S_PREV)}, {s(S_PREV)}, {PF_OFF + FROFF:#x}")
    A("s_waitcnt vmcnt(1)", "s_barrier")
    for cb in range(7):
        d = ACC + 8*cb
        for r in range(4): A(f"v_cvt_pk_bf16_f32 {v(PK+4*cb+r)}, {v(d+2*r)}, {v(d+2*r+1)}")
        A(f"buffer_store_dwordx4 {v(PK+4*cb,4)}, {v(VL16)}, {s(WS,4)}, {s(S_TMP)} offen sc1", f"s_add_u32 {s(S_TMP)}, {s(S_TMP)}, 16384")
    A(f"s_add_u32 {s(S_SEG)}, {s(S_SEG)}, {NV}", f"s_cmp_lt_u32 {s(S_SEG)}, 64", f"s_cbranch_scc1 {Lp}")
    A("s_waitcnt vmcnt(0)", "s_barrier")
    signal(S_PREV)
    if TLM: A("s_memrealtime s[94:95]")
    MF = 72
    A(f"s_mov_b32 {s(S_SEG)}, {s(S_J)}")
    Lq, Lm, Lmo = A.label("Vq"), A.label("Vm"), A.label("Vmo")
    A(f"{Lq}:")
    for r in range(28): A(f"v_mov_b32 {v(ACC+r)}, 0")
    A(f"s_lshl_b32 {s(S_A)}, {s(S_SEG)}, 13", f"s_add_u32 {s(S_A)}, {s(S_A)}, {MEMS_OFF:#x}", f"s_add_u32 {s(S_B)}, {s(S_A)}, 4096")
    poll_eq(A, T, VL16, S_A, -1, abort, "vm", ne=True)
    A(f"{Lm}:")
    for kb in range(7): A(f"buffer_load_dwordx4 {v(MF+4*kb,4)}, {v(VL16)}, {s(WS,4)}, {s(S_A if kb < 4 else S_B)} offen offset:{1024*(kb%4)} sc1")
    A("s_waitcnt vmcnt(0)")
    for kb in range(7): A(chk4(T, MF+4*kb, kb == 0))
    A(f"v_cmp_eq_u32 vcc, -1, {v(T)}", f"s_cbranch_vccz {Lmo}")
    timeout_step(A, Lm, abort)
    A(f"{Lmo}:")
    for kb in range(7):
        for cb in range(7):
            f = cb*14 + 2*kb
            A(smf(ACC + 4*cb, MF + 4*kb, a_(4*f, 8) if f < 64 else v(120 + 4*(f-64), 8), IDX))
    A(f"s_mul_i32 {s(S_TMP)}, {s(S_SEG)}, 114688", f"s_mul_i32 {s(S_TMP2)}, {s(S_WAVE)}, {7*4096}", f"s_add_u32 {s(S_TMP)}, {s(S_TMP)}, {s(S_TMP2)}",
      f"s_lshr_b32 {s(S_TMP2)}, {s(S_H)}, 2", f"s_lshl_b32 {s(S_TMP2)}, {s(S_TMP2)}, 10", f"s_add_u32 {s(S_TMP)}, {s(S_TMP)}, {s(S_TMP2)}",
      f"s_and_b32 {s(S_TMP2)}, {s(S_H)}, 3", f"s_lshl_b32 {s(S_TMP2)}, {s(S_TMP2)}, 2", f"s_add_u32 {s(S_TMP)}, {s(S_TMP)}, {s(S_TMP2)}", f"s_add_u32 {s(S_TMP)}, {s(S_TMP)}, {VPE_OFF:#x}")
    for cb in range(7):
        r = ACC + 4*cb
        A(f"v_add_f32 {v(r)}, {v(r)}, {v(r+1)}", f"v_add_f32 {v(r+2)}, {v(r+2)}, {v(r+3)}", f"v_cvt_pk_bf16_f32 {v(PK+20+cb)}, {v(r)}, {v(r+2)}",
          f"buffer_store_dword {v(PK+20+cb)}, {v(VL16)}, {s(WS,4)}, {s(S_TMP)} offen sc1", f"s_add_u32 {s(S_TMP)}, {s(S_TMP)}, 4096")
    A(f"s_lshl_b32 {s(S_TMP)}, {s(S_SEG)}, 8", f"s_lshl_b32 {s(S_TMP2)}, {s(S_H)}, 4", f"s_add_u32 {s(S_TMP)}, {s(S_TMP)}, {s(S_TMP2)}", f"s_lshl_b32 {s(S_TMP2)}, {s(S_WAVE)}, 2",
      f"s_add_u32 {s(S_TMP)}, {s(S_TMP)}, {s(S_TMP2)}", f"s_add_u32 {s(S_TMP)}, {s(S_TMP)}, {FV_OFF:#x}", f"v_mov_b32 {v(T)}, 1",
      "s_waitcnt vmcnt(0)", "s_mov_b64 exec, 1", f"buffer_store_dword {v(T)}, off, {s(WS,4)}, {s(S_TMP)} sc1", "s_mov_b64 exec, -1")
    A(f"s_add_u32 {s(S_SEG)}, {s(S_SEG)}, {NV}", f"s_cmp_lt_u32 {s(S_SEG)}, 64", f"s_cbranch_scc1 {Lq}", "s_endpgm")

XMIMG = 65536
XRED = 73728

def role_X(A, abort):
    VL, VG, VN, VL16, T, VR0, VK0, VRD, VRD1, VKD, VKM, VRW, VRR, VMW, T2 = range(1, 16)
    ACC, FR, SX, KF = 16, 72, 88, 104
    A("; ---------------- role X")
    lanes(A, VL, VG, VN, VL16)
    divmod_const(A, S_H, S_SEG, S_ROLE, NX)
    A(f"s_mov_b32 {s(S_BUF)}, 0", f"s_mov_b32 {s(S_TO)}, {W_TIMEOUT}")
    dma_x(A, S_SEG, S_BUF, VL16)
    load_weights(A, WA_OFF, VL16)
    A(f"v_mul_u32_u24 {v(VR0)}, {RP}, {v(VN)}", f"v_lshl_add_u32 {v(VR0)}, {v(VG)}, 4, {v(VR0)}")
    A(f"v_lshrrev_b32 {v(T)}, 2, {v(VN)}", f"v_lshlrev_b32 {v(VK0)}, 3, {v(T)}", f"v_and_b32 {v(T)}, 3, {v(VN)}", f"v_add_u32 {v(VK0)}, {v(VK0)}, {v(T)}",
      f"v_mul_u32_u24 {v(VK0)}, {RP}, {v(VK0)}", f"v_lshl_add_u32 {v(VK0)}, {v(VG)}, 3, {v(VK0)}", f"s_mul_i32 {s(S_TMP)}, {s(S_WAVE)}, 224", f"v_add_u32 {v(VK0)}, {s(S_TMP)}, {v(VK0)}")
    A(f"v_lshrrev_b32 {v(T)}, 2, {v(VN)}", f"v_lshlrev_b32 {v(VKM)}, 6, {v(T)}", f"v_and_b32 {v(T)}, 1, {v(VN)}", f"v_lshl_add_u32 {v(VKM)}, {v(T)}, 5, {v(VKM)}",
      f"v_lshl_add_u32 {v(VKM)}, {v(VG)}, 2, {v(VKM)}", f"s_mul_i32 {s(S_TMP)}, {s(S_WAVE)}, 1792", f"s_add_u32 {s(S_TMP)}, {s(S_TMP)}, {XMIMG}", f"v_add_u32 {v(VKM)}, {s(S_TMP)}, {v(VKM)}")
    A(f"v_add_u32 {v(VMW)}, {s(S_TMP)}, {v(VL16)}")
    A(f"s_lshl_b32 {s(S_TMP)}, {s(S_WAVE)}, 12", f"s_add_u32 {s(S_TMP)}, {s(S_TMP)}, {XRED}", f"v_add_u32 {v(VRW)}, {s(S_TMP)}, {v(VL16)}")
    A(f"s_lshl_b32 {s(S_TMP)}, {s(S_WAVE)}, 10", f"s_add_u32 {s(S_TMP)}, {s(S_TMP)}, {XRED}", f"v_add_u32 {v(VRR)}, {s(S_TMP)}, {v(VL16)}")
    Lp = A.label("Xloop")
    A("s_waitcnt vmcnt(0)", "s_barrier")
    if TLM: A("s_memrealtime s[92:93]")
    A(f"{Lp}:")
    A(f"v_add_u32 {v(VRD)}, {s(S_BUF)}, {v(VR0)}", f"v_add_u32 {v(VRD1)}, {16*RP}, {v(VRD)}", f"v_add_u32 {v(VKD)}, {s(S_BUF)}, {v(VK0)}")
    A(f"s_xor_b32 {s(S_BUF)}, {s(S_BUF)}, {32768}", f"s_add_u32 {s(S_A)}, {s(S_SEG)}, {NX}")
    dma_x(A, S_A, S_BUF, VL16)
    gemm_seg(A, ACC, FR, VRD, False)
    A("s_nop 7")
    for cb in range(7):
        for t in range(2):
            d = ACC + 8*cb + 4*t
            A(f"v_cvt_pk_bf16_f32 {v(d)}, {v(d)}, {v(d+1)}", f"v_cvt_pk_bf16_f32 {v(d+1)}, {v(d+2)}, {v(d+3)}")
    for cb in range(7):
        kf = KF + 4*(cb % 4)
        A(f"ds_read_b64 {v(kf,2)}, {v(VKD)} offset:{32*cb}", f"ds_read_b64 {v(kf+2,2)}, {v(VKD)} offset:{32*cb + 4*RP}", "s_waitcnt lgkmcnt(0)")
        for kt in range(2):
            for t in range(2):
                A(mfma(SX + 8*kt + 4*t, v(kf+2*kt, 2), v(ACC + 8*cb + 4*t, 2), "0" if cb == 0 else None, k16=True))
    A("s_nop 7")
    for kt in range(2):
        for t in range(2): A(f"ds_write_b128 {v(VRW)}, {v(SX + 8*kt + 4*t, 4)} offset:{2048*kt + 1024*t}")
    A("s_waitcnt lgkmcnt(0)", "s_barrier")
    L1 = A.label("Xr1")
    A(f"s_cmp_ge_u32 {s(S_WAVE)}, 2", f"s_cbranch_scc1 {L1}")
    for kt in range(2):
        for w in range(4): A(f"ds_read_b128 {v(FR + 4*w, 4)}, {v(VRR)} offset:{4096*w + 2048*kt}")
        A("s_waitcnt lgkmcnt(0)")
        for r in range(4):
            A(f"v_add_f32 {v(FR+r)}, {v(FR+r)}, {v(FR+4+r)}", f"v_add_f32 {v(FR+8+r)}, {v(FR+8+r)}, {v(FR+12+r)}", f"v_add_f32 {v(SX+4*kt+r)}, {v(FR+r)}, {v(FR+8+r)}")
    A(f"s_lshl_b32 {s(S_TMP)}, {s(S_WAVE)}, 4", f"v_add_u32 {v(T)}, {s(S_TMP)}, {v(VN)}", f"v_lshlrev_b32 {v(T2)}, 3, {v(VG)}", f"v_sub_u32 {v(T)}, {v(T)}, {v(T2)}", f"v_mov_b32 {v(T2)}, 0xf149f2ca")
    for j in range(8):
        A(f"v_cmp_le_i32 vcc, {j}, {v(T)}", "s_nop 1", f"v_cndmask_b32 {v(SX+j)}, {v(T2)}, {v(SX+j)}, vcc")
    A(f"{L1}:")
    Lm, Lmo = A.label("Xm"), A.label("Xmo")
    A(f"s_lshl_b32 {s(S_B)}, {s(S_SEG)}, 13", f"s_mul_i32 {s(S_TMP)}, {s(S_WAVE)}, 1792", f"s_add_u32 {s(S_B)}, {s(S_B)}, {s(S_TMP)}", f"s_add_u32 {s(S_B)}, {s(S_B)}, {MEMS_OFF:#x}")
    A(f"{Lm}:", f"buffer_load_dwordx4 {v(KF,4)}, {v(VL16)}, {s(WS,4)}, {s(S_B)} offen sc1", f"buffer_load_dwordx4 {v(KF+4,4)}, {v(VL16)}, {s(WS,4)}, {s(S_B)} offen offset:768 sc1",
      "s_waitcnt vmcnt(0)", f"v_max3_u32 {v(T)}, {v(KF)}, {v(KF+1)}, {v(KF+2)}", f"v_max3_u32 {v(T)}, {v(T)}, {v(KF+3)}, {v(KF+4)}", f"v_max3_u32 {v(T)}, {v(T)}, {v(KF+5)}, {v(KF+6)}",
      f"v_max_u32 {v(T)}, {v(T)}, {v(KF+7)}", f"v_cmp_eq_u32 vcc, -1, {v(T)}", f"s_cbranch_vccz {Lmo}", f"s_sleep {WSLEEP}")
    timeout_step(A, Lm, abort)
    A(f"{Lmo}:")
    if TLM: A("s_memrealtime s[94:95]")
    A(f"ds_write_b128 {v(VMW)}, {v(KF,4)}", f"ds_write_b128 {v(VMW)}, {v(KF+4,4)} offset:768")
    for cb in range(7):
        A(f"v_add_u32 {v(T)}, {256*cb}, {v(VKM)}", f"ds_read2_b32 {v(FR+2*cb,2)}, {v(T)} offset0:0 offset1:4")
    A("s_waitcnt lgkmcnt(0)")
    for cb in range(7):
        for t in range(2):
            A(mfma(SX + 8 + 4*t, v(FR+2*cb, 2), v(ACC + 8*cb + 4*t, 2), "0" if cb == 0 else None, k16=True))
    A("s_barrier")
    A("s_nop 6")
    for t in range(2): A(f"ds_write_b64 {v(VRW)}, {v(SX + 8 + 4*t, 2)} offset:{1024*t}")
    A("s_waitcnt lgkmcnt(0)", "s_barrier")
    L2 = A.label("Xr2")
    A(f"s_cmp_ge_u32 {s(S_WAVE)}, 2", f"s_cbranch_scc1 {L2}")
    for w in range(4): A(f"ds_read_b64 {v(FR + 2*w, 2)}, {v(VRR)} offset:{4096*w}")
    A("s_waitcnt lgkmcnt(0)")
    for r in range(2):
        A(f"v_add_f32 {v(FR+r)}, {v(FR+r)}, {v(FR+2+r)}", f"v_add_f32 {v(FR+4+r)}, {v(FR+4+r)}, {v(FR+6+r)}", f"v_add_f32 {v(SX+8+r)}, {v(FR+r)}, {v(FR+4+r)}")
    A(f"v_max3_f32 {v(T)}, {v(SX)}, {v(SX+1)}, {v(SX+2)}", f"v_max3_f32 {v(T)}, {v(T)}, {v(SX+3)}, {v(SX+4)}", f"v_max3_f32 {v(T)}, {v(T)}, {v(SX+5)}, {v(SX+6)}",
      f"v_max3_f32 {v(T)}, {v(T)}, {v(SX+7)}, {v(SX+8)}", f"v_max_f32 {v(T)}, {v(T)}, {v(SX+9)}")
    def xred(op):
        for sw in ("v_permlane16_swap_b32", "v_permlane32_swap_b32"):
            A(f"v_mov_b32 {v(T2)}, {v(T)}", "s_nop 1", f"{sw} {v(T)}, {v(T2)}", f"{op} {v(T)}, {v(T)}, {v(T2)}")
    xred("v_max_f32")
    for j in range(10): A(f"v_sub_f32 {v(SX+j)}, {v(SX+j)}, {v(T)}")
    for j in range(10): A(f"v_exp_f32 {v(SX+j)}, {v(SX+j)}")
    A(f"v_add_f32 {v(T)}, {v(SX)}, {v(SX+1)}")
    for j in range(2, 10): A(f"v_add_f32 {v(T)}, {v(T)}, {v(SX+j)}")
    xred("v_add_f32")
    A(f"v_rcp_f32 {v(T)}, {v(T)}", "s_nop 0")
    for j in range(10): A(f"v_mul_f32 {v(SX+j)}, {v(SX+j)}, {v(T)}")
    for r in range(5): A(f"v_cvt_pk_bf16_f32 {v(FR+r)}, {v(SX+2*r)}, {v(SX+2*r+1)}")
    A(f"s_mul_i32 {s(S_TMP)}, {s(S_SEG)}, 40960", f"s_mul_i32 {s(S_TMP2)}, {s(S_WAVE)}, 20480", f"s_add_u32 {s(S_TMP)}, {s(S_TMP)}, {s(S_TMP2)}", f"s_add_u32 {s(S_TMP)}, {s(S_TMP)}, {PX_OFF:#x}",
      f"s_lshl_b32 {s(S_TMP2)}, {s(S_H)}, 10", f"s_add_u32 {s(S_TMP2)}, {s(S_TMP2)}, {s(S_TMP)}",
      f"buffer_store_dwordx4 {v(FR,4)}, {v(VL16)}, {s(WS,4)}, {s(S_TMP2)} offen sc1",
      f"s_lshr_b32 {s(S_TMP2)}, {s(S_H)}, 2", f"s_lshl_b32 {s(S_TMP2)}, {s(S_TMP2)}, 10", f"s_add_u32 {s(S_TMP)}, {s(S_TMP)}, {s(S_TMP2)}",
      f"s_and_b32 {s(S_TMP2)}, {s(S_H)}, 3", f"s_lshl_b32 {s(S_TMP2)}, {s(S_TMP2)}, 2", f"s_add_u32 {s(S_TMP)}, {s(S_TMP)}, {s(S_TMP2)}", f"s_add_u32 {s(S_TMP)}, {s(S_TMP)}, 16384",
      f"buffer_store_dword {v(FR+4)}, {v(VL16)}, {s(WS,4)}, {s(S_TMP)} offen sc1")
    A(f"s_lshl_b32 {s(S_TMP)}, {s(S_SEG)}, 7", f"s_lshl_b32 {s(S_TMP2)}, {s(S_WAVE)}, 6", f"s_add_u32 {s(S_TMP)}, {s(S_TMP)}, {s(S_TMP2)}", f"s_lshl_b32 {s(S_TMP2)}, {s(S_H)}, 2",
      f"s_add_u32 {s(S_TMP)}, {s(S_TMP)}, {s(S_TMP2)}", f"s_add_u32 {s(S_TMP)}, {s(S_TMP)}, {FX_OFF:#x}", f"v_mov_b32 {v(T)}, 1",
      "s_waitcnt vmcnt(0)", "s_mov_b64 exec, 1", f"buffer_store_dword {v(T)}, off, {s(WS,4)}, {s(S_TMP)} sc1", "s_mov_b64 exec, -1")
    A(f"{L2}:")
    A("s_barrier")
    A(f"s_add_u32 {s(S_SEG)}, {s(S_SEG)}, {NX}", f"s_cmp_lt_u32 {s(S_SEG)}, 64", f"s_cbranch_scc1 {Lp}", "s_endpgm")

def role_PV(A, abort):
    VL, VG, VN, VL16, T, VZ, VF1, VF2, VRW, VRR, VO_ = range(1, 12)
    VOX, VP, PF_, ACC, RD = 16, 80, 96, 116, 132
    S_T, S_J = S_C, S_D
    lanes(A, VL, VG, VN, VL16)
    A(f"s_mul_i32 {s(S_SEG)}, {s(S_ROLE)}, 4682", f"s_lshr_b32 {s(S_SEG)}, {s(S_SEG)}, 16", f"s_mul_i32 {s(S_TMP)}, {s(S_SEG)}, 14", f"s_sub_u32 {s(S_TMP)}, {s(S_ROLE)}, {s(S_TMP)}",
      f"s_and_b32 {s(S_T)}, {s(S_TMP)}, 1", f"s_lshr_b32 {s(S_J)}, {s(S_TMP)}, 1", f"s_mov_b32 {s(S_TO)}, {W_TIMEOUT}")
    A(f"v_mov_b32 {v(VZ)}, 0")
    A(f"v_and_b32 {v(T)}, 3, {v(VL)}", f"v_lshlrev_b32 {v(VF1)}, 2, {v(T)}", f"s_lshl_b32 {s(S_TMP)}, {s(S_T)}, 6", f"s_lshl_b32 {s(S_TMP2)}, {s(S_WAVE)}, 4", f"s_add_u32 {s(S_TMP)}, {s(S_TMP)}, {s(S_TMP2)}",
      f"v_add_u32 {v(VF1)}, {s(S_TMP)}, {v(VF1)}")
    A(f"v_lshlrev_b32 {v(VF2)}, 2, {v(VN)}", f"s_lshl_b32 {s(S_TMP)}, {s(S_WAVE)}, 6", f"v_add_u32 {v(VF2)}, {s(S_TMP)}, {v(VF2)}")
    A(f"s_lshl_b32 {s(S_TMP)}, {s(S_WAVE)}, 12", f"v_add_u32 {v(VRW)}, {s(S_TMP)}, {v(VL16)}", f"s_lshl_b32 {s(S_TMP)}, {s(S_WAVE)}, 10", f"v_add_u32 {v(VRR)}, {s(S_TMP)}, {v(VL16)}")
    A(f"v_mul_u32_u24 {v(VO_)}, 1792, {v(VN)}", f"v_lshl_add_u32 {v(VO_)}, {v(VG)}, 3, {v(VO_)}", f"s_mul_i32 {s(S_TMP)}, {s(S_T)}, {16*1792}", f"s_lshl_b32 {s(S_TMP2)}, {s(S_J)}, 7",
      f"s_add_u32 {s(S_TMP)}, {s(S_TMP)}, {s(S_TMP2)}", f"s_lshl_b32 {s(S_TMP2)}, {s(S_WAVE)}, 5", f"s_add_u32 {s(S_TMP)}, {s(S_TMP)}, {s(S_TMP2)}", f"s_add_u32 {s(S_TMP)}, {s(S_TMP)}, 896",
      f"v_add_u32 {v(VO_)}, {s(S_TMP)}, {v(VO_)}")
    Lp = A.label("PVloop")
    A(f"{Lp}:")
    A(f"s_lshl_b32 {s(S_A)}, {s(S_SEG)}, 14", f"s_add_u32 {s(S_A)}, {s(S_A)}, {PF_OFF + FROFF:#x}")
    poll_eq(A, T, VZ, S_A, 15, abort, "cv")
    A(f"s_mul_i32 {s(S_TMP)}, {s(S_SEG)}, 458752", f"s_lshl_b32 {s(S_TMP2)}, {s(S_J)}, 16", f"s_add_u32 {s(S_TMP)}, {s(S_TMP)}, {s(S_TMP2)}", f"s_lshl_b32 {s(S_TMP2)}, {s(S_WAVE)}, 12",
      f"s_add_u32 {s(S_TMP)}, {s(S_TMP)}, {s(S_TMP2)}", f"s_add_u32 {s(S_TMP)}, {s(S_TMP)}, {VOX_OFF:#x}")
    for cc in range(4):
        for hh in range(4): A(f"buffer_load_dwordx4 {v(VOX + 16*cc + 4*hh, 4)}, {v(VL16)}, {s(WS,4)}, {s(S_TMP)} offen offset:{1024*hh} sc1")
        A(f"s_add_u32 {s(S_TMP)}, {s(S_TMP)}, 16384")
    A(f"s_lshl_b32 {s(S_A)}, {s(S_SEG)}, 7", f"s_add_u32 {s(S_A)}, {s(S_A)}, {FX_OFF:#x}")
    poll_eq(A, T, VF1, S_A, 1, abort, "fx")
    if TLM: A("s_memrealtime s[92:93]")
    A(f"s_mul_i32 {s(S_TMP)}, {s(S_SEG)}, 40960", f"s_mul_i32 {s(S_TMP2)}, {s(S_T)}, 20480", f"s_add_u32 {s(S_TMP)}, {s(S_TMP)}, {s(S_TMP2)}", f"s_add_u32 {s(S_TMP)}, {s(S_TMP)}, {PX_OFF:#x}",
      f"s_lshl_b32 {s(S_TMP2)}, {s(S_WAVE)}, 12", f"s_add_u32 {s(S_TMP2)}, {s(S_TMP2)}, {s(S_TMP)}")
    for hh in range(4): A(f"buffer_load_dwordx4 {v(PF_ + 4*hh, 4)}, {v(VL16)}, {s(WS,4)}, {s(S_TMP2)} offen offset:{1024*hh} sc1")
    A(f"s_lshl_b32 {s(S_TMP2)}, {s(S_WAVE)}, 10", f"s_add_u32 {s(S_TMP)}, {s(S_TMP)}, {s(S_TMP2)}", f"s_add_u32 {s(S_TMP)}, {s(S_TMP)}, 16384",
      f"buffer_load_dwordx4 {v(PF_ + 16, 4)}, {v(VL16)}, {s(WS,4)}, {s(S_TMP)} offen sc1")
    A(f"s_lshl_b32 {s(S_A)}, {s(S_SEG)}, 8", f"s_add_u32 {s(S_A)}, {s(S_A)}, {FV_OFF:#x}")
    poll_eq(A, T, VF2, S_A, 1, abort, "fv")
    if TLM: A("s_memrealtime s[94:95]")
    A(f"s_mul_i32 {s(S_TMP)}, {s(S_SEG)}, 114688", f"s_lshl_b32 {s(S_TMP2)}, {s(S_J)}, 14", f"s_add_u32 {s(S_TMP)}, {s(S_TMP)}, {s(S_TMP2)}", f"s_lshl_b32 {s(S_TMP2)}, {s(S_WAVE)}, 10",
      f"s_add_u32 {s(S_TMP)}, {s(S_TMP)}, {s(S_TMP2)}", f"s_add_u32 {s(S_TMP)}, {s(S_TMP)}, {VPE_OFF:#x}")
    for cc in range(4):
        A(f"buffer_load_dwordx4 {v(VP + 4*cc, 4)}, {v(VL16)}, {s(WS,4)}, {s(S_TMP)} offen sc1", f"s_add_u32 {s(S_TMP)}, {s(S_TMP)}, 4096")
    for hh in range(4):
        for cc in range(4): A(mfma(ACC + 4*cc, v(VOX + 16*cc + 4*hh, 4), v(PF_ + 4*hh, 4), "0" if hh == 0 else None))
    A("s_waitcnt vmcnt(0)")
    for cc in range(4): A(mfma(ACC + 4*cc, v(VP + 4*cc, 4), v(PF_ + 16, 4)))
    A("s_nop 7")
    for cc in range(4): A(f"ds_write_b128 {v(VRW)}, {v(ACC + 4*cc, 4)} offset:{1024*cc}")
    A("s_waitcnt lgkmcnt(0)", "s_barrier")
    for w in range(4): A(f"ds_read_b128 {v(RD + 4*w, 4)}, {v(VRR)} offset:{4096*w}")
    A("s_waitcnt lgkmcnt(0)", "s_barrier")
    for r in range(4):
        A(f"v_add_f32 {v(RD+r)}, {v(RD+r)}, {v(RD+4+r)}", f"v_add_f32 {v(RD+8+r)}, {v(RD+8+r)}, {v(RD+12+r)}", f"v_add_f32 {v(RD+r)}, {v(RD+r)}, {v(RD+8+r)}")
    A(f"v_cvt_pk_bf16_f32 {v(RD+4)}, {v(RD)}, {v(RD+1)}", f"v_cvt_pk_bf16_f32 {v(RD+5)}, {v(RD+2)}, {v(RD+3)}",
      f"s_mul_i32 {s(S_TMP)}, {s(S_SEG)}, {32*1792}", f"buffer_store_dwordx2 {v(RD+4,2)}, {v(VO_)}, {s(OUT,4)}, {s(S_TMP)} offen")
    A(f"s_add_u32 {s(S_SEG)}, {s(S_SEG)}, {NPG}", f"s_cmp_lt_u32 {s(S_SEG)}, 64", f"s_cbranch_scc1 {Lp}", "s_endpgm")

LOIMG = 32768

def role_L(A, abort):
    VL, VG, VN, VL16, T, T2, VR0, VL4, VMK, VON, VO_, VZ, VOA = range(1, 14)
    TB = [16, 72, 128, 184]
    W_ = 240
    PK = 112
    S_W, S_IT, S_KV, S_L2E, S_EPS = S_A, S_B, S_C, S_D, S_H
    A("; ---------------- role L")
    lanes(A, VL, VG, VN, VL16)
    A(f"s_mov_b32 {s(S_BUF)}, 0", f"s_mov_b32 {s(S_TO)}, {W_TIMEOUT}", f"s_mov_b32 {s(S_L2E)}, 0x3fb8aa3b", f"s_mov_b32 {s(S_EPS)}, 0x358637bd")
    dma_x(A, S_ROLE, S_BUF, VL16, XA)
    A(f"v_lshlrev_b32 {v(VL4)}, 2, {v(VL)}", f"v_mov_b32 {v(VZ)}, 0")
    A(f"v_lshrrev_b32 {v(T)}, 2, {v(VN)}", f"v_lshlrev_b32 {v(T2)}, 3, {v(T)}", f"v_and_b32 {v(T)}, 3, {v(VN)}", f"v_add_u32 {v(T2)}, {v(T2)}, {v(T)}",
      f"v_mul_u32_u24 {v(VR0)}, {RP}, {v(T2)}", f"v_lshl_add_u32 {v(VR0)}, {v(VG)}, 4, {v(VR0)}",
      f"v_mul_u32_u24 {v(VO_)}, 1792, {v(T2)}", f"v_lshl_add_u32 {v(VO_)}, {v(VG)}, 3, {v(VO_)}",
      f"s_mul_i32 {s(S_TMP)}, {s(S_ROLE)}, {32*1792}", f"s_mul_i32 {s(S_TMP2)}, {s(S_WAVE)}, 224", f"s_add_u32 {s(S_TMP)}, {s(S_TMP)}, {s(S_TMP2)}", f"v_add_u32 {v(VO_)}, {s(S_TMP)}, {v(VO_)}")
    A(f"v_cmp_gt_u32 vcc, 12, {v(VN)}", "s_nop 1", f"v_cndmask_b32 {v(VMK)}, 0, -1, vcc", f"v_mov_b32 {v(T)}, 0x3f803f80", f"v_cmp_eq_u32 vcc, 12, {v(VN)}", "s_nop 1", f"v_cndmask_b32 {v(VON)}, 0, {v(T)}, vcc")
    A(f"s_lshl_b32 {s(S_TMP)}, {s(S_WAVE)}, 13", f"s_add_u32 {s(S_TMP)}, {s(S_TMP)}, {LOIMG}", f"v_add_u32 {v(VOA)}, {s(S_TMP)}, {v(VL16)}")
    def ldtile(b, off):
        o = [f"s_add_u32 {s(S_TMP)}, {s(S_W)}, {off}"]
        for ks in range(14):
            o.append(f"buffer_load_dwordx4 {v(TB[b]+4*ks,4)}, {v(VL16)}, {s(WS,4)}, {s(S_TMP)} offen offset:{1024*(ks%4)}")
            if ks % 4 == 3: o.append(f"s_add_u32 {s(S_TMP)}, {s(S_TMP)}, 4096")
        return o
    KO, VOF = 32*14336, 64*14336
    toff = [KO, KO + 14336, VOF, VOF + 14336]
    A(f"s_mul_i32 {s(S_W)}, {s(S_WAVE)}, {8*14336}", f"s_add_u32 {s(S_W)}, {s(S_W)}, {WQF_OFF:#x}")
    A("s_waitcnt vmcnt(0)", "s_barrier")
    for b in range(4): A(ldtile(b, toff[b]))
    for tt in range(2):
        for ks in range(14): A(f"ds_read_b128 {a_(56*tt + 4*ks, 4)}, {v(VR0)} offset:{64*ks + 4*RP*tt}")
        A("s_waitcnt lgkmcnt(0)")
    xf = lambda tt, ks: a_(56*tt + 4*ks, 4)
    def phi_pair(dst, a, b, t0):
        p, q, e, f = t0, t0+1, t0+2, t0+3
        return [f"v_cvt_pk_bf16_f32 {v(q)}, {v(a)}, {v(b)}", f"v_lshlrev_b32 {v(p)}, 16, {v(q)}", f"v_and_b32 {v(q)}, 0xffff0000, {v(q)}",
                f"v_mul_f32 {v(e)}, {s(S_L2E)}, {v(p)}", f"v_mul_f32 {v(f)}, {s(S_L2E)}, {v(q)}", f"v_exp_f32 {v(e)}, {v(e)}", f"v_exp_f32 {v(f)}, {v(f)}",
                f"v_add_f32 {v(p)}, 1.0, {v(p)}", f"v_add_f32 {v(q)}, 1.0, {v(q)}", f"v_med3_f32 {v(p)}, {v(p)}, {v(e)}, 1.0", f"v_med3_f32 {v(q)}, {v(q)}, {v(f)}, 1.0",
                f"v_cvt_pk_bf16_f32 {v(q)}, {v(p)}, {v(q)}", f"v_lshlrev_b32 {v(p)}, 16, {v(q)}", f"v_and_b32 {v(q)}, 0xffff0000, {v(q)}",
                f"v_add_f32 {v(p)}, {s(S_EPS)}, {v(p)}", f"v_add_f32 {v(q)}, {s(S_EPS)}, {v(q)}", f"v_cvt_pk_bf16_f32 {v(dst)}, {v(p)}, {v(q)}"]
    A(f"s_mov_b32 {s(S_IT)}, 0", f"s_lshl_b32 {s(S_KV)}, {s(S_WAVE)}, 14", f"s_add_u32 {s(S_KV)}, {s(S_KV)}, {KV_OFF:#x}")
    L1 = A.label("L1")
    A(f"{L1}:")
    A(f"s_add_u32 {s(S_W)}, {s(S_W)}, {2*14336}")
    for b in range(4):
        A("s_waitcnt vmcnt(42)")
        for ks in range(14):
            for tt in range(2): A(mfma(W_ + 4*tt, xf(tt, ks), v(TB[b]+4*ks, 4), "0" if ks == 0 else None))
        A(ldtile(b, toff[b]))
        for r in range(4):
            if b < 2:
                A(phi_pair(W_+8, W_+2*r, W_+2*r+1, W_+9))
                if b == 1: A(f"v_and_b32 {v(W_+8)}, {v(W_+8)}, {v(VMK)}")
            else:
                A(f"v_cvt_pk_bf16_f32 {v(W_+8)}, {v(W_+2*r)}, {v(W_+2*r+1)}")
                if b == 3: A(f"v_or_b32 {v(W_+8)}, {v(W_+8)}, {v(VON)}")
            A(f"v_accvgpr_write_b32 {a_(112 + 4*b + r)}, {v(W_+8)}")
    A("s_nop 1")
    for td in range(2):
        for te in range(2): A(mfma(W_ + 8*td + 4*te, a_(112 + 4*td, 4), a_(120 + 4*te, 4), "0"))
    A("s_waitcnt vmcnt(40)", "s_nop 7")
    for r in range(16): A(f"buffer_atomic_add_f32 {v(W_+r)}, {v(VL4)}, {s(WS,4)}, {s(S_KV)} offen offset:{256*r}")
    A(f"s_add_u32 {s(S_KV)}, {s(S_KV)}, 4096", f"s_add_u32 {s(S_IT)}, {s(S_IT)}, 1", f"s_cmp_lt_u32 {s(S_IT)}, 4", f"s_cbranch_scc1 {L1}")
    A("s_waitcnt vmcnt(0)", "s_barrier")
    if TLM: A("s_memrealtime s[92:93]")
    Ln = A.label("Lns")
    A(f"s_mov_b32 {s(S_KV)}, {CL_OFF:#x}", f"s_cmp_lg_u32 {s(S_WAVE)}, 0", f"s_cbranch_scc1 {Ln}")
    A(f"v_mov_b32 {v(T)}, 1", "s_mov_b64 exec, 1", f"buffer_atomic_add {v(T)}, off, {s(WS,4)}, {s(S_KV)} sc1", "s_mov_b64 exec, -1")
    A(f"{Ln}:")
    A(f"s_mul_i32 {s(S_W)}, {s(S_WAVE)}, {8*14336}", f"s_add_u32 {s(S_W)}, {s(S_W)}, {WQF_OFF:#x}")
    for b in range(2): A(ldtile(b, 14336*b))
    poll_eq(A, T, VZ, S_KV, 64, abort, "cl")
    if TLM: A("s_memrealtime s[94:95]")
    A(f"s_mov_b32 {s(S_IT)}, 0", f"s_lshl_b32 {s(S_KV)}, {s(S_WAVE)}, 14", f"s_add_u32 {s(S_KV)}, {s(S_KV)}, {KV_OFF:#x}")
    Q, KVR, KVT, ZO, PQ, NUM, DEN, TMPS = 128, 144, 160, 168, 172, 180, 188, 192
    L2 = A.label("L2")
    A(f"{L2}:")
    for r in range(16): A(f"buffer_load_dword {v(KVR+r)}, {v(VL4)}, {s(WS,4)}, {s(S_KV)} offen offset:{256*r} sc1")
    A(f"s_add_u32 {s(S_W)}, {s(S_W)}, {2*14336}", "s_waitcnt vmcnt(16)")
    for b in range(2):
        for ks in range(14):
            for tt in range(2): A(mfma(Q + 8*tt + 4*b, v(TB[b]+4*ks, 4), xf(tt, ks), "0" if ks == 0 else None))
    A("s_waitcnt vmcnt(0)")
    for b in range(2): A(ldtile(b, 14336*b))
    for tt in range(2):
        for r in range(4): A(phi_pair(PQ + 4*tt + r, Q + 8*tt + 2*r, Q + 8*tt + 2*r + 1, TMPS))
    for te in range(2):
        for td in range(2):
            for p in range(2): A(f"v_cvt_pk_bf16_f32 {v(KVT + 4*te + 2*td + p)}, {v(KVR + 8*td + 4*te + 2*p)}, {v(KVR + 8*td + 4*te + 2*p + 1)}")
    A("s_nop 1")
    for r in range(4): A(f"v_mov_b32_dpp {v(ZO+r)}, {v(KVT+4+r)} row_newbcast:12 row_mask:0xf bank_mask:0xf")
    A("s_nop 1")
    for tt in range(2):
        for te in range(2): A(mfma(NUM + 4*te, v(KVT + 4*te, 4), v(PQ + 4*tt, 4), "0"))
        A(mfma(DEN, v(ZO, 4), v(PQ + 4*tt, 4), "0"), "s_nop 7")
        d, u = TMPS, TMPS+1
        A(f"v_cvt_pk_bf16_f32 {v(d)}, {v(DEN)}, {v(DEN)}", f"v_and_b32 {v(d)}, 0xffff0000, {v(d)}", f"v_add_f32 {v(d)}, {s(S_EPS)}, {v(d)}",
          f"v_cvt_pk_bf16_f32 {v(d)}, {v(d)}, {v(d)}", f"v_and_b32 {v(d)}, 0xffff0000, {v(d)}", f"v_rcp_f32 {v(d)}, {v(d)}")
        for r in range(4):
            A(f"v_cvt_pk_bf16_f32 {v(u+1)}, {v(NUM+2*r)}, {v(NUM+2*r+1)}", f"v_lshlrev_b32 {v(u)}, 16, {v(u+1)}", f"v_and_b32 {v(u+1)}, 0xffff0000, {v(u+1)}",
              f"v_mul_f32 {v(u)}, {v(u)}, {v(d)}", f"v_mul_f32 {v(u+1)}, {v(u+1)}, {v(d)}", f"v_cvt_pk_bf16_f32 {v(TMPS+4+r)}, {v(u)}, {v(u+1)}")
        A(f"ds_write_b128 {v(VOA)}, {v(TMPS+4,4)} offset:{1024*tt}", "s_waitcnt lgkmcnt(0)")
    A(f"v_add_u32 {v(VOA)}, 2048, {v(VOA)}")
    A(f"s_add_u32 {s(S_KV)}, {s(S_KV)}, 4096", f"s_add_u32 {s(S_IT)}, {s(S_IT)}, 1", f"s_cmp_lt_u32 {s(S_IT)}, 4", f"s_cbranch_scc1 {L2}")
    A("s_waitcnt vmcnt(0)", "s_barrier")
    A(f"s_mul_i32 {s(S_W)}, {s(S_WAVE)}, {7*16384}", f"s_add_u32 {s(S_W)}, {s(S_W)}, {WOF_OFF:#x}")
    def ldwo(c):
        o = []
        for h in range(16):
            if h % 4 == 0: o.append(f"s_add_u32 {s(S_TMP)}, {s(S_W)}, {16384*c + 1024*h}")
            o.append(f"buffer_load_dwordx4 {v(16 + 64*(c % 3) + 4*h, 4)}, {v(VL16)}, {s(WS,4)}, {s(S_TMP)} offen offset:{1024*(h%4)}")
        return o
    A(ldwo(0), ldwo(1))
    for f in range(32):
        A(f"ds_read_b128 {a_(4*f, 4)}, {v(VL16)} offset:{LOIMG + 1024*f}")
        if f % 8 == 7: A("s_waitcnt lgkmcnt(0)")
    for c in range(7):
        if c + 2 < 7: A(ldwo(c+2))
        nyoung = 16*min(2, 6-c) + (2 if c >= 1 else 0) * 0
        A(f"s_waitcnt vmcnt({16*min(2, 6-c)})")
        for h in range(16):
            for tt in range(2): A(mfma(W_ + 4*tt, v(16 + 64*(c % 3) + 4*h, 4), a_(8*h + 4*tt, 4), "0" if h == 0 else None))
        A("s_nop 7")
        for tt in range(2):
            A(f"v_cvt_pk_bf16_f32 {v(W_+8+2*tt)}, {v(W_+4*tt)}, {v(W_+4*tt+1)}", f"v_cvt_pk_bf16_f32 {v(W_+9+2*tt)}, {v(W_+4*tt+2)}, {v(W_+4*tt+3)}")
        A(f"s_mov_b32 {s(S_TMP)}, {4*1792}",
          f"buffer_store_dwordx2 {v(W_+8,2)}, {v(VO_)}, {s(OUT,4)}, 0 offen offset:{32*c}", f"buffer_store_dwordx2 {v(W_+10,2)}, {v(VO_)}, {s(OUT,4)}, {s(S_TMP)} offen offset:{32*c}")
    A("s_endpgm")
```

```python
import sys
from asm import *
from model import *
import k1, rec, workers
from rec import WS, XB, DBG, S_WAVE, S_ROLE, S_TMP, S_TMP2
from workers import OUT, XA

def main_kernel(A, name, profile=False):
    NV, NX, NPG = workers.NV, workers.NX, workers.NPG
    kernel_begin(A, name)
    Lexit = A.label("exit")
    A("s_cmp_ge_u32 s2, 256", f"s_cbranch_scc1 {Lexit}")
    srd(A, WS, 96, 0x10000000); srd(A, XB, 24, 1835008); srd(A, DBG, 88, 256); srd(A, OUT, 80, 2048*896*2); srd(A, XA, 0, 1835008)
    A("v_lshrrev_b32 v1, 6, v0", "s_nop 0", f"v_readfirstlane_b32 {s(S_WAVE)}, v1", "s_waitcnt lgkmcnt(0)")
    Lw, Lwk, Ltm, Ld = A.label("notw0"), A.label("wk"), A.label("tm"), A.label("rd")
    A(f"s_cmp_lg_u32 {s(S_WAVE)}, 0", f"s_cbranch_scc1 {Lw}")
    A("s_mov_b64 exec, 1")
    A(f"s_getreg_b32 {s(S_TMP)}, hwreg(HW_REG_XCC_ID)", f"s_and_b32 {s(S_TMP)}, {s(S_TMP)}, 7")
    if rec.XSCR: A(f"s_lshr_b32 {s(S_TMP)}, s2, {rec.XSCR}", f"s_and_b32 {s(S_TMP)}, {s(S_TMP)}, 7")
    A(f"s_lshl_b32 s60, {s(S_TMP)}, 2", "v_mov_b32 v1, 1", "v_mov_b32 v2, 1",
      f"buffer_atomic_add v1, off, {s(DBG,4)}, s60 sc0", "s_waitcnt vmcnt(0)", f"buffer_atomic_add v2, off, {s(DBG,4)}, 0 offset:32",
      f"v_readfirstlane_b32 s61, v1", f"s_lshl_b32 {s(S_TMP2)}, {s(S_TMP)}, 5", f"s_add_u32 {s(S_TMP2)}, {s(S_TMP2)}, s61", "s_cmp_lt_u32 s61, 32", f"s_cbranch_scc1 {Ld}")
    Lo, Lo2 = A.label("ovw"), A.label("ovg")
    A("v_mov_b32 v1, 1", f"buffer_atomic_add v1, off, {s(DBG,4)}, 0 offset:36 sc0", "s_waitcnt vmcnt(0)", "v_readfirstlane_b32 s61, v1", "s_mov_b32 s62, 300000", f"s_mov_b32 {s(S_TMP2)}, 1000")
    A(f"{Lo}:", f"buffer_load_dword v1, off, {s(DBG,4)}, 0 offset:32 sc1", "s_waitcnt vmcnt(0)", "v_readfirstlane_b32 s63, v1", "s_cmp_ge_u32 s63, 256", f"s_cbranch_scc1 {Lo2}",
      "s_sleep 4", "s_sub_u32 s62, s62, 1", f"s_cbranch_scc1 {Ld}", f"s_branch {Lo}")
    A(f"{Lo2}:", f"buffer_load_dwordx4 v[4:7], off, {s(DBG,4)}, 0 sc1", f"buffer_load_dwordx4 v[8:11], off, {s(DBG,4)}, 0 offset:16 sc1", "s_waitcnt vmcnt(0)")
    for x in range(8):
        Ln = A.label("ovn")
        A(f"v_readfirstlane_b32 s63, v{4+x}", "s_min_u32 s63, s63, 32", "s_sub_u32 s62, 32, s63", "s_cmp_ge_u32 s61, s62", f"s_cbranch_scc1 {Ln}",
          f"s_add_u32 {s(S_TMP2)}, s63, s61", f"s_add_u32 {s(S_TMP2)}, {s(S_TMP2)}, {32*x}", f"s_branch {Ld}", f"{Ln}:", "s_sub_u32 s61, s61, s62")
    A(f"{Ld}:", f"v_mov_b32 v1, {s(S_TMP2)}", "v_mov_b32 v2, 0x1f000", "ds_write_b32 v2, v1", "s_waitcnt lgkmcnt(0)", "s_mov_b64 exec, -1")
    A(f"{Lw}:", "s_barrier", "v_mov_b32 v2, 0x1f000", "ds_read_b32 v1, v2", "s_waitcnt lgkmcnt(0)", f"v_readfirstlane_b32 {s(S_ROLE)}, v1")
    if rec.TLM: A(f"s_mov_b32 s89, {s(S_ROLE)}")
    ranges = [("A", 16), ("B", 30), ("PF", 32), ("V", 32 + 16*NV), ("X", 32 + 16*NV + 16*NX), ("PV", 32 + 16*NV + 16*NX + 14*NPG), ("L", 32 + 16*NV + 16*NX + 14*NPG + 64)]
    assert ranges[-1][1] <= 256
    L = {n: A.label("role" + n) for n, _ in ranges}
    J = {n: A.label("jmp" + n) for n, _ in ranges}
    for n, hi in ranges: A(f"s_cmp_lt_u32 {s(S_ROLE)}, {hi}", f"s_cbranch_scc1 {J[n]}")
    A(f"{Lexit}:", "s_endpgm")
    lo = 0
    for n, hi in ranges:
        A(f"{J[n]}:")
        if n in ("V", "X", "PV", "L"): A(f"s_sub_u32 {s(S_ROLE)}, {s(S_ROLE)}, {lo}")
        A(f"s_branch {L[n]}")
        lo = hi
    for R, fn in (("A", rec.role_A), ("B", rec.role_B)):
        A(f"{L[R]}:")
        Ls = [A.label(f"{R}w{w}") for w in range(4)]
        for w in range(1, 4): A(f"s_cmp_eq_u32 {s(S_WAVE)}, {w}", f"s_cbranch_scc1 {Ls[w]}")
        for w in range(4):
            A(f"{Ls[w]}:"); fn(A, w, Lexit, profile)
    Lx2 = A.label("exit2")
    for R, fn in (("PF", rec.role_PF), ("V", workers.role_V), ("X", workers.role_X), ("PV", workers.role_PV), ("L", workers.role_L)):
        A(f"{L[R]}:"); fn(A, Lx2)
    A(f"{Lx2}:", "s_endpgm")
    A(kernel_desc(name))

HDR = open("concat_heads__linear_attn_block__memory_aug_recurrent_mem_tr__prompt.s.ref").read().split("; Override launch")[0] if len(sys.argv) > 2 and sys.argv[2] == "final" else ""
def generate(path, parts=("k1", "main"), TL=0, PROFILE=0, **kw):
    rec.TLM = workers.TLM = TL
    A = Asm()
    hdr = []
    if "k1" in parts: hdr.append(f"; @launch kernel=prep_kernel grid=(256,1,1) block=(256,1,1) lds={k1.K1_LDS}")
    if "main" in parts: hdr.append("; @launch kernel=main_kernel grid=(256,1,1) block=(256,1,1) lds=131072")
    A('.amdgcn_target "amdgcn-amd-amdhsa--gfx950"', ".text")
    g = vars(rec); saved = dict(g); g.update(FULL=1, TIMEOUT=300000); g.update(kw)
    def instrument(fn, name, idreg, base, wsreg, wavereg):
        B = Asm(); B.uid = A.uid + 100000
        fn(B, name)
        lines = B.lines
        if TL:
            i0 = lines.index(f"{name}:")
            lines.insert(i0 + 1, "    s_memrealtime s[90:91]\n    s_mov_b32 s92, 0\n    s_mov_b32 s94, 0\n    s_mov_b32 s89, 9999")
            iend = max(i for i, l in enumerate(lines) if l.strip() == "s_endpgm")
            first = True
            for i, l in enumerate(lines):
                if l.strip() == "s_endpgm": lines[i] = f"    s_branch Ltl_{name}"
            stub = f"""Ltl_{name}:
    s_cmp_ge_u32 s2, 256
    s_cbranch_scc1 Ltl2_{name}
    s_memrealtime s[96:97]
    s_load_dwordx2 s[84:85], s[0:1], 96
    s_mov_b32 s86, 0x10000000
    s_mov_b32 s87, 0x00020000
    s_waitcnt lgkmcnt(0)
    s_mov_b64 exec, -1
    v_mov_b32 v4, s90
    v_mov_b32 v5, s92
    v_mov_b32 v6, s94
    v_mov_b32 v7, s96
    s_lshl_b32 s88, {idreg}, 2
    s_add_u32 s88, s88, {wavereg}
    s_lshl_b32 s88, s88, 4
    s_add_u32 s88, s88, {base:#x}
    buffer_store_dwordx4 v[4:7], off, s[84:87], s88
Ltl2_{name}:
    s_endpgm"""
            lines.insert(iend + 1, stub)
        A.lines += lines; A.uid = B.uid
    if "k1" in parts: instrument(k1.k1_kernel, "prep_kernel", "s2", PROF_OFF, 4, "s32")
    if "main" in parts: instrument(lambda B, n: main_kernel(B, n, bool(PROFILE)), "main_kernel", "s89", PROF_OFF + 0x40000, 4, "s16")
    g.update({k: saved[k] for k in list(kw) + ["FULL", "TIMEOUT"]})
    open(path, "w").write(HDR + "\n".join(hdr) + "\n" + A.text())
if __name__ == "__main__":
    generate(sys.argv[1], STAMP=0 if HDR else 1)
```

```python
from asm import *
from model import *
from rec import WS, DBG, S_WAVE
PT = 0
CSLEEP = 4
TOUCH = 1
CNT0 = 64

def prep_srds(A):
    W1, W2, M0S = 64, 68, 72
    S_MH = 33
    A("s_and_b32 s37, s2, 7", f"s_lshl_b32 {s(S_MH)}, s37, 2", "s_lshr_b32 s37, s2, 6", f"s_add_u32 {s(S_MH)}, {s(S_MH)}, s37")
    srd(A, M0S, 32, 7168)
    LmB, LmJ = A.label("matB"), A.label("matJ")
    A(f"s_cmp_ge_u32 {s(S_MH)}, 16", f"s_cbranch_scc1 {LmB}")
    srd(A, W1, 40, 3670016); srd(A, W2, 48, 3670016)
    A(f"s_branch {LmJ}", f"{LmB}:")
    srd(A, W1, 56, 3670016); srd(A, W2, 64, 3670016)
    A(f"{LmJ}:")

def prep_body(A, after_loads=None):
    W1, W2, M0S = 64, 68, 72
    S_W = S_WAVE
    S_MH, S_H, S_RH, S_CQ, S_T, S_T2, S_G, S_OUT, S_X, GW = range(33, 43)
    VL, VG, VN, T, T2, VA, VLW, VLR, VL16, VTR = range(1, 11)
    GS, ES = 272, 1088
    BP = 288
    BIMG = 0
    AIMG = 256*BP
    A(f"s_and_b32 {s(S_H)}, {s(S_MH)}, 15", f"s_bfe_u32 {s(S_RH)}, s2, 0x10005", f"s_bfe_u32 {s(S_CQ)}, s2, 0x20003")
    A(f"v_and_b32 {v(VL)}, 63, v0", f"v_lshrrev_b32 {v(VG)}, 4, {v(VL)}", f"v_and_b32 {v(VN)}, 15, {v(VL)}", f"v_lshlrev_b32 {v(VL16)}, 4, {v(VL)}")
    A(f"v_lshrrev_b32 {v(T)}, 5, {v(VL)}", f"v_lshlrev_b32 {v(VA)}, 13, {v(T)}", f"v_and_b32 {v(T2)}, 31, {v(VL)}", f"v_lshl_add_u32 {v(VA)}, {v(T2)}, 4, {v(VA)}")
    A(f"v_mul_u32_u24 {v(VLW)}, {GS}, {v(T2)}", f"v_lshl_add_u32 {v(VLW)}, {v(T)}, 4, {v(VLW)}")
    A(f"v_mul_u32_u24 {v(VLR)}, {GS}, {v(VG)}", f"v_lshl_add_u32 {v(VLR)}, {v(VN)}, 4, {v(VLR)}")
    AST, BST = 16, 144
    isB = [A.label("pb%d" % i) for i in range(6)]
    if PT == 2: A("s_memrealtime s[76:77]")
    if TOUCH:
        A(f"s_bfe_u32 {s(S_T)}, s2, 0x30003", f"s_lshl_b32 {s(S_T)}, {s(S_T)}, 2", f"s_add_u32 {s(S_X)}, {s(S_T)}, {s(S_W)}",
          f"v_lshrrev_b32 {v(T)}, 2, {v(VL)}", f"v_lshlrev_b32 {v(T)}, 13, {v(T)}", f"v_and_b32 {v(T2)}, 3, {v(VL)}", f"v_lshl_add_u32 {v(T)}, {v(T2)}, 7, {v(T)}",
          f"v_lshlrev_b32 {v(T2)}, 7, {v(VL)}",
          f"s_mul_i32 {s(S_T)}, {s(S_X)}, {14*8192}", f"s_lshl_b32 {s(S_T2)}, {s(S_H)}, 9", f"s_add_u32 {s(S_T)}, {s(S_T)}, {s(S_T2)}",
          f"s_mul_i32 {s(S_T2)}, {s(S_H)}, 229376", f"s_mul_i32 {s(S_G)}, {s(S_X)}, 7168", f"s_add_u32 {s(S_T2)}, {s(S_T2)}, {s(S_G)}",
          f"s_cmp_ge_u32 {s(S_MH)}, 16", f"s_cselect_b32 {s(S_T2)}, {s(S_T2)}, {s(S_T)}", "s_cselect_b64 vcc, -1, 0", f"v_cndmask_b32 {v(T2)}, {v(T)}, {v(T2)}, vcc",
          "s_mov_b32 exec_hi, 0x00ffffff",
          f"buffer_load_dword v222, {v(T2)}, {s(W2,4)}, {s(S_T2)} offen", f"buffer_load_dword v221, {v(T)}, {s(W1,4)}, {s(S_T)} offen", "s_mov_b32 exec_hi, -1")
        if TOUCH > 1: A(f"s_sleep {TOUCH}")
    A(f"s_cmp_ge_u32 {s(S_MH)}, 16", f"s_cbranch_scc1 {isB[0]}")
    A(f"s_mul_i32 {s(S_T)}, {s(S_CQ)}, 112", f"s_mul_i32 {s(S_T2)}, {s(S_W)}, 28", f"s_add_u32 {s(S_T)}, {s(S_T)}, {s(S_T2)}", f"s_lshl_b32 {s(S_T)}, {s(S_T)}, 13",
      f"s_lshl_b32 {s(S_T2)}, {s(S_H)}, 9", f"s_add_u32 {s(S_T)}, {s(S_T)}, {s(S_T2)}")
    for j in range(14):
        A(f"buffer_load_dwordx4 {v(BST+4*j,4)}, {v(VA)}, {s(W2,4)}, {s(S_T)} offen", f"s_add_u32 {s(S_T)}, {s(S_T)}, 16384")
    A(f"s_branch {isB[1]}", f"{isB[0]}:")
    A(f"v_mul_u32_u24 {v(T)}, 896, {v(VG)}", f"v_lshl_add_u32 {v(T)}, {v(VN)}, 4, {v(T)}")
    A(f"s_mul_i32 {s(S_T)}, {s(S_H)}, 229376", f"s_mul_i32 {s(S_T2)}, {s(S_CQ)}, 224", f"s_add_u32 {s(S_T)}, {s(S_T)}, {s(S_T2)}",
      f"s_mul_i32 {s(S_T2)}, {s(S_W)}, {64*896}", f"s_add_u32 {s(S_T)}, {s(S_T)}, {s(S_T2)}")
    for j in range(16):
        A(f"buffer_load_dwordx4 {v(BST+4*j,4)}, {v(T)}, {s(W2,4)}, {s(S_T)} offen", f"s_add_u32 {s(S_T)}, {s(S_T)}, {4*896}")
    A(f"{isB[1]}:")
    if PT == 2: A("s_memrealtime s[78:79]")
    A(f"s_mul_i32 {s(S_T)}, {s(S_RH)}, 7", f"s_add_u32 {s(S_T)}, {s(S_T)}, {s(S_W)}", f"s_lshl_b32 {s(S_OUT)}, {s(S_T)}, 10",
      f"s_lshl_b32 {s(S_T)}, {s(S_T)}, 18", f"s_lshl_b32 {s(S_T2)}, {s(S_H)}, 9", f"s_add_u32 {s(S_G)}, {s(S_T)}, {s(S_T2)}")
    for j in range(16):
        A(f"buffer_load_dwordx4 {v(AST+4*j,4)}, {v(VA)}, {s(W1,4)}, {s(S_G)} offen", f"s_add_u32 {s(S_G)}, {s(S_G)}, 16384")
    if PT == 2: A("s_memrealtime s[80:81]")
    A(f"s_add_u32 {s(S_G)}, {s(S_G)}, {3*32*8192}", f"s_cmp_eq_u32 {s(S_W)}, 3", f"s_cselect_b32 {s(S_G)}, 0x40000000, {s(S_G)}")
    for j in range(16):
        A(f"buffer_load_dwordx4 {v(AST+64+4*j,4)}, {v(VA)}, {s(W1,4)}, {s(S_G)} offen", f"s_add_u32 {s(S_G)}, {s(S_G)}, 16384")
    if PT == 2: A("s_memrealtime s[82:83]")
    A(f"v_lshrrev_b32 {v(T)}, 1, {v(VN)}", f"v_mul_u32_u24 {v(T2)}, 896, {v(T)}", f"v_lshl_add_u32 {v(T2)}, {v(VG)}, 5, {v(T2)}", f"v_and_b32 {v(T)}, 1, {v(VN)}", f"v_lshl_add_u32 {v(T2)}, {v(T)}, 2, {v(T2)}")
    A(f"s_lshl_b32 {s(GW)}, s2, 2", f"s_add_u32 {s(GW)}, {s(GW)}, {s(S_W)}")
    A(f"s_lshl_b32 {s(S_T)}, s2, 7", f"s_lshl_b32 {s(S_X)}, s2, 10", f"s_add_u32 {s(S_X)}, {s(S_X)}, {MEMF_OFF:#x}",
      "s_cmp_lt_u32 s2, 7", f"s_cselect_b32 {s(S_X)}, {s(S_X)}, 0x40000000", f"s_cmp_eq_u32 {s(S_W)}, 3", f"s_cselect_b32 {s(S_X)}, {s(S_X)}, 0x40000000")
    for q in range(4): A(f"buffer_load_dword {v(216+q)}, {v(T2)}, {s(M0S,4)}, {s(S_T)} offen offset:{8*q}")
    for r in range(4): A(f"v_mov_b32 {v(208+r)}, -1", f"v_mov_b32 {v(212+r)}, 0")
    A(f"s_lshl_b32 {s(S_T)}, {s(GW)}, 10", f"s_add_u32 {s(S_T)}, {s(S_T)}, {MEMF_OFF:#x}")
    ms = (MEMS_OFF - MEMF_OFF) // 1024
    for j in range(3):
        A(f"s_add_u32 {s(S_T2)}, {s(S_T)}, {j << 20:#x}")
        for base in (0, ms):
            if base // 1024 == j:
                A(f"s_sub_u32 s43, {s(GW)}, {base % 1024}", "s_cmp_lt_u32 s43, 7", f"s_cselect_b32 {s(S_T2)}, 0x40000000, {s(S_T2)}")
        A(f"buffer_store_dwordx4 {v(208,4)}, {v(VL16)}, {s(WS,4)}, {s(S_T2)} offen sc1")
    A(f"s_lshl_b32 {s(S_T)}, {s(GW)}, 10", f"s_add_u32 {s(S_T)}, {s(S_T)}, {ZERO_OFF:#x}", f"s_cmp_lt_u32 {s(GW)}, {ZERO_BYTES//1024}", f"s_cselect_b32 {s(S_T)}, {s(S_T)}, 0x40000000",
      f"buffer_store_dwordx4 {v(212,4)}, {v(VL16)}, {s(WS,4)}, {s(S_T)} offen sc1")
    NY = 8
    if after_loads: NY += after_loads()
    if PT == 1: A("s_memrealtime s[76:77]")
    A(f"s_waitcnt vmcnt({32 + NY})")
    if PT == 1: A("s_memrealtime s[78:79]")
    A(f"s_cmp_ge_u32 {s(S_MH)}, 16", f"s_cbranch_scc1 {isB[2]}")
    A(f"s_mul_i32 {s(S_T)}, {s(S_W)}, 28")
    for j in range(14):
        A(f"s_add_u32 {s(S_T2)}, {s(S_T)}, {2*j}", f"s_lshr_b32 s43, {s(S_T2)}, 4", f"s_mul_i32 s43, s43, {8*ES}", f"s_and_b32 {s(S_T2)}, {s(S_T2)}, 15", f"s_lshl_b32 {s(S_T2)}, {s(S_T2)}, 4",
          f"s_add_u32 s43, s43, {s(S_T2)}", f"v_add_u32 {v(T)}, s43, {v(VLW)}", f"ds_write_b128 {v(T)}, {v(BST+4*j,4)} offset:{BIMG}")
    A(f"s_branch {isB[3]}", f"{isB[2]}:")
    A(f"v_mul_u32_u24 {v(T)}, {BP}, {v(VG)}", f"v_lshl_add_u32 {v(T)}, {v(VN)}, 4, {v(T)}", f"s_mul_i32 {s(S_T)}, {s(S_W)}, {64*BP}", f"v_add_u32 {v(T)}, {s(S_T)}, {v(T)}")
    for j in range(16): A(f"ds_write_b128 {v(T)}, {v(BST+4*j,4)} offset:{BIMG + 4*j*BP}")
    A(f"{isB[3]}:")
    A(f"v_lshrrev_b32 {v(T)}, 2, {v(VN)}", f"v_lshl_add_u32 {v(T)}, {v(VG)}, 3, {v(T)}", f"v_mul_u32_u24 {v(VTR)}, {BP}, {v(T)}", f"v_and_b32 {v(T)}, 3, {v(VN)}", f"v_lshl_add_u32 {v(VTR)}, {v(T)}, 3, {v(VTR)}",
      f"v_add_u32 {v(VTR+1)}, {128*BP}, {v(VTR)}")
    A(f"s_mul_i32 {s(S_T)}, {s(S_W)}, {16*ES}", f"s_add_u32 {s(S_T)}, {s(S_T)}, {AIMG}", f"v_add_u32 {v(T)}, {s(S_T)}, {v(VLW)}", f"v_add_u32 {v(T2)}, {s(S_T)}, {v(VLR)}")
    for half in range(2):
        A(f"s_waitcnt vmcnt({16*(1-half) + NY})")
        for j in range(16):
            r = 2*j; a, t, b = r // 8, (r // 4) % 2, r % 4
            A(f"ds_write_b128 {v(T)}, {v(AST+64*half+4*j,4)} offset:{t*8*ES + (4*a+b)*16}")
        for f in range(16):
            A(f"ds_read_b128 {a_(64*half+4*f,4)}, {v(T2)} offset:{f*ES}")
            if f % 8 == 7: A("s_waitcnt lgkmcnt(0)")
    A(f"s_waitcnt vmcnt({NY - 4})")
    for q in range(4): A(f"v_min_u32 {v(216+q)}, -2, {v(216+q)}")
    A(f"buffer_store_dwordx4 {v(216,4)}, {v(VL16)}, {s(WS,4)}, {s(S_X)} offen sc1", f"s_add_u32 {s(S_X)}, {s(S_X)}, {ALT:#x}", f"buffer_store_dwordx4 {v(216,4)}, {v(VL16)}, {s(WS,4)}, {s(S_X)} offen sc1")
    A("s_barrier")
    if PT == 1: A("s_memrealtime s[80:81]")
    A(f"s_mul_i32 {s(S_T)}, {s(S_H)}, 28", f"s_mul_i32 {s(S_T2)}, {s(S_CQ)}, 7", f"s_add_u32 {s(S_T)}, {s(S_T)}, {s(S_T2)}", f"s_mul_i32 {s(S_T)}, {s(S_T)}, 14336",
      f"s_add_u32 {s(S_OUT)}, {s(S_OUT)}, {s(S_T)}", f"s_cmp_ge_u32 {s(S_MH)}, 16", f"s_cselect_b32 {s(S_T)}, {WB_OFF:#x}, {WA_OFF:#x}", f"s_add_u32 {s(S_OUT)}, {s(S_OUT)}, {s(S_T)}")
    A(f"s_add_u32 {s(S_G)}, {s(S_OUT)}, 4096", f"s_cmp_eq_u32 {s(S_W)}, 3", f"s_cselect_b32 {s(S_G)}, 0x40000000, {s(S_G)}")
    sc = int(np.float32(LOG2E / 16).view(np.uint32))
    ACC, BF, PK = 16, 144, 160
    def gemm(isb):
        if isb:
            rdB = lambda i: [f"ds_read_b64_tr_b16 {v(BF + 4*(i % 4) + 2*u, 2)}, {v(VTR + (i % 8) // 4)} offset:{BIMG + (32*(i % 4) + 4*u)*BP + 32*(i // 8)}" for u in range(2)]
        else:
            rdB = lambda i: [f"ds_read_b128 {v(BF + 4*(i % 4), 4)}, {v(VLR)} offset:{BIMG + i*ES}"]
        n = 2 if isb else 1
        if not isb: A(f"s_mov_b32 s43, {sc:#x}")
        def epi(cb):
            o = []
            for half in range(2):
                d = ACC + 16*(cb % 2) + 8*half
                p = PK + 8*(cb % 2) + 4*half
                if not isb: o += [f"v_mul_f32 {v(d+r)}, s43, {v(d+r)}" for r in range(8)]
                o += [f"v_cvt_pk_bf16_f32 {v(p+r)}, {v(d+2*r)}, {v(d+2*r+1)}" for r in range(4)]
                so = S_OUT if half == 0 else S_G
                o += [f"buffer_store_dwordx4 {v(p,4)}, {v(VL16)}, {s(WS,4)}, {s(so)} offen sc1", f"s_add_u32 {s(so)}, {s(so)}, 14336"]
            return o
        for i in range(3): A(rdB(i))
        pend = []
        for i in range(56):
            cb, es = i // 8, i % 8
            if i + 3 < 56: A(rdB(i+3), f"s_waitcnt lgkmcnt({3*n})")
            else: A(f"s_waitcnt lgkmcnt({(55-i)*n})")
            if es == 1 and cb > 0: pend = epi(cb-1)
            for half in range(2):
                for t in range(2):
                    d = ACC + 16*(cb % 2) + 8*half + 4*t
                    A(f"v_mfma_f32_16x16x32_bf16 {v(d,4)}, {a_(64*half + 32*t + 4*es, 4)}, {v(BF + 4*(i % 4), 4)}, " + ("0" if es == 0 else v(d,4)))
                    for _ in range(2):
                        if pend: A(pend.pop(0))
            assert not (es == 7 and pend)
        A("s_nop 7", epi(6))
    A(f"s_cmp_ge_u32 {s(S_MH)}, 16", f"s_cbranch_scc1 {isB[4]}")
    gemm(False)
    A(f"s_branch {isB[5]}", f"{isB[4]}:")
    gemm(True)
    A(f"{isB[5]}:")
    if PT == 1: A("s_memrealtime s[82:83]")
    A("s_waitcnt vmcnt(0)", "s_barrier")
    if PT:
        A("s_waitcnt lgkmcnt(0)", "v_mov_b32 v12, s76", "v_mov_b32 v13, s78", "v_mov_b32 v14, s80", "v_mov_b32 v15, s82",
          f"s_lshl_b32 {s(S_T)}, {s(GW)}, 4", f"s_add_u32 {s(S_T)}, {s(S_T)}, {PROF_OFF + 0x80000:#x}", f"buffer_store_dwordx4 v[12:15], off, {s(WS,4)}, {s(S_T)}")
    A(f"s_lshl_b32 {s(S_T)}, {s(S_MH)}, 2", f"s_cmp_eq_u32 {s(S_W)}, 0", f"s_cselect_b32 {s(S_T)}, {s(S_T)}, 0x40000000",
      f"v_mov_b32 {v(T)}, 1", "s_mov_b64 exec, 1", f"buffer_atomic_add {v(T)}, off, {s(DBG,4)}, {s(S_T)} offset:{CNT0} sc1", "s_mov_b64 exec, -1")
PREP_LDS = 256*288 + 64*1088

def wait_counters(A, lo, n, abort, tag, S_TO, vt=1, va=2):
    from rec import timeout_step
    Lp, Lgo = A.label(tag + "cw"), A.label(tag + "cg")
    A(f"s_cmp_lg_u32 {s(S_WAVE)}, 0", f"s_cbranch_scc1 {Lgo}")
    A(f"v_and_b32 {v(va)}, {n-1}, v0", f"v_add_lshl_u32 {v(va)}, {v(va)}, {lo}, 2")
    A(f"{Lp}:", f"buffer_load_dword {v(vt)}, {v(va)}, {s(DBG,4)}, 0 offen offset:{CNT0} sc1", "s_waitcnt vmcnt(0)", f"v_cmp_ne_u32 vcc, 8, {v(vt)}", f"s_cbranch_vccz {Lgo}", f"s_sleep {CSLEEP}")
    timeout_step(A, Lp, abort)
    A(f"{Lgo}:", "s_barrier")
```

```python
from asm import *
from model import *

WS, XB, DBG = 4, 8, 12
S_WAVE, S_ROLE, S_STEP, S_MEM, S_MEM2, S_P, S_X, S_VOX, S_TO, S_TMP, S_TMP2, S_P2, S_MEMN = range(16, 29)
S_PROF = 30
NSTEPS = 63
PACCUM = 0
PMASK = 255
TIMEOUT = 40000

def smf(d, a, b, idx, hi=False):
    return f"v_smfmac_f32_16x16x64_bf16 {v(d,4)}, {v(a,4)}, {b}, {v(idx)}" + (" abid:1" if hi else "")

def wreg(f, n=8, sub=0):
    return a_(8*f + sub, n) if f < 32 else v(120 + 8*(f-32) + sub, n)

def lane_consts(A, VL, VG, VN):
    A(f"v_and_b32 {v(VL)}, 63, v0", f"v_lshrrev_b32 {v(VG)}, 4, {v(VL)}", f"v_and_b32 {v(VN)}, 15, {v(VL)}")

def mem_lane_off(A, dst, VG, VN, t):
    A(f"v_lshlrev_b32 {v(dst)}, 8, {v(VG)}", f"v_lshl_add_u32 {v(dst)}, {v(VN)}, 4, {v(dst)}")

def idx_const(A, dst, VN, t):
    A(f"v_and_b32 {v(t)}, 1, {v(VN)}", f"v_mul_u32_u24 {v(dst)}, 0xAAAA, {v(t)}",
      f"v_lshrrev_b32 {v(t)}, 3, {v(VN)}", f"v_mul_u32_u24 {v(t)}, 0xAAAA, {v(t)}",
      f"v_lshl_add_u32 {v(dst)}, {v(t)}, 16, {v(dst)}", f"v_add_u32 {v(dst)}, 0x44444444, {v(dst)}")

def memload(dst, voff, kb):
    so = S_MEM if kb < 4 else S_MEM2
    return f"buffer_load_dwordx4 {v(dst,4)}, {v(voff)}, {s(WS,4)}, {s(so)} offen offset:{(kb%4)*1024} sc1"

def chk4(t, r, first=True):
    if first:
        return [f"v_max3_u32 {v(t)}, {v(r)}, {v(r+1)}, {v(r+2)}", f"v_max_u32 {v(t)}, {v(t)}, {v(r+3)}"]
    return [f"v_max3_u32 {v(t)}, {v(t)}, {v(r)}, {v(r+1)}", f"v_max3_u32 {v(t)}, {v(t)}, {v(r+2)}, {v(r+3)}"]

def timeout_step(A, again, abort):
    A(f"s_sub_u32 {s(S_TO)}, {s(S_TO)}, 1", f"s_cbranch_scc1 {abort}", f"s_branch {again}")

def prof(A, slot, on):
    if on and (PMASK >> slot) & 1:
        A(f"s_memtime {s(S_PROF+2*slot,2)}")

def prof_flush(A, n, vt, vz, role_wave_off):
    A("s_waitcnt lgkmcnt(0)")
    A(f"s_lshl_b32 {s(S_TMP)}, {s(S_ROLE)}, 2", f"s_add_u32 {s(S_TMP)}, {s(S_TMP)}, {s(S_WAVE)}", f"s_lshl_b32 {s(S_TMP)}, {s(S_TMP)}, 6",
      f"s_add_u32 {s(S_TMP)}, {s(S_TMP)}, {s(S_STEP)}", f"s_lshl_b32 {s(S_TMP)}, {s(S_TMP)}, 6", f"s_add_u32 {s(S_TMP)}, {s(S_TMP)}, {PROF_OFF:#x}")
    A(f"v_mov_b32 {v(vz)}, 0")
    for k in range(n):
        A(f"v_mov_b32 {v(vt)}, {s(S_PROF+2*k)}", f"buffer_store_dword {v(vt)}, {v(vz)}, {s(WS,4)}, {s(S_TMP)} offen offset:{4*k}")

def prof_acc(A, n):
    A("s_memtime s[72:73]", "s_waitcnt lgkmcnt(0)")
    for k in range(n):
        A(f"s_sub_u32 {s(S_TMP)}, {s(S_PROF+2*k)}, s71", f"s_add_u32 s{74+k}, s{74+k}, {s(S_TMP)}")
    A(f"s_sub_u32 {s(S_TMP)}, s72, s71", f"s_add_u32 s{74+n}, s{74+n}, {s(S_TMP)}", "s_mov_b32 s71, s72" if PACCUM == 1 else "s_mov_b32 s71, 0")
    Lz = A.label("pz")
    A(f"s_cmp_lg_u32 {s(S_STEP)}, 12", f"s_cbranch_scc1 {Lz}")
    for k in range(n+1): A(f"s_mov_b32 s{74+k}, 0")
    A(f"{Lz}:")
def prof_acc_out(A, n):
    A(f"s_lshl_b32 {s(S_TMP)}, {s(S_ROLE)}, 2", f"s_add_u32 {s(S_TMP)}, {s(S_TMP)}, {s(S_WAVE)}", f"s_lshl_b32 {s(S_TMP)}, {s(S_TMP)}, 6", f"s_add_u32 {s(S_TMP)}, {s(S_TMP)}, {PROF_OFF:#x}")
    for k in range(n+1):
        A(f"v_mov_b32 v0, s{74+k}", f"buffer_store_dword v0, off, {s(WS,4)}, {s(S_TMP)} offset:{4*k}")

def emit_slots(A, slots):
    for sl in slots:
        A(sl['m']); A(sl['pre']); A(sl['valu']); A(sl['post'])

TIMG = 0
TW = 1808
MIMG = 8192
XIMG = 16384
RS = 256
XSL = 20480
A_SLEEP = 0
WFI = 0
FS0 = 0
FSD = 0
B1S = 38
B2S = 47
TRN = 6
X_NOPM = 0
PFA = 3
ATOUCH = 2
VPRE = 0
BTOUCH = 0
BT0 = 0
BTA = 1
TCH0 = 14
TAHEAD = 1
TGATE = 2
XPRE = 14
XPG = 8
X_NOVOX = 0
X_NOV = 0
FPD = 4
PGAP = 30
WARM = 0
B0S = 10
F2AT = 0
XSCR = 0
EXW = 6
TLM = 0
FROFF = 14336
F1AT = 2
FULL = 0
PB2 = 0
LDFL = 0
F1GO = 1
VOXS = 3
STAMP = 1
XS0 = 10
XSN = 20
D1 = 120
D2 = 22
F2D = 40
F2OFF = 10240
F1OFF = 12288
APW = 2
BPW = 3
F1W = 2
X_NODMA = 0
X_NOH = 0
X_NOTR = 0
X_NOCONV = 0
X_NOB1 = 0
B_SLEEP_M = 4
B_SLEEP_P = 0

def nops(n):
    out = []
    while n > 0:
        k = min(n, 16); out.append(f"s_nop {k-1}"); n -= k
    return out

def flag_ld(r, voff, soff, off):
    return f"buffer_load_dword {v(r)}, {v(voff)}, {s(WS,4)}, {s(soff)} offen offset:{off} sc1"
def flag_poll(A, regs, voff, soff, off, abort, tag, primed=False):
    Lp, Lgo = A.label(tag + "fp"), A.label(tag + "go")
    ld = lambda r: flag_ld(r, voff, soff, off)
    n = len(regs)
    if not primed:
        for r in regs: A(ld(r), f"s_nop {48 // n - 1}")
    A(f"{Lp}:")
    for r in regs:
        A(f"s_waitcnt vmcnt({n-1})", f"v_cmp_eq_u32 vcc, -1, {v(r)}", f"s_cbranch_vccz {Lgo}", ld(r))
    timeout_step(A, Lp, abort)
    A(f"{Lgo}:")

def mkslots(ms):
    return [dict(m=m, pre=[], valu=[], post=[]) for m in ms]

def role_A(A, w, abort, profile=False):
    import prep
    WFL = [' sc1', '', ' nt', ' sc1 nt'][WFI]
    MEMR, ACC, HT = 0, 28, 56
    IDX, VMEM, VTW, VTR, VH, VX, TMP, TMP2 = range(112, 120)
    VG, VN, VL = 1, 2, 3
    ko = [(2*w + i) % 7 for i in range(7)]
    lane_consts(A, VL, VG, VN)
    idx_const(A, IDX, VN, TMP)
    mem_lane_off(A, VMEM, VG, VN, TMP)
    A(f"v_lshlrev_b32 {v(VTW)}, 4, {v(VN)}", f"v_lshl_add_u32 {v(VTW)}, {v(VG)}, 2, {v(VTW)}", f"v_add_u32 {v(VTW)}, {TIMG + w*TW}, {v(VTW)}")
    A(f"v_and_b32 {v(TMP)}, 1, {v(VG)}", f"v_mul_u32_u24 {v(VTR)}, {2*TW}, {v(TMP)}",
      f"v_lshrrev_b32 {v(TMP)}, 3, {v(VN)}", f"v_lshl_add_u32 {v(VTR)}, {v(TMP)}, 7, {v(VTR)}",
      f"v_bfe_u32 {v(TMP)}, {v(VN)}, 1, 1", f"v_lshl_add_u32 {v(VTR)}, {v(TMP)}, 6, {v(VTR)}",
      f"v_lshrrev_b32 {v(TMP)}, 1, {v(VG)}", f"v_lshl_add_u32 {v(VTR)}, {v(TMP)}, 5, {v(VTR)}",
      f"v_bfe_u32 {v(TMP)}, {v(VN)}, 2, 1", f"v_lshl_add_u32 {v(VTR)}, {v(TMP)}, 4, {v(VTR)}",
      f"v_and_b32 {v(TMP)}, 1, {v(VN)}", f"v_lshl_add_u32 {v(VTR)}, {v(TMP)}, 3, {v(VTR)}")
    if TIMG: A(f"v_add_u32 {v(VTR)}, {TIMG}, {v(VTR)}")
    if w < 3:
        A(f"v_lshlrev_b32 {v(VX)}, 10, {v(VG)}",
          f"v_lshl_add_u32 {v(VX)}, {v(VN)}, {3 if w < 2 else 2}, {v(VX)}", f"v_add_u32 {v(VX)}, {XIMG + (4*w if w < 2 else 128)}, {v(VX)}")
    if w < 2:
        A(f"v_lshlrev_b32 {v(VH)}, 4, {v(VL)}")
    elif w == 2:
        A(f"v_mul_u32_u24 {v(VH)}, 1792, {v(VG)}", f"v_and_b32 {v(TMP)}, 7, {v(VN)}", f"v_lshl_add_u32 {v(VH)}, {v(TMP)}, 5, {v(VH)}",
          f"v_add_u32 {v(VH)}, {MIMG}, {v(VH)}")
    else:
        PXO, PMO = HT + 40, HT + 41
        A(f"v_lshrrev_b32 {v(TMP2)}, 3, {v(VL)}", f"v_mul_u32_u24 {v(VH)}, {RS}, {v(TMP2)}", f"v_and_b32 {v(TMP)}, 7, {v(VL)}",
          f"v_lshl_add_u32 {v(VX)}, {v(TMP)}, 4, {v(VH)}", f"v_add_u32 {v(VX)}, {XIMG}, {v(VX)}",
          f"v_lshl_add_u32 {v(VH)}, {v(TMP)}, 2, {v(VH)}", f"v_add_u32 {v(VH)}, {XIMG + 128}, {v(VH)}")
        A(f"v_and_b32 {v(TMP)}, 3, {v(VL)}", f"v_lshlrev_b32 {v(PXO)}, 3, {v(TMP)}", f"v_lshl_add_u32 {v(PXO)}, {v(TMP2)}, 5, {v(PXO)}",
          f"v_bfe_u32 {v(TMP)}, {v(VL)}, 2, 1", f"v_lshl_add_u32 {v(PXO)}, {v(TMP)}, 8, {v(PXO)}",
          f"s_lshl_b32 {s(S_TMP)}, {s(S_ROLE)}, 9", f"v_add_u32 {v(PXO)}, {s(S_TMP)}, {v(PXO)}")
        A(f"v_lshlrev_b32 {v(PMO)}, 5, {v(TMP2)}",
          f"v_bfe_u32 {v(TMP)}, {v(VL)}, 2, 1", f"v_lshl_add_u32 {v(PMO)}, {v(TMP)}, 8, {v(PMO)}",
          f"v_bfe_u32 {v(TMP)}, {v(VL)}, 1, 1", f"v_lshl_add_u32 {v(PMO)}, {v(TMP)}, 3, {v(PMO)}",
          f"s_lshr_b32 {s(S_TMP)}, {s(S_ROLE)}, 2", f"s_lshl_b32 {s(S_TMP)}, {s(S_TMP)}, 9",
          f"s_and_b32 {s(S_TMP2)}, {s(S_ROLE)}, 1", f"s_lshl_b32 {s(S_TMP2)}, {s(S_TMP2)}, 4", f"s_add_u32 {s(S_TMP)}, {s(S_TMP)}, {s(S_TMP2)}",
          f"s_bfe_u32 {s(S_TMP2)}, {s(S_ROLE)}, 0x10001", f"s_lshl_b32 {s(S_TMP2)}, {s(S_TMP2)}, 2", f"s_add_u32 {s(S_TMP)}, {s(S_TMP)}, {s(S_TMP2)}",
          f"s_add_u32 {s(S_TMP)}, {s(S_TMP)}, 8192", f"v_add_u32 {v(PMO)}, {s(S_TMP)}, {v(PMO)}")
        A(f"v_and_b32 {v(TMP)}, 1, {v(VL)}", f"v_lshl_add_u32 {v(PMO)}, {v(TMP)}, 30, {v(PMO)}")
    if w == APW:
        A(f"v_min_u32 {v(TMP2)}, 27, {v(VL)}", f"v_lshlrev_b32 {v(TMP2)}, 2, {v(TMP2)}", f"s_lshr_b32 {s(S_TMP)}, {s(S_ROLE)}, 2", f"s_lshl_b32 {s(S_TMP)}, {s(S_TMP)}, 8", f"s_add_u32 {s(S_TMP)}, {s(S_TMP)}, {F1OFF}", f"v_add_u32 {v(TMP2)}, {s(S_TMP)}, {v(TMP2)}")
    if w == 3:
        A(f"v_lshlrev_b32 {v(TMP2)}, 7, {v(VL)}", f"s_lshl_b32 {s(S_TMP)}, {s(S_ROLE)}, 2", f"s_add_u32 {s(S_TMP)}, {s(S_TMP)}, {F2OFF}", f"v_add_u32 {v(TMP2)}, {s(S_TMP)}, {v(TMP2)}",
          f"v_cmp_lt_u32 vcc, 13, {v(VL)}", f"v_mov_b32 {v(TMP)}, 0x40000000", "s_nop 0", f"v_cndmask_b32 {v(TMP2)}, {v(TMP2)}, {v(TMP)}, vcc")
    if FULL: prep.wait_counters(A, s(S_ROLE), 1, abort, "A", S_TO, 4, 5)
    A(f"v_lshlrev_b32 {v(TMP)}, 4, {v(VL)}")
    A(f"s_mul_i32 {s(S_TMP)}, {s(S_ROLE)}, {28*14336}", f"s_add_u32 {s(S_TMP)}, {s(S_TMP)}, {WA_OFF + 7*w*14336}")
    for cb in range(7):
        for p in range(7):
            f = cb*7 + p
            off = cb*14336 + ko[p]*2048
            A(f"s_add_u32 {s(S_TMP2)}, {s(S_TMP)}, {off}")
            for hi in range(2):
                A(f"buffer_load_dwordx4 {wreg(f,4,4*hi)}, {v(TMP)}, {s(WS,4)}, {s(S_TMP2)} offen offset:{1024*hi}{WFL}")
        if cb >= 2: A("s_waitcnt vmcnt(28)")
    A(f"s_mov_b32 {s(S_STEP)}, 0", f"s_mov_b32 {s(S_MEM)}, {MEMF_OFF:#x}", f"s_mov_b32 {s(S_MEM2)}, {MEMF_OFF+4096:#x}",
      f"s_mov_b32 {s(S_P)}, {PF_OFF:#x}", f"s_mov_b32 {s(S_X)}, {XS_OFF + 14336*(w%2):#x}", f"s_mov_b32 {s(S_TO)}, {TIMEOUT}")
    Lstep = A.label(f"A{w}step"); Lpoll = A.label(f"A{w}poll")
    def cv_wait(ahead):
        Lc, Lg = A.label("cvp"), A.label("cvg")
        A(f"s_add_u32 {s(S_TMP2)}, {s(S_P)}, {16384*ahead + FROFF}", f"v_cmp_ne_u32 vcc, 15, {v(TMP2)}", f"s_cbranch_vccz {Lg}")
        A(f"{Lc}:", f"buffer_load_dword {v(TMP2)}, off, {s(WS,4)}, {s(S_TMP2)} sc1", "s_waitcnt vmcnt(0)", f"v_cmp_ne_u32 vcc, 15, {v(TMP2)}", f"s_cbranch_vccz {Lg}", "s_sleep 1")
        timeout_step(A, Lc, abort)
        A(f"{Lg}:", f"s_add_u32 {s(S_TMP2)}, {s(S_TMP2)}, 16384", f"buffer_load_dword {v(TMP2)}, off, {s(WS,4)}, {s(S_TMP2)} sc1")
    if FULL:
        prep.wait_counters(A, 0, 32, abort, "A", S_TO, 4, 5)
        if w < 2:
            A(f"v_mov_b32 {v(TMP2)}, 0")
            cv_wait(0)
    if w == 3:
        A(f"v_lshlrev_b32 {v(HT+43)}, 7, {v(VL)}", f"s_lshl_b32 {s(S_VOX)}, {s(S_ROLE)}, 14", f"s_add_u32 {s(S_VOX)}, {s(S_VOX)}, {VOX_OFF + 458752*TAHEAD + 8192:#x}",
          f"s_cmp_lt_u32 {s(S_ROLE)}, 12", f"s_cselect_b32 s59, {16*16384}, 0x40000000")
        A(f"s_cmp_lt_u32 {s(S_ROLE)}, 7", f"s_cselect_b32 s61, {ALT:#x}, 0x40000000", f"s_min_u32 {s(S_TMP)}, {s(S_ROLE)}, 6",
          f"s_lshl_b32 {s(S_TMP)}, {s(S_TMP)}, 10", f"v_add_u32 {v(HT+47)}, {s(S_TMP)}, {v(VMEM)}")
    if w < 2:
        for j in range(XPRE):
            if j % 4 == 0: A(f"s_add_u32 {s(S_TMP)}, {s(S_X)}, {1024*j}")
            A(f"buffer_load_dwordx4 {v(HT+4*j,4)}, {v(VH)}, {s(WS,4)}, {s(S_TMP)} offen offset:{1024*(j%4)} sc1")
    A(f"s_mov_b32 {s(S_PROF+16)}, 0")
    if STAMP: A("s_mov_b32 s58, 0")
    if STAMP and w == 3: A("s_waitcnt vmcnt(0)", "s_memrealtime s[50:51]", "s_memtime s[54:55]")
    if TLM: A("s_waitcnt vmcnt(0)", "s_memrealtime s[92:93]")
    for r in range(28): A(f"v_mov_b32 {v(ACC+r)}, 0")
    if w == 3: A("s_mov_b32 s60, 0x40000000" if FULL else f"s_mov_b32 s60, {s(S_VOX)}")
    A(f"{Lstep}:")
    prof(A, 0, profile)
    Ljoin, Lfail = A.label("join"), A.label("fail")
    nd = 2 if w < 3 else 1
    def issue():
        o = [memload(MEMR + 4*p, VMEM, ko[p]) for p in range(2)]
        for p in range(nd):
            kb = ko[p]
            o += [f"s_mov_b32 m0, {MIMG + (kb - kb % 4)*1024}", "s_nop 0", f"buffer_load_dwordx4 {v(VMEM)}, {s(WS,4)}, {s(S_MEM if kb < 4 else S_MEM2)} offen offset:{(kb%4)*1024} sc1 lds"]
        return o
    B0 = B0S
    rdm = lambda p: f"ds_read_b128 {v(MEMR+4*p,4)}, {v(VMEM)} offset:{MIMG + ko[p]*1024}"
    xsl = []
    xld = lambda j: f"buffer_load_dwordx4 {v(HT+4*j,4)}, {v(VH)}, {s(WS,4)}, {s(S_TMP)} offen offset:{1024*(j%4)} sc1"
    if w < 2 and not X_NODMA:
        nin = 14 - XPRE
        for jj in range(nin):
            j = XPRE + jj
            sl = XS0 + (jj*XSN)//nin
            if j % 4 == 0 or jj == 0: xsl.append((sl, f"s_add_u32 {s(S_TMP)}, {s(S_X)}, {1024*(j - j % 4)}"))
            xsl.append((sl, xld(j)))
    horder = [(0, 0), (1, 0), (2, 0), (0, 1), (1, 1), (2, 1), (3, 0), (3, 1)] + [(cb, 0) for cb in (4, 5, 6)] + [(cb, 1) for cb in (4, 5, 6)]
    A(issue())
    A(f"{Lpoll}:")
    if profile: A(f"s_add_u32 {s(S_PROF+16)}, {s(S_PROF+16)}, 256")
    A(f"s_waitcnt vmcnt({1 + nd})")
    prof(A, 1, profile)
    hs = mkslots([smf(ACC+4*cb, MEMR + 4*p, wreg(cb*7+p), IDX) for cb, p in horder])
    c0, c1 = chk4(TMP, MEMR), chk4(TMP, MEMR + 4, False)
    hs[0]['valu'].append(c0[0]); hs[1]['valu'].append(c0[1]); hs[2]['pre'].append(f"s_waitcnt vmcnt({nd})")
    hs[2]['valu'].append(c1[0]); hs[3]['valu'].append(c1[1]); hs[4]['valu'].append(f"v_cmp_eq_u32 vcc, -1, {v(TMP)}")
    hs[6]['pre'].append(f"s_cbranch_vccnz {Lfail}")
    hs[B0]['pre'] += ["s_waitcnt vmcnt(0)", "s_barrier", rdm(2)]
    for p in range(3, 7): hs[min(13, B0 + p - 2)]['pre'].append(rdm(p))
    hs[13]['pre'].append("s_waitcnt lgkmcnt(4)")
    for sl, o in xsl:
        if sl < 14: hs[sl]['pre'].append(o)
    if profile and PMASK & 4 and not FSD: hs[13]['pre'].append(f"s_memtime {s(S_PROF+4,2)}")
    if profile and FSD:
        for k in range(5):
            if FS0 + k*FSD < 14: hs[FS0 + k*FSD]['pre'].insert(0, f"s_memtime {s(S_PROF+4+2*k,2)}")
    emit_slots(A, hs)
    A(f"{Ljoin}:")
    order = [(cb, p) for p in range(2) for cb in range(7)] + [(cb, p) for cb in range(7) for p in range(2, 7)]
    slots = mkslots([smf(ACC+4*cb, MEMR+4*p, wreg(cb*7+p), IDX) for cb, p in order])
    for p in range(3, 7): slots[14 + p - 3]['pre'].append(f"s_waitcnt lgkmcnt({6-p})")
    for sl, o in xsl:
        if sl >= 14: slots[sl]['pre'].append(o)
    if w == 2:
        for j in range(14):
            slots[19 + j]['pre'].append(f"ds_read_b128 {v(HT+4*j,4)}, {v(VH)} offset:{256*(j//2)+16*(j%2)}")
    if w == 3 and FULL and EXW == 6:
        slots[19]['pre'] += [f"ds_read_b128 {v(HT+48,4)}, {v(HT+47)} offset:{MIMG}", f"s_add_u32 s62, {s(S_MEM)}, s61"]
        slots[24]['pre'] += ["s_waitcnt lgkmcnt(1)", f"buffer_store_dwordx4 {v(HT+48,4)}, {v(HT+47)}, {s(WS,4)}, s62 offen sc1"]
    if w == 3 and ATOUCH:
        for i in range(ATOUCH):
            slots[TCH0 + 2*i]['pre'] += [f"s_add_u32 {s(S_TMP)}, s60, {'s59' if i else 0}", f"buffer_load_dword {v(HT+44+i)}, {v(HT+43)}, {s(WS,4)}, {s(S_TMP)} offen sc1"]
    def conv(cb):
        r = ACC + 4*cb
        return [f"v_add_f32 {v(r)}, {v(r)}, {v(r+1)}", f"v_add_f32 {v(r+2)}, {v(r+2)}, {v(r+3)}",
                f"v_cvt_pk_bf16_f32 {v(r)}, {v(r)}, {v(r+2)}", f"ds_write_b32 {v(VTW)}, {v(r)} offset:{256*cb}"]
    for cb in range(6):
        st = 14 + 5*cb + 4 + 2
        for i, o in enumerate(conv(cb)): slots[st+i]['valu'].append(o)
    SACC = ACC
    if w < 3:
        for r in range(4): slots[24 + 5*r]['valu'].append(f"v_mov_b32 {v(SACC+3-r)}, 0")
    TF = lambda k: MEMR + 4*k if k < 2 else ACC + 4*(k-1)
    def trread(k):
        return [f"ds_read_b64_tr_b16 {v(TF(k)+2*u,2)}, {v(VTR)} offset:{256*k + TW*u}" for u in range(2)]
    slots[B1S]['pre'] += [f"s_waitcnt lgkmcnt({1 if B1S > 38 else 0})", "s_barrier"]
    slots[B2S]['pre'] += ["s_waitcnt lgkmcnt(0)", "s_barrier"]
    if w < 3:
        rs = [r for k in range(3) for r in trread(k)]
        for i, r in enumerate(rs): slots[B1S + 1 + (i*TRN)//6]['pre'].append(r)
        slots[48]['pre'] += trread(3)
    if profile and FSD:
        for k in range(5):
            if 14 <= FS0 + k*FSD < 49: slots[FS0 + k*FSD]['pre'].insert(0, f"s_memtime {s(S_PROF+4+2*k,2)}")
    elif profile:
        for st, sl in ((3, 27), (4, 48)):
            if (PMASK >> st) & 1: slots[sl]['pre'].append(f"s_memtime {s(S_PROF+2*st,2)}")
    emit_slots(A, slots[14:])
    c6 = conv(6)
    if w < 3:
        sm = [smf(SACC, TF(k), v(HT+8*k, 8), IDX, True) for k in range(7)]
        vw = (lambda n: f"s_waitcnt vmcnt({n})") if w < 2 else (lambda n: "")
        A(vw(10), sm[0], trread(4), "s_nop 1", c6[0], c6[1], c6[2], c6[3], sm[1], vw(8), sm[2], "s_waitcnt lgkmcnt(4)", vw(6), sm[3], "s_waitcnt lgkmcnt(1)", vw(4), sm[4])
        A("s_waitcnt lgkmcnt(0)", "s_barrier")
        prof(A, 5, profile)
        for k in range(5, 7): A(trread(k))
        A(vw(0))
        for k in range(5, 7):
            A(f"s_waitcnt lgkmcnt({2*(6-k)})", sm[k])
        A("s_nop 7")
        A(f"ds_write2st64_b32 {v(VX)}, {v(SACC)}, {v(SACC+1)} offset0:0 offset1:1",
          f"ds_write2st64_b32 {v(VX)}, {v(SACC+2)}, {v(SACC+3)} offset0:2 offset1:3", "s_waitcnt lgkmcnt(0)", "s_barrier")
        prof(A, 6, profile)
        prof(A, 7, profile)
    else:
        A("s_nop 6", c6)
        A("s_waitcnt lgkmcnt(0)", "s_barrier")
        prof(A, 5, profile)
        A(nops(F2D), f"buffer_store_dword {v(IDX)}, {v(TMP2)}, {s(WS,4)}, {s(S_P)} offen")
        A("s_barrier")
        X0 = HT; XM = HT+4; MX, L = HT+8, HT+9; N0 = HT+12
        Lslow, Lnorm = A.label("slow"), A.label("norm")
        Y0 = HT + 20; RAW = HT + 28
        A(f"ds_read_b128 {v(X0,4)}, {v(VX)}", f"ds_read_b128 {v(Y0,4)}, {v(VX)} offset:2048", f"ds_read2st64_b32 {v(Y0+4,2)}, {v(VH)} offset0:0 offset1:8")
        prof(A, 6, profile)
        A("s_waitcnt lgkmcnt(1)")
        for j in range(4): A(f"v_add_f32 {v(RAW+j)}, {v(X0+j)}, {v(Y0+j)}")
        A("s_waitcnt lgkmcnt(0)", f"v_add_f32 {v(RAW+4)}, {v(Y0+4)}, {v(Y0+5)}")
        for j in range(5): A(f"v_exp_f32 {v(X0+j)}, {v(RAW+j)}")
        dpps = ["quad_perm:[1,0,3,2]", "quad_perm:[2,3,0,1]", "row_half_mirror"]
        def norm_store(check):
            A(f"v_add_f32 {v(L)}, {v(X0)}, {v(X0+1)}", f"v_add_f32 {v(MX)}, {v(X0+2)}, {v(X0+3)}",
              f"v_add_f32 {v(L)}, {v(L)}, {v(MX)}", f"v_add_f32 {v(L)}, {v(L)}, {v(XM)}")
            for d in dpps: A("s_nop 1", f"v_add_f32_dpp {v(L)}, {v(L)}, {v(L)} {d} row_mask:0xf bank_mask:0xf")
            A(f"v_rcp_f32 {v(N0+5)}, {v(L)}")
            if check: A(f"v_subrev_u32 {v(MX)}, 0x21800000, {v(L)}", f"v_cmp_lt_u32 vcc, 0x3c000000, {v(MX)}")
            else: A("s_nop 0")
            R = N0 + 5
            A(f"v_mul_f32_e64 {v(X0)}, {v(X0)}, {v(R)} clamp", f"v_mul_f32 {v(X0+1)}, {v(X0+1)}, {v(R)}",
              f"v_mul_f32_e64 {v(X0+2)}, {v(X0+2)}, {v(R)} clamp", f"v_mul_f32 {v(X0+3)}, {v(X0+3)}, {v(R)}",
              f"v_cvt_pk_bf16_f32 {v(N0)}, {v(X0)}, {v(X0+1)}", f"v_cvt_pk_bf16_f32 {v(N0+1)}, {v(X0+2)}, {v(X0+3)}",
              f"v_mul_f32_dpp {v(N0+3)}, {v(XM)}, {v(R)} quad_perm:[1,0,3,2] row_mask:0xf bank_mask:0xf")
            if check: A(f"s_cbranch_vccnz {Lslow}")
            A(f"v_mul_f32_e64 {v(XM)}, {v(XM)}, {v(R)} clamp",
              f"buffer_store_dwordx2 {v(N0,2)}, {v(PXO)}, {s(WS,4)}, {s(S_P)} offen",
              f"v_cvt_pk_bf16_f32 {v(N0+2)}, {v(XM)}, {v(N0+3)}",
              f"buffer_store_dword {v(N0+2)}, {v(PMO)}, {s(WS,4)}, {s(S_P)} offen")
        norm_store(True)
        A(f"{Lnorm}:")
        prof(A, 7, profile)
    if profile and PACCUM: prof_acc(A, 8)
    elif profile:
        prof_flush(A, 9, TMP, MEMR, 0)
        A(f"s_mov_b32 {s(S_PROF+16)}, 0")
    A("s_barrier")
    for r in range(28): A(f"v_mov_b32 {v(ACC+r)}, 0")
    if XPRE:
        if w < 2:
            if FULL: cv_wait(1)
            for j in range(XPRE):
                if j % 4 == 0: A(f"s_add_u32 {s(S_TMP)}, {s(S_X)}, {28672 + 1024*j}")
                A(xld(j), nops(XPG))
    if w == 3:
        A(f"s_add_u32 s60, {s(S_VOX)}, 458752")
        if FULL:
            A(f"s_add_u32 {s(S_TMP)}, {s(S_P)}, {16384*(TAHEAD+1) + FROFF}", f"buffer_load_dword {v(TMP)}, off, {s(WS,4)}, {s(S_TMP)} sc1", "s_waitcnt vmcnt(0)",
              f"v_readfirstlane_b32 {s(S_TMP)}, {v(TMP)}", f"s_cmp_eq_u32 {s(S_TMP)}, 15", "s_cselect_b32 s60, s60, 0x40000000")
        if FULL and EXW == 5:
            A(f"ds_read_b128 {v(HT+48,4)}, {v(HT+47)} offset:{MIMG}", f"s_add_u32 {s(S_TMP)}, {s(S_MEM)}, s61", "s_waitcnt lgkmcnt(0)",
              f"buffer_store_dwordx4 {v(HT+48,4)}, {v(HT+47)}, {s(WS,4)}, {s(S_TMP)} offen sc1")
    if w == APW:
        if TGATE != 1: flag_poll(A, list(range(8, 8 + FPD)), TMP2, S_P, 0, abort, "A")
        A(nops(D1))
    A("s_barrier")
    if TLM:
        Lt = A.label("tl")
        A(f"s_lshl_b32 {s(S_TMP)}, {s(S_ROLE)}, 2", f"s_add_u32 {s(S_TMP)}, {s(S_TMP)}, {w}", f"s_cmp_lg_u32 {s(S_STEP)}, {s(S_TMP)}", f"s_cbranch_scc1 {Lt}", "s_memrealtime s[94:95]", f"{Lt}:")
    A(f"s_add_u32 {s(S_MEM)}, {s(S_MEM)}, 8192", f"s_add_u32 {s(S_MEM2)}, {s(S_MEM2)}, 8192", f"s_add_u32 {s(S_P)}, {s(S_P)}, 16384",
      f"s_add_u32 {s(S_X)}, {s(S_X)}, {32*896}", f"s_add_u32 {s(S_VOX)}, {s(S_VOX)}, 458752",
      f"s_add_u32 {s(S_STEP)}, {s(S_STEP)}, 1", f"s_cmp_lt_u32 {s(S_STEP)}, {NSTEPS}", f"s_cbranch_scc1 {Lstep}")
    if profile and PACCUM: prof_acc_out(A, 8)
    if STAMP: A("v_mov_b32 v0, s58", "s_mov_b64 exec, 1", f"buffer_atomic_add v0, off, {s(DBG,4)}, 0 offset:52", "s_mov_b64 exec, -1")
    if STAMP and w == 3:
        A("s_memrealtime s[52:53]", "s_memtime s[56:57]", "s_waitcnt lgkmcnt(0)", "s_sub_u32 s52, s52, s50", "s_sub_u32 s56, s56, s54", "v_mov_b32 v0, s52", "v_mov_b32 v1, s56",
          f"s_lshl_b32 {s(S_TMP)}, {s(S_ROLE)}, 3", f"buffer_store_dwordx2 v[0:1], off, {s(DBG,4)}, {s(S_TMP)} offset:{248 if FULL else 64}")
    A("s_endpgm")
    A(f"{Lfail}:", issue(), f"s_sub_u32 {s(S_TO)}, {s(S_TO)}, 1", f"s_cbranch_scc1 {abort}")
    if STAMP: A(f"s_add_u32 s58, s58, 1")
    for r in range(16): A(f"v_mov_b32 {v(ACC+r)}, 0")
    A(f"s_branch {Lpoll}")
    if w == 3:
        A(f"{Lslow}:")
        A(f"v_max3_f32 {v(MX)}, {v(RAW)}, {v(RAW+1)}, {v(RAW+2)}", f"v_max3_f32 {v(MX)}, {v(MX)}, {v(RAW+3)}, {v(RAW+4)}")
        for d in dpps: A("s_nop 1", f"v_max_f32_dpp {v(MX)}, {v(MX)}, {v(MX)} {d} row_mask:0xf bank_mask:0xf")
        for j in range(5): A(f"v_sub_f32 {v(X0+j)}, {v(RAW+j)}, {v(MX)}")
        for j in range(5): A(f"v_exp_f32 {v(X0+j)}, {v(X0+j)}")
        A("s_nop 0")
        norm_store(False)
        A(f"s_branch {Lnorm}")

BW7 = 0
BMIMG = 57344
BVIMG = 65536
DB = 15

def role_B(A, w, abort, profile=False):
    import prep
    WFL = [' sc1', '', ' nt', ' sc1 nt'][WFI]
    pv = w < 2
    c, M = w % 2, w // 2
    NR = 6 if pv else 8
    WV0 = 256 - 8*(7*NR - 32)
    wrg = lambda f, n=8, sub=0: a_(8*f + sub, n) if f < 32 else v(WV0 + 8*(f-32) + sub, n)
    MEMR, ACC, VP = 0, 40, 48
    IDX, VL16, TMP, TMP2, VLV, VF2 = range(56, 62)
    if pv:
        VP2, VOX, SB, AC7, PACC, VST, R0 = 64, 72, 136, 152, 160, 164, 165
        assert 166 <= WV0
    VG, VN, VL = 1, 2, 3
    own = [2*w, 2*w+1] if w < 3 else [6]
    lane_consts(A, VL, VG, VN)
    idx_const(A, IDX, VN, TMP)
    A(f"v_lshlrev_b32 {v(VL16)}, 4, {v(VL)}", f"v_add_u32 {v(VLV)}, {BVIMG + 2048*c}, {v(VL16)}")
    A(f"s_sub_u32 {s(S_TMP)}, {s(S_ROLE)}, 16")
    if pv:
        A(f"v_lshlrev_b32 {v(VF2)}, 2, {v(VN)}", f"s_lshl_b32 {s(S_TMP2)}, {s(S_TMP)}, 7", f"s_add_u32 {s(S_TMP2)}, {s(S_TMP2)}, {F2OFF - 8192}", f"v_add_u32 {v(VF2)}, {s(S_TMP2)}, {v(VF2)}")
        VF1 = 166
        A(f"v_lshlrev_b32 {v(VF1)}, 8, {v(VL)}", f"s_lshl_b32 {s(S_TMP2)}, {s(S_TMP)}, 3", f"s_add_u32 {s(S_TMP2)}, {s(S_TMP2)}, {F1OFF - 8192 + 4*c}", f"v_add_u32 {v(VF1)}, {s(S_TMP2)}, {v(VF1)}",
          f"v_cmp_lt_u32 vcc, 3, {v(VL)}", f"v_mov_b32 {v(TMP)}, 0x40000000", "s_nop 0", f"v_cndmask_b32 {v(VF1)}, {v(VF1)}, {v(TMP)}, vcc")
        A(f"v_lshlrev_b32 {v(VST)}, 6, {v(VG)}", f"v_and_b32 {v(TMP)}, 1, {v(VN)}", f"v_lshl_add_u32 {v(VST)}, {v(TMP)}, 5, {v(VST)}",
          f"v_bfe_u32 {v(TMP)}, {v(VN)}, 1, 1", f"v_lshl_add_u32 {v(VST)}, {v(TMP)}, 4, {v(VST)}", f"v_lshrrev_b32 {v(TMP)}, 2, {v(VN)}", f"v_lshl_add_u32 {v(VST)}, {v(TMP)}, 2, {v(VST)}")
    A(f"s_mul_i32 {s(S_VOX)}, {s(S_TMP)}, {2*16*1024}",
      f"s_lshl_b32 {s(S_MEMN)}, {s(S_TMP)}, 9", f"s_add_u32 {s(S_MEMN)}, {s(S_MEMN)}, {MEMF_OFF + 8192 + 256*c:#x}",
      f"s_mul_i32 {s(S_TMP)}, {s(S_TMP)}, {2*14336}", f"s_add_u32 {s(S_TMP)}, {s(S_TMP)}, {WB_OFF + (8*M*28 + c)*14336:#x}",
      f"s_add_u32 {s(S_VOX)}, {s(S_VOX)}, {VOX_OFF + 16384*c:#x}")
    if FULL: prep.wait_counters(A, 16, 16, abort, "B", S_TO, 4, 5)
    stg = [4, 64]
    if pv:
        for u in (6, 7):
            for kb in range(7):
                A(f"s_add_u32 {s(S_TMP2)}, {s(S_TMP)}, {u*28*14336 + kb*2048}")
                for hi in range(2):
                    d = v(64+8*kb+4*hi,4) if u == 6 else a_(200+8*kb+4*hi,4)
                    A(f"buffer_load_dwordx4 {d}, {v(VL16)}, {s(WS,4)}, {s(S_TMP2)} offen offset:{1024*hi}{WFL}")
    for u in range(NR):
        for kb in range(7):
            f = u*7 + kb
            A(f"s_add_u32 {s(S_TMP2)}, {s(S_TMP)}, {u*28*14336 + kb*2048}")
            for hi in range(2):
                A(f"buffer_load_dwordx4 {wrg(f,4,4*hi)}, {v(VL16)}, {s(WS,4)}, {s(S_TMP2)} offen offset:{1024*hi}{WFL}")
        if u >= 2 or pv: A("s_waitcnt vmcnt(28)")
        if pv and u == 1:
            for j in range(14): A(f"ds_write_b128 {v(VL16)}, {v(64+4*j,4)} offset:{BW7 + 2*w*14336 + j*1024}")
            for j in range(14): A(f"ds_write_b128 {v(VL16)}, {a_(200+4*j,4)} offset:{BW7 + (2*w+1)*14336 + j*1024}")
            A("s_waitcnt lgkmcnt(0)")
    if FULL: prep.wait_counters(A, 0, 32, abort, "B", S_TO, 4, 5)
    A(f"s_mov_b32 {s(S_STEP)}, 0", f"s_mov_b32 {s(S_MEM)}, {MEMF_OFF:#x}", f"s_mov_b32 {s(S_MEM2)}, {MEMF_OFF+4096:#x}",
      f"s_mov_b32 {s(S_P)}, {PF_OFF:#x}", f"s_mov_b32 {s(S_X)}, {PF_OFF + 4096:#x}", f"s_mov_b32 {s(S_P2)}, {PF_OFF + 8192:#x}", f"s_mov_b32 {s(S_TO)}, {TIMEOUT}")
    S_EM, S_FR, S_ODD = 64, 65, 66
    A(f"s_mov_b32 {s(S_FR)}, {PF_OFF + FROFF:#x}", f"s_mov_b32 {s(S_ODD)}, 0xaaaaaaaa", f"s_mov_b32 {s(S_ODD+1)}, 0xaaaaaaaa")
    A("s_waitcnt vmcnt(0) lgkmcnt(0)")
    if TLM: A("s_memrealtime s[92:93]")
    A(f"s_mov_b32 {s(S_PROF+10)}, 0")
    if STAMP and w == 0: A("s_memtime s[54:55]")
    Lstep, Lpoll, Lok2 = [A.label(f"B{w}{x}") for x in ("step", "poll", "ok2")]
    mreg = lambda kb: MEMR + 4*kb
    mld = lambda kb: memload(mreg(kb), VL16, kb)
    if pv:
        voxld = lambda hh: f"buffer_load_dwordx4 {v(VOX + 4*hh, 4)}, {v(VL16)}, {s(WS,4)}, {s(S_TMP)} offen offset:{1024*(hh%4)} sc1"
        def voxpre(add):
            for hh in range(VPRE):
                if hh % 4 == 0: A(f"s_add_u32 {s(S_TMP)}, {s(S_VOX)}, {add + 1024*hh}")
                A(voxld(hh))
        voxpre(0)
    else:
        A(f"v_lshlrev_b32 {v(VF2)}, 3, {v(VL16)}")
        A(f"s_sub_u32 {s(S_TMP)}, {s(S_ROLE)}, 16", f"s_cmp_lt_u32 {s(S_TMP)}, 7", f"s_cselect_b32 s70, {ALT:#x}, 0x40000000", f"s_min_u32 {s(S_TMP)}, {s(S_TMP)}, 6",
          f"s_lshl_b32 {s(S_TMP)}, {s(S_TMP)}, 10", f"v_add_u32 {v(32)}, {s(S_TMP)}, {v(VL16)}")
    A(f"{Lstep}:")
    A(f"{Lpoll}:")
    for kb in own: A(mld(kb))
    if FULL and w == 3: A(f"buffer_load_dword {v(TMP)}, off, {s(WS,4)}, {s(S_FR)} sc1")
    for r in range(8): A(f"v_mov_b32 {v(ACC+r)}, 0")
    if pv:
        for j in range(8): A(f"v_mov_b32 {v(AC7+j)}, 0")
    A("s_waitcnt vmcnt(0)")
    for kb in own: A(f"ds_write_b128 {v(VL16)}, {v(mreg(kb),4)} offset:{BMIMG + kb*1024}")
    if FULL and w == 3: A(f"v_cmp_ne_u32 vcc, 15, {v(TMP)}", "s_nop 1", f"v_cndmask_b32 {v(TMP)}, 0, -1, vcc")
    for i, kb in enumerate(own): A(chk4(TMP, mreg(kb), i == 0 and not (FULL and w == 3)))
    A(f"v_cmp_eq_u32 vcc, -1, {v(TMP)}", f"s_cbranch_vccz {Lok2}")
    timeout_step(A, Lpoll, abort)
    A(f"{Lok2}:")
    if PACCUM: prof(A, 6, profile)
    A("s_waitcnt lgkmcnt(0)", "s_barrier")
    korder = own + [kb for kb in range(7) if kb not in own]
    for kb in korder[len(own):]: A(f"ds_read_b128 {v(mreg(kb),4)}, {v(VL16)} offset:{BMIMG + kb*1024}")
    if not PB2: prof(A, 1, profile)
    cv = lambda r, u: [f"v_add_f32 {v(r)}, {v(r)}, {v(r+1)}", f"v_add_f32 {v(r+2)}, {v(r+2)}, {v(r+3)}", f"v_cvt_pk_bf16_f32 {v(VP+u)}, {v(r)}, {v(r+2)}"]
    ms, ustart = [], []
    if pv:
        reg = [(u, kb) for u in range(6) for kb in korder]
        stq = [(u, kb) for kb in korder for u in (6, 7)]
        seq = []
        for i, x in enumerate(reg):
            seq.append(x)
            if i % 3 == 2: seq.append(stq[i // 3])
    else:
        seq = [(u, kb) for u in range(8) for kb in korder]
    nst = 0
    for (u, kb) in seq:
        if u < NR: ms.append(smf(ACC + 4*(u % 2), mreg(kb), wrg(u*7+kb), IDX))
        else:
            ms.append(smf(AC7 + 4*(u-6), mreg(kb), v(SB + 8*(nst % 2), 8), IDX)); nst += 1
    slots = mkslots(ms)
    slots[len(own)-1]['post'].append("s_waitcnt lgkmcnt(0)")
    last = {u: max(i for i, x in enumerate(seq) if x[0] == u) for u in range(8)}
    first = {u: min(i for i, x in enumerate(seq) if x[0] == u) for u in range(8)}
    tail = []
    for u in range(NR):
        r = ACC + 4*(u % 2)
        ops = cv(r, u) + ([f"v_mov_b32 {v(r+j)}, 0" for j in range(4)] if u + 2 < NR else [])
        st = last[u] + 2
        if st + 3 > len(slots): tail += ops; continue
        lim = first[u+2] - 2 if u + 2 < NR else len(slots) - 1
        for i, o in enumerate(ops): slots[min(st + i, lim)]['valu'].append(o)
    if pv:
        sts = [i for i, x in enumerate(seq) if x[0] >= 6]
        rd = lambda n: [f"ds_read_b128 {v(SB + 8*(n % 2) + 4*hi, 4)}, {v(VL16)} offset:{BW7 + (2*w + seq[sts[n]][0] - 6)*14336 + seq[sts[n]][1]*2048 + hi*1024}" for hi in range(2)]
        A(rd(0), rd(1))
        for n, i in enumerate(sts):
            if n + 2 < 14: slots[i+1]['pre'] += rd(n+2)
            if n >= 2: slots[i-1]['pre'].append(f"s_waitcnt lgkmcnt({2 if n + 1 < 14 else 0})")
        for hh in range(VPRE, 0 if X_NOVOX else 16):
            sl = 2 + VOXS*(hh - VPRE)
            if hh % 4 == 0: slots[sl]['pre'].append(f"s_add_u32 {s(S_TMP)}, {s(S_VOX)}, {1024*hh}")
            slots[sl]['pre'].append(voxld(hh))
        tail += cv(AC7, 6) + cv(AC7+4, 7)
        FR_ = list(range(28, 28 + FPD))
        for i, r in enumerate(FR_): slots[55 - 3*(FPD - 1 - i)]['pre'].append(flag_ld(r, VF2, S_P2, 0))
        for r in range(4): slots[40 + r]['valu'].append(f"v_mov_b32 {v(PACC+r)}, 0")
    if not pv:
        for i in range(BTOUCH):
            slots[BT0 + 2*i]['pre'] += [f"s_add_u32 {s(S_TMP)}, {s(S_VOX)}, {458752*BTA + 8192*(i + 2 - BTOUCH)}", f"buffer_load_dword {v(62+i)}, {v(VF2)}, {s(WS,4)}, {s(S_TMP)} offen sc1"]
    if FULL and w == EXW:
        A(f"ds_read_b128 {v(28,4)}, {v(32)} offset:{BMIMG}", f"s_add_u32 {s(S_EM)}, {s(S_MEM)}, s70")
        slots[3]['pre'].append(f"buffer_store_dwordx4 {v(28,4)}, {v(32)}, {s(WS,4)}, {s(S_EM)} offen sc1")
    if profile and FSD:
        for k in range(5):
            if FS0 + k*FSD < 56: slots[FS0 + k*FSD]['pre'].insert(0, f"s_memtime {s(S_PROF+4+2*k,2)}")
    if X_NOV:
        for sl in slots: sl['m'] = ""
    emit_slots(A, slots)
    if PACCUM: prof(A, 7, profile)
    A("s_nop 7", tail)
    if not pv:
        A(f"ds_write_b128 {v(VLV)}, {v(VP,4)}", f"ds_write_b128 {v(VLV)}, {v(VP+4,4)} offset:1024", "s_waitcnt lgkmcnt(0)")
    A("s_barrier")
    if not PB2: prof(A, 2, profile)
    if not pv:
        A("s_barrier", nops(DB))
    else:
        A(f"ds_read_b128 {v(VP2,4)}, {v(VLV)}", f"ds_read_b128 {v(VP2+4,4)}, {v(VLV)} offset:1024")
        flag_poll(A, FR_, VF2, S_P2, 0, abort, "B", primed=True)
        if TGATE == 2: A(f"buffer_store_dword {v(IDX)}, {v(VF1)}, {s(WS,4)}, {s(S_P2)} offen")
        A(nops(D2))
        prof(A, 0, profile)
        porder = [(c*4 + i) % 8 for i in range(8)] + [8, 9]
        pld = lambda k: f"buffer_load_dwordx4 {v(4*k,4)}, {v(VL16)}, {s(WS,4)}, {s([S_P, S_X, S_P2][k//4])} offen offset:{1024*(k%4)} sc1"
        bop = lambda k: v(VOX + 8*k, 8) if k < 8 else v(VP if k == 8 else VP2, 8)
        Lpp, Lbad = A.label("pp"), A.label("bad")
        A(f"{Lpp}:")
        if profile and not FSD: A(f"s_add_u32 {s(S_PROF+10)}, {s(S_PROF+10)}, 1")
        for k in porder: A(pld(k))
        A("s_waitcnt lgkmcnt(0)")
        for i, k in enumerate(porder):
            A(f"s_waitcnt vmcnt({9-i})")
            if i == 0: prof(A, 3, profile)
            if i == 9 and PB2: prof(A, 1, profile)
            A(smf(PACC, 4*k, bop(k), IDX))
        Lgood = A.label("good")
        a, b = PACC, PACC+2
        A(f"s_mov_b64 vcc, {s(S_ODD,2)}", "s_nop 6")
        A(f"v_add_f32 {v(a)}, {v(a)}, {v(a+1)}", f"v_add_f32 {v(b)}, {v(b)}, {v(b+1)}", f"v_cmp_u_f32 {s(68,2)}, {v(a)}, {v(b)}",
          f"v_cndmask_b32_dpp {v(b+1)}, {v(a)}, {v(b)}, vcc quad_perm:[1,0,3,2] row_mask:0xf bank_mask:0xf", "s_not_b64 vcc, vcc",
          f"v_cndmask_b32_dpp {v(a+1)}, {v(b)}, {v(a)}, vcc quad_perm:[1,0,3,2] row_mask:0xf bank_mask:0xf",
          f"s_cmp_lg_u64 {s(68,2)}, 0", f"v_cvt_pk_bf16_f32 {v(R0)}, {v(a+1)}, {v(b+1)}", f"s_cbranch_scc1 {Lbad}", f"{Lgood}:",
          f"buffer_store_dword {v(R0)}, {v(VST)}, {s(WS,4)}, {s(S_MEMN)} offen")
        if FULL:
            Lq = A.label("Bq")
            A(f"s_add_u32 {s(S_EM)}, {s(S_MEMN)}, {ALT:#x}", f"s_cmp_lg_u32 {s(S_STEP)}, {NSTEPS-1}", f"s_cbranch_scc1 {Lq}", f"buffer_store_dword {v(R0)}, {v(VST)}, {s(WS,4)}, {s(S_EM)} offen sc1", f"{Lq}:")
        prof(A, 4, profile)
        A("s_barrier")
        voxpre(458752)
        A(nops(max(0, DB - 4*VPRE)))
    if profile and PACCUM: prof_acc(A, 8)
    elif profile:
        prof_flush(A, 6, TMP, TMP2, 0)
        A(f"s_mov_b32 {s(S_PROF+10)}, 0")
    A(f"s_add_u32 {s(S_MEM)}, {s(S_MEM)}, 8192", f"s_add_u32 {s(S_MEM2)}, {s(S_MEM2)}, 8192", f"s_add_u32 {s(S_MEMN)}, {s(S_MEMN)}, 8192",
      f"s_add_u32 {s(S_P)}, {s(S_P)}, 16384", f"s_add_u32 {s(S_P2)}, {s(S_P2)}, 16384", f"s_add_u32 {s(S_X)}, {s(S_X)}, 16384", f"s_add_u32 {s(S_VOX)}, {s(S_VOX)}, {28*16*1024}",
      f"s_add_u32 {s(S_FR)}, {s(S_FR)}, 16384",
      f"s_add_u32 {s(S_STEP)}, {s(S_STEP)}, 1", f"s_cmp_lt_u32 {s(S_STEP)}, {NSTEPS}", f"s_cbranch_scc1 {Lstep}")
    if profile and PACCUM: prof_acc_out(A, 8)
    if STAMP and w == 0 and not FULL:
        A("s_memtime s[56:57]", "s_waitcnt lgkmcnt(0)", "s_sub_u32 s56, s56, s54", "v_mov_b32 v1, s56",
          f"s_lshl_b32 {s(S_TMP)}, {s(S_ROLE)}, 2", f"buffer_store_dword v1, off, {s(DBG,4)}, {s(S_TMP)} offset:128")
    A("s_endpgm")
    if pv:
        A(f"{Lbad}:")
        for k in range(10): A(chk4(TMP, 4*k, k == 0))
        A(f"v_min_u32 {v(R0)}, -2, {v(R0)}", f"v_cmp_eq_u32 vcc, -1, {v(TMP)}", f"s_cbranch_vccz {Lgood}")
        if STAMP: A("v_mov_b32 v63, 1", "s_mov_b64 exec, 1", f"buffer_atomic_add v63, off, {s(DBG,4)}, 0 offset:48", "s_mov_b64 exec, -1")
        for r in range(4): A(f"v_mov_b32 {v(PACC+r)}, 0")
        timeout_step(A, Lpp, abort)

def role_PF(A, abort):
    import prep
    WFL = [' sc1', '', ' nt', ' sc1 nt'][WFI]
    AHEAD = PFA
    A("; ---------------- prefetcher")
    if FULL: prep.wait_counters(A, 0, 32, abort, "P", S_TO, 4, 5)
    A("v_and_b32 v3, 63, v0", "v_lshlrev_b32 v1, 7, v3", "v_mov_b32 v2, 0", "v_mov_b32 v12, 0")
    A(f"s_sub_u32 {s(S_TMP2)}, {s(S_ROLE)}, 30", f"s_lshl_b32 {s(S_TMP2)}, {s(S_TMP2)}, 2", f"s_add_u32 {s(S_TMP2)}, {s(S_TMP2)}, {s(S_WAVE)}")
    A(f"s_lshl_b32 {s(S_TMP2)}, {s(S_TMP2)}, 13")
    A(f"s_mov_b32 {s(S_STEP)}, 0", f"s_mov_b32 {s(S_TO)}, {TIMEOUT}")
    if FULL:
        A(f"s_mov_b32 {s(S_P)}, {PF_OFF + FROFF:#x}")
    A(f"s_add_u32 {s(S_X)}, {s(S_TMP2)}, {XS_OFF:#x}", f"s_mov_b32 {s(S_P2)}, 28672")
    L1, L2 = A.label("pf1"), A.label("pf2")
    A(f"s_cmp_lt_u32 {s(S_TMP2)}, {4*8192}", f"s_cbranch_scc1 {L2}")
    A(f"s_mov_b32 {s(S_X)}, {MEMF_OFF + 8192:#x}", f"s_mov_b32 {s(S_P2)}, 8192")
    A(f"s_cmp_eq_u32 {s(S_TMP2)}, {4*8192}", f"s_cbranch_scc1 {L2}")
    A(f"s_and_b32 {s(S_X)}, {s(S_TMP2)}, 8192", f"s_add_u32 {s(S_X)}, {s(S_X)}, {PF_OFF:#x}", f"s_mov_b32 {s(S_P2)}, 16384")
    A(f"{L2}:")
    A(f"s_lshl_b32 {s(S_VOX)}, {s(S_TMP2)}, 1", f"s_add_u32 {s(S_VOX)}, {s(S_VOX)}, {VOX_OFF:#x}", f"s_mov_b32 s70, 0x40000000",
      f"s_cmp_eq_u32 {s(S_TMP2)}, {2*8192}", f"s_cselect_b32 s70, {(24-2)*16384}, s70", f"s_cmp_eq_u32 {s(S_TMP2)}, {3*8192}", f"s_cselect_b32 s70, {(25-3)*16384}, s70",
      f"s_cmp_eq_u32 {s(S_TMP2)}, {6*8192}", f"s_cselect_b32 s70, {(26-6)*16384}, s70", f"s_cmp_eq_u32 {s(S_TMP2)}, {7*8192}", f"s_cselect_b32 s70, {(27-7)*16384}, s70",
      f"s_cselect_b32 {s(S_X)}, 0x40000000, {s(S_X)}", f"s_mov_b32 {s(S_MEM)}, {MEMF_OFF - AHEAD*8192:#x}")
    Lstep, Lpoll, Lgo = A.label("pfstep"), A.label("pfpoll"), A.label("pfgo")
    A(f"{Lstep}:", f"s_cmp_lt_u32 {s(S_STEP)}, {AHEAD+1}", f"s_cbranch_scc1 {Lgo}")
    A(f"{Lpoll}:", f"buffer_load_dword v4, v2, {s(WS,4)}, {s(S_MEM)} offen sc1", "s_waitcnt vmcnt(0)", "v_cmp_eq_u32 vcc, -1, v4", f"s_cbranch_vccz {Lgo}", "s_sleep 2")
    timeout_step(A, Lpoll, abort)
    A(f"{Lgo}:")
    if FULL:
        Lc, Lcg = A.label("pfc"), A.label("pfcg")
        A("v_cmp_ne_u32 vcc, 15, v12", f"s_cbranch_vccz {Lcg}")
        A(f"{Lc}:", f"buffer_load_dword v12, off, {s(WS,4)}, {s(S_P)} sc1", "s_waitcnt vmcnt(0)", "v_cmp_ne_u32 vcc, 15, v12", f"s_cbranch_vccz {Lcg}", "s_sleep 2")
        timeout_step(A, Lc, abort)
        A(f"{Lcg}:", f"s_add_u32 {s(S_P)}, {s(S_P)}, 16384", f"buffer_load_dword v12, off, {s(WS,4)}, {s(S_P)} sc1")
    A(f"buffer_load_dword v5, v1, {s(WS,4)}, {s(S_X)} offen sc1")
    for j in range(PF_VOX):
        A(f"s_add_u32 {s(S_TMP)}, {s(S_VOX)}, {131072*j if j < 3 else 's70'}", f"buffer_load_dword v{6+j}, v1, {s(WS,4)}, {s(S_TMP)} offen sc1")
    A(f"s_add_u32 {s(S_X)}, {s(S_X)}, {s(S_P2)}", f"s_add_u32 {s(S_VOX)}, {s(S_VOX)}, {28*16*1024}", f"s_add_u32 {s(S_MEM)}, {s(S_MEM)}, 8192",
      "s_waitcnt vmcnt(0)",
      f"s_add_u32 {s(S_STEP)}, {s(S_STEP)}, 1", f"s_cmp_lt_u32 {s(S_STEP)}, {NSTEPS}", f"s_cbranch_scc1 {Lstep}", "s_endpgm")

PF_VOX = 4
def rec_kernel(A, name, profile=False):
    kernel_begin(A, name)
    Lexit = A.label("exit")
    A("s_cmp_ge_u32 s2, 256", f"s_cbranch_scc1 {Lexit}")
    srd(A, WS, 96, 0x10000000); srd(A, XB, 24, 1835008); srd(A, DBG, 88, 256)
    A(f"s_getreg_b32 {s(S_TMP)}, hwreg(HW_REG_XCC_ID)", f"s_and_b32 {s(S_TMP)}, {s(S_TMP)}, 15", f"s_cmp_lg_u32 {s(S_TMP)}, 0", f"s_cbranch_scc1 {Lexit}")
    A("v_lshrrev_b32 v1, 6, v0", "s_nop 0", f"v_readfirstlane_b32 {s(S_WAVE)}, v1", "s_waitcnt lgkmcnt(0)")
    Lw = A.label("notw0")
    A(f"s_cmp_lg_u32 {s(S_WAVE)}, 0", f"s_cbranch_scc1 {Lw}")
    A("v_mov_b32 v1, 1", "v_mov_b32 v2, 0", "s_mov_b64 exec, 1",
      f"buffer_atomic_add v1, v2, {s(DBG,4)}, 0 offen sc0", "s_waitcnt vmcnt(0)", "ds_write_b32 v2, v1 offset:32768", "s_waitcnt lgkmcnt(0)", "s_mov_b64 exec, -1")
    A(f"{Lw}:", "s_barrier", "v_mov_b32 v2, 0", "ds_read_b32 v1, v2 offset:32768", "s_waitcnt lgkmcnt(0)", f"v_readfirstlane_b32 {s(S_ROLE)}, v1", "s_barrier")
    LPF = A.label("rolePF")
    A(f"s_cmp_ge_u32 {s(S_ROLE)}, 32", f"s_cbranch_scc1 {Lexit}")
    A(f"s_cmp_ge_u32 {s(S_ROLE)}, 30", f"s_cbranch_scc1 {LPF}")
    LB = A.label("roleB")
    A(f"s_cmp_ge_u32 {s(S_ROLE)}, 16", f"s_cbranch_scc1 {LB}")
    for R, fn in (("A", role_A), ("B", role_B)):
        if R == "B": A(f"{LB}:")
        Ls = [A.label(f"{R}w{w}") for w in range(4)]
        for w in range(1, 4):
            A(f"s_cmp_eq_u32 {s(S_WAVE)}, {w}", f"s_cbranch_scc1 {Ls[w]}")
        for w in range(4):
            A(f"{Ls[w]}:")
            fn(A, w, Lexit, profile)
    A(f"{LPF}:")
    role_PF(A, Lexit)
    A(f"{Lexit}:", "s_endpgm")
    A(kernel_desc(name))

def generate(path, profile=False, **kw):
    g = globals(); saved = {k: g[k] for k in kw}
    g.update(kw)
    A = Asm()
    A("; @launch kernel=rec_kernel grid=(256,1,1) block=(256,1,1) lds=131072")
    A('.amdgcn_target "amdgcn-amd-amdhsa--gfx950"', ".text")
    rec_kernel(A, "rec_kernel", profile=bool(profile))
    t = A.text().replace("    ; @launch", "; @launch")
    if profile == 2: t = t.replace("s_memtime", "s_memrealtime")
    if LDFL == 1: t = t.replace(" sc1\n", " nt\n")
    if LDFL == 2: t = t.replace(" sc1\n", " sc0 sc1\n")
    open(path, "w").write(t)
    g.update(saved)

if __name__ == "__main__":
    import sys
    generate(sys.argv[1], len(sys.argv) > 2)
```

```python
from asm import *
from model import *
import prep
from rec import WS, XB, DBG, S_WAVE, S_ROLE, S_TO, S_TMP, S_TMP2, wreg, timeout_step, TIMEOUT, idx_const, chk4, smf, FROFF
OUT, XA = 48, 52
S_SEG, S_H, S_A, S_B, S_C, S_D, S_BUF = range(56, 63)
NV, NX, NPG = 4, 3, 3
RP = 912
XBUF = 32*RP
W_TIMEOUT = 300000
WTOUCH = 1
XDELAY = 3
VDELAY = 0
WSLEEP = 4
TLM = 0

def mfma(d, a, b, c=None, k16=False):
    op = "v_mfma_f32_16x16x16_bf16" if k16 else "v_mfma_f32_16x16x32_bf16"
    return f"{op} {v(d,4)}, {a}, {b}, " + (v(d,4) if c is None else c)
def wr4(f):
    return a_(4*f, 4) if f < 64 else v(120 + 4*(f-64), 4)

def lanes(A, VL, VG, VN, VL16):
    A(f"v_and_b32 {v(VL)}, 63, v0", f"v_lshrrev_b32 {v(VG)}, 4, {v(VL)}", f"v_and_b32 {v(VN)}, 15, {v(VL)}", f"v_lshlrev_b32 {v(VL16)}, 4, {v(VL)}")

def load_weights(A, base, VL16, share=0, vt=16):
    if share and WTOUCH:
        n = -(-49 // (share*4))
        A(f"v_lshlrev_b32 {v(vt)}, 3, {v(VL16)}", f"s_lshl_b32 {s(S_TMP2)}, {s(S_SEG)}, 2", f"s_add_u32 {s(S_TMP2)}, {s(S_TMP2)}, {s(S_WAVE)}", f"s_lshl_b32 {s(S_TMP2)}, {s(S_TMP2)}, 13",
          f"s_mul_i32 {s(S_TMP)}, {s(S_H)}, {28*14336}", f"s_add_u32 {s(S_TMP)}, {s(S_TMP)}, {s(S_TMP2)}", f"s_add_u32 {s(S_TMP)}, {s(S_TMP)}, {base:#x}")
        for i in range(n):
            if (i+1)*share*4 > 49:
                A(f"s_cmp_lt_u32 {s(S_TMP2)}, {(49 - i*share*4)*8192}", f"s_cselect_b32 {s(S_TMP)}, {s(S_TMP)}, 0x40000000")
            A(f"buffer_load_dword {v(vt+1+i)}, {v(vt)}, {s(WS,4)}, {s(S_TMP)} offen sc1", f"s_add_u32 {s(S_TMP)}, {s(S_TMP)}, {share*4*8192}")
    A(f"s_mul_i32 {s(S_TMP)}, {s(S_H)}, {28*14336}", f"s_mul_i32 {s(S_TMP2)}, {s(S_WAVE)}, {7*14336}", f"s_add_u32 {s(S_TMP)}, {s(S_TMP)}, {s(S_TMP2)}",
      f"s_add_u32 {s(S_TMP)}, {s(S_TMP)}, {base:#x}")
    for f in range(98):
        A(f"buffer_load_dwordx4 {wr4(f)}, {v(VL16)}, {s(WS,4)}, {s(S_TMP)} offen offset:{1024*(f%4)} sc1")
        if f % 4 == 3: A(f"s_add_u32 {s(S_TMP)}, {s(S_TMP)}, 4096")
        if f % 16 == 15 and f > 30: A("s_waitcnt vmcnt(32)")

def dma_x(A, seg_s, buf_s, VL16, XB=XB):
    A(f"s_mul_i32 {s(S_TMP)}, {s(seg_s)}, 28672", f"s_mul_i32 {s(S_TMP2)}, {s(S_WAVE)}, {8*896}", f"s_add_u32 {s(S_TMP)}, {s(S_TMP)}, {s(S_TMP2)}",
      f"s_mul_i32 {s(S_TMP2)}, {s(S_WAVE)}, {8*RP}", f"s_add_u32 {s(S_TMP2)}, {s(S_TMP2)}, {s(buf_s)}",
      "s_mov_b32 exec_hi, 0x00ffffff")
    for r in range(8):
        A(f"s_mov_b32 m0, {s(S_TMP2)}", f"s_add_u32 {s(S_TMP2)}, {s(S_TMP2)}, {RP}", f"buffer_load_dwordx4 {v(VL16)}, {s(XB,4)}, {s(S_TMP)} offen lds", f"s_add_u32 {s(S_TMP)}, {s(S_TMP)}, 896")
    A("s_mov_b32 exec_hi, -1")

def poll_eq(A, vt, voff, soff, want, abort, tag, ne=False):
    Lp, Lgo = A.label(tag + "p"), A.label(tag + "go")
    A(f"{Lp}:", f"buffer_load_dword {v(vt)}, {v(voff)}, {s(WS,4)}, {s(soff)} offen sc1", "s_waitcnt vmcnt(0)",
      f"v_cmp_{'eq' if ne else 'ne'}_u32 vcc, {want}, {v(vt)}", f"s_cbranch_vccz {Lgo}", f"s_sleep {WSLEEP}")
    timeout_step(A, Lp, abort)
    A(f"{Lgo}:")

def divmod_const(A, q, r, x, d):
    m = (65536 + d - 1) // d
    assert all((i*m) >> 16 == i // d for i in range(256))
    A(f"s_mul_i32 {s(q)}, {s(x)}, {m}", f"s_lshr_b32 {s(q)}, {s(q)}, 16", f"s_mul_i32 {s(r)}, {s(q)}, {d}", f"s_sub_u32 {s(r)}, {s(x)}, {s(r)}")

VMID = 4
def gemm_seg(A, ACC, FR, VRD, x_is_A, hook=None):
    rd = lambda ks: [f"ds_read_b128 {v(FR + 8*(ks % 2) + 4*t, 4)}, {v(VRD+t)} offset:{64*ks}" for t in range(2)]
    A(rd(0))
    for ks in range(14):
        if hook and hook[0] == ks: hook[1]()
        if ks + 1 < 14: A(rd(ks+1), "s_waitcnt lgkmcnt(2)")
        else: A("s_waitcnt lgkmcnt(0)")
        for cb in range(7):
            for t in range(2):
                xf, wf = v(FR + 8*(ks % 2) + 4*t, 4), wr4(cb*14 + ks)
                a, b = (xf, wf) if x_is_A else (wf, xf)
                A(mfma(ACC + 8*cb + 4*t, a, b, "0" if ks == 0 else None))

def role_V(A, abort):
    VL, VG, VN, VL16, T, VR0, VR1, VRD, VRD1, IDX = range(1, 11)
    ACC, FR, PK = 16, 72, 88
    S_J, S_PREV = S_C, S_D
    A("; ---------------- role V")
    lanes(A, VL, VG, VN, VL16)
    divmod_const(A, S_H, S_SEG, S_ROLE, NV)
    A(f"s_mov_b32 {s(S_J)}, {s(S_SEG)}", f"s_mov_b32 {s(S_BUF)}, 0", f"s_mov_b32 {s(S_PREV)}, 0x40000000", f"s_mov_b32 {s(S_TO)}, {W_TIMEOUT}")
    dma_x(A, S_SEG, S_BUF, VL16)
    for _ in range(VDELAY): A("s_sleep 127")
    A(f"s_add_u32 {s(S_A)}, {s(S_H)}, 16")
    prep.wait_counters(A, s(S_A), 1, abort, "V", S_TO, 14, 15)
    load_weights(A, WB_OFF, VL16, NV, 20)
    prep.wait_counters(A, 0, 32, abort, "V", S_TO, 14, 15)
    VXS = 11
    A(f"v_lshrrev_b32 {v(T)}, 3, {v(VN)}", f"v_lshlrev_b32 {v(VXS)}, 4, {v(T)}", f"v_and_b32 {v(T)}, 3, {v(VN)}", f"v_lshl_add_u32 {v(VXS)}, {v(T)}, 2, {v(VXS)}",
      f"v_bfe_u32 {v(T)}, {v(VN)}, 2, 1", f"v_lshl_add_u32 {v(VXS)}, {v(T)}, 1, {v(VXS)}", f"v_mul_u32_u24 {v(VXS)}, {RP}, {v(VXS)}",
      f"v_mul_u32_u24 {v(T)}, 224, {v(VG)}", f"v_add_u32 {v(VXS)}, {v(VXS)}, {v(T)}",
      f"s_cmp_ge_u32 {s(S_H)}, 7", f"s_cselect_b32 {s(S_TMP)}, {RP - 7*32}, 0", f"s_lshl_b32 {s(S_TMP2)}, {s(S_H)}, 5", f"s_add_u32 {s(S_TMP)}, {s(S_TMP)}, {s(S_TMP2)}", f"v_add_u32 {v(VXS)}, {s(S_TMP)}, {v(VXS)}",
      f"s_lshl_b32 s63, {s(S_H)}, 11", f"s_add_u32 s63, s63, {XS_OFF:#x}", f"s_cmp_lt_u32 {s(S_H)}, 14", "s_cselect_b32 s63, s63, 0x40000000", f"s_cmp_eq_u32 {s(S_WAVE)}, 3", "s_cselect_b32 s63, s63, 0x40000000")
    A(f"v_lshrrev_b32 {v(T)}, 2, {v(VN)}", f"v_lshlrev_b32 {v(VR0)}, 3, {v(T)}", f"v_and_b32 {v(T)}, 3, {v(VN)}", f"v_add_u32 {v(VR0)}, {v(VR0)}, {v(T)}",
      f"v_mul_u32_u24 {v(VR0)}, {RP}, {v(VR0)}", f"v_lshl_add_u32 {v(VR0)}, {v(VG)}, 4, {v(VR0)}", f"v_add_u32 {v(VR1)}, {4*RP}, {v(VR0)}")
    idx_const(A, IDX, VN, T)
    def signal(so):
        A(f"s_cmp_eq_u32 {s(S_WAVE)}, 0", f"s_cselect_b32 {s(S_B)}, {s(so)}, 0x40000000",
          f"v_mov_b32 {v(T)}, 1", "s_mov_b64 exec, 1", f"buffer_atomic_add {v(T)}, off, {s(WS,4)}, {s(S_B)} sc1", "s_mov_b64 exec, -1", "s_nop 3")
    Lp = A.label("Vloop")
    A("s_waitcnt vmcnt(0)", "s_barrier")
    if TLM: A("s_memrealtime s[92:93]")
    A(f"{Lp}:")
    A(f"v_add_u32 {v(VRD)}, {s(S_BUF)}, {v(VR0)}", f"v_add_u32 {v(VRD+1)}, {s(S_BUF)}, {v(VR1)}", f"v_add_u32 {v(12)}, {s(S_BUF)}, {v(VXS)}")
    A(f"s_xor_b32 {s(S_BUF)}, {s(S_BUF)}, {32768}", f"s_add_u32 {s(S_A)}, {s(S_SEG)}, {NV}")
    dma_x(A, S_A, S_BUF, VL16)
    def mid():
        A("s_waitcnt vmcnt(8)", "s_barrier")
        signal(S_PREV)
    gemm_seg(A, ACC, FR, VRD, True, hook=(VMID, mid))
    A(f"s_mul_i32 {s(S_TMP)}, {s(S_SEG)}, 458752", f"s_mul_i32 {s(S_TMP2)}, {s(S_WAVE)}, {7*16384}", f"s_add_u32 {s(S_TMP)}, {s(S_TMP)}, {s(S_TMP2)}",
      f"s_lshl_b32 {s(S_TMP2)}, {s(S_H)}, 10", f"s_add_u32 {s(S_TMP)}, {s(S_TMP)}, {s(S_TMP2)}", f"s_add_u32 {s(S_TMP)}, {s(S_TMP)}, {VOX_OFF:#x}",
      f"s_lshl_b32 {s(S_PREV)}, {s(S_SEG)}, 14", f"s_add_u32 {s(S_PREV)}, {s(S_PREV)}, {PF_OFF + FROFF:#x}")
    A(f"ds_read_b128 {v(FR,4)}, {v(12)}", f"ds_read_b128 {v(FR+4,4)}, {v(12)} offset:16", f"s_mul_i32 {s(S_TMP2)}, {s(S_SEG)}, 28672", f"s_add_u32 {s(S_TMP2)}, {s(S_TMP2)}, s63")
    A("s_waitcnt vmcnt(1) lgkmcnt(0)", "s_barrier")
    b = FR
    A(f"v_swap_b32 {v(b+1)}, {v(b+2)}", f"v_swap_b32 {v(b+2)}, {v(b+4)}", f"v_swap_b32 {v(b+3)}, {v(b+6)}", f"v_swap_b32 {v(b+6)}, {v(b+5)}",
      f"buffer_store_dwordx4 {v(b,4)}, {v(VL16)}, {s(WS,4)}, {s(S_TMP2)} offen sc1", f"buffer_store_dwordx4 {v(b+4,4)}, {v(VL16)}, {s(WS,4)}, {s(S_TMP2)} offen offset:1024 sc1")
    for cb in range(7):
        d = ACC + 8*cb
        for r in range(4): A(f"v_cvt_pk_bf16_f32 {v(PK+4*cb+r)}, {v(d+2*r)}, {v(d+2*r+1)}")
        A(f"buffer_store_dwordx4 {v(PK+4*cb,4)}, {v(VL16)}, {s(WS,4)}, {s(S_TMP)} offen sc1", f"s_add_u32 {s(S_TMP)}, {s(S_TMP)}, 16384")
    A(f"s_add_u32 {s(S_SEG)}, {s(S_SEG)}, {NV}", f"s_cmp_lt_u32 {s(S_SEG)}, 64", f"s_cbranch_scc1 {Lp}")
    A("s_waitcnt vmcnt(0)", "s_barrier")
    signal(S_PREV)
    if TLM: A("s_memrealtime s[94:95]")
    MF = 72
    A(f"s_mov_b32 {s(S_SEG)}, {s(S_J)}")
    Lq, Lm, Lmo = A.label("Vq"), A.label("Vm"), A.label("Vmo")
    A(f"{Lq}:")
    for r in range(28): A(f"v_mov_b32 {v(ACC+r)}, 0")
    A(f"s_lshl_b32 {s(S_A)}, {s(S_SEG)}, 13", f"s_add_u32 {s(S_A)}, {s(S_A)}, {MEMS_OFF:#x}", f"s_add_u32 {s(S_B)}, {s(S_A)}, 4096")
    poll_eq(A, T, VL16, S_A, -1, abort, "vm", ne=True)
    A(f"{Lm}:")
    for kb in range(7): A(f"buffer_load_dwordx4 {v(MF+4*kb,4)}, {v(VL16)}, {s(WS,4)}, {s(S_A if kb < 4 else S_B)} offen offset:{1024*(kb%4)} sc1")
    A("s_waitcnt vmcnt(0)")
    for kb in range(7): A(chk4(T, MF+4*kb, kb == 0))
    A(f"v_cmp_eq_u32 vcc, -1, {v(T)}", f"s_cbranch_vccz {Lmo}")
    timeout_step(A, Lm, abort)
    A(f"{Lmo}:")
    for kb in range(7):
        for cb in range(7):
            f = cb*14 + 2*kb
            A(smf(ACC + 4*cb, MF + 4*kb, a_(4*f, 8) if f < 64 else v(120 + 4*(f-64), 8), IDX))
    A(f"s_mul_i32 {s(S_TMP)}, {s(S_SEG)}, 114688", f"s_mul_i32 {s(S_TMP2)}, {s(S_WAVE)}, {7*4096}", f"s_add_u32 {s(S_TMP)}, {s(S_TMP)}, {s(S_TMP2)}",
      f"s_lshr_b32 {s(S_TMP2)}, {s(S_H)}, 2", f"s_lshl_b32 {s(S_TMP2)}, {s(S_TMP2)}, 10", f"s_add_u32 {s(S_TMP)}, {s(S_TMP)}, {s(S_TMP2)}",
      f"s_and_b32 {s(S_TMP2)}, {s(S_H)}, 3", f"s_lshl_b32 {s(S_TMP2)}, {s(S_TMP2)}, 2", f"s_add_u32 {s(S_TMP)}, {s(S_TMP)}, {s(S_TMP2)}", f"s_add_u32 {s(S_TMP)}, {s(S_TMP)}, {VPE_OFF:#x}")
    for cb in range(7):
        r = ACC + 4*cb
        A(f"v_add_f32 {v(r)}, {v(r)}, {v(r+1)}", f"v_add_f32 {v(r+2)}, {v(r+2)}, {v(r+3)}", f"v_cvt_pk_bf16_f32 {v(PK+20+cb)}, {v(r)}, {v(r+2)}",
          f"buffer_store_dword {v(PK+20+cb)}, {v(VL16)}, {s(WS,4)}, {s(S_TMP)} offen sc1", f"s_add_u32 {s(S_TMP)}, {s(S_TMP)}, 4096")
    A(f"s_lshl_b32 {s(S_TMP)}, {s(S_SEG)}, 8", f"s_lshl_b32 {s(S_TMP2)}, {s(S_H)}, 4", f"s_add_u32 {s(S_TMP)}, {s(S_TMP)}, {s(S_TMP2)}", f"s_lshl_b32 {s(S_TMP2)}, {s(S_WAVE)}, 2",
      f"s_add_u32 {s(S_TMP)}, {s(S_TMP)}, {s(S_TMP2)}", f"s_add_u32 {s(S_TMP)}, {s(S_TMP)}, {FV_OFF:#x}", f"v_mov_b32 {v(T)}, 1",
      "s_waitcnt vmcnt(0)", "s_mov_b64 exec, 1", f"buffer_store_dword {v(T)}, off, {s(WS,4)}, {s(S_TMP)} sc1", "s_mov_b64 exec, -1")
    A(f"s_add_u32 {s(S_SEG)}, {s(S_SEG)}, {NV}", f"s_cmp_lt_u32 {s(S_SEG)}, 64", f"s_cbranch_scc1 {Lq}", "s_endpgm")

XMIMG = 65536
XRED = 73728

def role_X(A, abort):
    VL, VG, VN, VL16, T, VR0, VK0, VRD, VRD1, VKD, VKM, VRW, VRR, VMW, T2 = range(1, 16)
    ACC, FR, SX, KF = 16, 72, 88, 104
    A("; ---------------- role X")
    lanes(A, VL, VG, VN, VL16)
    divmod_const(A, S_H, S_SEG, S_ROLE, NX)
    A(f"s_mov_b32 {s(S_BUF)}, 0", f"s_mov_b32 {s(S_TO)}, {W_TIMEOUT}")
    dma_x(A, S_SEG, S_BUF, VL16)
    for _ in range(XDELAY): A("s_sleep 127")
    prep.wait_counters(A, s(S_H), 1, abort, "X", S_TO, 16, 17)
    load_weights(A, WA_OFF, VL16, NX, 20)
    prep.wait_counters(A, 0, 32, abort, "X", S_TO, 16, 17)
    A(f"v_mul_u32_u24 {v(VR0)}, {RP}, {v(VN)}", f"v_lshl_add_u32 {v(VR0)}, {v(VG)}, 4, {v(VR0)}")
    A(f"v_lshrrev_b32 {v(T)}, 2, {v(VN)}", f"v_lshlrev_b32 {v(VK0)}, 3, {v(T)}", f"v_and_b32 {v(T)}, 3, {v(VN)}", f"v_add_u32 {v(VK0)}, {v(VK0)}, {v(T)}",
      f"v_mul_u32_u24 {v(VK0)}, {RP}, {v(VK0)}", f"v_lshl_add_u32 {v(VK0)}, {v(VG)}, 3, {v(VK0)}", f"s_mul_i32 {s(S_TMP)}, {s(S_WAVE)}, 224", f"v_add_u32 {v(VK0)}, {s(S_TMP)}, {v(VK0)}")
    A(f"v_lshrrev_b32 {v(T)}, 2, {v(VN)}", f"v_lshlrev_b32 {v(VKM)}, 6, {v(T)}", f"v_and_b32 {v(T)}, 1, {v(VN)}", f"v_lshl_add_u32 {v(VKM)}, {v(T)}, 5, {v(VKM)}",
      f"v_lshl_add_u32 {v(VKM)}, {v(VG)}, 2, {v(VKM)}", f"s_mul_i32 {s(S_TMP)}, {s(S_WAVE)}, 1792", f"s_add_u32 {s(S_TMP)}, {s(S_TMP)}, {XMIMG}", f"v_add_u32 {v(VKM)}, {s(S_TMP)}, {v(VKM)}")
    A(f"v_add_u32 {v(VMW)}, {s(S_TMP)}, {v(VL16)}")
    A(f"s_lshl_b32 {s(S_TMP)}, {s(S_WAVE)}, 12", f"s_add_u32 {s(S_TMP)}, {s(S_TMP)}, {XRED}", f"v_add_u32 {v(VRW)}, {s(S_TMP)}, {v(VL16)}")
    A(f"s_lshl_b32 {s(S_TMP)}, {s(S_WAVE)}, 10", f"s_add_u32 {s(S_TMP)}, {s(S_TMP)}, {XRED}", f"v_add_u32 {v(VRR)}, {s(S_TMP)}, {v(VL16)}")
    Lp = A.label("Xloop")
    A("s_waitcnt vmcnt(0)", "s_barrier")
    if TLM: A("s_memrealtime s[92:93]")
    A(f"{Lp}:")
    A(f"v_add_u32 {v(VRD)}, {s(S_BUF)}, {v(VR0)}", f"v_add_u32 {v(VRD1)}, {16*RP}, {v(VRD)}", f"v_add_u32 {v(VKD)}, {s(S_BUF)}, {v(VK0)}")
    A(f"s_xor_b32 {s(S_BUF)}, {s(S_BUF)}, {32768}", f"s_add_u32 {s(S_A)}, {s(S_SEG)}, {NX}")
    dma_x(A, S_A, S_BUF, VL16)
    gemm_seg(A, ACC, FR, VRD, False)
    A("s_nop 7")
    for cb in range(7):
        for t in range(2):
            d = ACC + 8*cb + 4*t
            A(f"v_cvt_pk_bf16_f32 {v(d)}, {v(d)}, {v(d+1)}", f"v_cvt_pk_bf16_f32 {v(d+1)}, {v(d+2)}, {v(d+3)}")
    for cb in range(7):
        kf = KF + 4*(cb % 4)
        A(f"ds_read_b64 {v(kf,2)}, {v(VKD)} offset:{32*cb}", f"ds_read_b64 {v(kf+2,2)}, {v(VKD)} offset:{32*cb + 4*RP}", "s_waitcnt lgkmcnt(0)")
        for kt in range(2):
            for t in range(2):
                A(mfma(SX + 8*kt + 4*t, v(kf+2*kt, 2), v(ACC + 8*cb + 4*t, 2), "0" if cb == 0 else None, k16=True))
    A("s_nop 7")
    for kt in range(2):
        for t in range(2): A(f"ds_write_b128 {v(VRW)}, {v(SX + 8*kt + 4*t, 4)} offset:{2048*kt + 1024*t}")
    A("s_waitcnt lgkmcnt(0)", "s_barrier")
    L1 = A.label("Xr1")
    A(f"s_cmp_ge_u32 {s(S_WAVE)}, 2", f"s_cbranch_scc1 {L1}")
    for kt in range(2):
        for w in range(4): A(f"ds_read_b128 {v(FR + 4*w, 4)}, {v(VRR)} offset:{4096*w + 2048*kt}")
        A("s_waitcnt lgkmcnt(0)")
        for r in range(4):
            A(f"v_add_f32 {v(FR+r)}, {v(FR+r)}, {v(FR+4+r)}", f"v_add_f32 {v(FR+8+r)}, {v(FR+8+r)}, {v(FR+12+r)}", f"v_add_f32 {v(SX+4*kt+r)}, {v(FR+r)}, {v(FR+8+r)}")
    A(f"s_lshl_b32 {s(S_TMP)}, {s(S_WAVE)}, 4", f"v_add_u32 {v(T)}, {s(S_TMP)}, {v(VN)}", f"v_lshlrev_b32 {v(T2)}, 3, {v(VG)}", f"v_sub_u32 {v(T)}, {v(T)}, {v(T2)}", f"v_mov_b32 {v(T2)}, 0xf149f2ca")
    for j in range(8):
        A(f"v_cmp_le_i32 vcc, {j}, {v(T)}", "s_nop 1", f"v_cndmask_b32 {v(SX+j)}, {v(T2)}, {v(SX+j)}, vcc")
    A(f"{L1}:")
    Lm, Lmo = A.label("Xm"), A.label("Xmo")
    A(f"s_lshl_b32 {s(S_B)}, {s(S_SEG)}, 13", f"s_mul_i32 {s(S_TMP)}, {s(S_WAVE)}, 1792", f"s_add_u32 {s(S_B)}, {s(S_B)}, {s(S_TMP)}", f"s_add_u32 {s(S_B)}, {s(S_B)}, {MEMS_OFF:#x}")
    A(f"{Lm}:", f"buffer_load_dwordx4 {v(KF,4)}, {v(VL16)}, {s(WS,4)}, {s(S_B)} offen sc1", f"buffer_load_dwordx4 {v(KF+4,4)}, {v(VL16)}, {s(WS,4)}, {s(S_B)} offen offset:768 sc1",
      "s_waitcnt vmcnt(0)", f"v_max3_u32 {v(T)}, {v(KF)}, {v(KF+1)}, {v(KF+2)}", f"v_max3_u32 {v(T)}, {v(T)}, {v(KF+3)}, {v(KF+4)}", f"v_max3_u32 {v(T)}, {v(T)}, {v(KF+5)}, {v(KF+6)}",
      f"v_max_u32 {v(T)}, {v(T)}, {v(KF+7)}", f"v_cmp_eq_u32 vcc, -1, {v(T)}", f"s_cbranch_vccz {Lmo}", f"s_sleep {WSLEEP}")
    timeout_step(A, Lm, abort)
    A(f"{Lmo}:")
    if TLM: A("s_memrealtime s[94:95]")
    A(f"ds_write_b128 {v(VMW)}, {v(KF,4)}", f"ds_write_b128 {v(VMW)}, {v(KF+4,4)} offset:768")
    for cb in range(7):
        A(f"v_add_u32 {v(T)}, {256*cb}, {v(VKM)}", f"ds_read2_b32 {v(FR+2*cb,2)}, {v(T)} offset0:0 offset1:4")
    A("s_waitcnt lgkmcnt(0)")
    for cb in range(7):
        for t in range(2):
            A(mfma(SX + 8 + 4*t, v(FR+2*cb, 2), v(ACC + 8*cb + 4*t, 2), "0" if cb == 0 else None, k16=True))
    A("s_barrier")
    A("s_nop 6")
    for t in range(2): A(f"ds_write_b64 {v(VRW)}, {v(SX + 8 + 4*t, 2)} offset:{1024*t}")
    A("s_waitcnt lgkmcnt(0)", "s_barrier")
    L2 = A.label("Xr2")
    A(f"s_cmp_ge_u32 {s(S_WAVE)}, 2", f"s_cbranch_scc1 {L2}")
    for w in range(4): A(f"ds_read_b64 {v(FR + 2*w, 2)}, {v(VRR)} offset:{4096*w}")
    A("s_waitcnt lgkmcnt(0)")
    for r in range(2):
        A(f"v_add_f32 {v(FR+r)}, {v(FR+r)}, {v(FR+2+r)}", f"v_add_f32 {v(FR+4+r)}, {v(FR+4+r)}, {v(FR+6+r)}", f"v_add_f32 {v(SX+8+r)}, {v(FR+r)}, {v(FR+4+r)}")
    A(f"v_max3_f32 {v(T)}, {v(SX)}, {v(SX+1)}, {v(SX+2)}", f"v_max3_f32 {v(T)}, {v(T)}, {v(SX+3)}, {v(SX+4)}", f"v_max3_f32 {v(T)}, {v(T)}, {v(SX+5)}, {v(SX+6)}",
      f"v_max3_f32 {v(T)}, {v(T)}, {v(SX+7)}, {v(SX+8)}", f"v_max_f32 {v(T)}, {v(T)}, {v(SX+9)}")
    def xred(op):
        for sw in ("v_permlane16_swap_b32", "v_permlane32_swap_b32"):
            A(f"v_mov_b32 {v(T2)}, {v(T)}", "s_nop 1", f"{sw} {v(T)}, {v(T2)}", f"{op} {v(T)}, {v(T)}, {v(T2)}")
    xred("v_max_f32")
    for j in range(10): A(f"v_sub_f32 {v(SX+j)}, {v(SX+j)}, {v(T)}")
    for j in range(10): A(f"v_exp_f32 {v(SX+j)}, {v(SX+j)}")
    A(f"v_add_f32 {v(T)}, {v(SX)}, {v(SX+1)}")
    for j in range(2, 10): A(f"v_add_f32 {v(T)}, {v(T)}, {v(SX+j)}")
    xred("v_add_f32")
    A(f"v_rcp_f32 {v(T)}, {v(T)}", "s_nop 0")
    for j in range(10): A(f"v_mul_f32 {v(SX+j)}, {v(SX+j)}, {v(T)}")
    for r in range(5): A(f"v_cvt_pk_bf16_f32 {v(FR+r)}, {v(SX+2*r)}, {v(SX+2*r+1)}")
    A(f"s_mul_i32 {s(S_TMP)}, {s(S_SEG)}, 40960", f"s_mul_i32 {s(S_TMP2)}, {s(S_WAVE)}, 20480", f"s_add_u32 {s(S_TMP)}, {s(S_TMP)}, {s(S_TMP2)}", f"s_add_u32 {s(S_TMP)}, {s(S_TMP)}, {PX_OFF:#x}",
      f"s_lshl_b32 {s(S_TMP2)}, {s(S_H)}, 10", f"s_add_u32 {s(S_TMP2)}, {s(S_TMP2)}, {s(S_TMP)}",
      f"buffer_store_dwordx4 {v(FR,4)}, {v(VL16)}, {s(WS,4)}, {s(S_TMP2)} offen sc1",
      f"s_lshr_b32 {s(S_TMP2)}, {s(S_H)}, 2", f"s_lshl_b32 {s(S_TMP2)}, {s(S_TMP2)}, 10", f"s_add_u32 {s(S_TMP)}, {s(S_TMP)}, {s(S_TMP2)}",
      f"s_and_b32 {s(S_TMP2)}, {s(S_H)}, 3", f"s_lshl_b32 {s(S_TMP2)}, {s(S_TMP2)}, 2", f"s_add_u32 {s(S_TMP)}, {s(S_TMP)}, {s(S_TMP2)}", f"s_add_u32 {s(S_TMP)}, {s(S_TMP)}, 16384",
      f"buffer_store_dword {v(FR+4)}, {v(VL16)}, {s(WS,4)}, {s(S_TMP)} offen sc1")
    A(f"s_lshl_b32 {s(S_TMP)}, {s(S_SEG)}, 7", f"s_lshl_b32 {s(S_TMP2)}, {s(S_WAVE)}, 6", f"s_add_u32 {s(S_TMP)}, {s(S_TMP)}, {s(S_TMP2)}", f"s_lshl_b32 {s(S_TMP2)}, {s(S_H)}, 2",
      f"s_add_u32 {s(S_TMP)}, {s(S_TMP)}, {s(S_TMP2)}", f"s_add_u32 {s(S_TMP)}, {s(S_TMP)}, {FX_OFF:#x}", f"v_mov_b32 {v(T)}, 1",
      "s_waitcnt vmcnt(0)", "s_mov_b64 exec, 1", f"buffer_store_dword {v(T)}, off, {s(WS,4)}, {s(S_TMP)} sc1", "s_mov_b64 exec, -1")
    A(f"{L2}:")
    A("s_barrier")
    A(f"s_add_u32 {s(S_SEG)}, {s(S_SEG)}, {NX}", f"s_cmp_lt_u32 {s(S_SEG)}, 64", f"s_cbranch_scc1 {Lp}", "s_endpgm")

def role_PV(A, abort):
    VL, VG, VN, VL16, T, VZ, VF1, VF2, VRW, VRR, VO_ = range(1, 12)
    VOX, VP, PF_, ACC, RD = 16, 80, 96, 116, 132
    S_T, S_J = S_C, S_D
    for _ in range(XDELAY): A("s_sleep 127")
    lanes(A, VL, VG, VN, VL16)
    A(f"s_mul_i32 {s(S_SEG)}, {s(S_ROLE)}, 4682", f"s_lshr_b32 {s(S_SEG)}, {s(S_SEG)}, 16", f"s_mul_i32 {s(S_TMP)}, {s(S_SEG)}, 14", f"s_sub_u32 {s(S_TMP)}, {s(S_ROLE)}, {s(S_TMP)}",
      f"s_and_b32 {s(S_T)}, {s(S_TMP)}, 1", f"s_lshr_b32 {s(S_J)}, {s(S_TMP)}, 1", f"s_mov_b32 {s(S_TO)}, {W_TIMEOUT}")
    A(f"v_mov_b32 {v(VZ)}, 0")
    A(f"v_and_b32 {v(T)}, 3, {v(VL)}", f"v_lshlrev_b32 {v(VF1)}, 2, {v(T)}", f"s_lshl_b32 {s(S_TMP)}, {s(S_T)}, 6", f"s_lshl_b32 {s(S_TMP2)}, {s(S_WAVE)}, 4", f"s_add_u32 {s(S_TMP)}, {s(S_TMP)}, {s(S_TMP2)}",
      f"v_add_u32 {v(VF1)}, {s(S_TMP)}, {v(VF1)}")
    A(f"v_lshlrev_b32 {v(VF2)}, 2, {v(VN)}", f"s_lshl_b32 {s(S_TMP)}, {s(S_WAVE)}, 6", f"v_add_u32 {v(VF2)}, {s(S_TMP)}, {v(VF2)}")
    A(f"s_lshl_b32 {s(S_TMP)}, {s(S_WAVE)}, 12", f"v_add_u32 {v(VRW)}, {s(S_TMP)}, {v(VL16)}", f"s_lshl_b32 {s(S_TMP)}, {s(S_WAVE)}, 10", f"v_add_u32 {v(VRR)}, {s(S_TMP)}, {v(VL16)}")
    A(f"v_mul_u32_u24 {v(VO_)}, 1792, {v(VN)}", f"v_lshl_add_u32 {v(VO_)}, {v(VG)}, 3, {v(VO_)}", f"s_mul_i32 {s(S_TMP)}, {s(S_T)}, {16*1792}", f"s_lshl_b32 {s(S_TMP2)}, {s(S_J)}, 7",
      f"s_add_u32 {s(S_TMP)}, {s(S_TMP)}, {s(S_TMP2)}", f"s_lshl_b32 {s(S_TMP2)}, {s(S_WAVE)}, 5", f"s_add_u32 {s(S_TMP)}, {s(S_TMP)}, {s(S_TMP2)}", f"s_add_u32 {s(S_TMP)}, {s(S_TMP)}, 896",
      f"v_add_u32 {v(VO_)}, {s(S_TMP)}, {v(VO_)}")
    prep.wait_counters(A, 0, 32, abort, "PV", S_TO, 16, 17)
    Lp = A.label("PVloop")
    A(f"{Lp}:")
    A(f"s_lshl_b32 {s(S_A)}, {s(S_SEG)}, 14", f"s_add_u32 {s(S_A)}, {s(S_A)}, {PF_OFF + FROFF:#x}")
    poll_eq(A, T, VZ, S_A, 15, abort, "cv")
    A(f"s_mul_i32 {s(S_TMP)}, {s(S_SEG)}, 458752", f"s_lshl_b32 {s(S_TMP2)}, {s(S_J)}, 16", f"s_add_u32 {s(S_TMP)}, {s(S_TMP)}, {s(S_TMP2)}", f"s_lshl_b32 {s(S_TMP2)}, {s(S_WAVE)}, 12",
      f"s_add_u32 {s(S_TMP)}, {s(S_TMP)}, {s(S_TMP2)}", f"s_add_u32 {s(S_TMP)}, {s(S_TMP)}, {VOX_OFF:#x}")
    for cc in range(4):
        for hh in range(4): A(f"buffer_load_dwordx4 {v(VOX + 16*cc + 4*hh, 4)}, {v(VL16)}, {s(WS,4)}, {s(S_TMP)} offen offset:{1024*hh} sc1")
        A(f"s_add_u32 {s(S_TMP)}, {s(S_TMP)}, 16384")
    A(f"s_lshl_b32 {s(S_A)}, {s(S_SEG)}, 7", f"s_add_u32 {s(S_A)}, {s(S_A)}, {FX_OFF:#x}")
    poll_eq(A, T, VF1, S_A, 1, abort, "fx")
    if TLM: A("s_memrealtime s[92:93]")
    A(f"s_mul_i32 {s(S_TMP)}, {s(S_SEG)}, 40960", f"s_mul_i32 {s(S_TMP2)}, {s(S_T)}, 20480", f"s_add_u32 {s(S_TMP)}, {s(S_TMP)}, {s(S_TMP2)}", f"s_add_u32 {s(S_TMP)}, {s(S_TMP)}, {PX_OFF:#x}",
      f"s_lshl_b32 {s(S_TMP2)}, {s(S_WAVE)}, 12", f"s_add_u32 {s(S_TMP2)}, {s(S_TMP2)}, {s(S_TMP)}")
    for hh in range(4): A(f"buffer_load_dwordx4 {v(PF_ + 4*hh, 4)}, {v(VL16)}, {s(WS,4)}, {s(S_TMP2)} offen offset:{1024*hh} sc1")
    A(f"s_lshl_b32 {s(S_TMP2)}, {s(S_WAVE)}, 10", f"s_add_u32 {s(S_TMP)}, {s(S_TMP)}, {s(S_TMP2)}", f"s_add_u32 {s(S_TMP)}, {s(S_TMP)}, 16384",
      f"buffer_load_dwordx4 {v(PF_ + 16, 4)}, {v(VL16)}, {s(WS,4)}, {s(S_TMP)} offen sc1")
    A(f"s_lshl_b32 {s(S_A)}, {s(S_SEG)}, 8", f"s_add_u32 {s(S_A)}, {s(S_A)}, {FV_OFF:#x}")
    poll_eq(A, T, VF2, S_A, 1, abort, "fv")
    if TLM: A("s_memrealtime s[94:95]")
    A(f"s_mul_i32 {s(S_TMP)}, {s(S_SEG)}, 114688", f"s_lshl_b32 {s(S_TMP2)}, {s(S_J)}, 14", f"s_add_u32 {s(S_TMP)}, {s(S_TMP)}, {s(S_TMP2)}", f"s_lshl_b32 {s(S_TMP2)}, {s(S_WAVE)}, 10",
      f"s_add_u32 {s(S_TMP)}, {s(S_TMP)}, {s(S_TMP2)}", f"s_add_u32 {s(S_TMP)}, {s(S_TMP)}, {VPE_OFF:#x}")
    for cc in range(4):
        A(f"buffer_load_dwordx4 {v(VP + 4*cc, 4)}, {v(VL16)}, {s(WS,4)}, {s(S_TMP)} offen sc1", f"s_add_u32 {s(S_TMP)}, {s(S_TMP)}, 4096")
    for hh in range(4):
        for cc in range(4): A(mfma(ACC + 4*cc, v(VOX + 16*cc + 4*hh, 4), v(PF_ + 4*hh, 4), "0" if hh == 0 else None))
    A("s_waitcnt vmcnt(0)")
    for cc in range(4): A(mfma(ACC + 4*cc, v(VP + 4*cc, 4), v(PF_ + 16, 4)))
    A("s_nop 7")
    for cc in range(4): A(f"ds_write_b128 {v(VRW)}, {v(ACC + 4*cc, 4)} offset:{1024*cc}")
    A("s_waitcnt lgkmcnt(0)", "s_barrier")
    for w in range(4): A(f"ds_read_b128 {v(RD + 4*w, 4)}, {v(VRR)} offset:{4096*w}")
    A("s_waitcnt lgkmcnt(0)", "s_barrier")
    for r in range(4):
        A(f"v_add_f32 {v(RD+r)}, {v(RD+r)}, {v(RD+4+r)}", f"v_add_f32 {v(RD+8+r)}, {v(RD+8+r)}, {v(RD+12+r)}", f"v_add_f32 {v(RD+r)}, {v(RD+r)}, {v(RD+8+r)}")
    A(f"v_cvt_pk_bf16_f32 {v(RD+4)}, {v(RD)}, {v(RD+1)}", f"v_cvt_pk_bf16_f32 {v(RD+5)}, {v(RD+2)}, {v(RD+3)}",
      f"s_mul_i32 {s(S_TMP)}, {s(S_SEG)}, {32*1792}", f"buffer_store_dwordx2 {v(RD+4,2)}, {v(VO_)}, {s(OUT,4)}, {s(S_TMP)} offen")
    A(f"s_add_u32 {s(S_SEG)}, {s(S_SEG)}, {NPG}", f"s_cmp_lt_u32 {s(S_SEG)}, 64", f"s_cbranch_scc1 {Lp}", "s_endpgm")

LOIMG = 32768

def role_L(A, abort):
    VL, VG, VN, VL16, T, T2, VR0, VL4, VMK, VON, VO_, VZ, VOA = range(1, 14)
    TB = [16, 72, 128, 184]
    W_ = 240
    PK = 112
    S_W, S_IT, S_KV, S_L2E, S_EPS = S_A, S_B, S_C, S_D, S_H
    A("; ---------------- role L")
    for _ in range(XDELAY): A("s_sleep 127")
    lanes(A, VL, VG, VN, VL16)
    A(f"s_mov_b32 {s(S_BUF)}, 0", f"s_mov_b32 {s(S_TO)}, {W_TIMEOUT}", f"s_mov_b32 {s(S_L2E)}, 0x3fb8aa3b", f"s_mov_b32 {s(S_EPS)}, 0x358637bd")
    dma_x(A, S_ROLE, S_BUF, VL16, XA)
    A(f"v_lshlrev_b32 {v(VL4)}, 2, {v(VL)}", f"v_mov_b32 {v(VZ)}, 0")
    A(f"v_lshrrev_b32 {v(T)}, 2, {v(VN)}", f"v_lshlrev_b32 {v(T2)}, 3, {v(T)}", f"v_and_b32 {v(T)}, 3, {v(VN)}", f"v_add_u32 {v(T2)}, {v(T2)}, {v(T)}",
      f"v_mul_u32_u24 {v(VR0)}, {RP}, {v(T2)}", f"v_lshl_add_u32 {v(VR0)}, {v(VG)}, 4, {v(VR0)}",
      f"v_mul_u32_u24 {v(VO_)}, 1792, {v(T2)}", f"v_lshl_add_u32 {v(VO_)}, {v(VG)}, 3, {v(VO_)}",
      f"s_mul_i32 {s(S_TMP)}, {s(S_ROLE)}, {32*1792}", f"s_mul_i32 {s(S_TMP2)}, {s(S_WAVE)}, 224", f"s_add_u32 {s(S_TMP)}, {s(S_TMP)}, {s(S_TMP2)}", f"v_add_u32 {v(VO_)}, {s(S_TMP)}, {v(VO_)}")
    A(f"v_cmp_gt_u32 vcc, 12, {v(VN)}", "s_nop 1", f"v_cndmask_b32 {v(VMK)}, 0, -1, vcc", f"v_mov_b32 {v(T)}, 0x3f803f80", f"v_cmp_eq_u32 vcc, 12, {v(VN)}", "s_nop 1", f"v_cndmask_b32 {v(VON)}, 0, {v(T)}, vcc")
    A(f"s_lshl_b32 {s(S_TMP)}, {s(S_WAVE)}, 13", f"s_add_u32 {s(S_TMP)}, {s(S_TMP)}, {LOIMG}", f"v_add_u32 {v(VOA)}, {s(S_TMP)}, {v(VL16)}")
    def ldtile(b, off):
        o = [f"s_add_u32 {s(S_TMP)}, {s(S_W)}, {off}"]
        for ks in range(14):
            o.append(f"buffer_load_dwordx4 {v(TB[b]+4*ks,4)}, {v(VL16)}, {s(WS,4)}, {s(S_TMP)} offen offset:{1024*(ks%4)} sc1")
            if ks % 4 == 3: o.append(f"s_add_u32 {s(S_TMP)}, {s(S_TMP)}, 4096")
        return o
    WQ, WO = 64, 68
    srd(A, WQ, 8, 448*1344*2); srd(A, WO, 16, 448*448*2)
    GW, FS, S1, S2, S3 = 72, 73, 74, 75, 76
    A(f"s_lshl_b32 {s(GW)}, {s(S_ROLE)}, 2", f"s_add_u32 {s(GW)}, {s(GW)}, {s(S_WAVE)}", "s_waitcnt lgkmcnt(0)")
    def wq_loads(j, base):
        A(f"s_add_u32 {s(FS)}, {s(GW)}, {256*j}",
          f"s_mul_i32 {s(S1)}, {s(FS)}, 18725", f"s_lshr_b32 {s(S1)}, {s(S1)}, 18", f"s_mul_i32 {s(S2)}, {s(S1)}, 14", f"s_sub_u32 {s(S2)}, {s(FS)}, {s(S2)}", f"s_mul_i32 {s(S2)}, {s(S2)}, {32*2688}",
          f"s_lshr_b32 {s(S3)}, {s(S1)}, 1", f"s_mul_i32 {s(S3)}, {s(S3)}, 56", f"s_add_u32 {s(S2)}, {s(S2)}, {s(S3)}", f"s_and_b32 {s(S1)}, {s(S1)}, 1", f"s_lshl_b32 {s(S1)}, {s(S1)}, 2")
        A(f"v_lshrrev_b32 {v(T)}, 2, {v(VN)}", f"v_lshlrev_b32 {v(T2)}, 3, {v(T)}", f"v_and_b32 {v(T)}, 3, {v(VN)}", f"v_add3_u32 {v(T2)}, {v(T2)}, {v(T)}, {s(S1)}",
          f"v_cmp_lt_u32 vcc, 27, {v(T2)}", f"v_lshlrev_b32 {v(T2)}, 1, {v(T2)}", f"v_mul_u32_u24 {v(T)}, {8*2688}, {v(VG)}", f"v_add_u32 {v(T2)}, {v(T2)}, {v(T)}",
          f"v_mov_b32 {v(T)}, 0x40000000", f"v_cndmask_b32 {v(T2)}, {v(T2)}, {v(T)}, vcc")
        for jj in range(8):
            A(f"buffer_load_ushort {v(base + 4*(jj % 2) + jj//2)}, {v(T2)}, {s(WQ,4)}, {s(S2)} offen", f"s_add_u32 {s(S2)}, {s(S2)}, 2688")
    def wo_loads(j, base):
        A(f"s_add_u32 {s(FS)}, {s(GW)}, {256*j}",
          f"s_lshr_b32 {s(S1)}, {s(FS)}, 4", f"s_lshl_b32 {s(S1)}, {s(S1)}, 5", f"s_and_b32 {s(S2)}, {s(FS)}, 15", f"s_mul_i32 {s(S2)}, {s(S2)}, {28*896}", f"s_add_u32 {s(S2)}, {s(S2)}, {s(S1)}")
        A(f"v_mul_u32_u24 {v(T2)}, {8*896}, {v(VG)}", f"v_lshl_add_u32 {v(T2)}, {v(VN)}, 1, {v(T2)}",
          f"v_cmp_eq_u32 vcc, 3, {v(VG)}", f"v_mov_b32 {v(T)}, 0x40000000", "s_nop 0", f"v_cndmask_b32 {v(T)}, {v(T2)}, {v(T)}, vcc")
        for jj in range(8):
            A(f"buffer_load_ushort {v(base + 4*(jj % 2) + jj//2)}, {v(T2 if jj < 4 else T)}, {s(WO,4)}, {s(S2)} offen", f"s_add_u32 {s(S2)}, {s(S2)}, 896")
    def fin(base, j, off, lim):
        for r in range(4): A(f"v_lshl_or_b32 {v(base+r)}, {v(base+4+r)}, 16, {v(base+r)}")
        A(f"s_add_u32 {s(FS)}, {s(GW)}, {256*j}", f"s_lshl_b32 {s(S1)}, {s(FS)}, 10", f"s_add_u32 {s(S1)}, {s(S1)}, {off:#x}", f"s_cmp_lt_u32 {s(FS)}, {lim}", f"s_cselect_b32 {s(S1)}, {s(S1)}, 0x40000000",
          f"buffer_store_dwordx4 {v(base,4)}, {v(VL16)}, {s(WS,4)}, {s(S1)} offen sc1")
    for j in range(6): wq_loads(j, 16 + 8*j)
    A("s_waitcnt vmcnt(0)")
    for j in range(2): wo_loads(j, 64 + 8*j)
    for j in range(6): fin(16 + 8*j, j, WQF_OFF, 1344)
    A("s_waitcnt vmcnt(6)")
    for j in range(2): fin(64 + 8*j, j, WOF_OFF, 448)
    A("s_waitcnt vmcnt(0)", "s_barrier")
    A(f"s_cmp_eq_u32 {s(S_WAVE)}, 0", f"s_cselect_b32 {s(S1)}, 0, 0x40000000", f"v_mov_b32 {v(T)}, 1", "s_mov_b64 exec, 1", f"buffer_atomic_add {v(T)}, off, {s(DBG,4)}, {s(S1)} offset:196 sc1", "s_mov_b64 exec, -1")
    prep.wait_counters(A, 0, 32, abort, "L", S_TO, 14, 15)
    Lw_, Lwg = A.label("Lw"), A.label("Lwg")
    A(f"{Lw_}:", f"buffer_load_dword {v(T)}, off, {s(DBG,4)}, 0 offset:196 sc1", "s_waitcnt vmcnt(0)", f"v_cmp_ne_u32 vcc, 64, {v(T)}", f"s_cbranch_vccz {Lwg}", "s_sleep 2")
    timeout_step(A, Lw_, abort)
    A(f"{Lwg}:")
    KO, VOF = 32*14336, 64*14336
    toff = [KO, KO + 14336, VOF, VOF + 14336]
    A(f"s_mul_i32 {s(S_W)}, {s(S_WAVE)}, {8*14336}", f"s_add_u32 {s(S_W)}, {s(S_W)}, {WQF_OFF:#x}")
    A("s_waitcnt vmcnt(0)", "s_barrier")
    for b in range(4): A(ldtile(b, toff[b]))
    for tt in range(2):
        for ks in range(14): A(f"ds_read_b128 {a_(56*tt + 4*ks, 4)}, {v(VR0)} offset:{64*ks + 4*RP*tt}")
        A("s_waitcnt lgkmcnt(0)")
    xf = lambda tt, ks: a_(56*tt + 4*ks, 4)
    def phi_pair(dst, a, b, t0):
        p, q, e, f = t0, t0+1, t0+2, t0+3
        return [f"v_cvt_pk_bf16_f32 {v(q)}, {v(a)}, {v(b)}", f"v_lshlrev_b32 {v(p)}, 16, {v(q)}", f"v_and_b32 {v(q)}, 0xffff0000, {v(q)}",
                f"v_mul_f32 {v(e)}, {s(S_L2E)}, {v(p)}", f"v_mul_f32 {v(f)}, {s(S_L2E)}, {v(q)}", f"v_exp_f32 {v(e)}, {v(e)}", f"v_exp_f32 {v(f)}, {v(f)}",
                f"v_add_f32 {v(p)}, 1.0, {v(p)}", f"v_add_f32 {v(q)}, 1.0, {v(q)}", f"v_med3_f32 {v(p)}, {v(p)}, {v(e)}, 1.0", f"v_med3_f32 {v(q)}, {v(q)}, {v(f)}, 1.0",
                f"v_cvt_pk_bf16_f32 {v(q)}, {v(p)}, {v(q)}", f"v_lshlrev_b32 {v(p)}, 16, {v(q)}", f"v_and_b32 {v(q)}, 0xffff0000, {v(q)}",
                f"v_add_f32 {v(p)}, {s(S_EPS)}, {v(p)}", f"v_add_f32 {v(q)}, {s(S_EPS)}, {v(q)}", f"v_cvt_pk_bf16_f32 {v(dst)}, {v(p)}, {v(q)}"]
    A(f"s_mov_b32 {s(S_IT)}, 0", f"s_lshl_b32 {s(S_KV)}, {s(S_WAVE)}, 14", f"s_add_u32 {s(S_KV)}, {s(S_KV)}, {KV_OFF:#x}")
    L1 = A.label("L1")
    A(f"{L1}:")
    A(f"s_add_u32 {s(S_W)}, {s(S_W)}, {2*14336}")
    for b in range(4):
        A("s_waitcnt vmcnt(42)")
        for ks in range(14):
            for tt in range(2): A(mfma(W_ + 4*tt, xf(tt, ks), v(TB[b]+4*ks, 4), "0" if ks == 0 else None))
        A(ldtile(b, toff[b]))
        for r in range(4):
            if b < 2:
                A(phi_pair(W_+8, W_+2*r, W_+2*r+1, W_+9))
                if b == 1: A(f"v_and_b32 {v(W_+8)}, {v(W_+8)}, {v(VMK)}")
            else:
                A(f"v_cvt_pk_bf16_f32 {v(W_+8)}, {v(W_+2*r)}, {v(W_+2*r+1)}")
                if b == 3: A(f"v_or_b32 {v(W_+8)}, {v(W_+8)}, {v(VON)}")
            A(f"v_accvgpr_write_b32 {a_(112 + 4*b + r)}, {v(W_+8)}")
    A("s_nop 1")
    for td in range(2):
        for te in range(2): A(mfma(W_ + 8*td + 4*te, a_(112 + 4*td, 4), a_(120 + 4*te, 4), "0"))
    A("s_waitcnt vmcnt(40)", "s_nop 7")
    for r in range(16): A(f"buffer_atomic_add_f32 {v(W_+r)}, {v(VL4)}, {s(WS,4)}, {s(S_KV)} offen offset:{256*r}")
    A(f"s_add_u32 {s(S_KV)}, {s(S_KV)}, 4096", f"s_add_u32 {s(S_IT)}, {s(S_IT)}, 1", f"s_cmp_lt_u32 {s(S_IT)}, 4", f"s_cbranch_scc1 {L1}")
    A("s_waitcnt vmcnt(0)", "s_barrier")
    if TLM: A("s_memrealtime s[92:93]")
    Ln = A.label("Lns")
    A(f"s_mov_b32 {s(S_KV)}, {CL_OFF:#x}", f"s_cmp_lg_u32 {s(S_WAVE)}, 0", f"s_cbranch_scc1 {Ln}")
    A(f"v_mov_b32 {v(T)}, 1", "s_mov_b64 exec, 1", f"buffer_atomic_add {v(T)}, off, {s(WS,4)}, {s(S_KV)} sc1", "s_mov_b64 exec, -1")
    A(f"{Ln}:")
    A(f"s_mul_i32 {s(S_W)}, {s(S_WAVE)}, {8*14336}", f"s_add_u32 {s(S_W)}, {s(S_W)}, {WQF_OFF:#x}")
    for b in range(2): A(ldtile(b, 14336*b))
    poll_eq(A, T, VZ, S_KV, 64, abort, "cl")
    if TLM: A("s_memrealtime s[94:95]")
    A(f"s_mov_b32 {s(S_IT)}, 0", f"s_lshl_b32 {s(S_KV)}, {s(S_WAVE)}, 14", f"s_add_u32 {s(S_KV)}, {s(S_KV)}, {KV_OFF:#x}")
    Q, KVR, KVT, ZO, PQ, NUM, DEN, TMPS = 128, 144, 160, 168, 172, 180, 188, 192
    L2 = A.label("L2")
    A(f"{L2}:")
    for r in range(16): A(f"buffer_load_dword {v(KVR+r)}, {v(VL4)}, {s(WS,4)}, {s(S_KV)} offen offset:{256*r} sc1")
    A(f"s_add_u32 {s(S_W)}, {s(S_W)}, {2*14336}", "s_waitcnt vmcnt(16)")
    for b in range(2):
        for ks in range(14):
            for tt in range(2): A(mfma(Q + 8*tt + 4*b, v(TB[b]+4*ks, 4), xf(tt, ks), "0" if ks == 0 else None))
    A("s_waitcnt vmcnt(0)")
    for b in range(2): A(ldtile(b, 14336*b))
    for tt in range(2):
        for r in range(4): A(phi_pair(PQ + 4*tt + r, Q + 8*tt + 2*r, Q + 8*tt + 2*r + 1, TMPS))
    for te in range(2):
        for td in range(2):
            for p in range(2): A(f"v_cvt_pk_bf16_f32 {v(KVT + 4*te + 2*td + p)}, {v(KVR + 8*td + 4*te + 2*p)}, {v(KVR + 8*td + 4*te + 2*p + 1)}")
    A("s_nop 1")
    for r in range(4): A(f"v_mov_b32_dpp {v(ZO+r)}, {v(KVT+4+r)} row_newbcast:12 row_mask:0xf bank_mask:0xf")
    A("s_nop 1")
    for tt in range(2):
        for te in range(2): A(mfma(NUM + 4*te, v(KVT + 4*te, 4), v(PQ + 4*tt, 4), "0"))
        A(mfma(DEN, v(ZO, 4), v(PQ + 4*tt, 4), "0"), "s_nop 7")
        d, u = TMPS, TMPS+1
        A(f"v_cvt_pk_bf16_f32 {v(d)}, {v(DEN)}, {v(DEN)}", f"v_and_b32 {v(d)}, 0xffff0000, {v(d)}", f"v_add_f32 {v(d)}, {s(S_EPS)}, {v(d)}",
          f"v_cvt_pk_bf16_f32 {v(d)}, {v(d)}, {v(d)}", f"v_and_b32 {v(d)}, 0xffff0000, {v(d)}", f"v_rcp_f32 {v(d)}, {v(d)}")
        for r in range(4):
            A(f"v_cvt_pk_bf16_f32 {v(u+1)}, {v(NUM+2*r)}, {v(NUM+2*r+1)}", f"v_lshlrev_b32 {v(u)}, 16, {v(u+1)}", f"v_and_b32 {v(u+1)}, 0xffff0000, {v(u+1)}",
              f"v_mul_f32 {v(u)}, {v(u)}, {v(d)}", f"v_mul_f32 {v(u+1)}, {v(u+1)}, {v(d)}", f"v_cvt_pk_bf16_f32 {v(TMPS+4+r)}, {v(u)}, {v(u+1)}")
        A(f"ds_write_b128 {v(VOA)}, {v(TMPS+4,4)} offset:{1024*tt}", "s_waitcnt lgkmcnt(0)")
    A(f"v_add_u32 {v(VOA)}, 2048, {v(VOA)}")
    A(f"s_add_u32 {s(S_KV)}, {s(S_KV)}, 4096", f"s_add_u32 {s(S_IT)}, {s(S_IT)}, 1", f"s_cmp_lt_u32 {s(S_IT)}, 4", f"s_cbranch_scc1 {L2}")
    A("s_waitcnt vmcnt(0)", "s_barrier")
    A(f"s_mul_i32 {s(S_W)}, {s(S_WAVE)}, {7*16384}", f"s_add_u32 {s(S_W)}, {s(S_W)}, {WOF_OFF:#x}")
    def ldwo(c):
        o = []
        for h in range(16):
            if h % 4 == 0: o.append(f"s_add_u32 {s(S_TMP)}, {s(S_W)}, {16384*c + 1024*h}")
            o.append(f"buffer_load_dwordx4 {v(16 + 64*(c % 3) + 4*h, 4)}, {v(VL16)}, {s(WS,4)}, {s(S_TMP)} offen offset:{1024*(h%4)} sc1")
        return o
    A(ldwo(0), ldwo(1))
    for f in range(32):
        A(f"ds_read_b128 {a_(4*f, 4)}, {v(VL16)} offset:{LOIMG + 1024*f}")
        if f % 8 == 7: A("s_waitcnt lgkmcnt(0)")
    for c in range(7):
        if c + 2 < 7: A(ldwo(c+2))
        nyoung = 16*min(2, 6-c) + (2 if c >= 1 else 0) * 0
        A(f"s_waitcnt vmcnt({16*min(2, 6-c)})")
        for h in range(16):
            for tt in range(2): A(mfma(W_ + 4*tt, v(16 + 64*(c % 3) + 4*h, 4), a_(8*h + 4*tt, 4), "0" if h == 0 else None))
        A("s_nop 7")
        for tt in range(2):
            A(f"v_cvt_pk_bf16_f32 {v(W_+8+2*tt)}, {v(W_+4*tt)}, {v(W_+4*tt+1)}", f"v_cvt_pk_bf16_f32 {v(W_+9+2*tt)}, {v(W_+4*tt+2)}, {v(W_+4*tt+3)}")
        A(f"s_mov_b32 {s(S_TMP)}, {4*1792}",
          f"buffer_store_dwordx2 {v(W_+8,2)}, {v(VO_)}, {s(OUT,4)}, 0 offen offset:{32*c}", f"buffer_store_dwordx2 {v(W_+10,2)}, {v(VO_)}, {s(OUT,4)}, {s(S_TMP)} offen offset:{32*c}")
    A("s_endpgm")
```

```python
import sys
from asm import *
from model import *
import rec, workers, prep
from rec import WS, XB, DBG, S_WAVE, S_ROLE, S_TMP, S_TMP2
from workers import OUT, XA

TKL = 0x23800
def main_kernel(A, name, profile=False):
    NV, NX, NPG = workers.NV, workers.NX, workers.NPG
    kernel_begin(A, name)
    Lexit = A.label("exit")
    Lx0 = A.label("go")
    A("s_cmp_lt_u32 s2, 256", f"s_cbranch_scc1 {Lx0}", "s_endpgm", f"{Lx0}:")
    srd(A, WS, 96, 0x10000000); srd(A, XB, 24, 1835008); srd(A, DBG, 88, 256); srd(A, OUT, 80, 2048*896*2); srd(A, XA, 0, 1835008)
    prep.prep_srds(A)
    A("v_lshrrev_b32 v1, 6, v0", "s_nop 0", f"v_readfirstlane_b32 {s(S_WAVE)}, v1")
    A("s_getreg_b32 s44, hwreg(HW_REG_XCC_ID)", "s_and_b32 s44, s44, 7")
    if rec.XSCR: A(f"s_lshr_b32 s44, s2, {rec.XSCR}", "s_and_b32 s44, s44, 7")
    A("s_waitcnt lgkmcnt(0)")
    def ticket():
        A("s_lshl_b32 s45, s44, 2", f"s_cmp_eq_u32 {s(S_WAVE)}, 0", "s_cselect_b32 s45, s45, 0x40000000", "v_mov_b32 v220, 1", "s_mov_b64 exec, 1",
          f"buffer_atomic_add v220, off, {s(DBG,4)}, s45 sc0", "s_mov_b64 exec, -1")
        return 1
    prep.prep_body(A, ticket)
    if rec.TLM: A("s_memrealtime s[98:99]")
    Lw, Ld = A.label("notw0"), A.label("rd")
    A(f"s_cmp_lg_u32 {s(S_WAVE)}, 0", f"s_cbranch_scc1 {Lw}")
    A("s_mov_b64 exec, 1", "v_mov_b32 v2, 1", f"buffer_atomic_add v2, off, {s(DBG,4)}, 0 offset:32",
      f"v_readfirstlane_b32 s61, v220", f"s_lshl_b32 {s(S_TMP2)}, s44, 5", f"s_add_u32 {s(S_TMP2)}, {s(S_TMP2)}, s61", "s_cmp_lt_u32 s61, 32", f"s_cbranch_scc1 {Ld}")
    Lo, Lo2 = A.label("ovw"), A.label("ovg")
    A("v_mov_b32 v1, 1", f"buffer_atomic_add v1, off, {s(DBG,4)}, 0 offset:36 sc0", "s_waitcnt vmcnt(0)", "v_readfirstlane_b32 s61, v1", "s_mov_b32 s62, 300000", f"s_mov_b32 {s(S_TMP2)}, 1000")
    A(f"{Lo}:", f"buffer_load_dword v1, off, {s(DBG,4)}, 0 offset:32 sc1", "s_waitcnt vmcnt(0)", "v_readfirstlane_b32 s63, v1", "s_cmp_ge_u32 s63, 256", f"s_cbranch_scc1 {Lo2}",
      "s_sleep 4", "s_sub_u32 s62, s62, 1", f"s_cbranch_scc1 {Ld}", f"s_branch {Lo}")
    A(f"{Lo2}:", f"buffer_load_dwordx4 v[4:7], off, {s(DBG,4)}, 0 sc1", f"buffer_load_dwordx4 v[8:11], off, {s(DBG,4)}, 0 offset:16 sc1", "s_waitcnt vmcnt(0)")
    for x in range(8):
        Ln = A.label("ovn")
        A(f"v_readfirstlane_b32 s63, v{4+x}", "s_min_u32 s63, s63, 32", "s_sub_u32 s62, 32, s63", "s_cmp_ge_u32 s61, s62", f"s_cbranch_scc1 {Ln}",
          f"s_add_u32 {s(S_TMP2)}, s63, s61", f"s_add_u32 {s(S_TMP2)}, {s(S_TMP2)}, {32*x}", f"s_branch {Ld}", f"{Ln}:", "s_sub_u32 s61, s61, s62")
    A(f"{Ld}:", f"v_mov_b32 v1, {s(S_TMP2)}", f"v_mov_b32 v2, {TKL:#x}", "ds_write_b32 v2, v1", "s_waitcnt lgkmcnt(0)", "s_mov_b64 exec, -1")
    A(f"{Lw}:", "s_barrier", f"v_mov_b32 v2, {TKL:#x}", "ds_read_b32 v1, v2", "s_waitcnt lgkmcnt(0)", f"v_readfirstlane_b32 {s(S_ROLE)}, v1", f"s_mov_b32 {s(rec.S_TO)}, {rec.TIMEOUT}")
    if rec.TLM: A(f"s_mov_b32 s89, {s(S_ROLE)}")
    ranges = [("A", 16), ("B", 30), ("PF", 32), ("V", 32 + 16*NV), ("X", 32 + 16*NV + 16*NX), ("PV", 32 + 16*NV + 16*NX + 14*NPG), ("L", 32 + 16*NV + 16*NX + 14*NPG + 64)]
    assert ranges[-1][1] <= 256
    L = {n: A.label("role" + n) for n, _ in ranges}
    J = {n: A.label("jmp" + n) for n, _ in ranges}
    for n, hi in ranges: A(f"s_cmp_lt_u32 {s(S_ROLE)}, {hi}", f"s_cbranch_scc1 {J[n]}")
    A(f"{Lexit}:", "s_endpgm")
    lo = 0
    for n, hi in ranges:
        A(f"{J[n]}:")
        if n in ("V", "X", "PV", "L"): A(f"s_sub_u32 {s(S_ROLE)}, {s(S_ROLE)}, {lo}")
        A(f"s_branch {L[n]}")
        lo = hi
    for R, fn in (("A", rec.role_A), ("B", rec.role_B)):
        A(f"{L[R]}:")
        Ls = [A.label(f"{R}w{w}") for w in range(4)]
        for w in range(1, 4): A(f"s_cmp_eq_u32 {s(S_WAVE)}, {w}", f"s_cbranch_scc1 {Ls[w]}")
        for w in range(4):
            A(f"{Ls[w]}:"); fn(A, w, Lexit, profile)
    Lx2 = A.label("exit2")
    for R, fn in (("PF", rec.role_PF), ("V", workers.role_V), ("X", workers.role_X), ("PV", workers.role_PV), ("L", workers.role_L)):
        A(f"{L[R]}:"); fn(A, Lx2)
    A(f"{Lx2}:", "s_endpgm")
    A(kernel_desc(name))

HDR = open("concat_heads__linear_attn_block__memory_aug_recurrent_mem_tr__prompt.s.ref").read().split("; Override launch")[0] if len(sys.argv) > 2 and sys.argv[2] == "final" else ""
FINAL = bool(HDR)
KNAME = "concat_heads__linear_attn_block__memory_aug_recurrent_mem_tr__prompt_kernel" if FINAL else "main_kernel"
def generate(path, TL=0, PROFILE=0, **kw):
    rec.TLM = workers.TLM = TL
    A = Asm()
    hdr = []
    hdr.append(f"; @launch {'' if FINAL else 'kernel=main_kernel '}grid=(256,1,1) block=(256,1,1) lds=147456")
    A('.amdgcn_target "amdgcn-amd-amdhsa--gfx950"', ".text")
    g = vars(rec); saved = dict(g); g.update(FULL=1, TIMEOUT=300000); g.update(kw)
    def instrument(fn, name, idreg, base, wsreg, wavereg):
        B = Asm(); B.uid = A.uid + 100000
        fn(B, name)
        lines = B.lines
        if TL:
            i0 = lines.index(f"{name}:")
            lines.insert(i0 + 1, "    s_memrealtime s[90:91]\n    s_mov_b32 s92, 0\n    s_mov_b32 s94, 0\n    s_mov_b32 s89, 9999")
            iend = max(i for i, l in enumerate(lines) if l.strip() == "s_endpgm")
            first = True
            for i, l in enumerate(lines):
                if l.strip() == "s_endpgm": lines[i] = f"    s_branch Ltl_{name}"
            stub = f"""Ltl_{name}:
    s_cmp_ge_u32 s2, 256
    s_cbranch_scc1 Ltl2_{name}
    s_memrealtime s[96:97]
    s_load_dwordx2 s[84:85], s[0:1], 96
    s_mov_b32 s86, 0x10000000
    s_mov_b32 s87, 0x00020000
    s_waitcnt lgkmcnt(0)
    s_mov_b64 exec, -1
    v_mov_b32 v4, s98
    v_mov_b32 v5, s92
    v_mov_b32 v6, s94
    v_mov_b32 v7, s96
    s_lshl_b32 s88, {idreg}, 2
    s_add_u32 s88, s88, {wavereg}
    s_lshl_b32 s88, s88, 4
    s_add_u32 s88, s88, {base:#x}
    buffer_store_dwordx4 v[4:7], off, s[84:87], s88
    v_mov_b32 v4, s90
    s_sub_u32 s88, s88, 0x40000
    buffer_store_dword v4, off, s[84:87], s88
Ltl2_{name}:
    s_endpgm"""
            lines.insert(iend + 1, stub)
        A.lines += lines; A.uid = B.uid
    instrument(lambda B, n: main_kernel(B, n, bool(PROFILE)), KNAME, "s89", PROF_OFF + 0x40000, 4, "s16")
    g.update({k: saved[k] for k in list(kw) + ["FULL", "TIMEOUT"]})
    open(path, "w").write(HDR + "\n".join(hdr) + "\n" + A.text())
if __name__ == "__main__":
    generate(sys.argv[1], STAMP=0 if HDR else 1)
```

```python
from asm import *
from model import *
from rec import WS, DBG, S_WAVE
PT = 0
CSLEEP = 4
TOUCH = 1
CNT0 = 64

def prep_srds(A):
    W1, W2, M0S = 64, 68, 72
    S_MH = 33
    A("s_and_b32 s37, s2, 7", f"s_lshl_b32 {s(S_MH)}, s37, 2", "s_lshr_b32 s37, s2, 6", f"s_add_u32 {s(S_MH)}, {s(S_MH)}, s37")
    srd(A, M0S, 32, 7168)
    LmB, LmJ = A.label("matB"), A.label("matJ")
    A(f"s_cmp_ge_u32 {s(S_MH)}, 16", f"s_cbranch_scc1 {LmB}")
    srd(A, W1, 40, 3670016); srd(A, W2, 48, 3670016)
    A(f"s_branch {LmJ}", f"{LmB}:")
    srd(A, W1, 56, 3670016); srd(A, W2, 64, 3670016)
    A(f"{LmJ}:")

def prep_body(A, after_loads=None):
    W1, W2, M0S = 64, 68, 72
    S_W = S_WAVE
    S_MH, S_H, S_RH, S_CQ, S_T, S_T2, S_G, S_OUT, S_X, GW = range(33, 43)
    S_A0, S_A1, S_B0, S_BJ, S_BQ, S_B3 = range(84, 90)
    VL, VG, VN, T, T2, VA, VB, VWA, VWB, VRA, VLR, VL16, VTR = range(1, 14)
    GS, ES = 272, 1088
    BP = 288
    BIMG = 0
    AIMG = 256*BP
    ACC, AF, BF, PK = 16, 128, 160, 176
    A(f"s_and_b32 {s(S_H)}, {s(S_MH)}, 15", f"s_bfe_u32 {s(S_RH)}, s2, 0x10005", f"s_bfe_u32 {s(S_CQ)}, s2, 0x20003")
    A(f"v_and_b32 {v(VL)}, 63, v0", f"v_lshrrev_b32 {v(VG)}, 4, {v(VL)}", f"v_and_b32 {v(VN)}, 15, {v(VL)}", f"v_lshlrev_b32 {v(VL16)}, 4, {v(VL)}")
    A(f"v_lshrrev_b32 {v(T)}, 3, {v(VL)}", f"v_and_b32 {v(T2)}, 7, {v(VL)}", f"v_lshlrev_b32 {v(VA)}, 13, {v(T)}", f"v_lshl_add_u32 {v(VA)}, {v(T2)}, 4, {v(VA)}")
    A(f"s_mul_i32 {s(S_T)}, {s(S_RH)}, 7", f"s_add_u32 {s(S_T)}, {s(S_T)}, {s(S_W)}", f"s_lshl_b32 {s(S_OUT)}, {s(S_T)}, 10",
      f"s_lshl_b32 {s(S_T)}, {s(S_T)}, 18", f"s_lshl_b32 {s(S_T2)}, {s(S_H)}, 9", f"s_add_u32 {s(S_A0)}, {s(S_T)}, {s(S_T2)}",
      f"s_add_u32 {s(S_A1)}, {s(S_A0)}, {4*32*8192}", f"s_cmp_eq_u32 {s(S_W)}, 3", f"s_cselect_b32 {s(S_A1)}, 0x40000000, {s(S_A1)}")
    L = [A.label("pb%d" % i) for i in range(4)]
    A(f"s_cmp_ge_u32 {s(S_MH)}, 16", f"s_cbranch_scc1 {L[0]}")
    A(f"s_mul_i32 {s(S_T)}, {s(S_CQ)}, 112", f"s_lshl_b32 {s(S_G)}, {s(S_W)}, 5", f"s_add_u32 {s(S_T)}, {s(S_T)}, {s(S_G)}", f"s_lshl_b32 {s(S_T)}, {s(S_T)}, 13",
      f"s_add_u32 {s(S_B0)}, {s(S_T)}, {s(S_T2)}", f"s_mov_b32 {s(S_BJ)}, {8*8192}", f"s_mov_b32 {s(S_BQ)}, 128", f"s_cmp_eq_u32 {s(S_W)}, 3", f"s_cselect_b32 {s(S_B3)}, 0x40000000, 0",
      f"v_mov_b32 {v(VB)}, {v(VA)}",
      f"v_mul_u32_u24 {v(VWB)}, {GS}, {v(T2)}", f"v_lshl_add_u32 {v(VWB)}, {v(T)}, 4, {v(VWB)}", f"s_mul_i32 {s(S_T)}, {s(S_W)}, {16*ES}", f"v_add_u32 {v(VWB)}, {s(S_T)}, {v(VWB)}")
    A(f"s_branch {L[1]}", f"{L[0]}:")
    A(f"s_mul_i32 {s(S_T)}, {s(S_H)}, 229376", f"s_mul_i32 {s(S_G)}, {s(S_CQ)}, 224", f"s_add_u32 {s(S_T)}, {s(S_T)}, {s(S_G)}",
      f"s_mul_i32 {s(S_G)}, {s(S_W)}, {16*896}", f"s_add_u32 {s(S_B0)}, {s(S_T)}, {s(S_G)}", f"s_mov_b32 {s(S_BJ)}, {4*896}", f"s_mov_b32 {s(S_BQ)}, {64*896}", f"s_mov_b32 {s(S_B3)}, 0",
      f"v_mul_u32_u24 {v(VB)}, 896, {v(VG)}", f"v_lshl_add_u32 {v(VB)}, {v(VN)}, 4, {v(VB)}",
      f"v_mul_u32_u24 {v(VWB)}, {BP}, {v(VG)}", f"v_lshl_add_u32 {v(VWB)}, {v(VN)}, 4, {v(VWB)}", f"s_mul_i32 {s(S_T)}, {s(S_W)}, {16*BP}", f"v_add_u32 {v(VWB)}, {s(S_T)}, {v(VWB)}")
    A(f"{L[1]}:")
    def loads(q):
        st = 48*(q % 3)
        A(f"s_mov_b32 {s(S_T)}, {s(S_B0)}")
        for j in range(4):
            if j == 2: A(f"s_add_u32 {s(S_T)}, {s(S_T)}, {s(S_B3)}")
            A(f"buffer_load_dwordx4 {a_(st+4*j,4)}, {v(VB)}, {s(W2,4)}, {s(S_T)} offen", f"s_add_u32 {s(S_T)}, {s(S_T)}, {s(S_BJ)}")
        A(f"s_add_u32 {s(S_B0)}, {s(S_B0)}, {s(S_BQ)}")
        for half in range(2):
            for j in range(4):
                A(f"s_add_u32 {s(S_T)}, {s(S_A0 if half == 0 else S_A1)}, {j*8*8192}", f"buffer_load_dwordx4 {a_(st+16+16*half+4*j,4)}, {v(VA)}, {s(W1,4)}, {s(S_T)} offen offset:{128*q}")
    if PT == 1: A("s_memrealtime s[76:77]")
    loads(0); loads(1)
    A(f"v_mul_u32_u24 {v(VWA)}, {GS}, {v(T2)}", f"v_lshrrev_b32 {v(T2)}, 2, {v(T)}", f"v_mul_u32_u24 {v(T2)}, {2*ES}, {v(T2)}", f"v_add_u32 {v(VWA)}, {v(VWA)}, {v(T2)}",
      f"v_and_b32 {v(T)}, 3, {v(T)}", f"v_lshl_add_u32 {v(VWA)}, {v(T)}, 4, {v(VWA)}")
    A(f"v_mul_u32_u24 {v(VLR)}, {GS}, {v(VG)}", f"v_lshl_add_u32 {v(VLR)}, {v(VN)}, 4, {v(VLR)}")
    A(f"s_mul_i32 {s(S_T)}, {s(S_W)}, {8*ES}", f"s_add_u32 {s(S_T)}, {s(S_T)}, {AIMG}", f"v_add_u32 {v(VWA)}, {s(S_T)}, {v(VWA)}", f"v_add_u32 {v(VRA)}, {s(S_T)}, {v(VLR)}")
    A(f"v_lshrrev_b32 {v(T)}, 2, {v(VN)}", f"v_lshl_add_u32 {v(T)}, {v(VG)}, 3, {v(T)}", f"v_mul_u32_u24 {v(VTR)}, {BP}, {v(T)}", f"v_and_b32 {v(T)}, 3, {v(VN)}", f"v_lshl_add_u32 {v(VTR)}, {v(T)}, 3, {v(VTR)}",
      f"v_add_u32 {v(VTR+1)}, {128*BP}, {v(VTR)}")
    A(f"s_mul_i32 {s(S_T)}, {s(S_H)}, 28", f"s_mul_i32 {s(S_T2)}, {s(S_CQ)}, 7", f"s_add_u32 {s(S_T)}, {s(S_T)}, {s(S_T2)}", f"s_mul_i32 {s(S_T)}, {s(S_T)}, 14336",
      f"s_add_u32 {s(S_OUT)}, {s(S_OUT)}, {s(S_T)}", f"s_cmp_ge_u32 {s(S_MH)}, 16", f"s_cselect_b32 {s(S_T)}, {WB_OFF:#x}, {WA_OFF:#x}", f"s_add_u32 {s(S_OUT)}, {s(S_OUT)}, {s(S_T)}")
    A(f"s_add_u32 {s(S_G)}, {s(S_OUT)}, 4096", f"s_cmp_eq_u32 {s(S_W)}, 3", f"s_cselect_b32 {s(S_G)}, 0x40000000, {s(S_G)}")
    A(f"s_lshl_b32 {s(GW)}, s2, 2", f"s_add_u32 {s(GW)}, {s(GW)}, {s(S_W)}")
    def misc():
        A(f"v_lshrrev_b32 {v(T)}, 1, {v(VN)}", f"v_mul_u32_u24 {v(T2)}, 896, {v(T)}", f"v_lshl_add_u32 {v(T2)}, {v(VG)}, 5, {v(T2)}", f"v_and_b32 {v(T)}, 1, {v(VN)}", f"v_lshl_add_u32 {v(T2)}, {v(T)}, 2, {v(T2)}")
        A(f"s_lshl_b32 {s(S_T)}, s2, 7", f"s_lshl_b32 {s(S_X)}, s2, 10", f"s_add_u32 {s(S_X)}, {s(S_X)}, {MEMF_OFF:#x}",
          "s_cmp_lt_u32 s2, 7", f"s_cselect_b32 {s(S_X)}, {s(S_X)}, 0x40000000", f"s_cmp_eq_u32 {s(S_W)}, 3", f"s_cselect_b32 {s(S_X)}, {s(S_X)}, 0x40000000")
        for q in range(4): A(f"buffer_load_dword {v(216+q)}, {v(T2)}, {s(M0S,4)}, {s(S_T)} offen offset:{8*q}")
        for r in range(4): A(f"v_mov_b32 {v(208+r)}, -1", f"v_mov_b32 {v(212+r)}, 0")
        A(f"s_lshl_b32 {s(S_T)}, {s(GW)}, 10", f"s_add_u32 {s(S_T)}, {s(S_T)}, {MEMF_OFF:#x}")
        ms = (MEMS_OFF - MEMF_OFF) // 1024
        for j in range(2):
            A(f"s_add_u32 {s(S_T2)}, {s(S_T)}, {j << 20:#x}")
            for base in (0, ms):
                if base // 1024 == j:
                    A(f"s_sub_u32 s43, {s(GW)}, {base % 1024}", "s_cmp_lt_u32 s43, 7", f"s_cselect_b32 {s(S_T2)}, 0x40000000, {s(S_T2)}")
            A(f"buffer_store_dwordx4 {v(208,4)}, {v(VL16)}, {s(WS,4)}, {s(S_T2)} offen sc1")
        A(f"s_lshl_b32 {s(S_T)}, {s(GW)}, 10", f"s_add_u32 {s(S_T)}, {s(S_T)}, {ZERO_OFF:#x}", f"s_cmp_lt_u32 {s(GW)}, {ZERO_BYTES//1024}", f"s_cselect_b32 {s(S_T)}, {s(S_T)}, 0x40000000",
          f"buffer_store_dwordx4 {v(212,4)}, {v(VL16)}, {s(WS,4)}, {s(S_T)} offen sc1")
        return 7 + (after_loads() if after_loads else 0)
    sc = int(np.float32(LOG2E / 16).view(np.uint32))
    def gemm(isb):
        n = 2 if isb else 1
        def epi(cb):
            o = []
            for half in range(2):
                d = ACC + 16*cb + 8*half
                p = PK + 8*(cb % 2) + 4*half
                if not isb: o += [f"v_mul_f32 {v(d+r)}, s43, {v(d+r)}" for r in range(8)]
                o += [f"v_cvt_pk_bf16_f32 {v(p+r)}, {v(d+2*r)}, {v(d+2*r+1)}" for r in range(4)]
                so = S_OUT if half == 0 else S_G
                o += [f"buffer_store_dwordx4 {v(p,4)}, {v(VL16)}, {s(WS,4)}, {s(so)} offen sc1", f"s_add_u32 {s(so)}, {s(so)}, 14336"]
            return o
        nm = 0
        for q in range(4):
            st = 48*(q % 3)
            A(f"s_waitcnt vmcnt({12 if q < 3 else nm})")
            if PT == 1 and q in (0, 3): A(f"s_memrealtime s[{78 if q == 0 else 80}:{79 if q == 0 else 81}]")
            for j in range(4):
                off = (64*q + 4*j)*BP if isb else ((j >> 1)*8 + 2*q)*ES + (j & 1)*128
                A(f"ds_write_b128 {v(VWB)}, {a_(st+4*j,4)} offset:{BIMG + off}")
            for half in range(2):
                for j in range(4): A(f"ds_write_b128 {v(VWA)}, {a_(st+16+16*half+4*j,4)} offset:{half*4*ES + j*64}")
            for f in range(8): A(f"ds_read_b128 {v(AF+4*f,4)}, {v(VRA)} offset:{f*ES}")
            if q + 2 < 4: loads(q+2)
            if q == 2: nm = misc()
            if q == 3:
                A(f"s_waitcnt vmcnt({nm - 4})")
                for k in range(4): A(f"v_min_u32 {v(216+k)}, -2, {v(216+k)}")
                A(f"buffer_store_dwordx4 {v(216,4)}, {v(VL16)}, {s(WS,4)}, {s(S_X)} offen sc1", f"s_add_u32 {s(S_X)}, {s(S_X)}, {ALT:#x}", f"buffer_store_dwordx4 {v(216,4)}, {v(VL16)}, {s(WS,4)}, {s(S_X)} offen sc1")
                if not isb: A(f"s_mov_b32 s43, {sc:#x}")
            A("s_waitcnt lgkmcnt(0)", "s_barrier")
            def rdB(i):
                cb, el = i // 2, i % 2; es = 2*q + el
                if isb: return [f"ds_read_b64_tr_b16 {v(BF + 4*(i % 4) + 2*u, 2)}, {v(VTR + es // 4)} offset:{BIMG + (32*(es % 4) + 4*u)*BP + 32*cb}" for u in range(2)]
                return [f"ds_read_b128 {v(BF + 4*(i % 4), 4)}, {v(VLR)} offset:{BIMG + (cb*8 + es)*ES}"]
            for i in range(3): A(rdB(i))
            pend = []
            for i in range(14):
                cb, el = i // 2, i % 2
                if i + 3 < 14: A(rdB(i+3), f"s_waitcnt lgkmcnt({3*n})")
                else: A(f"s_waitcnt lgkmcnt({(13-i)*n})")
                if q == 3 and el == 1 and cb > 0: pend += epi(cb-1)
                for half in range(2):
                    for t in range(2):
                        d = ACC + 16*cb + 8*half + 4*t
                        A(f"v_mfma_f32_16x16x32_bf16 {v(d,4)}, {v(AF + 16*half + 8*t + 4*el, 4)}, {v(BF + 4*(i % 4), 4)}, " + ("0" if q == 0 and el == 0 else v(d,4)))
                        for _ in range(2 if isb else 4):
                            if pend: A(pend.pop(0))
            if q == 3: A(pend, "s_nop 7", epi(6))
    A(f"s_cmp_ge_u32 {s(S_MH)}, 16", f"s_cbranch_scc1 {L[2]}")
    gemm(False)
    A(f"s_branch {L[3]}", f"{L[2]}:")
    gemm(True)
    A(f"{L[3]}:")
    if PT == 1: A("s_memrealtime s[82:83]")
    A("s_waitcnt vmcnt(0)", "s_barrier")
    if PT:
        A("s_waitcnt lgkmcnt(0)", "v_mov_b32 v12, s76", "v_mov_b32 v13, s78", "v_mov_b32 v14, s80", "v_mov_b32 v15, s82",
          f"s_lshl_b32 {s(S_T)}, {s(GW)}, 4", f"s_add_u32 {s(S_T)}, {s(S_T)}, {PROF_OFF + 0x80000:#x}", f"buffer_store_dwordx4 v[12:15], off, {s(WS,4)}, {s(S_T)}")
    A(f"s_lshl_b32 {s(S_T)}, {s(S_MH)}, 2", f"s_cmp_eq_u32 {s(S_W)}, 0", f"s_cselect_b32 {s(S_T)}, {s(S_T)}, 0x40000000",
      f"v_mov_b32 {v(T)}, 1", "s_mov_b64 exec, 1", f"buffer_atomic_add {v(T)}, off, {s(DBG,4)}, {s(S_T)} offset:{CNT0} sc1", "s_mov_b64 exec, -1")
PREP_LDS = 256*288 + 64*1088

def wait_counters(A, lo, n, abort, tag, S_TO, vt=1, va=2):
    from rec import timeout_step
    Lp, Lgo = A.label(tag + "cw"), A.label(tag + "cg")
    A(f"s_cmp_lg_u32 {s(S_WAVE)}, 0", f"s_cbranch_scc1 {Lgo}")
    A(f"v_and_b32 {v(va)}, {n-1}, v0", f"v_add_lshl_u32 {v(va)}, {v(va)}, {lo}, 2")
    A(f"{Lp}:", f"buffer_load_dword {v(vt)}, {v(va)}, {s(DBG,4)}, 0 offen offset:{CNT0} sc1", "s_waitcnt vmcnt(0)", f"v_cmp_ne_u32 vcc, 8, {v(vt)}", f"s_cbranch_vccz {Lgo}", f"s_sleep {CSLEEP}")
    timeout_step(A, Lp, abort)
    A(f"{Lgo}:", "s_barrier")
```

```python
from asm import *
from model import *

WS, XB, DBG = 4, 8, 12
S_WAVE, S_ROLE, S_STEP, S_MEM, S_MEM2, S_P, S_X, S_VOX, S_TO, S_TMP, S_TMP2, S_P2, S_MEMN = range(16, 29)
S_PROF = 30
NSTEPS = 63
PACCUM = 0
PMASK = 255
TIMEOUT = 40000

def smf(d, a, b, idx, hi=False):
    return f"v_smfmac_f32_16x16x64_bf16 {v(d,4)}, {v(a,4)}, {b}, {v(idx)}" + (" abid:1" if hi else "")

def wreg(f, n=8, sub=0):
    return a_(8*f + sub, n) if f < 32 else v(120 + 8*(f-32) + sub, n)

def lane_consts(A, VL, VG, VN):
    A(f"v_and_b32 {v(VL)}, 63, v0", f"v_lshrrev_b32 {v(VG)}, 4, {v(VL)}", f"v_and_b32 {v(VN)}, 15, {v(VL)}")

def mem_lane_off(A, dst, VG, VN, t):
    A(f"v_lshlrev_b32 {v(dst)}, 8, {v(VG)}", f"v_lshl_add_u32 {v(dst)}, {v(VN)}, 4, {v(dst)}")

def idx_const(A, dst, VN, t):
    A(f"v_and_b32 {v(t)}, 1, {v(VN)}", f"v_mul_u32_u24 {v(dst)}, 0xAAAA, {v(t)}",
      f"v_lshrrev_b32 {v(t)}, 3, {v(VN)}", f"v_mul_u32_u24 {v(t)}, 0xAAAA, {v(t)}",
      f"v_lshl_add_u32 {v(dst)}, {v(t)}, 16, {v(dst)}", f"v_add_u32 {v(dst)}, 0x44444444, {v(dst)}")

def memload(dst, voff, kb):
    so = S_MEM if kb < 4 else S_MEM2
    return f"buffer_load_dwordx4 {v(dst,4)}, {v(voff)}, {s(WS,4)}, {s(so)} offen offset:{(kb%4)*1024} sc1"

def chk4(t, r, first=True):
    if first:
        return [f"v_max3_u32 {v(t)}, {v(r)}, {v(r+1)}, {v(r+2)}", f"v_max_u32 {v(t)}, {v(t)}, {v(r+3)}"]
    return [f"v_max3_u32 {v(t)}, {v(t)}, {v(r)}, {v(r+1)}", f"v_max3_u32 {v(t)}, {v(t)}, {v(r+2)}, {v(r+3)}"]

def timeout_step(A, again, abort):
    A(f"s_sub_u32 {s(S_TO)}, {s(S_TO)}, 1", f"s_cbranch_scc1 {abort}", f"s_branch {again}")

def prof(A, slot, on):
    if on and (PMASK >> slot) & 1:
        A(f"s_memtime {s(S_PROF+2*slot,2)}")

def prof_flush(A, n, vt, vz, role_wave_off):
    A("s_waitcnt lgkmcnt(0)")
    A(f"s_lshl_b32 {s(S_TMP)}, {s(S_ROLE)}, 2", f"s_add_u32 {s(S_TMP)}, {s(S_TMP)}, {s(S_WAVE)}", f"s_lshl_b32 {s(S_TMP)}, {s(S_TMP)}, 6",
      f"s_add_u32 {s(S_TMP)}, {s(S_TMP)}, {s(S_STEP)}", f"s_lshl_b32 {s(S_TMP)}, {s(S_TMP)}, 6", f"s_add_u32 {s(S_TMP)}, {s(S_TMP)}, {PROF_OFF:#x}")
    A(f"v_mov_b32 {v(vz)}, 0")
    for k in range(n):
        A(f"v_mov_b32 {v(vt)}, {s(S_PROF+2*k)}", f"buffer_store_dword {v(vt)}, {v(vz)}, {s(WS,4)}, {s(S_TMP)} offen offset:{4*k}")

def prof_acc(A, n):
    A("s_memtime s[72:73]", "s_waitcnt lgkmcnt(0)")
    for k in range(n):
        A(f"s_sub_u32 {s(S_TMP)}, {s(S_PROF+2*k)}, s71", f"s_add_u32 s{74+k}, s{74+k}, {s(S_TMP)}")
    A(f"s_sub_u32 {s(S_TMP)}, s72, s71", f"s_add_u32 s{74+n}, s{74+n}, {s(S_TMP)}", "s_mov_b32 s71, s72" if PACCUM == 1 else "s_mov_b32 s71, 0")
    Lz = A.label("pz")
    A(f"s_cmp_lg_u32 {s(S_STEP)}, 12", f"s_cbranch_scc1 {Lz}")
    for k in range(n+1): A(f"s_mov_b32 s{74+k}, 0")
    A(f"{Lz}:")
def prof_acc_out(A, n):
    A(f"s_lshl_b32 {s(S_TMP)}, {s(S_ROLE)}, 2", f"s_add_u32 {s(S_TMP)}, {s(S_TMP)}, {s(S_WAVE)}", f"s_lshl_b32 {s(S_TMP)}, {s(S_TMP)}, 6", f"s_add_u32 {s(S_TMP)}, {s(S_TMP)}, {PROF_OFF:#x}")
    for k in range(n+1):
        A(f"v_mov_b32 v0, s{74+k}", f"buffer_store_dword v0, off, {s(WS,4)}, {s(S_TMP)} offset:{4*k}")

def emit_slots(A, slots):
    for sl in slots:
        A(sl['m']); A(sl['pre']); A(sl['valu']); A(sl['post'])

TIMG = 0
TW = 1808
MIMG = 8192
XIMG = 16384
RS = 256
XSL = 20480
A_SLEEP = 0
PG1 = 0
PG2 = 0
WFI = 0
FS0 = 0
FSD = 0
B1S = 38
B2S = 47
TRN = 6
X_NOPM = 0
PFA = 3
ATOUCH = 3
VPRE = 0
BTOUCH = 0
BT0 = 0
BTA = 1
TCH0 = 14
TAHEAD = 1
TGATE = 2
XPRE = 14
XPG = 10
X_NOVOX = 0
X_NOV = 0
FPD = 5
PGAP = 30
WARM = 0
B0S = 10
F2AT = 0
XSCR = 0
EXW = 6
TLM = 0
FROFF = 14336
F1AT = 2
FULL = 0
PB2 = 0
LDFL = 0
F1GO = 1
VOXS = 3
STAMP = 1
XS0 = 10
XSN = 20
D1 = 112
D2 = 22
F2D = 40
F2OFF = 10240
F1OFF = 12288
APW = 2
BPW = 3
F1W = 2
X_NODMA = 0
X_NOH = 0
X_NOTR = 0
X_NOCONV = 0
X_NOB1 = 0
B_SLEEP_M = 4
B_SLEEP_P = 0

def nops(n):
    out = []
    while n > 0:
        k = min(n, 16); out.append(f"s_nop {k-1}"); n -= k
    return out

def flag_ld(r, voff, soff, off):
    return f"buffer_load_dword {v(r)}, {v(voff)}, {s(WS,4)}, {s(soff)} offen offset:{off} sc1"
def flag_poll(A, regs, voff, soff, off, abort, tag, primed=False):
    Lp, Lgo = A.label(tag + "fp"), A.label(tag + "go")
    ld = lambda r: flag_ld(r, voff, soff, off)
    n = len(regs)
    if not primed:
        for r in regs: A(ld(r), f"s_nop {48 // n - 1}")
    A(f"{Lp}:")
    for r in regs:
        A(f"s_waitcnt vmcnt({n-1})", f"v_cmp_eq_u32 vcc, -1, {v(r)}", f"s_cbranch_vccz {Lgo}", ld(r))
    timeout_step(A, Lp, abort)
    A(f"{Lgo}:")

def mkslots(ms):
    return [dict(m=m, pre=[], valu=[], post=[]) for m in ms]

S_SLOW = 47
def read_mode(A, vt):
    if FULL:
        A(f"buffer_load_dword {v(vt)}, off, {s(DBG,4)}, 0 sc1", "s_waitcnt vmcnt(0)", f"v_readfirstlane_b32 {s(S_SLOW)}, {v(vt)}", f"s_cmp_ge_u32 {s(S_SLOW)}, 32", f"s_cselect_b32 {s(S_SLOW)}, 0x40000000, 0")
    else:
        A(f"s_mov_b32 {s(S_SLOW)}, 0x40000000")

def role_A(A, w, abort, profile=False):
    import prep
    WFL = [' sc1', '', ' nt', ' sc1 nt'][WFI]
    MEMR, ACC, HT = 0, 28, 56
    IDX, VMEM, VTW, VTR, VH, VX, TMP, TMP2 = range(112, 120)
    VG, VN, VL = 1, 2, 3
    ko = [(2*w + i) % 7 for i in range(7)]
    lane_consts(A, VL, VG, VN)
    idx_const(A, IDX, VN, TMP)
    mem_lane_off(A, VMEM, VG, VN, TMP)
    A(f"v_lshlrev_b32 {v(VTW)}, 4, {v(VN)}", f"v_lshl_add_u32 {v(VTW)}, {v(VG)}, 2, {v(VTW)}", f"v_add_u32 {v(VTW)}, {TIMG + w*TW}, {v(VTW)}")
    A(f"v_and_b32 {v(TMP)}, 1, {v(VG)}", f"v_mul_u32_u24 {v(VTR)}, {2*TW}, {v(TMP)}",
      f"v_lshrrev_b32 {v(TMP)}, 3, {v(VN)}", f"v_lshl_add_u32 {v(VTR)}, {v(TMP)}, 7, {v(VTR)}",
      f"v_bfe_u32 {v(TMP)}, {v(VN)}, 1, 1", f"v_lshl_add_u32 {v(VTR)}, {v(TMP)}, 6, {v(VTR)}",
      f"v_lshrrev_b32 {v(TMP)}, 1, {v(VG)}", f"v_lshl_add_u32 {v(VTR)}, {v(TMP)}, 5, {v(VTR)}",
      f"v_bfe_u32 {v(TMP)}, {v(VN)}, 2, 1", f"v_lshl_add_u32 {v(VTR)}, {v(TMP)}, 4, {v(VTR)}",
      f"v_and_b32 {v(TMP)}, 1, {v(VN)}", f"v_lshl_add_u32 {v(VTR)}, {v(TMP)}, 3, {v(VTR)}")
    if TIMG: A(f"v_add_u32 {v(VTR)}, {TIMG}, {v(VTR)}")
    if w < 3:
        A(f"v_lshlrev_b32 {v(VX)}, 10, {v(VG)}",
          f"v_lshl_add_u32 {v(VX)}, {v(VN)}, {3 if w < 2 else 2}, {v(VX)}", f"v_add_u32 {v(VX)}, {XIMG + (4*w if w < 2 else 128)}, {v(VX)}")
    if w < 2:
        A(f"v_lshlrev_b32 {v(VH)}, 4, {v(VL)}")
    elif w == 2:
        A(f"v_mul_u32_u24 {v(VH)}, 1792, {v(VG)}", f"v_and_b32 {v(TMP)}, 7, {v(VN)}", f"v_lshl_add_u32 {v(VH)}, {v(TMP)}, 5, {v(VH)}",
          f"v_add_u32 {v(VH)}, {MIMG}, {v(VH)}")
    else:
        PXO, PMO = HT + 40, HT + 41
        A(f"v_lshrrev_b32 {v(TMP2)}, 3, {v(VL)}", f"v_mul_u32_u24 {v(VH)}, {RS}, {v(TMP2)}", f"v_and_b32 {v(TMP)}, 7, {v(VL)}",
          f"v_lshl_add_u32 {v(VX)}, {v(TMP)}, 4, {v(VH)}", f"v_add_u32 {v(VX)}, {XIMG}, {v(VX)}",
          f"v_lshl_add_u32 {v(VH)}, {v(TMP)}, 2, {v(VH)}", f"v_add_u32 {v(VH)}, {XIMG + 128}, {v(VH)}")
        A(f"v_and_b32 {v(TMP)}, 3, {v(VL)}", f"v_lshlrev_b32 {v(PXO)}, 3, {v(TMP)}", f"v_lshl_add_u32 {v(PXO)}, {v(TMP2)}, 5, {v(PXO)}",
          f"v_bfe_u32 {v(TMP)}, {v(VL)}, 2, 1", f"v_lshl_add_u32 {v(PXO)}, {v(TMP)}, 8, {v(PXO)}",
          f"s_lshl_b32 {s(S_TMP)}, {s(S_ROLE)}, 9", f"v_add_u32 {v(PXO)}, {s(S_TMP)}, {v(PXO)}")
        A(f"v_lshlrev_b32 {v(PMO)}, 5, {v(TMP2)}",
          f"v_bfe_u32 {v(TMP)}, {v(VL)}, 2, 1", f"v_lshl_add_u32 {v(PMO)}, {v(TMP)}, 8, {v(PMO)}",
          f"v_bfe_u32 {v(TMP)}, {v(VL)}, 1, 1", f"v_lshl_add_u32 {v(PMO)}, {v(TMP)}, 3, {v(PMO)}",
          f"s_lshr_b32 {s(S_TMP)}, {s(S_ROLE)}, 2", f"s_lshl_b32 {s(S_TMP)}, {s(S_TMP)}, 9",
          f"s_and_b32 {s(S_TMP2)}, {s(S_ROLE)}, 1", f"s_lshl_b32 {s(S_TMP2)}, {s(S_TMP2)}, 4", f"s_add_u32 {s(S_TMP)}, {s(S_TMP)}, {s(S_TMP2)}",
          f"s_bfe_u32 {s(S_TMP2)}, {s(S_ROLE)}, 0x10001", f"s_lshl_b32 {s(S_TMP2)}, {s(S_TMP2)}, 2", f"s_add_u32 {s(S_TMP)}, {s(S_TMP)}, {s(S_TMP2)}",
          f"s_add_u32 {s(S_TMP)}, {s(S_TMP)}, 8192", f"v_add_u32 {v(PMO)}, {s(S_TMP)}, {v(PMO)}")
        A(f"v_and_b32 {v(TMP)}, 1, {v(VL)}", f"v_lshl_add_u32 {v(PMO)}, {v(TMP)}, 30, {v(PMO)}")
    if w == APW:
        A(f"v_min_u32 {v(TMP2)}, 27, {v(VL)}", f"v_lshlrev_b32 {v(TMP2)}, 2, {v(TMP2)}", f"s_lshr_b32 {s(S_TMP)}, {s(S_ROLE)}, 2", f"s_lshl_b32 {s(S_TMP)}, {s(S_TMP)}, 8", f"s_add_u32 {s(S_TMP)}, {s(S_TMP)}, {F1OFF}", f"v_add_u32 {v(TMP2)}, {s(S_TMP)}, {v(TMP2)}")
    if w == 3:
        A(f"v_lshlrev_b32 {v(TMP2)}, 7, {v(VL)}", f"s_lshl_b32 {s(S_TMP)}, {s(S_ROLE)}, 2", f"s_add_u32 {s(S_TMP)}, {s(S_TMP)}, {F2OFF}", f"v_add_u32 {v(TMP2)}, {s(S_TMP)}, {v(TMP2)}",
          f"v_cmp_lt_u32 vcc, 13, {v(VL)}", f"v_mov_b32 {v(TMP)}, 0x40000000", "s_nop 0", f"v_cndmask_b32 {v(TMP2)}, {v(TMP2)}, {v(TMP)}, vcc")
    if FULL: prep.wait_counters(A, s(S_ROLE), 1, abort, "A", S_TO, 4, 5)
    A(f"v_lshlrev_b32 {v(TMP)}, 4, {v(VL)}")
    A(f"s_mul_i32 {s(S_TMP)}, {s(S_ROLE)}, {28*14336}", f"s_add_u32 {s(S_TMP)}, {s(S_TMP)}, {WA_OFF + 7*w*14336}")
    for cb in range(7):
        for p in range(7):
            f = cb*7 + p
            off = cb*14336 + ko[p]*2048
            A(f"s_add_u32 {s(S_TMP2)}, {s(S_TMP)}, {off}")
            for hi in range(2):
                A(f"buffer_load_dwordx4 {wreg(f,4,4*hi)}, {v(TMP)}, {s(WS,4)}, {s(S_TMP2)} offen offset:{1024*hi}{WFL}")
        if cb >= 2: A("s_waitcnt vmcnt(28)")
    A(f"s_mov_b32 {s(S_STEP)}, 0", f"s_mov_b32 {s(S_MEM)}, {MEMF_OFF:#x}", f"s_mov_b32 {s(S_MEM2)}, {MEMF_OFF+4096:#x}",
      f"s_mov_b32 {s(S_P)}, {PF_OFF:#x}", f"s_mov_b32 {s(S_X)}, {XS_OFF + 14336*(w%2):#x}", f"s_mov_b32 {s(S_TO)}, {TIMEOUT}")
    Lstep = A.label(f"A{w}step"); Lpoll = A.label(f"A{w}poll")
    def cv_wait(ahead):
        Lc, Lg = A.label("cvp"), A.label("cvg")
        A(f"s_add_u32 {s(S_TMP2)}, {s(S_P)}, {16384*ahead + FROFF}", f"v_cmp_ne_u32 vcc, 15, {v(TMP2)}", f"s_cbranch_vccz {Lg}")
        A(f"{Lc}:", f"buffer_load_dword {v(TMP2)}, off, {s(WS,4)}, {s(S_TMP2)} sc1", "s_waitcnt vmcnt(0)", f"v_cmp_ne_u32 vcc, 15, {v(TMP2)}", f"s_cbranch_vccz {Lg}", "s_sleep 1")
        timeout_step(A, Lc, abort)
        A(f"{Lg}:", f"s_add_u32 {s(S_TMP2)}, {s(S_TMP2)}, 16384", f"buffer_load_dword {v(TMP2)}, off, {s(WS,4)}, {s(S_TMP2)} sc1")
    if FULL: prep.wait_counters(A, 0, 32, abort, "A", S_TO, 4, 5)
    if w == 3: read_mode(A, 4)
    if FULL:
        if w < 2:
            A(f"v_mov_b32 {v(TMP2)}, 0")
            cv_wait(0)
    if w == 3:
        A(f"v_lshlrev_b32 {v(HT+43)}, 7, {v(VL)}", f"s_lshl_b32 {s(S_VOX)}, {s(S_ROLE)}, 13", f"s_add_u32 {s(S_VOX)}, {s(S_VOX)}, {VOX_OFF + 458752*TAHEAD + 65536*PF_VOX:#x}",
          f"s_cmp_lt_u32 {s(S_ROLE)}, {max(0, 56 - 8*PF_VOX - 16*(ATOUCH-1))}", f"s_cselect_b32 s59, {131072*max(0, ATOUCH-1)}, 0x40000000")
        A(f"s_cmp_lt_u32 {s(S_ROLE)}, 7", f"s_cselect_b32 s61, {ALT:#x}, 0x40000000", f"s_min_u32 {s(S_TMP)}, {s(S_ROLE)}, 6",
          f"s_lshl_b32 {s(S_TMP)}, {s(S_TMP)}, 10", f"v_add_u32 {v(HT+47)}, {s(S_TMP)}, {v(VMEM)}")
    if w < 2:
        for j in range(XPRE):
            if j % 4 == 0: A(f"s_add_u32 {s(S_TMP)}, {s(S_X)}, {1024*j}")
            A(f"buffer_load_dwordx4 {v(HT+4*j,4)}, {v(VH)}, {s(WS,4)}, {s(S_TMP)} offen offset:{1024*(j%4)} sc1")
    A(f"s_mov_b32 {s(S_PROF+16)}, 0")
    if STAMP: A("s_mov_b32 s58, 0")
    if STAMP and w == 3: A("s_waitcnt vmcnt(0)", "s_memrealtime s[50:51]", "s_memtime s[54:55]")
    if TLM: A("s_waitcnt vmcnt(0)", "s_memrealtime s[92:93]")
    for r in range(28): A(f"v_mov_b32 {v(ACC+r)}, 0")
    if w == 3: A("s_mov_b32 s60, 0x40000000" if FULL else f"s_mov_b32 s60, {s(S_VOX)}")
    A(f"{Lstep}:")
    prof(A, 0, profile)
    Ljoin, Lfail = A.label("join"), A.label("fail")
    nd = 2 if w < 3 else 1
    def issue():
        o = [memload(MEMR, VMEM, ko[0])] + nops(PG1) + [memload(MEMR + 4, VMEM, ko[1])] + nops(PG2)
        for p in range(nd):
            kb = ko[p]
            o += [f"s_mov_b32 m0, {MIMG + (kb - kb % 4)*1024}", "s_nop 0", f"buffer_load_dwordx4 {v(VMEM)}, {s(WS,4)}, {s(S_MEM if kb < 4 else S_MEM2)} offen offset:{(kb%4)*1024} sc1 lds"]
        return o
    B0 = B0S
    rdm = lambda p: f"ds_read_b128 {v(MEMR+4*p,4)}, {v(VMEM)} offset:{MIMG + ko[p]*1024}"
    xsl = []
    xld = lambda j: f"buffer_load_dwordx4 {v(HT+4*j,4)}, {v(VH)}, {s(WS,4)}, {s(S_TMP)} offen offset:{1024*(j%4)} sc1"
    if w < 2 and not X_NODMA:
        nin = 14 - XPRE
        for jj in range(nin):
            j = XPRE + jj
            sl = XS0 + (jj*XSN)//nin
            if j % 4 == 0 or jj == 0: xsl.append((sl, f"s_add_u32 {s(S_TMP)}, {s(S_X)}, {1024*(j - j % 4)}"))
            xsl.append((sl, xld(j)))
    horder = [(0, 0), (1, 0), (2, 0), (0, 1), (1, 1), (2, 1), (3, 0), (3, 1)] + [(cb, 0) for cb in (4, 5, 6)] + [(cb, 1) for cb in (4, 5, 6)]
    A(issue())
    A(f"{Lpoll}:")
    if profile: A(f"s_add_u32 {s(S_PROF+16)}, {s(S_PROF+16)}, 256")
    A(f"s_waitcnt vmcnt({1 + nd})")
    prof(A, 1, profile)
    hs = mkslots([smf(ACC+4*cb, MEMR + 4*p, wreg(cb*7+p), IDX) for cb, p in horder])
    c0, c1 = chk4(TMP, MEMR), chk4(TMP, MEMR + 4, False)
    hs[0]['valu'].append(c0[0]); hs[1]['valu'].append(c0[1]); hs[2]['pre'].append(f"s_waitcnt vmcnt({nd})")
    hs[2]['valu'].append(c1[0]); hs[3]['valu'].append(c1[1]); hs[4]['valu'].append(f"v_cmp_eq_u32 vcc, -1, {v(TMP)}")
    hs[6]['pre'].append(f"s_cbranch_vccnz {Lfail}")
    hs[B0]['pre'] += ["s_waitcnt vmcnt(0)", "s_barrier", rdm(2)]
    for p in range(3, 7): hs[min(13, B0 + p - 2)]['pre'].append(rdm(p))
    hs[13]['pre'].append("s_waitcnt lgkmcnt(4)")
    for sl, o in xsl:
        if sl < 14: hs[sl]['pre'].append(o)
    if profile and PMASK & 4 and not FSD: hs[13]['pre'].append(f"s_memtime {s(S_PROF+4,2)}")
    if profile and FSD:
        for k in range(5):
            if FS0 + k*FSD < 14: hs[FS0 + k*FSD]['pre'].insert(0, f"s_memtime {s(S_PROF+4+2*k,2)}")
    emit_slots(A, hs)
    A(f"{Ljoin}:")
    order = [(cb, p) for p in range(2) for cb in range(7)] + [(cb, p) for cb in range(7) for p in range(2, 7)]
    slots = mkslots([smf(ACC+4*cb, MEMR+4*p, wreg(cb*7+p), IDX) for cb, p in order])
    for p in range(3, 7): slots[14 + p - 3]['pre'].append(f"s_waitcnt lgkmcnt({6-p})")
    for sl, o in xsl:
        if sl >= 14: slots[sl]['pre'].append(o)
    if w == 2:
        for j in range(14):
            slots[19 + j]['pre'].append(f"ds_read_b128 {v(HT+4*j,4)}, {v(VH)} offset:{256*(j//2)+16*(j%2)}")
    if w == 3 and FULL and EXW in (6, 7):
        slots[19]['pre'] += [f"ds_read_b128 {v(HT+48,4)}, {v(HT+47)} offset:{MIMG}", f"s_add_u32 s62, {s(S_MEM)}, s61"]
        if EXW == 6: slots[24]['pre'] += ["s_waitcnt lgkmcnt(1)", f"buffer_store_dwordx4 {v(HT+48,4)}, {v(HT+47)}, {s(WS,4)}, s62 offen sc1"]
    if w == 3 and ATOUCH:
        for i in range(ATOUCH):
            slots[TCH0 + 2*i]['pre'] += [f"s_add_u32 {s(S_TMP)}, s60, {'s59' if i == ATOUCH - 1 else 131072*i}", f"buffer_load_dword {v(HT+52+i)}, {v(HT+43)}, {s(WS,4)}, {s(S_TMP)} offen sc1"]
    def conv(cb):
        r = ACC + 4*cb
        return [f"v_add_f32 {v(r)}, {v(r)}, {v(r+1)}", f"v_add_f32 {v(r+2)}, {v(r+2)}, {v(r+3)}",
                f"v_cvt_pk_bf16_f32 {v(r)}, {v(r)}, {v(r+2)}", f"ds_write_b32 {v(VTW)}, {v(r)} offset:{256*cb}"]
    for cb in range(6):
        st = 14 + 5*cb + 4 + 2
        for i, o in enumerate(conv(cb)): slots[st+i]['valu'].append(o)
    SACC = ACC
    if w < 3:
        for r in range(4): slots[24 + 5*r]['valu'].append(f"v_mov_b32 {v(SACC+3-r)}, 0")
    TF = lambda k: MEMR + 4*k if k < 2 else ACC + 4*(k-1)
    def trread(k):
        return [f"ds_read_b64_tr_b16 {v(TF(k)+2*u,2)}, {v(VTR)} offset:{256*k + TW*u}" for u in range(2)]
    slots[B1S]['pre'] += [f"s_waitcnt lgkmcnt({1 if B1S > 38 else 0})", "s_barrier"]
    slots[B2S]['pre'] += ["s_waitcnt lgkmcnt(0)", "s_barrier"]
    if w < 3:
        rs = [r for k in range(3) for r in trread(k)]
        for i, r in enumerate(rs): slots[B1S + 1 + (i*TRN)//6]['pre'].append(r)
        slots[48]['pre'] += trread(3)
    if profile and FSD:
        for k in range(5):
            if 14 <= FS0 + k*FSD < 49: slots[FS0 + k*FSD]['pre'].insert(0, f"s_memtime {s(S_PROF+4+2*k,2)}")
    elif profile:
        for st, sl in ((3, 27), (4, 48)):
            if (PMASK >> st) & 1: slots[sl]['pre'].append(f"s_memtime {s(S_PROF+2*st,2)}")
    emit_slots(A, slots[14:])
    c6 = conv(6)
    if w < 3:
        sm = [smf(SACC, TF(k), v(HT+8*k, 8), IDX, True) for k in range(7)]
        vw = (lambda n: f"s_waitcnt vmcnt({n})") if w < 2 else (lambda n: "")
        A(vw(10), sm[0], trread(4), "s_nop 1", c6[0], c6[1], c6[2], c6[3], sm[1], vw(8), sm[2], "s_waitcnt lgkmcnt(4)", vw(6), sm[3], "s_waitcnt lgkmcnt(1)", vw(4), sm[4])
        A("s_waitcnt lgkmcnt(0)", "s_barrier")
        prof(A, 5, profile)
        for k in range(5, 7): A(trread(k))
        A(vw(0))
        for k in range(5, 7):
            A(f"s_waitcnt lgkmcnt({2*(6-k)})", sm[k])
        A("s_nop 7")
        A(f"ds_write2st64_b32 {v(VX)}, {v(SACC)}, {v(SACC+1)} offset0:0 offset1:1",
          f"ds_write2st64_b32 {v(VX)}, {v(SACC+2)}, {v(SACC+3)} offset0:2 offset1:3", "s_waitcnt lgkmcnt(0)", "s_barrier")
        prof(A, 6, profile)
        prof(A, 7, profile)
    else:
        A("s_nop 6", c6)
        A("s_waitcnt lgkmcnt(0)", "s_barrier")
        prof(A, 5, profile)
        if FULL and EXW == 7: A(f"buffer_store_dwordx4 {v(HT+48,4)}, {v(HT+47)}, {s(WS,4)}, s62 offen sc1")
        A(f"s_add_u32 s63, {s(S_P)}, {s(S_SLOW)}", "s_xor_b32 s64, s63, 0x40000000", nops(F2D - 2), f"buffer_store_dword {v(IDX)}, {v(TMP2)}, {s(WS,4)}, s64 offen")
        A("s_barrier")
        X0 = HT; XM = HT+4; MX, L = HT+8, HT+9; N0 = HT+12
        Lslow, Lnorm = A.label("slow"), A.label("norm")
        Y0 = HT + 20; RAW = HT + 28
        A(f"ds_read_b128 {v(X0,4)}, {v(VX)}", f"ds_read_b128 {v(Y0,4)}, {v(VX)} offset:2048", f"ds_read2st64_b32 {v(Y0+4,2)}, {v(VH)} offset0:0 offset1:8")
        prof(A, 6, profile)
        A("s_waitcnt lgkmcnt(1)")
        for j in range(4): A(f"v_add_f32 {v(RAW+j)}, {v(X0+j)}, {v(Y0+j)}")
        A("s_waitcnt lgkmcnt(0)", f"v_add_f32 {v(RAW+4)}, {v(Y0+4)}, {v(Y0+5)}")
        for j in range(5): A(f"v_exp_f32 {v(X0+j)}, {v(RAW+j)}")
        dpps = ["quad_perm:[1,0,3,2]", "quad_perm:[2,3,0,1]", "row_half_mirror"]
        def norm_store(check):
            A(f"v_add_f32 {v(L)}, {v(X0)}, {v(X0+1)}", f"v_add_f32 {v(MX)}, {v(X0+2)}, {v(X0+3)}",
              f"v_add_f32 {v(L)}, {v(L)}, {v(MX)}", f"v_add_f32 {v(L)}, {v(L)}, {v(XM)}")
            for d in dpps: A("s_nop 1", f"v_add_f32_dpp {v(L)}, {v(L)}, {v(L)} {d} row_mask:0xf bank_mask:0xf")
            A(f"v_rcp_f32 {v(N0+5)}, {v(L)}")
            if check: A(f"v_subrev_u32 {v(MX)}, 0x21800000, {v(L)}", f"v_cmp_lt_u32 vcc, 0x3c000000, {v(MX)}")
            else: A("s_nop 0")
            R = N0 + 5
            A(f"v_mul_f32_e64 {v(X0)}, {v(X0)}, {v(R)} clamp", f"v_mul_f32 {v(X0+1)}, {v(X0+1)}, {v(R)}",
              f"v_mul_f32_e64 {v(X0+2)}, {v(X0+2)}, {v(R)} clamp", f"v_mul_f32 {v(X0+3)}, {v(X0+3)}, {v(R)}",
              f"v_cvt_pk_bf16_f32 {v(N0)}, {v(X0)}, {v(X0+1)}", f"v_cvt_pk_bf16_f32 {v(N0+1)}, {v(X0+2)}, {v(X0+3)}",
              f"v_mul_f32_dpp {v(N0+3)}, {v(XM)}, {v(R)} quad_perm:[1,0,3,2] row_mask:0xf bank_mask:0xf")
            if check: A(f"s_cbranch_vccnz {Lslow}")
            A(f"v_mul_f32_e64 {v(XM)}, {v(XM)}, {v(R)} clamp",
              f"buffer_store_dwordx2 {v(N0,2)}, {v(PXO)}, {s(WS,4)}, s64 offen",
              f"v_cvt_pk_bf16_f32 {v(N0+2)}, {v(XM)}, {v(N0+3)}",
              f"buffer_store_dword {v(N0+2)}, {v(PMO)}, {s(WS,4)}, s64 offen")
        norm_store(True)
        A(f"{Lnorm}:")
        A(f"buffer_store_dwordx2 {v(N0,2)}, {v(PXO)}, {s(WS,4)}, s63 offen sc1", f"buffer_store_dword {v(N0+2)}, {v(PMO)}, {s(WS,4)}, s63 offen sc1",
          f"buffer_store_dword {v(IDX)}, {v(TMP2)}, {s(WS,4)}, s63 offen sc1")
        prof(A, 7, profile)
    if profile and PACCUM: prof_acc(A, 8)
    elif profile:
        prof_flush(A, 9, TMP, MEMR, 0)
        A(f"s_mov_b32 {s(S_PROF+16)}, 0")
    A("s_barrier")
    for r in range(28): A(f"v_mov_b32 {v(ACC+r)}, 0")
    if XPRE:
        if w < 2:
            if FULL: cv_wait(1)
            for j in range(XPRE):
                if j % 4 == 0: A(f"s_add_u32 {s(S_TMP)}, {s(S_X)}, {28672 + 1024*j}")
                A(xld(j), nops(XPG))
    if w == 3:
        A(f"s_add_u32 s60, {s(S_VOX)}, 458752")
        if FULL:
            A(f"s_add_u32 {s(S_TMP)}, {s(S_P)}, {16384*(TAHEAD+1) + FROFF}", f"buffer_load_dword {v(TMP)}, off, {s(WS,4)}, {s(S_TMP)} sc1", "s_waitcnt vmcnt(0)",
              f"v_readfirstlane_b32 {s(S_TMP)}, {v(TMP)}", f"s_cmp_eq_u32 {s(S_TMP)}, 15", "s_cselect_b32 s60, s60, 0x40000000")
        if FULL and EXW == 5:
            A(f"ds_read_b128 {v(HT+48,4)}, {v(HT+47)} offset:{MIMG}", f"s_add_u32 {s(S_TMP)}, {s(S_MEM)}, s61", "s_waitcnt lgkmcnt(0)",
              f"buffer_store_dwordx4 {v(HT+48,4)}, {v(HT+47)}, {s(WS,4)}, {s(S_TMP)} offen sc1")
    if w == APW:
        if TGATE != 1: flag_poll(A, list(range(8, 8 + FPD)), TMP2, S_P, 0, abort, "A")
        A(nops(D1))
    A("s_barrier")
    if TLM:
        Lt = A.label("tl")
        A(f"s_lshl_b32 {s(S_TMP)}, {s(S_ROLE)}, 2", f"s_add_u32 {s(S_TMP)}, {s(S_TMP)}, {w}", f"s_cmp_lg_u32 {s(S_STEP)}, {s(S_TMP)}", f"s_cbranch_scc1 {Lt}", "s_memrealtime s[94:95]", f"{Lt}:")
    A(f"s_add_u32 {s(S_MEM)}, {s(S_MEM)}, 8192", f"s_add_u32 {s(S_MEM2)}, {s(S_MEM2)}, 8192", f"s_add_u32 {s(S_P)}, {s(S_P)}, 16384",
      f"s_add_u32 {s(S_X)}, {s(S_X)}, {32*896}", f"s_add_u32 {s(S_VOX)}, {s(S_VOX)}, 458752",
      f"s_add_u32 {s(S_STEP)}, {s(S_STEP)}, 1", f"s_cmp_lt_u32 {s(S_STEP)}, {NSTEPS}", f"s_cbranch_scc1 {Lstep}")
    if profile and PACCUM: prof_acc_out(A, 8)
    if STAMP: A("v_mov_b32 v0, s58", "s_mov_b64 exec, 1", f"buffer_atomic_add v0, off, {s(DBG,4)}, 0 offset:52", "s_mov_b64 exec, -1")
    if STAMP and w == 3:
        A("s_memrealtime s[52:53]", "s_memtime s[56:57]", "s_waitcnt lgkmcnt(0)", "s_sub_u32 s52, s52, s50", "s_sub_u32 s56, s56, s54", "v_mov_b32 v0, s52", "v_mov_b32 v1, s56",
          f"s_lshl_b32 {s(S_TMP)}, {s(S_ROLE)}, 3", f"buffer_store_dwordx2 v[0:1], off, {s(DBG,4)}, {s(S_TMP)} offset:{248 if FULL else 64}")
    A("s_endpgm")
    A(f"{Lfail}:", issue(), f"s_sub_u32 {s(S_TO)}, {s(S_TO)}, 1", f"s_cbranch_scc1 {abort}")
    if STAMP: A(f"s_add_u32 s58, s58, 1")
    for r in range(16): A(f"v_mov_b32 {v(ACC+r)}, 0")
    A(f"s_branch {Lpoll}")
    if w == 3:
        A(f"{Lslow}:")
        A(f"v_max3_f32 {v(MX)}, {v(RAW)}, {v(RAW+1)}, {v(RAW+2)}", f"v_max3_f32 {v(MX)}, {v(MX)}, {v(RAW+3)}, {v(RAW+4)}")
        for d in dpps: A("s_nop 1", f"v_max_f32_dpp {v(MX)}, {v(MX)}, {v(MX)} {d} row_mask:0xf bank_mask:0xf")
        for j in range(5): A(f"v_sub_f32 {v(X0+j)}, {v(RAW+j)}, {v(MX)}")
        for j in range(5): A(f"v_exp_f32 {v(X0+j)}, {v(X0+j)}")
        A("s_nop 0")
        norm_store(False)
        A(f"s_branch {Lnorm}")

BW7 = 0
BMIMG = 57344
BVIMG = 65536
DB = 55

def role_B(A, w, abort, profile=False):
    import prep
    WFL = [' sc1', '', ' nt', ' sc1 nt'][WFI]
    pv = w < 2
    c, M = w % 2, w // 2
    NR = 6 if pv else 8
    WV0 = 256 - 8*(7*NR - 32)
    wrg = lambda f, n=8, sub=0: a_(8*f + sub, n) if f < 32 else v(WV0 + 8*(f-32) + sub, n)
    MEMR, ACC, VP = 0, 40, 48
    IDX, VL16, TMP, TMP2, VLV, VF2 = range(56, 62)
    if pv:
        VP2, VOX, SB, AC7, PACC, VST, R0 = 64, 72, 136, 152, 160, 164, 165
        assert 166 <= WV0
    VG, VN, VL = 1, 2, 3
    own = [2*w, 2*w+1] if w < 3 else [6]
    lane_consts(A, VL, VG, VN)
    idx_const(A, IDX, VN, TMP)
    A(f"v_lshlrev_b32 {v(VL16)}, 4, {v(VL)}", f"v_add_u32 {v(VLV)}, {BVIMG + 2048*c}, {v(VL16)}")
    A(f"s_sub_u32 {s(S_TMP)}, {s(S_ROLE)}, 16")
    if pv:
        A(f"v_lshlrev_b32 {v(VF2)}, 2, {v(VN)}", f"s_lshl_b32 {s(S_TMP2)}, {s(S_TMP)}, 7", f"s_add_u32 {s(S_TMP2)}, {s(S_TMP2)}, {F2OFF - 8192}", f"v_add_u32 {v(VF2)}, {s(S_TMP2)}, {v(VF2)}")
        VF1 = 166
        A(f"v_lshlrev_b32 {v(VF1)}, 8, {v(VL)}", f"s_lshl_b32 {s(S_TMP2)}, {s(S_TMP)}, 3", f"s_add_u32 {s(S_TMP2)}, {s(S_TMP2)}, {F1OFF - 8192 + 4*c}", f"v_add_u32 {v(VF1)}, {s(S_TMP2)}, {v(VF1)}",
          f"v_cmp_lt_u32 vcc, 3, {v(VL)}", f"v_mov_b32 {v(TMP)}, 0x40000000", "s_nop 0", f"v_cndmask_b32 {v(VF1)}, {v(VF1)}, {v(TMP)}, vcc")
        A(f"v_lshlrev_b32 {v(VST)}, 6, {v(VG)}", f"v_and_b32 {v(TMP)}, 1, {v(VN)}", f"v_lshl_add_u32 {v(VST)}, {v(TMP)}, 5, {v(VST)}",
          f"v_bfe_u32 {v(TMP)}, {v(VN)}, 1, 1", f"v_lshl_add_u32 {v(VST)}, {v(TMP)}, 4, {v(VST)}", f"v_lshrrev_b32 {v(TMP)}, 2, {v(VN)}", f"v_lshl_add_u32 {v(VST)}, {v(TMP)}, 2, {v(VST)}")
    A(f"s_mul_i32 {s(S_VOX)}, {s(S_TMP)}, {2*16*1024}",
      f"s_lshl_b32 {s(S_MEMN)}, {s(S_TMP)}, 9", f"s_add_u32 {s(S_MEMN)}, {s(S_MEMN)}, {MEMF_OFF + 8192 + 256*c:#x}",
      f"s_mul_i32 {s(S_TMP)}, {s(S_TMP)}, {2*14336}", f"s_add_u32 {s(S_TMP)}, {s(S_TMP)}, {WB_OFF + (8*M*28 + c)*14336:#x}",
      f"s_add_u32 {s(S_VOX)}, {s(S_VOX)}, {VOX_OFF + 16384*c:#x}")
    if FULL: prep.wait_counters(A, 16, 16, abort, "B", S_TO, 4, 5)
    stg = [4, 64]
    if pv:
        for u in (6, 7):
            for kb in range(7):
                A(f"s_add_u32 {s(S_TMP2)}, {s(S_TMP)}, {u*28*14336 + kb*2048}")
                for hi in range(2):
                    d = v(64+8*kb+4*hi,4) if u == 6 else a_(200+8*kb+4*hi,4)
                    A(f"buffer_load_dwordx4 {d}, {v(VL16)}, {s(WS,4)}, {s(S_TMP2)} offen offset:{1024*hi}{WFL}")
    for u in range(NR):
        for kb in range(7):
            f = u*7 + kb
            A(f"s_add_u32 {s(S_TMP2)}, {s(S_TMP)}, {u*28*14336 + kb*2048}")
            for hi in range(2):
                A(f"buffer_load_dwordx4 {wrg(f,4,4*hi)}, {v(VL16)}, {s(WS,4)}, {s(S_TMP2)} offen offset:{1024*hi}{WFL}")
        if u >= 2 or pv: A("s_waitcnt vmcnt(28)")
        if pv and u == 1:
            for j in range(14): A(f"ds_write_b128 {v(VL16)}, {v(64+4*j,4)} offset:{BW7 + 2*w*14336 + j*1024}")
            for j in range(14): A(f"ds_write_b128 {v(VL16)}, {a_(200+4*j,4)} offset:{BW7 + (2*w+1)*14336 + j*1024}")
            A("s_waitcnt lgkmcnt(0)")
    if FULL: prep.wait_counters(A, 0, 32, abort, "B", S_TO, 4, 5)
    if pv: read_mode(A, 4)
    A(f"s_mov_b32 {s(S_STEP)}, 0", f"s_mov_b32 {s(S_MEM)}, {MEMF_OFF:#x}", f"s_mov_b32 {s(S_MEM2)}, {MEMF_OFF+4096:#x}",
      f"s_mov_b32 {s(S_P)}, {PF_OFF:#x}", f"s_mov_b32 {s(S_X)}, {PF_OFF + 4096:#x}", f"s_mov_b32 {s(S_P2)}, {PF_OFF + 8192:#x}", f"s_mov_b32 {s(S_TO)}, {TIMEOUT}")
    S_EM, S_FR, S_ODD = 64, 65, 66
    A(f"s_mov_b32 {s(S_FR)}, {PF_OFF + FROFF:#x}", f"s_mov_b32 {s(S_ODD)}, 0xaaaaaaaa", f"s_mov_b32 {s(S_ODD+1)}, 0xaaaaaaaa")
    A("s_waitcnt vmcnt(0) lgkmcnt(0)")
    if TLM: A("s_memrealtime s[92:93]")
    A(f"s_mov_b32 {s(S_PROF+10)}, 0")
    if STAMP: A("s_mov_b32 s58, 0", "s_mov_b32 s59, 0")
    if STAMP and w == 0: A("s_memtime s[54:55]")
    Lstep, Lpoll, Lok2 = [A.label(f"B{w}{x}") for x in ("step", "poll", "ok2")]
    mreg = lambda kb: MEMR + 4*kb
    mld = lambda kb: memload(mreg(kb), VL16, kb)
    if pv:
        voxld = lambda hh: f"buffer_load_dwordx4 {v(VOX + 4*hh, 4)}, {v(VL16)}, {s(WS,4)}, {s(S_TMP)} offen offset:{1024*(hh%4)} sc1"
        def voxpre(add):
            for hh in range(VPRE):
                if hh % 4 == 0: A(f"s_add_u32 {s(S_TMP)}, {s(S_VOX)}, {add + 1024*hh}")
                A(voxld(hh))
        voxpre(0)
        A(f"v_mov_b32 {v(TMP2)}, 0")
    else:
        A(f"v_lshlrev_b32 {v(VF2)}, 3, {v(VL16)}")
        A(f"s_sub_u32 {s(S_TMP)}, {s(S_ROLE)}, 16", f"s_cmp_lt_u32 {s(S_TMP)}, 7", f"s_cselect_b32 s70, {ALT:#x}, 0x40000000", f"s_min_u32 {s(S_TMP)}, {s(S_TMP)}, 6",
          f"s_lshl_b32 {s(S_TMP)}, {s(S_TMP)}, 10", f"v_add_u32 {v(32)}, {s(S_TMP)}, {v(VL16)}")
    A(f"{Lstep}:")
    A(f"{Lpoll}:")
    for kb in own:
        A(f"s_mov_b32 m0, {BMIMG + (kb - kb % 4)*1024}", "s_nop 0", f"buffer_load_dwordx4 {v(VL16)}, {s(WS,4)}, {s(S_MEM if kb < 4 else S_MEM2)} offen offset:{(kb%4)*1024} sc1 lds")
    for r in range(8): A(f"v_mov_b32 {v(ACC+r)}, 0")
    if pv:
        for j in range(8): A(f"v_mov_b32 {v(AC7+j)}, 0")
        for n in range(2):
            for hi in range(2): A(f"ds_read_b128 {v(SB + 8*n + 4*hi, 4)}, {v(VL16)} offset:{BW7 + (2*w + n)*14336 + hi*1024}")
        if FULL:
            Lc, Lg = A.label("bcv"), A.label("bcg")
            A(f"v_cmp_ne_u32 vcc, 15, {v(TMP2)}", f"s_cbranch_vccz {Lg}")
            A(f"{Lc}:", f"buffer_load_dword {v(TMP2)}, off, {s(WS,4)}, {s(S_FR)} sc1", "s_waitcnt vmcnt(0)", f"v_cmp_ne_u32 vcc, 15, {v(TMP2)}", f"s_cbranch_vccz {Lg}", "s_sleep 1")
            timeout_step(A, Lc, abort)
            A(f"{Lg}:")
    A("s_waitcnt vmcnt(0)", "s_barrier")
    if PACCUM: prof(A, 6, profile)
    korder = list(range(7))
    for kb in korder: A(f"ds_read_b128 {v(mreg(kb),4)}, {v(VL16)} offset:{BMIMG + kb*1024}")
    if not PB2: prof(A, 1, profile)
    cv = lambda r, u: [f"v_add_f32 {v(r)}, {v(r)}, {v(r+1)}", f"v_add_f32 {v(r+2)}, {v(r+2)}, {v(r+3)}", f"v_cvt_pk_bf16_f32 {v(VP+u)}, {v(r)}, {v(r+2)}"]
    ms, ustart = [], []
    if pv:
        reg = [(u, kb) for u in range(6) for kb in korder]
        stq = [(u, kb) for kb in korder for u in (6, 7)]
        seq = []
        for i, x in enumerate(reg):
            seq.append(x)
            if i % 3 == 2: seq.append(stq[i // 3])
    else:
        seq = [(u, kb) for u in range(8) for kb in korder]
    nst = 0
    for (u, kb) in seq:
        if u < NR: ms.append(smf(ACC + 4*(u % 2), mreg(kb), wrg(u*7+kb), IDX))
        else:
            ms.append(smf(AC7 + 4*(u-6), mreg(kb), v(SB + 8*(nst % 2), 8), IDX)); nst += 1
    slots = mkslots(ms)
    Lretry, Lcont = A.label("Bretry"), A.label("Bcont")
    last = {u: max(i for i, x in enumerate(seq) if x[0] == u) for u in range(8)}
    first = {u: min(i for i, x in enumerate(seq) if x[0] == u) for u in range(8)}
    tail = []
    for u in range(NR):
        r = ACC + 4*(u % 2)
        ops = cv(r, u) + ([f"v_mov_b32 {v(r+j)}, 0" for j in range(4)] if u + 2 < NR else [])
        st = last[u] + 2
        if st + 3 > len(slots): tail += ops; continue
        lim = first[u+2] - 2 if u + 2 < NR else len(slots) - 1
        for i, o in enumerate(ops): slots[min(st + i, lim)]['valu'].append(o)
    if pv:
        sts = [i for i, x in enumerate(seq) if x[0] >= 6]
        rd = lambda n: [f"ds_read_b128 {v(SB + 8*(n % 2) + 4*hi, 4)}, {v(VL16)} offset:{BW7 + (2*w + seq[sts[n]][0] - 6)*14336 + seq[sts[n]][1]*2048 + hi*1024}" for hi in range(2)]
        for n, i in enumerate(sts):
            if n + 2 < 14: slots[i+1]['pre'] += rd(n+2)
            if n >= 2: slots[i-1]['pre'].append(f"s_waitcnt lgkmcnt({2 if n + 1 < 14 else 0})")
        for hh in range(VPRE, 0 if X_NOVOX else 16):
            sl = 2 + VOXS*(hh - VPRE)
            if hh % 4 == 0: slots[sl]['pre'].append(f"s_add_u32 {s(S_TMP)}, {s(S_VOX)}, {1024*hh}")
            slots[sl]['pre'].append(voxld(hh))
        tail += cv(AC7, 6) + cv(AC7+4, 7)
        if FULL: slots[30]['pre'] += [f"s_add_u32 {s(S_TMP2)}, {s(S_FR)}, 16384", f"buffer_load_dword {v(TMP2)}, off, {s(WS,4)}, {s(S_TMP2)} sc1"]
        FR_ = list(range(28, 28 + FPD))
        for i, r in enumerate(FR_): slots[55 - 3*(FPD - 1 - i)]['pre'].append(flag_ld(r, VF2, S_P2, 0))
        for r in range(4): slots[40 + r]['valu'].append(f"v_mov_b32 {v(PACC+r)}, 0")
    if not pv:
        for i in range(BTOUCH):
            slots[BT0 + 2*i]['pre'] += [f"s_add_u32 {s(S_TMP)}, {s(S_VOX)}, {458752*BTA + 8192*(i + 2 - BTOUCH)}", f"buffer_load_dword {v(62+i)}, {v(VF2)}, {s(WS,4)}, {s(S_TMP)} offen sc1"]
    if FULL and w == EXW:
        A(f"ds_read_b128 {v(28,4)}, {v(32)} offset:{BMIMG}", f"s_add_u32 {s(S_EM)}, {s(S_MEM)}, s70")
        slots[3]['pre'].append(f"buffer_store_dwordx4 {v(28,4)}, {v(32)}, {s(WS,4)}, {s(S_EM)} offen sc1")
    where = [i for i, sl in enumerate(slots) if any(o.startswith(f"v_cvt_pk_bf16_f32 {v(VP)},") for o in sl['valu'])][0]
    slots[where]['valu'].insert(0, f"v_cmp_u_f32 vcc, {v(ACC)}, {v(ACC+2)}")
    slots[where+2]['pre'] += [f"s_cbranch_vccnz {Lretry}", f"{Lcont}:"]
    seen = 0
    A("s_waitcnt lgkmcnt(6)")
    for i, (u, kb) in enumerate(seq[:10]):
        nxt = seq[i+1]
        if nxt[0] == 0 and nxt[1] > seen:
            seen = nxt[1]
            extra = sum(1 for sl in slots[:i+1] for o in sl['pre'] if o.startswith("ds_read"))
            slots[i]['pre'].append(f"s_waitcnt lgkmcnt({6 - seen + extra})")
    if profile and FSD:
        for k in range(5):
            if FS0 + k*FSD < 56: slots[FS0 + k*FSD]['pre'].insert(0, f"s_memtime {s(S_PROF+4+2*k,2)}")
    if X_NOV:
        for sl in slots: sl['m'] = ""
    emit_slots(A, slots)
    if PACCUM: prof(A, 7, profile)
    A("s_nop 7", tail)
    if not pv:
        A(f"ds_write_b128 {v(VLV)}, {v(VP,4)}", f"ds_write_b128 {v(VLV)}, {v(VP+4,4)} offset:1024", "s_waitcnt lgkmcnt(0)")
    A("s_barrier")
    if not PB2: prof(A, 2, profile)
    if not pv:
        A("s_barrier", nops(DB))
    else:
        A(f"ds_read_b128 {v(VP2,4)}, {v(VLV)}", f"ds_read_b128 {v(VP2+4,4)}, {v(VLV)} offset:1024")
        A(f"s_add_u32 s60, {s(S_MEMN)}, {s(S_SLOW)}", f"s_add_u32 s61, {s(S_P2)}, {s(S_SLOW)}", "s_xor_b32 s62, s60, 0x40000000", "s_xor_b32 s63, s61, 0x40000000")
        flag_poll(A, FR_, VF2, S_P2, 0, abort, "B", primed=True)
        if TGATE == 2: A(f"buffer_store_dword {v(IDX)}, {v(VF1)}, {s(WS,4)}, s63 offen")
        A(nops(D2))
        prof(A, 0, profile)
        porder = [(c*4 + i) % 8 for i in range(8)] + [8, 9]
        pld = lambda k: f"buffer_load_dwordx4 {v(4*k,4)}, {v(VL16)}, {s(WS,4)}, {s([S_P, S_X, S_P2][k//4])} offen offset:{1024*(k%4)} sc1"
        bop = lambda k: v(VOX + 8*k, 8) if k < 8 else v(VP if k == 8 else VP2, 8)
        Lpp, Lbad = A.label("pp"), A.label("bad")
        A(f"{Lpp}:")
        if profile and not FSD: A(f"s_add_u32 {s(S_PROF+10)}, {s(S_PROF+10)}, 1")
        for k in porder: A(pld(k))
        A("s_waitcnt lgkmcnt(0)")
        for i, k in enumerate(porder):
            A(f"s_waitcnt vmcnt({9-i})")
            if i == 0: prof(A, 3, profile)
            if i == 9 and PB2: prof(A, 1, profile)
            A(smf(PACC, 4*k, bop(k), IDX))
        Lgood = A.label("good")
        a, b = PACC, PACC+2
        A(f"s_mov_b64 vcc, {s(S_ODD,2)}", "s_nop 6")
        A(f"v_add_f32 {v(a)}, {v(a)}, {v(a+1)}", f"v_add_f32 {v(b)}, {v(b)}, {v(b+1)}", f"v_cmp_u_f32 {s(68,2)}, {v(a)}, {v(b)}",
          f"v_cndmask_b32_dpp {v(b+1)}, {v(a)}, {v(b)}, vcc quad_perm:[1,0,3,2] row_mask:0xf bank_mask:0xf", "s_not_b64 vcc, vcc",
          f"v_cndmask_b32_dpp {v(a+1)}, {v(b)}, {v(a)}, vcc quad_perm:[1,0,3,2] row_mask:0xf bank_mask:0xf",
          f"s_cmp_lg_u64 {s(68,2)}, 0", f"v_cvt_pk_bf16_f32 {v(R0)}, {v(a+1)}, {v(b+1)}", f"s_cbranch_scc1 {Lbad}", f"{Lgood}:",
          f"buffer_store_dword {v(R0)}, {v(VST)}, {s(WS,4)}, s62 offen")
        A(f"buffer_store_dword {v(R0)}, {v(VST)}, {s(WS,4)}, s60 offen sc1", f"buffer_store_dword {v(IDX)}, {v(VF1)}, {s(WS,4)}, s61 offen sc1")
        if FULL:
            Lq = A.label("Bq")
            A(f"s_add_u32 {s(S_EM)}, {s(S_MEMN)}, {ALT:#x}", f"s_cmp_lg_u32 {s(S_STEP)}, {NSTEPS-1}", f"s_cbranch_scc1 {Lq}", f"buffer_store_dword {v(R0)}, {v(VST)}, {s(WS,4)}, {s(S_EM)} offen sc1", f"{Lq}:")
        prof(A, 4, profile)
        A("s_barrier")
        voxpre(458752)
        A(nops(max(0, DB - 4*VPRE)))
    if profile and PACCUM: prof_acc(A, 8)
    elif profile:
        prof_flush(A, 6, TMP, TMP2, 0)
        A(f"s_mov_b32 {s(S_PROF+10)}, 0")
    A(f"s_add_u32 {s(S_MEM)}, {s(S_MEM)}, 8192", f"s_add_u32 {s(S_MEM2)}, {s(S_MEM2)}, 8192", f"s_add_u32 {s(S_MEMN)}, {s(S_MEMN)}, 8192",
      f"s_add_u32 {s(S_P)}, {s(S_P)}, 16384", f"s_add_u32 {s(S_P2)}, {s(S_P2)}, 16384", f"s_add_u32 {s(S_X)}, {s(S_X)}, 16384", f"s_add_u32 {s(S_VOX)}, {s(S_VOX)}, {28*16*1024}",
      f"s_add_u32 {s(S_FR)}, {s(S_FR)}, 16384",
      f"s_add_u32 {s(S_STEP)}, {s(S_STEP)}, 1", f"s_cmp_lt_u32 {s(S_STEP)}, {NSTEPS}", f"s_cbranch_scc1 {Lstep}")
    if profile and PACCUM: prof_acc_out(A, 8)
    if STAMP: A("v_mov_b32 v0, s58", "v_mov_b32 v1, s59", "s_mov_b64 exec, 1", f"buffer_atomic_add v0, off, {s(DBG,4)}, 0 offset:56", f"buffer_atomic_add v1, off, {s(DBG,4)}, 0 offset:48", "s_mov_b64 exec, -1")
    if STAMP and w == 0 and not FULL:
        A("s_memtime s[56:57]", "s_waitcnt lgkmcnt(0)", "s_sub_u32 s56, s56, s54", "v_mov_b32 v1, s56",
          f"s_lshl_b32 {s(S_TMP)}, {s(S_ROLE)}, 2", f"buffer_store_dword v1, off, {s(DBG,4)}, {s(S_TMP)} offset:128")
    A("s_endpgm")
    A(f"{Lretry}:")
    for kb in range(7): A(chk4(TMP, mreg(kb), kb == 0))
    A(f"v_cmp_eq_u32 vcc, -1, {v(TMP)}", f"s_cbranch_vccz {Lcont}", "s_waitcnt lgkmcnt(0)", "s_barrier")
    if STAMP: A("s_add_u32 s58, s58, 1")
    timeout_step(A, Lpoll, abort)
    if pv:
        A(f"{Lbad}:")
        for k in range(10): A(chk4(TMP, 4*k, k == 0))
        A(f"v_min_u32 {v(R0)}, -2, {v(R0)}", f"v_cmp_eq_u32 vcc, -1, {v(TMP)}", f"s_cbranch_vccz {Lgood}")
        if STAMP: A("s_add_u32 s59, s59, 1")
        for r in range(4): A(f"v_mov_b32 {v(PACC+r)}, 0")
        timeout_step(A, Lpp, abort)

def role_PF(A, abort):
    import prep
    WFL = [' sc1', '', ' nt', ' sc1 nt'][WFI]
    AHEAD = PFA
    A("; ---------------- prefetcher")
    if FULL: prep.wait_counters(A, 0, 32, abort, "P", S_TO, 4, 5)
    A("v_and_b32 v3, 63, v0", "v_lshlrev_b32 v1, 7, v3", "v_mov_b32 v2, 0", "v_mov_b32 v12, 0")
    A(f"s_sub_u32 {s(S_TMP2)}, {s(S_ROLE)}, 30", f"s_lshl_b32 {s(S_TMP2)}, {s(S_TMP2)}, 2", f"s_add_u32 {s(S_TMP2)}, {s(S_TMP2)}, {s(S_WAVE)}")
    A(f"s_lshl_b32 {s(S_TMP2)}, {s(S_TMP2)}, 13")
    A(f"s_mov_b32 {s(S_STEP)}, 0", f"s_mov_b32 {s(S_TO)}, {TIMEOUT}")
    if FULL:
        A(f"s_mov_b32 {s(S_P)}, {PF_OFF + FROFF:#x}")
    A(f"s_add_u32 {s(S_X)}, {s(S_TMP2)}, {XS_OFF:#x}", f"s_mov_b32 {s(S_P2)}, 28672")
    L1, L2 = A.label("pf1"), A.label("pf2")
    A(f"s_cmp_lt_u32 {s(S_TMP2)}, {4*8192}", f"s_cbranch_scc1 {L2}")
    A(f"s_mov_b32 {s(S_X)}, {MEMF_OFF + 8192:#x}", f"s_mov_b32 {s(S_P2)}, 8192")
    A(f"s_cmp_eq_u32 {s(S_TMP2)}, {4*8192}", f"s_cbranch_scc1 {L2}")
    A(f"s_and_b32 {s(S_X)}, {s(S_TMP2)}, 8192", f"s_add_u32 {s(S_X)}, {s(S_X)}, {PF_OFF:#x}", f"s_mov_b32 {s(S_P2)}, 16384")
    A(f"{L2}:")
    A(f"s_add_u32 {s(S_VOX)}, {s(S_TMP2)}, {VOX_OFF:#x}", f"s_cmp_eq_u32 {s(S_TMP2)}, {7*8192}",
      f"s_cselect_b32 {s(S_X)}, 0x40000000, {s(S_X)}", f"s_mov_b32 {s(S_MEM)}, {MEMF_OFF - AHEAD*8192:#x}")
    Lstep, Lpoll, Lgo = A.label("pfstep"), A.label("pfpoll"), A.label("pfgo")
    A("v_mov_b32 v4, -1")
    A(f"{Lstep}:", f"s_cmp_lt_u32 {s(S_STEP)}, {AHEAD+1}", f"s_cbranch_scc1 {Lgo}")
    A("v_cmp_eq_u32 vcc, -1, v4", f"s_cbranch_vccz {Lgo}")
    A(f"{Lpoll}:", f"buffer_load_dword v4, v2, {s(WS,4)}, {s(S_MEM)} offen sc1", "s_waitcnt vmcnt(0)", "v_cmp_eq_u32 vcc, -1, v4", f"s_cbranch_vccz {Lgo}", "s_sleep 2")
    timeout_step(A, Lpoll, abort)
    A(f"{Lgo}:")
    if FULL:
        Lc, Lcg = A.label("pfc"), A.label("pfcg")
        A("v_cmp_ne_u32 vcc, 15, v12", f"s_cbranch_vccz {Lcg}")
        A(f"{Lc}:", f"buffer_load_dword v12, off, {s(WS,4)}, {s(S_P)} sc1", "s_waitcnt vmcnt(0)", "v_cmp_ne_u32 vcc, 15, v12", f"s_cbranch_vccz {Lcg}", "s_sleep 2")
        timeout_step(A, Lc, abort)
        A(f"{Lcg}:", f"s_add_u32 {s(S_P)}, {s(S_P)}, 16384", f"buffer_load_dword v12, off, {s(WS,4)}, {s(S_P)} sc1")
    A(f"s_add_u32 {s(S_MEM)}, {s(S_MEM)}, 8192", f"buffer_load_dword v4, v2, {s(WS,4)}, {s(S_MEM)} offen sc1")
    A(f"buffer_load_dword v5, v1, {s(WS,4)}, {s(S_X)} offen sc1")
    for j in range(PF_VOX):
        A(f"s_add_u32 {s(S_TMP)}, {s(S_VOX)}, {65536*j}", f"buffer_load_dword v{6+j}, v1, {s(WS,4)}, {s(S_TMP)} offen sc1")
    A(f"s_add_u32 {s(S_X)}, {s(S_X)}, {s(S_P2)}", f"s_add_u32 {s(S_VOX)}, {s(S_VOX)}, {28*16*1024}",
      f"s_waitcnt vmcnt({1 + PF_VOX})",
      f"s_add_u32 {s(S_STEP)}, {s(S_STEP)}, 1", f"s_cmp_lt_u32 {s(S_STEP)}, {NSTEPS + 1}", f"s_cbranch_scc1 {Lstep}", "s_endpgm")

PF_VOX = 2
def rec_kernel(A, name, profile=False):
    kernel_begin(A, name)
    Lexit = A.label("exit")
    A("s_cmp_ge_u32 s2, 256", f"s_cbranch_scc1 {Lexit}")
    srd(A, WS, 96, 0x10000000); srd(A, XB, 24, 1835008); srd(A, DBG, 88, 256)
    A(f"s_getreg_b32 {s(S_TMP)}, hwreg(HW_REG_XCC_ID)", f"s_and_b32 {s(S_TMP)}, {s(S_TMP)}, 15", f"s_cmp_lg_u32 {s(S_TMP)}, 0", f"s_cbranch_scc1 {Lexit}")
    A("v_lshrrev_b32 v1, 6, v0", "s_nop 0", f"v_readfirstlane_b32 {s(S_WAVE)}, v1", "s_waitcnt lgkmcnt(0)")
    Lw = A.label("notw0")
    A(f"s_cmp_lg_u32 {s(S_WAVE)}, 0", f"s_cbranch_scc1 {Lw}")
    A("v_mov_b32 v1, 1", "v_mov_b32 v2, 0", "s_mov_b64 exec, 1",
      f"buffer_atomic_add v1, v2, {s(DBG,4)}, 0 offen sc0", "s_waitcnt vmcnt(0)", "ds_write_b32 v2, v1 offset:32768", "s_waitcnt lgkmcnt(0)", "s_mov_b64 exec, -1")
    A(f"{Lw}:", "s_barrier", "v_mov_b32 v2, 0", "ds_read_b32 v1, v2 offset:32768", "s_waitcnt lgkmcnt(0)", f"v_readfirstlane_b32 {s(S_ROLE)}, v1", "s_barrier")
    LPF = A.label("rolePF")
    A(f"s_cmp_ge_u32 {s(S_ROLE)}, 32", f"s_cbranch_scc1 {Lexit}")
    A(f"s_cmp_ge_u32 {s(S_ROLE)}, 30", f"s_cbranch_scc1 {LPF}")
    LB = A.label("roleB")
    A(f"s_cmp_ge_u32 {s(S_ROLE)}, 16", f"s_cbranch_scc1 {LB}")
    for R, fn in (("A", role_A), ("B", role_B)):
        if R == "B": A(f"{LB}:")
        Ls = [A.label(f"{R}w{w}") for w in range(4)]
        for w in range(1, 4):
            A(f"s_cmp_eq_u32 {s(S_WAVE)}, {w}", f"s_cbranch_scc1 {Ls[w]}")
        for w in range(4):
            A(f"{Ls[w]}:")
            fn(A, w, Lexit, profile)
    A(f"{LPF}:")
    role_PF(A, Lexit)
    A(f"{Lexit}:", "s_endpgm")
    A(kernel_desc(name))

def generate(path, profile=False, **kw):
    g = globals(); saved = {k: g[k] for k in kw}
    g.update(kw)
    A = Asm()
    A("; @launch kernel=rec_kernel grid=(256,1,1) block=(256,1,1) lds=131072")
    A('.amdgcn_target "amdgcn-amd-amdhsa--gfx950"', ".text")
    rec_kernel(A, "rec_kernel", profile=bool(profile))
    t = A.text().replace("    ; @launch", "; @launch")
    if profile == 2: t = t.replace("s_memtime", "s_memrealtime")
    if LDFL == 1: t = t.replace(" sc1\n", " nt\n")
    if LDFL == 2: t = t.replace(" sc1\n", " sc0 sc1\n")
    open(path, "w").write(t)
    g.update(saved)

if __name__ == "__main__":
    import sys
    generate(sys.argv[1], len(sys.argv) > 2)
```

```python
import sys
from asm import *
from model import *
import rec, workers, prep
from rec import WS, XB, DBG, S_WAVE, S_ROLE, S_TMP, S_TMP2
from workers import OUT, XA

TKL = 0x23800
def main_kernel(A, name, profile=False):
    NV, NX, NPG = workers.NV, workers.NX, workers.NPG
    kernel_begin(A, name)
    Lexit = A.label("exit")
    Lx0 = A.label("go")
    A("s_cmp_lt_u32 s2, 256", f"s_cbranch_scc1 {Lx0}", "s_endpgm", f"{Lx0}:")
    srd(A, WS, 96, 0x10000000); srd(A, XB, 24, 1835008); srd(A, DBG, 88, 256); srd(A, OUT, 80, 2048*896*2); srd(A, XA, 0, 1835008)
    prep.prep_srds(A)
    A("v_lshrrev_b32 v1, 6, v0", "s_nop 0", f"v_readfirstlane_b32 {s(S_WAVE)}, v1")
    A("s_getreg_b32 s44, hwreg(HW_REG_XCC_ID)", "s_and_b32 s44, s44, 7")
    if rec.XSCR: A("s_bfe_u32 s45, s2, 0x10004", "s_or_b32 s44, s44, s45")
    A("s_waitcnt lgkmcnt(0)")
    def ticket():
        A("s_lshl_b32 s45, s44, 2", f"s_cmp_eq_u32 {s(S_WAVE)}, 0", "s_cselect_b32 s45, s45, 0x40000000", "v_mov_b32 v220, 1", "s_mov_b64 exec, 1",
          f"buffer_atomic_add v220, off, {s(DBG,4)}, s45 sc0", "s_mov_b64 exec, -1")
        return 1
    prep.prep_body(A, ticket)
    if rec.TLM: A("s_memrealtime s[98:99]")
    Lw, Ld = A.label("notw0"), A.label("rd")
    A(f"s_cmp_lg_u32 {s(S_WAVE)}, 0", f"s_cbranch_scc1 {Lw}")
    A("s_mov_b64 exec, 1",
      f"v_readfirstlane_b32 s61, v220", f"s_lshl_b32 {s(S_TMP2)}, s44, 5", f"s_add_u32 {s(S_TMP2)}, {s(S_TMP2)}, s61", "s_cmp_lt_u32 s61, 32", f"s_cbranch_scc1 {Ld}")
    Lo, Lo2 = A.label("ovw"), A.label("ovg")
    A("v_mov_b32 v1, 1", f"buffer_atomic_add v1, off, {s(DBG,4)}, 0 offset:36 sc0", "s_waitcnt vmcnt(0)", "v_readfirstlane_b32 s61, v1", "s_mov_b32 s62, 300000", f"s_mov_b32 {s(S_TMP2)}, 1000")
    A("s_mov_b64 exec, -1", "v_and_b32 v2, 31, v0", "v_lshlrev_b32 v2, 2, v2")
    A(f"{Lo}:", f"buffer_load_dword v1, v2, {s(DBG,4)}, 0 offen offset:{prep.CNT0} sc1", "s_waitcnt vmcnt(0)", "v_cmp_ne_u32 vcc, 8, v1", f"s_cbranch_vccz {Lo2}",
      "s_sleep 4", "s_sub_u32 s62, s62, 1", f"s_cbranch_scc1 {Ld}", f"s_branch {Lo}")
    A(f"{Lo2}:", f"buffer_load_dwordx4 v[4:7], off, {s(DBG,4)}, 0 sc1", f"buffer_load_dwordx4 v[8:11], off, {s(DBG,4)}, 0 offset:16 sc1", "s_waitcnt vmcnt(0)")
    for x in range(8):
        Ln = A.label("ovn")
        A(f"v_readfirstlane_b32 s63, v{4+x}", "s_min_u32 s63, s63, 32", "s_sub_u32 s62, 32, s63", "s_cmp_ge_u32 s61, s62", f"s_cbranch_scc1 {Ln}",
          f"s_add_u32 {s(S_TMP2)}, s63, s61", f"s_add_u32 {s(S_TMP2)}, {s(S_TMP2)}, {32*x}", f"s_branch {Ld}", f"{Ln}:", "s_sub_u32 s61, s61, s62")
    A(f"{Ld}:", f"v_mov_b32 v1, {s(S_TMP2)}", f"v_mov_b32 v2, {TKL:#x}", "ds_write_b32 v2, v1", "s_waitcnt lgkmcnt(0)", "s_mov_b64 exec, -1")
    A(f"{Lw}:", "s_barrier", f"v_mov_b32 v2, {TKL:#x}", "ds_read_b32 v1, v2", "s_waitcnt lgkmcnt(0)", f"v_readfirstlane_b32 {s(S_ROLE)}, v1", f"s_mov_b32 {s(rec.S_TO)}, {rec.TIMEOUT}")
    if rec.TLM: A(f"s_mov_b32 s100, {s(S_ROLE)}")
    ranges = [("A", 16), ("B", 30), ("PF", 32), ("V", 32 + 16*NV), ("X", 32 + 16*NV + 16*NX), ("PV", 32 + 16*NV + 16*NX + 14*NPG), ("L", 32 + 16*NV + 16*NX + 14*NPG + 64)]
    assert ranges[-1][1] <= 256
    L = {n: A.label("role" + n) for n, _ in ranges}
    J = {n: A.label("jmp" + n) for n, _ in ranges}
    for n, hi in ranges: A(f"s_cmp_lt_u32 {s(S_ROLE)}, {hi}", f"s_cbranch_scc1 {J[n]}")
    A(f"{Lexit}:", "s_endpgm")
    lo = 0
    for n, hi in ranges:
        A(f"{J[n]}:")
        if n in ("V", "X", "PV", "L"): A(f"s_sub_u32 {s(S_ROLE)}, {s(S_ROLE)}, {lo}")
        A(f"s_branch {L[n]}")
        lo = hi
    for R, fn in (("A", rec.role_A), ("B", rec.role_B)):
        A(f"{L[R]}:")
        Ls = [A.label(f"{R}w{w}") for w in range(4)]
        for w in range(1, 4): A(f"s_cmp_eq_u32 {s(S_WAVE)}, {w}", f"s_cbranch_scc1 {Ls[w]}")
        for w in range(4):
            A(f"{Ls[w]}:"); fn(A, w, Lexit, profile)
    Lx2 = A.label("exit2")
    for R, fn in (("PF", rec.role_PF), ("V", workers.role_V), ("X", workers.role_X), ("PV", workers.role_PV), ("L", workers.role_L)):
        A(f"{L[R]}:"); fn(A, Lx2)
    A(f"{Lx2}:", "s_endpgm")
    A(kernel_desc(name))

HDR = open("concat_heads__linear_attn_block__memory_aug_recurrent_mem_tr__prompt.s.ref").read().split("; Override launch")[0] if len(sys.argv) > 2 and sys.argv[2] == "final" else ""
FINAL = bool(HDR)
KNAME = "concat_heads__linear_attn_block__memory_aug_recurrent_mem_tr__prompt_kernel" if FINAL else "main_kernel"
def generate(path, TL=0, PROFILE=0, **kw):
    rec.TLM = workers.TLM = TL
    A = Asm()
    hdr = []
    hdr.append(f"; @launch {'' if FINAL else 'kernel=main_kernel '}grid=(256,1,1) block=(256,1,1) lds=147456")
    A('.amdgcn_target "amdgcn-amd-amdhsa--gfx950"', ".text")
    g = vars(rec); saved = dict(g); g.update(FULL=1, TIMEOUT=300000); g.update(kw)
    def instrument(fn, name, idreg, base, wsreg, wavereg):
        B = Asm(); B.uid = A.uid + 100000
        fn(B, name)
        lines = B.lines
        if TL:
            i0 = lines.index(f"{name}:")
            lines.insert(i0 + 1, "    s_memrealtime s[90:91]\n    s_mov_b32 s92, 0\n    s_mov_b32 s94, 0\n    s_mov_b32 s100, 9999")
            iend = max(i for i, l in enumerate(lines) if l.strip() == "s_endpgm")
            first = True
            for i, l in enumerate(lines):
                if l.strip() == "s_endpgm": lines[i] = f"    s_branch Ltl_{name}"
            stub = f"""Ltl_{name}:
    s_cmp_ge_u32 s2, 256
    s_cbranch_scc1 Ltl2_{name}
    s_memrealtime s[96:97]
    s_load_dwordx2 s[84:85], s[0:1], 96
    s_mov_b32 s86, 0x10000000
    s_mov_b32 s87, 0x00020000
    s_waitcnt lgkmcnt(0)
    s_mov_b64 exec, -1
    v_mov_b32 v4, s98
    v_mov_b32 v5, s92
    v_mov_b32 v6, s94
    v_mov_b32 v7, s96
    s_lshl_b32 s88, {idreg}, 2
    s_add_u32 s88, s88, {wavereg}
    s_lshl_b32 s88, s88, 4
    s_add_u32 s88, s88, {base:#x}
    buffer_store_dwordx4 v[4:7], off, s[84:87], s88
    v_mov_b32 v4, s90
    s_sub_u32 s88, s88, 0x40000
    buffer_store_dword v4, off, s[84:87], s88
Ltl2_{name}:
    s_endpgm"""
            lines.insert(iend + 1, stub)
        A.lines += lines; A.uid = B.uid
    instrument(lambda B, n: main_kernel(B, n, bool(PROFILE)), KNAME, "s100", PROF_OFF + 0x40000, 4, "s16")
    g.update({k: saved[k] for k in list(kw) + ["FULL", "TIMEOUT"]})
    open(path, "w").write(HDR + "\n".join(hdr) + "\n" + A.text())
if __name__ == "__main__":
    generate(sys.argv[1], STAMP=0 if HDR else 1)
```

```python
from asm import *
from model import *
from rec import WS, DBG, S_WAVE
PT = 0
FLAGS = 1
WALL = 0
TKQ = 2
QST = 1
UPF = 3
MSWAP = 0
ADELAY = 0
CSLEEP = 12
TOUCH = 1
CNT0 = 64

def prep_srds(A):
    W1, W2, M0S = 64, 68, 72
    S_MH = 33
    A("s_and_b32 s37, s2, 7", f"s_lshl_b32 {s(S_MH)}, s37, 2", "s_lshr_b32 s37, s2, 6", f"s_add_u32 {s(S_MH)}, {s(S_MH)}, s37", f"s_xor_b32 {s(S_MH)}, {s(S_MH)}, {MSWAP}")
    srd(A, M0S, 32, 7168)
    LmB, LmJ = A.label("matB"), A.label("matJ")
    A(f"s_cmp_ge_u32 {s(S_MH)}, 16", f"s_cbranch_scc1 {LmB}")
    srd(A, W1, 40, 3670016); srd(A, W2, 48, 3670016)
    A(f"s_branch {LmJ}", f"{LmB}:")
    srd(A, W1, 56, 3670016); srd(A, W2, 64, 3670016)
    A(f"{LmJ}:")

def prep_body(A, after_loads=None):
    W1, W2, M0S = 64, 68, 72
    S_W = S_WAVE
    S_MH, S_H, S_RH, S_CQ, S_T, S_T2, S_G, S_OUT, S_X, GW = range(33, 43)
    S_A0, S_A1, S_B0, S_BJ, S_BQ, S_B3, S_LD, S_RD, S_Q = 84, 85, 86, 87, 88, 89, 56, 57, 58
    VL, VG, VN, T, T2, VA, VB, VL16 = range(1, 9)
    VRA = 10
    VRB = 200
    CA, CB = 12, 224
    SLOT = 49152
    ACC, AF, BF = 16, 128, 160
    A(f"s_and_b32 {s(S_H)}, {s(S_MH)}, 15", f"s_bfe_u32 {s(S_RH)}, s2, 0x10005", f"s_bfe_u32 {s(S_CQ)}, s2, 0x20003")
    A(f"v_and_b32 {v(VL)}, 63, v0", f"v_lshrrev_b32 {v(VG)}, 4, {v(VL)}", f"v_and_b32 {v(VN)}, 15, {v(VL)}", f"v_lshlrev_b32 {v(VL16)}, 4, {v(VL)}")
    A(f"v_lshrrev_b32 {v(T)}, 3, {v(VL)}", f"v_and_b32 {v(T2)}, 7, {v(VL)}", f"v_xor_b32 {v(T2)}, {v(T2)}, {v(T)}", f"v_lshlrev_b32 {v(VA)}, 13, {v(T)}", f"v_lshl_add_u32 {v(VA)}, {v(T2)}, 4, {v(VA)}")
    A(f"s_mul_i32 {s(S_T)}, {s(S_RH)}, 7", f"s_add_u32 {s(S_T)}, {s(S_T)}, {s(S_W)}", f"s_lshl_b32 {s(S_OUT)}, {s(S_T)}, 10",
      f"s_lshl_b32 {s(S_T)}, {s(S_T)}, 18", f"s_lshl_b32 {s(S_T2)}, {s(S_H)}, 9", f"s_add_u32 {s(S_A0)}, {s(S_T)}, {s(S_T2)}",
      f"s_add_u32 {s(S_A1)}, {s(S_A0)}, {4*32*8192}", f"s_cmp_eq_u32 {s(S_W)}, 3", f"s_cselect_b32 {s(S_A1)}, 0x40000000, {s(S_A1)}")
    L = [A.label("pb%d" % i) for i in range(4)]
    A(f"s_cmp_ge_u32 {s(S_MH)}, 16", f"s_cbranch_scc1 {L[0]}")
    A(f"s_mul_i32 {s(S_T)}, {s(S_CQ)}, 112", f"s_lshl_b32 {s(S_G)}, {s(S_W)}, 5", f"s_add_u32 {s(S_T)}, {s(S_T)}, {s(S_G)}", f"s_lshl_b32 {s(S_T)}, {s(S_T)}, 13",
      f"s_add_u32 {s(S_B0)}, {s(S_T)}, {s(S_T2)}", f"s_mov_b32 {s(S_BJ)}, {8*8192}", f"s_mov_b32 {s(S_BQ)}, 128", f"s_cmp_eq_u32 {s(S_W)}, 3", f"s_cselect_b32 {s(S_B3)}, 0x40000000, 0",
      f"v_mov_b32 {v(VB)}, {v(VA)}", f"v_mov_b32 {v(VB+2)}, {v(VA)}")
    A(f"s_branch {L[1]}", f"{L[0]}:")
    A(f"s_mul_i32 {s(S_T)}, {s(S_H)}, 229376", f"s_mul_i32 {s(S_G)}, {s(S_CQ)}, 224", f"s_add_u32 {s(S_T)}, {s(S_T)}, {s(S_G)}",
      f"s_mul_i32 {s(S_G)}, {s(S_W)}, {16*896}", f"s_add_u32 {s(S_B0)}, {s(S_T)}, {s(S_G)}", f"s_mov_b32 {s(S_BJ)}, {4*896}", f"s_mov_b32 {s(S_BQ)}, {64*896}", f"s_mov_b32 {s(S_B3)}, 0",
      f"v_lshlrev_b32 {v(T)}, 1, {v(VG)}", f"v_xor_b32 {v(T)}, {v(T)}, {v(VN)}", f"v_mul_u32_u24 {v(T2)}, 896, {v(VG)}", f"v_lshl_add_u32 {v(VB)}, {v(T)}, 4, {v(T2)}",
      f"v_xor_b32 {v(T)}, 8, {v(T)}", f"v_lshl_add_u32 {v(VB+2)}, {v(T)}, 4, {v(T2)}")
    A(f"{L[1]}:")
    A(f"s_lshl_b32 {s(S_LD)}, {s(S_W)}, 12", f"s_lshl_b32 {s(S_RD)}, {s(S_W)}, 13", f"s_mul_i32 s59, {s(S_H)}, {QST}")
    def loads(q):
        base = SLOT*(q % 3)
        G = []
        pre = ["s_and_b32 s60, s59, 3", "s_add_u32 s59, s59, 1", f"s_mul_i32 {s(S_T)}, s60, {s(S_BQ)}", f"s_add_u32 {s(S_T)}, {s(S_T)}, {s(S_B0)}", "s_lshl_b32 s60, s60, 7",
               f"s_add_u32 s61, s60, {s(S_A1)}", f"s_add_u32 s60, s60, {s(S_A0)}"]
        for j in range(4):
            g = pre if j == 0 else [f"s_add_u32 {s(S_T)}, {s(S_T)}, {s(S_BJ)}"]
            if j == 2: g = g + [f"s_add_u32 {s(S_T)}, {s(S_T)}, {s(S_B3)}"]
            G.append([f"s_add_u32 m0, {s(S_LD)}, {base + 1024*j}"] + g + [f"buffer_load_dwordx4 {v(VB + (j & 2))}, {s(W2,4)}, {s(S_T)} offen lds"])
        for half in range(2):
            for j in range(4):
                G.append([f"s_add_u32 m0, {s(S_RD)}, {base + 16384 + 4096*half + 1024*j}", f"s_add_u32 {s(S_T)}, s{60 + half}, {j*8*8192}", f"buffer_load_dwordx4 {v(VA)}, {s(W1,4)}, {s(S_T)} offen lds"])
        return G
    if PT == 1: A("s_memrealtime s[76:77]")
    A(loads(0), loads(1))
    A(f"s_lshl_b32 {s(GW)}, s2, 2", f"s_add_u32 {s(GW)}, {s(GW)}, {s(S_W)}")
    A(f"v_lshrrev_b32 {v(T)}, 1, {v(VN)}", f"v_mul_u32_u24 {v(T2)}, 896, {v(T)}", f"v_lshl_add_u32 {v(T2)}, {v(VG)}, 5, {v(T2)}", f"v_and_b32 {v(T)}, 1, {v(VN)}", f"v_lshl_add_u32 {v(T2)}, {v(T)}, 2, {v(T2)}")
    A(f"s_lshl_b32 {s(S_T)}, s2, 7", f"s_lshl_b32 {s(S_X)}, s2, 10", f"s_add_u32 {s(S_X)}, {s(S_X)}, {MEMF_OFF:#x}",
      "s_cmp_lt_u32 s2, 7", f"s_cselect_b32 {s(S_X)}, {s(S_X)}, 0x40000000", f"s_cmp_eq_u32 {s(S_W)}, 3", f"s_cselect_b32 {s(S_X)}, {s(S_X)}, 0x40000000")
    for q in range(4): A(f"buffer_load_dword {v(216+q)}, {v(T2)}, {s(M0S,4)}, {s(S_T)} offen offset:{8*q}")
    A(f"v_lshrrev_b32 v237, 3, {v(VL)}", "v_lshlrev_b32 v237, 8, v237", f"v_and_b32 {v(T)}, 7, {v(VL)}", f"v_lshl_add_u32 v237, {v(T)}, 2, v237",
      f"s_mov_b32 {s(S_T)}, {FLAGP_OFF:#x}", f"s_mov_b32 {s(S_T2)}, {FLAGP_OFF + 4096:#x}")
    for k in range(4): A(f"buffer_load_dword v{232+k}, v237, {s(WS,4)}, {s(S_T if k < 2 else S_T2)} offen offset:{2048*(k%2)} sc1")
    A(f"s_lshl_b32 s63, {s(S_MH)}, 8", f"s_bfe_u32 {s(S_T)}, s2, 0x30003", f"s_lshl_b32 {s(S_T)}, {s(S_T)}, 2", f"s_add_u32 s63, s63, {s(S_T)}", f"s_add_u32 s63, s63, {FLAGP_OFF:#x}",
      f"buffer_load_dword v236, off, {s(WS,4)}, s63 sc1")
    nm = 9
    A(f"v_lshrrev_b32 {v(T)}, 2, {v(VN)}", f"v_lshlrev_b32 {v(VRA)}, 10, {v(T)}", f"v_and_b32 {v(T)}, 3, {v(VN)}", f"v_lshl_add_u32 {v(VRA)}, {v(T)}, 7, {v(VRA)}",
      f"v_xor_b32 {v(T)}, {v(T)}, {v(VG)}", f"v_lshl_add_u32 {v(VRA)}, {v(T)}, 4, {v(VRA)}", f"s_lshl_b32 {s(S_T)}, {s(S_W)}, 13", f"s_add_u32 {s(S_T)}, {s(S_T)}, 16384", f"v_add_u32 {v(VRA)}, {s(S_T)}, {v(VRA)}")
    for r in range(4): A(f"v_mov_b32 {v(208+r)}, -1", f"v_mov_b32 {v(212+r)}, 0")
    A(f"s_mul_i32 {s(S_T)}, {s(S_H)}, 28", f"s_mul_i32 {s(S_T2)}, {s(S_CQ)}, 7", f"s_add_u32 {s(S_T)}, {s(S_T)}, {s(S_T2)}", f"s_mul_i32 {s(S_T)}, {s(S_T)}, 14336",
      f"s_add_u32 {s(S_OUT)}, {s(S_OUT)}, {s(S_T)}", f"s_cmp_ge_u32 {s(S_MH)}, 16", f"s_cselect_b32 {s(S_T)}, {WB_OFF:#x}, {WA_OFF:#x}", f"s_add_u32 {s(S_OUT)}, {s(S_OUT)}, {s(S_T)}")
    A(f"s_add_u32 {s(S_G)}, {s(S_OUT)}, 4096", f"s_cmp_eq_u32 {s(S_W)}, 3", f"s_cselect_b32 {s(S_G)}, 0x40000000, {s(S_G)}")
    sc = int(np.float32(LOG2E / 16).view(np.uint32))
    def gemm(isb):
        n = 2 if isb else 1
        if isb:
            A(f"v_lshrrev_b32 {v(T)}, 2, {v(VN)}", f"v_lshl_add_u32 {v(T2)}, {v(VG)}, 3, {v(T)}", f"v_lshlrev_b32 {v(T2)}, 8, {v(T2)}", f"v_and_b32 {v(13)}, 1, {v(VN)}", f"v_lshl_add_u32 {v(T2)}, {v(13)}, 3, {v(T2)}",
              f"v_lshlrev_b32 {v(T)}, 1, {v(T)}", f"v_and_b32 {v(15)}, 1, {v(VG)}", f"v_lshl_add_u32 {v(T)}, {v(15)}, 3, {v(T)}", f"v_bfe_u32 {v(15)}, {v(VN)}, 1, 1", f"v_or_b32 {v(T)}, {v(T)}, {v(15)}")
            for cb in range(7): A(f"v_xor_b32 {v(15)}, {2*cb}, {v(T)}", f"v_lshl_add_u32 {v(VRB+cb)}, {v(15)}, 4, {v(T2)}")
            nb = 7
        else:
            A(f"v_and_b32 {v(T)}, 7, {v(VN)}", f"v_xor_b32 {v(T)}, {v(T)}, {v(VG)}", f"v_lshlrev_b32 {v(T2)}, 7, {v(VN)}", f"v_lshl_add_u32 {v(VRB)}, {v(T)}, 4, {v(T2)}", f"v_xor_b32 {v(VRB+1)}, 64, {v(VRB)}")
            nb = 2
        if not isb: A(f"s_mov_b32 s62, {sc:#x}")
        def fills():
            G = []
            ms = (MEMS_OFF - MEMF_OFF) // 1024
            for j in range(2):
                g = [f"s_lshl_b32 {s(S_T2)}, {s(GW)}, 10", f"s_add_u32 {s(S_T2)}, {s(S_T2)}, {MEMF_OFF + (j << 20):#x}"]
                for base in (0, ms):
                    if base // 1024 == j:
                        g += [f"s_sub_u32 s43, {s(GW)}, {base % 1024}", "s_cmp_lt_u32 s43, 7", f"s_cselect_b32 {s(S_T2)}, 0x40000000, {s(S_T2)}"]
                G.append(g + [f"buffer_store_dwordx4 {v(208,4)}, {v(VL16)}, {s(WS,4)}, {s(S_T2)} offen sc1"])
            G.append([f"s_lshl_b32 {s(S_T)}, {s(GW)}, 10", f"s_add_u32 {s(S_T)}, {s(S_T)}, {ZERO_OFF:#x}", f"s_cmp_lt_u32 {s(GW)}, {ZERO_BYTES//1024}", f"s_cselect_b32 {s(S_T)}, {s(S_T)}, 0x40000000",
                      f"buffer_store_dwordx4 {v(212,4)}, {v(VL16)}, {s(WS,4)}, {s(S_T)} offen sc1"])
            G.append([f"s_sub_u32 s43, {s(GW)}, 256", f"s_lshl_b32 {s(S_T)}, s43, 10", f"s_mov_b32 {s(S_T2)}, {PX_OFF + 63*40960 - 112*1024:#x}", "s_cmp_lt_u32 s43, 112", f"s_cselect_b32 {s(S_T2)}, {VPE_OFF + 63*114688:#x}, {s(S_T2)}"])
            G.append([f"s_add_u32 {s(S_T)}, {s(S_T)}, {s(S_T2)}", "s_cmp_lt_u32 s43, 152", f"s_cselect_b32 {s(S_T)}, {s(S_T)}, 0x40000000",
                      f"buffer_store_dwordx4 {v(208,4)}, {v(VL16)}, {s(WS,4)}, {s(S_T)} offen sc1"])
            G.append([f"v_min_u32 {v(216+k)}, -2, {v(216+k)}" for k in range(4)] + [f"buffer_store_dwordx4 {v(216,4)}, {v(VL16)}, {s(WS,4)}, {s(S_X)} offen sc1"])
            G.append([f"s_add_u32 {s(S_X)}, {s(S_X)}, {ALT:#x}", f"buffer_store_dwordx4 {v(216,4)}, {v(VL16)}, {s(WS,4)}, {s(S_X)} offen sc1"])
            return G
        def epi(cb):
            o = []
            for half in range(2):
                d = ACC + 16*cb + 8*half
                if not isb: o += [f"v_mul_f32 {v(d+r)}, s62, {v(d+r)}" for r in range(8)]
                o += [f"v_cvt_pk_bf16_f32 {v(d+r)}, {v(d+2*r)}, {v(d+2*r+1)}" for r in range(4)]
                so = S_OUT if half == 0 else S_G
                o += [f"buffer_store_dwordx4 {v(d,4)}, {v(VL16)}, {s(WS,4)}, {s(so)} offen sc1", f"s_add_u32 {s(so)}, {s(so)}, 14336"]
            return o
        for q in range(4):
            base = SLOT*(q % 3)
            A(f"s_waitcnt vmcnt({[12 + nm, 12, 12, 7][q]})", "s_barrier")
            if PT == 1 and q in (0, 3): A(f"s_memrealtime s[{78 if q == 0 else 80}:{79 if q == 0 else 81}]")
            A(f"v_add_u32 {v(CA)}, {base}, {v(VRA)}")
            for k in range(nb): A(f"v_add_u32 {v(CB+k)}, {base}, {v(VRB+k)}")
            def rdB(i):
                cb, el = i // 2, i % 2
                if isb: return [f"ds_read_b64_tr_b16 {v(BF + 4*(i % 4) + 2*u, 2)}, {v(CB+cb)} offset:{(32*el + 4*u)*256}" for u in range(2)]
                return [f"ds_read_b128 {v(BF + 4*(i % 4), 4)}, {v(CB+el)} offset:{cb*2048}"]
            for f in range(8):
                half, t_, el = f // 4, (f // 2) % 2, f % 2
                A(f"ds_read_b128 {v(AF+4*f,4)}, {v(CA)} offset:{half*4096 + t_*512 + 64*(el ^ t_)}")
            for i in range(3): A(rdB(i))
            G = loads(q+2) if q < 2 else (fills() if q == 2 else [])
            if q == 2: after_loads(); A("s_nop 3")
            pend = []
            for i in range(14):
                cb, el = i // 2, i % 2
                if i + 3 < 14: A(rdB(i+3), f"s_waitcnt lgkmcnt({3*n})")
                else: A(f"s_waitcnt lgkmcnt({(13-i)*n})")
                if q == 3 and el == 1 and cb > 0: pend += epi(cb-1)
                for half in range(2):
                    for t_ in range(2):
                        d = ACC + 16*cb + 8*half + 4*t_
                        A(f"v_mfma_f32_16x16x32_bf16 {v(d,4)}, {v(AF + 16*half + 8*t_ + 4*el, 4)}, {v(BF + 4*(i % 4), 4)}, " + ("0" if q == 0 and el == 0 else v(d,4)))
                        if half == 0 and t_ == 0 and G: A(G.pop(0))
                        for _ in range(2 if isb else 4):
                            if pend: A(pend.pop(0))
            if q == 3: A(pend, "s_nop 7", epi(6))
    A(f"s_cmp_ge_u32 {s(S_MH)}, 16", f"s_cbranch_scc1 {L[2]}")
    gemm(False)
    A(f"s_branch {L[3]}", f"{L[2]}:")
    gemm(True)
    A(f"{L[3]}:")
    if PT == 1: A("s_memrealtime s[82:83]")
    A("s_waitcnt vmcnt(0)", "s_barrier")
    if PT:
        A("s_waitcnt lgkmcnt(0)", "v_mov_b32 v12, s76", "v_mov_b32 v13, s78", "v_mov_b32 v14, s80", "v_mov_b32 v15, s82",
          f"s_lshl_b32 {s(S_T)}, {s(GW)}, 4", f"s_add_u32 {s(S_T)}, {s(S_T)}, {PROF_OFF + 0x80000:#x}", f"buffer_store_dwordx4 v[12:15], off, {s(WS,4)}, {s(S_T)}")
    A(f"s_lshl_b32 {s(S_T)}, {s(S_MH)}, 2", f"s_cmp_eq_u32 {s(S_W)}, 0", f"s_cselect_b32 {s(S_T)}, {s(S_T)}, 0x40000000",
      "s_cselect_b32 s63, s63, 0x40000000", "v_add_u32 v236, 1, v236",
      f"v_mov_b32 {v(T)}, 1", "s_mov_b64 exec, 1", f"buffer_store_dword v236, off, {s(WS,4)}, s63 sc1", f"buffer_atomic_add {v(T)}, off, {s(DBG,4)}, {s(S_T)} offset:{CNT0} sc1", "s_mov_b64 exec, -1")

def wait_tiles(A, lo, n, abort, tag, S_TO, vt, va, st=(60, 61, 62)):
    if not FLAGS: return wait_counters(A, lo, n, abort, tag, S_TO, vt, va)
    a, b, c = st
    Lp, Lgo, Lfb = A.label(tag + "tw"), A.label(tag + "tg"), A.label(tag + "tf")
    A(f"s_cmp_lg_u32 {s(S_WAVE)}, 0", f"s_cbranch_scc1 {Lfb}", f"s_mov_b32 s{c}, 64")
    if n == 1:
        A(f"s_lshr_b32 s{a}, {lo}, 3", f"v_mov_b32 {v(va)}, v232")
        for k in range(1, 4): A(f"s_cmp_eq_u32 s{a}, {k}", "s_cselect_b64 vcc, -1, 0", f"v_cndmask_b32 {v(va)}, {v(va)}, v{232+k}, vcc")
        A(f"s_lshl_b32 s{a}, s{a}, 11", f"s_add_u32 s{a}, s{a}, {FLAGP_OFF:#x}", f"s_and_b32 s{b}, {lo}, 7", f"s_lshl_b32 s{b}, s{b}, 3", "s_mov_b64 exec, 0xff", f"s_lshl_b64 exec, exec, s{b}")
        A(f"{Lp}:", f"buffer_load_dword {v(vt)}, v237, {s(WS,4)}, s{a} offen sc1", "s_waitcnt vmcnt(0)", f"v_cmp_eq_u32 vcc, {v(vt)}, {v(va)}", f"s_cbranch_vccz {Lgo}")
    else:
        A(f"s_mov_b32 s{a}, {FLAGP_OFF + 4096:#x}")
        A(f"{Lp}:", f"buffer_load_dword {v(vt)}, v237, {s(WS,4)}, s{a} offen sc1", f"buffer_load_dword {v(va)}, v237, {s(WS,4)}, s{a} offen offset:2048 sc1", "s_waitcnt vmcnt(0)",
          f"v_cmp_eq_u32 s[66:67], {v(vt)}, v234", f"v_cmp_eq_u32 vcc, {v(va)}, v235", "s_nop 1", "s_or_b64 vcc, vcc, s[66:67]", f"s_cbranch_scc0 {Lgo}")
    A(f"s_sleep {CSLEEP}", f"s_sub_u32 s{c}, s{c}, 1", f"s_cbranch_scc0 {Lp}", "s_mov_b64 exec, -1")
    A(f"{Lfb}:")
    Lj = A.label("tj")
    wait_counters(A, lo, n, abort, tag, S_TO, vt, va)
    A(f"s_branch {Lj}", f"{Lgo}:", "s_mov_b64 exec, -1", "s_barrier", f"{Lj}:")
PREP_LDS = 256*288 + 64*1088

def wait_counters(A, lo, n, abort, tag, S_TO, vt=1, va=2, sleep=None):
    from rec import timeout_step
    if WALL:
        if n == 32 and tag in "ABVX": return
        lo, n = 0, 32
    Lp, Lgo = A.label(tag + "cw"), A.label(tag + "cg")
    A(f"s_cmp_lg_u32 {s(S_WAVE)}, 0", f"s_cbranch_scc1 {Lgo}")
    A(f"v_and_b32 {v(va)}, {n-1}, v0", f"v_add_lshl_u32 {v(va)}, {v(va)}, {lo}, 2")
    A(f"{Lp}:", f"buffer_load_dword {v(vt)}, {v(va)}, {s(DBG,4)}, 0 offen offset:{CNT0} sc1", "s_waitcnt vmcnt(0)", f"v_cmp_gt_u32 vcc, 8, {v(vt)}", f"s_cbranch_vccz {Lgo}", f"s_sleep {sleep or CSLEEP}")
    timeout_step(A, Lp, abort)
    A(f"{Lgo}:", "s_barrier")
```

```python
from asm import *
from model import *

WS, XB, DBG = 4, 8, 12
S_WAVE, S_ROLE, S_STEP, S_MEM, S_MEM2, S_P, S_X, S_VOX, S_TO, S_TMP, S_TMP2, S_P2, S_MEMN = range(16, 29)
S_PROF = 30
NSTEPS = 63
PACCUM = 0
PMASK = 255
TIMEOUT = 40000

def smf(d, a, b, idx, hi=False):
    return f"v_smfmac_f32_16x16x64_bf16 {v(d,4)}, {v(a,4)}, {b}, {v(idx)}" + (" abid:1" if hi else "")

def wreg(f, n=8, sub=0):
    return a_(8*f + sub, n) if f < 32 else v(120 + 8*(f-32) + sub, n)

def lane_consts(A, VL, VG, VN):
    A(f"v_and_b32 {v(VL)}, 63, v0", f"v_lshrrev_b32 {v(VG)}, 4, {v(VL)}", f"v_and_b32 {v(VN)}, 15, {v(VL)}")

def mem_lane_off(A, dst, VG, VN, t):
    A(f"v_lshlrev_b32 {v(dst)}, 8, {v(VG)}", f"v_lshl_add_u32 {v(dst)}, {v(VN)}, 4, {v(dst)}")

def idx_const(A, dst, VN, t):
    A(f"v_and_b32 {v(t)}, 1, {v(VN)}", f"v_mul_u32_u24 {v(dst)}, 0xAAAA, {v(t)}",
      f"v_lshrrev_b32 {v(t)}, 3, {v(VN)}", f"v_mul_u32_u24 {v(t)}, 0xAAAA, {v(t)}",
      f"v_lshl_add_u32 {v(dst)}, {v(t)}, 16, {v(dst)}", f"v_add_u32 {v(dst)}, 0x44444444, {v(dst)}")

def memload(dst, voff, kb):
    so = S_MEM if kb < 4 else S_MEM2
    return f"buffer_load_dwordx4 {v(dst,4)}, {v(voff)}, {s(WS,4)}, {s(so)} offen offset:{(kb%4)*1024} sc1"

def chk4(t, r, first=True):
    if first:
        return [f"v_max3_u32 {v(t)}, {v(r)}, {v(r+1)}, {v(r+2)}", f"v_max_u32 {v(t)}, {v(t)}, {v(r+3)}"]
    return [f"v_max3_u32 {v(t)}, {v(t)}, {v(r)}, {v(r+1)}", f"v_max3_u32 {v(t)}, {v(t)}, {v(r+2)}, {v(r+3)}"]

def timeout_step(A, again, abort):
    A(f"s_sub_u32 {s(S_TO)}, {s(S_TO)}, 1", f"s_cbranch_scc1 {abort}", f"s_branch {again}")

def prof(A, slot, on):
    if on and (PMASK >> slot) & 1:
        A(f"s_memtime {s(S_PROF+2*slot,2)}")

def prof_flush(A, n, vt, vz, role_wave_off):
    A("s_waitcnt lgkmcnt(0)")
    A(f"s_lshl_b32 {s(S_TMP)}, {s(S_ROLE)}, 2", f"s_add_u32 {s(S_TMP)}, {s(S_TMP)}, {s(S_WAVE)}", f"s_lshl_b32 {s(S_TMP)}, {s(S_TMP)}, 6",
      f"s_add_u32 {s(S_TMP)}, {s(S_TMP)}, {s(S_STEP)}", f"s_lshl_b32 {s(S_TMP)}, {s(S_TMP)}, 6", f"s_add_u32 {s(S_TMP)}, {s(S_TMP)}, {PROF_OFF:#x}")
    A(f"v_mov_b32 {v(vz)}, 0")
    for k in range(n):
        A(f"v_mov_b32 {v(vt)}, {s(S_PROF+2*k)}", f"buffer_store_dword {v(vt)}, {v(vz)}, {s(WS,4)}, {s(S_TMP)} offen offset:{4*k}")

def prof_acc(A, n):
    A("s_memtime s[72:73]", "s_waitcnt lgkmcnt(0)")
    for k in range(n):
        A(f"s_sub_u32 {s(S_TMP)}, {s(S_PROF+2*k)}, s71", f"s_add_u32 s{74+k}, s{74+k}, {s(S_TMP)}")
    A(f"s_sub_u32 {s(S_TMP)}, s72, s71", f"s_add_u32 s{74+n}, s{74+n}, {s(S_TMP)}", "s_mov_b32 s71, s72" if PACCUM == 1 else "s_mov_b32 s71, 0")
    Lz = A.label("pz")
    A(f"s_cmp_lg_u32 {s(S_STEP)}, 12", f"s_cbranch_scc1 {Lz}")
    for k in range(n+1): A(f"s_mov_b32 s{74+k}, 0")
    A(f"{Lz}:")
def prof_acc_out(A, n):
    A(f"s_lshl_b32 {s(S_TMP)}, {s(S_ROLE)}, 2", f"s_add_u32 {s(S_TMP)}, {s(S_TMP)}, {s(S_WAVE)}", f"s_lshl_b32 {s(S_TMP)}, {s(S_TMP)}, 6", f"s_add_u32 {s(S_TMP)}, {s(S_TMP)}, {PROF_OFF:#x}")
    for k in range(n+1):
        A(f"v_mov_b32 v0, s{74+k}", f"buffer_store_dword v0, off, {s(WS,4)}, {s(S_TMP)} offset:{4*k}")

def emit_slots(A, slots):
    for sl in slots:
        A(sl['m']); A(sl['pre']); A(sl['valu']); A(sl['post'])

TIMG = 0
TW = 1808
MIMG = 8192
XIMG = 16384
RS = 256
XSL = 20480
A_SLEEP = 0
ROT = 0
RM2 = 0
ORD = 0
X_FIXVOX = 0
X_XSN = 14
PG1 = 0
PG2 = 0
WFI = 0
FS0 = 0
FSD = 0
B1S = 38
B2S = 47
TRN = 6
X_NOPM = 0
PFA = 3
ATOUCH = 3
VPRE = 0
BTOUCH = 0
BT0 = 0
BTA = 1
TCH0 = 14
TAHEAD = 1
TGATE = 2
XPRE = 14
XPG = 10
X_NOVOX = 0
X_NOV = 0
FPD = 5
PGAP = 30
WARM = 0
B0S = 10
F2AT = 0
XSCR = 0
EXW = 6
TLM = 0
FROFF = 14336
F1AT = 2
FULL = 0
PB2 = 0
LDFL = 0
F1GO = 1
VOXS = 3
STAMP = 1
XS0 = 10
XSN = 20
D1 = 112
D2 = 22
F2D = 40
F2OFF = 10240
F1OFF = 12288
APW = 2
BPW = 3
F1W = 2
X_NODMA = 0
X_NOH = 0
X_NOTR = 0
X_NOCONV = 0
X_NOB1 = 0
B_SLEEP_M = 4
B_SLEEP_P = 0

def nops(n):
    out = []
    while n > 0:
        k = min(n, 16); out.append(f"s_nop {k-1}"); n -= k
    return out

def flag_ld(r, voff, soff, off):
    return f"buffer_load_dword {v(r)}, {v(voff)}, {s(WS,4)}, {s(soff)} offen offset:{off} sc1"
def flag_poll(A, regs, voff, soff, off, abort, tag, primed=False):
    Lp, Lgo = A.label(tag + "fp"), A.label(tag + "go")
    ld = lambda r: flag_ld(r, voff, soff, off)
    n = len(regs)
    if not primed:
        for r in regs: A(ld(r), f"s_nop {48 // n - 1}")
    A(f"{Lp}:")
    for r in regs:
        A(f"s_waitcnt vmcnt({n-1})", f"v_cmp_eq_u32 vcc, -1, {v(r)}", f"s_cbranch_vccz {Lgo}", ld(r))
    timeout_step(A, Lp, abort)
    A(f"{Lgo}:")

def mkslots(ms):
    return [dict(m=m, pre=[], valu=[], post=[]) for m in ms]

S_SLOW = 47
def read_mode(A, vt):
    if FULL:
        A(f"buffer_load_dword {v(vt)}, off, {s(DBG,4)}, 0 sc1", "s_waitcnt vmcnt(0)", f"v_readfirstlane_b32 {s(S_SLOW)}, {v(vt)}", f"s_cmp_ge_u32 {s(S_SLOW)}, 32", f"s_cselect_b32 {s(S_SLOW)}, 0x40000000, 0")
    else:
        A(f"s_mov_b32 {s(S_SLOW)}, 0x40000000")

def role_A(A, w, abort, profile=False):
    import prep
    WFL = [' sc1', '', ' nt', ' sc1 nt'][WFI]
    MEMR, ACC, HT = 0, 28, 56
    IDX, VMEM, VTW, VTR, VH, VX, TMP, TMP2 = range(112, 120)
    VG, VN, VL = 1, 2, 3
    ko = [(2*w + i) % 7 for i in range(7)]
    lane_consts(A, VL, VG, VN)
    idx_const(A, IDX, VN, TMP)
    mem_lane_off(A, VMEM, VG, VN, TMP)
    A(f"v_lshlrev_b32 {v(VTW)}, 4, {v(VN)}", f"v_lshl_add_u32 {v(VTW)}, {v(VG)}, 2, {v(VTW)}", f"v_add_u32 {v(VTW)}, {TIMG + w*TW}, {v(VTW)}")
    A(f"v_and_b32 {v(TMP)}, 1, {v(VG)}", f"v_mul_u32_u24 {v(VTR)}, {2*TW}, {v(TMP)}",
      f"v_lshrrev_b32 {v(TMP)}, 3, {v(VN)}", f"v_lshl_add_u32 {v(VTR)}, {v(TMP)}, 7, {v(VTR)}",
      f"v_bfe_u32 {v(TMP)}, {v(VN)}, 1, 1", f"v_lshl_add_u32 {v(VTR)}, {v(TMP)}, 6, {v(VTR)}",
      f"v_lshrrev_b32 {v(TMP)}, 1, {v(VG)}", f"v_lshl_add_u32 {v(VTR)}, {v(TMP)}, 5, {v(VTR)}",
      f"v_bfe_u32 {v(TMP)}, {v(VN)}, 2, 1", f"v_lshl_add_u32 {v(VTR)}, {v(TMP)}, 4, {v(VTR)}",
      f"v_and_b32 {v(TMP)}, 1, {v(VN)}", f"v_lshl_add_u32 {v(VTR)}, {v(TMP)}, 3, {v(VTR)}")
    if TIMG: A(f"v_add_u32 {v(VTR)}, {TIMG}, {v(VTR)}")
    if w < 3:
        A(f"v_lshlrev_b32 {v(VX)}, 10, {v(VG)}",
          f"v_lshl_add_u32 {v(VX)}, {v(VN)}, {3 if w < 2 else 2}, {v(VX)}", f"v_add_u32 {v(VX)}, {XIMG + (4*w if w < 2 else 128)}, {v(VX)}")
    if w < 2:
        A(f"v_lshlrev_b32 {v(VH)}, 4, {v(VL)}")
    elif w == 2:
        A(f"v_mul_u32_u24 {v(VH)}, 1792, {v(VG)}", f"v_and_b32 {v(TMP)}, 7, {v(VN)}", f"v_lshl_add_u32 {v(VH)}, {v(TMP)}, 5, {v(VH)}",
          f"v_add_u32 {v(VH)}, {MIMG}, {v(VH)}")
    else:
        PXO, PMO = HT + 40, HT + 41
        A(f"v_lshrrev_b32 {v(TMP2)}, 3, {v(VL)}", f"v_mul_u32_u24 {v(VH)}, {RS}, {v(TMP2)}", f"v_and_b32 {v(TMP)}, 7, {v(VL)}",
          f"v_lshl_add_u32 {v(VX)}, {v(TMP)}, 4, {v(VH)}", f"v_add_u32 {v(VX)}, {XIMG}, {v(VX)}",
          f"v_lshl_add_u32 {v(VH)}, {v(TMP)}, 2, {v(VH)}", f"v_add_u32 {v(VH)}, {XIMG + 128}, {v(VH)}")
        A(f"v_and_b32 {v(TMP)}, 3, {v(VL)}", f"v_lshlrev_b32 {v(PXO)}, 3, {v(TMP)}", f"v_lshl_add_u32 {v(PXO)}, {v(TMP2)}, 5, {v(PXO)}",
          f"v_bfe_u32 {v(TMP)}, {v(VL)}, 2, 1", f"v_lshl_add_u32 {v(PXO)}, {v(TMP)}, 8, {v(PXO)}",
          f"s_lshl_b32 {s(S_TMP)}, {s(S_ROLE)}, 9", f"v_add_u32 {v(PXO)}, {s(S_TMP)}, {v(PXO)}")
        A(f"v_lshlrev_b32 {v(PMO)}, 5, {v(TMP2)}",
          f"v_bfe_u32 {v(TMP)}, {v(VL)}, 2, 1", f"v_lshl_add_u32 {v(PMO)}, {v(TMP)}, 8, {v(PMO)}",
          f"v_bfe_u32 {v(TMP)}, {v(VL)}, 1, 1", f"v_lshl_add_u32 {v(PMO)}, {v(TMP)}, 3, {v(PMO)}",
          f"s_lshr_b32 {s(S_TMP)}, {s(S_ROLE)}, 2", f"s_lshl_b32 {s(S_TMP)}, {s(S_TMP)}, 9",
          f"s_and_b32 {s(S_TMP2)}, {s(S_ROLE)}, 1", f"s_lshl_b32 {s(S_TMP2)}, {s(S_TMP2)}, 4", f"s_add_u32 {s(S_TMP)}, {s(S_TMP)}, {s(S_TMP2)}",
          f"s_bfe_u32 {s(S_TMP2)}, {s(S_ROLE)}, 0x10001", f"s_lshl_b32 {s(S_TMP2)}, {s(S_TMP2)}, 2", f"s_add_u32 {s(S_TMP)}, {s(S_TMP)}, {s(S_TMP2)}",
          f"s_add_u32 {s(S_TMP)}, {s(S_TMP)}, 8192", f"v_add_u32 {v(PMO)}, {s(S_TMP)}, {v(PMO)}")
        A(f"v_and_b32 {v(TMP)}, 1, {v(VL)}", f"v_lshl_add_u32 {v(PMO)}, {v(TMP)}, 30, {v(PMO)}")
    if w == APW:
        A(f"v_min_u32 {v(TMP2)}, 27, {v(VL)}", f"v_lshlrev_b32 {v(TMP2)}, 2, {v(TMP2)}", f"s_lshr_b32 {s(S_TMP)}, {s(S_ROLE)}, 2", f"s_lshl_b32 {s(S_TMP)}, {s(S_TMP)}, 8", f"s_add_u32 {s(S_TMP)}, {s(S_TMP)}, {F1OFF}", f"v_add_u32 {v(TMP2)}, {s(S_TMP)}, {v(TMP2)}")
    if w == 3:
        A(f"v_lshlrev_b32 {v(TMP2)}, 7, {v(VL)}", f"s_lshl_b32 {s(S_TMP)}, {s(S_ROLE)}, 2", f"s_add_u32 {s(S_TMP)}, {s(S_TMP)}, {F2OFF}", f"v_add_u32 {v(TMP2)}, {s(S_TMP)}, {v(TMP2)}",
          f"v_cmp_lt_u32 vcc, 13, {v(VL)}", f"v_mov_b32 {v(TMP)}, 0x40000000", "s_nop 0", f"v_cndmask_b32 {v(TMP2)}, {v(TMP2)}, {v(TMP)}, vcc")
    if FULL: prep.wait_tiles(A, s(S_ROLE), 1, abort, "A", S_TO, 4, 5)
    A(f"v_lshlrev_b32 {v(TMP)}, 4, {v(VL)}")
    A(f"s_mul_i32 {s(S_TMP)}, {s(S_ROLE)}, {28*14336}", f"s_add_u32 {s(S_TMP)}, {s(S_TMP)}, {WA_OFF + 7*w*14336}")
    for cb in range(7):
        for p in range(7):
            f = cb*7 + p
            off = cb*14336 + ko[p]*2048
            A(f"s_add_u32 {s(S_TMP2)}, {s(S_TMP)}, {off}")
            for hi in range(2):
                A(f"buffer_load_dwordx4 {wreg(f,4,4*hi)}, {v(TMP)}, {s(WS,4)}, {s(S_TMP2)} offen offset:{1024*hi}{WFL}")
        if cb >= 2: A("s_waitcnt vmcnt(28)")
    A(f"s_mov_b32 {s(S_STEP)}, 0", f"s_mov_b32 {s(S_MEM)}, {MEMF_OFF:#x}", f"s_mov_b32 {s(S_MEM2)}, {MEMF_OFF+4096:#x}",
      f"s_mov_b32 {s(S_P)}, {PF_OFF:#x}", f"s_mov_b32 {s(S_X)}, {XS_OFF + 14336*(w%2):#x}", f"s_mov_b32 {s(S_TO)}, {TIMEOUT}")
    Lstep = A.label(f"A{w}step"); Lpoll = A.label(f"A{w}poll")
    def cv_wait(ahead):
        Lc, Lg = A.label("cvp"), A.label("cvg")
        A(f"s_add_u32 {s(S_TMP2)}, {s(S_P)}, {16384*ahead + FROFF}", f"v_cmp_ne_u32 vcc, 15, {v(TMP2)}", f"s_cbranch_vccz {Lg}")
        A(f"{Lc}:", f"buffer_load_dword {v(TMP2)}, off, {s(WS,4)}, {s(S_TMP2)} sc1", "s_waitcnt vmcnt(0)", f"v_cmp_ne_u32 vcc, 15, {v(TMP2)}", f"s_cbranch_vccz {Lg}", "s_sleep 1")
        timeout_step(A, Lc, abort)
        A(f"{Lg}:", f"s_add_u32 {s(S_TMP2)}, {s(S_TMP2)}, 16384", f"buffer_load_dword {v(TMP2)}, off, {s(WS,4)}, {s(S_TMP2)} sc1")
    if FULL: prep.wait_counters(A, 0, 32, abort, "A", S_TO, 4, 5)
    if w == 3: read_mode(A, 4)
    if FULL:
        if w < 2:
            A(f"v_mov_b32 {v(TMP2)}, 0")
            cv_wait(0)
    if w == 3:
        A(f"v_lshlrev_b32 {v(HT+43)}, 7, {v(VL)}", f"s_lshl_b32 {s(S_VOX)}, {s(S_ROLE)}, 13", f"s_add_u32 {s(S_VOX)}, {s(S_VOX)}, {VOX_OFF + 458752*TAHEAD + 65536*PF_VOX:#x}",
          f"s_cmp_lt_u32 {s(S_ROLE)}, {max(0, 56 - 8*PF_VOX - 16*(ATOUCH-1))}", f"s_cselect_b32 s59, {131072*max(0, ATOUCH-1)}, 0x40000000")
        A(f"s_cmp_lt_u32 {s(S_ROLE)}, 7", f"s_cselect_b32 s61, {ALT:#x}, 0x40000000", f"s_min_u32 {s(S_TMP)}, {s(S_ROLE)}, 6",
          f"s_lshl_b32 {s(S_TMP)}, {s(S_TMP)}, 10", f"v_add_u32 {v(HT+47)}, {s(S_TMP)}, {v(VMEM)}")
    if w < 2:
        for j in range(XPRE):
            if j % 4 == 0: A(f"s_add_u32 {s(S_TMP)}, {s(S_X)}, {1024*j}")
            A(f"buffer_load_dwordx4 {v(HT+4*j,4)}, {v(VH)}, {s(WS,4)}, {s(S_TMP)} offen offset:{1024*(j%4)} sc1")
    A(f"s_mov_b32 {s(S_PROF+16)}, 0")
    if STAMP: A("s_mov_b32 s58, 0")
    if STAMP and w == 3: A("s_waitcnt vmcnt(0)", "s_memrealtime s[50:51]", "s_memtime s[54:55]")
    if TLM: A("s_waitcnt vmcnt(0)", "s_memrealtime s[92:93]")
    for r in range(28): A(f"v_mov_b32 {v(ACC+r)}, 0")
    if w == 3: A("s_mov_b32 s60, 0x40000000" if FULL else f"s_mov_b32 s60, {s(S_VOX)}")
    A(f"{Lstep}:")
    prof(A, 0, profile)
    Ljoin, Lfail = A.label("join"), A.label("fail")
    nd = 2 if w < 3 else 1
    def issue():
        o = [memload(MEMR, VMEM, ko[0])] + nops(PG1) + [memload(MEMR + 4, VMEM, ko[1])] + nops(PG2)
        for p in range(nd):
            kb = ko[p]
            o += [f"s_mov_b32 m0, {MIMG + (kb - kb % 4)*1024}", "s_nop 0", f"buffer_load_dwordx4 {v(VMEM)}, {s(WS,4)}, {s(S_MEM if kb < 4 else S_MEM2)} offen offset:{(kb%4)*1024} sc1 lds"]
        return o
    B0 = B0S
    rdm = lambda p: f"ds_read_b128 {v(MEMR+4*p,4)}, {v(VMEM)} offset:{MIMG + ko[p]*1024}"
    xsl = []
    xld = lambda j: f"buffer_load_dwordx4 {v(HT+4*j,4)}, {v(VH)}, {s(WS,4)}, {s(S_TMP)} offen offset:{1024*(j%4)} sc1"
    if w < 2 and not X_NODMA:
        nin = 14 - XPRE
        for jj in range(nin):
            j = XPRE + jj
            sl = XS0 + (jj*XSN)//nin
            if j % 4 == 0 or jj == 0: xsl.append((sl, f"s_add_u32 {s(S_TMP)}, {s(S_X)}, {1024*(j - j % 4)}"))
            xsl.append((sl, xld(j)))
    horder = [(0, 0), (1, 0), (2, 0), (0, 1), (1, 1), (2, 1), (3, 0), (3, 1)] + [(cb, 0) for cb in (4, 5, 6)] + [(cb, 1) for cb in (4, 5, 6)]
    A(issue())
    A(f"{Lpoll}:")
    if profile: A(f"s_add_u32 {s(S_PROF+16)}, {s(S_PROF+16)}, 256")
    A(f"s_waitcnt vmcnt({1 + nd})")
    prof(A, 1, profile)
    hs = mkslots([smf(ACC+4*cb, MEMR + 4*p, wreg(cb*7+p), IDX) for cb, p in horder])
    c0, c1 = chk4(TMP, MEMR), chk4(TMP, MEMR + 4, False)
    hs[0]['valu'].append(c0[0]); hs[1]['valu'].append(c0[1]); hs[2]['pre'].append(f"s_waitcnt vmcnt({nd})")
    hs[2]['valu'].append(c1[0]); hs[3]['valu'].append(c1[1]); hs[4]['valu'].append(f"v_cmp_eq_u32 vcc, -1, {v(TMP)}")
    hs[6]['pre'].append(f"s_cbranch_vccnz {Lfail}")
    hs[B0]['pre'] += ["s_waitcnt vmcnt(0)", "s_barrier", rdm(2)]
    for p in range(3, 7): hs[min(13, B0 + p - 2)]['pre'].append(rdm(p))
    hs[13]['pre'].append("s_waitcnt lgkmcnt(4)")
    for sl, o in xsl:
        if sl < 14: hs[sl]['pre'].append(o)
    if profile and PMASK & 4 and not FSD: hs[13]['pre'].append(f"s_memtime {s(S_PROF+4,2)}")
    if profile and FSD:
        for k in range(5):
            if FS0 + k*FSD < 14: hs[FS0 + k*FSD]['pre'].insert(0, f"s_memtime {s(S_PROF+4+2*k,2)}")
    emit_slots(A, hs)
    A(f"{Ljoin}:")
    order = [(cb, p) for p in range(2) for cb in range(7)] + [(cb, p) for cb in range(7) for p in range(2, 7)]
    slots = mkslots([smf(ACC+4*cb, MEMR+4*p, wreg(cb*7+p), IDX) for cb, p in order])
    for p in range(3, 7): slots[14 + p - 3]['pre'].append(f"s_waitcnt lgkmcnt({6-p})")
    for sl, o in xsl:
        if sl >= 14: slots[sl]['pre'].append(o)
    if w == 2:
        for j in range(14):
            slots[19 + j]['pre'].append(f"ds_read_b128 {v(HT+4*j,4)}, {v(VH)} offset:{256*(j//2)+16*(j%2)}")
    if w == 3 and FULL and EXW in (6, 7):
        slots[19]['pre'] += [f"ds_read_b128 {v(HT+48,4)}, {v(HT+47)} offset:{MIMG}", f"s_add_u32 s62, {s(S_MEM)}, s61"]
        if EXW == 6: slots[24]['pre'] += ["s_waitcnt lgkmcnt(1)", f"buffer_store_dwordx4 {v(HT+48,4)}, {v(HT+47)}, {s(WS,4)}, s62 offen sc1"]
    if w == 3 and ATOUCH:
        for i in range(ATOUCH):
            slots[TCH0 + 2*i]['pre'] += [f"s_add_u32 {s(S_TMP)}, s60, {'s59' if i == ATOUCH - 1 else 131072*i}", f"buffer_load_dword {v(HT+52+i)}, {v(HT+43)}, {s(WS,4)}, {s(S_TMP)} offen sc1"]
    def conv(cb):
        r = ACC + 4*cb
        return [f"v_add_f32 {v(r)}, {v(r)}, {v(r+1)}", f"v_add_f32 {v(r+2)}, {v(r+2)}, {v(r+3)}",
                f"v_cvt_pk_bf16_f32 {v(r)}, {v(r)}, {v(r+2)}", f"ds_write_b32 {v(VTW)}, {v(r)} offset:{256*cb}"]
    for cb in range(6):
        st = 14 + 5*cb + 4 + 2
        for i, o in enumerate(conv(cb)): slots[st+i]['valu'].append(o)
    SACC = ACC
    if w < 3:
        for r in range(4): slots[24 + 5*r]['valu'].append(f"v_mov_b32 {v(SACC+3-r)}, 0")
    TF = lambda k: MEMR + 4*k if k < 2 else ACC + 4*(k-1)
    def trread(k):
        return [f"ds_read_b64_tr_b16 {v(TF(k)+2*u,2)}, {v(VTR)} offset:{256*k + TW*u}" for u in range(2)]
    slots[B1S]['pre'] += [f"s_waitcnt lgkmcnt({1 if B1S > 38 else 0})", "s_barrier"]
    slots[B2S]['pre'] += ["s_waitcnt lgkmcnt(0)", "s_barrier"]
    if w < 3:
        rs = [r for k in range(3) for r in trread(k)]
        for i, r in enumerate(rs): slots[B1S + 1 + (i*TRN)//6]['pre'].append(r)
        slots[48]['pre'] += trread(3)
    if profile and FSD:
        for k in range(5):
            if 14 <= FS0 + k*FSD < 49: slots[FS0 + k*FSD]['pre'].insert(0, f"s_memtime {s(S_PROF+4+2*k,2)}")
    elif profile:
        for st, sl in ((3, 27), (4, 48)):
            if (PMASK >> st) & 1: slots[sl]['pre'].append(f"s_memtime {s(S_PROF+2*st,2)}")
    emit_slots(A, slots[14:])
    c6 = conv(6)
    if w < 3:
        sm = [smf(SACC, TF(k), v(HT+8*k, 8), IDX, True) for k in range(7)]
        vw = (lambda n: f"s_waitcnt vmcnt({n})") if w < 2 else (lambda n: "")
        A(vw(10), sm[0], trread(4), "s_nop 1", c6[0], c6[1], c6[2], c6[3], sm[1], vw(8), sm[2], "s_waitcnt lgkmcnt(4)", vw(6), sm[3], "s_waitcnt lgkmcnt(1)", vw(4), sm[4])
        A("s_waitcnt lgkmcnt(0)", "s_barrier")
        prof(A, 5, profile)
        for k in range(5, 7): A(trread(k))
        A(vw(0))
        for k in range(5, 7):
            A(f"s_waitcnt lgkmcnt({2*(6-k)})", sm[k])
        A("s_nop 7")
        A(f"ds_write2st64_b32 {v(VX)}, {v(SACC)}, {v(SACC+1)} offset0:0 offset1:1",
          f"ds_write2st64_b32 {v(VX)}, {v(SACC+2)}, {v(SACC+3)} offset0:2 offset1:3", "s_waitcnt lgkmcnt(0)", "s_barrier")
        prof(A, 6, profile)
        prof(A, 7, profile)
    else:
        A("s_nop 6", c6)
        A("s_waitcnt lgkmcnt(0)", "s_barrier")
        prof(A, 5, profile)
        if FULL and EXW == 7: A(f"buffer_store_dwordx4 {v(HT+48,4)}, {v(HT+47)}, {s(WS,4)}, s62 offen sc1")
        A(f"s_add_u32 s63, {s(S_P)}, {s(S_SLOW)}", "s_xor_b32 s64, s63, 0x40000000", nops(F2D - 2), f"buffer_store_dword {v(IDX)}, {v(TMP2)}, {s(WS,4)}, s64 offen")
        A("s_barrier")
        X0 = HT; XM = HT+4; MX, L = HT+8, HT+9; N0 = HT+12
        Lslow, Lnorm = A.label("slow"), A.label("norm")
        Y0 = HT + 20; RAW = HT + 28
        A(f"ds_read_b128 {v(X0,4)}, {v(VX)}", f"ds_read_b128 {v(Y0,4)}, {v(VX)} offset:2048", f"ds_read2st64_b32 {v(Y0+4,2)}, {v(VH)} offset0:0 offset1:8")
        prof(A, 6, profile)
        A("s_waitcnt lgkmcnt(1)")
        for j in range(4): A(f"v_add_f32 {v(RAW+j)}, {v(X0+j)}, {v(Y0+j)}")
        A("s_waitcnt lgkmcnt(0)", f"v_add_f32 {v(RAW+4)}, {v(Y0+4)}, {v(Y0+5)}")
        for j in range(5): A(f"v_exp_f32 {v(X0+j)}, {v(RAW+j)}")
        dpps = ["quad_perm:[1,0,3,2]", "quad_perm:[2,3,0,1]", "row_half_mirror"]
        def norm_store(check):
            A(f"v_add_f32 {v(L)}, {v(X0)}, {v(X0+1)}", f"v_add_f32 {v(MX)}, {v(X0+2)}, {v(X0+3)}",
              f"v_add_f32 {v(L)}, {v(L)}, {v(MX)}", f"v_add_f32 {v(L)}, {v(L)}, {v(XM)}")
            for d in dpps: A("s_nop 1", f"v_add_f32_dpp {v(L)}, {v(L)}, {v(L)} {d} row_mask:0xf bank_mask:0xf")
            A(f"v_rcp_f32 {v(N0+5)}, {v(L)}")
            if check: A(f"v_subrev_u32 {v(MX)}, 0x21800000, {v(L)}", f"v_cmp_lt_u32 vcc, 0x3c000000, {v(MX)}")
            else: A("s_nop 0")
            R = N0 + 5
            A(f"v_mul_f32_e64 {v(X0)}, {v(X0)}, {v(R)} clamp", f"v_mul_f32 {v(X0+1)}, {v(X0+1)}, {v(R)}",
              f"v_mul_f32_e64 {v(X0+2)}, {v(X0+2)}, {v(R)} clamp", f"v_mul_f32 {v(X0+3)}, {v(X0+3)}, {v(R)}",
              f"v_cvt_pk_bf16_f32 {v(N0)}, {v(X0)}, {v(X0+1)}", f"v_cvt_pk_bf16_f32 {v(N0+1)}, {v(X0+2)}, {v(X0+3)}",
              f"v_mul_f32_dpp {v(N0+3)}, {v(XM)}, {v(R)} quad_perm:[1,0,3,2] row_mask:0xf bank_mask:0xf")
            if check: A(f"s_cbranch_vccnz {Lslow}")
            A(f"v_mul_f32_e64 {v(XM)}, {v(XM)}, {v(R)} clamp",
              f"buffer_store_dwordx2 {v(N0,2)}, {v(PXO)}, {s(WS,4)}, s64 offen",
              f"v_cvt_pk_bf16_f32 {v(N0+2)}, {v(XM)}, {v(N0+3)}",
              f"buffer_store_dword {v(N0+2)}, {v(PMO)}, {s(WS,4)}, s64 offen")
        norm_store(True)
        A(f"{Lnorm}:")
        A(f"buffer_store_dwordx2 {v(N0,2)}, {v(PXO)}, {s(WS,4)}, s63 offen sc1", f"buffer_store_dword {v(N0+2)}, {v(PMO)}, {s(WS,4)}, s63 offen sc1",
          f"buffer_store_dword {v(IDX)}, {v(TMP2)}, {s(WS,4)}, s63 offen sc1")
        prof(A, 7, profile)
    if profile and PACCUM: prof_acc(A, 8)
    elif profile:
        prof_flush(A, 9, TMP, MEMR, 0)
        A(f"s_mov_b32 {s(S_PROF+16)}, 0")
    A("s_barrier")
    for r in range(28): A(f"v_mov_b32 {v(ACC+r)}, 0")
    if XPRE:
        if w < 2:
            if FULL: cv_wait(1)
            for j in range(min(XPRE, X_XSN)):
                if j % 4 == 0: A(f"s_add_u32 {s(S_TMP)}, {s(S_X)}, {28672 + 1024*j}")
                A(xld(j), nops(XPG))
    if w == 3:
        A(f"s_add_u32 s60, {s(S_VOX)}, 458752")
        if FULL:
            A(f"s_add_u32 {s(S_TMP)}, {s(S_P)}, {16384*(TAHEAD+1) + FROFF}", f"buffer_load_dword {v(TMP)}, off, {s(WS,4)}, {s(S_TMP)} sc1", "s_waitcnt vmcnt(0)",
              f"v_readfirstlane_b32 {s(S_TMP)}, {v(TMP)}", f"s_cmp_eq_u32 {s(S_TMP)}, 15", "s_cselect_b32 s60, s60, 0x40000000")
        if FULL and EXW == 5:
            A(f"ds_read_b128 {v(HT+48,4)}, {v(HT+47)} offset:{MIMG}", f"s_add_u32 {s(S_TMP)}, {s(S_MEM)}, s61", "s_waitcnt lgkmcnt(0)",
              f"buffer_store_dwordx4 {v(HT+48,4)}, {v(HT+47)}, {s(WS,4)}, {s(S_TMP)} offen sc1")
    if w == APW:
        if TGATE != 1: flag_poll(A, list(range(8, 8 + FPD)), TMP2, S_P, 0, abort, "A")
        A(nops(D1))
    A("s_barrier")
    if TLM:
        Lt = A.label("tl")
        A(f"s_lshl_b32 {s(S_TMP)}, {s(S_ROLE)}, 2", f"s_add_u32 {s(S_TMP)}, {s(S_TMP)}, {w}", f"s_cmp_lg_u32 {s(S_STEP)}, {s(S_TMP)}", f"s_cbranch_scc1 {Lt}", "s_memrealtime s[94:95]", f"{Lt}:")
    A(f"s_add_u32 {s(S_MEM)}, {s(S_MEM)}, 8192", f"s_add_u32 {s(S_MEM2)}, {s(S_MEM2)}, 8192", f"s_add_u32 {s(S_P)}, {s(S_P)}, 16384",
      f"s_add_u32 {s(S_X)}, {s(S_X)}, {32*896}", f"s_add_u32 {s(S_VOX)}, {s(S_VOX)}, 458752",
      f"s_add_u32 {s(S_STEP)}, {s(S_STEP)}, 1", f"s_cmp_lt_u32 {s(S_STEP)}, {NSTEPS}", f"s_cbranch_scc1 {Lstep}")
    if profile and PACCUM: prof_acc_out(A, 8)
    if STAMP: A("v_mov_b32 v0, s58", "s_mov_b64 exec, 1", f"buffer_atomic_add v0, off, {s(DBG,4)}, 0 offset:52", "s_mov_b64 exec, -1")
    if STAMP and w == 3:
        A("s_memrealtime s[52:53]", "s_memtime s[56:57]", "s_waitcnt lgkmcnt(0)", "s_sub_u32 s52, s52, s50", "s_sub_u32 s56, s56, s54", "v_mov_b32 v0, s52", "v_mov_b32 v1, s56",
          f"s_lshl_b32 {s(S_TMP)}, {s(S_ROLE)}, {10 if FULL else 3}", (f"buffer_store_dword v0, off, {s(DBG,4)}, {s(S_TMP)} offset:60" if FULL else f"buffer_store_dwordx2 v[0:1], off, {s(DBG,4)}, {s(S_TMP)} offset:64"))
    A("s_endpgm")
    A(f"{Lfail}:", issue(), f"s_sub_u32 {s(S_TO)}, {s(S_TO)}, 1", f"s_cbranch_scc1 {abort}")
    if STAMP: A(f"s_add_u32 s58, s58, 1")
    for r in range(16): A(f"v_mov_b32 {v(ACC+r)}, 0")
    A(f"s_branch {Lpoll}")
    if w == 3:
        A(f"{Lslow}:")
        A(f"v_max3_f32 {v(MX)}, {v(RAW)}, {v(RAW+1)}, {v(RAW+2)}", f"v_max3_f32 {v(MX)}, {v(MX)}, {v(RAW+3)}, {v(RAW+4)}")
        for d in dpps: A("s_nop 1", f"v_max_f32_dpp {v(MX)}, {v(MX)}, {v(MX)} {d} row_mask:0xf bank_mask:0xf")
        for j in range(5): A(f"v_sub_f32 {v(X0+j)}, {v(RAW+j)}, {v(MX)}")
        for j in range(5): A(f"v_exp_f32 {v(X0+j)}, {v(X0+j)}")
        A("s_nop 0")
        norm_store(False)
        A(f"s_branch {Lnorm}")

BW7 = 0
BMIMG = 57344
BVIMG = 65536
DB = 55

def role_B(A, w, abort, profile=False):
    import prep
    WFL = [' sc1', '', ' nt', ' sc1 nt'][WFI]
    pv = w < 2
    c, M = w % 2, w // 2
    NR = 6 if pv else 8
    WV0 = 256 - 8*(7*NR - 32)
    wrg = lambda f, n=8, sub=0: a_(8*f + sub, n) if f < 32 else v(WV0 + 8*(f-32) + sub, n)
    MEMR, ACC, VP = 0, 40, 48
    IDX, VL16, TMP, TMP2, VLV, VF2 = range(56, 62)
    if pv:
        VP2, VOX, SB, AC7, PACC, VST, R0 = 64, 72, 136, 152, 160, 164, 165
        assert 166 <= WV0
    VG, VN, VL = 1, 2, 3
    own = [2*w, 2*w+1] if w < 3 else [6]
    lane_consts(A, VL, VG, VN)
    idx_const(A, IDX, VN, TMP)
    A(f"v_lshlrev_b32 {v(VL16)}, 4, {v(VL)}", f"v_add_u32 {v(VLV)}, {BVIMG + 2048*c}, {v(VL16)}")
    A(f"s_sub_u32 {s(S_TMP)}, {s(S_ROLE)}, 16")
    if pv:
        A(f"v_lshlrev_b32 {v(VF2)}, 2, {v(VN)}", f"s_lshl_b32 {s(S_TMP2)}, {s(S_TMP)}, 7", f"s_add_u32 {s(S_TMP2)}, {s(S_TMP2)}, {F2OFF - 8192}", f"v_add_u32 {v(VF2)}, {s(S_TMP2)}, {v(VF2)}")
        VF1 = 166
        A(f"v_lshlrev_b32 {v(VF1)}, 8, {v(VL)}", f"s_lshl_b32 {s(S_TMP2)}, {s(S_TMP)}, 3", f"s_add_u32 {s(S_TMP2)}, {s(S_TMP2)}, {F1OFF - 8192 + 4*c}", f"v_add_u32 {v(VF1)}, {s(S_TMP2)}, {v(VF1)}",
          f"v_cmp_lt_u32 vcc, 3, {v(VL)}", f"v_mov_b32 {v(TMP)}, 0x40000000", "s_nop 0", f"v_cndmask_b32 {v(VF1)}, {v(VF1)}, {v(TMP)}, vcc")
        A(f"v_lshlrev_b32 {v(VST)}, 6, {v(VG)}", f"v_and_b32 {v(TMP)}, 1, {v(VN)}", f"v_lshl_add_u32 {v(VST)}, {v(TMP)}, 5, {v(VST)}",
          f"v_bfe_u32 {v(TMP)}, {v(VN)}, 1, 1", f"v_lshl_add_u32 {v(VST)}, {v(TMP)}, 4, {v(VST)}", f"v_lshrrev_b32 {v(TMP)}, 2, {v(VN)}", f"v_lshl_add_u32 {v(VST)}, {v(TMP)}, 2, {v(VST)}")
    A(f"s_mul_i32 {s(S_VOX)}, {s(S_TMP)}, {2*16*1024}",
      f"s_lshl_b32 {s(S_MEMN)}, {s(S_TMP)}, 9", f"s_add_u32 {s(S_MEMN)}, {s(S_MEMN)}, {MEMF_OFF + 8192 + 256*c:#x}",
      f"s_mul_i32 {s(S_TMP)}, {s(S_TMP)}, {2*14336}", f"s_add_u32 {s(S_TMP)}, {s(S_TMP)}, {WB_OFF + (8*M*28 + c)*14336:#x}",
      f"s_add_u32 {s(S_VOX)}, {s(S_VOX)}, {VOX_OFF + 16384*c:#x}")
    if FULL: prep.wait_tiles(A, 16, 16, abort, "B", S_TO, 4, 5)
    stg = [4, 64]
    if pv:
        for u in (6, 7):
            for kb in range(7):
                A(f"s_add_u32 {s(S_TMP2)}, {s(S_TMP)}, {u*28*14336 + kb*2048}")
                for hi in range(2):
                    d = v(64+8*kb+4*hi,4) if u == 6 else a_(200+8*kb+4*hi,4)
                    A(f"buffer_load_dwordx4 {d}, {v(VL16)}, {s(WS,4)}, {s(S_TMP2)} offen offset:{1024*hi}{WFL}")
    for u in range(NR):
        for kb in range(7):
            f = u*7 + kb
            A(f"s_add_u32 {s(S_TMP2)}, {s(S_TMP)}, {u*28*14336 + kb*2048}")
            for hi in range(2):
                A(f"buffer_load_dwordx4 {wrg(f,4,4*hi)}, {v(VL16)}, {s(WS,4)}, {s(S_TMP2)} offen offset:{1024*hi}{WFL}")
        if u >= 2 or pv: A("s_waitcnt vmcnt(28)")
        if pv and u == 1:
            for j in range(14): A(f"ds_write_b128 {v(VL16)}, {v(64+4*j,4)} offset:{BW7 + 2*w*14336 + j*1024}")
            for j in range(14): A(f"ds_write_b128 {v(VL16)}, {a_(200+4*j,4)} offset:{BW7 + (2*w+1)*14336 + j*1024}")
            A("s_waitcnt lgkmcnt(0)")
    if FULL: prep.wait_counters(A, 0, 32, abort, "B", S_TO, 4, 5)
    if pv: read_mode(A, 4)
    A(f"s_mov_b32 {s(S_STEP)}, 0", f"s_mov_b32 {s(S_MEM)}, {MEMF_OFF:#x}", f"s_mov_b32 {s(S_MEM2)}, {MEMF_OFF+4096:#x}",
      f"s_mov_b32 {s(S_P)}, {PF_OFF:#x}", f"s_mov_b32 {s(S_X)}, {PF_OFF + 4096:#x}", f"s_mov_b32 {s(S_P2)}, {PF_OFF + 8192:#x}", f"s_mov_b32 {s(S_TO)}, {TIMEOUT}")
    S_EM, S_FR, S_ODD = 64, 65, 66
    A(f"s_mov_b32 {s(S_FR)}, {PF_OFF + FROFF:#x}", f"s_mov_b32 {s(S_ODD)}, 0xaaaaaaaa", f"s_mov_b32 {s(S_ODD+1)}, 0xaaaaaaaa")
    A("s_waitcnt vmcnt(0) lgkmcnt(0)")
    if TLM: A("s_memrealtime s[92:93]")
    A(f"s_mov_b32 {s(S_PROF+10)}, 0")
    if STAMP: A("s_mov_b32 s58, 0", "s_mov_b32 s59, 0")
    if STAMP and w == 0: A("s_memtime s[54:55]")
    Lstep, Lpoll, Lok2 = [A.label(f"B{w}{x}") for x in ("step", "poll", "ok2")]
    mreg = lambda kb: MEMR + 4*kb
    mld = lambda kb: memload(mreg(kb), VL16, kb)
    if pv:
        voxld = lambda hh: f"buffer_load_dwordx4 {v(VOX + 4*hh, 4)}, {v(VL16)}, {s(WS,4)}, {s(S_TMP)} offen offset:{1024*(hh%4)} sc1"
        def voxpre(add):
            for hh in range(VPRE):
                if hh % 4 == 0: A(f"s_add_u32 {s(S_TMP)}, {s(S_VOX)}, {add + 1024*hh}")
                A(voxld(hh))
        voxpre(0)
        A(f"v_mov_b32 {v(TMP2)}, 0")
    else:
        A(f"v_lshlrev_b32 {v(VF2)}, 3, {v(VL16)}")
        A(f"s_sub_u32 {s(S_TMP)}, {s(S_ROLE)}, 16", f"s_cmp_lt_u32 {s(S_TMP)}, 7", f"s_cselect_b32 s70, {ALT:#x}, 0x40000000", f"s_min_u32 {s(S_TMP)}, {s(S_TMP)}, 6",
          f"s_lshl_b32 {s(S_TMP)}, {s(S_TMP)}, 10", f"v_add_u32 {v(32)}, {s(S_TMP)}, {v(VL16)}")
    A(f"{Lstep}:")
    A(f"{Lpoll}:")
    for kb in own:
        A(f"s_mov_b32 m0, {BMIMG + (kb - kb % 4)*1024}", "s_nop 0", f"buffer_load_dwordx4 {v(VL16)}, {s(WS,4)}, {s(S_MEM if kb < 4 else S_MEM2)} offen offset:{(kb%4)*1024} sc1 lds")
    for r in range(8): A(f"v_mov_b32 {v(ACC+r)}, 0")
    if pv:
        for j in range(8): A(f"v_mov_b32 {v(AC7+j)}, 0")
        for n in range(2):
            for hi in range(2): A(f"ds_read_b128 {v(SB + 8*n + 4*hi, 4)}, {v(VL16)} offset:{BW7 + (2*w + n)*14336 + hi*1024}")
        if FULL:
            Lc, Lg = A.label("bcv"), A.label("bcg")
            A(f"v_cmp_ne_u32 vcc, 15, {v(TMP2)}", f"s_cbranch_vccz {Lg}")
            A(f"{Lc}:", f"buffer_load_dword {v(TMP2)}, off, {s(WS,4)}, {s(S_FR)} sc1", "s_waitcnt vmcnt(0)", f"v_cmp_ne_u32 vcc, 15, {v(TMP2)}", f"s_cbranch_vccz {Lg}", "s_sleep 1")
            timeout_step(A, Lc, abort)
            A(f"{Lg}:")
    A("s_waitcnt vmcnt(0)", "s_barrier")
    if PACCUM: prof(A, 6, profile)
    korder = list(range(7))
    for kb in korder: A(f"ds_read_b128 {v(mreg(kb),4)}, {v(VL16)} offset:{BMIMG + kb*1024}")
    if not PB2: prof(A, 1, profile)
    cv = lambda r, u: [f"v_add_f32 {v(r)}, {v(r)}, {v(r+1)}", f"v_add_f32 {v(r+2)}, {v(r+2)}, {v(r+3)}", f"v_cvt_pk_bf16_f32 {v(VP+u)}, {v(r)}, {v(r+2)}"]
    ms, ustart = [], []
    if pv:
        reg = [(u, kb) for u in range(6) for kb in korder]
        stq = [(u, kb) for kb in korder for u in (6, 7)]
        seq = []
        for i, x in enumerate(reg):
            seq.append(x)
            if i % 3 == 2: seq.append(stq[i // 3])
    else:
        seq = [(u, kb) for u in range(8) for kb in korder]
    nst = 0
    for (u, kb) in seq:
        if u < NR: ms.append(smf(ACC + 4*(u % 2), mreg(kb), wrg(u*7+kb), IDX))
        else:
            ms.append(smf(AC7 + 4*(u-6), mreg(kb), v(SB + 8*(nst % 2), 8), IDX)); nst += 1
    slots = mkslots(ms)
    Lretry, Lcont = A.label("Bretry"), A.label("Bcont")
    last = {u: max(i for i, x in enumerate(seq) if x[0] == u) for u in range(8)}
    first = {u: min(i for i, x in enumerate(seq) if x[0] == u) for u in range(8)}
    tail = []
    for u in range(NR):
        r = ACC + 4*(u % 2)
        ops = cv(r, u) + ([f"v_mov_b32 {v(r+j)}, 0" for j in range(4)] if u + 2 < NR else [])
        st = last[u] + 2
        if st + 3 > len(slots): tail += ops; continue
        lim = first[u+2] - 2 if u + 2 < NR else len(slots) - 1
        for i, o in enumerate(ops): slots[min(st + i, lim)]['valu'].append(o)
    if pv:
        sts = [i for i, x in enumerate(seq) if x[0] >= 6]
        rd = lambda n: [f"ds_read_b128 {v(SB + 8*(n % 2) + 4*hi, 4)}, {v(VL16)} offset:{BW7 + (2*w + seq[sts[n]][0] - 6)*14336 + seq[sts[n]][1]*2048 + hi*1024}" for hi in range(2)]
        for n, i in enumerate(sts):
            if n + 2 < 14: slots[i+1]['pre'] += rd(n+2)
            if n >= 2: slots[i-1]['pre'].append(f"s_waitcnt lgkmcnt({2 if n + 1 < 14 else 0})")
        for hh in range(VPRE, 0 if X_NOVOX else 16):
            sl = 2 + VOXS*(hh - VPRE)
            if hh % 4 == 0: slots[sl]['pre'].append(f"s_add_u32 {s(S_TMP)}, {s(S_VOX)}, {1024*hh}")
            slots[sl]['pre'].append(voxld(hh))
        tail += cv(AC7, 6) + cv(AC7+4, 7)
        if FULL: slots[30]['pre'] += [f"s_add_u32 {s(S_TMP2)}, {s(S_FR)}, 16384", f"buffer_load_dword {v(TMP2)}, off, {s(WS,4)}, {s(S_TMP2)} sc1"]
        FR_ = list(range(28, 28 + FPD))
        for i, r in enumerate(FR_): slots[55 - 3*(FPD - 1 - i)]['pre'].append(flag_ld(r, VF2, S_P2, 0))
        for r in range(4): slots[40 + r]['valu'].append(f"v_mov_b32 {v(PACC+r)}, 0")
    if not pv:
        for i in range(BTOUCH):
            slots[BT0 + 2*i]['pre'] += [f"s_add_u32 {s(S_TMP)}, {s(S_VOX)}, {458752*BTA + 8192*(i + 2 - BTOUCH)}", f"buffer_load_dword {v(62+i)}, {v(VF2)}, {s(WS,4)}, {s(S_TMP)} offen sc1"]
    if FULL and w == EXW:
        A(f"ds_read_b128 {v(28,4)}, {v(32)} offset:{BMIMG}", f"s_add_u32 {s(S_EM)}, {s(S_MEM)}, s70")
        slots[3]['pre'].append(f"buffer_store_dwordx4 {v(28,4)}, {v(32)}, {s(WS,4)}, {s(S_EM)} offen sc1")
    where = [i for i, sl in enumerate(slots) if any(o.startswith(f"v_cvt_pk_bf16_f32 {v(VP)},") for o in sl['valu'])][0]
    slots[where]['valu'].insert(0, f"v_cmp_u_f32 vcc, {v(ACC)}, {v(ACC+2)}")
    slots[where+2]['pre'] += [f"s_cbranch_vccnz {Lretry}", f"{Lcont}:"]
    seen = 0
    A("s_waitcnt lgkmcnt(6)")
    for i, (u, kb) in enumerate(seq[:10]):
        nxt = seq[i+1]
        if nxt[0] == 0 and nxt[1] > seen:
            seen = nxt[1]
            extra = sum(1 for sl in slots[:i+1] for o in sl['pre'] if o.startswith("ds_read"))
            slots[i]['pre'].append(f"s_waitcnt lgkmcnt({6 - seen + extra})")
    if profile and FSD:
        for k in range(5):
            if FS0 + k*FSD < 56: slots[FS0 + k*FSD]['pre'].insert(0, f"s_memtime {s(S_PROF+4+2*k,2)}")
    if X_NOV:
        for sl in slots: sl['m'] = ""
    emit_slots(A, slots)
    if PACCUM: prof(A, 7, profile)
    A("s_nop 7", tail)
    if not pv:
        A(f"ds_write_b128 {v(VLV)}, {v(VP,4)}", f"ds_write_b128 {v(VLV)}, {v(VP+4,4)} offset:1024", "s_waitcnt lgkmcnt(0)")
    A("s_barrier")
    if not PB2: prof(A, 2, profile)
    if not pv:
        A("s_barrier", nops(DB))
    else:
        A(f"ds_read_b128 {v(VP2,4)}, {v(VLV)}", f"ds_read_b128 {v(VP2+4,4)}, {v(VLV)} offset:1024")
        A(f"s_add_u32 s60, {s(S_MEMN)}, {s(S_SLOW)}", f"s_add_u32 s61, {s(S_P2)}, {s(S_SLOW)}", "s_xor_b32 s62, s60, 0x40000000", "s_xor_b32 s63, s61, 0x40000000")
        flag_poll(A, FR_, VF2, S_P2, 0, abort, "B", primed=True)
        if TGATE == 2: A(f"buffer_store_dword {v(IDX)}, {v(VF1)}, {s(WS,4)}, s63 offen")
        A(nops(D2))
        prof(A, 0, profile)
        porder = [(c*4 + i) % 8 for i in range(8)] + [8, 9]
        pld = lambda k: f"buffer_load_dwordx4 {v(4*k,4)}, {v(VL16)}, {s(WS,4)}, {s([S_P, S_X, S_P2][k//4])} offen offset:{1024*(k%4)} sc1"
        bop = lambda k: v(VOX + 8*k, 8) if k < 8 else v(VP if k == 8 else VP2, 8)
        Lpp, Lbad = A.label("pp"), A.label("bad")
        A(f"{Lpp}:")
        if profile and not FSD: A(f"s_add_u32 {s(S_PROF+10)}, {s(S_PROF+10)}, 1")
        for k in porder: A(pld(k))
        A("s_waitcnt lgkmcnt(0)")
        for i, k in enumerate(porder):
            A(f"s_waitcnt vmcnt({9-i})")
            if i == 0: prof(A, 3, profile)
            if i == 9 and PB2: prof(A, 1, profile)
            A(smf(PACC, 4*k, bop(k), IDX))
        Lgood = A.label("good")
        a, b = PACC, PACC+2
        A(f"s_mov_b64 vcc, {s(S_ODD,2)}", "s_nop 6")
        A(f"v_add_f32 {v(a)}, {v(a)}, {v(a+1)}", f"v_add_f32 {v(b)}, {v(b)}, {v(b+1)}", f"v_cmp_u_f32 {s(68,2)}, {v(a)}, {v(b)}",
          f"v_cndmask_b32_dpp {v(b+1)}, {v(a)}, {v(b)}, vcc quad_perm:[1,0,3,2] row_mask:0xf bank_mask:0xf", "s_not_b64 vcc, vcc",
          f"v_cndmask_b32_dpp {v(a+1)}, {v(b)}, {v(a)}, vcc quad_perm:[1,0,3,2] row_mask:0xf bank_mask:0xf",
          f"s_cmp_lg_u64 {s(68,2)}, 0", f"v_cvt_pk_bf16_f32 {v(R0)}, {v(a+1)}, {v(b+1)}", f"s_cbranch_scc1 {Lbad}", f"{Lgood}:",
          f"buffer_store_dword {v(R0)}, {v(VST)}, {s(WS,4)}, s62 offen")
        A(f"buffer_store_dword {v(R0)}, {v(VST)}, {s(WS,4)}, s60 offen sc1", f"buffer_store_dword {v(IDX)}, {v(VF1)}, {s(WS,4)}, s61 offen sc1")
        if FULL:
            Lq = A.label("Bq")
            A(f"s_add_u32 {s(S_EM)}, {s(S_MEMN)}, {ALT:#x}", f"s_cmp_lg_u32 {s(S_STEP)}, {NSTEPS-1}", f"s_cbranch_scc1 {Lq}", f"buffer_store_dword {v(R0)}, {v(VST)}, {s(WS,4)}, {s(S_EM)} offen sc1", f"{Lq}:")
        prof(A, 4, profile)
        A("s_barrier")
        voxpre(458752)
        A(nops(max(0, DB - 4*VPRE)))
    if profile and PACCUM: prof_acc(A, 8)
    elif profile:
        prof_flush(A, 6, TMP, TMP2, 0)
        A(f"s_mov_b32 {s(S_PROF+10)}, 0")
    A(f"s_add_u32 {s(S_MEM)}, {s(S_MEM)}, 8192", f"s_add_u32 {s(S_MEM2)}, {s(S_MEM2)}, 8192", f"s_add_u32 {s(S_MEMN)}, {s(S_MEMN)}, 8192",
      f"s_add_u32 {s(S_P)}, {s(S_P)}, 16384", f"s_add_u32 {s(S_P2)}, {s(S_P2)}, 16384", f"s_add_u32 {s(S_X)}, {s(S_X)}, 16384", f"s_add_u32 {s(S_VOX)}, {s(S_VOX)}, {0 if X_FIXVOX else 28*16*1024}",
      f"s_add_u32 {s(S_FR)}, {s(S_FR)}, 16384",
      f"s_add_u32 {s(S_STEP)}, {s(S_STEP)}, 1", f"s_cmp_lt_u32 {s(S_STEP)}, {NSTEPS}", f"s_cbranch_scc1 {Lstep}")
    if profile and PACCUM: prof_acc_out(A, 8)
    if STAMP: A("v_mov_b32 v0, s58", "v_mov_b32 v1, s59", "s_mov_b64 exec, 1", f"buffer_atomic_add v0, off, {s(DBG,4)}, 0 offset:56", f"buffer_atomic_add v1, off, {s(DBG,4)}, 0 offset:48", "s_mov_b64 exec, -1")
    if STAMP and w == 0 and not FULL:
        A("s_memtime s[56:57]", "s_waitcnt lgkmcnt(0)", "s_sub_u32 s56, s56, s54", "v_mov_b32 v1, s56",
          f"s_lshl_b32 {s(S_TMP)}, {s(S_ROLE)}, 2", f"buffer_store_dword v1, off, {s(DBG,4)}, {s(S_TMP)} offset:128")
    A("s_endpgm")
    A(f"{Lretry}:")
    for kb in range(7): A(chk4(TMP, mreg(kb), kb == 0))
    A(f"v_cmp_eq_u32 vcc, -1, {v(TMP)}", f"s_cbranch_vccz {Lcont}", "s_waitcnt lgkmcnt(0)", "s_barrier")
    if STAMP: A("s_add_u32 s58, s58, 1")
    timeout_step(A, Lpoll, abort)
    if pv:
        A(f"{Lbad}:")
        for k in range(10): A(chk4(TMP, 4*k, k == 0))
        A(f"v_min_u32 {v(R0)}, -2, {v(R0)}", f"v_cmp_eq_u32 vcc, -1, {v(TMP)}", f"s_cbranch_vccz {Lgood}")
        if STAMP: A("s_add_u32 s59, s59, 1")
        for r in range(4): A(f"v_mov_b32 {v(PACC+r)}, 0")
        timeout_step(A, Lpp, abort)

def role_PF(A, abort):
    import prep
    WFL = [' sc1', '', ' nt', ' sc1 nt'][WFI]
    AHEAD = PFA
    A("; ---------------- prefetcher")
    if FULL:
        prep.wait_tiles(A, 16, 16, abort, "P", S_TO, 4, 5)
        prep.wait_counters(A, 0, 32, abort, "P", S_TO, 4, 5, sleep=30)
    A("v_and_b32 v3, 63, v0", "v_lshlrev_b32 v1, 7, v3", "v_mov_b32 v2, 0", "v_mov_b32 v12, 0")
    A(f"s_sub_u32 {s(S_TMP2)}, {s(S_ROLE)}, 30", f"s_lshl_b32 {s(S_TMP2)}, {s(S_TMP2)}, 2", f"s_add_u32 {s(S_TMP2)}, {s(S_TMP2)}, {s(S_WAVE)}")
    A(f"s_lshl_b32 {s(S_TMP2)}, {s(S_TMP2)}, 13")
    A(f"s_mov_b32 {s(S_STEP)}, 0", f"s_mov_b32 {s(S_TO)}, {TIMEOUT}")
    if FULL:
        A(f"s_mov_b32 {s(S_P)}, {PF_OFF + FROFF:#x}")
    A(f"s_add_u32 {s(S_X)}, {s(S_TMP2)}, {XS_OFF:#x}", f"s_mov_b32 {s(S_P2)}, 28672")
    L1, L2 = A.label("pf1"), A.label("pf2")
    A(f"s_cmp_lt_u32 {s(S_TMP2)}, {4*8192}", f"s_cbranch_scc1 {L2}")
    A(f"s_mov_b32 {s(S_X)}, {MEMF_OFF + 8192:#x}", f"s_mov_b32 {s(S_P2)}, 8192")
    A(f"s_cmp_eq_u32 {s(S_TMP2)}, {4*8192}", f"s_cbranch_scc1 {L2}")
    A(f"s_and_b32 {s(S_X)}, {s(S_TMP2)}, 8192", f"s_add_u32 {s(S_X)}, {s(S_X)}, {PF_OFF:#x}", f"s_mov_b32 {s(S_P2)}, 16384")
    A(f"{L2}:")
    A(f"s_add_u32 {s(S_VOX)}, {s(S_TMP2)}, {VOX_OFF:#x}", f"s_cmp_eq_u32 {s(S_TMP2)}, {7*8192}",
      f"s_cselect_b32 {s(S_X)}, 0x40000000, {s(S_X)}", f"s_mov_b32 {s(S_MEM)}, {MEMF_OFF - AHEAD*8192:#x}")
    Lstep, Lpoll, Lgo = A.label("pfstep"), A.label("pfpoll"), A.label("pfgo")
    A("v_mov_b32 v4, -1")
    A(f"{Lstep}:", f"s_cmp_lt_u32 {s(S_STEP)}, {AHEAD+1}", f"s_cbranch_scc1 {Lgo}")
    A("v_cmp_eq_u32 vcc, -1, v4", f"s_cbranch_vccz {Lgo}")
    A(f"{Lpoll}:", f"buffer_load_dword v4, v2, {s(WS,4)}, {s(S_MEM)} offen sc1", "s_waitcnt vmcnt(0)", "v_cmp_eq_u32 vcc, -1, v4", f"s_cbranch_vccz {Lgo}", "s_sleep 2")
    timeout_step(A, Lpoll, abort)
    A(f"{Lgo}:")
    if FULL:
        Lc, Lcg = A.label("pfc"), A.label("pfcg")
        A("v_cmp_ne_u32 vcc, 15, v12", f"s_cbranch_vccz {Lcg}")
        A(f"{Lc}:", f"buffer_load_dword v12, off, {s(WS,4)}, {s(S_P)} sc1", "s_waitcnt vmcnt(0)", "v_cmp_ne_u32 vcc, 15, v12", f"s_cbranch_vccz {Lcg}", "s_sleep 2")
        timeout_step(A, Lc, abort)
        A(f"{Lcg}:", f"s_add_u32 {s(S_P)}, {s(S_P)}, 16384", f"buffer_load_dword v12, off, {s(WS,4)}, {s(S_P)} sc1")
    A(f"s_add_u32 {s(S_MEM)}, {s(S_MEM)}, 8192", f"buffer_load_dword v4, v2, {s(WS,4)}, {s(S_MEM)} offen sc1")
    A(f"buffer_load_dword v5, v1, {s(WS,4)}, {s(S_X)} offen sc1")
    for j in range(PF_VOX):
        A(f"s_add_u32 {s(S_TMP)}, {s(S_VOX)}, {65536*j}", f"buffer_load_dword v{6+j}, v1, {s(WS,4)}, {s(S_TMP)} offen sc1")
    A(f"s_add_u32 {s(S_X)}, {s(S_X)}, {s(S_P2)}", f"s_add_u32 {s(S_VOX)}, {s(S_VOX)}, {28*16*1024}",
      f"s_waitcnt vmcnt({1 + PF_VOX})",
      f"s_add_u32 {s(S_STEP)}, {s(S_STEP)}, 1", f"s_cmp_lt_u32 {s(S_STEP)}, {NSTEPS + 1}", f"s_cbranch_scc1 {Lstep}", "s_endpgm")

PF_VOX = 2
def rec_kernel(A, name, profile=False):
    kernel_begin(A, name)
    Lexit = A.label("exit")
    A("s_cmp_ge_u32 s2, 256", f"s_cbranch_scc1 {Lexit}")
    srd(A, WS, 96, 0x10000000); srd(A, XB, 24, 1835008); srd(A, DBG, 88, 256)
    A(f"s_getreg_b32 {s(S_TMP)}, hwreg(HW_REG_XCC_ID)", f"s_and_b32 {s(S_TMP)}, {s(S_TMP)}, 15", f"s_cmp_lg_u32 {s(S_TMP)}, 0", f"s_cbranch_scc1 {Lexit}")
    A("v_lshrrev_b32 v1, 6, v0", "s_nop 0", f"v_readfirstlane_b32 {s(S_WAVE)}, v1", "s_waitcnt lgkmcnt(0)")
    Lw = A.label("notw0")
    A(f"s_cmp_lg_u32 {s(S_WAVE)}, 0", f"s_cbranch_scc1 {Lw}")
    A("v_mov_b32 v1, 1", "v_mov_b32 v2, 0", "s_mov_b64 exec, 1",
      f"buffer_atomic_add v1, v2, {s(DBG,4)}, 0 offen sc0", "s_waitcnt vmcnt(0)", "ds_write_b32 v2, v1 offset:32768", "s_waitcnt lgkmcnt(0)", "s_mov_b64 exec, -1")
    A(f"{Lw}:", "s_barrier", "v_mov_b32 v2, 0", "ds_read_b32 v1, v2 offset:32768", "s_waitcnt lgkmcnt(0)", f"v_readfirstlane_b32 {s(S_ROLE)}, v1", "s_barrier")
    LPF = A.label("rolePF")
    A(f"s_cmp_ge_u32 {s(S_ROLE)}, 32", f"s_cbranch_scc1 {Lexit}")
    A(f"s_cmp_ge_u32 {s(S_ROLE)}, 30", f"s_cbranch_scc1 {LPF}")
    LB = A.label("roleB")
    A(f"s_cmp_ge_u32 {s(S_ROLE)}, 16", f"s_cbranch_scc1 {LB}")
    for R, fn in (("A", role_A), ("B", role_B)):
        if R == "B": A(f"{LB}:")
        Ls = [A.label(f"{R}w{w}") for w in range(4)]
        for w in range(1, 4):
            A(f"s_cmp_eq_u32 {s(S_WAVE)}, {w}", f"s_cbranch_scc1 {Ls[w]}")
        for w in range(4):
            A(f"{Ls[w]}:")
            fn(A, w, Lexit, profile)
    A(f"{LPF}:")
    role_PF(A, Lexit)
    A(f"{Lexit}:", "s_endpgm")
    A(kernel_desc(name))

def generate(path, profile=False, **kw):
    g = globals(); saved = {k: g[k] for k in kw}
    g.update(kw)
    A = Asm()
    A("; @launch kernel=rec_kernel grid=(256,1,1) block=(256,1,1) lds=131072")
    A('.amdgcn_target "amdgcn-amd-amdhsa--gfx950"', ".text")
    rec_kernel(A, "rec_kernel", profile=bool(profile))
    t = A.text().replace("    ; @launch", "; @launch")
    if profile == 2: t = t.replace("s_memtime", "s_memrealtime")
    if LDFL == 1: t = t.replace(" sc1\n", " nt\n")
    if LDFL == 2: t = t.replace(" sc1\n", " sc0 sc1\n")
    open(path, "w").write(t)
    g.update(saved)

if __name__ == "__main__":
    import sys
    generate(sys.argv[1], len(sys.argv) > 2)
```

```python
from asm import *
from model import *
import prep
from rec import WS, XB, DBG, S_WAVE, S_ROLE, S_TO, S_TMP, S_TMP2, wreg, timeout_step, TIMEOUT, idx_const, chk4, smf, FROFF
OUT, XA = 48, 52
S_SEG, S_H, S_A, S_B, S_C, S_D, S_BUF = range(56, 63)
NV, NX, NPG = 4, 3, 3
RP = 912
XBUF = 32*RP
W_TIMEOUT = 300000
WTOUCH = 1
XDELAY = 2
YSLEEP = 30
YSEG = 3
PVGAP = 10
VDELAY = 0
WSLEEP = 4
TLM = 0

def mfma(d, a, b, c=None, k16=False):
    op = "v_mfma_f32_16x16x16_bf16" if k16 else "v_mfma_f32_16x16x32_bf16"
    return f"{op} {v(d,4)}, {a}, {b}, " + (v(d,4) if c is None else c)
def wr4(f):
    return a_(4*f, 4) if f < 64 else v(120 + 4*(f-64), 4)

def lanes(A, VL, VG, VN, VL16):
    A(f"v_and_b32 {v(VL)}, 63, v0", f"v_lshrrev_b32 {v(VG)}, 4, {v(VL)}", f"v_and_b32 {v(VN)}, 15, {v(VL)}", f"v_lshlrev_b32 {v(VL16)}, 4, {v(VL)}")

def load_weights(A, base, VL16, share=0, vt=16):
    if share and WTOUCH:
        n = -(-49 // (share*4))
        A(f"v_lshlrev_b32 {v(vt)}, 3, {v(VL16)}", f"s_lshl_b32 {s(S_TMP2)}, {s(S_SEG)}, 2", f"s_add_u32 {s(S_TMP2)}, {s(S_TMP2)}, {s(S_WAVE)}", f"s_lshl_b32 {s(S_TMP2)}, {s(S_TMP2)}, 13",
          f"s_mul_i32 {s(S_TMP)}, {s(S_H)}, {28*14336}", f"s_add_u32 {s(S_TMP)}, {s(S_TMP)}, {s(S_TMP2)}", f"s_add_u32 {s(S_TMP)}, {s(S_TMP)}, {base:#x}")
        for i in range(n):
            if (i+1)*share*4 > 49:
                A(f"s_cmp_lt_u32 {s(S_TMP2)}, {(49 - i*share*4)*8192}", f"s_cselect_b32 {s(S_TMP)}, {s(S_TMP)}, 0x40000000")
            A(f"buffer_load_dword {v(vt+1+i)}, {v(vt)}, {s(WS,4)}, {s(S_TMP)} offen sc1", f"s_add_u32 {s(S_TMP)}, {s(S_TMP)}, {share*4*8192}")
    A(f"s_mul_i32 {s(S_TMP)}, {s(S_H)}, {28*14336}", f"s_mul_i32 {s(S_TMP2)}, {s(S_WAVE)}, {7*14336}", f"s_add_u32 {s(S_TMP)}, {s(S_TMP)}, {s(S_TMP2)}",
      f"s_add_u32 {s(S_TMP)}, {s(S_TMP)}, {base:#x}")
    for f in range(98):
        A(f"buffer_load_dwordx4 {wr4(f)}, {v(VL16)}, {s(WS,4)}, {s(S_TMP)} offen offset:{1024*(f%4)} sc1")
        if f % 4 == 3: A(f"s_add_u32 {s(S_TMP)}, {s(S_TMP)}, 4096")
        if f % 16 == 15 and f > 30: A("s_waitcnt vmcnt(32)")

def dma_x(A, seg_s, buf_s, VL16, XB=XB):
    A(f"s_mul_i32 {s(S_TMP)}, {s(seg_s)}, 28672", f"s_mul_i32 {s(S_TMP2)}, {s(S_WAVE)}, {8*896}", f"s_add_u32 {s(S_TMP)}, {s(S_TMP)}, {s(S_TMP2)}",
      f"s_mul_i32 {s(S_TMP2)}, {s(S_WAVE)}, {8*RP}", f"s_add_u32 {s(S_TMP2)}, {s(S_TMP2)}, {s(buf_s)}",
      "s_mov_b32 exec_hi, 0x00ffffff")
    for r in range(8):
        A(f"s_mov_b32 m0, {s(S_TMP2)}", f"s_add_u32 {s(S_TMP2)}, {s(S_TMP2)}, {RP}", f"buffer_load_dwordx4 {v(VL16)}, {s(XB,4)}, {s(S_TMP)} offen lds", f"s_add_u32 {s(S_TMP)}, {s(S_TMP)}, 896")
    A("s_mov_b32 exec_hi, -1")

def poll_eq(A, vt, voff, soff, want, abort, tag, ne=False, sleep=None):
    Lp, Lgo = A.label(tag + "p"), A.label(tag + "go")
    A(f"{Lp}:", f"buffer_load_dword {v(vt)}, {v(voff)}, {s(WS,4)}, {s(soff)} offen sc1", "s_waitcnt vmcnt(0)",
      f"v_cmp_{'eq' if ne else 'ne'}_u32 vcc, {want}, {v(vt)}", f"s_cbranch_vccz {Lgo}", f"s_sleep {sleep or WSLEEP}")
    timeout_step(A, Lp, abort)
    A(f"{Lgo}:")

def divmod_const(A, q, r, x, d):
    m = (65536 + d - 1) // d
    assert all((i*m) >> 16 == i // d for i in range(256))
    A(f"s_mul_i32 {s(q)}, {s(x)}, {m}", f"s_lshr_b32 {s(q)}, {s(q)}, 16", f"s_mul_i32 {s(r)}, {s(q)}, {d}", f"s_sub_u32 {s(r)}, {s(x)}, {s(r)}")

VMID = 4
def yield_start(A, abort, tag, va, vt):
    for _ in range(XDELAY): A("s_sleep 127")
    if not XDELAY: prep.wait_tiles(A, 16, 16, abort, tag, S_TO, vt, va, st=(68, 69, 70))
    prep.wait_counters(A, 0, 32, abort, tag, S_TO, vt, va, sleep=YSLEEP)
    if YSEG < 0: return
    Lg = A.label("ys")
    A(f"s_cmp_lg_u32 {s(S_WAVE)}, 0", f"s_cbranch_scc1 {Lg}", f"v_mov_b32 {v(va)}, 0", f"s_mov_b32 {s(S_A)}, {PF_OFF + FROFF + 16384*YSEG:#x}")
    poll_eq(A, vt, va, S_A, 15, abort, tag + "y", sleep=YSLEEP)
    A(f"{Lg}:", "s_barrier")

def gemm_seg(A, ACC, FR, VRD, x_is_A, hook=None):
    rd = lambda ks: [f"ds_read_b128 {v(FR + 8*(ks % 2) + 4*t, 4)}, {v(VRD+t)} offset:{64*ks}" for t in range(2)]
    A(rd(0))
    for ks in range(14):
        if hook and hook[0] == ks: hook[1]()
        if ks + 1 < 14: A(rd(ks+1), "s_waitcnt lgkmcnt(2)")
        else: A("s_waitcnt lgkmcnt(0)")
        for cb in range(7):
            for t in range(2):
                xf, wf = v(FR + 8*(ks % 2) + 4*t, 4), wr4(cb*14 + ks)
                a, b = (xf, wf) if x_is_A else (wf, xf)
                A(mfma(ACC + 8*cb + 4*t, a, b, "0" if ks == 0 else None))

def role_V(A, abort):
    VL, VG, VN, VL16, T, VR0, VR1, VRD, VRD1, IDX = range(1, 11)
    ACC, FR, PK = 16, 72, 88
    S_J, S_PREV = S_C, S_D
    A("; ---------------- role V")
    lanes(A, VL, VG, VN, VL16)
    divmod_const(A, S_H, S_SEG, S_ROLE, NV)
    A(f"s_mov_b32 {s(S_J)}, {s(S_SEG)}", f"s_mov_b32 {s(S_BUF)}, 0", f"s_mov_b32 {s(S_PREV)}, 0x40000000", f"s_mov_b32 {s(S_TO)}, {W_TIMEOUT}")
    dma_x(A, S_SEG, S_BUF, VL16)
    A(f"s_add_u32 {s(S_A)}, {s(S_H)}, 16")
    prep.wait_tiles(A, s(S_A), 1, abort, "V", S_TO, 14, 15, st=(68, 69, 70))
    load_weights(A, WB_OFF, VL16, NV, 20)
    prep.wait_counters(A, 0, 32, abort, "V", S_TO, 14, 15)
    VXS = 11
    A(f"v_lshrrev_b32 {v(T)}, 3, {v(VN)}", f"v_lshlrev_b32 {v(VXS)}, 4, {v(T)}", f"v_and_b32 {v(T)}, 3, {v(VN)}", f"v_lshl_add_u32 {v(VXS)}, {v(T)}, 2, {v(VXS)}",
      f"v_bfe_u32 {v(T)}, {v(VN)}, 2, 1", f"v_lshl_add_u32 {v(VXS)}, {v(T)}, 1, {v(VXS)}", f"v_mul_u32_u24 {v(VXS)}, {RP}, {v(VXS)}",
      f"v_mul_u32_u24 {v(T)}, 224, {v(VG)}", f"v_add_u32 {v(VXS)}, {v(VXS)}, {v(T)}",
      f"s_cmp_ge_u32 {s(S_H)}, 7", f"s_cselect_b32 {s(S_TMP)}, {RP - 7*32}, 0", f"s_lshl_b32 {s(S_TMP2)}, {s(S_H)}, 5", f"s_add_u32 {s(S_TMP)}, {s(S_TMP)}, {s(S_TMP2)}", f"v_add_u32 {v(VXS)}, {s(S_TMP)}, {v(VXS)}",
      f"s_lshl_b32 s63, {s(S_H)}, 11", f"s_add_u32 s63, s63, {XS_OFF:#x}", f"s_cmp_lt_u32 {s(S_H)}, 14", "s_cselect_b32 s63, s63, 0x40000000", f"s_cmp_eq_u32 {s(S_WAVE)}, 3", "s_cselect_b32 s63, s63, 0x40000000")
    A(f"v_lshrrev_b32 {v(T)}, 2, {v(VN)}", f"v_lshlrev_b32 {v(VR0)}, 3, {v(T)}", f"v_and_b32 {v(T)}, 3, {v(VN)}", f"v_add_u32 {v(VR0)}, {v(VR0)}, {v(T)}",
      f"v_mul_u32_u24 {v(VR0)}, {RP}, {v(VR0)}", f"v_lshl_add_u32 {v(VR0)}, {v(VG)}, 4, {v(VR0)}", f"v_add_u32 {v(VR1)}, {4*RP}, {v(VR0)}")
    idx_const(A, IDX, VN, T)
    def signal(so):
        A(f"s_cmp_eq_u32 {s(S_WAVE)}, 0", f"s_cselect_b32 {s(S_B)}, {s(so)}, 0x40000000",
          f"v_mov_b32 {v(T)}, 1", "s_mov_b64 exec, 1", f"buffer_atomic_add {v(T)}, off, {s(WS,4)}, {s(S_B)} sc1", "s_mov_b64 exec, -1", "s_nop 3")
    Lp = A.label("Vloop")
    A("s_waitcnt vmcnt(0)", "s_barrier")
    if TLM: A("s_memrealtime s[92:93]")
    A(f"{Lp}:")
    A(f"v_add_u32 {v(VRD)}, {s(S_BUF)}, {v(VR0)}", f"v_add_u32 {v(VRD+1)}, {s(S_BUF)}, {v(VR1)}", f"v_add_u32 {v(12)}, {s(S_BUF)}, {v(VXS)}")
    A(f"s_xor_b32 {s(S_BUF)}, {s(S_BUF)}, {32768}", f"s_add_u32 {s(S_A)}, {s(S_SEG)}, {NV}")
    dma_x(A, S_A, S_BUF, VL16)
    def mid():
        A("s_waitcnt vmcnt(8)", "s_barrier")
        signal(S_PREV)
    gemm_seg(A, ACC, FR, VRD, True, hook=(VMID, mid))
    A(f"s_mul_i32 {s(S_TMP)}, {s(S_SEG)}, 458752", f"s_mul_i32 {s(S_TMP2)}, {s(S_WAVE)}, {7*16384}", f"s_add_u32 {s(S_TMP)}, {s(S_TMP)}, {s(S_TMP2)}",
      f"s_lshl_b32 {s(S_TMP2)}, {s(S_H)}, 10", f"s_add_u32 {s(S_TMP)}, {s(S_TMP)}, {s(S_TMP2)}", f"s_add_u32 {s(S_TMP)}, {s(S_TMP)}, {VOX_OFF:#x}",
      f"s_lshl_b32 {s(S_PREV)}, {s(S_SEG)}, 14", f"s_add_u32 {s(S_PREV)}, {s(S_PREV)}, {PF_OFF + FROFF:#x}")
    A(f"ds_read_b128 {v(FR,4)}, {v(12)}", f"ds_read_b128 {v(FR+4,4)}, {v(12)} offset:16", f"s_mul_i32 {s(S_TMP2)}, {s(S_SEG)}, 28672", f"s_add_u32 {s(S_TMP2)}, {s(S_TMP2)}, s63")
    A("s_waitcnt vmcnt(1) lgkmcnt(0)", "s_barrier")
    b = FR
    A(f"v_swap_b32 {v(b+1)}, {v(b+2)}", f"v_swap_b32 {v(b+2)}, {v(b+4)}", f"v_swap_b32 {v(b+3)}, {v(b+6)}", f"v_swap_b32 {v(b+6)}, {v(b+5)}",
      f"buffer_store_dwordx4 {v(b,4)}, {v(VL16)}, {s(WS,4)}, {s(S_TMP2)} offen sc1", f"buffer_store_dwordx4 {v(b+4,4)}, {v(VL16)}, {s(WS,4)}, {s(S_TMP2)} offen offset:1024 sc1")
    for cb in range(7):
        d = ACC + 8*cb
        for r in range(4): A(f"v_cvt_pk_bf16_f32 {v(PK+4*cb+r)}, {v(d+2*r)}, {v(d+2*r+1)}")
        A(f"buffer_store_dwordx4 {v(PK+4*cb,4)}, {v(VL16)}, {s(WS,4)}, {s(S_TMP)} offen sc1", f"s_add_u32 {s(S_TMP)}, {s(S_TMP)}, 16384")
    Lnf = A.label("Vnf")
    A(f"s_cmp_ge_u32 {s(S_SEG)}, {NV}", f"s_cbranch_scc1 {Lnf}", "s_waitcnt vmcnt(0)", "s_barrier")
    signal(S_PREV)
    A(f"s_mov_b32 {s(S_PREV)}, 0x40000000", f"{Lnf}:")
    A(f"s_add_u32 {s(S_SEG)}, {s(S_SEG)}, {NV}", f"s_cmp_lt_u32 {s(S_SEG)}, 64", f"s_cbranch_scc1 {Lp}")
    A("s_waitcnt vmcnt(0)", "s_barrier")
    signal(S_PREV)
    if TLM: A("s_memrealtime s[94:95]")
    MF = 72
    A(f"s_mov_b32 {s(S_SEG)}, {s(S_J)}")
    Lq, Lm, Lmo = A.label("Vq"), A.label("Vm"), A.label("Vmo")
    A(f"{Lq}:")
    for r in range(28): A(f"v_mov_b32 {v(ACC+r)}, 0")
    A(f"s_lshl_b32 {s(S_A)}, {s(S_SEG)}, 13", f"s_add_u32 {s(S_A)}, {s(S_A)}, {MEMS_OFF:#x}", f"s_add_u32 {s(S_B)}, {s(S_A)}, 4096")
    A(f"v_mov_b32 {v(12)}, 7164")
    poll_eq(A, T, 12, S_A, -1, abort, "vm", ne=True, sleep=1)
    A(f"{Lm}:")
    for kb in range(7): A(f"buffer_load_dwordx4 {v(MF+4*kb,4)}, {v(VL16)}, {s(WS,4)}, {s(S_A if kb < 4 else S_B)} offen offset:{1024*(kb%4)} sc1")
    A("s_waitcnt vmcnt(0)")
    for kb in range(7): A(chk4(T, MF+4*kb, kb == 0))
    A(f"v_cmp_eq_u32 vcc, -1, {v(T)}", f"s_cbranch_vccz {Lmo}")
    timeout_step(A, Lm, abort)
    A(f"{Lmo}:")
    for kb in range(7):
        for cb in range(7):
            f = cb*14 + 2*kb
            A(smf(ACC + 4*cb, MF + 4*kb, a_(4*f, 8) if f < 64 else v(120 + 4*(f-64), 8), IDX))
    A(f"s_mul_i32 {s(S_TMP)}, {s(S_SEG)}, 114688", f"s_mul_i32 {s(S_TMP2)}, {s(S_WAVE)}, {7*4096}", f"s_add_u32 {s(S_TMP)}, {s(S_TMP)}, {s(S_TMP2)}",
      f"s_lshl_b32 {s(S_TMP2)}, {s(S_H)}, 8", f"s_add_u32 {s(S_TMP)}, {s(S_TMP)}, {s(S_TMP2)}", f"s_add_u32 {s(S_TMP)}, {s(S_TMP)}, {VPE_OFF:#x}", f"v_lshlrev_b32 {v(13)}, 2, {v(VL)}", "s_nop 1")
    for cb in range(7):
        r = ACC + 4*cb
        A(f"v_add_f32 {v(r)}, {v(r)}, {v(r+1)}", f"v_add_f32 {v(r+2)}, {v(r+2)}, {v(r+3)}", f"v_cvt_pk_bf16_f32 {v(PK+20+cb)}, {v(r)}, {v(r+2)}", f"v_min_u32 {v(PK+20+cb)}, -2, {v(PK+20+cb)}",
          f"buffer_store_dword {v(PK+20+cb)}, {v(13)}, {s(WS,4)}, {s(S_TMP)} offen sc1", f"s_add_u32 {s(S_TMP)}, {s(S_TMP)}, 4096")
    A(f"s_lshl_b32 {s(S_TMP)}, {s(S_SEG)}, 9", f"s_lshl_b32 {s(S_TMP2)}, {s(S_H)}, 4", f"s_add_u32 {s(S_TMP)}, {s(S_TMP)}, {s(S_TMP2)}", f"s_lshl_b32 {s(S_TMP2)}, {s(S_WAVE)}, 2",
      f"s_add_u32 {s(S_TMP)}, {s(S_TMP)}, {s(S_TMP2)}", f"s_add_u32 {s(S_TMP)}, {s(S_TMP)}, {FV_OFF:#x}", f"v_mov_b32 {v(T)}, 1",
      "s_waitcnt vmcnt(0)", "s_mov_b64 exec, 1", f"buffer_store_dword {v(T)}, off, {s(WS,4)}, {s(S_TMP)} sc1", "s_mov_b64 exec, -1")
    A(f"s_add_u32 {s(S_SEG)}, {s(S_SEG)}, {NV}", f"s_cmp_lt_u32 {s(S_SEG)}, 64", f"s_cbranch_scc1 {Lq}", "s_endpgm")

XMIMG = 65536
XRED = 73728

def role_X(A, abort):
    VL, VG, VN, VL16, T, VR0, VK0, VRD, VRD1, VKD, VKM, VRW, VRR, VMW, T2 = range(1, 16)
    ACC, FR, SX, KF = 16, 72, 88, 104
    A("; ---------------- role X")
    lanes(A, VL, VG, VN, VL16)
    divmod_const(A, S_H, S_SEG, S_ROLE, NX)
    A(f"s_mov_b32 {s(S_BUF)}, 0", f"s_mov_b32 {s(S_TO)}, {W_TIMEOUT}")
    dma_x(A, S_SEG, S_BUF, VL16)
    yield_start(A, abort, "x", 16, 17)
    load_weights(A, WA_OFF, VL16, NX, 20)
    A(f"v_mul_u32_u24 {v(VR0)}, {RP}, {v(VN)}", f"v_lshl_add_u32 {v(VR0)}, {v(VG)}, 4, {v(VR0)}")
    A(f"v_lshrrev_b32 {v(T)}, 2, {v(VN)}", f"v_lshlrev_b32 {v(VK0)}, 3, {v(T)}", f"v_and_b32 {v(T)}, 3, {v(VN)}", f"v_add_u32 {v(VK0)}, {v(VK0)}, {v(T)}",
      f"v_mul_u32_u24 {v(VK0)}, {RP}, {v(VK0)}", f"v_lshl_add_u32 {v(VK0)}, {v(VG)}, 3, {v(VK0)}", f"s_mul_i32 {s(S_TMP)}, {s(S_WAVE)}, 224", f"v_add_u32 {v(VK0)}, {s(S_TMP)}, {v(VK0)}")
    A(f"v_lshrrev_b32 {v(T)}, 2, {v(VN)}", f"v_lshlrev_b32 {v(VKM)}, 6, {v(T)}", f"v_and_b32 {v(T)}, 1, {v(VN)}", f"v_lshl_add_u32 {v(VKM)}, {v(T)}, 5, {v(VKM)}",
      f"v_lshl_add_u32 {v(VKM)}, {v(VG)}, 2, {v(VKM)}", f"s_mul_i32 {s(S_TMP)}, {s(S_WAVE)}, 1792", f"s_add_u32 {s(S_TMP)}, {s(S_TMP)}, {XMIMG}", f"v_add_u32 {v(VKM)}, {s(S_TMP)}, {v(VKM)}")
    A(f"v_add_u32 {v(VMW)}, {s(S_TMP)}, {v(VL16)}")
    A(f"s_lshl_b32 {s(S_TMP)}, {s(S_WAVE)}, 12", f"s_add_u32 {s(S_TMP)}, {s(S_TMP)}, {XRED}", f"v_add_u32 {v(VRW)}, {s(S_TMP)}, {v(VL16)}")
    A(f"s_lshl_b32 {s(S_TMP)}, {s(S_WAVE)}, 10", f"s_add_u32 {s(S_TMP)}, {s(S_TMP)}, {XRED}", f"v_add_u32 {v(VRR)}, {s(S_TMP)}, {v(VL16)}")
    A(f"s_mov_b32 {s(S_D)}, 0x40000000")
    Lp = A.label("Xloop")
    A("s_waitcnt vmcnt(0)", "s_barrier")
    if TLM: A("s_memrealtime s[92:93]")
    A(f"{Lp}:")
    A(f"v_add_u32 {v(VRD)}, {s(S_BUF)}, {v(VR0)}", f"v_add_u32 {v(VRD1)}, {16*RP}, {v(VRD)}", f"v_add_u32 {v(VKD)}, {s(S_BUF)}, {v(VK0)}")
    A(f"s_xor_b32 {s(S_BUF)}, {s(S_BUF)}, {32768}", f"s_add_u32 {s(S_A)}, {s(S_SEG)}, {NX}")
    dma_x(A, S_A, S_BUF, VL16)
    def xflag(n):
        A(f"s_waitcnt vmcnt({n})", f"v_mov_b32 {v(T)}, 1", "s_mov_b64 exec, 1", f"buffer_store_dword {v(T)}, off, {s(WS,4)}, {s(S_D)} sc1", "s_mov_b64 exec, -1", "s_nop 3")
    gemm_seg(A, ACC, FR, VRD, False, hook=(VMID, lambda: xflag(8)))
    kreg = lambda cb: KF + 4*cb if cb < 4 else FR + 4*(cb-4)
    for cb in range(7):
        A(f"ds_read_b64 {v(kreg(cb),2)}, {v(VKD)} offset:{32*cb}", f"ds_read_b64 {v(kreg(cb)+2,2)}, {v(VKD)} offset:{32*cb + 4*RP}")
    for cb in range(7):
        for t in range(2):
            d = ACC + 8*cb + 4*t
            A(f"v_cvt_pk_bf16_f32 {v(d)}, {v(d)}, {v(d+1)}", f"v_cvt_pk_bf16_f32 {v(d+1)}, {v(d+2)}, {v(d+3)}")
    for cb in range(7):
        A(f"s_waitcnt lgkmcnt({2*(6-cb)})")
        for kt in range(2):
            for t in range(2):
                A(mfma(SX + 8*kt + 4*t, v(kreg(cb)+2*kt, 2), v(ACC + 8*cb + 4*t, 2), "0" if cb == 0 else None, k16=True))
    A("s_nop 7")
    for kt in range(2):
        for t in range(2): A(f"ds_write_b128 {v(VRW)}, {v(SX + 8*kt + 4*t, 4)} offset:{2048*kt + 1024*t}")
    A("s_waitcnt lgkmcnt(0)", "s_barrier")
    L1 = A.label("Xr1")
    A(f"s_cmp_ge_u32 {s(S_WAVE)}, 2", f"s_cbranch_scc1 {L1}")
    for kt in range(2):
        for w in range(4): A(f"ds_read_b128 {v(FR + 4*w, 4)}, {v(VRR)} offset:{4096*w + 2048*kt}")
        A("s_waitcnt lgkmcnt(0)")
        for r in range(4):
            A(f"v_add_f32 {v(FR+r)}, {v(FR+r)}, {v(FR+4+r)}", f"v_add_f32 {v(FR+8+r)}, {v(FR+8+r)}, {v(FR+12+r)}", f"v_add_f32 {v(SX+4*kt+r)}, {v(FR+r)}, {v(FR+8+r)}")
    A(f"s_lshl_b32 {s(S_TMP)}, {s(S_WAVE)}, 4", f"v_add_u32 {v(T)}, {s(S_TMP)}, {v(VN)}", f"v_lshlrev_b32 {v(T2)}, 3, {v(VG)}", f"v_sub_u32 {v(T)}, {v(T)}, {v(T2)}", f"v_mov_b32 {v(T2)}, 0xf149f2ca")
    for j in range(8):
        A(f"v_cmp_le_i32 vcc, {j}, {v(T)}", "s_nop 1", f"v_cndmask_b32 {v(SX+j)}, {v(T2)}, {v(SX+j)}, vcc")
    A(f"{L1}:")
    Lm, Lmo = A.label("Xm"), A.label("Xmo")
    A(f"s_lshl_b32 {s(S_B)}, {s(S_SEG)}, 13", f"s_mul_i32 {s(S_TMP)}, {s(S_WAVE)}, 1792", f"s_add_u32 {s(S_B)}, {s(S_B)}, {s(S_TMP)}", f"s_add_u32 {s(S_B)}, {s(S_B)}, {MEMS_OFF:#x}")
    A(f"s_lshl_b32 {s(S_C)}, {s(S_SEG)}, 13", f"s_add_u32 {s(S_C)}, {s(S_C)}, {MEMS_OFF + 7164:#x}", f"v_mov_b32 {v(T2)}, 0")
    poll_eq(A, T, T2, S_C, -1, abort, "xg", ne=True, sleep=1)
    A(f"{Lm}:", f"buffer_load_dwordx4 {v(KF,4)}, {v(VL16)}, {s(WS,4)}, {s(S_B)} offen sc1", f"buffer_load_dwordx4 {v(KF+4,4)}, {v(VL16)}, {s(WS,4)}, {s(S_B)} offen offset:768 sc1",
      "s_waitcnt vmcnt(0)", f"v_max3_u32 {v(T)}, {v(KF)}, {v(KF+1)}, {v(KF+2)}", f"v_max3_u32 {v(T)}, {v(T)}, {v(KF+3)}, {v(KF+4)}", f"v_max3_u32 {v(T)}, {v(T)}, {v(KF+5)}, {v(KF+6)}",
      f"v_max_u32 {v(T)}, {v(T)}, {v(KF+7)}", f"v_cmp_eq_u32 vcc, -1, {v(T)}", f"s_cbranch_vccz {Lmo}", f"s_sleep {WSLEEP}")
    timeout_step(A, Lm, abort)
    A(f"{Lmo}:")
    if TLM: A("s_memrealtime s[94:95]")
    A(f"ds_write_b128 {v(VMW)}, {v(KF,4)}", f"ds_write_b128 {v(VMW)}, {v(KF+4,4)} offset:768")
    for cb in range(7):
        A(f"v_add_u32 {v(T)}, {256*cb}, {v(VKM)}", f"ds_read2_b32 {v(FR+2*cb,2)}, {v(T)} offset0:0 offset1:4")
    A("s_waitcnt lgkmcnt(0)")
    for cb in range(7):
        for t in range(2):
            A(mfma(SX + 8 + 4*t, v(FR+2*cb, 2), v(ACC + 8*cb + 4*t, 2), "0" if cb == 0 else None, k16=True))
    A("s_barrier")
    A("s_nop 6")
    for t in range(2): A(f"ds_write_b64 {v(VRW)}, {v(SX + 8 + 4*t, 2)} offset:{1024*t}")
    A("s_waitcnt lgkmcnt(0)", "s_barrier")
    L2 = A.label("Xr2")
    A(f"s_cmp_ge_u32 {s(S_WAVE)}, 2", f"s_cbranch_scc1 {L2}")
    for w in range(4): A(f"ds_read_b64 {v(FR + 2*w, 2)}, {v(VRR)} offset:{4096*w}")
    A("s_waitcnt lgkmcnt(0)")
    for r in range(2):
        A(f"v_add_f32 {v(FR+r)}, {v(FR+r)}, {v(FR+2+r)}", f"v_add_f32 {v(FR+4+r)}, {v(FR+4+r)}, {v(FR+6+r)}", f"v_add_f32 {v(SX+8+r)}, {v(FR+r)}, {v(FR+4+r)}")
    A(f"v_max3_f32 {v(T)}, {v(SX)}, {v(SX+1)}, {v(SX+2)}", f"v_max3_f32 {v(T)}, {v(T)}, {v(SX+3)}, {v(SX+4)}", f"v_max3_f32 {v(T)}, {v(T)}, {v(SX+5)}, {v(SX+6)}",
      f"v_max3_f32 {v(T)}, {v(T)}, {v(SX+7)}, {v(SX+8)}", f"v_max_f32 {v(T)}, {v(T)}, {v(SX+9)}")
    def xred(op):
        for sw in ("v_permlane16_swap_b32", "v_permlane32_swap_b32"):
            A(f"v_mov_b32 {v(T2)}, {v(T)}", "s_nop 1", f"{sw} {v(T)}, {v(T2)}", f"{op} {v(T)}, {v(T)}, {v(T2)}")
    xred("v_max_f32")
    for j in range(10): A(f"v_sub_f32 {v(SX+j)}, {v(SX+j)}, {v(T)}")
    for j in range(10): A(f"v_exp_f32 {v(SX+j)}, {v(SX+j)}")
    A(f"v_add_f32 {v(T)}, {v(SX)}, {v(SX+1)}")
    for j in range(2, 10): A(f"v_add_f32 {v(T)}, {v(T)}, {v(SX+j)}")
    xred("v_add_f32")
    A(f"v_rcp_f32 {v(T)}, {v(T)}", "s_nop 0")
    for j in range(10): A(f"v_mul_f32 {v(SX+j)}, {v(SX+j)}, {v(T)}")
    for r in range(5): A(f"v_cvt_pk_bf16_f32 {v(FR+r)}, {v(SX+2*r)}, {v(SX+2*r+1)}", f"v_min_u32 {v(FR+r)}, -2, {v(FR+r)}")
    A(f"s_mul_i32 {s(S_TMP)}, {s(S_SEG)}, 40960", f"s_mul_i32 {s(S_TMP2)}, {s(S_WAVE)}, 20480", f"s_add_u32 {s(S_TMP)}, {s(S_TMP)}, {s(S_TMP2)}", f"s_add_u32 {s(S_TMP)}, {s(S_TMP)}, {PX_OFF:#x}",
      f"s_lshl_b32 {s(S_TMP2)}, {s(S_H)}, 10", f"s_add_u32 {s(S_TMP2)}, {s(S_TMP2)}, {s(S_TMP)}",
      f"buffer_store_dwordx4 {v(FR,4)}, {v(VL16)}, {s(WS,4)}, {s(S_TMP2)} offen sc1",
      f"s_lshl_b32 {s(S_TMP2)}, {s(S_H)}, 8", f"s_add_u32 {s(S_TMP)}, {s(S_TMP)}, {s(S_TMP2)}", f"s_add_u32 {s(S_TMP)}, {s(S_TMP)}, 16384", f"v_lshlrev_b32 {v(T2)}, 2, {v(VL)}",
      f"buffer_store_dword {v(FR+4)}, {v(T2)}, {s(WS,4)}, {s(S_TMP)} offen sc1")
    A(f"s_lshl_b32 {s(S_TMP)}, {s(S_SEG)}, 9", f"s_lshl_b32 {s(S_TMP2)}, {s(S_WAVE)}, 6", f"s_add_u32 {s(S_TMP)}, {s(S_TMP)}, {s(S_TMP2)}", f"s_lshl_b32 {s(S_TMP2)}, {s(S_H)}, 2",
      f"s_add_u32 {s(S_TMP)}, {s(S_TMP)}, {s(S_TMP2)}", f"s_add_u32 {s(S_D)}, {s(S_TMP)}, {FV_OFF + 256:#x}")
    A(f"{L2}:")
    A("s_barrier")
    A(f"s_add_u32 {s(S_SEG)}, {s(S_SEG)}, {NX}", f"s_cmp_lt_u32 {s(S_SEG)}, 64", f"s_cbranch_scc1 {Lp}")
    xflag(0)
    A("s_endpgm")

def role_PV(A, abort):
    VL, VG, VN, VL16, T, VZ, VF1, VF2, VRW, VRR, VO_ = range(1, 12)
    VOX, VP, PF_, ACC, RD = 16, 80, 96, 116, 132
    S_T, S_J = S_C, S_D
    lanes(A, VL, VG, VN, VL16)
    A(f"s_mul_i32 {s(S_SEG)}, {s(S_ROLE)}, 4682", f"s_lshr_b32 {s(S_SEG)}, {s(S_SEG)}, 16", f"s_mul_i32 {s(S_TMP)}, {s(S_SEG)}, 14", f"s_sub_u32 {s(S_TMP)}, {s(S_ROLE)}, {s(S_TMP)}",
      f"s_and_b32 {s(S_T)}, {s(S_TMP)}, 1", f"s_lshr_b32 {s(S_J)}, {s(S_TMP)}, 1", f"s_mov_b32 {s(S_TO)}, {W_TIMEOUT}")
    A(f"v_mov_b32 {v(VZ)}, 0")
    A(f"v_and_b32 {v(T)}, 3, {v(VL)}", f"v_lshlrev_b32 {v(VF1)}, 2, {v(T)}", f"s_lshl_b32 {s(S_TMP)}, {s(S_T)}, 6", f"s_lshl_b32 {s(S_TMP2)}, {s(S_WAVE)}, 4", f"s_add_u32 {s(S_TMP)}, {s(S_TMP)}, {s(S_TMP2)}",
      f"s_add_u32 {s(S_TMP)}, {s(S_TMP)}, 256", f"v_add_u32 {v(VF1)}, {s(S_TMP)}, {v(VF1)}")
    A(f"v_lshlrev_b32 {v(VF2)}, 2, {v(VN)}", f"s_lshl_b32 {s(S_TMP)}, {s(S_WAVE)}, 6", f"v_add_u32 {v(VF2)}, {s(S_TMP)}, {v(VF2)}",
      f"v_cmp_gt_u32 vcc, 16, {v(VL)}", "s_nop 1", f"v_cndmask_b32 {v(VF1)}, {v(VF1)}, {v(VF2)}, vcc", f"v_lshlrev_b32 {v(VF2)}, 2, {v(VL)}")
    A(f"s_lshl_b32 {s(S_TMP)}, {s(S_WAVE)}, 12", f"v_add_u32 {v(VRW)}, {s(S_TMP)}, {v(VL16)}", f"s_lshl_b32 {s(S_TMP)}, {s(S_WAVE)}, 10", f"v_add_u32 {v(VRR)}, {s(S_TMP)}, {v(VL16)}")
    A(f"v_mul_u32_u24 {v(VO_)}, 1792, {v(VN)}", f"v_lshl_add_u32 {v(VO_)}, {v(VG)}, 3, {v(VO_)}", f"s_mul_i32 {s(S_TMP)}, {s(S_T)}, {16*1792}", f"s_lshl_b32 {s(S_TMP2)}, {s(S_J)}, 7",
      f"s_add_u32 {s(S_TMP)}, {s(S_TMP)}, {s(S_TMP2)}", f"s_lshl_b32 {s(S_TMP2)}, {s(S_WAVE)}, 5", f"s_add_u32 {s(S_TMP)}, {s(S_TMP)}, {s(S_TMP2)}", f"s_add_u32 {s(S_TMP)}, {s(S_TMP)}, 896",
      f"v_add_u32 {v(VO_)}, {s(S_TMP)}, {v(VO_)}")
    yield_start(A, abort, "p", 16, 17)
    Lp = A.label("PVloop")
    A(f"{Lp}:")
    A(f"s_lshl_b32 {s(S_A)}, {s(S_SEG)}, 14", f"s_add_u32 {s(S_A)}, {s(S_A)}, {PF_OFF + FROFF:#x}")
    poll_eq(A, T, VZ, S_A, 15, abort, "cv")
    A(f"s_mul_i32 {s(S_TMP)}, {s(S_SEG)}, 458752", f"s_lshl_b32 {s(S_TMP2)}, {s(S_J)}, 16", f"s_add_u32 {s(S_TMP)}, {s(S_TMP)}, {s(S_TMP2)}", f"s_lshl_b32 {s(S_TMP2)}, {s(S_WAVE)}, 12",
      f"s_add_u32 {s(S_TMP)}, {s(S_TMP)}, {s(S_TMP2)}", f"s_add_u32 {s(S_TMP)}, {s(S_TMP)}, {VOX_OFF:#x}")
    for cc in range(4):
        for hh in range(4): A(f"buffer_load_dwordx4 {v(VOX + 16*cc + 4*hh, 4)}, {v(VL16)}, {s(WS,4)}, {s(S_TMP)} offen offset:{1024*hh} sc1")
        A(f"s_add_u32 {s(S_TMP)}, {s(S_TMP)}, 16384")
    Llast, Lld, Lok = A.label("PVlast"), A.label("PVld"), A.label("PVok")
    A(f"s_cmp_eq_u32 {s(S_SEG)}, 63", f"s_cbranch_scc1 {Llast}")
    A(f"s_lshl_b32 {s(S_A)}, {s(S_SEG)}, 9", f"s_add_u32 {s(S_A)}, {s(S_A)}, {FV_OFF:#x}")
    poll_eq(A, T, VF1, S_A, 1, abort, "fx", sleep=1)
    A(f"s_branch {Lld}", f"{Llast}:", f"s_mov_b32 {s(S_A)}, {MEMS_OFF + 63*8192 + 7164:#x}")
    poll_eq(A, T, VZ, S_A, -1, abort, "pg", ne=True, sleep=1)
    if PVGAP: A(f"s_sleep {PVGAP}")
    A(f"{Lld}:")
    if TLM: A("s_memrealtime s[92:93]")
    A(f"s_mul_i32 {s(S_TMP)}, {s(S_SEG)}, 40960", f"s_mul_i32 {s(S_TMP2)}, {s(S_T)}, 20480", f"s_add_u32 {s(S_TMP)}, {s(S_TMP)}, {s(S_TMP2)}", f"s_add_u32 {s(S_TMP)}, {s(S_TMP)}, {PX_OFF:#x}",
      f"s_lshl_b32 {s(S_TMP2)}, {s(S_WAVE)}, 12", f"s_add_u32 {s(S_TMP2)}, {s(S_TMP2)}, {s(S_TMP)}")
    for hh in range(4): A(f"buffer_load_dwordx4 {v(PF_ + 4*hh, 4)}, {v(VL16)}, {s(WS,4)}, {s(S_TMP2)} offen offset:{1024*hh} sc1")
    A(f"s_lshl_b32 {s(S_TMP2)}, {s(S_WAVE)}, 10", f"s_add_u32 {s(S_TMP)}, {s(S_TMP)}, {s(S_TMP2)}", f"s_add_u32 {s(S_TMP)}, {s(S_TMP)}, 16384")
    for hh in range(4): A(f"buffer_load_dword {v(PF_ + 16 + hh)}, {v(VF2)}, {s(WS,4)}, {s(S_TMP)} offen offset:{256*hh} sc1")
    A(f"s_mul_i32 {s(S_TMP)}, {s(S_SEG)}, 114688", f"s_lshl_b32 {s(S_TMP2)}, {s(S_J)}, 14", f"s_add_u32 {s(S_TMP)}, {s(S_TMP)}, {s(S_TMP2)}", f"s_lshl_b32 {s(S_TMP2)}, {s(S_WAVE)}, 10",
      f"s_add_u32 {s(S_TMP)}, {s(S_TMP)}, {s(S_TMP2)}", f"s_add_u32 {s(S_TMP)}, {s(S_TMP)}, {VPE_OFF:#x}")
    for cc in range(4):
        for hh in range(4): A(f"buffer_load_dword {v(VP + 4*cc + hh)}, {v(VF2)}, {s(WS,4)}, {s(S_TMP)} offen offset:{256*hh} sc1")
        A(f"s_add_u32 {s(S_TMP)}, {s(S_TMP)}, 4096")
    for hh in range(4):
        A(f"s_waitcnt vmcnt({23 - hh})")
        for cc in range(4): A(mfma(ACC + 4*cc, v(VOX + 16*cc + 4*hh, 4), v(PF_ + 4*hh, 4), "0" if hh == 0 else None))
    A("s_waitcnt vmcnt(0)")
    for k in range(9): A(chk4(T, VP + 4*k, k == 0))
    A(f"v_cmp_eq_u32 vcc, -1, {v(T)}", f"s_cbranch_vccz {Lok}")
    timeout_step(A, Lld, abort)
    A(f"{Lok}:")
    for cc in range(4): A(mfma(ACC + 4*cc, v(VP + 4*cc, 4), v(PF_ + 16, 4)))
    A("s_nop 7")
    for cc in range(4): A(f"ds_write_b128 {v(VRW)}, {v(ACC + 4*cc, 4)} offset:{1024*cc}")
    A("s_waitcnt lgkmcnt(0)", "s_barrier")
    for w in range(4): A(f"ds_read_b128 {v(RD + 4*w, 4)}, {v(VRR)} offset:{4096*w}")
    A("s_waitcnt lgkmcnt(0)", "s_barrier")
    for r in range(4):
        A(f"v_add_f32 {v(RD+r)}, {v(RD+r)}, {v(RD+4+r)}", f"v_add_f32 {v(RD+8+r)}, {v(RD+8+r)}, {v(RD+12+r)}", f"v_add_f32 {v(RD+r)}, {v(RD+r)}, {v(RD+8+r)}")
    A(f"v_cvt_pk_bf16_f32 {v(RD+4)}, {v(RD)}, {v(RD+1)}", f"v_cvt_pk_bf16_f32 {v(RD+5)}, {v(RD+2)}, {v(RD+3)}",
      f"s_mul_i32 {s(S_TMP)}, {s(S_SEG)}, {32*1792}", f"buffer_store_dwordx2 {v(RD+4,2)}, {v(VO_)}, {s(OUT,4)}, {s(S_TMP)} offen")
    A(f"s_add_u32 {s(S_SEG)}, {s(S_SEG)}, {NPG}", f"s_cmp_lt_u32 {s(S_SEG)}, 64", f"s_cbranch_scc1 {Lp}", "s_endpgm")

LOIMG = 32768

def role_L(A, abort):
    VL, VG, VN, VL16, T, T2, VR0, VL4, VMK, VON, VO_, VZ, VOA = range(1, 14)
    TB = [16, 72, 128, 184]
    W_ = 240
    PK = 112
    S_W, S_IT, S_KV, S_L2E, S_EPS = S_A, S_B, S_C, S_D, S_H
    A("; ---------------- role L")
    yield_start(A, abort, "l", 14, 15)
    lanes(A, VL, VG, VN, VL16)
    A(f"s_mov_b32 {s(S_BUF)}, 0", f"s_mov_b32 {s(S_TO)}, {W_TIMEOUT}", f"s_mov_b32 {s(S_L2E)}, 0x3fb8aa3b", f"s_mov_b32 {s(S_EPS)}, 0x358637bd")
    dma_x(A, S_ROLE, S_BUF, VL16, XA)
    A(f"v_lshlrev_b32 {v(VL4)}, 2, {v(VL)}", f"v_mov_b32 {v(VZ)}, 0")
    A(f"v_lshrrev_b32 {v(T)}, 2, {v(VN)}", f"v_lshlrev_b32 {v(T2)}, 3, {v(T)}", f"v_and_b32 {v(T)}, 3, {v(VN)}", f"v_add_u32 {v(T2)}, {v(T2)}, {v(T)}",
      f"v_mul_u32_u24 {v(VR0)}, {RP}, {v(T2)}", f"v_lshl_add_u32 {v(VR0)}, {v(VG)}, 4, {v(VR0)}",
      f"v_mul_u32_u24 {v(VO_)}, 1792, {v(T2)}", f"v_lshl_add_u32 {v(VO_)}, {v(VG)}, 3, {v(VO_)}",
      f"s_mul_i32 {s(S_TMP)}, {s(S_ROLE)}, {32*1792}", f"s_mul_i32 {s(S_TMP2)}, {s(S_WAVE)}, 224", f"s_add_u32 {s(S_TMP)}, {s(S_TMP)}, {s(S_TMP2)}", f"v_add_u32 {v(VO_)}, {s(S_TMP)}, {v(VO_)}")
    A(f"v_cmp_gt_u32 vcc, 12, {v(VN)}", "s_nop 1", f"v_cndmask_b32 {v(VMK)}, 0, -1, vcc", f"v_mov_b32 {v(T)}, 0x3f803f80", f"v_cmp_eq_u32 vcc, 12, {v(VN)}", "s_nop 1", f"v_cndmask_b32 {v(VON)}, 0, {v(T)}, vcc")
    A(f"s_lshl_b32 {s(S_TMP)}, {s(S_WAVE)}, 13", f"s_add_u32 {s(S_TMP)}, {s(S_TMP)}, {LOIMG}", f"v_add_u32 {v(VOA)}, {s(S_TMP)}, {v(VL16)}")
    def ldtile(b, off):
        o = [f"s_add_u32 {s(S_TMP)}, {s(S_W)}, {off}"]
        for ks in range(14):
            o.append(f"buffer_load_dwordx4 {v(TB[b]+4*ks,4)}, {v(VL16)}, {s(WS,4)}, {s(S_TMP)} offen offset:{1024*(ks%4)} sc1")
            if ks % 4 == 3: o.append(f"s_add_u32 {s(S_TMP)}, {s(S_TMP)}, 4096")
        return o
    WQ, WO = 64, 68
    srd(A, WQ, 8, 448*1344*2); srd(A, WO, 16, 448*448*2)
    GW, FS, S1, S2, S3 = 72, 73, 74, 75, 76
    A(f"s_lshl_b32 {s(GW)}, {s(S_ROLE)}, 2", f"s_add_u32 {s(GW)}, {s(GW)}, {s(S_WAVE)}", "s_waitcnt lgkmcnt(0)")
    def wq_loads(j, base):
        A(f"s_add_u32 {s(FS)}, {s(GW)}, {256*j}",
          f"s_mul_i32 {s(S1)}, {s(FS)}, 18725", f"s_lshr_b32 {s(S1)}, {s(S1)}, 18", f"s_mul_i32 {s(S2)}, {s(S1)}, 14", f"s_sub_u32 {s(S2)}, {s(FS)}, {s(S2)}", f"s_mul_i32 {s(S2)}, {s(S2)}, {32*2688}",
          f"s_lshr_b32 {s(S3)}, {s(S1)}, 1", f"s_mul_i32 {s(S3)}, {s(S3)}, 56", f"s_add_u32 {s(S2)}, {s(S2)}, {s(S3)}", f"s_and_b32 {s(S1)}, {s(S1)}, 1", f"s_lshl_b32 {s(S1)}, {s(S1)}, 2")
        A(f"v_lshrrev_b32 {v(T)}, 2, {v(VN)}", f"v_lshlrev_b32 {v(T2)}, 3, {v(T)}", f"v_and_b32 {v(T)}, 3, {v(VN)}", f"v_add3_u32 {v(T2)}, {v(T2)}, {v(T)}, {s(S1)}",
          f"v_cmp_lt_u32 vcc, 27, {v(T2)}", f"v_lshlrev_b32 {v(T2)}, 1, {v(T2)}", f"v_mul_u32_u24 {v(T)}, {8*2688}, {v(VG)}", f"v_add_u32 {v(T2)}, {v(T2)}, {v(T)}",
          f"v_mov_b32 {v(T)}, 0x40000000", f"v_cndmask_b32 {v(T2)}, {v(T2)}, {v(T)}, vcc")
        for jj in range(8):
            A(f"buffer_load_ushort {v(base + 4*(jj % 2) + jj//2)}, {v(T2)}, {s(WQ,4)}, {s(S2)} offen", f"s_add_u32 {s(S2)}, {s(S2)}, 2688")
    def wo_loads(j, base):
        A(f"s_add_u32 {s(FS)}, {s(GW)}, {256*j}",
          f"s_lshr_b32 {s(S1)}, {s(FS)}, 4", f"s_lshl_b32 {s(S1)}, {s(S1)}, 5", f"s_and_b32 {s(S2)}, {s(FS)}, 15", f"s_mul_i32 {s(S2)}, {s(S2)}, {28*896}", f"s_add_u32 {s(S2)}, {s(S2)}, {s(S1)}")
        A(f"v_mul_u32_u24 {v(T2)}, {8*896}, {v(VG)}", f"v_lshl_add_u32 {v(T2)}, {v(VN)}, 1, {v(T2)}",
          f"v_cmp_eq_u32 vcc, 3, {v(VG)}", f"v_mov_b32 {v(T)}, 0x40000000", "s_nop 0", f"v_cndmask_b32 {v(T)}, {v(T2)}, {v(T)}, vcc")
        for jj in range(8):
            A(f"buffer_load_ushort {v(base + 4*(jj % 2) + jj//2)}, {v(T2 if jj < 4 else T)}, {s(WO,4)}, {s(S2)} offen", f"s_add_u32 {s(S2)}, {s(S2)}, 896")
    def fin(base, j, off, lim):
        for r in range(4): A(f"v_lshl_or_b32 {v(base+r)}, {v(base+4+r)}, 16, {v(base+r)}")
        A(f"s_add_u32 {s(FS)}, {s(GW)}, {256*j}", f"s_lshl_b32 {s(S1)}, {s(FS)}, 10", f"s_add_u32 {s(S1)}, {s(S1)}, {off:#x}", f"s_cmp_lt_u32 {s(FS)}, {lim}", f"s_cselect_b32 {s(S1)}, {s(S1)}, 0x40000000",
          f"buffer_store_dwordx4 {v(base,4)}, {v(VL16)}, {s(WS,4)}, {s(S1)} offen sc1")
    for j in range(6): wq_loads(j, 16 + 8*j)
    A("s_waitcnt vmcnt(0)")
    for j in range(2): wo_loads(j, 64 + 8*j)
    for j in range(6): fin(16 + 8*j, j, WQF_OFF, 1344)
    A("s_waitcnt vmcnt(6)")
    for j in range(2): fin(64 + 8*j, j, WOF_OFF, 448)
    A("s_waitcnt vmcnt(0)", "s_barrier")
    A(f"s_cmp_eq_u32 {s(S_WAVE)}, 0", f"s_cselect_b32 {s(S1)}, 0, 0x40000000", f"v_mov_b32 {v(T)}, 1", "s_mov_b64 exec, 1", f"buffer_atomic_add {v(T)}, off, {s(DBG,4)}, {s(S1)} offset:40 sc1", "s_mov_b64 exec, -1")
    Lw_, Lwg = A.label("Lw"), A.label("Lwg")
    A(f"{Lw_}:", f"buffer_load_dword {v(T)}, off, {s(DBG,4)}, 0 offset:40 sc1", "s_waitcnt vmcnt(0)", f"v_cmp_ne_u32 vcc, 64, {v(T)}", f"s_cbranch_vccz {Lwg}", "s_sleep 2")
    timeout_step(A, Lw_, abort)
    A(f"{Lwg}:")
    KO, VOF = 32*14336, 64*14336
    toff = [KO, KO + 14336, VOF, VOF + 14336]
    A(f"s_mul_i32 {s(S_W)}, {s(S_WAVE)}, {8*14336}", f"s_add_u32 {s(S_W)}, {s(S_W)}, {WQF_OFF:#x}")
    A("s_waitcnt vmcnt(0)", "s_barrier")
    for b in range(4): A(ldtile(b, toff[b]))
    for tt in range(2):
        for ks in range(14): A(f"ds_read_b128 {a_(56*tt + 4*ks, 4)}, {v(VR0)} offset:{64*ks + 4*RP*tt}")
        A("s_waitcnt lgkmcnt(0)")
    xf = lambda tt, ks: a_(56*tt + 4*ks, 4)
    def phi_pair(dst, a, b, t0):
        p, q, e, f = t0, t0+1, t0+2, t0+3
        return [f"v_cvt_pk_bf16_f32 {v(q)}, {v(a)}, {v(b)}", f"v_lshlrev_b32 {v(p)}, 16, {v(q)}", f"v_and_b32 {v(q)}, 0xffff0000, {v(q)}",
                f"v_mul_f32 {v(e)}, {s(S_L2E)}, {v(p)}", f"v_mul_f32 {v(f)}, {s(S_L2E)}, {v(q)}", f"v_exp_f32 {v(e)}, {v(e)}", f"v_exp_f32 {v(f)}, {v(f)}",
                f"v_add_f32 {v(p)}, 1.0, {v(p)}", f"v_add_f32 {v(q)}, 1.0, {v(q)}", f"v_med3_f32 {v(p)}, {v(p)}, {v(e)}, 1.0", f"v_med3_f32 {v(q)}, {v(q)}, {v(f)}, 1.0",
                f"v_cvt_pk_bf16_f32 {v(q)}, {v(p)}, {v(q)}", f"v_lshlrev_b32 {v(p)}, 16, {v(q)}", f"v_and_b32 {v(q)}, 0xffff0000, {v(q)}",
                f"v_add_f32 {v(p)}, {s(S_EPS)}, {v(p)}", f"v_add_f32 {v(q)}, {s(S_EPS)}, {v(q)}", f"v_cvt_pk_bf16_f32 {v(dst)}, {v(p)}, {v(q)}"]
    A(f"s_mov_b32 {s(S_IT)}, 0", f"s_lshl_b32 {s(S_KV)}, {s(S_WAVE)}, 14", f"s_add_u32 {s(S_KV)}, {s(S_KV)}, {KV_OFF:#x}")
    L1 = A.label("L1")
    A(f"{L1}:")
    A(f"s_add_u32 {s(S_W)}, {s(S_W)}, {2*14336}")
    for b in range(4):
        A("s_waitcnt vmcnt(42)")
        for ks in range(14):
            for tt in range(2): A(mfma(W_ + 4*tt, xf(tt, ks), v(TB[b]+4*ks, 4), "0" if ks == 0 else None))
        A(ldtile(b, toff[b]))
        for r in range(4):
            if b < 2:
                A(phi_pair(W_+8, W_+2*r, W_+2*r+1, W_+9))
                if b == 1: A(f"v_and_b32 {v(W_+8)}, {v(W_+8)}, {v(VMK)}")
            else:
                A(f"v_cvt_pk_bf16_f32 {v(W_+8)}, {v(W_+2*r)}, {v(W_+2*r+1)}")
                if b == 3: A(f"v_or_b32 {v(W_+8)}, {v(W_+8)}, {v(VON)}")
            A(f"v_accvgpr_write_b32 {a_(112 + 4*b + r)}, {v(W_+8)}")
    A("s_nop 1")
    for td in range(2):
        for te in range(2): A(mfma(W_ + 8*td + 4*te, a_(112 + 4*td, 4), a_(120 + 4*te, 4), "0"))
    A("s_waitcnt vmcnt(40)", "s_nop 7")
    for r in range(16): A(f"buffer_atomic_add_f32 {v(W_+r)}, {v(VL4)}, {s(WS,4)}, {s(S_KV)} offen offset:{256*r}")
    A(f"s_add_u32 {s(S_KV)}, {s(S_KV)}, 4096", f"s_add_u32 {s(S_IT)}, {s(S_IT)}, 1", f"s_cmp_lt_u32 {s(S_IT)}, 4", f"s_cbranch_scc1 {L1}")
    A("s_waitcnt vmcnt(0)", "s_barrier")
    if TLM: A("s_memrealtime s[92:93]")
    Ln = A.label("Lns")
    A(f"s_mov_b32 {s(S_KV)}, {CL_OFF:#x}", f"s_cmp_lg_u32 {s(S_WAVE)}, 0", f"s_cbranch_scc1 {Ln}")
    A(f"v_mov_b32 {v(T)}, 1", "s_mov_b64 exec, 1", f"buffer_atomic_add {v(T)}, off, {s(WS,4)}, {s(S_KV)} sc1", "s_mov_b64 exec, -1")
    A(f"{Ln}:")
    A(f"s_mul_i32 {s(S_W)}, {s(S_WAVE)}, {8*14336}", f"s_add_u32 {s(S_W)}, {s(S_W)}, {WQF_OFF:#x}")
    for b in range(2): A(ldtile(b, 14336*b))
    poll_eq(A, T, VZ, S_KV, 64, abort, "cl")
    if TLM: A("s_memrealtime s[94:95]")
    A(f"s_mov_b32 {s(S_IT)}, 0", f"s_lshl_b32 {s(S_KV)}, {s(S_WAVE)}, 14", f"s_add_u32 {s(S_KV)}, {s(S_KV)}, {KV_OFF:#x}")
    Q, KVR, KVT, ZO, PQ, NUM, DEN, TMPS = 128, 144, 160, 168, 172, 180, 188, 192
    L2 = A.label("L2")
    A(f"{L2}:")
    for r in range(16): A(f"buffer_load_dword {v(KVR+r)}, {v(VL4)}, {s(WS,4)}, {s(S_KV)} offen offset:{256*r} sc1")
    A(f"s_add_u32 {s(S_W)}, {s(S_W)}, {2*14336}", "s_waitcnt vmcnt(16)")
    for b in range(2):
        for ks in range(14):
            for tt in range(2): A(mfma(Q + 8*tt + 4*b, v(TB[b]+4*ks, 4), xf(tt, ks), "0" if ks == 0 else None))
    A("s_waitcnt vmcnt(0)")
    for b in range(2): A(ldtile(b, 14336*b))
    for tt in range(2):
        for r in range(4): A(phi_pair(PQ + 4*tt + r, Q + 8*tt + 2*r, Q + 8*tt + 2*r + 1, TMPS))
    for te in range(2):
        for td in range(2):
            for p in range(2): A(f"v_cvt_pk_bf16_f32 {v(KVT + 4*te + 2*td + p)}, {v(KVR + 8*td + 4*te + 2*p)}, {v(KVR + 8*td + 4*te + 2*p + 1)}")
    A("s_nop 1")
    for r in range(4): A(f"v_mov_b32_dpp {v(ZO+r)}, {v(KVT+4+r)} row_newbcast:12 row_mask:0xf bank_mask:0xf")
    A("s_nop 1")
    for tt in range(2):
        for te in range(2): A(mfma(NUM + 4*te, v(KVT + 4*te, 4), v(PQ + 4*tt, 4), "0"))
        A(mfma(DEN, v(ZO, 4), v(PQ + 4*tt, 4), "0"), "s_nop 7")
        d, u = TMPS, TMPS+1
        A(f"v_cvt_pk_bf16_f32 {v(d)}, {v(DEN)}, {v(DEN)}", f"v_and_b32 {v(d)}, 0xffff0000, {v(d)}", f"v_add_f32 {v(d)}, {s(S_EPS)}, {v(d)}",
          f"v_cvt_pk_bf16_f32 {v(d)}, {v(d)}, {v(d)}", f"v_and_b32 {v(d)}, 0xffff0000, {v(d)}", f"v_rcp_f32 {v(d)}, {v(d)}")
        for r in range(4):
            A(f"v_cvt_pk_bf16_f32 {v(u+1)}, {v(NUM+2*r)}, {v(NUM+2*r+1)}", f"v_lshlrev_b32 {v(u)}, 16, {v(u+1)}", f"v_and_b32 {v(u+1)}, 0xffff0000, {v(u+1)}",
              f"v_mul_f32 {v(u)}, {v(u)}, {v(d)}", f"v_mul_f32 {v(u+1)}, {v(u+1)}, {v(d)}", f"v_cvt_pk_bf16_f32 {v(TMPS+4+r)}, {v(u)}, {v(u+1)}")
        A(f"ds_write_b128 {v(VOA)}, {v(TMPS+4,4)} offset:{1024*tt}", "s_waitcnt lgkmcnt(0)")
    A(f"v_add_u32 {v(VOA)}, 2048, {v(VOA)}")
    A(f"s_add_u32 {s(S_KV)}, {s(S_KV)}, 4096", f"s_add_u32 {s(S_IT)}, {s(S_IT)}, 1", f"s_cmp_lt_u32 {s(S_IT)}, 4", f"s_cbranch_scc1 {L2}")
    A("s_waitcnt vmcnt(0)", "s_barrier")
    A(f"s_mul_i32 {s(S_W)}, {s(S_WAVE)}, {7*16384}", f"s_add_u32 {s(S_W)}, {s(S_W)}, {WOF_OFF:#x}")
    def ldwo(c):
        o = []
        for h in range(16):
            if h % 4 == 0: o.append(f"s_add_u32 {s(S_TMP)}, {s(S_W)}, {16384*c + 1024*h}")
            o.append(f"buffer_load_dwordx4 {v(16 + 64*(c % 3) + 4*h, 4)}, {v(VL16)}, {s(WS,4)}, {s(S_TMP)} offen offset:{1024*(h%4)} sc1")
        return o
    A(ldwo(0), ldwo(1))
    for f in range(32):
        A(f"ds_read_b128 {a_(4*f, 4)}, {v(VL16)} offset:{LOIMG + 1024*f}")
        if f % 8 == 7: A("s_waitcnt lgkmcnt(0)")
    for c in range(7):
        if c + 2 < 7: A(ldwo(c+2))
        nyoung = 16*min(2, 6-c) + (2 if c >= 1 else 0) * 0
        A(f"s_waitcnt vmcnt({16*min(2, 6-c)})")
        for h in range(16):
            for tt in range(2): A(mfma(W_ + 4*tt, v(16 + 64*(c % 3) + 4*h, 4), a_(8*h + 4*tt, 4), "0" if h == 0 else None))
        A("s_nop 7")
        for tt in range(2):
            A(f"v_cvt_pk_bf16_f32 {v(W_+8+2*tt)}, {v(W_+4*tt)}, {v(W_+4*tt+1)}", f"v_cvt_pk_bf16_f32 {v(W_+9+2*tt)}, {v(W_+4*tt+2)}, {v(W_+4*tt+3)}")
        A(f"s_mov_b32 {s(S_TMP)}, {4*1792}",
          f"buffer_store_dwordx2 {v(W_+8,2)}, {v(VO_)}, {s(OUT,4)}, 0 offen offset:{32*c}", f"buffer_store_dwordx2 {v(W_+10,2)}, {v(VO_)}, {s(OUT,4)}, {s(S_TMP)} offen offset:{32*c}")
    A("s_endpgm")
```

```python
import sys
from asm import *
from model import *
import rec, workers, prep
from rec import WS, XB, DBG, S_WAVE, S_ROLE, S_TMP, S_TMP2
from workers import OUT, XA

TKL = 0x24000
ORDERS = [("V", "X", "PV", "L"), ("V", "L", "PV", "Z", "X"), ("V", "L", "X", "PV"), ("L", "V", "PV", "Z", "X"), ("V", "PV", "L", "Z", "X")]
def main_kernel(A, name, profile=False):
    NV, NX, NPG = workers.NV, workers.NX, workers.NPG
    kernel_begin(A, name)
    Lexit = A.label("exit")
    Lx0 = A.label("go")
    A("s_cmp_lt_u32 s2, 256", f"s_cbranch_scc1 {Lx0}", "s_endpgm", f"{Lx0}:")
    srd(A, WS, 96, 0x10000000); srd(A, XB, 24, 1835008); srd(A, DBG, 88, 256); srd(A, OUT, 80, 2048*896*2); srd(A, XA, 0, 1835008)
    prep.prep_srds(A)
    A("v_lshrrev_b32 v1, 6, v0", "s_nop 0", f"v_readfirstlane_b32 {s(S_WAVE)}, v1")
    A("s_getreg_b32 s44, hwreg(HW_REG_XCC_ID)", "s_and_b32 s44, s44, 7")
    if rec.XSCR: A("s_bfe_u32 s45, s2, 0x10004", "s_or_b32 s44, s44, s45")
    A("s_waitcnt lgkmcnt(0)")
    def ticket():
        A("s_lshl_b32 s45, s44, 2", f"s_cmp_eq_u32 {s(S_WAVE)}, 0", "s_cselect_b32 s45, s45, 0x40000000", "v_mov_b32 v220, 1", "s_mov_b64 exec, 1",
          f"buffer_atomic_add v220, off, {s(DBG,4)}, s45 sc0", "s_mov_b64 exec, -1")
        return 1
    prep.prep_body(A, ticket)
    if rec.TLM: A("s_memrealtime s[98:99]")
    Lw, Ld = A.label("notw0"), A.label("rd")
    A(f"s_cmp_lg_u32 {s(S_WAVE)}, 0", f"s_cbranch_scc1 {Lw}")
    A("s_mov_b64 exec, 1",
      f"v_readfirstlane_b32 s61, v220", f"s_lshl_b32 {s(S_TMP2)}, s44, 5", f"s_add_u32 {s(S_TMP2)}, {s(S_TMP2)}, s61", "s_cmp_lt_u32 s61, 32", f"s_cbranch_scc1 {Ld}")
    Lo, Lo2 = A.label("ovw"), A.label("ovg")
    A("v_mov_b32 v1, 1", f"buffer_atomic_add v1, off, {s(DBG,4)}, 0 offset:36 sc0", "s_waitcnt vmcnt(0)", "v_readfirstlane_b32 s61, v1", "s_mov_b32 s62, 300000", f"s_mov_b32 {s(S_TMP2)}, 1000")
    A("s_mov_b64 exec, -1", "v_and_b32 v2, 31, v0", "v_lshlrev_b32 v2, 2, v2")
    A(f"{Lo}:", f"buffer_load_dword v1, v2, {s(DBG,4)}, 0 offen offset:{prep.CNT0} sc1", "s_waitcnt vmcnt(0)", "v_cmp_gt_u32 vcc, 8, v1", f"s_cbranch_vccz {Lo2}",
      "s_sleep 4", "s_sub_u32 s62, s62, 1", f"s_cbranch_scc1 {Ld}", f"s_branch {Lo}")
    A(f"{Lo2}:", f"buffer_load_dwordx4 v[4:7], off, {s(DBG,4)}, 0 sc1", f"buffer_load_dwordx4 v[8:11], off, {s(DBG,4)}, 0 offset:16 sc1", "s_waitcnt vmcnt(0)")
    for x in range(8):
        Ln = A.label("ovn")
        A(f"v_readfirstlane_b32 s63, v{4+x}", "s_min_u32 s63, s63, 32", "s_sub_u32 s62, 32, s63", "s_cmp_ge_u32 s61, s62", f"s_cbranch_scc1 {Ln}",
          f"s_add_u32 {s(S_TMP2)}, s63, s61", f"s_add_u32 {s(S_TMP2)}, {s(S_TMP2)}, {32*x}", f"s_branch {Ld}", f"{Ln}:", "s_sub_u32 s61, s61, s62")
    A(f"{Ld}:", f"v_mov_b32 v1, {s(S_TMP2)}", f"v_mov_b32 v2, {TKL:#x}", "ds_write_b32 v2, v1", "s_waitcnt lgkmcnt(0)", "s_mov_b64 exec, -1")
    A(f"{Lw}:", "s_barrier", f"v_mov_b32 v2, {TKL:#x}", "ds_read_b32 v1, v2", "s_waitcnt lgkmcnt(0)", f"v_readfirstlane_b32 {s(S_ROLE)}, v1", f"s_mov_b32 {s(rec.S_TO)}, {rec.TIMEOUT}")
    if rec.RM2:
        Lm2 = A.label("rm2")
        A(f"s_cmp_lt_u32 {s(S_ROLE)}, 32", f"s_cbranch_scc1 {Lm2}", f"s_cmp_ge_u32 {s(S_ROLE)}, 160", f"s_cbranch_scc1 {Lm2}",
          f"s_sub_u32 {s(S_TMP)}, {s(S_ROLE)}, 32", f"s_lshr_b32 {s(S_TMP2)}, {s(S_TMP)}, 5", f"s_lshl_b32 {s(S_TMP2)}, {s(S_TMP2)}, 4", f"s_and_b32 {s(S_ROLE)}, {s(S_TMP)}, 15", f"s_add_u32 {s(S_ROLE)}, {s(S_ROLE)}, {s(S_TMP2)}",
          f"s_bitcmp1_b32 {s(S_TMP)}, 4", f"s_cselect_b32 {s(S_TMP)}, 96, 32", f"s_add_u32 {s(S_ROLE)}, {s(S_ROLE)}, {s(S_TMP)}", f"{Lm2}:")
    if rec.ROT:
        Lm = A.label("rm")
        A(f"s_cmp_lt_u32 {s(S_ROLE)}, 32", f"s_cbranch_scc1 {Lm}", f"s_cmp_ge_u32 {s(S_ROLE)}, 256", f"s_cbranch_scc1 {Lm}",
          f"s_add_u32 {s(S_ROLE)}, {s(S_ROLE)}, {rec.ROT}", f"s_sub_u32 {s(S_TMP)}, {s(S_ROLE)}, 224", f"s_cmp_ge_u32 {s(S_ROLE)}, 256", f"s_cselect_b32 {s(S_ROLE)}, {s(S_TMP)}, {s(S_ROLE)}", f"{Lm}:")
    if rec.TLM: A(f"s_mov_b32 s100, {s(S_ROLE)}")
    cnt = {"V": 16*NV, "X": 16*NX, "PV": 14*NPG, "L": 64, "Z": 6}
    ranges = [("A", 16), ("B", 30), ("PF", 32)]
    for n in ORDERS[rec.ORD]: ranges.append((n, ranges[-1][1] + cnt[n]))
    assert ranges[-1][1] <= 256
    L = {n: A.label("role" + n) for n, _ in ranges}
    J = {n: A.label("jmp" + n) for n, _ in ranges}
    for n, hi in ranges: A(f"s_cmp_lt_u32 {s(S_ROLE)}, {hi}", f"s_cbranch_scc1 {J[n]}")
    A(f"{Lexit}:", "s_endpgm")
    lo = 0
    for n, hi in ranges:
        A(f"{J[n]}:")
        if n in ("V", "X", "PV", "L"): A(f"s_sub_u32 {s(S_ROLE)}, {s(S_ROLE)}, {lo}")
        A(f"s_branch {L[n]}" if n != "Z" else "s_endpgm")
        lo = hi
    for R, fn in (("A", rec.role_A), ("B", rec.role_B)):
        A(f"{L[R]}:")
        Ls = [A.label(f"{R}w{w}") for w in range(4)]
        for w in range(1, 4): A(f"s_cmp_eq_u32 {s(S_WAVE)}, {w}", f"s_cbranch_scc1 {Ls[w]}")
        for w in range(4):
            A(f"{Ls[w]}:"); fn(A, w, Lexit, profile)
    Lx2 = A.label("exit2")
    for R, fn in (("PF", rec.role_PF), ("V", workers.role_V), ("X", workers.role_X), ("PV", workers.role_PV), ("L", workers.role_L)):
        A(f"{L[R]}:"); fn(A, Lx2)
    A(f"{Lx2}:", "s_endpgm")
    A(kernel_desc(name))

HDR = open("concat_heads__linear_attn_block__memory_aug_recurrent_mem_tr__prompt.s.ref").read().split("; Override launch")[0] if len(sys.argv) > 2 and sys.argv[2] == "final" else ""
FINAL = bool(HDR)
KNAME = "concat_heads__linear_attn_block__memory_aug_recurrent_mem_tr__prompt_kernel" if FINAL else "main_kernel"
def generate(path, TL=0, PROFILE=0, **kw):
    rec.TLM = workers.TLM = TL
    A = Asm()
    hdr = []
    hdr.append(f"; @launch {'' if FINAL else 'kernel=main_kernel '}grid=(256,1,1) block=(256,1,1) lds=148480")
    A('.amdgcn_target "amdgcn-amd-amdhsa--gfx950"', ".text")
    g = vars(rec); saved = dict(g); g.update(FULL=1, TIMEOUT=300000); g.update(kw)
    def instrument(fn, name, idreg, base, wsreg, wavereg):
        B = Asm(); B.uid = A.uid + 100000
        fn(B, name)
        lines = B.lines
        if TL:
            i0 = lines.index(f"{name}:")
            lines.insert(i0 + 1, "    s_memrealtime s[90:91]\n    s_mov_b32 s92, 0\n    s_mov_b32 s94, 0\n    s_mov_b32 s100, 9999")
            iend = max(i for i, l in enumerate(lines) if l.strip() == "s_endpgm")
            first = True
            for i, l in enumerate(lines):
                if l.strip() == "s_endpgm": lines[i] = f"    s_branch Ltl_{name}"
            stub = f"""Ltl_{name}:
    s_cmp_ge_u32 s2, 256
    s_cbranch_scc1 Ltl2_{name}
    s_memrealtime s[96:97]
    s_load_dwordx2 s[84:85], s[0:1], 96
    s_mov_b32 s86, 0x10000000
    s_mov_b32 s87, 0x00020000
    s_waitcnt lgkmcnt(0)
    s_mov_b64 exec, -1
    v_mov_b32 v4, s98
    v_mov_b32 v5, s92
    v_mov_b32 v6, s94
    v_mov_b32 v7, s96
    s_lshl_b32 s88, {idreg}, 2
    s_add_u32 s88, s88, {wavereg}
    s_lshl_b32 s88, s88, 4
    s_add_u32 s88, s88, {base:#x}
    buffer_store_dwordx4 v[4:7], off, s[84:87], s88
    v_mov_b32 v4, s90
    s_sub_u32 s88, s88, 0x40000
    buffer_store_dword v4, off, s[84:87], s88
Ltl2_{name}:
    s_endpgm"""
            lines.insert(iend + 1, stub)
        A.lines += lines; A.uid = B.uid
    instrument(lambda B, n: main_kernel(B, n, bool(PROFILE)), KNAME, "s100", PROF_OFF + 0x40000, 4, "s16")
    g.update({k: saved[k] for k in list(kw) + ["FULL", "TIMEOUT"]})
    open(path, "w").write(HDR + "\n".join(hdr) + "\n" + A.text())
if __name__ == "__main__":
    generate(sys.argv[1], STAMP=0 if HDR else 1)
```

```python
from asm import *
from model import *

WS, XB, DBG = 4, 8, 12
S_WAVE, S_ROLE, S_STEP, S_MEM, S_MEM2, S_P, S_X, S_VOX, S_TO, S_TMP, S_TMP2, S_P2, S_MEMN = range(16, 29)
S_PROF = 30
NSTEPS = 63
PACCUM = 0
PMASK = 255
TIMEOUT = 40000

def smf(d, a, b, idx, hi=False):
    return f"v_smfmac_f32_16x16x64_bf16 {v(d,4)}, {v(a,4)}, {b}, {v(idx)}" + (" abid:1" if hi else "")

def wreg(f, n=8, sub=0):
    return a_(8*f + sub, n) if f < 32 else v(120 + 8*(f-32) + sub, n)

def lane_consts(A, VL, VG, VN):
    A(f"v_and_b32 {v(VL)}, 63, v0", f"v_lshrrev_b32 {v(VG)}, 4, {v(VL)}", f"v_and_b32 {v(VN)}, 15, {v(VL)}")

def mem_lane_off(A, dst, VG, VN, t):
    A(f"v_lshlrev_b32 {v(dst)}, 8, {v(VG)}", f"v_lshl_add_u32 {v(dst)}, {v(VN)}, 4, {v(dst)}")

def idx_const(A, dst, VN, t):
    A(f"v_and_b32 {v(t)}, 1, {v(VN)}", f"v_mul_u32_u24 {v(dst)}, 0xAAAA, {v(t)}",
      f"v_lshrrev_b32 {v(t)}, 3, {v(VN)}", f"v_mul_u32_u24 {v(t)}, 0xAAAA, {v(t)}",
      f"v_lshl_add_u32 {v(dst)}, {v(t)}, 16, {v(dst)}", f"v_add_u32 {v(dst)}, 0x44444444, {v(dst)}")

def memload(dst, voff, kb):
    so = S_MEM if kb < 4 else S_MEM2
    return f"buffer_load_dwordx4 {v(dst,4)}, {v(voff)}, {s(WS,4)}, {s(so)} offen offset:{(kb%4)*1024} sc1"

def chk4(t, r, first=True):
    if first:
        return [f"v_max3_u32 {v(t)}, {v(r)}, {v(r+1)}, {v(r+2)}", f"v_max_u32 {v(t)}, {v(t)}, {v(r+3)}"]
    return [f"v_max3_u32 {v(t)}, {v(t)}, {v(r)}, {v(r+1)}", f"v_max3_u32 {v(t)}, {v(t)}, {v(r+2)}, {v(r+3)}"]

def timeout_step(A, again, abort):
    A(f"s_sub_u32 {s(S_TO)}, {s(S_TO)}, 1", f"s_cbranch_scc1 {abort}", f"s_branch {again}")

def prof(A, slot, on):
    if on and (PMASK >> slot) & 1:
        A(f"s_memtime {s(S_PROF+2*slot,2)}")

def prof_flush(A, n, vt, vz, role_wave_off):
    A("s_waitcnt lgkmcnt(0)")
    A(f"s_lshl_b32 {s(S_TMP)}, {s(S_ROLE)}, 2", f"s_add_u32 {s(S_TMP)}, {s(S_TMP)}, {s(S_WAVE)}", f"s_lshl_b32 {s(S_TMP)}, {s(S_TMP)}, 6",
      f"s_add_u32 {s(S_TMP)}, {s(S_TMP)}, {s(S_STEP)}", f"s_lshl_b32 {s(S_TMP)}, {s(S_TMP)}, 6", f"s_add_u32 {s(S_TMP)}, {s(S_TMP)}, {PROF_OFF:#x}")
    A(f"v_mov_b32 {v(vz)}, 0")
    for k in range(n):
        A(f"v_mov_b32 {v(vt)}, {s(S_PROF+2*k)}", f"buffer_store_dword {v(vt)}, {v(vz)}, {s(WS,4)}, {s(S_TMP)} offen offset:{4*k}")

def prof_acc(A, n):
    A("s_memtime s[72:73]", "s_waitcnt lgkmcnt(0)")
    for k in range(n):
        A(f"s_sub_u32 {s(S_TMP)}, {s(S_PROF+2*k)}, s71", f"s_add_u32 s{74+k}, s{74+k}, {s(S_TMP)}")
    A(f"s_sub_u32 {s(S_TMP)}, s72, s71", f"s_add_u32 s{74+n}, s{74+n}, {s(S_TMP)}", "s_mov_b32 s71, s72" if PACCUM == 1 else "s_mov_b32 s71, 0")
    Lz = A.label("pz")
    A(f"s_cmp_lg_u32 {s(S_STEP)}, 12", f"s_cbranch_scc1 {Lz}")
    for k in range(n+1): A(f"s_mov_b32 s{74+k}, 0")
    A(f"{Lz}:")
def prof_acc_out(A, n):
    A(f"s_lshl_b32 {s(S_TMP)}, {s(S_ROLE)}, 2", f"s_add_u32 {s(S_TMP)}, {s(S_TMP)}, {s(S_WAVE)}", f"s_lshl_b32 {s(S_TMP)}, {s(S_TMP)}, 6", f"s_add_u32 {s(S_TMP)}, {s(S_TMP)}, {PROF_OFF:#x}")
    for k in range(n+1):
        A(f"v_mov_b32 v0, s{74+k}", f"buffer_store_dword v0, off, {s(WS,4)}, {s(S_TMP)} offset:{4*k}")

def emit_slots(A, slots):
    for sl in slots:
        A(sl['m']); A(sl['pre']); A(sl['valu']); A(sl['post'])

TIMG = 0
TW = 1808
MIMG = 8192
XIMG = 16384
RS = 256
XSL = 20480
A_SLEEP = 0
VPB = 0
XEARLY = 1
XG1 = 14
XN1 = 8
TPOST = 0
BREL = 9
ROT = 0
CODEPF = 9
RM2 = 0
ORD = 0
X_FIXVOX = 0
X_XSN = 14
PG1 = 0
PG2 = 0
WFI = 0
FS0 = 0
FSD = 0
B1S = 38
B2S = 47
TRN = 4
X_NOPM = 0
PFA = 3
ATOUCH = 3
VPRE = 0
BTOUCH = 0
BT0 = 1
BTA = 1
TCH0 = 14
TAHEAD = 1
TGATE = 2
XPRE = 14
XPG = 18
X_NOVOX = 0
X_NOV = 0
FPD = 5
PGAP = 30
WARM = 0
B0S = 16
LG = 35
P2W = 10
F2AT = 0
XSCR = 0
EXW = 6
TLM = 0
FROFF = 14336
F1AT = 2
FULL = 0
PB2 = 0
LDFL = 0
F1GO = 1
VOXS = 3
STAMP = 1
XS0 = 10
XSN = 28
D1 = 75
D2 = 22
F2D = 40
F2OFF = 10240
F1OFF = 12288
APW = 2
BPW = 3
F1W = 2
X_NODMA = 0
X_NOH = 0
X_NOTR = 0
X_NOCONV = 0
X_NOB1 = 0
B_SLEEP_M = 4
B_SLEEP_P = 0

def nops(n):
    out = []
    while n > 0:
        k = min(n, 16); out.append(f"s_nop {k-1}"); n -= k
    return out

def flag_ld(r, voff, soff, off):
    return f"buffer_load_dword {v(r)}, {v(voff)}, {s(WS,4)}, {s(soff)} offen offset:{off} sc1"
def flag_poll(A, regs, voff, soff, off, abort, tag, primed=False):
    Lp, Lgo = A.label(tag + "fp"), A.label(tag + "go")
    ld = lambda r: flag_ld(r, voff, soff, off)
    n = len(regs)
    if not primed:
        for r in regs: A(ld(r), f"s_nop {48 // n - 1}")
    A(f"{Lp}:")
    for r in regs:
        A(f"s_waitcnt vmcnt({n-1})", f"v_cmp_eq_u32 vcc, -1, {v(r)}", f"s_cbranch_vccz {Lgo}", ld(r))
    timeout_step(A, Lp, abort)
    A(f"{Lgo}:")

def mkslots(ms):
    return [dict(m=m, pre=[], valu=[], post=[]) for m in ms]

S_SLOW = 47
def read_mode(A, vt):
    if FULL:
        A(f"buffer_load_dword {v(vt)}, off, {s(DBG,4)}, 0 sc1", "s_waitcnt vmcnt(0)", f"v_readfirstlane_b32 {s(S_SLOW)}, {v(vt)}", f"s_cmp_ge_u32 {s(S_SLOW)}, 32", f"s_cselect_b32 {s(S_SLOW)}, 0x40000000, 0")
    else:
        A(f"s_mov_b32 {s(S_SLOW)}, 0x40000000")

def role_A(A, w, abort, profile=False):
    import prep
    WFL = [' sc1', '', ' nt', ' sc1 nt'][WFI]
    MEMR, ACC, HT = 0, 28, 56
    IDX, VMEM, VTW, VTR, VH, VX, TMP, TMP2 = range(112, 120)
    VG, VN, VL = 1, 2, 3
    ko = [(w + i) % 3 for i in range(3)] + [3, 4, 5, 6]
    lane_consts(A, VL, VG, VN)
    idx_const(A, IDX, VN, TMP)
    mem_lane_off(A, VMEM, VG, VN, TMP)
    A(f"v_lshlrev_b32 {v(VTW)}, 4, {v(VN)}", f"v_lshl_add_u32 {v(VTW)}, {v(VG)}, 2, {v(VTW)}", f"v_add_u32 {v(VTW)}, {TIMG + w*TW}, {v(VTW)}")
    A(f"v_and_b32 {v(TMP)}, 1, {v(VG)}", f"v_mul_u32_u24 {v(VTR)}, {2*TW}, {v(TMP)}",
      f"v_lshrrev_b32 {v(TMP)}, 3, {v(VN)}", f"v_lshl_add_u32 {v(VTR)}, {v(TMP)}, 7, {v(VTR)}",
      f"v_bfe_u32 {v(TMP)}, {v(VN)}, 1, 1", f"v_lshl_add_u32 {v(VTR)}, {v(TMP)}, 6, {v(VTR)}",
      f"v_lshrrev_b32 {v(TMP)}, 1, {v(VG)}", f"v_lshl_add_u32 {v(VTR)}, {v(TMP)}, 5, {v(VTR)}",
      f"v_bfe_u32 {v(TMP)}, {v(VN)}, 2, 1", f"v_lshl_add_u32 {v(VTR)}, {v(TMP)}, 4, {v(VTR)}",
      f"v_and_b32 {v(TMP)}, 1, {v(VN)}", f"v_lshl_add_u32 {v(VTR)}, {v(TMP)}, 3, {v(VTR)}")
    if TIMG: A(f"v_add_u32 {v(VTR)}, {TIMG}, {v(VTR)}")
    if w < 3:
        A(f"v_lshlrev_b32 {v(VX)}, 10, {v(VG)}",
          f"v_lshl_add_u32 {v(VX)}, {v(VN)}, {3 if w < 2 else 2}, {v(VX)}", f"v_add_u32 {v(VX)}, {XIMG + (4*w if w < 2 else 128)}, {v(VX)}")
    if w < 2:
        A(f"v_lshlrev_b32 {v(VH)}, 4, {v(VL)}")
    elif w == 2:
        A(f"v_mul_u32_u24 {v(VH)}, 1792, {v(VG)}", f"v_and_b32 {v(TMP)}, 7, {v(VN)}", f"v_lshl_add_u32 {v(VH)}, {v(TMP)}, 5, {v(VH)}",
          f"v_add_u32 {v(VH)}, {MIMG}, {v(VH)}")
    else:
        PXO, PMO = HT + 40, HT + 41
        A(f"v_lshrrev_b32 {v(TMP2)}, 3, {v(VL)}", f"v_mul_u32_u24 {v(VH)}, {RS}, {v(TMP2)}", f"v_and_b32 {v(TMP)}, 7, {v(VL)}",
          f"v_lshl_add_u32 {v(VX)}, {v(TMP)}, 4, {v(VH)}", f"v_add_u32 {v(VX)}, {XIMG}, {v(VX)}",
          f"v_lshl_add_u32 {v(VH)}, {v(TMP)}, 2, {v(VH)}", f"v_add_u32 {v(VH)}, {XIMG + 128}, {v(VH)}")
        A(f"v_and_b32 {v(TMP)}, 3, {v(VL)}", f"v_lshlrev_b32 {v(PXO)}, 3, {v(TMP)}", f"v_lshl_add_u32 {v(PXO)}, {v(TMP2)}, 5, {v(PXO)}",
          f"v_bfe_u32 {v(TMP)}, {v(VL)}, 2, 1", f"v_lshl_add_u32 {v(PXO)}, {v(TMP)}, 8, {v(PXO)}",
          f"s_lshl_b32 {s(S_TMP)}, {s(S_ROLE)}, 9", f"v_add_u32 {v(PXO)}, {s(S_TMP)}, {v(PXO)}")
        A(f"v_lshlrev_b32 {v(PMO)}, 5, {v(TMP2)}",
          f"v_bfe_u32 {v(TMP)}, {v(VL)}, 2, 1", f"v_lshl_add_u32 {v(PMO)}, {v(TMP)}, 8, {v(PMO)}",
          f"v_bfe_u32 {v(TMP)}, {v(VL)}, 1, 1", f"v_lshl_add_u32 {v(PMO)}, {v(TMP)}, 3, {v(PMO)}",
          f"s_lshr_b32 {s(S_TMP)}, {s(S_ROLE)}, 2", f"s_lshl_b32 {s(S_TMP)}, {s(S_TMP)}, 9",
          f"s_and_b32 {s(S_TMP2)}, {s(S_ROLE)}, 1", f"s_lshl_b32 {s(S_TMP2)}, {s(S_TMP2)}, 4", f"s_add_u32 {s(S_TMP)}, {s(S_TMP)}, {s(S_TMP2)}",
          f"s_bfe_u32 {s(S_TMP2)}, {s(S_ROLE)}, 0x10001", f"s_lshl_b32 {s(S_TMP2)}, {s(S_TMP2)}, 2", f"s_add_u32 {s(S_TMP)}, {s(S_TMP)}, {s(S_TMP2)}",
          f"s_add_u32 {s(S_TMP)}, {s(S_TMP)}, 8192", f"v_add_u32 {v(PMO)}, {s(S_TMP)}, {v(PMO)}")
        A(f"v_and_b32 {v(TMP)}, 1, {v(VL)}", f"v_lshl_add_u32 {v(PMO)}, {v(TMP)}, 30, {v(PMO)}")
    if w == APW:
        A(f"v_min_u32 {v(TMP2)}, 13, {v(VL)}", f"v_lshlrev_b32 {v(TMP2)}, 2, {v(TMP2)}", f"s_lshr_b32 {s(S_TMP)}, {s(S_ROLE)}, 2", f"s_lshl_b32 {s(S_TMP)}, {s(S_TMP)}, 8", f"s_add_u32 {s(S_TMP)}, {s(S_TMP)}, {F1OFF}", f"v_add_u32 {v(TMP2)}, {s(S_TMP)}, {v(TMP2)}")
    if w == 3:
        A(f"v_lshlrev_b32 {v(TMP2)}, 7, {v(VL)}", f"s_lshl_b32 {s(S_TMP)}, {s(S_ROLE)}, 2", f"s_add_u32 {s(S_TMP)}, {s(S_TMP)}, {F2OFF}", f"v_add_u32 {v(TMP2)}, {s(S_TMP)}, {v(TMP2)}",
          f"v_cmp_lt_u32 vcc, 13, {v(VL)}", f"v_mov_b32 {v(TMP)}, 0x40000000", "s_nop 0", f"v_cndmask_b32 {v(TMP2)}, {v(TMP2)}, {v(TMP)}, vcc")
    if FULL: prep.wait_tiles(A, s(S_ROLE), 1, abort, "A", S_TO, 4, 5)
    A(f"v_lshlrev_b32 {v(TMP)}, 4, {v(VL)}")
    A(f"s_mul_i32 {s(S_TMP)}, {s(S_ROLE)}, {28*14336}", f"s_add_u32 {s(S_TMP)}, {s(S_TMP)}, {WA_OFF + 7*w*14336}")
    for cb in range(7):
        for p in range(7):
            f = cb*7 + p
            off = cb*14336 + ko[p]*2048
            A(f"s_add_u32 {s(S_TMP2)}, {s(S_TMP)}, {off}")
            for hi in range(2):
                A(f"buffer_load_dwordx4 {wreg(f,4,4*hi)}, {v(TMP)}, {s(WS,4)}, {s(S_TMP2)} offen offset:{1024*hi}{WFL}")
        if cb >= 2: A("s_waitcnt vmcnt(28)")
    A(f"s_mov_b32 {s(S_STEP)}, 0", f"s_mov_b32 {s(S_MEM)}, {MEMF_OFF:#x}", f"s_mov_b32 {s(S_MEM2)}, {MEMF_OFF+4096:#x}",
      f"s_mov_b32 {s(S_P)}, {PF_OFF:#x}", f"s_mov_b32 {s(S_X)}, {XS_OFF + 14336*(w%2):#x}", f"s_mov_b32 {s(S_TO)}, {TIMEOUT}")
    Lstep = A.label(f"A{w}step"); Lpoll = A.label(f"A{w}poll")
    def cv_wait(ahead):
        Lc, Lg = A.label("cvp"), A.label("cvg")
        A(f"s_add_u32 {s(S_TMP2)}, {s(S_P)}, {16384*ahead + FROFF}", f"v_cmp_ne_u32 vcc, 15, {v(TMP2)}", f"s_cbranch_vccz {Lg}")
        A(f"{Lc}:", f"buffer_load_dword {v(TMP2)}, off, {s(WS,4)}, {s(S_TMP2)} sc1", "s_waitcnt vmcnt(0)", f"v_cmp_ne_u32 vcc, 15, {v(TMP2)}", f"s_cbranch_vccz {Lg}", "s_sleep 1")
        timeout_step(A, Lc, abort)
        A(f"{Lg}:", f"s_add_u32 {s(S_TMP2)}, {s(S_TMP2)}, 16384", f"buffer_load_dword {v(TMP2)}, off, {s(WS,4)}, {s(S_TMP2)} sc1")
    if FULL: prep.wait_counters(A, 0, 32, abort, "A", S_TO, 4, 5)
    if w == 3: read_mode(A, 4)
    if FULL:
        if w < 2:
            A(f"v_mov_b32 {v(TMP2)}, 0")
            cv_wait(0)
    if w == 3:
        A(f"v_lshlrev_b32 {v(HT+43)}, 7, {v(VL)}", f"s_lshl_b32 {s(S_VOX)}, {s(S_ROLE)}, {13 + BTOUCH}", f"s_add_u32 {s(S_VOX)}, {s(S_VOX)}, {VOX_OFF + 458752*TAHEAD + (65536 << BTOUCH)*PF_VOX:#x}",
          f"s_cmp_lt_u32 {s(S_ROLE)}, {max(0, (56 >> BTOUCH) - 8*PF_VOX - 16*(ATOUCH-1))}", f"s_cselect_b32 s59, {(131072 << BTOUCH)*max(0, ATOUCH-1)}, 0x40000000")
        A(f"s_cmp_lt_u32 {s(S_ROLE)}, 7", f"s_cselect_b32 s61, {ALT:#x}, 0x40000000", f"s_min_u32 {s(S_TMP)}, {s(S_ROLE)}, 6",
          f"s_lshl_b32 {s(S_TMP)}, {s(S_TMP)}, 10", f"v_add_u32 {v(HT+47)}, {s(S_TMP)}, {v(VMEM)}")
    if w < 2:
        for j in range(XPRE):
            if j % 4 == 0: A(f"s_add_u32 {s(S_TMP)}, {s(S_X)}, {1024*j}")
            A(f"buffer_load_dwordx4 {v(HT+4*j,4)}, {v(VH)}, {s(WS,4)}, {s(S_TMP)} offen offset:{1024*(j%4)} sc1")
    A(f"s_mov_b32 {s(S_PROF+16)}, 0")
    if STAMP: A("s_mov_b32 s58, 0")
    if STAMP and w == 3: A("s_waitcnt vmcnt(0)", "s_memrealtime s[50:51]", "s_memtime s[54:55]")
    if TLM: A("s_waitcnt vmcnt(0)", "s_memrealtime s[92:93]")
    for r in range(28): A(f"v_mov_b32 {v(ACC+r)}, 0")
    if w == 3: A("s_mov_b32 s60, 0x40000000" if FULL else f"s_mov_b32 s60, {s(S_VOX)}")
    A(f"{Lstep}:")
    prof(A, 0, profile)
    Lfail, Lfail2, Lcont2 = A.label("fail"), A.label("fail2"), A.label("cont2")
    dmas = [3 + w] + ([w] if w < 3 else [])
    nd = len(dmas)
    def issue():
        o = [memload(MEMR + 4*p, VMEM, ko[p]) for p in range(3)] + nops(LG)
        for kb in dmas:
            o += [f"s_mov_b32 m0, {MIMG + (kb - kb % 4)*1024}", "s_nop 0", f"buffer_load_dwordx4 {v(VMEM)}, {s(WS,4)}, {s(S_MEM if kb < 4 else S_MEM2)} offen offset:{(kb%4)*1024} sc1 lds"]
        return o
    B0 = B0S
    rdm = lambda p: f"ds_read_b128 {v(MEMR+4*p,4)}, {v(VMEM)} offset:{MIMG + ko[p]*1024}"
    xld = lambda j: f"buffer_load_dwordx4 {v(HT+4*j,4)}, {v(VH)}, {s(WS,4)}, {s(S_TMP)} offen offset:{1024*(j%4)} sc1"
    A(issue())
    A(f"{Lpoll}:")
    if profile: A(f"s_add_u32 {s(S_PROF+16)}, {s(S_PROF+16)}, 256")
    A(f"s_waitcnt vmcnt({2 + nd})")
    prof(A, 1, profile)
    order = [(cb, p) for p in range(3) for cb in range(7)] + [(cb, p) for cb in range(7) for p in range(3, 7)]
    slots = mkslots([smf(ACC+4*cb, MEMR+4*p, wreg(cb*7+p), IDX) for cb, p in order])
    cmp_ = f"v_cmp_eq_u32 vcc, -1, {v(TMP)}"
    c0, c1, c2 = chk4(TMP, MEMR), chk4(TMP, MEMR + 4), chk4(TMP, MEMR + 8, False)
    for i, o in enumerate(c0 + [cmp_]): slots[i]['valu'].append(o)
    slots[4]['pre'].append(f"s_cbranch_vccnz {Lfail}")
    slots[5]['pre'].append(f"s_waitcnt vmcnt({1 + nd})")
    slots[5]['valu'].append(c1[0]); slots[6]['valu'].append(c1[1])
    slots[P2W]['pre'].append(f"s_waitcnt vmcnt({nd})")
    slots[P2W]['valu'].append(c2[0]); slots[P2W+1]['valu'].append(c2[1]); slots[P2W+2]['valu'].append(cmp_)
    slots[P2W+4]['pre'].append(f"s_cbranch_vccnz {Lfail}")
    assert P2W + 4 <= B0 and 7 <= P2W <= 13
    SACC = MEMR
    if w < 3:
        for r in range(4): slots[16 + r]['valu'].append(f"v_mov_b32 {v(SACC+r)}, 0")
    slots[B0]['pre'] += ["s_waitcnt vmcnt(0)", "s_barrier", rdm(3)]
    for p in range(4, 7): slots[B0 + p - 3]['pre'].append(rdm(p))
    for p in range(3, 7): slots[17 + p]['pre'].append(f"s_waitcnt lgkmcnt({6-p})")
    if w == 2:
        for j in range(14):
            slots[24 + j]['pre'].append(f"ds_read_b128 {v(HT+4*j,4)}, {v(VH)} offset:{256*(j//2)+16*(j%2)}")
    if w == 3 and FULL:
        slots[25]['pre'] += [f"ds_read_b128 {v(HT+48,4)}, {v(HT+47)} offset:{MIMG}", f"s_add_u32 s62, {s(S_MEM)}, s61"]
        slots[32]['pre'] += ["s_waitcnt lgkmcnt(1)", f"buffer_store_dwordx4 {v(HT+48,4)}, {v(HT+47)}, {s(WS,4)}, s62 offen sc1"]
    tch = lambda i: [f"s_add_u32 {s(S_TMP)}, s60, {'s59' if i == ATOUCH - 1 else (131072 << BTOUCH)*i}", f"buffer_load_dword {v(HT+52+i)}, {v(HT+43)}, {s(WS,4)}, {s(S_TMP)} offen sc1"]
    if w == 3 and ATOUCH:
        for i in range(ATOUCH - TPOST): slots[B0 + 1 + 2*i]['pre'] += tch(i)
    if w < 2:
        nin = 14 - XPRE
        for jj in range(nin):
            j = XPRE + jj
            sl = B0 + 1 + (jj*XSN)//nin
            if j % 4 == 0 or jj == 0: slots[sl]['pre'].append(f"s_add_u32 {s(S_TMP)}, {s(S_X)}, {1024*(j - j % 4)}")
            slots[sl]['pre'].append(xld(j))
    def conv(cb):
        r = ACC + 4*cb
        return [f"v_add_f32 {v(r)}, {v(r)}, {v(r+1)}", f"v_add_f32 {v(r+2)}, {v(r+2)}, {v(r+3)}",
                f"v_cvt_pk_bf16_f32 {v(r)}, {v(r)}, {v(r+2)}", f"ds_write_b32 {v(VTW)}, {v(r)} offset:{256*cb}"]
    for cb in range(6):
        for i, o in enumerate(conv(cb)):
            if 26 + 4*cb + i < 49: slots[26 + 4*cb + i]['valu'].append(o)
    slots[28]['valu'].insert(0, f"v_cmp_u_f32 vcc, {v(ACC)}, {v(ACC+2)}")
    slots[30]['pre'] += [f"s_cbranch_vccnz {Lfail2}", f"{Lcont2}:"]
    TF = lambda k: MEMR + 4 + 4*k if k < 2 else ACC + 4*(k-2)
    def trread(k):
        return [f"ds_read_b64_tr_b16 {v(TF(k)+2*u,2)}, {v(VTR)} offset:{256*k + TW*u}" for u in range(2)]
    slots[41]['pre'] += ["s_waitcnt lgkmcnt(0)", "s_barrier"]
    if w < 3:
        rs = [r for k in range(3) for r in trread(k)]
        for i, r in enumerate(rs): slots[42 + (i*TRN)//6]['pre'].append(r)
    if profile and FSD:
        for k in range(5):
            if FS0 + k*FSD < 49: slots[FS0 + k*FSD]['pre'].insert(0, f"s_memtime {s(S_PROF+4+2*k,2)}")
    elif profile:
        for st, sl in ((2, 13), (3, 27), (4, 48)):
            if (PMASK >> st) & 1: slots[sl]['pre'].append(f"s_memtime {s(S_PROF+2*st,2)}")
    emit_slots(A, slots)
    c6 = conv(6); W5 = conv(5)[3]
    A("s_waitcnt lgkmcnt(0)", "s_barrier", W5)
    if w < 3:
        sm = [smf(SACC, TF(k), v(HT+8*k, 8), IDX, True) for k in range(7)]
        vw = (lambda n: f"s_waitcnt vmcnt({n})") if w < 2 and XPRE < 14 else (lambda n: "")
        r3, r4 = trread(3), trread(4)
        A(vw(12), sm[0], r3, r4[0], c6[0], c6[1], c6[2], c6[3], r4[1], vw(8), sm[1], sm[2], "s_waitcnt lgkmcnt(3)", vw(4), sm[3], "s_waitcnt lgkmcnt(0)", sm[4])
        A("s_waitcnt lgkmcnt(0)", "s_barrier")
        prof(A, 5, profile)
        for k in range(5, 7): A(trread(k))
        A(vw(0))
        for k in range(5, 7):
            A(f"s_waitcnt lgkmcnt({2*(6-k)})", sm[k])
        A("s_nop 7")
        A(f"ds_write2st64_b32 {v(VX)}, {v(SACC)}, {v(SACC+1)} offset0:0 offset1:1",
          f"ds_write2st64_b32 {v(VX)}, {v(SACC+2)}, {v(SACC+3)} offset0:2 offset1:3", "s_waitcnt lgkmcnt(0)", "s_barrier")
        prof(A, 6, profile)
        prof(A, 7, profile)
    else:
        A("s_nop 3", c6)
        A("s_waitcnt lgkmcnt(0)", "s_barrier")
        prof(A, 5, profile)
        if FULL and EXW == 7: A(f"buffer_store_dwordx4 {v(HT+48,4)}, {v(HT+47)}, {s(WS,4)}, s62 offen sc1")
        A(f"s_add_u32 s63, {s(S_P)}, {s(S_SLOW)}", "s_xor_b32 s64, s63, 0x40000000", nops(F2D - 2), f"buffer_store_dword {v(IDX)}, {v(TMP2)}, {s(WS,4)}, s64 offen")
        A("s_barrier")
        X0 = HT; XM = HT+4; MX, L = HT+8, HT+9; N0 = HT+12
        Lslow, Lnorm = A.label("slow"), A.label("norm")
        Y0 = HT + 20; RAW = HT + 28
        A(f"ds_read_b128 {v(X0,4)}, {v(VX)}", f"ds_read_b128 {v(Y0,4)}, {v(VX)} offset:2048", f"ds_read2st64_b32 {v(Y0+4,2)}, {v(VH)} offset0:0 offset1:8")
        prof(A, 6, profile)
        A("s_waitcnt lgkmcnt(1)")
        for j in range(4): A(f"v_add_f32 {v(RAW+j)}, {v(X0+j)}, {v(Y0+j)}")
        A("s_waitcnt lgkmcnt(0)", f"v_add_f32 {v(RAW+4)}, {v(Y0+4)}, {v(Y0+5)}")
        for j in range(5): A(f"v_exp_f32 {v(X0+j)}, {v(RAW+j)}")
        dpps = ["quad_perm:[1,0,3,2]", "quad_perm:[2,3,0,1]", "row_half_mirror"]
        def norm_store(check):
            A(f"v_add_f32 {v(L)}, {v(X0)}, {v(X0+1)}", f"v_add_f32 {v(MX)}, {v(X0+2)}, {v(X0+3)}",
              f"v_add_f32 {v(L)}, {v(L)}, {v(MX)}", f"v_add_f32 {v(L)}, {v(L)}, {v(XM)}")
            for d in dpps: A("s_nop 1", f"v_add_f32_dpp {v(L)}, {v(L)}, {v(L)} {d} row_mask:0xf bank_mask:0xf")
            A(f"v_rcp_f32 {v(N0+5)}, {v(L)}")
            if check: A(f"v_subrev_u32 {v(MX)}, 0x21800000, {v(L)}", f"v_cmp_lt_u32 vcc, 0x3c000000, {v(MX)}")
            else: A("s_nop 0")
            R = N0 + 5
            A(f"v_mul_f32_e64 {v(X0)}, {v(X0)}, {v(R)} clamp", f"v_mul_f32 {v(X0+1)}, {v(X0+1)}, {v(R)}",
              f"v_mul_f32_e64 {v(X0+2)}, {v(X0+2)}, {v(R)} clamp", f"v_mul_f32 {v(X0+3)}, {v(X0+3)}, {v(R)}",
              f"v_cvt_pk_bf16_f32 {v(N0)}, {v(X0)}, {v(X0+1)}", f"v_cvt_pk_bf16_f32 {v(N0+1)}, {v(X0+2)}, {v(X0+3)}",
              f"v_mul_f32_dpp {v(N0+3)}, {v(XM)}, {v(R)} quad_perm:[1,0,3,2] row_mask:0xf bank_mask:0xf")
            if check: A(f"s_cbranch_vccnz {Lslow}")
            A(f"v_mul_f32_e64 {v(XM)}, {v(XM)}, {v(R)} clamp",
              f"buffer_store_dwordx2 {v(N0,2)}, {v(PXO)}, {s(WS,4)}, s64 offen",
              f"v_cvt_pk_bf16_f32 {v(N0+2)}, {v(XM)}, {v(N0+3)}",
              f"buffer_store_dword {v(N0+2)}, {v(PMO)}, {s(WS,4)}, s64 offen")
        norm_store(True)
        A(f"{Lnorm}:")
        A(f"buffer_store_dwordx2 {v(N0,2)}, {v(PXO)}, {s(WS,4)}, s63 offen sc1", f"buffer_store_dword {v(N0+2)}, {v(PMO)}, {s(WS,4)}, s63 offen sc1",
          f"buffer_store_dword {v(IDX)}, {v(TMP2)}, {s(WS,4)}, s63 offen sc1")
        prof(A, 7, profile)
    if profile and PACCUM: prof_acc(A, 8)
    elif profile:
        prof_flush(A, 9, TMP, MEMR, 0)
        A(f"s_mov_b32 {s(S_PROF+16)}, 0")
    zs = [f"v_mov_b32 {v(ACC+r)}, 0" for r in range(28)]
    if not XEARLY:
        A("s_barrier", zs)
        if w < 2:
            if FULL: cv_wait(1)
            for j in range(min(XPRE, X_XSN)):
                if j % 4 == 0: A(f"s_add_u32 {s(S_TMP)}, {s(S_X)}, {28672 + 1024*j}")
                A(xld(j), nops(XPG))
    elif w < 2:
        if FULL: cv_wait(1)
        el = 0
        for j in range(14):
            if j % 4 == 0: A(f"s_add_u32 {s(S_TMP)}, {s(S_X)}, {28672 + 1024*j}")
            A(xld(j))
            gap = XG1 if j < XN1 else XPG
            if j == 13: gap = 0
            nz = min(len(zs), gap) if el >= 70 else 0
            A(zs[:nz], nops(gap - nz)); zs = zs[nz:]
            el += gap + 2
        A(zs)
    elif w == 2: A(nops(70), zs)
    else: A(zs)
    if w == 3:
        if FULL: A(f"s_add_u32 {s(S_TMP)}, {s(S_P)}, {16384*(TAHEAD+1) + FROFF}", f"buffer_load_dword {v(TMP)}, off, {s(WS,4)}, {s(S_TMP)} sc1")
        for i in range(ATOUCH - TPOST, ATOUCH): A(tch(i))
        A(f"s_add_u32 s60, {s(S_VOX)}, 458752")
        if FULL:
            A(f"s_waitcnt vmcnt({TPOST})",
              f"v_readfirstlane_b32 {s(S_TMP)}, {v(TMP)}", f"s_cmp_eq_u32 {s(S_TMP)}, 15", "s_cselect_b32 s60, s60, 0x40000000")
        if FULL and EXW == 5:
            A(f"ds_read_b128 {v(HT+48,4)}, {v(HT+47)} offset:{MIMG}", f"s_add_u32 {s(S_TMP)}, {s(S_MEM)}, s61", "s_waitcnt lgkmcnt(0)",
              f"buffer_store_dwordx4 {v(HT+48,4)}, {v(HT+47)}, {s(WS,4)}, {s(S_TMP)} offen sc1")
    if w == APW:
        if TGATE != 1: flag_poll(A, list(range(8, 8 + FPD)), TMP2, S_P, 0, abort, "A")
        A(nops(D1))
    A("s_barrier")
    if TLM:
        Lt = A.label("tl")
        A(f"s_lshl_b32 {s(S_TMP)}, {s(S_ROLE)}, 2", f"s_add_u32 {s(S_TMP)}, {s(S_TMP)}, {w}", f"s_cmp_lg_u32 {s(S_STEP)}, {s(S_TMP)}", f"s_cbranch_scc1 {Lt}", "s_memrealtime s[94:95]", f"{Lt}:")
    A(f"s_add_u32 {s(S_MEM)}, {s(S_MEM)}, 8192", f"s_add_u32 {s(S_MEM2)}, {s(S_MEM2)}, 8192", f"s_add_u32 {s(S_P)}, {s(S_P)}, 16384",
      f"s_add_u32 {s(S_X)}, {s(S_X)}, {32*896}", f"s_add_u32 {s(S_VOX)}, {s(S_VOX)}, 458752",
      f"s_add_u32 {s(S_STEP)}, {s(S_STEP)}, 1", f"s_cmp_lt_u32 {s(S_STEP)}, {NSTEPS}", f"s_cbranch_scc1 {Lstep}")
    if profile and PACCUM: prof_acc_out(A, 8)
    if STAMP: A("v_mov_b32 v0, s58", "s_mov_b64 exec, 1", f"buffer_atomic_add v0, off, {s(DBG,4)}, 0 offset:52", "s_mov_b64 exec, -1")
    if STAMP and w == 3:
        A("s_memrealtime s[52:53]", "s_memtime s[56:57]", "s_waitcnt lgkmcnt(0)", "s_sub_u32 s52, s52, s50", "s_sub_u32 s56, s56, s54", "v_mov_b32 v0, s52", "v_mov_b32 v1, s56",
          f"s_lshl_b32 {s(S_TMP)}, {s(S_ROLE)}, {10 if FULL else 3}", (f"buffer_store_dword v0, off, {s(DBG,4)}, {s(S_TMP)} offset:60" if FULL else f"buffer_store_dwordx2 v[0:1], off, {s(DBG,4)}, {s(S_TMP)} offset:64"))
    A("s_endpgm")
    A(f"{Lfail2}:")
    for p in range(3, 7): A(chk4(TMP, MEMR + 4*p, p == 3))
    A(cmp_, f"s_cbranch_vccz {Lcont2}", "s_waitcnt lgkmcnt(0)", "s_barrier")
    if STAMP: A(f"s_add_u32 s58, s58, 0x10000")
    A(f"{Lfail}:", issue(), f"s_sub_u32 {s(S_TO)}, {s(S_TO)}, 1", f"s_cbranch_scc1 {abort}")
    if STAMP: A(f"s_add_u32 s58, s58, 1")
    for r in range(28): A(f"v_mov_b32 {v(ACC+r)}, 0")
    A(f"s_branch {Lpoll}")
    if w == 3:
        A(f"{Lslow}:")
        A(f"v_max3_f32 {v(MX)}, {v(RAW)}, {v(RAW+1)}, {v(RAW+2)}", f"v_max3_f32 {v(MX)}, {v(MX)}, {v(RAW+3)}, {v(RAW+4)}")
        for d in dpps: A("s_nop 1", f"v_max_f32_dpp {v(MX)}, {v(MX)}, {v(MX)} {d} row_mask:0xf bank_mask:0xf")
        for j in range(5): A(f"v_sub_f32 {v(X0+j)}, {v(RAW+j)}, {v(MX)}")
        for j in range(5): A(f"v_exp_f32 {v(X0+j)}, {v(X0+j)}")
        A("s_nop 0")
        norm_store(False)
        A(f"s_branch {Lnorm}")

BW7 = 0
BMIMG = 57344
BVIMG = 65536
DB = 55

def role_B(A, w, abort, profile=False):
    import prep
    WFL = [' sc1', '', ' nt', ' sc1 nt'][WFI]
    pv = w < 2
    c, M = w % 2, w // 2
    NR = 6 if pv else 8
    WV0 = 256 - 8*(7*NR - 32)
    wrg = lambda f, n=8, sub=0: a_(8*f + sub, n) if f < 32 else v(WV0 + 8*(f-32) + sub, n)
    MEMR, ACC, VP = 0, 40, 48
    IDX, VL16, TMP, TMP2, VLV, VF2 = range(56, 62)
    if pv:
        VP2, VOX, SB, AC7, PACC, VST, R0 = 64, 72, 136, 152, 160, 164, 165
        assert 166 <= WV0
    VG, VN, VL = 1, 2, 3
    own = [2*w, 2*w+1] if w < 3 else [6]
    lane_consts(A, VL, VG, VN)
    idx_const(A, IDX, VN, TMP)
    A(f"v_lshlrev_b32 {v(VL16)}, 4, {v(VL)}", f"v_add_u32 {v(VLV)}, {BVIMG + 2048*c}, {v(VL16)}")
    A(f"s_sub_u32 {s(S_TMP)}, {s(S_ROLE)}, 16")
    if pv:
        A(f"v_lshlrev_b32 {v(VF2)}, 2, {v(VN)}", f"s_lshl_b32 {s(S_TMP2)}, {s(S_TMP)}, 7", f"s_add_u32 {s(S_TMP2)}, {s(S_TMP2)}, {F2OFF - 8192}", f"v_add_u32 {v(VF2)}, {s(S_TMP2)}, {v(VF2)}")
        VF1 = 166
        A(f"v_lshlrev_b32 {v(VF1)}, 8, {v(VL)}", f"s_lshl_b32 {s(S_TMP2)}, {s(S_TMP)}, 2", f"s_add_u32 {s(S_TMP2)}, {s(S_TMP2)}, {F1OFF - 8192}", f"v_add_u32 {v(VF1)}, {s(S_TMP2)}, {v(VF1)}",
          f"v_cmp_lt_u32 vcc, 3, {v(VL)}", f"v_mov_b32 {v(TMP)}, 0x40000000", "s_nop 0", f"v_cndmask_b32 {v(VF1)}, {v(VF1)}, {v(TMP)}, vcc")
        A(f"v_lshlrev_b32 {v(VST)}, 6, {v(VG)}", f"v_and_b32 {v(TMP)}, 1, {v(VN)}", f"v_lshl_add_u32 {v(VST)}, {v(TMP)}, 5, {v(VST)}",
          f"v_bfe_u32 {v(TMP)}, {v(VN)}, 1, 1", f"v_lshl_add_u32 {v(VST)}, {v(TMP)}, 4, {v(VST)}", f"v_lshrrev_b32 {v(TMP)}, 2, {v(VN)}", f"v_lshl_add_u32 {v(VST)}, {v(TMP)}, 2, {v(VST)}")
    A(f"s_mul_i32 {s(S_VOX)}, {s(S_TMP)}, {16*1024}",
      f"s_lshl_b32 {s(S_MEMN)}, {s(S_TMP)}, 8", f"s_add_u32 {s(S_MEMN)}, {s(S_MEMN)}, {MEMF_OFF + 8192 + 256*14*c:#x}",
      f"s_mul_i32 {s(S_TMP)}, {s(S_TMP)}, {14336}", f"s_add_u32 {s(S_TMP)}, {s(S_TMP)}, {WB_OFF + (8*M*28 + 14*c)*14336:#x}",
      f"s_add_u32 {s(S_VOX)}, {s(S_VOX)}, {VOX_OFF + 16384*14*c:#x}")
    if FULL: prep.wait_tiles(A, 16, 16, abort, "B", S_TO, 4, 5)
    stg = [4, 64]
    if pv:
        for u in (6, 7):
            for kb in range(7):
                A(f"s_add_u32 {s(S_TMP2)}, {s(S_TMP)}, {u*28*14336 + kb*2048}")
                for hi in range(2):
                    d = v(64+8*kb+4*hi,4) if u == 6 else a_(200+8*kb+4*hi,4)
                    A(f"buffer_load_dwordx4 {d}, {v(VL16)}, {s(WS,4)}, {s(S_TMP2)} offen offset:{1024*hi}{WFL}")
    for u in range(NR):
        for kb in range(7):
            f = u*7 + kb
            A(f"s_add_u32 {s(S_TMP2)}, {s(S_TMP)}, {u*28*14336 + kb*2048}")
            for hi in range(2):
                A(f"buffer_load_dwordx4 {wrg(f,4,4*hi)}, {v(VL16)}, {s(WS,4)}, {s(S_TMP2)} offen offset:{1024*hi}{WFL}")
        if u >= 2 or pv: A("s_waitcnt vmcnt(28)")
        if pv and u == 1:
            for j in range(14): A(f"ds_write_b128 {v(VL16)}, {v(64+4*j,4)} offset:{BW7 + 2*w*14336 + j*1024}")
            for j in range(14): A(f"ds_write_b128 {v(VL16)}, {a_(200+4*j,4)} offset:{BW7 + (2*w+1)*14336 + j*1024}")
            A("s_waitcnt lgkmcnt(0)")
    if FULL: prep.wait_counters(A, 0, 32, abort, "B", S_TO, 4, 5)
    if pv: read_mode(A, 4)
    A(f"s_mov_b32 {s(S_STEP)}, 0", f"s_mov_b32 {s(S_MEM)}, {MEMF_OFF:#x}", f"s_mov_b32 {s(S_MEM2)}, {MEMF_OFF+4096:#x}",
      f"s_mov_b32 {s(S_P)}, {PF_OFF:#x}", f"s_mov_b32 {s(S_X)}, {PF_OFF + 4096:#x}", f"s_mov_b32 {s(S_P2)}, {PF_OFF + 8192:#x}", f"s_mov_b32 {s(S_TO)}, {TIMEOUT}")
    S_EM, S_FR, S_ODD = 64, 65, 66
    A(f"s_mov_b32 {s(S_FR)}, {PF_OFF + FROFF:#x}", f"s_mov_b32 {s(S_ODD)}, 0xaaaaaaaa", f"s_mov_b32 {s(S_ODD+1)}, 0xaaaaaaaa")
    A("s_waitcnt vmcnt(0) lgkmcnt(0)")
    if TLM: A("s_memrealtime s[92:93]")
    A(f"s_mov_b32 {s(S_PROF+10)}, 0")
    if STAMP: A("s_mov_b32 s58, 0", "s_mov_b32 s59, 0")
    if STAMP and w == 0: A("s_memtime s[54:55]")
    Lstep, Lpoll, Lok2 = [A.label(f"B{w}{x}") for x in ("step", "poll", "ok2")]
    mreg = lambda kb: MEMR + 4*kb
    mld = lambda kb: memload(mreg(kb), VL16, kb)
    if pv:
        voxld = lambda hh: f"buffer_load_dwordx4 {v(VOX + 4*hh, 4)}, {v(VL16)}, {s(WS,4)}, {s(S_TMP)} offen offset:{1024*(hh%4)} sc1"
        def bcv(ahead):
            if not FULL: return
            Lc, Lg = A.label("bcv"), A.label("bcg")
            A(f"v_cmp_ne_u32 vcc, 15, {v(TMP2)}", f"s_add_u32 {s(S_TMP2)}, {s(S_FR)}, {16384*ahead}", f"s_cbranch_vccz {Lg}")
            A(f"{Lc}:", f"buffer_load_dword {v(TMP2)}, off, {s(WS,4)}, {s(S_TMP2)} sc1", "s_waitcnt vmcnt(0)", f"v_cmp_ne_u32 vcc, 15, {v(TMP2)}", f"s_cbranch_vccz {Lg}", "s_sleep 1")
            timeout_step(A, Lc, abort)
            A(f"{Lg}:")
        def voxpre(add):
            if VPRE: bcv(1 if add else 0)
            for hh in range(VPRE):
                if hh % 4 == 0: A(f"s_add_u32 {s(S_TMP)}, {s(S_VOX)}, {add + 1024*hh}")
                A(voxld(hh))
        A(f"v_mov_b32 {v(TMP2)}, 0")
        voxpre(0)
    else:
        A(f"v_lshlrev_b32 {v(VF2)}, 3, {v(VL16)}", f"v_mov_b32 {v(TMP2)}, 0")
        A(f"s_sub_u32 {s(S_TMP)}, {s(S_ROLE)}, 16", f"s_cmp_lt_u32 {s(S_TMP)}, 7", f"s_cselect_b32 s70, {ALT:#x}, 0x40000000", f"s_min_u32 {s(S_TMP)}, {s(S_TMP)}, 6",
          f"s_lshl_b32 {s(S_TMP)}, {s(S_TMP)}, 10", f"v_add_u32 {v(32)}, {s(S_TMP)}, {v(VL16)}")
    A(f"{Lstep}:")
    A(f"{Lpoll}:")
    for kb in own:
        A(f"s_mov_b32 m0, {BMIMG + (kb - kb % 4)*1024}", "s_nop 0", f"buffer_load_dwordx4 {v(VL16)}, {s(WS,4)}, {s(S_MEM if kb < 4 else S_MEM2)} offen offset:{(kb%4)*1024} sc1 lds")
    for r in range(8): A(f"v_mov_b32 {v(ACC+r)}, 0")
    if pv:
        for j in range(8): A(f"v_mov_b32 {v(AC7+j)}, 0")
        for n in range(2):
            for hi in range(2): A(f"ds_read_b128 {v(SB + 8*n + 4*hi, 4)}, {v(VL16)} offset:{BW7 + (2*w + n)*14336 + hi*1024}")
        if not VPRE: bcv(0)
    A("s_waitcnt vmcnt(0)", "s_barrier")
    if PACCUM: prof(A, 6, profile)
    korder = list(range(7))
    for kb in korder: A(f"ds_read_b128 {v(mreg(kb),4)}, {v(VL16)} offset:{BMIMG + kb*1024}")
    if not PB2: prof(A, 1, profile)
    cv = lambda r, u: [f"v_add_f32 {v(r)}, {v(r)}, {v(r+1)}", f"v_add_f32 {v(r+2)}, {v(r+2)}, {v(r+3)}", f"v_cvt_pk_bf16_f32 {v(VP+u)}, {v(r)}, {v(r+2)}"]
    ms, ustart = [], []
    if pv:
        reg = [(u, kb) for u in range(6) for kb in korder]
        stq = [(u, kb) for kb in korder for u in (6, 7)]
        seq = []
        for i, x in enumerate(reg):
            seq.append(x)
            if i % 3 == 2: seq.append(stq[i // 3])
    else:
        seq = [(u, kb) for u in range(8) for kb in korder]
    nst = 0
    for (u, kb) in seq:
        if u < NR: ms.append(smf(ACC + 4*(u % 2), mreg(kb), wrg(u*7+kb), IDX))
        else:
            ms.append(smf(AC7 + 4*(u-6), mreg(kb), v(SB + 8*(nst % 2), 8), IDX)); nst += 1
    slots = mkslots(ms)
    Lretry, Lcont = A.label("Bretry"), A.label("Bcont")
    last = {u: max(i for i, x in enumerate(seq) if x[0] == u) for u in range(8)}
    first = {u: min(i for i, x in enumerate(seq) if x[0] == u) for u in range(8)}
    tail = []
    for u in range(NR):
        r = ACC + 4*(u % 2)
        ops = cv(r, u) + ([f"v_mov_b32 {v(r+j)}, 0" for j in range(4)] if u + 2 < NR else [])
        st = last[u] + 2
        if st + 3 > len(slots): tail += ops; continue
        lim = first[u+2] - 2 if u + 2 < NR else len(slots) - 1
        for i, o in enumerate(ops): slots[min(st + i, lim)]['valu'].append(o)
    if pv:
        sts = [i for i, x in enumerate(seq) if x[0] >= 6]
        rd = lambda n: [f"ds_read_b128 {v(SB + 8*(n % 2) + 4*hi, 4)}, {v(VL16)} offset:{BW7 + (2*w + seq[sts[n]][0] - 6)*14336 + seq[sts[n]][1]*2048 + hi*1024}" for hi in range(2)]
        for n, i in enumerate(sts):
            if n + 2 < 14: slots[i+1]['pre'] += rd(n+2)
            if n >= 2: slots[i-1]['pre'].append(f"s_waitcnt lgkmcnt({2 if n + 1 < 14 else 0})")
        for hh in range(VPRE, 0 if X_NOVOX else 16):
            sl = 2 + VOXS*(hh - VPRE)
            if hh % 4 == 0: slots[sl]['pre'].append(f"s_add_u32 {s(S_TMP)}, {s(S_VOX)}, {1024*hh}")
            slots[sl]['pre'].append(voxld(hh))
        tail += cv(AC7, 6) + cv(AC7+4, 7)
        if FULL: slots[30 if not VPRE else 0]['pre'] += [f"s_add_u32 {s(S_TMP2)}, {s(S_FR)}, 16384", f"buffer_load_dword {v(TMP2)}, off, {s(WS,4)}, {s(S_TMP2)} sc1"]
        FR_ = list(range(28, 28 + FPD))
        for i, r in enumerate(FR_):
            if w == 0: slots[55 - 3*(FPD - 1 - i)]['pre'].append(flag_ld(r, VF2, S_P2, 0))
        for r in range(4): slots[40 + r]['valu'].append(f"v_mov_b32 {v(PACC+r)}, 0")
    if not pv and BTOUCH:
        if FULL:
            slots[BT0]['pre'] += [f"v_readfirstlane_b32 {s(S_TMP2)}, {v(TMP2)}", f"s_add_u32 {s(S_TMP)}, {s(S_VOX)}, {458752*BTA + 8192}", f"s_cmp_eq_u32 {s(S_TMP2)}, 15", f"s_cselect_b32 {s(S_TMP)}, {s(S_TMP)}, 0x40000000",
                                  f"s_add_u32 {s(S_TMP2)}, {s(S_FR)}, {16384*(BTA+1)}", f"buffer_load_dword {v(TMP2)}, off, {s(WS,4)}, {s(S_TMP2)} sc1"]
        else: slots[BT0]['pre'].append(f"s_add_u32 {s(S_TMP)}, {s(S_VOX)}, {458752*BTA + 8192}")
        slots[BT0]['pre'].append(f"buffer_load_dword {v(62)}, {v(VF2)}, {s(WS,4)}, {s(S_TMP)} offen sc1")
    if FULL and w == EXW:
        A(f"ds_read_b128 {v(28,4)}, {v(32)} offset:{BMIMG}", f"s_add_u32 {s(S_EM)}, {s(S_MEM)}, s70")
        slots[3]['pre'].append(f"buffer_store_dwordx4 {v(28,4)}, {v(32)}, {s(WS,4)}, {s(S_EM)} offen sc1")
    where = [i for i, sl in enumerate(slots) if any(o.startswith(f"v_cvt_pk_bf16_f32 {v(VP)},") for o in sl['valu'])][0]
    slots[where]['valu'].insert(0, f"v_cmp_u_f32 vcc, {v(ACC)}, {v(ACC+2)}")
    slots[where+2]['pre'] += [f"s_cbranch_vccnz {Lretry}", f"{Lcont}:"]
    seen = 0
    A("s_waitcnt lgkmcnt(6)")
    for i, (u, kb) in enumerate(seq[:10]):
        nxt = seq[i+1]
        if nxt[0] == 0 and nxt[1] > seen:
            seen = nxt[1]
            extra = sum(1 for sl in slots[:i+1] for o in sl['pre'] if o.startswith("ds_read"))
            slots[i]['pre'].append(f"s_waitcnt lgkmcnt({6 - seen + extra})")
    if profile and FSD:
        for k in range(5):
            if FS0 + k*FSD < 56: slots[FS0 + k*FSD]['pre'].insert(0, f"s_memtime {s(S_PROF+4+2*k,2)}")
    if X_NOV:
        for sl in slots: sl['m'] = ""
    emit_slots(A, slots)
    if PACCUM: prof(A, 7, profile)
    A("s_nop 7", tail)
    if not pv:
        A(f"ds_write_b128 {v(VLV)}, {v(VP,4)}", f"ds_write_b128 {v(VLV)}, {v(VP+4,4)} offset:1024", "s_waitcnt lgkmcnt(0)")
    A("s_barrier")
    if not PB2: prof(A, 2, profile)
    if not pv:
        A("s_barrier", "s_barrier", nops(DB))
    else:
        A(f"ds_read_b128 {v(VP2,4)}, {v(VLV)}", f"ds_read_b128 {v(VP2+4,4)}, {v(VLV)} offset:1024")
        A(f"s_add_u32 s60, {s(S_MEMN)}, {s(S_SLOW)}", f"s_add_u32 s61, {s(S_P2)}, {s(S_SLOW)}", "s_xor_b32 s62, s60, 0x40000000", "s_xor_b32 s63, s61, 0x40000000")
        if w == 0:
            flag_poll(A, FR_, VF2, S_P2, 0, abort, "B", primed=True)
            A(f"buffer_store_dword {v(IDX)}, {v(VF1)}, {s(WS,4)}, s63 offen")
            A(nops(D2))
        else: A("s_barrier")
        prof(A, 0, profile)
        porder = [(c*4 + i) % 8 for i in range(8)] + [8, 9]
        pld = lambda k: f"buffer_load_dwordx4 {v(4*k,4)}, {v(VL16)}, {s(WS,4)}, {s([S_P, S_X, S_P2][k//4])} offen offset:{1024*(k%4)} sc1"
        bop = lambda k: v(VOX + 8*k, 8) if k < 8 else v(VP if k == 8 else VP2, 8)
        Lpp, Lbad = A.label("pp"), A.label("bad")
        for i, k in enumerate(porder):
            A(pld(k))
            if w == 0 and i == BREL: A("s_barrier")
        A(f"{Lpp}:")
        if profile and not FSD: A(f"s_add_u32 {s(S_PROF+10)}, {s(S_PROF+10)}, 1")
        A("s_waitcnt lgkmcnt(0)")
        for i, k in enumerate(porder):
            A(f"s_waitcnt vmcnt({9-i})")
            if i == 0: prof(A, 3, profile)
            if i == 9 and PB2: prof(A, 1, profile)
            A(smf(PACC, 4*k, bop(k), IDX))
        Lgood = A.label("good")
        a, b = PACC, PACC+2
        A(f"s_mov_b64 vcc, {s(S_ODD,2)}", "s_nop 6")
        A(f"v_add_f32 {v(a)}, {v(a)}, {v(a+1)}", f"v_add_f32 {v(b)}, {v(b)}, {v(b+1)}", f"v_cmp_u_f32 {s(68,2)}, {v(a)}, {v(b)}",
          f"v_cndmask_b32_dpp {v(b+1)}, {v(a)}, {v(b)}, vcc quad_perm:[1,0,3,2] row_mask:0xf bank_mask:0xf", "s_not_b64 vcc, vcc",
          f"v_cndmask_b32_dpp {v(a+1)}, {v(b)}, {v(a)}, vcc quad_perm:[1,0,3,2] row_mask:0xf bank_mask:0xf",
          f"s_cmp_lg_u64 {s(68,2)}, 0", f"v_cvt_pk_bf16_f32 {v(R0)}, {v(a+1)}, {v(b+1)}", f"s_cbranch_scc1 {Lbad}", f"{Lgood}:",
          f"buffer_store_dword {v(R0)}, {v(VST)}, {s(WS,4)}, s62 offen")
        A(f"buffer_store_dword {v(R0)}, {v(VST)}, {s(WS,4)}, s60 offen sc1", f"buffer_store_dword {v(IDX)}, {v(VF1)}, {s(WS,4)}, s61 offen sc1" if w == 0 else "")
        if FULL:
            Lq = A.label("Bq")
            A(f"s_add_u32 {s(S_EM)}, {s(S_MEMN)}, {ALT:#x}", f"s_cmp_lg_u32 {s(S_STEP)}, {NSTEPS-1}", f"s_cbranch_scc1 {Lq}", f"buffer_store_dword {v(R0)}, {v(VST)}, {s(WS,4)}, {s(S_EM)} offen sc1", f"{Lq}:")
        prof(A, 4, profile)
        if VPB: voxpre(458752)
        A("s_barrier")
        if not VPB: voxpre(458752)
        A(nops(max(0, DB - (0 if VPB else 4*VPRE))))
    if profile and PACCUM: prof_acc(A, 8)
    elif profile:
        prof_flush(A, 6, TMP, TMP2, 0)
        A(f"s_mov_b32 {s(S_PROF+10)}, 0")
    A(f"s_add_u32 {s(S_MEM)}, {s(S_MEM)}, 8192", f"s_add_u32 {s(S_MEM2)}, {s(S_MEM2)}, 8192", f"s_add_u32 {s(S_MEMN)}, {s(S_MEMN)}, 8192",
      f"s_add_u32 {s(S_P)}, {s(S_P)}, 16384", f"s_add_u32 {s(S_P2)}, {s(S_P2)}, 16384", f"s_add_u32 {s(S_X)}, {s(S_X)}, 16384", f"s_add_u32 {s(S_VOX)}, {s(S_VOX)}, {0 if X_FIXVOX else 28*16*1024}",
      f"s_add_u32 {s(S_FR)}, {s(S_FR)}, 16384",
      f"s_add_u32 {s(S_STEP)}, {s(S_STEP)}, 1", f"s_cmp_lt_u32 {s(S_STEP)}, {NSTEPS}", f"s_cbranch_scc1 {Lstep}")
    if profile and PACCUM: prof_acc_out(A, 8)
    if STAMP: A("v_mov_b32 v0, s58", "v_mov_b32 v1, s59", "s_mov_b64 exec, 1", f"buffer_atomic_add v0, off, {s(DBG,4)}, 0 offset:56", f"buffer_atomic_add v1, off, {s(DBG,4)}, 0 offset:48", "s_mov_b64 exec, -1")
    if STAMP and w == 0 and not FULL:
        A("s_memtime s[56:57]", "s_waitcnt lgkmcnt(0)", "s_sub_u32 s56, s56, s54", "v_mov_b32 v1, s56",
          f"s_lshl_b32 {s(S_TMP)}, {s(S_ROLE)}, 2", f"buffer_store_dword v1, off, {s(DBG,4)}, {s(S_TMP)} offset:128")
    A("s_endpgm")
    A(f"{Lretry}:")
    for kb in range(7): A(chk4(TMP, mreg(kb), kb == 0))
    A(f"v_cmp_eq_u32 vcc, -1, {v(TMP)}", f"s_cbranch_vccz {Lcont}", "s_waitcnt lgkmcnt(0)", "s_barrier")
    if STAMP: A("s_add_u32 s58, s58, 1")
    timeout_step(A, Lpoll, abort)
    if pv:
        A(f"{Lbad}:")
        for k in range(10): A(chk4(TMP, 4*k, k == 0))
        A(f"v_min_u32 {v(R0)}, -2, {v(R0)}", f"v_cmp_eq_u32 vcc, -1, {v(TMP)}", f"s_cbranch_vccz {Lgood}")
        if STAMP: A("s_add_u32 s59, s59, 1")
        for k in porder: A(pld(k))
        for r in range(4): A(f"v_mov_b32 {v(PACC+r)}, 0")
        timeout_step(A, Lpp, abort)

def role_PF(A, abort):
    import prep
    WFL = [' sc1', '', ' nt', ' sc1 nt'][WFI]
    AHEAD = PFA
    A("; ---------------- prefetcher")
    if FULL:
        prep.wait_tiles(A, 16, 16, abort, "P", S_TO, 4, 5)
        prep.wait_counters(A, 0, 32, abort, "P", S_TO, 4, 5, sleep=30)
    A("v_and_b32 v3, 63, v0", "v_lshlrev_b32 v1, 7, v3", "v_mov_b32 v2, 0", "v_mov_b32 v12, 0")
    A(f"s_sub_u32 {s(S_TMP2)}, {s(S_ROLE)}, 30", f"s_lshl_b32 {s(S_TMP2)}, {s(S_TMP2)}, 2", f"s_add_u32 {s(S_TMP2)}, {s(S_TMP2)}, {s(S_WAVE)}")
    A(f"s_lshl_b32 {s(S_TMP2)}, {s(S_TMP2)}, 13")
    A(f"s_mov_b32 {s(S_STEP)}, 0", f"s_mov_b32 {s(S_TO)}, {TIMEOUT}")
    if FULL:
        A(f"s_mov_b32 {s(S_P)}, {PF_OFF + FROFF:#x}")
    A(f"s_add_u32 {s(S_X)}, {s(S_TMP2)}, {XS_OFF:#x}", f"s_mov_b32 {s(S_P2)}, 28672")
    L1, L2 = A.label("pf1"), A.label("pf2")
    A(f"s_cmp_lt_u32 {s(S_TMP2)}, {4*8192}", f"s_cbranch_scc1 {L2}")
    A(f"s_mov_b32 {s(S_X)}, {MEMF_OFF + 8192:#x}", f"s_mov_b32 {s(S_P2)}, 8192")
    A(f"s_cmp_eq_u32 {s(S_TMP2)}, {4*8192}", f"s_cbranch_scc1 {L2}")
    A(f"s_and_b32 {s(S_X)}, {s(S_TMP2)}, 8192", f"s_add_u32 {s(S_X)}, {s(S_X)}, {PF_OFF:#x}", f"s_mov_b32 {s(S_P2)}, 16384")
    A(f"{L2}:")
    A(f"s_lshl_b32 {s(S_VOX)}, {s(S_TMP2)}, {BTOUCH}", f"s_add_u32 {s(S_VOX)}, {s(S_VOX)}, {VOX_OFF:#x}", f"s_cmp_eq_u32 {s(S_TMP2)}, {7*8192}",
      f"s_cselect_b32 {s(S_X)}, 0x40000000, {s(S_X)}", f"s_mov_b32 {s(S_MEM)}, {MEMF_OFF - AHEAD*8192:#x}")
    Lstep, Lpoll, Lgo = A.label("pfstep"), A.label("pfpoll"), A.label("pfgo")
    A("v_mov_b32 v4, -1")
    A(f"{Lstep}:", f"s_cmp_lt_u32 {s(S_STEP)}, {AHEAD+1}", f"s_cbranch_scc1 {Lgo}")
    A("v_cmp_eq_u32 vcc, -1, v4", f"s_cbranch_vccz {Lgo}")
    A(f"{Lpoll}:", f"buffer_load_dword v4, v2, {s(WS,4)}, {s(S_MEM)} offen sc1", "s_waitcnt vmcnt(0)", "v_cmp_eq_u32 vcc, -1, v4", f"s_cbranch_vccz {Lgo}", "s_sleep 2")
    timeout_step(A, Lpoll, abort)
    A(f"{Lgo}:")
    if FULL:
        Lc, Lcg = A.label("pfc"), A.label("pfcg")
        A("v_cmp_ne_u32 vcc, 15, v12", f"s_cbranch_vccz {Lcg}")
        A(f"{Lc}:", f"buffer_load_dword v12, off, {s(WS,4)}, {s(S_P)} sc1", "s_waitcnt vmcnt(0)", "v_cmp_ne_u32 vcc, 15, v12", f"s_cbranch_vccz {Lcg}", "s_sleep 2")
        timeout_step(A, Lc, abort)
        A(f"{Lcg}:", f"s_add_u32 {s(S_P)}, {s(S_P)}, 16384", f"buffer_load_dword v12, off, {s(WS,4)}, {s(S_P)} sc1")
    A(f"s_add_u32 {s(S_MEM)}, {s(S_MEM)}, 8192", f"buffer_load_dword v4, v2, {s(WS,4)}, {s(S_MEM)} offen sc1")
    A(f"buffer_load_dword v5, v1, {s(WS,4)}, {s(S_X)} offen sc1")
    for j in range(PF_VOX):
        A(f"s_add_u32 {s(S_TMP)}, {s(S_VOX)}, {(65536 << BTOUCH)*j}", f"buffer_load_dword v{6+j}, v1, {s(WS,4)}, {s(S_TMP)} offen sc1")
    A(f"s_add_u32 {s(S_X)}, {s(S_X)}, {s(S_P2)}", f"s_add_u32 {s(S_VOX)}, {s(S_VOX)}, {28*16*1024}",
      f"s_waitcnt vmcnt({1 + PF_VOX})",
      f"s_add_u32 {s(S_STEP)}, {s(S_STEP)}, 1", f"s_cmp_lt_u32 {s(S_STEP)}, {NSTEPS + 1}", f"s_cbranch_scc1 {Lstep}", "s_endpgm")

PF_VOX = 2
def rec_kernel(A, name, profile=False):
    kernel_begin(A, name)
    Lexit = A.label("exit")
    A("s_cmp_ge_u32 s2, 256", f"s_cbranch_scc1 {Lexit}")
    srd(A, WS, 96, 0x10000000); srd(A, XB, 24, 1835008); srd(A, DBG, 88, 256)
    A(f"s_getreg_b32 {s(S_TMP)}, hwreg(HW_REG_XCC_ID)", f"s_and_b32 {s(S_TMP)}, {s(S_TMP)}, 15", f"s_cmp_lg_u32 {s(S_TMP)}, 0", f"s_cbranch_scc1 {Lexit}")
    A("v_lshrrev_b32 v1, 6, v0", "s_nop 0", f"v_readfirstlane_b32 {s(S_WAVE)}, v1", "s_waitcnt lgkmcnt(0)")
    Lw = A.label("notw0")
    A(f"s_cmp_lg_u32 {s(S_WAVE)}, 0", f"s_cbranch_scc1 {Lw}")
    A("v_mov_b32 v1, 1", "v_mov_b32 v2, 0", "s_mov_b64 exec, 1",
      f"buffer_atomic_add v1, v2, {s(DBG,4)}, 0 offen sc0", "s_waitcnt vmcnt(0)", "ds_write_b32 v2, v1 offset:32768", "s_waitcnt lgkmcnt(0)", "s_mov_b64 exec, -1")
    A(f"{Lw}:", "s_barrier", "v_mov_b32 v2, 0", "ds_read_b32 v1, v2 offset:32768", "s_waitcnt lgkmcnt(0)", f"v_readfirstlane_b32 {s(S_ROLE)}, v1", "s_barrier")
    LPF = A.label("rolePF")
    A(f"s_cmp_ge_u32 {s(S_ROLE)}, 32", f"s_cbranch_scc1 {Lexit}")
    A(f"s_cmp_ge_u32 {s(S_ROLE)}, 30", f"s_cbranch_scc1 {LPF}")
    LB = A.label("roleB")
    A(f"s_cmp_ge_u32 {s(S_ROLE)}, 16", f"s_cbranch_scc1 {LB}")
    for R, fn in (("A", role_A), ("B", role_B)):
        if R == "B": A(f"{LB}:")
        Ls = [A.label(f"{R}w{w}") for w in range(4)]
        for w in range(1, 4):
            A(f"s_cmp_eq_u32 {s(S_WAVE)}, {w}", f"s_cbranch_scc1 {Ls[w]}")
        for w in range(4):
            A(f"{Ls[w]}:")
            fn(A, w, Lexit, profile)
    A(f"{LPF}:")
    role_PF(A, Lexit)
    A(f"{Lexit}:", "s_endpgm")
    A(kernel_desc(name))

def generate(path, profile=False, **kw):
    g = globals(); saved = {k: g[k] for k in kw}
    g.update(kw)
    A = Asm()
    A("; @launch kernel=rec_kernel grid=(256,1,1) block=(256,1,1) lds=131072")
    A('.amdgcn_target "amdgcn-amd-amdhsa--gfx950"', ".text")
    rec_kernel(A, "rec_kernel", profile=bool(profile))
    t = A.text().replace("    ; @launch", "; @launch")
    if profile == 2: t = t.replace("s_memtime", "s_memrealtime")
    if LDFL == 1: t = t.replace(" sc1\n", " nt\n")
    if LDFL == 2: t = t.replace(" sc1\n", " sc0 sc1\n")
    open(path, "w").write(t)
    g.update(saved)

if __name__ == "__main__":
    import sys
    generate(sys.argv[1], len(sys.argv) > 2)
```

```python
import sys
from asm import *
from model import *
import rec, workers, prep
from rec import WS, XB, DBG, S_WAVE, S_ROLE, S_TMP, S_TMP2
from workers import OUT, XA

TKL = 0x24000
ORDERS = [("V", "X", "PV", "L"), ("V", "L", "PV", "Z", "X"), ("V", "L", "X", "PV"), ("L", "V", "PV", "Z", "X"), ("V", "PV", "L", "Z", "X")]
def main_kernel(A, name, profile=False):
    NV, NX, NPG = workers.NV, workers.NX, workers.NPG
    kernel_begin(A, name)
    Lexit = A.label("exit")
    Lx0 = A.label("go")
    A("s_cmp_lt_u32 s2, 256", f"s_cbranch_scc1 {Lx0}", "s_endpgm", f"{Lx0}:")
    srd(A, WS, 96, 0x10000000); srd(A, XB, 24, 1835008); srd(A, DBG, 88, 256); srd(A, OUT, 80, 2048*896*2); srd(A, XA, 0, 1835008)
    prep.prep_srds(A)
    A("v_lshrrev_b32 v1, 6, v0", "s_nop 0", f"v_readfirstlane_b32 {s(S_WAVE)}, v1")
    A("s_getreg_b32 s44, hwreg(HW_REG_XCC_ID)", "s_and_b32 s44, s44, 7")
    if rec.XSCR: A("s_bfe_u32 s45, s2, 0x10004", "s_or_b32 s44, s44, s45")
    if rec.CODEPF:
        Lc = A.label("nocp")
        A("s_lshr_b32 s45, s2, 3", "s_lshl_b32 s45, s45, 2", f"s_add_u32 s45, s45, {s(S_WAVE)}", f"s_cmp_ge_u32 s45, {rec.CODEPF}", f"s_cbranch_scc1 {Lc}",
          "s_getpc_b64 s[30:31]", "Lcode_pc:", "s_and_b32 s30, s30, 0xffffff80", "v_and_b32 v1, 63, v0", "v_lshlrev_b32 v1, 7, v1", "s_lshl_b32 s45, s45, 13", "v_add_u32 v1, s45, v1",
          "v_min_u32 v1, Lcode_end-Lcode_pc, v1", "global_load_dword v238, v1, s[30:31]", f"{Lc}:")
    A("s_waitcnt lgkmcnt(0)")
    def ticket():
        A("s_lshl_b32 s45, s44, 2", f"s_cmp_eq_u32 {s(S_WAVE)}, 0", "s_cselect_b32 s45, s45, 0x40000000", "v_mov_b32 v220, 1", "s_mov_b64 exec, 1",
          f"buffer_atomic_add v220, off, {s(DBG,4)}, s45 sc0", "s_mov_b64 exec, -1")
        return 1
    prep.prep_body(A, ticket)
    if rec.TLM: A("s_memrealtime s[98:99]")
    Lw, Ld = A.label("notw0"), A.label("rd")
    A(f"s_cmp_lg_u32 {s(S_WAVE)}, 0", f"s_cbranch_scc1 {Lw}")
    A("s_mov_b64 exec, 1",
      f"v_readfirstlane_b32 s61, v220", f"s_lshl_b32 {s(S_TMP2)}, s44, 5", f"s_add_u32 {s(S_TMP2)}, {s(S_TMP2)}, s61", "s_cmp_lt_u32 s61, 32", f"s_cbranch_scc1 {Ld}")
    Lo, Lo2 = A.label("ovw"), A.label("ovg")
    A("v_mov_b32 v1, 1", f"buffer_atomic_add v1, off, {s(DBG,4)}, 0 offset:36 sc0", "s_waitcnt vmcnt(0)", "v_readfirstlane_b32 s61, v1", "s_mov_b32 s62, 300000", f"s_mov_b32 {s(S_TMP2)}, 1000")
    A("s_mov_b64 exec, -1", "v_and_b32 v2, 31, v0", "v_lshlrev_b32 v2, 2, v2")
    A(f"{Lo}:", f"buffer_load_dword v1, v2, {s(DBG,4)}, 0 offen offset:{prep.CNT0} sc1", "s_waitcnt vmcnt(0)", "v_cmp_gt_u32 vcc, 8, v1", f"s_cbranch_vccz {Lo2}",
      "s_sleep 4", "s_sub_u32 s62, s62, 1", f"s_cbranch_scc1 {Ld}", f"s_branch {Lo}")
    A(f"{Lo2}:", f"buffer_load_dwordx4 v[4:7], off, {s(DBG,4)}, 0 sc1", f"buffer_load_dwordx4 v[8:11], off, {s(DBG,4)}, 0 offset:16 sc1", "s_waitcnt vmcnt(0)")
    for x in range(8):
        Ln = A.label("ovn")
        A(f"v_readfirstlane_b32 s63, v{4+x}", "s_min_u32 s63, s63, 32", "s_sub_u32 s62, 32, s63", "s_cmp_ge_u32 s61, s62", f"s_cbranch_scc1 {Ln}",
          f"s_add_u32 {s(S_TMP2)}, s63, s61", f"s_add_u32 {s(S_TMP2)}, {s(S_TMP2)}, {32*x}", f"s_branch {Ld}", f"{Ln}:", "s_sub_u32 s61, s61, s62")
    A(f"{Ld}:", f"v_mov_b32 v1, {s(S_TMP2)}", f"v_mov_b32 v2, {TKL:#x}", "ds_write_b32 v2, v1", "s_waitcnt lgkmcnt(0)", "s_mov_b64 exec, -1")
    A(f"{Lw}:", "s_barrier", f"v_mov_b32 v2, {TKL:#x}", "ds_read_b32 v1, v2", "s_waitcnt lgkmcnt(0)", f"v_readfirstlane_b32 {s(S_ROLE)}, v1", f"s_mov_b32 {s(rec.S_TO)}, {rec.TIMEOUT}")
    if rec.RM2:
        Lm2 = A.label("rm2")
        A(f"s_cmp_lt_u32 {s(S_ROLE)}, 32", f"s_cbranch_scc1 {Lm2}", f"s_cmp_ge_u32 {s(S_ROLE)}, 160", f"s_cbranch_scc1 {Lm2}",
          f"s_sub_u32 {s(S_TMP)}, {s(S_ROLE)}, 32", f"s_lshr_b32 {s(S_TMP2)}, {s(S_TMP)}, 5", f"s_lshl_b32 {s(S_TMP2)}, {s(S_TMP2)}, 4", f"s_and_b32 {s(S_ROLE)}, {s(S_TMP)}, 15", f"s_add_u32 {s(S_ROLE)}, {s(S_ROLE)}, {s(S_TMP2)}",
          f"s_bitcmp1_b32 {s(S_TMP)}, 4", f"s_cselect_b32 {s(S_TMP)}, 96, 32", f"s_add_u32 {s(S_ROLE)}, {s(S_ROLE)}, {s(S_TMP)}", f"{Lm2}:")
    if rec.ROT:
        Lm = A.label("rm")
        A(f"s_cmp_lt_u32 {s(S_ROLE)}, 32", f"s_cbranch_scc1 {Lm}", f"s_cmp_ge_u32 {s(S_ROLE)}, 256", f"s_cbranch_scc1 {Lm}",
          f"s_add_u32 {s(S_ROLE)}, {s(S_ROLE)}, {rec.ROT}", f"s_sub_u32 {s(S_TMP)}, {s(S_ROLE)}, 224", f"s_cmp_ge_u32 {s(S_ROLE)}, 256", f"s_cselect_b32 {s(S_ROLE)}, {s(S_TMP)}, {s(S_ROLE)}", f"{Lm}:")
    if rec.TLM: A(f"s_mov_b32 s100, {s(S_ROLE)}")
    cnt = {"V": 16*NV, "X": 16*NX, "PV": 14*NPG, "L": 64, "Z": 6}
    ranges = [("A", 16), ("B", 30), ("PF", 32)]
    for n in ORDERS[rec.ORD]: ranges.append((n, ranges[-1][1] + cnt[n]))
    assert ranges[-1][1] <= 256
    L = {n: A.label("role" + n) for n, _ in ranges}
    J = {n: A.label("jmp" + n) for n, _ in ranges}
    for n, hi in ranges: A(f"s_cmp_lt_u32 {s(S_ROLE)}, {hi}", f"s_cbranch_scc1 {J[n]}")
    A(f"{Lexit}:", "s_endpgm")
    lo = 0
    for n, hi in ranges:
        A(f"{J[n]}:")
        if n in ("V", "X", "PV", "L"): A(f"s_sub_u32 {s(S_ROLE)}, {s(S_ROLE)}, {lo}")
        A(f"s_branch {L[n]}" if n != "Z" else "s_endpgm")
        lo = hi
    for R, fn in (("A", rec.role_A), ("B", rec.role_B)):
        A(f"{L[R]}:")
        Ls = [A.label(f"{R}w{w}") for w in range(4)]
        for w in range(1, 4): A(f"s_cmp_eq_u32 {s(S_WAVE)}, {w}", f"s_cbranch_scc1 {Ls[w]}")
        for w in range(4):
            A(f"{Ls[w]}:"); fn(A, w, Lexit, profile)
    Lx2 = A.label("exit2")
    for R, fn in (("PF", rec.role_PF), ("V", workers.role_V), ("X", workers.role_X), ("PV", workers.role_PV), ("L", workers.role_L)):
        A(f"{L[R]}:"); fn(A, Lx2)
    A(f"{Lx2}:", "Lcode_end:", "s_endpgm")
    A(kernel_desc(name))

HDR = open("concat_heads__linear_attn_block__memory_aug_recurrent_mem_tr__prompt.s.ref").read().split("; Override launch")[0] if len(sys.argv) > 2 and sys.argv[2] == "final" else ""
FINAL = bool(HDR)
KNAME = "concat_heads__linear_attn_block__memory_aug_recurrent_mem_tr__prompt_kernel" if FINAL else "main_kernel"
def generate(path, TL=0, PROFILE=0, **kw):
    rec.TLM = workers.TLM = TL
    A = Asm()
    hdr = []
    hdr.append(f"; @launch {'' if FINAL else 'kernel=main_kernel '}grid=(256,1,1) block=(256,1,1) lds=148480")
    A('.amdgcn_target "amdgcn-amd-amdhsa--gfx950"', ".text")
    g = vars(rec); saved = dict(g); g.update(FULL=1, TIMEOUT=300000); g.update(kw)
    def instrument(fn, name, idreg, base, wsreg, wavereg):
        B = Asm(); B.uid = A.uid + 100000
        fn(B, name)
        lines = B.lines
        if TL:
            i0 = lines.index(f"{name}:")
            lines.insert(i0 + 1, "    s_memrealtime s[90:91]\n    s_mov_b32 s92, 0\n    s_mov_b32 s94, 0\n    s_mov_b32 s100, 9999")
            iend = max(i for i, l in enumerate(lines) if l.strip() == "s_endpgm")
            first = True
            for i, l in enumerate(lines):
                if l.strip() == "s_endpgm": lines[i] = f"    s_branch Ltl_{name}"
            stub = f"""Ltl_{name}:
    s_cmp_ge_u32 s2, 256
    s_cbranch_scc1 Ltl2_{name}
    s_memrealtime s[96:97]
    s_load_dwordx2 s[84:85], s[0:1], 96
    s_mov_b32 s86, 0x10000000
    s_mov_b32 s87, 0x00020000
    s_waitcnt lgkmcnt(0)
    s_mov_b64 exec, -1
    v_mov_b32 v4, s98
    v_mov_b32 v5, s92
    v_mov_b32 v6, s94
    v_mov_b32 v7, s96
    s_lshl_b32 s88, {idreg}, 2
    s_add_u32 s88, s88, {wavereg}
    s_lshl_b32 s88, s88, 4
    s_add_u32 s88, s88, {base:#x}
    buffer_store_dwordx4 v[4:7], off, s[84:87], s88
    v_mov_b32 v4, s90
    s_sub_u32 s88, s88, 0x40000
    buffer_store_dword v4, off, s[84:87], s88
Ltl2_{name}:
    s_endpgm"""
            lines.insert(iend + 1, stub)
        A.lines += lines; A.uid = B.uid
    instrument(lambda B, n: main_kernel(B, n, bool(PROFILE)), KNAME, "s100", PROF_OFF + 0x40000, 4, "s16")
    g.update({k: saved[k] for k in list(kw) + ["FULL", "TIMEOUT"]})
    open(path, "w").write(HDR + "\n".join(hdr) + "\n" + A.text())
if __name__ == "__main__":
    generate(sys.argv[1], STAMP=0 if HDR else 1)
```

```python
import sys
from asm import *
from model import *
import rec, workers, prep
from rec import WS, XB, DBG, S_WAVE, S_ROLE, S_TMP, S_TMP2
from workers import OUT, XA

TKL = 0x24000
ORDERS = [("V", "X", "PV", "L"), ("V", "L", "PV", "Z", "X"), ("V", "L", "X", "PV"), ("L", "V", "PV", "Z", "X"), ("V", "PV", "L", "Z", "X")]
def main_kernel(A, name, profile=False):
    NV, NX, NPG = workers.NV, workers.NX, workers.NPG
    kernel_begin(A, name)
    Lexit = A.label("exit")
    Lx0 = A.label("go")
    A("s_cmp_lt_u32 s2, 256", f"s_cbranch_scc1 {Lx0}", "s_endpgm", f"{Lx0}:")
    if rec.CODEPF:
        A("s_getpc_b64 s[30:31]", "Lcode_pc:", f"s_bfe_u32 s45, s2, {0x3 | (rec.CPB << 16):#x}", "s_lshl_b32 s45, s45, 15", "v_lshl_add_u32 v1, v0, 7, s45",
          "v_cmp_gt_u32 vcc, Lcode_end-Lcode_pc, v1", "s_and_saveexec_b64 s[46:47], vcc", "s_cbranch_execz Lcode_skip", "global_load_dword v238, v1, s[30:31]", "Lcode_skip:", "s_mov_b64 exec, s[46:47]")
    srd(A, WS, 96, 0x10000000); srd(A, XB, 24, 1835008); srd(A, DBG, 88, 256); srd(A, OUT, 80, 2048*896*2); srd(A, XA, 0, 1835008)
    prep.prep_srds(A)
    A("v_lshrrev_b32 v1, 6, v0", "s_nop 0", f"v_readfirstlane_b32 {s(S_WAVE)}, v1")
    A("s_getreg_b32 s44, hwreg(HW_REG_XCC_ID)", "s_and_b32 s44, s44, 7")
    if rec.XSCR: A("s_bfe_u32 s45, s2, 0x10004", "s_or_b32 s44, s44, s45")
    A("s_waitcnt lgkmcnt(0)")
    def ticket():
        A("s_lshl_b32 s45, s44, 2", f"s_cmp_eq_u32 {s(S_WAVE)}, 0", "s_cselect_b32 s45, s45, 0x40000000", "v_mov_b32 v220, 1", "s_mov_b64 exec, 1",
          f"buffer_atomic_add v220, off, {s(DBG,4)}, s45 sc0", "s_mov_b64 exec, -1")
        return 1
    prep.prep_body(A, ticket)
    if rec.TLM: A("s_memrealtime s[98:99]")
    Lw, Ld = A.label("notw0"), A.label("rd")
    A(f"s_cmp_lg_u32 {s(S_WAVE)}, 0", f"s_cbranch_scc1 {Lw}")
    A("s_mov_b64 exec, 1",
      f"v_readfirstlane_b32 s61, v220", f"s_lshl_b32 {s(S_TMP2)}, s44, 5", f"s_add_u32 {s(S_TMP2)}, {s(S_TMP2)}, s61", "s_cmp_lt_u32 s61, 32", f"s_cbranch_scc1 {Ld}")
    Lo, Lo2 = A.label("ovw"), A.label("ovg")
    A("v_mov_b32 v1, 1", f"buffer_atomic_add v1, off, {s(DBG,4)}, 0 offset:36 sc0", "s_waitcnt vmcnt(0)", "v_readfirstlane_b32 s61, v1", "s_mov_b32 s62, 300000", f"s_mov_b32 {s(S_TMP2)}, 1000")
    A("s_mov_b64 exec, -1", "v_and_b32 v2, 31, v0", "v_lshlrev_b32 v2, 2, v2")
    A(f"{Lo}:", f"buffer_load_dword v1, v2, {s(DBG,4)}, 0 offen offset:{prep.CNT0} sc1", "s_waitcnt vmcnt(0)", "v_cmp_gt_u32 vcc, 8, v1", f"s_cbranch_vccz {Lo2}",
      "s_sleep 4", "s_sub_u32 s62, s62, 1", f"s_cbranch_scc1 {Ld}", f"s_branch {Lo}")
    A(f"{Lo2}:", f"buffer_load_dwordx4 v[4:7], off, {s(DBG,4)}, 0 sc1", f"buffer_load_dwordx4 v[8:11], off, {s(DBG,4)}, 0 offset:16 sc1", "s_waitcnt vmcnt(0)")
    for x in range(8):
        Ln = A.label("ovn")
        A(f"v_readfirstlane_b32 s63, v{4+x}", "s_min_u32 s63, s63, 32", "s_sub_u32 s62, 32, s63", "s_cmp_ge_u32 s61, s62", f"s_cbranch_scc1 {Ln}",
          f"s_add_u32 {s(S_TMP2)}, s63, s61", f"s_add_u32 {s(S_TMP2)}, {s(S_TMP2)}, {32*x}", f"s_branch {Ld}", f"{Ln}:", "s_sub_u32 s61, s61, s62")
    A(f"{Ld}:", f"v_mov_b32 v1, {s(S_TMP2)}", f"v_mov_b32 v2, {TKL:#x}", "ds_write_b32 v2, v1", "s_waitcnt lgkmcnt(0)", "s_mov_b64 exec, -1")
    A(f"{Lw}:", "s_barrier", f"v_mov_b32 v2, {TKL:#x}", "ds_read_b32 v1, v2", "s_waitcnt lgkmcnt(0)", f"v_readfirstlane_b32 {s(S_ROLE)}, v1", f"s_mov_b32 {s(rec.S_TO)}, {rec.TIMEOUT}")
    if rec.RM2:
        Lm2 = A.label("rm2")
        A(f"s_cmp_lt_u32 {s(S_ROLE)}, 32", f"s_cbranch_scc1 {Lm2}", f"s_cmp_ge_u32 {s(S_ROLE)}, 160", f"s_cbranch_scc1 {Lm2}",
          f"s_sub_u32 {s(S_TMP)}, {s(S_ROLE)}, 32", f"s_lshr_b32 {s(S_TMP2)}, {s(S_TMP)}, 5", f"s_lshl_b32 {s(S_TMP2)}, {s(S_TMP2)}, 4", f"s_and_b32 {s(S_ROLE)}, {s(S_TMP)}, 15", f"s_add_u32 {s(S_ROLE)}, {s(S_ROLE)}, {s(S_TMP2)}",
          f"s_bitcmp1_b32 {s(S_TMP)}, 4", f"s_cselect_b32 {s(S_TMP)}, 96, 32", f"s_add_u32 {s(S_ROLE)}, {s(S_ROLE)}, {s(S_TMP)}", f"{Lm2}:")
    if rec.ROT:
        Lm = A.label("rm")
        A(f"s_cmp_lt_u32 {s(S_ROLE)}, 32", f"s_cbranch_scc1 {Lm}", f"s_cmp_ge_u32 {s(S_ROLE)}, 256", f"s_cbranch_scc1 {Lm}",
          f"s_add_u32 {s(S_ROLE)}, {s(S_ROLE)}, {rec.ROT}", f"s_sub_u32 {s(S_TMP)}, {s(S_ROLE)}, 224", f"s_cmp_ge_u32 {s(S_ROLE)}, 256", f"s_cselect_b32 {s(S_ROLE)}, {s(S_TMP)}, {s(S_ROLE)}", f"{Lm}:")
    if rec.TLM: A(f"s_mov_b32 s100, {s(S_ROLE)}")
    cnt = {"V": 16*NV, "X": 16*NX, "PV": 14*NPG, "L": 64, "Z": 6}
    ranges = [("A", 16), ("B", 30), ("PF", 32)]
    for n in ORDERS[rec.ORD]: ranges.append((n, ranges[-1][1] + cnt[n]))
    assert ranges[-1][1] <= 256
    L = {n: A.label("role" + n) for n, _ in ranges}
    J = {n: A.label("jmp" + n) for n, _ in ranges}
    for n, hi in ranges: A(f"s_cmp_lt_u32 {s(S_ROLE)}, {hi}", f"s_cbranch_scc1 {J[n]}")
    A(f"{Lexit}:", "s_endpgm")
    lo = 0
    for n, hi in ranges:
        A(f"{J[n]}:")
        if n in ("V", "X", "PV", "L"): A(f"s_sub_u32 {s(S_ROLE)}, {s(S_ROLE)}, {lo}")
        A(f"s_branch {L[n]}" if n != "Z" else "s_endpgm")
        lo = hi
    A("Lteam_code:")
    for R, fn in (("A", rec.role_A), ("B", rec.role_B)):
        A(f"{L[R]}:")
        Ls = [A.label(f"{R}w{w}") for w in range(4)]
        for w in range(1, 4): A(f"s_cmp_eq_u32 {s(S_WAVE)}, {w}", f"s_cbranch_scc1 {Ls[w]}")
        for w in range(4):
            A(f"{Ls[w]}:"); fn(A, w, Lexit, profile)
    Lx2 = A.label("exit2")
    for R, fn in (("PF", rec.role_PF), ("V", workers.role_V), ("X", workers.role_X), ("PV", workers.role_PV), ("L", workers.role_L)):
        A(f"{L[R]}:"); fn(A, Lx2)
    A(f"{Lx2}:", "Lcode_end:", "s_endpgm")
    A(kernel_desc(name))

HDR = open("concat_heads__linear_attn_block__memory_aug_recurrent_mem_tr__prompt.s.ref").read().split("; Override launch")[0] if len(sys.argv) > 2 and sys.argv[2] == "final" else ""
FINAL = bool(HDR)
KNAME = "concat_heads__linear_attn_block__memory_aug_recurrent_mem_tr__prompt_kernel" if FINAL else "main_kernel"
def generate(path, TL=0, PROFILE=0, **kw):
    rec.TLM = workers.TLM = TL
    A = Asm()
    hdr = []
    hdr.append(f"; @launch {'' if FINAL else 'kernel=main_kernel '}grid=(256,1,1) block=(256,1,1) lds=148480")
    A('.amdgcn_target "amdgcn-amd-amdhsa--gfx950"', ".text")
    g = vars(rec); saved = dict(g); g.update(FULL=1, TIMEOUT=300000); g.update(kw)
    def instrument(fn, name, idreg, base, wsreg, wavereg):
        B = Asm(); B.uid = A.uid + 100000
        fn(B, name)
        lines = B.lines
        if TL:
            i0 = lines.index(f"{name}:")
            lines.insert(i0 + 1, "    s_memrealtime s[90:91]\n    s_mov_b32 s92, 0\n    s_mov_b32 s94, 0\n    s_mov_b32 s100, 9999")
            iend = max(i for i, l in enumerate(lines) if l.strip() == "s_endpgm")
            first = True
            for i, l in enumerate(lines):
                if l.strip() == "s_endpgm": lines[i] = f"    s_branch Ltl_{name}"
            stub = f"""Ltl_{name}:
    s_cmp_ge_u32 s2, 256
    s_cbranch_scc1 Ltl2_{name}
    s_memrealtime s[96:97]
    s_load_dwordx2 s[84:85], s[0:1], 96
    s_mov_b32 s86, 0x10000000
    s_mov_b32 s87, 0x00020000
    s_waitcnt lgkmcnt(0)
    s_mov_b64 exec, -1
    v_mov_b32 v4, s98
    v_mov_b32 v5, s92
    v_mov_b32 v6, s94
    v_mov_b32 v7, s96
    s_lshl_b32 s88, {idreg}, 2
    s_add_u32 s88, s88, {wavereg}
    s_lshl_b32 s88, s88, 4
    s_add_u32 s88, s88, {base:#x}
    buffer_store_dwordx4 v[4:7], off, s[84:87], s88
    v_mov_b32 v4, s90
    s_sub_u32 s88, s88, 0x40000
    buffer_store_dword v4, off, s[84:87], s88
Ltl2_{name}:
    s_endpgm"""
            lines.insert(iend + 1, stub)
        A.lines += lines; A.uid = B.uid
    instrument(lambda B, n: main_kernel(B, n, bool(PROFILE)), KNAME, "s100", PROF_OFF + 0x40000, 4, "s16")
    g.update({k: saved[k] for k in list(kw) + ["FULL", "TIMEOUT"]})
    open(path, "w").write(HDR + "\n".join(hdr) + "\n" + A.text())
if __name__ == "__main__":
    generate(sys.argv[1], STAMP=0 if HDR else 1)
```

```python
from asm import *
from model import *

WS, XB, DBG = 4, 8, 12
S_WAVE, S_ROLE, S_STEP, S_MEM, S_MEM2, S_P, S_X, S_VOX, S_TO, S_TMP, S_TMP2, S_P2, S_MEMN = range(16, 29)
S_PROF = 30
NSTEPS = 63
PACCUM = 0
PMASK = 255
TIMEOUT = 40000

def smf(d, a, b, idx, hi=False):
    return f"v_smfmac_f32_16x16x64_bf16 {v(d,4)}, {v(a,4)}, {b}, {v(idx)}" + (" abid:1" if hi else "")

def wreg(f, n=8, sub=0):
    return a_(8*f + sub, n) if f < 32 else v(120 + 8*(f-32) + sub, n)

def lane_consts(A, VL, VG, VN):
    A(f"v_and_b32 {v(VL)}, 63, v0", f"v_lshrrev_b32 {v(VG)}, 4, {v(VL)}", f"v_and_b32 {v(VN)}, 15, {v(VL)}")

def mem_lane_off(A, dst, VG, VN, t):
    A(f"v_lshlrev_b32 {v(dst)}, 8, {v(VG)}", f"v_lshl_add_u32 {v(dst)}, {v(VN)}, 4, {v(dst)}")

def idx_const(A, dst, VN, t):
    A(f"v_and_b32 {v(t)}, 1, {v(VN)}", f"v_mul_u32_u24 {v(dst)}, 0xAAAA, {v(t)}",
      f"v_lshrrev_b32 {v(t)}, 3, {v(VN)}", f"v_mul_u32_u24 {v(t)}, 0xAAAA, {v(t)}",
      f"v_lshl_add_u32 {v(dst)}, {v(t)}, 16, {v(dst)}", f"v_add_u32 {v(dst)}, 0x44444444, {v(dst)}")

def memload(dst, voff, kb):
    so = S_MEM if kb < 4 else S_MEM2
    return f"buffer_load_dwordx4 {v(dst,4)}, {v(voff)}, {s(WS,4)}, {s(so)} offen offset:{(kb%4)*1024} sc1"

def chk4(t, r, first=True):
    if first:
        return [f"v_max3_u32 {v(t)}, {v(r)}, {v(r+1)}, {v(r+2)}", f"v_max_u32 {v(t)}, {v(t)}, {v(r+3)}"]
    return [f"v_max3_u32 {v(t)}, {v(t)}, {v(r)}, {v(r+1)}", f"v_max3_u32 {v(t)}, {v(t)}, {v(r+2)}, {v(r+3)}"]

def timeout_step(A, again, abort):
    A(f"s_sub_u32 {s(S_TO)}, {s(S_TO)}, 1", f"s_cbranch_scc1 {abort}", f"s_branch {again}")

def prof(A, slot, on):
    if on and (PMASK >> slot) & 1:
        A(f"s_memtime {s(S_PROF+2*slot,2)}")

def prof_flush(A, n, vt, vz, role_wave_off):
    A("s_waitcnt lgkmcnt(0)")
    A(f"s_lshl_b32 {s(S_TMP)}, {s(S_ROLE)}, 2", f"s_add_u32 {s(S_TMP)}, {s(S_TMP)}, {s(S_WAVE)}", f"s_lshl_b32 {s(S_TMP)}, {s(S_TMP)}, 6",
      f"s_add_u32 {s(S_TMP)}, {s(S_TMP)}, {s(S_STEP)}", f"s_lshl_b32 {s(S_TMP)}, {s(S_TMP)}, 6", f"s_add_u32 {s(S_TMP)}, {s(S_TMP)}, {PROF_OFF:#x}")
    A(f"v_mov_b32 {v(vz)}, 0")
    for k in range(n):
        A(f"v_mov_b32 {v(vt)}, {s(S_PROF+2*k)}", f"buffer_store_dword {v(vt)}, {v(vz)}, {s(WS,4)}, {s(S_TMP)} offen offset:{4*k}")

def prof_acc(A, n):
    A("s_memtime s[72:73]", "s_waitcnt lgkmcnt(0)")
    for k in range(n):
        A(f"s_sub_u32 {s(S_TMP)}, {s(S_PROF+2*k)}, s71", f"s_add_u32 s{74+k}, s{74+k}, {s(S_TMP)}")
    A(f"s_sub_u32 {s(S_TMP)}, s72, s71", f"s_add_u32 s{74+n}, s{74+n}, {s(S_TMP)}", "s_mov_b32 s71, s72" if PACCUM == 1 else "s_mov_b32 s71, 0")
    Lz = A.label("pz")
    A(f"s_cmp_lg_u32 {s(S_STEP)}, 12", f"s_cbranch_scc1 {Lz}")
    for k in range(n+1): A(f"s_mov_b32 s{74+k}, 0")
    A(f"{Lz}:")
def prof_acc_out(A, n):
    A(f"s_lshl_b32 {s(S_TMP)}, {s(S_ROLE)}, 2", f"s_add_u32 {s(S_TMP)}, {s(S_TMP)}, {s(S_WAVE)}", f"s_lshl_b32 {s(S_TMP)}, {s(S_TMP)}, 6", f"s_add_u32 {s(S_TMP)}, {s(S_TMP)}, {PROF_OFF:#x}")
    for k in range(n+1):
        A(f"v_mov_b32 v0, s{74+k}", f"buffer_store_dword v0, off, {s(WS,4)}, {s(S_TMP)} offset:{4*k}")

def emit_slots(A, slots):
    for sl in slots:
        A(sl['m']); A(sl['pre']); A(sl['valu']); A(sl['post'])

TIMG = 0
TW = 1808
MIMG = 8192
XIMG = 16384
RS = 256
XSL = 20480
A_SLEEP = 0
PFS = 0
PFW = 0
TSP = 2
VPB = 0
XEARLY = 1
XG1 = 14
XN1 = 8
TPOST = 0
BREL = 9
ROT = 0
CODEPF = 9
CPB = 3
RM2 = 0
ORD = 0
X_FIXVOX = 0
X_XSN = 14
PG1 = 0
PG2 = 0
WFI = 0
FS0 = 0
FSD = 0
B1S = 38
B2S = 47
TRN = 4
X_NOPM = 0
PFA = 3
ATOUCH = 3
VPRE = 0
BTOUCH = 0
BT0 = 1
BTA = 1
TCH0 = 14
TAHEAD = 1
TGATE = 2
XPRE = 14
XPG = 18
X_NOVOX = 0
X_NOV = 0
FPD = 5
PGAP = 30
WARM = 0
B0S = 16
LG = 40
P2W = 10
F2AT = 0
XSCR = 0
EXW = 6
TLM = 0
FROFF = 14336
F1AT = 2
FULL = 0
PB2 = 0
LDFL = 0
F1GO = 1
VOXS = 3
STAMP = 1
XS0 = 10
XSN = 28
D1 = 84
D2 = 18
F2D = 40
F2OFF = 10240
F1OFF = 12288
APW = 2
BPW = 3
F1W = 2
X_NODMA = 0
X_NOH = 0
X_NOTR = 0
X_NOCONV = 0
X_NOB1 = 0
B_SLEEP_M = 4
B_SLEEP_P = 0

def nops(n):
    out = []
    while n > 0:
        k = min(n, 16); out.append(f"s_nop {k-1}"); n -= k
    return out

def flag_ld(r, voff, soff, off):
    return f"buffer_load_dword {v(r)}, {v(voff)}, {s(WS,4)}, {s(soff)} offen offset:{off} sc1"
def flag_poll(A, regs, voff, soff, off, abort, tag, primed=False):
    Lp, Lgo = A.label(tag + "fp"), A.label(tag + "go")
    ld = lambda r: flag_ld(r, voff, soff, off)
    n = len(regs)
    if not primed:
        for r in regs: A(ld(r), f"s_nop {48 // n - 1}")
    A(f"{Lp}:")
    for r in regs:
        A(f"s_waitcnt vmcnt({n-1})", f"v_cmp_eq_u32 vcc, -1, {v(r)}", f"s_cbranch_vccz {Lgo}", ld(r))
    timeout_step(A, Lp, abort)
    A(f"{Lgo}:")

def mkslots(ms):
    return [dict(m=m, pre=[], valu=[], post=[]) for m in ms]

S_SLOW = 47
def read_mode(A, vt):
    if FULL:
        A(f"buffer_load_dword {v(vt)}, off, {s(DBG,4)}, 0 sc1", "s_waitcnt vmcnt(0)", f"v_readfirstlane_b32 {s(S_SLOW)}, {v(vt)}", f"s_cmp_ge_u32 {s(S_SLOW)}, 32", f"s_cselect_b32 {s(S_SLOW)}, 0x40000000, 0")
    else:
        A(f"s_mov_b32 {s(S_SLOW)}, 0x40000000")

def role_A(A, w, abort, profile=False):
    import prep
    WFL = [' sc1', '', ' nt', ' sc1 nt'][WFI]
    MEMR, ACC, HT = 0, 28, 56
    IDX, VMEM, VTW, VTR, VH, VX, TMP, TMP2 = range(112, 120)
    VG, VN, VL = 1, 2, 3
    ko = [(w + i) % 3 for i in range(3)] + [3, 4, 5, 6]
    lane_consts(A, VL, VG, VN)
    idx_const(A, IDX, VN, TMP)
    mem_lane_off(A, VMEM, VG, VN, TMP)
    A(f"v_lshlrev_b32 {v(VTW)}, 4, {v(VN)}", f"v_lshl_add_u32 {v(VTW)}, {v(VG)}, 2, {v(VTW)}", f"v_add_u32 {v(VTW)}, {TIMG + w*TW}, {v(VTW)}")
    A(f"v_and_b32 {v(TMP)}, 1, {v(VG)}", f"v_mul_u32_u24 {v(VTR)}, {2*TW}, {v(TMP)}",
      f"v_lshrrev_b32 {v(TMP)}, 3, {v(VN)}", f"v_lshl_add_u32 {v(VTR)}, {v(TMP)}, 7, {v(VTR)}",
      f"v_bfe_u32 {v(TMP)}, {v(VN)}, 1, 1", f"v_lshl_add_u32 {v(VTR)}, {v(TMP)}, 6, {v(VTR)}",
      f"v_lshrrev_b32 {v(TMP)}, 1, {v(VG)}", f"v_lshl_add_u32 {v(VTR)}, {v(TMP)}, 5, {v(VTR)}",
      f"v_bfe_u32 {v(TMP)}, {v(VN)}, 2, 1", f"v_lshl_add_u32 {v(VTR)}, {v(TMP)}, 4, {v(VTR)}",
      f"v_and_b32 {v(TMP)}, 1, {v(VN)}", f"v_lshl_add_u32 {v(VTR)}, {v(TMP)}, 3, {v(VTR)}")
    if TIMG: A(f"v_add_u32 {v(VTR)}, {TIMG}, {v(VTR)}")
    if w < 3:
        A(f"v_lshlrev_b32 {v(VX)}, 10, {v(VG)}",
          f"v_lshl_add_u32 {v(VX)}, {v(VN)}, {3 if w < 2 else 2}, {v(VX)}", f"v_add_u32 {v(VX)}, {XIMG + (4*w if w < 2 else 128)}, {v(VX)}")
    if w < 2:
        A(f"v_lshlrev_b32 {v(VH)}, 4, {v(VL)}")
    elif w == 2:
        A(f"v_mul_u32_u24 {v(VH)}, 1792, {v(VG)}", f"v_and_b32 {v(TMP)}, 7, {v(VN)}", f"v_lshl_add_u32 {v(VH)}, {v(TMP)}, 5, {v(VH)}",
          f"v_add_u32 {v(VH)}, {MIMG}, {v(VH)}")
    else:
        PXO, PMO = HT + 40, HT + 41
        A(f"v_lshrrev_b32 {v(TMP2)}, 3, {v(VL)}", f"v_mul_u32_u24 {v(VH)}, {RS}, {v(TMP2)}", f"v_and_b32 {v(TMP)}, 7, {v(VL)}",
          f"v_lshl_add_u32 {v(VX)}, {v(TMP)}, 4, {v(VH)}", f"v_add_u32 {v(VX)}, {XIMG}, {v(VX)}",
          f"v_lshl_add_u32 {v(VH)}, {v(TMP)}, 2, {v(VH)}", f"v_add_u32 {v(VH)}, {XIMG + 128}, {v(VH)}")
        A(f"v_and_b32 {v(TMP)}, 3, {v(VL)}", f"v_lshlrev_b32 {v(PXO)}, 3, {v(TMP)}", f"v_lshl_add_u32 {v(PXO)}, {v(TMP2)}, 5, {v(PXO)}",
          f"v_bfe_u32 {v(TMP)}, {v(VL)}, 2, 1", f"v_lshl_add_u32 {v(PXO)}, {v(TMP)}, 8, {v(PXO)}",
          f"s_lshl_b32 {s(S_TMP)}, {s(S_ROLE)}, 9", f"v_add_u32 {v(PXO)}, {s(S_TMP)}, {v(PXO)}")
        A(f"v_lshlrev_b32 {v(PMO)}, 5, {v(TMP2)}",
          f"v_bfe_u32 {v(TMP)}, {v(VL)}, 2, 1", f"v_lshl_add_u32 {v(PMO)}, {v(TMP)}, 8, {v(PMO)}",
          f"v_bfe_u32 {v(TMP)}, {v(VL)}, 1, 1", f"v_lshl_add_u32 {v(PMO)}, {v(TMP)}, 3, {v(PMO)}",
          f"s_lshr_b32 {s(S_TMP)}, {s(S_ROLE)}, 2", f"s_lshl_b32 {s(S_TMP)}, {s(S_TMP)}, 9",
          f"s_and_b32 {s(S_TMP2)}, {s(S_ROLE)}, 1", f"s_lshl_b32 {s(S_TMP2)}, {s(S_TMP2)}, 4", f"s_add_u32 {s(S_TMP)}, {s(S_TMP)}, {s(S_TMP2)}",
          f"s_bfe_u32 {s(S_TMP2)}, {s(S_ROLE)}, 0x10001", f"s_lshl_b32 {s(S_TMP2)}, {s(S_TMP2)}, 2", f"s_add_u32 {s(S_TMP)}, {s(S_TMP)}, {s(S_TMP2)}",
          f"s_add_u32 {s(S_TMP)}, {s(S_TMP)}, 8192", f"v_add_u32 {v(PMO)}, {s(S_TMP)}, {v(PMO)}")
        A(f"v_and_b32 {v(TMP)}, 1, {v(VL)}", f"v_lshl_add_u32 {v(PMO)}, {v(TMP)}, 30, {v(PMO)}")
    if w == APW:
        A(f"v_min_u32 {v(TMP2)}, 13, {v(VL)}", f"v_lshlrev_b32 {v(TMP2)}, 2, {v(TMP2)}", f"s_lshr_b32 {s(S_TMP)}, {s(S_ROLE)}, 2", f"s_lshl_b32 {s(S_TMP)}, {s(S_TMP)}, 8", f"s_add_u32 {s(S_TMP)}, {s(S_TMP)}, {F1OFF}", f"v_add_u32 {v(TMP2)}, {s(S_TMP)}, {v(TMP2)}")
    if w == 3:
        A(f"v_lshlrev_b32 {v(TMP2)}, 7, {v(VL)}", f"s_lshl_b32 {s(S_TMP)}, {s(S_ROLE)}, 2", f"s_add_u32 {s(S_TMP)}, {s(S_TMP)}, {F2OFF}", f"v_add_u32 {v(TMP2)}, {s(S_TMP)}, {v(TMP2)}",
          f"v_cmp_lt_u32 vcc, 13, {v(VL)}", f"v_mov_b32 {v(TMP)}, 0x40000000", "s_nop 0", f"v_cndmask_b32 {v(TMP2)}, {v(TMP2)}, {v(TMP)}, vcc")
    if FULL: prep.wait_tiles(A, s(S_ROLE), 1, abort, "A", S_TO, 4, 5)
    A(f"v_lshlrev_b32 {v(TMP)}, 4, {v(VL)}")
    A(f"s_mul_i32 {s(S_TMP)}, {s(S_ROLE)}, {28*14336}", f"s_add_u32 {s(S_TMP)}, {s(S_TMP)}, {WA_OFF + 7*w*14336}")
    for cb in range(7):
        for p in range(7):
            f = cb*7 + p
            off = cb*14336 + ko[p]*2048
            A(f"s_add_u32 {s(S_TMP2)}, {s(S_TMP)}, {off}")
            for hi in range(2):
                A(f"buffer_load_dwordx4 {wreg(f,4,4*hi)}, {v(TMP)}, {s(WS,4)}, {s(S_TMP2)} offen offset:{1024*hi}{WFL}")
        if cb >= 2: A("s_waitcnt vmcnt(28)")
    A(f"s_mov_b32 {s(S_STEP)}, 0", f"s_mov_b32 {s(S_MEM)}, {MEMF_OFF:#x}", f"s_mov_b32 {s(S_MEM2)}, {MEMF_OFF+4096:#x}",
      f"s_mov_b32 {s(S_P)}, {PF_OFF:#x}", f"s_mov_b32 {s(S_X)}, {XS_OFF + 14336*(w%2):#x}", f"s_mov_b32 {s(S_TO)}, {TIMEOUT}")
    Lstep = A.label(f"A{w}step"); Lpoll = A.label(f"A{w}poll")
    def cv_wait(ahead):
        Lc, Lg = A.label("cvp"), A.label("cvg")
        A(f"s_add_u32 {s(S_TMP2)}, {s(S_P)}, {16384*ahead + FROFF}", f"v_cmp_ne_u32 vcc, 15, {v(TMP2)}", f"s_cbranch_vccz {Lg}")
        A(f"{Lc}:", f"buffer_load_dword {v(TMP2)}, off, {s(WS,4)}, {s(S_TMP2)} sc1", "s_waitcnt vmcnt(0)", f"v_cmp_ne_u32 vcc, 15, {v(TMP2)}", f"s_cbranch_vccz {Lg}", "s_sleep 1")
        timeout_step(A, Lc, abort)
        A(f"{Lg}:", f"s_add_u32 {s(S_TMP2)}, {s(S_TMP2)}, 16384", f"buffer_load_dword {v(TMP2)}, off, {s(WS,4)}, {s(S_TMP2)} sc1")
    if FULL: prep.wait_counters(A, 0, 32, abort, "A", S_TO, 4, 5)
    if w == 3: read_mode(A, 4)
    if FULL:
        if w < 2:
            A(f"v_mov_b32 {v(TMP2)}, 0")
            cv_wait(0)
    if w == 3:
        A(f"v_lshlrev_b32 {v(HT+43)}, 7, {v(VL)}", f"s_lshl_b32 {s(S_VOX)}, {s(S_ROLE)}, {13 + BTOUCH}", f"s_add_u32 {s(S_VOX)}, {s(S_VOX)}, {VOX_OFF + 458752*TAHEAD + (65536 << BTOUCH)*PF_VOX:#x}",
          f"s_cmp_lt_u32 {s(S_ROLE)}, {max(0, (56 >> BTOUCH) - 8*PF_VOX - 16*(ATOUCH-1))}", f"s_cselect_b32 s59, {(131072 << BTOUCH)*max(0, ATOUCH-1)}, 0x40000000")
        A(f"s_cmp_lt_u32 {s(S_ROLE)}, 7", f"s_cselect_b32 s61, {ALT:#x}, 0x40000000", f"s_min_u32 {s(S_TMP)}, {s(S_ROLE)}, 6",
          f"s_lshl_b32 {s(S_TMP)}, {s(S_TMP)}, 10", f"v_add_u32 {v(HT+47)}, {s(S_TMP)}, {v(VMEM)}")
    if w < 2:
        for j in range(XPRE):
            if j % 4 == 0: A(f"s_add_u32 {s(S_TMP)}, {s(S_X)}, {1024*j}")
            A(f"buffer_load_dwordx4 {v(HT+4*j,4)}, {v(VH)}, {s(WS,4)}, {s(S_TMP)} offen offset:{1024*(j%4)} sc1")
    A(f"s_mov_b32 {s(S_PROF+16)}, 0")
    if STAMP: A("s_mov_b32 s58, 0")
    if STAMP and w == 3: A("s_waitcnt vmcnt(0)", "s_memrealtime s[50:51]", "s_memtime s[54:55]")
    if TLM: A("s_waitcnt vmcnt(0)", "s_memrealtime s[92:93]")
    for r in range(28): A(f"v_mov_b32 {v(ACC+r)}, 0")
    if w == 3: A("s_mov_b32 s60, 0x40000000" if FULL else f"s_mov_b32 s60, {s(S_VOX)}")
    A(f"{Lstep}:", "s_barrier")
    prof(A, 0, profile)
    Lfail, Lfail2, Lcont2 = A.label("fail"), A.label("fail2"), A.label("cont2")
    dmas = [3 + w] + ([w] if w < 3 else [])
    nd = len(dmas)
    def issue():
        o = [memload(MEMR + 4*p, VMEM, ko[p]) for p in range(3)] + nops(LG)
        for kb in dmas:
            o += [f"s_mov_b32 m0, {MIMG + (kb - kb % 4)*1024}", "s_nop 0", f"buffer_load_dwordx4 {v(VMEM)}, {s(WS,4)}, {s(S_MEM if kb < 4 else S_MEM2)} offen offset:{(kb%4)*1024} sc1 lds"]
        return o
    B0 = B0S
    rdm = lambda p: f"ds_read_b128 {v(MEMR+4*p,4)}, {v(VMEM)} offset:{MIMG + ko[p]*1024}"
    xld = lambda j: f"buffer_load_dwordx4 {v(HT+4*j,4)}, {v(VH)}, {s(WS,4)}, {s(S_TMP)} offen offset:{1024*(j%4)} sc1"
    A(issue())
    A(f"{Lpoll}:")
    if profile: A(f"s_add_u32 {s(S_PROF+16)}, {s(S_PROF+16)}, 256")
    A(f"s_waitcnt vmcnt({2 + nd})")
    prof(A, 1, profile)
    order = [(cb, p) for p in range(3) for cb in range(7)] + [(cb, p) for cb in range(7) for p in range(3, 7)]
    slots = mkslots([smf(ACC+4*cb, MEMR+4*p, wreg(cb*7+p), IDX) for cb, p in order])
    cmp_ = f"v_cmp_eq_u32 vcc, -1, {v(TMP)}"
    c0, c1, c2 = chk4(TMP, MEMR), chk4(TMP, MEMR + 4), chk4(TMP, MEMR + 8, False)
    for i, o in enumerate(c0 + [cmp_]): slots[i]['valu'].append(o)
    slots[4]['pre'].append(f"s_cbranch_vccnz {Lfail}")
    slots[5]['pre'].append(f"s_waitcnt vmcnt({1 + nd})")
    slots[5]['valu'].append(c1[0]); slots[6]['valu'].append(c1[1])
    slots[P2W]['pre'].append(f"s_waitcnt vmcnt({nd})")
    slots[P2W]['valu'].append(c2[0]); slots[P2W+1]['valu'].append(c2[1]); slots[P2W+2]['valu'].append(cmp_)
    slots[P2W+4]['pre'].append(f"s_cbranch_vccnz {Lfail}")
    assert P2W + 4 <= B0 and 7 <= P2W <= 13
    SACC = MEMR
    if w < 3:
        for r in range(4): slots[16 + r]['valu'].append(f"v_mov_b32 {v(SACC+r)}, 0")
    slots[B0]['pre'] += ["s_waitcnt vmcnt(0)", "s_barrier", rdm(3)]
    for p in range(4, 7): slots[B0 + p - 3]['pre'].append(rdm(p))
    for p in range(3, 7): slots[17 + p]['pre'].append(f"s_waitcnt lgkmcnt({6-p})")
    if w == 2:
        for j in range(14):
            slots[24 + j]['pre'].append(f"ds_read_b128 {v(HT+4*j,4)}, {v(VH)} offset:{256*(j//2)+16*(j%2)}")
    if w == 3 and FULL:
        slots[25]['pre'] += [f"ds_read_b128 {v(HT+48,4)}, {v(HT+47)} offset:{MIMG}", f"s_add_u32 s62, {s(S_MEM)}, s61"]
        slots[32]['pre'] += ["s_waitcnt lgkmcnt(1)", f"buffer_store_dwordx4 {v(HT+48,4)}, {v(HT+47)}, {s(WS,4)}, s62 offen sc1"]
    tch = lambda i: [f"s_add_u32 {s(S_TMP)}, s60, {'s59' if i == ATOUCH - 1 else (131072 << BTOUCH)*i}", f"buffer_load_dword {v(HT+52+i)}, {v(HT+43)}, {s(WS,4)}, {s(S_TMP)} offen sc1"]
    if w == 3 and ATOUCH:
        for i in range(ATOUCH - TPOST): slots[B0 + 1 + TSP*i]['pre'] += tch(i)
    if w < 2:
        nin = 14 - XPRE
        for jj in range(nin):
            j = XPRE + jj
            sl = B0 + 1 + (jj*XSN)//nin
            if j % 4 == 0 or jj == 0: slots[sl]['pre'].append(f"s_add_u32 {s(S_TMP)}, {s(S_X)}, {1024*(j - j % 4)}")
            slots[sl]['pre'].append(xld(j))
    def conv(cb):
        r = ACC + 4*cb
        return [f"v_add_f32 {v(r)}, {v(r)}, {v(r+1)}", f"v_add_f32 {v(r+2)}, {v(r+2)}, {v(r+3)}",
                f"v_cvt_pk_bf16_f32 {v(r)}, {v(r)}, {v(r+2)}", f"ds_write_b32 {v(VTW)}, {v(r)} offset:{256*cb}"]
    for cb in range(6):
        for i, o in enumerate(conv(cb)):
            if 26 + 4*cb + i < 49: slots[26 + 4*cb + i]['valu'].append(o)
    slots[28]['valu'].insert(0, f"v_cmp_u_f32 vcc, {v(ACC)}, {v(ACC+2)}")
    slots[30]['pre'] += [f"s_cbranch_vccnz {Lfail2}", f"{Lcont2}:"]
    TF = lambda k: MEMR + 4 + 4*k if k < 2 else ACC + 4*(k-2)
    def trread(k):
        return [f"ds_read_b64_tr_b16 {v(TF(k)+2*u,2)}, {v(VTR)} offset:{256*k + TW*u}" for u in range(2)]
    slots[41]['pre'] += ["s_waitcnt lgkmcnt(0)", "s_barrier"]
    if w < 3:
        rs = [r for k in range(3) for r in trread(k)]
        for i, r in enumerate(rs): slots[42 + (i*TRN)//6]['pre'].append(r)
    if profile and FSD:
        for k in range(5):
            if FS0 + k*FSD < 49: slots[FS0 + k*FSD]['pre'].insert(0, f"s_memtime {s(S_PROF+4+2*k,2)}")
    elif profile:
        for st, sl in ((2, 13), (3, 27), (4, 48)):
            if (PMASK >> st) & 1: slots[sl]['pre'].append(f"s_memtime {s(S_PROF+2*st,2)}")
    emit_slots(A, slots)
    c6 = conv(6); W5 = conv(5)[3]
    A("s_waitcnt lgkmcnt(0)", "s_barrier", W5)
    if w < 3:
        sm = [smf(SACC, TF(k), v(HT+8*k, 8), IDX, True) for k in range(7)]
        vw = (lambda n: f"s_waitcnt vmcnt({n})") if w < 2 and XPRE < 14 else (lambda n: "")
        r3, r4 = trread(3), trread(4)
        A(vw(12), sm[0], r3, r4[0], c6[0], c6[1], c6[2], c6[3], r4[1], vw(8), sm[1], sm[2], "s_waitcnt lgkmcnt(3)", vw(4), sm[3], "s_waitcnt lgkmcnt(0)", sm[4])
        A("s_waitcnt lgkmcnt(0)", "s_barrier")
        prof(A, 5, profile)
        for k in range(5, 7): A(trread(k))
        A(vw(0))
        for k in range(5, 7):
            A(f"s_waitcnt lgkmcnt({2*(6-k)})", sm[k])
        A("s_nop 7")
        A(f"ds_write2st64_b32 {v(VX)}, {v(SACC)}, {v(SACC+1)} offset0:0 offset1:1",
          f"ds_write2st64_b32 {v(VX)}, {v(SACC+2)}, {v(SACC+3)} offset0:2 offset1:3", "s_waitcnt lgkmcnt(0)", "s_barrier")
        prof(A, 6, profile)
        prof(A, 7, profile)
    else:
        A("s_nop 3", c6)
        A("s_waitcnt lgkmcnt(0)", "s_barrier")
        prof(A, 5, profile)
        if FULL and EXW == 7: A(f"buffer_store_dwordx4 {v(HT+48,4)}, {v(HT+47)}, {s(WS,4)}, s62 offen sc1")
        A(f"s_add_u32 s63, {s(S_P)}, {s(S_SLOW)}", "s_xor_b32 s64, s63, 0x40000000", nops(F2D - 2), f"buffer_store_dword {v(IDX)}, {v(TMP2)}, {s(WS,4)}, s64 offen")
        A("s_barrier")
        X0 = HT; XM = HT+4; MX, L = HT+8, HT+9; N0 = HT+12
        Lslow, Lnorm = A.label("slow"), A.label("norm")
        Y0 = HT + 20; RAW = HT + 28
        A(f"ds_read_b128 {v(X0,4)}, {v(VX)}", f"ds_read_b128 {v(Y0,4)}, {v(VX)} offset:2048", f"ds_read2st64_b32 {v(Y0+4,2)}, {v(VH)} offset0:0 offset1:8")
        prof(A, 6, profile)
        A("s_waitcnt lgkmcnt(1)")
        for j in range(4): A(f"v_add_f32 {v(RAW+j)}, {v(X0+j)}, {v(Y0+j)}")
        A("s_waitcnt lgkmcnt(0)", f"v_add_f32 {v(RAW+4)}, {v(Y0+4)}, {v(Y0+5)}")
        for j in range(5): A(f"v_exp_f32 {v(X0+j)}, {v(RAW+j)}")
        dpps = ["quad_perm:[1,0,3,2]", "quad_perm:[2,3,0,1]", "row_half_mirror"]
        def norm_store(check):
            A(f"v_add_f32 {v(L)}, {v(X0)}, {v(X0+1)}", f"v_add_f32 {v(MX)}, {v(X0+2)}, {v(X0+3)}",
              f"v_add_f32 {v(L)}, {v(L)}, {v(MX)}", f"v_add_f32 {v(L)}, {v(L)}, {v(XM)}")
            for d in dpps: A("s_nop 1", f"v_add_f32_dpp {v(L)}, {v(L)}, {v(L)} {d} row_mask:0xf bank_mask:0xf")
            A(f"v_rcp_f32 {v(N0+5)}, {v(L)}")
            if check: A(f"v_subrev_u32 {v(MX)}, 0x21800000, {v(L)}", f"v_cmp_lt_u32 vcc, 0x3c000000, {v(MX)}")
            else: A("s_nop 0")
            R = N0 + 5
            A(f"v_mul_f32_e64 {v(X0)}, {v(X0)}, {v(R)} clamp", f"v_mul_f32 {v(X0+1)}, {v(X0+1)}, {v(R)}",
              f"v_mul_f32_e64 {v(X0+2)}, {v(X0+2)}, {v(R)} clamp", f"v_mul_f32 {v(X0+3)}, {v(X0+3)}, {v(R)}",
              f"v_cvt_pk_bf16_f32 {v(N0)}, {v(X0)}, {v(X0+1)}", f"v_cvt_pk_bf16_f32 {v(N0+1)}, {v(X0+2)}, {v(X0+3)}",
              f"v_mul_f32_dpp {v(N0+3)}, {v(XM)}, {v(R)} quad_perm:[1,0,3,2] row_mask:0xf bank_mask:0xf")
            if check: A(f"s_cbranch_vccnz {Lslow}")
            A(f"v_mul_f32_e64 {v(XM)}, {v(XM)}, {v(R)} clamp",
              f"buffer_store_dwordx2 {v(N0,2)}, {v(PXO)}, {s(WS,4)}, s64 offen",
              f"v_cvt_pk_bf16_f32 {v(N0+2)}, {v(XM)}, {v(N0+3)}",
              f"buffer_store_dword {v(N0+2)}, {v(PMO)}, {s(WS,4)}, s64 offen")
        norm_store(True)
        A(f"{Lnorm}:")
        A(f"buffer_store_dwordx2 {v(N0,2)}, {v(PXO)}, {s(WS,4)}, s63 offen sc1", f"buffer_store_dword {v(N0+2)}, {v(PMO)}, {s(WS,4)}, s63 offen sc1",
          f"buffer_store_dword {v(IDX)}, {v(TMP2)}, {s(WS,4)}, s63 offen sc1")
        prof(A, 7, profile)
    if profile and PACCUM: prof_acc(A, 8)
    elif profile:
        prof_flush(A, 9, TMP, MEMR, 0)
        A(f"s_mov_b32 {s(S_PROF+16)}, 0")
    zs = [f"v_mov_b32 {v(ACC+r)}, 0" for r in range(28)]
    if TLM and w == 3:
        Lt = A.label("tl")
        A(f"s_lshl_b32 {s(S_TMP)}, {s(S_ROLE)}, 2", f"s_cmp_eq_u32 {s(S_ROLE)}, 15", f"s_cselect_b32 {s(S_TMP)}, 62, {s(S_TMP)}", f"s_cmp_lg_u32 {s(S_STEP)}, {s(S_TMP)}", f"s_cbranch_scc1 {Lt}", "s_memrealtime s[94:95]", f"{Lt}:")
    if not XEARLY:
        A("s_barrier", zs)
        if w < 2:
            if FULL: cv_wait(1)
            for j in range(min(XPRE, X_XSN)):
                if j % 4 == 0: A(f"s_add_u32 {s(S_TMP)}, {s(S_X)}, {28672 + 1024*j}")
                A(xld(j), nops(XPG))
    elif w < 2:
        if FULL: cv_wait(1)
        el = 0
        for j in range(14):
            if j % 4 == 0: A(f"s_add_u32 {s(S_TMP)}, {s(S_X)}, {28672 + 1024*j}")
            A(xld(j))
            gap = XG1 if j < XN1 else XPG
            if j == 13: gap = 0
            nz = min(len(zs), gap) if el >= 70 else 0
            A(zs[:nz], nops(gap - nz)); zs = zs[nz:]
            el += gap + 2
        A(zs)
    elif w == 2: A(nops(70), zs)
    else: A(zs)
    if w == 3:
        if FULL: A(f"s_add_u32 {s(S_TMP)}, {s(S_P)}, {16384*(TAHEAD+1) + FROFF}", f"buffer_load_dword {v(TMP)}, off, {s(WS,4)}, {s(S_TMP)} sc1")
        for i in range(ATOUCH - TPOST, ATOUCH): A(tch(i))
        A(f"s_add_u32 s60, {s(S_VOX)}, 458752")
        if FULL:
            A(f"s_waitcnt vmcnt({TPOST})",
              f"v_readfirstlane_b32 {s(S_TMP)}, {v(TMP)}", f"s_cmp_eq_u32 {s(S_TMP)}, 15", "s_cselect_b32 s60, s60, 0x40000000")
        if FULL and EXW == 5:
            A(f"ds_read_b128 {v(HT+48,4)}, {v(HT+47)} offset:{MIMG}", f"s_add_u32 {s(S_TMP)}, {s(S_MEM)}, s61", "s_waitcnt lgkmcnt(0)",
              f"buffer_store_dwordx4 {v(HT+48,4)}, {v(HT+47)}, {s(WS,4)}, {s(S_TMP)} offen sc1")
    if w == APW:
        if TGATE != 1: flag_poll(A, list(range(8, 8 + FPD)), TMP2, S_P, 0, abort, "A")
        A(nops(D1))
    A(f"s_add_u32 {s(S_MEM)}, {s(S_MEM)}, 8192", f"s_add_u32 {s(S_MEM2)}, {s(S_MEM2)}, 8192", f"s_add_u32 {s(S_P)}, {s(S_P)}, 16384",
      f"s_add_u32 {s(S_X)}, {s(S_X)}, {32*896}", f"s_add_u32 {s(S_VOX)}, {s(S_VOX)}, 458752",
      f"s_add_u32 {s(S_STEP)}, {s(S_STEP)}, 1", f"s_cmp_lt_u32 {s(S_STEP)}, {NSTEPS}", f"s_cbranch_scc1 {Lstep}")
    if profile and PACCUM: prof_acc_out(A, 8)
    if STAMP: A("v_mov_b32 v0, s58", "s_mov_b64 exec, 1", f"buffer_atomic_add v0, off, {s(DBG,4)}, 0 offset:52", "s_mov_b64 exec, -1")
    if STAMP and w == 3:
        A("s_memrealtime s[52:53]", "s_memtime s[56:57]", "s_waitcnt lgkmcnt(0)", "s_sub_u32 s52, s52, s50", "s_sub_u32 s56, s56, s54", "v_mov_b32 v0, s52", "v_mov_b32 v1, s56",
          f"s_lshl_b32 {s(S_TMP)}, {s(S_ROLE)}, {10 if FULL else 3}", (f"buffer_store_dword v0, off, {s(DBG,4)}, {s(S_TMP)} offset:60" if FULL else f"buffer_store_dwordx2 v[0:1], off, {s(DBG,4)}, {s(S_TMP)} offset:64"))
    A("s_endpgm")
    A(f"{Lfail2}:")
    for p in range(3, 7): A(chk4(TMP, MEMR + 4*p, p == 3))
    A(cmp_, f"s_cbranch_vccz {Lcont2}", "s_waitcnt lgkmcnt(0)", "s_barrier")
    if STAMP: A(f"s_add_u32 s58, s58, 0x10000")
    A(f"{Lfail}:", issue(), f"s_sub_u32 {s(S_TO)}, {s(S_TO)}, 1", f"s_cbranch_scc1 {abort}")
    if STAMP: A(f"s_add_u32 s58, s58, 1")
    for r in range(28): A(f"v_mov_b32 {v(ACC+r)}, 0")
    A(f"s_branch {Lpoll}")
    if w == 3:
        A(f"{Lslow}:")
        A(f"v_max3_f32 {v(MX)}, {v(RAW)}, {v(RAW+1)}, {v(RAW+2)}", f"v_max3_f32 {v(MX)}, {v(MX)}, {v(RAW+3)}, {v(RAW+4)}")
        for d in dpps: A("s_nop 1", f"v_max_f32_dpp {v(MX)}, {v(MX)}, {v(MX)} {d} row_mask:0xf bank_mask:0xf")
        for j in range(5): A(f"v_sub_f32 {v(X0+j)}, {v(RAW+j)}, {v(MX)}")
        for j in range(5): A(f"v_exp_f32 {v(X0+j)}, {v(X0+j)}")
        A("s_nop 0")
        norm_store(False)
        A(f"s_branch {Lnorm}")

BW7 = 0
BMIMG = 57344
BVIMG = 65536
DB = 55

def role_B(A, w, abort, profile=False):
    import prep
    WFL = [' sc1', '', ' nt', ' sc1 nt'][WFI]
    pv = w < 2
    c, M = w % 2, w // 2
    NR = 6 if pv else 8
    WV0 = 256 - 8*(7*NR - 32)
    wrg = lambda f, n=8, sub=0: a_(8*f + sub, n) if f < 32 else v(WV0 + 8*(f-32) + sub, n)
    MEMR, ACC, VP = 0, 40, 48
    IDX, VL16, TMP, TMP2, VLV, VF2 = range(56, 62)
    if pv:
        VP2, VOX, SB, AC7, PACC, VST, R0 = 64, 72, 136, 152, 160, 164, 165
        assert 166 <= WV0
    VG, VN, VL = 1, 2, 3
    own = [2*w, 2*w+1] if w < 3 else [6]
    lane_consts(A, VL, VG, VN)
    idx_const(A, IDX, VN, TMP)
    A(f"v_lshlrev_b32 {v(VL16)}, 4, {v(VL)}", f"v_add_u32 {v(VLV)}, {BVIMG + 2048*c}, {v(VL16)}")
    A(f"s_sub_u32 {s(S_TMP)}, {s(S_ROLE)}, 16")
    if pv:
        A(f"v_lshlrev_b32 {v(VF2)}, 2, {v(VN)}", f"s_lshl_b32 {s(S_TMP2)}, {s(S_TMP)}, 7", f"s_add_u32 {s(S_TMP2)}, {s(S_TMP2)}, {F2OFF - 8192}", f"v_add_u32 {v(VF2)}, {s(S_TMP2)}, {v(VF2)}")
        VF1 = 166
        A(f"v_lshlrev_b32 {v(VF1)}, 8, {v(VL)}", f"s_lshl_b32 {s(S_TMP2)}, {s(S_TMP)}, 2", f"s_add_u32 {s(S_TMP2)}, {s(S_TMP2)}, {F1OFF - 8192}", f"v_add_u32 {v(VF1)}, {s(S_TMP2)}, {v(VF1)}",
          f"v_cmp_lt_u32 vcc, 3, {v(VL)}", f"v_mov_b32 {v(TMP)}, 0x40000000", "s_nop 0", f"v_cndmask_b32 {v(VF1)}, {v(VF1)}, {v(TMP)}, vcc")
        A(f"v_lshlrev_b32 {v(VST)}, 6, {v(VG)}", f"v_and_b32 {v(TMP)}, 1, {v(VN)}", f"v_lshl_add_u32 {v(VST)}, {v(TMP)}, 5, {v(VST)}",
          f"v_bfe_u32 {v(TMP)}, {v(VN)}, 1, 1", f"v_lshl_add_u32 {v(VST)}, {v(TMP)}, 4, {v(VST)}", f"v_lshrrev_b32 {v(TMP)}, 2, {v(VN)}", f"v_lshl_add_u32 {v(VST)}, {v(TMP)}, 2, {v(VST)}")
    A(f"s_mul_i32 {s(S_VOX)}, {s(S_TMP)}, {16*1024}",
      f"s_lshl_b32 {s(S_MEMN)}, {s(S_TMP)}, 8", f"s_add_u32 {s(S_MEMN)}, {s(S_MEMN)}, {MEMF_OFF + 8192 + 256*14*c:#x}",
      f"s_mul_i32 {s(S_TMP)}, {s(S_TMP)}, {14336}", f"s_add_u32 {s(S_TMP)}, {s(S_TMP)}, {WB_OFF + (8*M*28 + 14*c)*14336:#x}",
      f"s_add_u32 {s(S_VOX)}, {s(S_VOX)}, {VOX_OFF + 16384*14*c:#x}")
    if FULL: prep.wait_tiles(A, 16, 16, abort, "B", S_TO, 4, 5)
    stg = [4, 64]
    if pv:
        for u in (6, 7):
            for kb in range(7):
                A(f"s_add_u32 {s(S_TMP2)}, {s(S_TMP)}, {u*28*14336 + kb*2048}")
                for hi in range(2):
                    d = v(64+8*kb+4*hi,4) if u == 6 else a_(200+8*kb+4*hi,4)
                    A(f"buffer_load_dwordx4 {d}, {v(VL16)}, {s(WS,4)}, {s(S_TMP2)} offen offset:{1024*hi}{WFL}")
    for u in range(NR):
        for kb in range(7):
            f = u*7 + kb
            A(f"s_add_u32 {s(S_TMP2)}, {s(S_TMP)}, {u*28*14336 + kb*2048}")
            for hi in range(2):
                A(f"buffer_load_dwordx4 {wrg(f,4,4*hi)}, {v(VL16)}, {s(WS,4)}, {s(S_TMP2)} offen offset:{1024*hi}{WFL}")
        if u >= 2 or pv: A("s_waitcnt vmcnt(28)")
        if pv and u == 1:
            for j in range(14): A(f"ds_write_b128 {v(VL16)}, {v(64+4*j,4)} offset:{BW7 + 2*w*14336 + j*1024}")
            for j in range(14): A(f"ds_write_b128 {v(VL16)}, {a_(200+4*j,4)} offset:{BW7 + (2*w+1)*14336 + j*1024}")
            A("s_waitcnt lgkmcnt(0)")
    if FULL: prep.wait_counters(A, 0, 32, abort, "B", S_TO, 4, 5)
    if pv: read_mode(A, 4)
    A(f"s_mov_b32 {s(S_STEP)}, 0", f"s_mov_b32 {s(S_MEM)}, {MEMF_OFF:#x}", f"s_mov_b32 {s(S_MEM2)}, {MEMF_OFF+4096:#x}",
      f"s_mov_b32 {s(S_P)}, {PF_OFF:#x}", f"s_mov_b32 {s(S_X)}, {PF_OFF + 4096:#x}", f"s_mov_b32 {s(S_P2)}, {PF_OFF + 8192:#x}", f"s_mov_b32 {s(S_TO)}, {TIMEOUT}")
    S_EM, S_FR, S_ODD = 64, 65, 66
    A(f"s_mov_b32 {s(S_FR)}, {PF_OFF + FROFF:#x}", f"s_mov_b32 {s(S_ODD)}, 0xaaaaaaaa", f"s_mov_b32 {s(S_ODD+1)}, 0xaaaaaaaa")
    A("s_waitcnt vmcnt(0) lgkmcnt(0)")
    if TLM: A("s_memrealtime s[92:93]")
    A(f"s_mov_b32 {s(S_PROF+10)}, 0")
    if STAMP: A("s_mov_b32 s58, 0", "s_mov_b32 s59, 0")
    if STAMP and w == 0: A("s_memtime s[54:55]")
    Lstep, Lpoll, Lok2 = [A.label(f"B{w}{x}") for x in ("step", "poll", "ok2")]
    mreg = lambda kb: MEMR + 4*kb
    mld = lambda kb: memload(mreg(kb), VL16, kb)
    if pv:
        voxld = lambda hh: f"buffer_load_dwordx4 {v(VOX + 4*hh, 4)}, {v(VL16)}, {s(WS,4)}, {s(S_TMP)} offen offset:{1024*(hh%4)} sc1"
        def bcv(ahead):
            if not FULL: return
            Lc, Lg = A.label("bcv"), A.label("bcg")
            A(f"v_cmp_ne_u32 vcc, 15, {v(TMP2)}", f"s_add_u32 {s(S_TMP2)}, {s(S_FR)}, {16384*ahead}", f"s_cbranch_vccz {Lg}")
            A(f"{Lc}:", f"buffer_load_dword {v(TMP2)}, off, {s(WS,4)}, {s(S_TMP2)} sc1", "s_waitcnt vmcnt(0)", f"v_cmp_ne_u32 vcc, 15, {v(TMP2)}", f"s_cbranch_vccz {Lg}", "s_sleep 1")
            timeout_step(A, Lc, abort)
            A(f"{Lg}:")
        def voxpre(add):
            if VPRE: bcv(1 if add else 0)
            for hh in range(VPRE):
                if hh % 4 == 0: A(f"s_add_u32 {s(S_TMP)}, {s(S_VOX)}, {add + 1024*hh}")
                A(voxld(hh))
        A(f"v_mov_b32 {v(TMP2)}, 0")
        voxpre(0)
    else:
        A(f"v_lshlrev_b32 {v(VF2)}, 3, {v(VL16)}", f"v_mov_b32 {v(TMP2)}, 0")
        A(f"s_sub_u32 {s(S_TMP)}, {s(S_ROLE)}, 16", f"s_cmp_lt_u32 {s(S_TMP)}, 7", f"s_cselect_b32 s70, {ALT:#x}, 0x40000000", f"s_min_u32 {s(S_TMP)}, {s(S_TMP)}, 6",
          f"s_lshl_b32 {s(S_TMP)}, {s(S_TMP)}, 10", f"v_add_u32 {v(32)}, {s(S_TMP)}, {v(VL16)}")
    A(f"{Lstep}:")
    A(f"{Lpoll}:")
    for kb in own:
        A(f"s_mov_b32 m0, {BMIMG + (kb - kb % 4)*1024}", "s_nop 0", f"buffer_load_dwordx4 {v(VL16)}, {s(WS,4)}, {s(S_MEM if kb < 4 else S_MEM2)} offen offset:{(kb%4)*1024} sc1 lds")
    for r in range(8): A(f"v_mov_b32 {v(ACC+r)}, 0")
    if pv:
        for j in range(8): A(f"v_mov_b32 {v(AC7+j)}, 0")
        for n in range(2):
            for hi in range(2): A(f"ds_read_b128 {v(SB + 8*n + 4*hi, 4)}, {v(VL16)} offset:{BW7 + (2*w + n)*14336 + hi*1024}")
        if not VPRE: bcv(0)
    A("s_waitcnt vmcnt(0)", "s_barrier")
    if PACCUM: prof(A, 6, profile)
    korder = list(range(7))
    for kb in korder: A(f"ds_read_b128 {v(mreg(kb),4)}, {v(VL16)} offset:{BMIMG + kb*1024}")
    if not PB2: prof(A, 1, profile)
    cv = lambda r, u: [f"v_add_f32 {v(r)}, {v(r)}, {v(r+1)}", f"v_add_f32 {v(r+2)}, {v(r+2)}, {v(r+3)}", f"v_cvt_pk_bf16_f32 {v(VP+u)}, {v(r)}, {v(r+2)}"]
    ms, ustart = [], []
    if pv:
        reg = [(u, kb) for u in range(6) for kb in korder]
        stq = [(u, kb) for kb in korder for u in (6, 7)]
        seq = []
        for i, x in enumerate(reg):
            seq.append(x)
            if i % 3 == 2: seq.append(stq[i // 3])
    else:
        seq = [(u, kb) for u in range(8) for kb in korder]
    nst = 0
    for (u, kb) in seq:
        if u < NR: ms.append(smf(ACC + 4*(u % 2), mreg(kb), wrg(u*7+kb), IDX))
        else:
            ms.append(smf(AC7 + 4*(u-6), mreg(kb), v(SB + 8*(nst % 2), 8), IDX)); nst += 1
    slots = mkslots(ms)
    Lretry, Lcont = A.label("Bretry"), A.label("Bcont")
    last = {u: max(i for i, x in enumerate(seq) if x[0] == u) for u in range(8)}
    first = {u: min(i for i, x in enumerate(seq) if x[0] == u) for u in range(8)}
    tail = []
    for u in range(NR):
        r = ACC + 4*(u % 2)
        ops = cv(r, u) + ([f"v_mov_b32 {v(r+j)}, 0" for j in range(4)] if u + 2 < NR else [])
        st = last[u] + 2
        if st + 3 > len(slots): tail += ops; continue
        lim = first[u+2] - 2 if u + 2 < NR else len(slots) - 1
        for i, o in enumerate(ops): slots[min(st + i, lim)]['valu'].append(o)
    if pv:
        sts = [i for i, x in enumerate(seq) if x[0] >= 6]
        rd = lambda n: [f"ds_read_b128 {v(SB + 8*(n % 2) + 4*hi, 4)}, {v(VL16)} offset:{BW7 + (2*w + seq[sts[n]][0] - 6)*14336 + seq[sts[n]][1]*2048 + hi*1024}" for hi in range(2)]
        for n, i in enumerate(sts):
            if n + 2 < 14: slots[i+1]['pre'] += rd(n+2)
            if n >= 2: slots[i-1]['pre'].append(f"s_waitcnt lgkmcnt({2 if n + 1 < 14 else 0})")
        for hh in range(VPRE, 0 if X_NOVOX else 16):
            sl = 2 + VOXS*(hh - VPRE)
            if hh % 4 == 0: slots[sl]['pre'].append(f"s_add_u32 {s(S_TMP)}, {s(S_VOX)}, {1024*hh}")
            slots[sl]['pre'].append(voxld(hh))
        tail += cv(AC7, 6) + cv(AC7+4, 7)
        if FULL: slots[30 if not VPRE else 0]['pre'] += [f"s_add_u32 {s(S_TMP2)}, {s(S_FR)}, 16384", f"buffer_load_dword {v(TMP2)}, off, {s(WS,4)}, {s(S_TMP2)} sc1"]
        FR_ = list(range(28, 28 + FPD))
        for i, r in enumerate(FR_):
            if w == 0: slots[55 - 3*(FPD - 1 - i)]['pre'].append(flag_ld(r, VF2, S_P2, 0))
        for r in range(4): slots[40 + r]['valu'].append(f"v_mov_b32 {v(PACC+r)}, 0")
    if not pv and BTOUCH:
        if FULL:
            slots[BT0]['pre'] += [f"v_readfirstlane_b32 {s(S_TMP2)}, {v(TMP2)}", f"s_add_u32 {s(S_TMP)}, {s(S_VOX)}, {458752*BTA + 8192}", f"s_cmp_eq_u32 {s(S_TMP2)}, 15", f"s_cselect_b32 {s(S_TMP)}, {s(S_TMP)}, 0x40000000",
                                  f"s_add_u32 {s(S_TMP2)}, {s(S_FR)}, {16384*(BTA+1)}", f"buffer_load_dword {v(TMP2)}, off, {s(WS,4)}, {s(S_TMP2)} sc1"]
        else: slots[BT0]['pre'].append(f"s_add_u32 {s(S_TMP)}, {s(S_VOX)}, {458752*BTA + 8192}")
        slots[BT0]['pre'].append(f"buffer_load_dword {v(62)}, {v(VF2)}, {s(WS,4)}, {s(S_TMP)} offen sc1")
    if FULL and w == EXW:
        A(f"ds_read_b128 {v(28,4)}, {v(32)} offset:{BMIMG}", f"s_add_u32 {s(S_EM)}, {s(S_MEM)}, s70")
        slots[3]['pre'].append(f"buffer_store_dwordx4 {v(28,4)}, {v(32)}, {s(WS,4)}, {s(S_EM)} offen sc1")
    where = [i for i, sl in enumerate(slots) if any(o.startswith(f"v_cvt_pk_bf16_f32 {v(VP)},") for o in sl['valu'])][0]
    slots[where]['valu'].insert(0, f"v_cmp_u_f32 vcc, {v(ACC)}, {v(ACC+2)}")
    slots[where+2]['pre'] += [f"s_cbranch_vccnz {Lretry}", f"{Lcont}:"]
    seen = 0
    A("s_waitcnt lgkmcnt(6)")
    for i, (u, kb) in enumerate(seq[:10]):
        nxt = seq[i+1]
        if nxt[0] == 0 and nxt[1] > seen:
            seen = nxt[1]
            extra = sum(1 for sl in slots[:i+1] for o in sl['pre'] if o.startswith("ds_read"))
            slots[i]['pre'].append(f"s_waitcnt lgkmcnt({6 - seen + extra})")
    if profile and FSD:
        for k in range(5):
            if FS0 + k*FSD < 56: slots[FS0 + k*FSD]['pre'].insert(0, f"s_memtime {s(S_PROF+4+2*k,2)}")
    if X_NOV:
        for sl in slots: sl['m'] = ""
    emit_slots(A, slots)
    if PACCUM: prof(A, 7, profile)
    A("s_nop 7", tail)
    if not pv:
        A(f"ds_write_b128 {v(VLV)}, {v(VP,4)}", f"ds_write_b128 {v(VLV)}, {v(VP+4,4)} offset:1024", "s_waitcnt lgkmcnt(0)")
    A("s_barrier")
    if not PB2: prof(A, 2, profile)
    if not pv:
        A("s_barrier", "s_barrier", nops(DB))
    else:
        A(f"ds_read_b128 {v(VP2,4)}, {v(VLV)}", f"ds_read_b128 {v(VP2+4,4)}, {v(VLV)} offset:1024")
        A(f"s_add_u32 s60, {s(S_MEMN)}, {s(S_SLOW)}", f"s_add_u32 s61, {s(S_P2)}, {s(S_SLOW)}", "s_xor_b32 s62, s60, 0x40000000", "s_xor_b32 s63, s61, 0x40000000")
        if w == 0:
            flag_poll(A, FR_, VF2, S_P2, 0, abort, "B", primed=True)
            A(f"buffer_store_dword {v(IDX)}, {v(VF1)}, {s(WS,4)}, s63 offen")
            A(nops(D2))
        else: A("s_barrier")
        prof(A, 0, profile)
        porder = [(c*4 + i) % 8 for i in range(8)] + [8, 9]
        pld = lambda k: f"buffer_load_dwordx4 {v(4*k,4)}, {v(VL16)}, {s(WS,4)}, {s([S_P, S_X, S_P2][k//4])} offen offset:{1024*(k%4)} sc1"
        bop = lambda k: v(VOX + 8*k, 8) if k < 8 else v(VP if k == 8 else VP2, 8)
        Lpp, Lbad = A.label("pp"), A.label("bad")
        for i, k in enumerate(porder):
            A(pld(k))
            if w == 0 and i == BREL: A("s_barrier")
        A(f"{Lpp}:")
        if profile and not FSD: A(f"s_add_u32 {s(S_PROF+10)}, {s(S_PROF+10)}, 1")
        A("s_waitcnt lgkmcnt(0)")
        for i, k in enumerate(porder):
            A(f"s_waitcnt vmcnt({9-i})")
            if i == 0: prof(A, 3, profile)
            if i == 9 and PB2: prof(A, 1, profile)
            A(smf(PACC, 4*k, bop(k), IDX))
        Lgood = A.label("good")
        a, b = PACC, PACC+2
        A(f"s_mov_b64 vcc, {s(S_ODD,2)}", "s_nop 6")
        A(f"v_add_f32 {v(a)}, {v(a)}, {v(a+1)}", f"v_add_f32 {v(b)}, {v(b)}, {v(b+1)}", f"v_cmp_u_f32 {s(68,2)}, {v(a)}, {v(b)}",
          f"v_cndmask_b32_dpp {v(b+1)}, {v(a)}, {v(b)}, vcc quad_perm:[1,0,3,2] row_mask:0xf bank_mask:0xf", "s_not_b64 vcc, vcc",
          f"v_cndmask_b32_dpp {v(a+1)}, {v(b)}, {v(a)}, vcc quad_perm:[1,0,3,2] row_mask:0xf bank_mask:0xf",
          f"s_cmp_lg_u64 {s(68,2)}, 0", f"v_cvt_pk_bf16_f32 {v(R0)}, {v(a+1)}, {v(b+1)}", f"s_cbranch_scc1 {Lbad}", f"{Lgood}:",
          f"buffer_store_dword {v(R0)}, {v(VST)}, {s(WS,4)}, s62 offen")
        A(f"buffer_store_dword {v(R0)}, {v(VST)}, {s(WS,4)}, s60 offen sc1", f"buffer_store_dword {v(IDX)}, {v(VF1)}, {s(WS,4)}, s61 offen sc1" if w == 0 else "")
        if FULL:
            Lq = A.label("Bq")
            A(f"s_add_u32 {s(S_EM)}, {s(S_MEMN)}, {ALT:#x}", f"s_cmp_lg_u32 {s(S_STEP)}, {NSTEPS-1}", f"s_cbranch_scc1 {Lq}", f"buffer_store_dword {v(R0)}, {v(VST)}, {s(WS,4)}, {s(S_EM)} offen sc1", f"{Lq}:")
        prof(A, 4, profile)
        if VPB: voxpre(458752)
        A("s_barrier")
        if not VPB: voxpre(458752)
        A(nops(max(0, DB - (0 if VPB else 4*VPRE))))
    if profile and PACCUM: prof_acc(A, 8)
    elif profile:
        prof_flush(A, 6, TMP, TMP2, 0)
        A(f"s_mov_b32 {s(S_PROF+10)}, 0")
    A(f"s_add_u32 {s(S_MEM)}, {s(S_MEM)}, 8192", f"s_add_u32 {s(S_MEM2)}, {s(S_MEM2)}, 8192", f"s_add_u32 {s(S_MEMN)}, {s(S_MEMN)}, 8192",
      f"s_add_u32 {s(S_P)}, {s(S_P)}, 16384", f"s_add_u32 {s(S_P2)}, {s(S_P2)}, 16384", f"s_add_u32 {s(S_X)}, {s(S_X)}, 16384", f"s_add_u32 {s(S_VOX)}, {s(S_VOX)}, {0 if X_FIXVOX else 28*16*1024}",
      f"s_add_u32 {s(S_FR)}, {s(S_FR)}, 16384",
      f"s_add_u32 {s(S_STEP)}, {s(S_STEP)}, 1", f"s_cmp_lt_u32 {s(S_STEP)}, {NSTEPS}", f"s_cbranch_scc1 {Lstep}")
    if profile and PACCUM: prof_acc_out(A, 8)
    if STAMP: A("v_mov_b32 v0, s58", "v_mov_b32 v1, s59", "s_mov_b64 exec, 1", f"buffer_atomic_add v0, off, {s(DBG,4)}, 0 offset:56", f"buffer_atomic_add v1, off, {s(DBG,4)}, 0 offset:48", "s_mov_b64 exec, -1")
    if STAMP and w == 0 and not FULL:
        A("s_memtime s[56:57]", "s_waitcnt lgkmcnt(0)", "s_sub_u32 s56, s56, s54", "v_mov_b32 v1, s56",
          f"s_lshl_b32 {s(S_TMP)}, {s(S_ROLE)}, 2", f"buffer_store_dword v1, off, {s(DBG,4)}, {s(S_TMP)} offset:128")
    A("s_endpgm")
    A(f"{Lretry}:")
    for kb in range(7): A(chk4(TMP, mreg(kb), kb == 0))
    A(f"v_cmp_eq_u32 vcc, -1, {v(TMP)}", f"s_cbranch_vccz {Lcont}", "s_waitcnt lgkmcnt(0)", "s_barrier")
    if STAMP: A("s_add_u32 s58, s58, 1")
    timeout_step(A, Lpoll, abort)
    if pv:
        A(f"{Lbad}:")
        for k in range(10): A(chk4(TMP, 4*k, k == 0))
        A(f"v_min_u32 {v(R0)}, -2, {v(R0)}", f"v_cmp_eq_u32 vcc, -1, {v(TMP)}", f"s_cbranch_vccz {Lgood}")
        if STAMP: A("s_add_u32 s59, s59, 1")
        for k in porder: A(pld(k))
        for r in range(4): A(f"v_mov_b32 {v(PACC+r)}, 0")
        timeout_step(A, Lpp, abort)

def role_PF(A, abort):
    import prep
    WFL = [' sc1', '', ' nt', ' sc1 nt'][WFI]
    AHEAD = PFA
    A("; ---------------- prefetcher")
    if FULL:
        prep.wait_tiles(A, 16, 16, abort, "P", S_TO, 4, 5)
        prep.wait_counters(A, 0, 32, abort, "P", S_TO, 4, 5, sleep=30)
    A("v_and_b32 v3, 63, v0", "v_lshlrev_b32 v1, 7, v3", "v_mov_b32 v2, 0", "v_mov_b32 v12, 0")
    A(f"s_sub_u32 {s(S_TMP2)}, {s(S_ROLE)}, 30", f"s_lshl_b32 {s(S_TMP2)}, {s(S_TMP2)}, 2", f"s_add_u32 {s(S_TMP2)}, {s(S_TMP2)}, {s(S_WAVE)}")
    A(f"s_lshl_b32 {s(S_TMP2)}, {s(S_TMP2)}, 13")
    A(f"s_mov_b32 {s(S_STEP)}, 0", f"s_mov_b32 {s(S_TO)}, {TIMEOUT}")
    if FULL:
        A(f"s_mov_b32 {s(S_P)}, {PF_OFF + FROFF:#x}")
    A(f"s_add_u32 {s(S_X)}, {s(S_TMP2)}, {XS_OFF:#x}", f"s_mov_b32 {s(S_P2)}, 28672")
    L1, L2 = A.label("pf1"), A.label("pf2")
    A(f"s_cmp_lt_u32 {s(S_TMP2)}, {4*8192}", f"s_cbranch_scc1 {L2}")
    A(f"s_mov_b32 {s(S_X)}, {MEMF_OFF + 8192:#x}", f"s_mov_b32 {s(S_P2)}, 8192")
    A(f"s_cmp_eq_u32 {s(S_TMP2)}, {4*8192}", f"s_cbranch_scc1 {L2}")
    A(f"s_and_b32 {s(S_X)}, {s(S_TMP2)}, 8192", f"s_add_u32 {s(S_X)}, {s(S_X)}, {PF_OFF:#x}", f"s_mov_b32 {s(S_P2)}, 16384")
    A(f"{L2}:")
    A(f"s_lshl_b32 {s(S_VOX)}, {s(S_TMP2)}, {BTOUCH}", f"s_add_u32 {s(S_VOX)}, {s(S_VOX)}, {VOX_OFF:#x}", f"s_cmp_eq_u32 {s(S_TMP2)}, {7*8192}",
      f"s_cselect_b32 {s(S_X)}, 0x40000000, {s(S_X)}", f"s_mov_b32 {s(S_MEM)}, {MEMF_OFF - AHEAD*8192:#x}")
    Lstep, Lpoll, Lgo = A.label("pfstep"), A.label("pfpoll"), A.label("pfgo")
    if FULL and CODEPF:
        Lc0, Lc1 = A.label("pfw"), A.label("pfg")
        A(f"{Lc0}:", f"buffer_load_dword v12, off, {s(WS,4)}, {s(S_P)} sc1", "s_waitcnt vmcnt(0)", "v_cmp_eq_u32 vcc, -1, v12", f"s_cbranch_vccz {Lc1}", "s_sleep 8")
        timeout_step(A, Lc0, abort)
        A(f"{Lc1}:", "s_getpc_b64 s[30:31]", "Lpf_pc:", "s_sub_u32 s30, s30, Lpf_pc-Lteam_code", "s_subb_u32 s31, s31, 0", f"v_add_u32 v13, {s(S_TMP2)}, v1", "v_min_u32 v13, Lpf_pc-Lteam_code, v13",
          "global_load_dword v14, v13, s[30:31]")
    A("v_mov_b32 v4, -1")
    A(f"{Lstep}:", f"s_cmp_lt_u32 {s(S_STEP)}, {AHEAD+1}", f"s_cbranch_scc1 {Lgo}")
    A("v_cmp_eq_u32 vcc, -1, v4", f"s_cbranch_vccz {Lgo}")
    A(f"{Lpoll}:", f"buffer_load_dword v4, v2, {s(WS,4)}, {s(S_MEM)} offen sc1", "s_waitcnt vmcnt(0)", "v_cmp_eq_u32 vcc, -1, v4", f"s_cbranch_vccz {Lgo}", "s_sleep 2")
    timeout_step(A, Lpoll, abort)
    A(f"{Lgo}:")
    if FULL:
        Lc, Lcg = A.label("pfc"), A.label("pfcg")
        A("v_cmp_ne_u32 vcc, 15, v12", f"s_cbranch_vccz {Lcg}")
        A(f"{Lc}:", f"buffer_load_dword v12, off, {s(WS,4)}, {s(S_P)} sc1", "s_waitcnt vmcnt(0)", "v_cmp_ne_u32 vcc, 15, v12", f"s_cbranch_vccz {Lcg}", "s_sleep 2")
        timeout_step(A, Lc, abort)
        A(f"{Lcg}:", f"s_add_u32 {s(S_P)}, {s(S_P)}, 16384", f"buffer_load_dword v12, off, {s(WS,4)}, {s(S_P)} sc1")
    if PFW:
        Lw1, Lw2 = A.label("pw1"), A.label("pw2")
        A(f"s_mov_b32 s70, {s(S_WAVE)}", f"{Lw1}:", "s_sub_u32 s70, s70, 1", f"s_cbranch_scc1 {Lw2}", f"s_sleep {PFW}", f"s_branch {Lw1}", f"{Lw2}:")
    A(f"s_add_u32 {s(S_MEM)}, {s(S_MEM)}, 8192", f"buffer_load_dword v4, v2, {s(WS,4)}, {s(S_MEM)} offen sc1")
    A(f"buffer_load_dword v5, v1, {s(WS,4)}, {s(S_X)} offen sc1")
    for j in range(PF_VOX):
        if PFS: A(f"s_sleep {PFS}")
        A(f"s_add_u32 {s(S_TMP)}, {s(S_VOX)}, {(65536 << BTOUCH)*j}", f"buffer_load_dword v{6+j}, v1, {s(WS,4)}, {s(S_TMP)} offen sc1")
    A(f"s_add_u32 {s(S_X)}, {s(S_X)}, {s(S_P2)}", f"s_add_u32 {s(S_VOX)}, {s(S_VOX)}, {28*16*1024}",
      f"s_waitcnt vmcnt({1 + PF_VOX})",
      f"s_add_u32 {s(S_STEP)}, {s(S_STEP)}, 1", f"s_cmp_lt_u32 {s(S_STEP)}, {NSTEPS + 1}", f"s_cbranch_scc1 {Lstep}", "s_endpgm")

PF_VOX = 2
def rec_kernel(A, name, profile=False):
    kernel_begin(A, name)
    Lexit = A.label("exit")
    A("s_cmp_ge_u32 s2, 256", f"s_cbranch_scc1 {Lexit}")
    srd(A, WS, 96, 0x10000000); srd(A, XB, 24, 1835008); srd(A, DBG, 88, 256)
    A(f"s_getreg_b32 {s(S_TMP)}, hwreg(HW_REG_XCC_ID)", f"s_and_b32 {s(S_TMP)}, {s(S_TMP)}, 15", f"s_cmp_lg_u32 {s(S_TMP)}, 0", f"s_cbranch_scc1 {Lexit}")
    A("v_lshrrev_b32 v1, 6, v0", "s_nop 0", f"v_readfirstlane_b32 {s(S_WAVE)}, v1", "s_waitcnt lgkmcnt(0)")
    Lw = A.label("notw0")
    A(f"s_cmp_lg_u32 {s(S_WAVE)}, 0", f"s_cbranch_scc1 {Lw}")
    A("v_mov_b32 v1, 1", "v_mov_b32 v2, 0", "s_mov_b64 exec, 1",
      f"buffer_atomic_add v1, v2, {s(DBG,4)}, 0 offen sc0", "s_waitcnt vmcnt(0)", "ds_write_b32 v2, v1 offset:32768", "s_waitcnt lgkmcnt(0)", "s_mov_b64 exec, -1")
    A(f"{Lw}:", "s_barrier", "v_mov_b32 v2, 0", "ds_read_b32 v1, v2 offset:32768", "s_waitcnt lgkmcnt(0)", f"v_readfirstlane_b32 {s(S_ROLE)}, v1", "s_barrier")
    LPF = A.label("rolePF")
    A(f"s_cmp_ge_u32 {s(S_ROLE)}, 32", f"s_cbranch_scc1 {Lexit}")
    A(f"s_cmp_ge_u32 {s(S_ROLE)}, 30", f"s_cbranch_scc1 {LPF}")
    LB = A.label("roleB")
    A(f"s_cmp_ge_u32 {s(S_ROLE)}, 16", f"s_cbranch_scc1 {LB}")
    for R, fn in (("A", role_A), ("B", role_B)):
        if R == "B": A(f"{LB}:")
        Ls = [A.label(f"{R}w{w}") for w in range(4)]
        for w in range(1, 4):
            A(f"s_cmp_eq_u32 {s(S_WAVE)}, {w}", f"s_cbranch_scc1 {Ls[w]}")
        for w in range(4):
            A(f"{Ls[w]}:")
            fn(A, w, Lexit, profile)
    A(f"{LPF}:")
    role_PF(A, Lexit)
    A(f"{Lexit}:", "s_endpgm")
    A(kernel_desc(name))

def generate(path, profile=False, **kw):
    g = globals(); saved = {k: g[k] for k in kw}
    g.update(kw)
    A = Asm()
    A("; @launch kernel=rec_kernel grid=(256,1,1) block=(256,1,1) lds=131072")
    A('.amdgcn_target "amdgcn-amd-amdhsa--gfx950"', ".text")
    rec_kernel(A, "rec_kernel", profile=bool(profile))
    t = A.text().replace("    ; @launch", "; @launch")
    if profile == 2: t = t.replace("s_memtime", "s_memrealtime")
    if LDFL == 1: t = t.replace(" sc1\n", " nt\n")
    if LDFL == 2: t = t.replace(" sc1\n", " sc0 sc1\n")
    open(path, "w").write(t)
    g.update(saved)

if __name__ == "__main__":
    import sys
    generate(sys.argv[1], len(sys.argv) > 2)
```

```python
import sys
sys.argv = [sys.argv[0], "x", "final"]
import gen
gen.generate("v0.s", STAMP=0, TL=1, CPB=5)
t = open("v0.s").read()
a = t.index("    s_load_dwordx2 s[84:85], s[0:1], 96"); b = t.index("Ltl2_", a)
stub = """    s_waitcnt lgkmcnt(0)
    s_mov_b64 exec, -1
    s_sub_u32 s98, s98, s90
    s_sub_u32 s92, s92, s90
    s_sub_u32 s94, s94, s90
    s_sub_u32 s96, s96, s90
    v_mov_b32 v4, s98
    v_mov_b32 v5, s92
    v_mov_b32 v6, s94
    v_mov_b32 v7, s96
    s_lshl_b32 s88, s100, 2
    s_add_u32 s88, s88, s16
    s_cmp_eq_u32 s88, 3
    s_cselect_b32 s89, 44, 0x40000000
    buffer_store_dwordx4 v[4:7], off, s[12:15], s89
    s_cmp_eq_u32 s88, 576
    s_cselect_b32 s89, 60, 0x40000000
    buffer_store_dword v7, off, s[12:15], s89
    s_cmp_eq_u32 s88, 128
    s_cselect_b32 s89, 32, 0x40000000
    buffer_store_dword v5, off, s[12:15], s89
"""
t = t[:a] + stub + t[b:]
open("v0.s", "w").write(t)
```

```python
from asm import *
from model import *

WS, XB, DBG = 4, 8, 12
S_WAVE, S_ROLE, S_STEP, S_MEM, S_MEM2, S_P, S_X, S_VOX, S_TO, S_TMP, S_TMP2, S_P2, S_MEMN = range(16, 29)
S_PROF = 30
NSTEPS = 63
PACCUM = 0
PMASK = 255
TIMEOUT = 40000

def smf(d, a, b, idx, hi=False):
    return f"v_smfmac_f32_16x16x64_bf16 {v(d,4)}, {v(a,4)}, {b}, {v(idx)}" + (" abid:1" if hi else "")

def wreg(f, n=8, sub=0):
    return a_(8*f + sub, n) if f < 32 else v(120 + 8*(f-32) + sub, n)

def lane_consts(A, VL, VG, VN):
    A(f"v_and_b32 {v(VL)}, 63, v0", f"v_lshrrev_b32 {v(VG)}, 4, {v(VL)}", f"v_and_b32 {v(VN)}, 15, {v(VL)}")

def mem_lane_off(A, dst, VG, VN, t):
    A(f"v_lshlrev_b32 {v(dst)}, 8, {v(VG)}", f"v_lshl_add_u32 {v(dst)}, {v(VN)}, 4, {v(dst)}")

def idx_const(A, dst, VN, t):
    A(f"v_and_b32 {v(t)}, 1, {v(VN)}", f"v_mul_u32_u24 {v(dst)}, 0xAAAA, {v(t)}",
      f"v_lshrrev_b32 {v(t)}, 3, {v(VN)}", f"v_mul_u32_u24 {v(t)}, 0xAAAA, {v(t)}",
      f"v_lshl_add_u32 {v(dst)}, {v(t)}, 16, {v(dst)}", f"v_add_u32 {v(dst)}, 0x44444444, {v(dst)}")

def memload(dst, voff, kb):
    so = S_MEM if kb < 4 else S_MEM2
    return f"buffer_load_dwordx4 {v(dst,4)}, {v(voff)}, {s(WS,4)}, {s(so)} offen offset:{(kb%4)*1024} sc1"

def chk4(t, r, first=True):
    if first:
        return [f"v_max3_u32 {v(t)}, {v(r)}, {v(r+1)}, {v(r+2)}", f"v_max_u32 {v(t)}, {v(t)}, {v(r+3)}"]
    return [f"v_max3_u32 {v(t)}, {v(t)}, {v(r)}, {v(r+1)}", f"v_max3_u32 {v(t)}, {v(t)}, {v(r+2)}, {v(r+3)}"]

def timeout_step(A, again, abort):
    A(f"s_sub_u32 {s(S_TO)}, {s(S_TO)}, 1", f"s_cbranch_scc1 {abort}", f"s_branch {again}")

def prof(A, slot, on):
    if on and (PMASK >> slot) & 1:
        A(f"s_memtime {s(S_PROF+2*slot,2)}")

def prof_flush(A, n, vt, vz, role_wave_off):
    A("s_waitcnt lgkmcnt(0)")
    A(f"s_lshl_b32 {s(S_TMP)}, {s(S_ROLE)}, 2", f"s_add_u32 {s(S_TMP)}, {s(S_TMP)}, {s(S_WAVE)}", f"s_lshl_b32 {s(S_TMP)}, {s(S_TMP)}, 6",
      f"s_add_u32 {s(S_TMP)}, {s(S_TMP)}, {s(S_STEP)}", f"s_lshl_b32 {s(S_TMP)}, {s(S_TMP)}, 6", f"s_add_u32 {s(S_TMP)}, {s(S_TMP)}, {PROF_OFF:#x}")
    A(f"v_mov_b32 {v(vz)}, 0")
    for k in range(n):
        A(f"v_mov_b32 {v(vt)}, {s(S_PROF+2*k)}", f"buffer_store_dword {v(vt)}, {v(vz)}, {s(WS,4)}, {s(S_TMP)} offen offset:{4*k}")

def prof_acc(A, n):
    A("s_memtime s[72:73]", "s_waitcnt lgkmcnt(0)")
    for k in range(n):
        A(f"s_sub_u32 {s(S_TMP)}, {s(S_PROF+2*k)}, s71", f"s_add_u32 s{74+k}, s{74+k}, {s(S_TMP)}")
    A(f"s_sub_u32 {s(S_TMP)}, s72, s71", f"s_add_u32 s{74+n}, s{74+n}, {s(S_TMP)}", "s_mov_b32 s71, s72" if PACCUM == 1 else "s_mov_b32 s71, 0")
    Lz = A.label("pz")
    A(f"s_cmp_lg_u32 {s(S_STEP)}, 12", f"s_cbranch_scc1 {Lz}")
    for k in range(n+1): A(f"s_mov_b32 s{74+k}, 0")
    A(f"{Lz}:")
def prof_acc_out(A, n):
    A(f"s_lshl_b32 {s(S_TMP)}, {s(S_ROLE)}, 2", f"s_add_u32 {s(S_TMP)}, {s(S_TMP)}, {s(S_WAVE)}", f"s_lshl_b32 {s(S_TMP)}, {s(S_TMP)}, 6", f"s_add_u32 {s(S_TMP)}, {s(S_TMP)}, {PROF_OFF:#x}")
    for k in range(n+1):
        A(f"v_mov_b32 v0, s{74+k}", f"buffer_store_dword v0, off, {s(WS,4)}, {s(S_TMP)} offset:{4*k}")

def emit_slots(A, slots):
    for sl in slots:
        A(sl['m']); A(sl['pre']); A(sl['valu']); A(sl['post'])

TIMG = 0
TW = 1808
MIMG = 8192
XIMG = 16384
RS = 256
XSL = 20480
A_SLEEP = 0
PFS = 0
PFW = 0
TSP = 2
VPB = 0
XEARLY = 1
XG1 = 14
XN1 = 8
TPOST = 0
BREL = 9
ROT = 0
CODEPF = 9
CPB = 5
RM2 = 0
ORD = 0
X_FIXVOX = 0
X_XSN = 14
PG1 = 0
PG2 = 0
WFI = 0
FS0 = 0
FSD = 0
B1S = 38
B2S = 47
TRN = 4
X_NOPM = 0
PFA = 3
ATOUCH = 3
VPRE = 0
BTOUCH = 0
BT0 = 1
BTA = 1
TCH0 = 14
TAHEAD = 1
TGATE = 2
XPRE = 14
XPG = 18
X_NOVOX = 0
X_NOV = 0
FPD = 5
PGAP = 30
WARM = 0
B0S = 16
LG = 40
P2W = 10
F2AT = 0
XSCR = 0
EXW = 6
TLM = 0
FROFF = 14336
F1AT = 2
FULL = 0
PB2 = 0
LDFL = 0
F1GO = 1
VOXS = 3
STAMP = 1
XS0 = 10
XSN = 28
D1 = 84
D2 = 18
F2D = 40
F2OFF = 10240
F1OFF = 12288
APW = 2
BPW = 3
F1W = 2
X_NODMA = 0
X_NOH = 0
X_NOTR = 0
X_NOCONV = 0
X_NOB1 = 0
B_SLEEP_M = 4
B_SLEEP_P = 0

def nops(n):
    out = []
    while n > 0:
        k = min(n, 16); out.append(f"s_nop {k-1}"); n -= k
    return out

def flag_ld(r, voff, soff, off):
    return f"buffer_load_dword {v(r)}, {v(voff)}, {s(WS,4)}, {s(soff)} offen offset:{off} sc1"
def flag_poll(A, regs, voff, soff, off, abort, tag, primed=False):
    Lp, Lgo = A.label(tag + "fp"), A.label(tag + "go")
    ld = lambda r: flag_ld(r, voff, soff, off)
    n = len(regs)
    if not primed:
        for r in regs: A(ld(r), f"s_nop {48 // n - 1}")
    A(f"{Lp}:")
    for r in regs:
        A(f"s_waitcnt vmcnt({n-1})", f"v_cmp_eq_u32 vcc, -1, {v(r)}", f"s_cbranch_vccz {Lgo}", ld(r))
    timeout_step(A, Lp, abort)
    A(f"{Lgo}:")

def mkslots(ms):
    return [dict(m=m, pre=[], valu=[], post=[]) for m in ms]

S_SLOW = 47
def read_mode(A, vt):
    if FULL:
        A(f"buffer_load_dword {v(vt)}, off, {s(DBG,4)}, 0 sc1", "s_waitcnt vmcnt(0)", f"v_readfirstlane_b32 {s(S_SLOW)}, {v(vt)}", f"s_cmp_ge_u32 {s(S_SLOW)}, 32", f"s_cselect_b32 {s(S_SLOW)}, 0x40000000, 0")
    else:
        A(f"s_mov_b32 {s(S_SLOW)}, 0x40000000")

def role_A(A, w, abort, profile=False):
    import prep
    WFL = [' sc1', '', ' nt', ' sc1 nt'][WFI]
    MEMR, ACC, HT = 0, 28, 56
    IDX, VMEM, VTW, VTR, VH, VX, TMP, TMP2 = range(112, 120)
    VG, VN, VL = 1, 2, 3
    ko = [(w + i) % 3 for i in range(3)] + [3, 4, 5, 6]
    lane_consts(A, VL, VG, VN)
    idx_const(A, IDX, VN, TMP)
    mem_lane_off(A, VMEM, VG, VN, TMP)
    A(f"v_lshlrev_b32 {v(VTW)}, 4, {v(VN)}", f"v_lshl_add_u32 {v(VTW)}, {v(VG)}, 2, {v(VTW)}", f"v_add_u32 {v(VTW)}, {TIMG + w*TW}, {v(VTW)}")
    A(f"v_and_b32 {v(TMP)}, 1, {v(VG)}", f"v_mul_u32_u24 {v(VTR)}, {2*TW}, {v(TMP)}",
      f"v_lshrrev_b32 {v(TMP)}, 3, {v(VN)}", f"v_lshl_add_u32 {v(VTR)}, {v(TMP)}, 7, {v(VTR)}",
      f"v_bfe_u32 {v(TMP)}, {v(VN)}, 1, 1", f"v_lshl_add_u32 {v(VTR)}, {v(TMP)}, 6, {v(VTR)}",
      f"v_lshrrev_b32 {v(TMP)}, 1, {v(VG)}", f"v_lshl_add_u32 {v(VTR)}, {v(TMP)}, 5, {v(VTR)}",
      f"v_bfe_u32 {v(TMP)}, {v(VN)}, 2, 1", f"v_lshl_add_u32 {v(VTR)}, {v(TMP)}, 4, {v(VTR)}",
      f"v_and_b32 {v(TMP)}, 1, {v(VN)}", f"v_lshl_add_u32 {v(VTR)}, {v(TMP)}, 3, {v(VTR)}")
    if TIMG: A(f"v_add_u32 {v(VTR)}, {TIMG}, {v(VTR)}")
    if w < 3:
        A(f"v_lshlrev_b32 {v(VX)}, 10, {v(VG)}",
          f"v_lshl_add_u32 {v(VX)}, {v(VN)}, {3 if w < 2 else 2}, {v(VX)}", f"v_add_u32 {v(VX)}, {XIMG + (4*w if w < 2 else 128)}, {v(VX)}")
    if w < 2:
        A(f"v_lshlrev_b32 {v(VH)}, 4, {v(VL)}")
    elif w == 2:
        A(f"v_mul_u32_u24 {v(VH)}, 1792, {v(VG)}", f"v_and_b32 {v(TMP)}, 7, {v(VN)}", f"v_lshl_add_u32 {v(VH)}, {v(TMP)}, 5, {v(VH)}",
          f"v_add_u32 {v(VH)}, {MIMG}, {v(VH)}")
    else:
        PXO, PMO = HT + 40, HT + 41
        A(f"v_lshrrev_b32 {v(TMP2)}, 3, {v(VL)}", f"v_mul_u32_u24 {v(VH)}, {RS}, {v(TMP2)}", f"v_and_b32 {v(TMP)}, 7, {v(VL)}",
          f"v_lshl_add_u32 {v(VX)}, {v(TMP)}, 4, {v(VH)}", f"v_add_u32 {v(VX)}, {XIMG}, {v(VX)}",
          f"v_lshl_add_u32 {v(VH)}, {v(TMP)}, 2, {v(VH)}", f"v_add_u32 {v(VH)}, {XIMG + 128}, {v(VH)}")
        A(f"v_and_b32 {v(TMP)}, 3, {v(VL)}", f"v_lshlrev_b32 {v(PXO)}, 3, {v(TMP)}", f"v_lshl_add_u32 {v(PXO)}, {v(TMP2)}, 5, {v(PXO)}",
          f"v_bfe_u32 {v(TMP)}, {v(VL)}, 2, 1", f"v_lshl_add_u32 {v(PXO)}, {v(TMP)}, 8, {v(PXO)}",
          f"s_lshl_b32 {s(S_TMP)}, {s(S_ROLE)}, 9", f"v_add_u32 {v(PXO)}, {s(S_TMP)}, {v(PXO)}")
        A(f"v_lshlrev_b32 {v(PMO)}, 5, {v(TMP2)}",
          f"v_bfe_u32 {v(TMP)}, {v(VL)}, 2, 1", f"v_lshl_add_u32 {v(PMO)}, {v(TMP)}, 8, {v(PMO)}",
          f"v_bfe_u32 {v(TMP)}, {v(VL)}, 1, 1", f"v_lshl_add_u32 {v(PMO)}, {v(TMP)}, 3, {v(PMO)}",
          f"s_lshr_b32 {s(S_TMP)}, {s(S_ROLE)}, 2", f"s_lshl_b32 {s(S_TMP)}, {s(S_TMP)}, 9",
          f"s_and_b32 {s(S_TMP2)}, {s(S_ROLE)}, 1", f"s_lshl_b32 {s(S_TMP2)}, {s(S_TMP2)}, 4", f"s_add_u32 {s(S_TMP)}, {s(S_TMP)}, {s(S_TMP2)}",
          f"s_bfe_u32 {s(S_TMP2)}, {s(S_ROLE)}, 0x10001", f"s_lshl_b32 {s(S_TMP2)}, {s(S_TMP2)}, 2", f"s_add_u32 {s(S_TMP)}, {s(S_TMP)}, {s(S_TMP2)}",
          f"s_add_u32 {s(S_TMP)}, {s(S_TMP)}, 8192", f"v_add_u32 {v(PMO)}, {s(S_TMP)}, {v(PMO)}")
        A(f"v_and_b32 {v(TMP)}, 1, {v(VL)}", f"v_lshl_add_u32 {v(PMO)}, {v(TMP)}, 30, {v(PMO)}")
    if w == APW:
        A(f"v_min_u32 {v(TMP2)}, 13, {v(VL)}", f"v_lshlrev_b32 {v(TMP2)}, 2, {v(TMP2)}", f"s_lshr_b32 {s(S_TMP)}, {s(S_ROLE)}, 2", f"s_lshl_b32 {s(S_TMP)}, {s(S_TMP)}, 8", f"s_add_u32 {s(S_TMP)}, {s(S_TMP)}, {F1OFF}", f"v_add_u32 {v(TMP2)}, {s(S_TMP)}, {v(TMP2)}")
    if w == 3:
        A(f"v_lshlrev_b32 {v(TMP2)}, 7, {v(VL)}", f"s_lshl_b32 {s(S_TMP)}, {s(S_ROLE)}, 2", f"s_add_u32 {s(S_TMP)}, {s(S_TMP)}, {F2OFF}", f"v_add_u32 {v(TMP2)}, {s(S_TMP)}, {v(TMP2)}",
          f"v_cmp_lt_u32 vcc, 13, {v(VL)}", f"v_mov_b32 {v(TMP)}, 0x40000000", "s_nop 0", f"v_cndmask_b32 {v(TMP2)}, {v(TMP2)}, {v(TMP)}, vcc")
    if FULL: prep.wait_tiles(A, s(S_ROLE), 1, abort, "A", S_TO, 4, 5)
    A(f"v_lshlrev_b32 {v(TMP)}, 4, {v(VL)}")
    A(f"s_mul_i32 {s(S_TMP)}, {s(S_ROLE)}, {28*14336}", f"s_add_u32 {s(S_TMP)}, {s(S_TMP)}, {WA_OFF + 7*w*14336}")
    for cb in range(7):
        for p in range(7):
            f = cb*7 + p
            off = cb*14336 + ko[p]*2048
            A(f"s_add_u32 {s(S_TMP2)}, {s(S_TMP)}, {off}")
            for hi in range(2):
                A(f"buffer_load_dwordx4 {wreg(f,4,4*hi)}, {v(TMP)}, {s(WS,4)}, {s(S_TMP2)} offen offset:{1024*hi}{WFL}")
        if cb >= 2: A("s_waitcnt vmcnt(28)")
    A(f"s_mov_b32 {s(S_STEP)}, 0", f"s_mov_b32 {s(S_MEM)}, {MEMF_OFF:#x}", f"s_mov_b32 {s(S_MEM2)}, {MEMF_OFF+4096:#x}",
      f"s_mov_b32 {s(S_P)}, {PF_OFF:#x}", f"s_mov_b32 {s(S_X)}, {XS_OFF + 14336*(w%2):#x}", f"s_mov_b32 {s(S_TO)}, {TIMEOUT}")
    Lstep = A.label(f"A{w}step"); Lpoll = A.label(f"A{w}poll")
    def cv_wait(ahead):
        Lc, Lg = A.label("cvp"), A.label("cvg")
        A(f"s_add_u32 {s(S_TMP2)}, {s(S_P)}, {16384*ahead + FROFF}", f"v_cmp_ne_u32 vcc, 15, {v(TMP2)}", f"s_cbranch_vccz {Lg}")
        A(f"{Lc}:", f"buffer_load_dword {v(TMP2)}, off, {s(WS,4)}, {s(S_TMP2)} sc1", "s_waitcnt vmcnt(0)", f"v_cmp_ne_u32 vcc, 15, {v(TMP2)}", f"s_cbranch_vccz {Lg}", "s_sleep 1")
        timeout_step(A, Lc, abort)
        A(f"{Lg}:", f"s_add_u32 {s(S_TMP2)}, {s(S_TMP2)}, 16384", f"buffer_load_dword {v(TMP2)}, off, {s(WS,4)}, {s(S_TMP2)} sc1")
    if FULL: prep.wait_counters(A, 0, 32, abort, "A", S_TO, 4, 5)
    if w == 3: read_mode(A, 4)
    if FULL and w < 2: A(f"v_mov_b32 {v(TMP2)}, 0")
    if w == 3:
        A(f"v_lshlrev_b32 {v(HT+43)}, 7, {v(VL)}", f"s_lshl_b32 {s(S_VOX)}, {s(S_ROLE)}, {13 + BTOUCH}", f"s_add_u32 {s(S_VOX)}, {s(S_VOX)}, {VOX_OFF + 458752*TAHEAD + (65536 << BTOUCH)*PF_VOX:#x}",
          f"s_cmp_lt_u32 {s(S_ROLE)}, {max(0, (56 >> BTOUCH) - 8*PF_VOX - 16*(ATOUCH-1))}", f"s_cselect_b32 s59, {(131072 << BTOUCH)*max(0, ATOUCH-1)}, 0x40000000")
        A(f"s_cmp_lt_u32 {s(S_ROLE)}, 7", f"s_cselect_b32 s61, {ALT:#x}, 0x40000000", f"s_min_u32 {s(S_TMP)}, {s(S_ROLE)}, 6",
          f"s_lshl_b32 {s(S_TMP)}, {s(S_TMP)}, 10", f"v_add_u32 {v(HT+47)}, {s(S_TMP)}, {v(VMEM)}")
    if w < 2:
        A(f"v_lshrrev_b32 v6, 3, {v(VN)}", "v_lshlrev_b32 v7, 4, v6", f"v_and_b32 v6, 3, {v(VN)}", "v_lshl_add_u32 v7, v6, 2, v7", f"v_bfe_u32 v6, {v(VN)}, 2, 1", "v_lshl_add_u32 v7, v6, 1, v7",
          f"v_add_u32 v7, {w}, v7", "v_mul_u32_u24 v7, 896, v7", f"v_mul_u32_u24 v6, 224, {v(VG)}", "v_add_u32 v7, v7, v6")
        for j in range(14): A(f"buffer_load_dwordx4 {v(HT+4*j,4)}, v7, {s(XB,4)}, 0 offen offset:{16*j}")
        A("s_waitcnt vmcnt(0)")
        for k in range(7):
            b = HT + 8*k
            A(f"v_swap_b32 {v(b+1)}, {v(b+2)}", f"v_swap_b32 {v(b+2)}, {v(b+4)}", f"v_swap_b32 {v(b+3)}, {v(b+6)}", f"v_swap_b32 {v(b+6)}, {v(b+5)}")
    A(f"s_mov_b32 {s(S_PROF+16)}, 0")
    if STAMP: A("s_mov_b32 s58, 0")
    if STAMP and w == 3: A("s_waitcnt vmcnt(0)", "s_memrealtime s[50:51]", "s_memtime s[54:55]")
    if TLM: A("s_waitcnt vmcnt(0)", "s_memrealtime s[92:93]")
    for r in range(28): A(f"v_mov_b32 {v(ACC+r)}, 0")
    if w == 3: A("s_mov_b32 s60, 0x40000000" if FULL else f"s_mov_b32 s60, {s(S_VOX)}")
    A(f"{Lstep}:", "s_barrier")
    prof(A, 0, profile)
    Lfail, Lfail2, Lcont2 = A.label("fail"), A.label("fail2"), A.label("cont2")
    dmas = [3 + w] + ([w] if w < 3 else [])
    nd = len(dmas)
    def issue():
        o = [memload(MEMR + 4*p, VMEM, ko[p]) for p in range(3)] + nops(LG)
        for kb in dmas:
            o += [f"s_mov_b32 m0, {MIMG + (kb - kb % 4)*1024}", "s_nop 0", f"buffer_load_dwordx4 {v(VMEM)}, {s(WS,4)}, {s(S_MEM if kb < 4 else S_MEM2)} offen offset:{(kb%4)*1024} sc1 lds"]
        return o
    B0 = B0S
    rdm = lambda p: f"ds_read_b128 {v(MEMR+4*p,4)}, {v(VMEM)} offset:{MIMG + ko[p]*1024}"
    xld = lambda j: f"buffer_load_dwordx4 {v(HT+4*j,4)}, {v(VH)}, {s(WS,4)}, {s(S_TMP)} offen offset:{1024*(j%4)} sc1"
    A(issue())
    A(f"{Lpoll}:")
    if profile: A(f"s_add_u32 {s(S_PROF+16)}, {s(S_PROF+16)}, 256")
    A(f"s_waitcnt vmcnt({2 + nd})")
    prof(A, 1, profile)
    order = [(cb, p) for p in range(3) for cb in range(7)] + [(cb, p) for cb in range(7) for p in range(3, 7)]
    slots = mkslots([smf(ACC+4*cb, MEMR+4*p, wreg(cb*7+p), IDX) for cb, p in order])
    cmp_ = f"v_cmp_eq_u32 vcc, -1, {v(TMP)}"
    c0, c1, c2 = chk4(TMP, MEMR), chk4(TMP, MEMR + 4), chk4(TMP, MEMR + 8, False)
    for i, o in enumerate(c0 + [cmp_]): slots[i]['valu'].append(o)
    slots[4]['pre'].append(f"s_cbranch_vccnz {Lfail}")
    slots[5]['pre'].append(f"s_waitcnt vmcnt({1 + nd})")
    slots[5]['valu'].append(c1[0]); slots[6]['valu'].append(c1[1])
    slots[P2W]['pre'].append(f"s_waitcnt vmcnt({nd})")
    slots[P2W]['valu'].append(c2[0]); slots[P2W+1]['valu'].append(c2[1]); slots[P2W+2]['valu'].append(cmp_)
    slots[P2W+4]['pre'].append(f"s_cbranch_vccnz {Lfail}")
    assert P2W + 4 <= B0 and 7 <= P2W <= 13
    SACC = MEMR
    if w < 3:
        for r in range(4): slots[16 + r]['valu'].append(f"v_mov_b32 {v(SACC+r)}, 0")
    slots[B0]['pre'] += ["s_waitcnt vmcnt(0)", "s_barrier", rdm(3)]
    for p in range(4, 7): slots[B0 + p - 3]['pre'].append(rdm(p))
    for p in range(3, 7): slots[17 + p]['pre'].append(f"s_waitcnt lgkmcnt({6-p})")
    if w == 2:
        for j in range(14):
            slots[24 + j]['pre'].append(f"ds_read_b128 {v(HT+4*j,4)}, {v(VH)} offset:{256*(j//2)+16*(j%2)}")
    if w == 3 and FULL:
        slots[25]['pre'] += [f"ds_read_b128 {v(HT+48,4)}, {v(HT+47)} offset:{MIMG}", f"s_add_u32 s62, {s(S_MEM)}, s61"]
        slots[32]['pre'] += ["s_waitcnt lgkmcnt(1)", f"buffer_store_dwordx4 {v(HT+48,4)}, {v(HT+47)}, {s(WS,4)}, s62 offen sc1"]
    tch = lambda i: [f"s_add_u32 {s(S_TMP)}, s60, {'s59' if i == ATOUCH - 1 else (131072 << BTOUCH)*i}", f"buffer_load_dword {v(HT+52+i)}, {v(HT+43)}, {s(WS,4)}, {s(S_TMP)} offen sc1"]
    if w == 3 and ATOUCH:
        for i in range(ATOUCH - TPOST): slots[B0 + 1 + TSP*i]['pre'] += tch(i)
    if w < 2:
        nin = 14 - XPRE
        for jj in range(nin):
            j = XPRE + jj
            sl = B0 + 1 + (jj*XSN)//nin
            if j % 4 == 0 or jj == 0: slots[sl]['pre'].append(f"s_add_u32 {s(S_TMP)}, {s(S_X)}, {1024*(j - j % 4)}")
            slots[sl]['pre'].append(xld(j))
    def conv(cb):
        r = ACC + 4*cb
        return [f"v_add_f32 {v(r)}, {v(r)}, {v(r+1)}", f"v_add_f32 {v(r+2)}, {v(r+2)}, {v(r+3)}",
                f"v_cvt_pk_bf16_f32 {v(r)}, {v(r)}, {v(r+2)}", f"ds_write_b32 {v(VTW)}, {v(r)} offset:{256*cb}"]
    for cb in range(6):
        for i, o in enumerate(conv(cb)):
            if 26 + 4*cb + i < 49: slots[26 + 4*cb + i]['valu'].append(o)
    slots[28]['valu'].insert(0, f"v_cmp_u_f32 vcc, {v(ACC)}, {v(ACC+2)}")
    slots[30]['pre'] += [f"s_cbranch_vccnz {Lfail2}", f"{Lcont2}:"]
    TF = lambda k: MEMR + 4 + 4*k if k < 2 else ACC + 4*(k-2)
    def trread(k):
        return [f"ds_read_b64_tr_b16 {v(TF(k)+2*u,2)}, {v(VTR)} offset:{256*k + TW*u}" for u in range(2)]
    slots[41]['pre'] += ["s_waitcnt lgkmcnt(0)", "s_barrier"]
    if w < 3:
        rs = [r for k in range(3) for r in trread(k)]
        for i, r in enumerate(rs): slots[42 + (i*TRN)//6]['pre'].append(r)
    if profile and FSD:
        for k in range(5):
            if FS0 + k*FSD < 49: slots[FS0 + k*FSD]['pre'].insert(0, f"s_memtime {s(S_PROF+4+2*k,2)}")
    elif profile:
        for st, sl in ((2, 13), (3, 27), (4, 48)):
            if (PMASK >> st) & 1: slots[sl]['pre'].append(f"s_memtime {s(S_PROF+2*st,2)}")
    emit_slots(A, slots)
    c6 = conv(6); W5 = conv(5)[3]
    A("s_waitcnt lgkmcnt(0)", "s_barrier", W5)
    if w < 3:
        sm = [smf(SACC, TF(k), v(HT+8*k, 8), IDX, True) for k in range(7)]
        vw = (lambda n: f"s_waitcnt vmcnt({n})") if w < 2 and XPRE < 14 else (lambda n: "")
        r3, r4 = trread(3), trread(4)
        A(vw(12), sm[0], r3, r4[0], c6[0], c6[1], c6[2], c6[3], r4[1], vw(8), sm[1], sm[2], "s_waitcnt lgkmcnt(3)", vw(4), sm[3], "s_waitcnt lgkmcnt(0)", sm[4])
        A("s_waitcnt lgkmcnt(0)", "s_barrier")
        prof(A, 5, profile)
        for k in range(5, 7): A(trread(k))
        A(vw(0))
        for k in range(5, 7):
            A(f"s_waitcnt lgkmcnt({2*(6-k)})", sm[k])
        A("s_nop 7")
        A(f"ds_write2st64_b32 {v(VX)}, {v(SACC)}, {v(SACC+1)} offset0:0 offset1:1",
          f"ds_write2st64_b32 {v(VX)}, {v(SACC+2)}, {v(SACC+3)} offset0:2 offset1:3", "s_waitcnt lgkmcnt(0)", "s_barrier")
        prof(A, 6, profile)
        prof(A, 7, profile)
    else:
        A("s_nop 3", c6)
        A("s_waitcnt lgkmcnt(0)", "s_barrier")
        prof(A, 5, profile)
        if FULL and EXW == 7: A(f"buffer_store_dwordx4 {v(HT+48,4)}, {v(HT+47)}, {s(WS,4)}, s62 offen sc1")
        A(f"s_add_u32 s63, {s(S_P)}, {s(S_SLOW)}", "s_xor_b32 s64, s63, 0x40000000", nops(F2D - 2), f"buffer_store_dword {v(IDX)}, {v(TMP2)}, {s(WS,4)}, s64 offen")
        A("s_barrier")
        X0 = HT; XM = HT+4; MX, L = HT+8, HT+9; N0 = HT+12
        Lslow, Lnorm = A.label("slow"), A.label("norm")
        Y0 = HT + 20; RAW = HT + 28
        A(f"ds_read_b128 {v(X0,4)}, {v(VX)}", f"ds_read_b128 {v(Y0,4)}, {v(VX)} offset:2048", f"ds_read2st64_b32 {v(Y0+4,2)}, {v(VH)} offset0:0 offset1:8")
        prof(A, 6, profile)
        A("s_waitcnt lgkmcnt(1)")
        for j in range(4): A(f"v_add_f32 {v(RAW+j)}, {v(X0+j)}, {v(Y0+j)}")
        A("s_waitcnt lgkmcnt(0)", f"v_add_f32 {v(RAW+4)}, {v(Y0+4)}, {v(Y0+5)}")
        for j in range(5): A(f"v_exp_f32 {v(X0+j)}, {v(RAW+j)}")
        dpps = ["quad_perm:[1,0,3,2]", "quad_perm:[2,3,0,1]", "row_half_mirror"]
        def norm_store(check):
            A(f"v_add_f32 {v(L)}, {v(X0)}, {v(X0+1)}", f"v_add_f32 {v(MX)}, {v(X0+2)}, {v(X0+3)}",
              f"v_add_f32 {v(L)}, {v(L)}, {v(MX)}", f"v_add_f32 {v(L)}, {v(L)}, {v(XM)}")
            for d in dpps: A("s_nop 1", f"v_add_f32_dpp {v(L)}, {v(L)}, {v(L)} {d} row_mask:0xf bank_mask:0xf")
            A(f"v_rcp_f32 {v(N0+5)}, {v(L)}")
            if check: A(f"v_subrev_u32 {v(MX)}, 0x21800000, {v(L)}", f"v_cmp_lt_u32 vcc, 0x3c000000, {v(MX)}")
            else: A("s_nop 0")
            R = N0 + 5
            A(f"v_mul_f32_e64 {v(X0)}, {v(X0)}, {v(R)} clamp", f"v_mul_f32 {v(X0+1)}, {v(X0+1)}, {v(R)}",
              f"v_mul_f32_e64 {v(X0+2)}, {v(X0+2)}, {v(R)} clamp", f"v_mul_f32 {v(X0+3)}, {v(X0+3)}, {v(R)}",
              f"v_cvt_pk_bf16_f32 {v(N0)}, {v(X0)}, {v(X0+1)}", f"v_cvt_pk_bf16_f32 {v(N0+1)}, {v(X0+2)}, {v(X0+3)}",
              f"v_mul_f32_dpp {v(N0+3)}, {v(XM)}, {v(R)} quad_perm:[1,0,3,2] row_mask:0xf bank_mask:0xf")
            if check: A(f"s_cbranch_vccnz {Lslow}")
            A(f"v_mul_f32_e64 {v(XM)}, {v(XM)}, {v(R)} clamp",
              f"buffer_store_dwordx2 {v(N0,2)}, {v(PXO)}, {s(WS,4)}, s64 offen",
              f"v_cvt_pk_bf16_f32 {v(N0+2)}, {v(XM)}, {v(N0+3)}",
              f"buffer_store_dword {v(N0+2)}, {v(PMO)}, {s(WS,4)}, s64 offen")
        norm_store(True)
        A(f"{Lnorm}:")
        A(f"buffer_store_dwordx2 {v(N0,2)}, {v(PXO)}, {s(WS,4)}, s63 offen sc1", f"buffer_store_dword {v(N0+2)}, {v(PMO)}, {s(WS,4)}, s63 offen sc1",
          f"buffer_store_dword {v(IDX)}, {v(TMP2)}, {s(WS,4)}, s63 offen sc1")
        prof(A, 7, profile)
    if profile and PACCUM: prof_acc(A, 8)
    elif profile:
        prof_flush(A, 9, TMP, MEMR, 0)
        A(f"s_mov_b32 {s(S_PROF+16)}, 0")
    zs = [f"v_mov_b32 {v(ACC+r)}, 0" for r in range(28)]
    if TLM and w == 3:
        Lt = A.label("tl")
        A(f"s_lshl_b32 {s(S_TMP)}, {s(S_ROLE)}, 2", f"s_cmp_eq_u32 {s(S_ROLE)}, 15", f"s_cselect_b32 {s(S_TMP)}, 62, {s(S_TMP)}", f"s_cmp_lg_u32 {s(S_STEP)}, {s(S_TMP)}", f"s_cbranch_scc1 {Lt}", "s_memrealtime s[94:95]", f"{Lt}:")
    if not XEARLY:
        A("s_barrier", zs)
        if w < 2:
            if FULL: cv_wait(1)
            for j in range(min(XPRE, X_XSN)):
                if j % 4 == 0: A(f"s_add_u32 {s(S_TMP)}, {s(S_X)}, {28672 + 1024*j}")
                A(xld(j), nops(XPG))
    elif w < 2:
        if FULL: cv_wait(1)
        el = 0
        for j in range(14):
            if j % 4 == 0: A(f"s_add_u32 {s(S_TMP)}, {s(S_X)}, {28672 + 1024*j}")
            A(xld(j))
            gap = XG1 if j < XN1 else XPG
            if j == 13: gap = 0
            nz = min(len(zs), gap) if el >= 70 else 0
            A(zs[:nz], nops(gap - nz)); zs = zs[nz:]
            el += gap + 2
        A(zs)
    elif w == 2: A(nops(70), zs)
    else: A(zs)
    if w == 3:
        if FULL: A(f"s_add_u32 {s(S_TMP)}, {s(S_P)}, {16384*(TAHEAD+1) + FROFF}", f"buffer_load_dword {v(TMP)}, off, {s(WS,4)}, {s(S_TMP)} sc1")
        for i in range(ATOUCH - TPOST, ATOUCH): A(tch(i))
        A(f"s_add_u32 s60, {s(S_VOX)}, 458752")
        if FULL:
            A(f"s_waitcnt vmcnt({TPOST})",
              f"v_readfirstlane_b32 {s(S_TMP)}, {v(TMP)}", f"s_cmp_eq_u32 {s(S_TMP)}, 15", "s_cselect_b32 s60, s60, 0x40000000")
        if FULL and EXW == 5:
            A(f"ds_read_b128 {v(HT+48,4)}, {v(HT+47)} offset:{MIMG}", f"s_add_u32 {s(S_TMP)}, {s(S_MEM)}, s61", "s_waitcnt lgkmcnt(0)",
              f"buffer_store_dwordx4 {v(HT+48,4)}, {v(HT+47)}, {s(WS,4)}, {s(S_TMP)} offen sc1")
    if w == APW:
        if TGATE != 1: flag_poll(A, list(range(8, 8 + FPD)), TMP2, S_P, 0, abort, "A")
        A(nops(D1))
    A(f"s_add_u32 {s(S_MEM)}, {s(S_MEM)}, 8192", f"s_add_u32 {s(S_MEM2)}, {s(S_MEM2)}, 8192", f"s_add_u32 {s(S_P)}, {s(S_P)}, 16384",
      f"s_add_u32 {s(S_X)}, {s(S_X)}, {32*896}", f"s_add_u32 {s(S_VOX)}, {s(S_VOX)}, 458752",
      f"s_add_u32 {s(S_STEP)}, {s(S_STEP)}, 1", f"s_cmp_lt_u32 {s(S_STEP)}, {NSTEPS}", f"s_cbranch_scc1 {Lstep}")
    if profile and PACCUM: prof_acc_out(A, 8)
    if STAMP: A("v_mov_b32 v0, s58", "s_mov_b64 exec, 1", f"buffer_atomic_add v0, off, {s(DBG,4)}, 0 offset:52", "s_mov_b64 exec, -1")
    if STAMP and w == 3:
        A("s_memrealtime s[52:53]", "s_memtime s[56:57]", "s_waitcnt lgkmcnt(0)", "s_sub_u32 s52, s52, s50", "s_sub_u32 s56, s56, s54", "v_mov_b32 v0, s52", "v_mov_b32 v1, s56",
          f"s_lshl_b32 {s(S_TMP)}, {s(S_ROLE)}, {10 if FULL else 3}", (f"buffer_store_dword v0, off, {s(DBG,4)}, {s(S_TMP)} offset:60" if FULL else f"buffer_store_dwordx2 v[0:1], off, {s(DBG,4)}, {s(S_TMP)} offset:64"))
    A("s_endpgm")
    A(f"{Lfail2}:")
    for p in range(3, 7): A(chk4(TMP, MEMR + 4*p, p == 3))
    A(cmp_, f"s_cbranch_vccz {Lcont2}", "s_waitcnt lgkmcnt(0)", "s_barrier")
    if STAMP: A(f"s_add_u32 s58, s58, 0x10000")
    A(f"{Lfail}:", issue(), f"s_sub_u32 {s(S_TO)}, {s(S_TO)}, 1", f"s_cbranch_scc1 {abort}")
    if STAMP: A(f"s_add_u32 s58, s58, 1")
    for r in range(28): A(f"v_mov_b32 {v(ACC+r)}, 0")
    A(f"s_branch {Lpoll}")
    if w == 3:
        A(f"{Lslow}:")
        A(f"v_max3_f32 {v(MX)}, {v(RAW)}, {v(RAW+1)}, {v(RAW+2)}", f"v_max3_f32 {v(MX)}, {v(MX)}, {v(RAW+3)}, {v(RAW+4)}")
        for d in dpps: A("s_nop 1", f"v_max_f32_dpp {v(MX)}, {v(MX)}, {v(MX)} {d} row_mask:0xf bank_mask:0xf")
        for j in range(5): A(f"v_sub_f32 {v(X0+j)}, {v(RAW+j)}, {v(MX)}")
        for j in range(5): A(f"v_exp_f32 {v(X0+j)}, {v(X0+j)}")
        A("s_nop 0")
        norm_store(False)
        A(f"s_branch {Lnorm}")

BW7 = 0
BMIMG = 57344
BVIMG = 65536
DB = 55

def role_B(A, w, abort, profile=False):
    import prep
    WFL = [' sc1', '', ' nt', ' sc1 nt'][WFI]
    pv = w < 2
    c, M = w % 2, w // 2
    NR = 6 if pv else 8
    WV0 = 256 - 8*(7*NR - 32)
    wrg = lambda f, n=8, sub=0: a_(8*f + sub, n) if f < 32 else v(WV0 + 8*(f-32) + sub, n)
    MEMR, ACC, VP = 0, 40, 48
    IDX, VL16, TMP, TMP2, VLV, VF2 = range(56, 62)
    if pv:
        VP2, VOX, SB, AC7, PACC, VST, R0 = 64, 72, 136, 152, 160, 164, 165
        assert 166 <= WV0
    VG, VN, VL = 1, 2, 3
    own = [2*w, 2*w+1] if w < 3 else [6]
    lane_consts(A, VL, VG, VN)
    idx_const(A, IDX, VN, TMP)
    A(f"v_lshlrev_b32 {v(VL16)}, 4, {v(VL)}", f"v_add_u32 {v(VLV)}, {BVIMG + 2048*c}, {v(VL16)}")
    A(f"s_sub_u32 {s(S_TMP)}, {s(S_ROLE)}, 16")
    if pv:
        A(f"v_lshlrev_b32 {v(VF2)}, 2, {v(VN)}", f"s_lshl_b32 {s(S_TMP2)}, {s(S_TMP)}, 7", f"s_add_u32 {s(S_TMP2)}, {s(S_TMP2)}, {F2OFF - 8192}", f"v_add_u32 {v(VF2)}, {s(S_TMP2)}, {v(VF2)}")
        VF1 = 166
        A(f"v_lshlrev_b32 {v(VF1)}, 8, {v(VL)}", f"s_lshl_b32 {s(S_TMP2)}, {s(S_TMP)}, 2", f"s_add_u32 {s(S_TMP2)}, {s(S_TMP2)}, {F1OFF - 8192}", f"v_add_u32 {v(VF1)}, {s(S_TMP2)}, {v(VF1)}",
          f"v_cmp_lt_u32 vcc, 3, {v(VL)}", f"v_mov_b32 {v(TMP)}, 0x40000000", "s_nop 0", f"v_cndmask_b32 {v(VF1)}, {v(VF1)}, {v(TMP)}, vcc")
        A(f"v_lshlrev_b32 {v(VST)}, 6, {v(VG)}", f"v_and_b32 {v(TMP)}, 1, {v(VN)}", f"v_lshl_add_u32 {v(VST)}, {v(TMP)}, 5, {v(VST)}",
          f"v_bfe_u32 {v(TMP)}, {v(VN)}, 1, 1", f"v_lshl_add_u32 {v(VST)}, {v(TMP)}, 4, {v(VST)}", f"v_lshrrev_b32 {v(TMP)}, 2, {v(VN)}", f"v_lshl_add_u32 {v(VST)}, {v(TMP)}, 2, {v(VST)}")
    A(f"s_mul_i32 {s(S_VOX)}, {s(S_TMP)}, {16*1024}",
      f"s_lshl_b32 {s(S_MEMN)}, {s(S_TMP)}, 8", f"s_add_u32 {s(S_MEMN)}, {s(S_MEMN)}, {MEMF_OFF + 8192 + 256*14*c:#x}",
      f"s_mul_i32 {s(S_TMP)}, {s(S_TMP)}, {14336}", f"s_add_u32 {s(S_TMP)}, {s(S_TMP)}, {WB_OFF + (8*M*28 + 14*c)*14336:#x}",
      f"s_add_u32 {s(S_VOX)}, {s(S_VOX)}, {VOX_OFF + 16384*14*c:#x}")
    if FULL: prep.wait_tiles(A, 16, 16, abort, "B", S_TO, 4, 5)
    stg = [4, 64]
    if pv:
        for u in (6, 7):
            for kb in range(7):
                A(f"s_add_u32 {s(S_TMP2)}, {s(S_TMP)}, {u*28*14336 + kb*2048}")
                for hi in range(2):
                    d = v(64+8*kb+4*hi,4) if u == 6 else a_(200+8*kb+4*hi,4)
                    A(f"buffer_load_dwordx4 {d}, {v(VL16)}, {s(WS,4)}, {s(S_TMP2)} offen offset:{1024*hi}{WFL}")
    for u in range(NR):
        for kb in range(7):
            f = u*7 + kb
            A(f"s_add_u32 {s(S_TMP2)}, {s(S_TMP)}, {u*28*14336 + kb*2048}")
            for hi in range(2):
                A(f"buffer_load_dwordx4 {wrg(f,4,4*hi)}, {v(VL16)}, {s(WS,4)}, {s(S_TMP2)} offen offset:{1024*hi}{WFL}")
        if u >= 2 or pv: A("s_waitcnt vmcnt(28)")
        if pv and u == 1:
            for j in range(14): A(f"ds_write_b128 {v(VL16)}, {v(64+4*j,4)} offset:{BW7 + 2*w*14336 + j*1024}")
            for j in range(14): A(f"ds_write_b128 {v(VL16)}, {a_(200+4*j,4)} offset:{BW7 + (2*w+1)*14336 + j*1024}")
            A("s_waitcnt lgkmcnt(0)")
    if FULL: prep.wait_counters(A, 0, 32, abort, "B", S_TO, 4, 5)
    if pv: read_mode(A, 4)
    A(f"s_mov_b32 {s(S_STEP)}, 0", f"s_mov_b32 {s(S_MEM)}, {MEMF_OFF:#x}", f"s_mov_b32 {s(S_MEM2)}, {MEMF_OFF+4096:#x}",
      f"s_mov_b32 {s(S_P)}, {PF_OFF:#x}", f"s_mov_b32 {s(S_X)}, {PF_OFF + 4096:#x}", f"s_mov_b32 {s(S_P2)}, {PF_OFF + 8192:#x}", f"s_mov_b32 {s(S_TO)}, {TIMEOUT}")
    S_EM, S_FR, S_ODD = 64, 65, 66
    A(f"s_mov_b32 {s(S_FR)}, {PF_OFF + FROFF:#x}", f"s_mov_b32 {s(S_ODD)}, 0xaaaaaaaa", f"s_mov_b32 {s(S_ODD+1)}, 0xaaaaaaaa")
    A("s_waitcnt vmcnt(0) lgkmcnt(0)")
    if TLM: A("s_memrealtime s[92:93]")
    A(f"s_mov_b32 {s(S_PROF+10)}, 0")
    if STAMP: A("s_mov_b32 s58, 0", "s_mov_b32 s59, 0")
    if STAMP and w == 0: A("s_memtime s[54:55]")
    Lstep, Lpoll, Lok2 = [A.label(f"B{w}{x}") for x in ("step", "poll", "ok2")]
    mreg = lambda kb: MEMR + 4*kb
    mld = lambda kb: memload(mreg(kb), VL16, kb)
    if pv:
        voxld = lambda hh: f"buffer_load_dwordx4 {v(VOX + 4*hh, 4)}, {v(VL16)}, {s(WS,4)}, {s(S_TMP)} offen offset:{1024*(hh%4)} sc1"
        def bcv(ahead):
            if not FULL: return
            Lc, Lg = A.label("bcv"), A.label("bcg")
            A(f"v_cmp_ne_u32 vcc, 15, {v(TMP2)}", f"s_add_u32 {s(S_TMP2)}, {s(S_FR)}, {16384*ahead}", f"s_cbranch_vccz {Lg}")
            A(f"{Lc}:", f"buffer_load_dword {v(TMP2)}, off, {s(WS,4)}, {s(S_TMP2)} sc1", "s_waitcnt vmcnt(0)", f"v_cmp_ne_u32 vcc, 15, {v(TMP2)}", f"s_cbranch_vccz {Lg}", "s_sleep 1")
            timeout_step(A, Lc, abort)
            A(f"{Lg}:")
        def voxpre(add):
            if VPRE: bcv(1 if add else 0)
            for hh in range(VPRE):
                if hh % 4 == 0: A(f"s_add_u32 {s(S_TMP)}, {s(S_VOX)}, {add + 1024*hh}")
                A(voxld(hh))
        A(f"v_mov_b32 {v(TMP2)}, 0")
        voxpre(0)
    else:
        A(f"v_lshlrev_b32 {v(VF2)}, 3, {v(VL16)}", f"v_mov_b32 {v(TMP2)}, 0")
        A(f"s_sub_u32 {s(S_TMP)}, {s(S_ROLE)}, 16", f"s_cmp_lt_u32 {s(S_TMP)}, 7", f"s_cselect_b32 s70, {ALT:#x}, 0x40000000", f"s_min_u32 {s(S_TMP)}, {s(S_TMP)}, 6",
          f"s_lshl_b32 {s(S_TMP)}, {s(S_TMP)}, 10", f"v_add_u32 {v(32)}, {s(S_TMP)}, {v(VL16)}")
    A(f"{Lstep}:")
    A(f"{Lpoll}:")
    for kb in own:
        A(f"s_mov_b32 m0, {BMIMG + (kb - kb % 4)*1024}", "s_nop 0", f"buffer_load_dwordx4 {v(VL16)}, {s(WS,4)}, {s(S_MEM if kb < 4 else S_MEM2)} offen offset:{(kb%4)*1024} sc1 lds")
    for r in range(8): A(f"v_mov_b32 {v(ACC+r)}, 0")
    if pv:
        for j in range(8): A(f"v_mov_b32 {v(AC7+j)}, 0")
        for n in range(2):
            for hi in range(2): A(f"ds_read_b128 {v(SB + 8*n + 4*hi, 4)}, {v(VL16)} offset:{BW7 + (2*w + n)*14336 + hi*1024}")
        if not VPRE: bcv(0)
    A("s_waitcnt vmcnt(0)", "s_barrier")
    if PACCUM: prof(A, 6, profile)
    korder = list(range(7))
    for kb in korder: A(f"ds_read_b128 {v(mreg(kb),4)}, {v(VL16)} offset:{BMIMG + kb*1024}")
    if not PB2: prof(A, 1, profile)
    cv = lambda r, u: [f"v_add_f32 {v(r)}, {v(r)}, {v(r+1)}", f"v_add_f32 {v(r+2)}, {v(r+2)}, {v(r+3)}", f"v_cvt_pk_bf16_f32 {v(VP+u)}, {v(r)}, {v(r+2)}"]
    ms, ustart = [], []
    if pv:
        reg = [(u, kb) for u in range(6) for kb in korder]
        stq = [(u, kb) for kb in korder for u in (6, 7)]
        seq = []
        for i, x in enumerate(reg):
            seq.append(x)
            if i % 3 == 2: seq.append(stq[i // 3])
    else:
        seq = [(u, kb) for u in range(8) for kb in korder]
    nst = 0
    for (u, kb) in seq:
        if u < NR: ms.append(smf(ACC + 4*(u % 2), mreg(kb), wrg(u*7+kb), IDX))
        else:
            ms.append(smf(AC7 + 4*(u-6), mreg(kb), v(SB + 8*(nst % 2), 8), IDX)); nst += 1
    slots = mkslots(ms)
    Lretry, Lcont = A.label("Bretry"), A.label("Bcont")
    last = {u: max(i for i, x in enumerate(seq) if x[0] == u) for u in range(8)}
    first = {u: min(i for i, x in enumerate(seq) if x[0] == u) for u in range(8)}
    tail = []
    for u in range(NR):
        r = ACC + 4*(u % 2)
        ops = cv(r, u) + ([f"v_mov_b32 {v(r+j)}, 0" for j in range(4)] if u + 2 < NR else [])
        st = last[u] + 2
        if st + 3 > len(slots): tail += ops; continue
        lim = first[u+2] - 2 if u + 2 < NR else len(slots) - 1
        for i, o in enumerate(ops): slots[min(st + i, lim)]['valu'].append(o)
    if pv:
        sts = [i for i, x in enumerate(seq) if x[0] >= 6]
        rd = lambda n: [f"ds_read_b128 {v(SB + 8*(n % 2) + 4*hi, 4)}, {v(VL16)} offset:{BW7 + (2*w + seq[sts[n]][0] - 6)*14336 + seq[sts[n]][1]*2048 + hi*1024}" for hi in range(2)]
        for n, i in enumerate(sts):
            if n + 2 < 14: slots[i+1]['pre'] += rd(n+2)
            if n >= 2: slots[i-1]['pre'].append(f"s_waitcnt lgkmcnt({2 if n + 1 < 14 else 0})")
        for hh in range(VPRE, 0 if X_NOVOX else 16):
            sl = 2 + VOXS*(hh - VPRE)
            if hh % 4 == 0: slots[sl]['pre'].append(f"s_add_u32 {s(S_TMP)}, {s(S_VOX)}, {1024*hh}")
            slots[sl]['pre'].append(voxld(hh))
        tail += cv(AC7, 6) + cv(AC7+4, 7)
        if FULL: slots[30 if not VPRE else 0]['pre'] += [f"s_add_u32 {s(S_TMP2)}, {s(S_FR)}, 16384", f"buffer_load_dword {v(TMP2)}, off, {s(WS,4)}, {s(S_TMP2)} sc1"]
        FR_ = list(range(28, 28 + FPD))
        for i, r in enumerate(FR_):
            if w == 0: slots[55 - 3*(FPD - 1 - i)]['pre'].append(flag_ld(r, VF2, S_P2, 0))
        for r in range(4): slots[40 + r]['valu'].append(f"v_mov_b32 {v(PACC+r)}, 0")
    if not pv and BTOUCH:
        if FULL:
            slots[BT0]['pre'] += [f"v_readfirstlane_b32 {s(S_TMP2)}, {v(TMP2)}", f"s_add_u32 {s(S_TMP)}, {s(S_VOX)}, {458752*BTA + 8192}", f"s_cmp_eq_u32 {s(S_TMP2)}, 15", f"s_cselect_b32 {s(S_TMP)}, {s(S_TMP)}, 0x40000000",
                                  f"s_add_u32 {s(S_TMP2)}, {s(S_FR)}, {16384*(BTA+1)}", f"buffer_load_dword {v(TMP2)}, off, {s(WS,4)}, {s(S_TMP2)} sc1"]
        else: slots[BT0]['pre'].append(f"s_add_u32 {s(S_TMP)}, {s(S_VOX)}, {458752*BTA + 8192}")
        slots[BT0]['pre'].append(f"buffer_load_dword {v(62)}, {v(VF2)}, {s(WS,4)}, {s(S_TMP)} offen sc1")
    if FULL and w == EXW:
        A(f"ds_read_b128 {v(28,4)}, {v(32)} offset:{BMIMG}", f"s_add_u32 {s(S_EM)}, {s(S_MEM)}, s70")
        slots[3]['pre'].append(f"buffer_store_dwordx4 {v(28,4)}, {v(32)}, {s(WS,4)}, {s(S_EM)} offen sc1")
    where = [i for i, sl in enumerate(slots) if any(o.startswith(f"v_cvt_pk_bf16_f32 {v(VP)},") for o in sl['valu'])][0]
    slots[where]['valu'].insert(0, f"v_cmp_u_f32 vcc, {v(ACC)}, {v(ACC+2)}")
    slots[where+2]['pre'] += [f"s_cbranch_vccnz {Lretry}", f"{Lcont}:"]
    seen = 0
    A("s_waitcnt lgkmcnt(6)")
    for i, (u, kb) in enumerate(seq[:10]):
        nxt = seq[i+1]
        if nxt[0] == 0 and nxt[1] > seen:
            seen = nxt[1]
            extra = sum(1 for sl in slots[:i+1] for o in sl['pre'] if o.startswith("ds_read"))
            slots[i]['pre'].append(f"s_waitcnt lgkmcnt({6 - seen + extra})")
    if profile and FSD:
        for k in range(5):
            if FS0 + k*FSD < 56: slots[FS0 + k*FSD]['pre'].insert(0, f"s_memtime {s(S_PROF+4+2*k,2)}")
    if X_NOV:
        for sl in slots: sl['m'] = ""
    emit_slots(A, slots)
    if PACCUM: prof(A, 7, profile)
    A("s_nop 7", tail)
    if not pv:
        A(f"ds_write_b128 {v(VLV)}, {v(VP,4)}", f"ds_write_b128 {v(VLV)}, {v(VP+4,4)} offset:1024", "s_waitcnt lgkmcnt(0)")
    A("s_barrier")
    if not PB2: prof(A, 2, profile)
    if not pv:
        A("s_barrier", "s_barrier", nops(DB))
    else:
        A(f"ds_read_b128 {v(VP2,4)}, {v(VLV)}", f"ds_read_b128 {v(VP2+4,4)}, {v(VLV)} offset:1024")
        A(f"s_add_u32 s60, {s(S_MEMN)}, {s(S_SLOW)}", f"s_add_u32 s61, {s(S_P2)}, {s(S_SLOW)}", "s_xor_b32 s62, s60, 0x40000000", "s_xor_b32 s63, s61, 0x40000000")
        if w == 0:
            flag_poll(A, FR_, VF2, S_P2, 0, abort, "B", primed=True)
            A(f"buffer_store_dword {v(IDX)}, {v(VF1)}, {s(WS,4)}, s63 offen")
            A(nops(D2))
        else: A("s_barrier")
        prof(A, 0, profile)
        porder = [(c*4 + i) % 8 for i in range(8)] + [8, 9]
        pld = lambda k: f"buffer_load_dwordx4 {v(4*k,4)}, {v(VL16)}, {s(WS,4)}, {s([S_P, S_X, S_P2][k//4])} offen offset:{1024*(k%4)} sc1"
        bop = lambda k: v(VOX + 8*k, 8) if k < 8 else v(VP if k == 8 else VP2, 8)
        Lpp, Lbad = A.label("pp"), A.label("bad")
        for i, k in enumerate(porder):
            A(pld(k))
            if w == 0 and i == BREL: A("s_barrier")
        A(f"{Lpp}:")
        if profile and not FSD: A(f"s_add_u32 {s(S_PROF+10)}, {s(S_PROF+10)}, 1")
        A("s_waitcnt lgkmcnt(0)")
        for i, k in enumerate(porder):
            A(f"s_waitcnt vmcnt({9-i})")
            if i == 0: prof(A, 3, profile)
            if i == 9 and PB2: prof(A, 1, profile)
            A(smf(PACC, 4*k, bop(k), IDX))
        Lgood = A.label("good")
        a, b = PACC, PACC+2
        A(f"s_mov_b64 vcc, {s(S_ODD,2)}", "s_nop 6")
        A(f"v_add_f32 {v(a)}, {v(a)}, {v(a+1)}", f"v_add_f32 {v(b)}, {v(b)}, {v(b+1)}", f"v_cmp_u_f32 {s(68,2)}, {v(a)}, {v(b)}",
          f"v_cndmask_b32_dpp {v(b+1)}, {v(a)}, {v(b)}, vcc quad_perm:[1,0,3,2] row_mask:0xf bank_mask:0xf", "s_not_b64 vcc, vcc",
          f"v_cndmask_b32_dpp {v(a+1)}, {v(b)}, {v(a)}, vcc quad_perm:[1,0,3,2] row_mask:0xf bank_mask:0xf",
          f"s_cmp_lg_u64 {s(68,2)}, 0", f"v_cvt_pk_bf16_f32 {v(R0)}, {v(a+1)}, {v(b+1)}", f"s_cbranch_scc1 {Lbad}", f"{Lgood}:",
          f"buffer_store_dword {v(R0)}, {v(VST)}, {s(WS,4)}, s62 offen")
        A(f"buffer_store_dword {v(R0)}, {v(VST)}, {s(WS,4)}, s60 offen sc1", f"buffer_store_dword {v(IDX)}, {v(VF1)}, {s(WS,4)}, s61 offen sc1" if w == 0 else "")
        if FULL:
            Lq = A.label("Bq")
            A(f"s_add_u32 {s(S_EM)}, {s(S_MEMN)}, {ALT:#x}", f"s_cmp_lg_u32 {s(S_STEP)}, {NSTEPS-1}", f"s_cbranch_scc1 {Lq}", f"buffer_store_dword {v(R0)}, {v(VST)}, {s(WS,4)}, {s(S_EM)} offen sc1", f"{Lq}:")
        prof(A, 4, profile)
        if VPB: voxpre(458752)
        A("s_barrier")
        if not VPB: voxpre(458752)
        A(nops(max(0, DB - (0 if VPB else 4*VPRE))))
    if profile and PACCUM: prof_acc(A, 8)
    elif profile:
        prof_flush(A, 6, TMP, TMP2, 0)
        A(f"s_mov_b32 {s(S_PROF+10)}, 0")
    A(f"s_add_u32 {s(S_MEM)}, {s(S_MEM)}, 8192", f"s_add_u32 {s(S_MEM2)}, {s(S_MEM2)}, 8192", f"s_add_u32 {s(S_MEMN)}, {s(S_MEMN)}, 8192",
      f"s_add_u32 {s(S_P)}, {s(S_P)}, 16384", f"s_add_u32 {s(S_P2)}, {s(S_P2)}, 16384", f"s_add_u32 {s(S_X)}, {s(S_X)}, 16384", f"s_add_u32 {s(S_VOX)}, {s(S_VOX)}, {0 if X_FIXVOX else 28*16*1024}",
      f"s_add_u32 {s(S_FR)}, {s(S_FR)}, 16384",
      f"s_add_u32 {s(S_STEP)}, {s(S_STEP)}, 1", f"s_cmp_lt_u32 {s(S_STEP)}, {NSTEPS}", f"s_cbranch_scc1 {Lstep}")
    if profile and PACCUM: prof_acc_out(A, 8)
    if STAMP: A("v_mov_b32 v0, s58", "v_mov_b32 v1, s59", "s_mov_b64 exec, 1", f"buffer_atomic_add v0, off, {s(DBG,4)}, 0 offset:56", f"buffer_atomic_add v1, off, {s(DBG,4)}, 0 offset:48", "s_mov_b64 exec, -1")
    if STAMP and w == 0 and not FULL:
        A("s_memtime s[56:57]", "s_waitcnt lgkmcnt(0)", "s_sub_u32 s56, s56, s54", "v_mov_b32 v1, s56",
          f"s_lshl_b32 {s(S_TMP)}, {s(S_ROLE)}, 2", f"buffer_store_dword v1, off, {s(DBG,4)}, {s(S_TMP)} offset:128")
    A("s_endpgm")
    A(f"{Lretry}:")
    for kb in range(7): A(chk4(TMP, mreg(kb), kb == 0))
    A(f"v_cmp_eq_u32 vcc, -1, {v(TMP)}", f"s_cbranch_vccz {Lcont}", "s_waitcnt lgkmcnt(0)", "s_barrier")
    if STAMP: A("s_add_u32 s58, s58, 1")
    timeout_step(A, Lpoll, abort)
    if pv:
        A(f"{Lbad}:")
        for k in range(10): A(chk4(TMP, 4*k, k == 0))
        A(f"v_min_u32 {v(R0)}, -2, {v(R0)}", f"v_cmp_eq_u32 vcc, -1, {v(TMP)}", f"s_cbranch_vccz {Lgood}")
        if STAMP: A("s_add_u32 s59, s59, 1")
        for k in porder: A(pld(k))
        for r in range(4): A(f"v_mov_b32 {v(PACC+r)}, 0")
        timeout_step(A, Lpp, abort)

def role_PF(A, abort):
    import prep
    WFL = [' sc1', '', ' nt', ' sc1 nt'][WFI]
    AHEAD = PFA
    A("; ---------------- prefetcher")
    if FULL:
        prep.wait_tiles(A, 16, 16, abort, "P", S_TO, 4, 5)
        prep.wait_counters(A, 0, 32, abort, "P", S_TO, 4, 5, sleep=30)
    A("v_and_b32 v3, 63, v0", "v_lshlrev_b32 v1, 7, v3", "v_mov_b32 v2, 0", "v_mov_b32 v12, 0")
    A(f"s_sub_u32 {s(S_TMP2)}, {s(S_ROLE)}, 30", f"s_lshl_b32 {s(S_TMP2)}, {s(S_TMP2)}, 2", f"s_add_u32 {s(S_TMP2)}, {s(S_TMP2)}, {s(S_WAVE)}")
    A(f"s_lshl_b32 {s(S_TMP2)}, {s(S_TMP2)}, 13")
    A(f"s_mov_b32 {s(S_STEP)}, 0", f"s_mov_b32 {s(S_TO)}, {TIMEOUT}")
    if FULL:
        A(f"s_mov_b32 {s(S_P)}, {PF_OFF + FROFF:#x}")
    A(f"s_add_u32 {s(S_X)}, {s(S_TMP2)}, {XS_OFF:#x}", f"s_mov_b32 {s(S_P2)}, 28672")
    L1, L2 = A.label("pf1"), A.label("pf2")
    A(f"s_cmp_lt_u32 {s(S_TMP2)}, {4*8192}", f"s_cbranch_scc1 {L2}")
    A(f"s_mov_b32 {s(S_X)}, {MEMF_OFF + 8192:#x}", f"s_mov_b32 {s(S_P2)}, 8192")
    A(f"s_cmp_eq_u32 {s(S_TMP2)}, {4*8192}", f"s_cbranch_scc1 {L2}")
    A(f"s_and_b32 {s(S_X)}, {s(S_TMP2)}, 8192", f"s_add_u32 {s(S_X)}, {s(S_X)}, {PF_OFF:#x}", f"s_mov_b32 {s(S_P2)}, 16384")
    A(f"{L2}:")
    A(f"s_lshl_b32 {s(S_VOX)}, {s(S_TMP2)}, {BTOUCH}", f"s_add_u32 {s(S_VOX)}, {s(S_VOX)}, {VOX_OFF:#x}", f"s_cmp_eq_u32 {s(S_TMP2)}, {7*8192}",
      f"s_cselect_b32 {s(S_X)}, 0x40000000, {s(S_X)}", f"s_mov_b32 {s(S_MEM)}, {MEMF_OFF - AHEAD*8192:#x}")
    Lstep, Lpoll, Lgo = A.label("pfstep"), A.label("pfpoll"), A.label("pfgo")
    if FULL and CODEPF:
        Lc0, Lc1 = A.label("pfw"), A.label("pfg")
        A(f"{Lc0}:", f"buffer_load_dword v12, off, {s(WS,4)}, {s(S_P)} sc1", "s_waitcnt vmcnt(0)", "v_cmp_eq_u32 vcc, -1, v12", f"s_cbranch_vccz {Lc1}", "s_sleep 8")
        timeout_step(A, Lc0, abort)
        A(f"{Lc1}:", "s_getpc_b64 s[30:31]", "Lpf_pc:", "s_sub_u32 s30, s30, Lpf_pc-Lteam_code", "s_subb_u32 s31, s31, 0", f"v_add_u32 v13, {s(S_TMP2)}, v1", "v_min_u32 v13, Lpf_pc-Lteam_code, v13",
          "global_load_dword v14, v13, s[30:31]")
    A("v_mov_b32 v4, -1")
    A(f"{Lstep}:", f"s_cmp_lt_u32 {s(S_STEP)}, {AHEAD+1}", f"s_cbranch_scc1 {Lgo}")
    A("v_cmp_eq_u32 vcc, -1, v4", f"s_cbranch_vccz {Lgo}")
    A(f"{Lpoll}:", f"buffer_load_dword v4, v2, {s(WS,4)}, {s(S_MEM)} offen sc1", "s_waitcnt vmcnt(0)", "v_cmp_eq_u32 vcc, -1, v4", f"s_cbranch_vccz {Lgo}", "s_sleep 2")
    timeout_step(A, Lpoll, abort)
    A(f"{Lgo}:")
    if FULL:
        Lc, Lcg = A.label("pfc"), A.label("pfcg")
        A("v_cmp_ne_u32 vcc, 15, v12", f"s_cbranch_vccz {Lcg}")
        A(f"{Lc}:", f"buffer_load_dword v12, off, {s(WS,4)}, {s(S_P)} sc1", "s_waitcnt vmcnt(0)", "v_cmp_ne_u32 vcc, 15, v12", f"s_cbranch_vccz {Lcg}", "s_sleep 2")
        timeout_step(A, Lc, abort)
        A(f"{Lcg}:", f"s_add_u32 {s(S_P)}, {s(S_P)}, 16384", f"buffer_load_dword v12, off, {s(WS,4)}, {s(S_P)} sc1")
    if PFW:
        Lw1, Lw2 = A.label("pw1"), A.label("pw2")
        A(f"s_mov_b32 s70, {s(S_WAVE)}", f"{Lw1}:", "s_sub_u32 s70, s70, 1", f"s_cbranch_scc1 {Lw2}", f"s_sleep {PFW}", f"s_branch {Lw1}", f"{Lw2}:")
    A(f"s_add_u32 {s(S_MEM)}, {s(S_MEM)}, 8192", f"buffer_load_dword v4, v2, {s(WS,4)}, {s(S_MEM)} offen sc1")
    A(f"buffer_load_dword v5, v1, {s(WS,4)}, {s(S_X)} offen sc1")
    for j in range(PF_VOX):
        if PFS: A(f"s_sleep {PFS}")
        A(f"s_add_u32 {s(S_TMP)}, {s(S_VOX)}, {(65536 << BTOUCH)*j}", f"buffer_load_dword v{6+j}, v1, {s(WS,4)}, {s(S_TMP)} offen sc1")
    A(f"s_add_u32 {s(S_X)}, {s(S_X)}, {s(S_P2)}", f"s_add_u32 {s(S_VOX)}, {s(S_VOX)}, {28*16*1024}",
      f"s_waitcnt vmcnt({1 + PF_VOX})",
      f"s_add_u32 {s(S_STEP)}, {s(S_STEP)}, 1", f"s_cmp_lt_u32 {s(S_STEP)}, {NSTEPS + 1}", f"s_cbranch_scc1 {Lstep}", "s_endpgm")

PF_VOX = 2
def rec_kernel(A, name, profile=False):
    kernel_begin(A, name)
    Lexit = A.label("exit")
    A("s_cmp_ge_u32 s2, 256", f"s_cbranch_scc1 {Lexit}")
    srd(A, WS, 96, 0x10000000); srd(A, XB, 24, 1835008); srd(A, DBG, 88, 256)
    A(f"s_getreg_b32 {s(S_TMP)}, hwreg(HW_REG_XCC_ID)", f"s_and_b32 {s(S_TMP)}, {s(S_TMP)}, 15", f"s_cmp_lg_u32 {s(S_TMP)}, 0", f"s_cbranch_scc1 {Lexit}")
    A("v_lshrrev_b32 v1, 6, v0", "s_nop 0", f"v_readfirstlane_b32 {s(S_WAVE)}, v1", "s_waitcnt lgkmcnt(0)")
    Lw = A.label("notw0")
    A(f"s_cmp_lg_u32 {s(S_WAVE)}, 0", f"s_cbranch_scc1 {Lw}")
    A("v_mov_b32 v1, 1", "v_mov_b32 v2, 0", "s_mov_b64 exec, 1",
      f"buffer_atomic_add v1, v2, {s(DBG,4)}, 0 offen sc0", "s_waitcnt vmcnt(0)", "ds_write_b32 v2, v1 offset:32768", "s_waitcnt lgkmcnt(0)", "s_mov_b64 exec, -1")
    A(f"{Lw}:", "s_barrier", "v_mov_b32 v2, 0", "ds_read_b32 v1, v2 offset:32768", "s_waitcnt lgkmcnt(0)", f"v_readfirstlane_b32 {s(S_ROLE)}, v1", "s_barrier")
    LPF = A.label("rolePF")
    A(f"s_cmp_ge_u32 {s(S_ROLE)}, 32", f"s_cbranch_scc1 {Lexit}")
    A(f"s_cmp_ge_u32 {s(S_ROLE)}, 30", f"s_cbranch_scc1 {LPF}")
    LB = A.label("roleB")
    A(f"s_cmp_ge_u32 {s(S_ROLE)}, 16", f"s_cbranch_scc1 {LB}")
    for R, fn in (("A", role_A), ("B", role_B)):
        if R == "B": A(f"{LB}:")
        Ls = [A.label(f"{R}w{w}") for w in range(4)]
        for w in range(1, 4):
            A(f"s_cmp_eq_u32 {s(S_WAVE)}, {w}", f"s_cbranch_scc1 {Ls[w]}")
        for w in range(4):
            A(f"{Ls[w]}:")
            fn(A, w, Lexit, profile)
    A(f"{LPF}:")
    role_PF(A, Lexit)
    A(f"{Lexit}:", "s_endpgm")
    A(kernel_desc(name))

def generate(path, profile=False, **kw):
    g = globals(); saved = {k: g[k] for k in kw}
    g.update(kw)
    A = Asm()
    A("; @launch kernel=rec_kernel grid=(256,1,1) block=(256,1,1) lds=131072")
    A('.amdgcn_target "amdgcn-amd-amdhsa--gfx950"', ".text")
    rec_kernel(A, "rec_kernel", profile=bool(profile))
    t = A.text().replace("    ; @launch", "; @launch")
    if profile == 2: t = t.replace("s_memtime", "s_memrealtime")
    if LDFL == 1: t = t.replace(" sc1\n", " nt\n")
    if LDFL == 2: t = t.replace(" sc1\n", " sc0 sc1\n")
    open(path, "w").write(t)
    g.update(saved)

if __name__ == "__main__":
    import sys
    generate(sys.argv[1], len(sys.argv) > 2)
```

```python
from asm import *
from model import *
import prep
from rec import WS, XB, DBG, S_WAVE, S_ROLE, S_TO, S_TMP, S_TMP2, wreg, timeout_step, TIMEOUT, idx_const, chk4, smf, FROFF
OUT, XA = 48, 52
S_SEG, S_H, S_A, S_B, S_C, S_D, S_BUF = range(56, 63)
NV, NX, NPG = 4, 3, 3
RP = 912
XBUF = 32*RP
W_TIMEOUT = 300000
WTOUCH = 1
XDELAY = 2
YSLEEP = 30
YSEG = 3
PVPRE = 0
YSEGL = 3
PVS = 4
VLA = 5
PVGAP = 10
VDELAY = 0
WSLEEP = 4
TLM = 0

def mfma(d, a, b, c=None, k16=False):
    op = "v_mfma_f32_16x16x16_bf16" if k16 else "v_mfma_f32_16x16x32_bf16"
    return f"{op} {v(d,4)}, {a}, {b}, " + (v(d,4) if c is None else c)
def wr4(f):
    return a_(4*f, 4) if f < 64 else v(120 + 4*(f-64), 4)

def lanes(A, VL, VG, VN, VL16):
    A(f"v_and_b32 {v(VL)}, 63, v0", f"v_lshrrev_b32 {v(VG)}, 4, {v(VL)}", f"v_and_b32 {v(VN)}, 15, {v(VL)}", f"v_lshlrev_b32 {v(VL16)}, 4, {v(VL)}")

def load_weights(A, base, VL16, share=0, vt=16, touch_only=False):
    if share and WTOUCH:
        n = -(-49 // (share*4))
        A(f"v_lshlrev_b32 {v(vt)}, 3, {v(VL16)}", f"s_lshl_b32 {s(S_TMP2)}, {s(S_SEG)}, 2", f"s_add_u32 {s(S_TMP2)}, {s(S_TMP2)}, {s(S_WAVE)}", f"s_lshl_b32 {s(S_TMP2)}, {s(S_TMP2)}, 13",
          f"s_mul_i32 {s(S_TMP)}, {s(S_H)}, {28*14336}", f"s_add_u32 {s(S_TMP)}, {s(S_TMP)}, {s(S_TMP2)}", f"s_add_u32 {s(S_TMP)}, {s(S_TMP)}, {base:#x}")
        for i in range(n):
            if (i+1)*share*4 > 49:
                A(f"s_cmp_lt_u32 {s(S_TMP2)}, {(49 - i*share*4)*8192}", f"s_cselect_b32 {s(S_TMP)}, {s(S_TMP)}, 0x40000000")
            A(f"buffer_load_dword {v(vt+1+i)}, {v(vt)}, {s(WS,4)}, {s(S_TMP)} offen sc1", f"s_add_u32 {s(S_TMP)}, {s(S_TMP)}, {share*4*8192}")
    A(f"s_mul_i32 {s(S_TMP)}, {s(S_H)}, {28*14336}", f"s_mul_i32 {s(S_TMP2)}, {s(S_WAVE)}, {7*14336}", f"s_add_u32 {s(S_TMP)}, {s(S_TMP)}, {s(S_TMP2)}",
      f"s_add_u32 {s(S_TMP)}, {s(S_TMP)}, {base:#x}")
    if touch_only: return
    for f in range(98):
        A(f"buffer_load_dwordx4 {wr4(f)}, {v(VL16)}, {s(WS,4)}, {s(S_TMP)} offen offset:{1024*(f%4)} sc1")
        if f % 4 == 3: A(f"s_add_u32 {s(S_TMP)}, {s(S_TMP)}, 4096")
        if f % 16 == 15 and f > 30: A("s_waitcnt vmcnt(32)")

def dma_x(A, seg_s, buf_s, VL16, XB=XB):
    A(f"s_mul_i32 {s(S_TMP)}, {s(seg_s)}, 28672", f"s_mul_i32 {s(S_TMP2)}, {s(S_WAVE)}, {8*896}", f"s_add_u32 {s(S_TMP)}, {s(S_TMP)}, {s(S_TMP2)}",
      f"s_mul_i32 {s(S_TMP2)}, {s(S_WAVE)}, {8*RP}", f"s_add_u32 {s(S_TMP2)}, {s(S_TMP2)}, {s(buf_s)}",
      "s_mov_b32 exec_hi, 0x00ffffff")
    for r in range(8):
        A(f"s_mov_b32 m0, {s(S_TMP2)}", f"s_add_u32 {s(S_TMP2)}, {s(S_TMP2)}, {RP}", f"buffer_load_dwordx4 {v(VL16)}, {s(XB,4)}, {s(S_TMP)} offen lds", f"s_add_u32 {s(S_TMP)}, {s(S_TMP)}, 896")
    A("s_mov_b32 exec_hi, -1")

def poll_eq(A, vt, voff, soff, want, abort, tag, ne=False, sleep=None):
    Lp, Lgo = A.label(tag + "p"), A.label(tag + "go")
    A(f"{Lp}:", f"buffer_load_dword {v(vt)}, {v(voff)}, {s(WS,4)}, {s(soff)} offen sc1", "s_waitcnt vmcnt(0)",
      f"v_cmp_{'eq' if ne else 'ne'}_u32 vcc, {want}, {v(vt)}", f"s_cbranch_vccz {Lgo}", f"s_sleep {sleep or WSLEEP}")
    timeout_step(A, Lp, abort)
    A(f"{Lgo}:")

def divmod_const(A, q, r, x, d):
    m = (65536 + d - 1) // d
    assert all((i*m) >> 16 == i // d for i in range(256))
    A(f"s_mul_i32 {s(q)}, {s(x)}, {m}", f"s_lshr_b32 {s(q)}, {s(q)}, 16", f"s_mul_i32 {s(r)}, {s(q)}, {d}", f"s_sub_u32 {s(r)}, {s(x)}, {s(r)}")

VMID = 4
def yield_start(A, abort, tag, va, vt):
    for _ in range(XDELAY): A("s_sleep 127")
    if not XDELAY: prep.wait_tiles(A, 16, 16, abort, tag, S_TO, vt, va, st=(68, 69, 70))
    prep.wait_counters(A, 0, 32, abort, tag, S_TO, vt, va, sleep=YSLEEP)
    if YSEG < 0: return
    Lg = A.label("ys")
    A(f"s_cmp_lg_u32 {s(S_WAVE)}, 0", f"s_cbranch_scc1 {Lg}", f"v_mov_b32 {v(va)}, 0", f"s_mov_b32 {s(S_A)}, {PF_OFF + FROFF + 16384*(YSEGL if tag == 'l' else YSEG):#x}")
    poll_eq(A, vt, va, S_A, 15, abort, tag + "y", sleep=YSLEEP)
    A(f"{Lg}:", "s_barrier")

def gemm_seg(A, ACC, FR, VRD, x_is_A, hook=None, every=None):
    rd = lambda ks: [f"ds_read_b128 {v(FR + 8*(ks % 2) + 4*t, 4)}, {v(VRD+t)} offset:{64*ks}" for t in range(2)]
    A(rd(0))
    for ks in range(14):
        if hook and hook[0] == ks: hook[1]()
        if every: every(ks)
        if ks + 1 < 14: A(rd(ks+1), "s_waitcnt lgkmcnt(2)")
        else: A("s_waitcnt lgkmcnt(0)")
        for cb in range(7):
            for t in range(2):
                xf, wf = v(FR + 8*(ks % 2) + 4*t, 4), wr4(cb*14 + ks)
                a, b = (xf, wf) if x_is_A else (wf, xf)
                A(mfma(ACC + 8*cb + 4*t, a, b, "0" if ks == 0 else None))

def role_V(A, abort):
    VL, VG, VN, VL16, T, VR0, VR1, VRD, VRD1, IDX = range(1, 11)
    ACC, FR, PK = 16, 72, 88
    S_J, S_PREV = S_C, S_D
    A("; ---------------- role V")
    lanes(A, VL, VG, VN, VL16)
    divmod_const(A, S_H, S_SEG, S_ROLE, NV)
    A(f"s_mov_b32 {s(S_J)}, {s(S_SEG)}", f"s_mov_b32 {s(S_BUF)}, 0", f"s_mov_b32 {s(S_PREV)}, 0x40000000", f"s_mov_b32 {s(S_TO)}, {W_TIMEOUT}")
    dma_x(A, S_SEG, S_BUF, VL16)
    A(f"s_mov_b32 {s(S_BUF)}, 32768", f"s_add_u32 {s(S_A)}, {s(S_SEG)}, {NV}")
    dma_x(A, S_A, S_BUF, VL16)
    VXS = 11
    A(f"v_lshrrev_b32 {v(T)}, 3, {v(VN)}", f"v_lshlrev_b32 {v(VXS)}, 4, {v(T)}", f"v_and_b32 {v(T)}, 3, {v(VN)}", f"v_lshl_add_u32 {v(VXS)}, {v(T)}, 2, {v(VXS)}",
      f"v_bfe_u32 {v(T)}, {v(VN)}, 2, 1", f"v_lshl_add_u32 {v(VXS)}, {v(T)}, 1, {v(VXS)}", f"v_mul_u32_u24 {v(VXS)}, {RP}, {v(VXS)}",
      f"v_mul_u32_u24 {v(T)}, 224, {v(VG)}", f"v_add_u32 {v(VXS)}, {v(VXS)}, {v(T)}",
      f"s_cmp_ge_u32 {s(S_H)}, 7", f"s_cselect_b32 {s(S_TMP)}, {RP - 7*32}, 0", f"s_lshl_b32 {s(S_TMP2)}, {s(S_H)}, 5", f"s_add_u32 {s(S_TMP)}, {s(S_TMP)}, {s(S_TMP2)}", f"v_add_u32 {v(VXS)}, {s(S_TMP)}, {v(VXS)}",
      f"s_lshl_b32 s63, {s(S_H)}, 11", f"s_add_u32 s63, s63, {XS_OFF:#x}", f"s_cmp_lt_u32 {s(S_H)}, 14", "s_cselect_b32 s63, s63, 0x40000000", f"s_cmp_eq_u32 {s(S_WAVE)}, 3", "s_cselect_b32 s63, s63, 0x40000000")
    A(f"v_lshrrev_b32 {v(T)}, 2, {v(VN)}", f"v_lshlrev_b32 {v(VR0)}, 3, {v(T)}", f"v_and_b32 {v(T)}, 3, {v(VN)}", f"v_add_u32 {v(VR0)}, {v(VR0)}, {v(T)}",
      f"v_mul_u32_u24 {v(VR0)}, {RP}, {v(VR0)}", f"v_lshl_add_u32 {v(VR0)}, {v(VG)}, 4, {v(VR0)}", f"v_add_u32 {v(VR1)}, {4*RP}, {v(VR0)}")
    idx_const(A, IDX, VN, T)
    def signal(so):
        A(f"s_cmp_eq_u32 {s(S_WAVE)}, 0", f"s_cselect_b32 {s(S_B)}, {s(so)}, 0x40000000",
          f"v_mov_b32 {v(T)}, 1", "s_mov_b64 exec, 1", f"buffer_atomic_add {v(T)}, off, {s(WS,4)}, {s(S_B)} sc1", "s_mov_b64 exec, -1", "s_nop 3")
    Lp, Lepi = A.label("Vloop"), A.label("Vepi")
    A(f"v_mov_b32 {v(VRD)}, {v(VR0)}", f"v_mov_b32 {v(VRD+1)}, {v(VR1)}", f"v_mov_b32 {v(12)}, {v(VXS)}", "s_waitcnt vmcnt(0)", f"s_add_u32 {s(S_A)}, {s(S_H)}, 16")
    prep.wait_tiles(A, s(S_A), 1, abort, "V", S_TO, 14, 15, st=(68, 69, 70))
    load_weights(A, WB_OFF, VL16, NV, 100, touch_only=True)
    def wld(ks):
        return [x for cb in range(7) for x in (f"s_add_u32 {s(S_TMP2)}, {s(S_TMP)}, {cb*14336 + 1024*ks}", f"buffer_load_dwordx4 {wr4(cb*14 + ks)}, {v(VL16)}, {s(WS,4)}, {s(S_TMP2)} offen sc1")]
    for ks in range(VLA): A(wld(ks))
    def first(ks):
        if ks + VLA < 14: A(wld(ks + VLA))
        A(f"s_waitcnt vmcnt({7*min(VLA, 13 - ks)})")
    gemm_seg(A, ACC, FR, VRD, True, every=first)
    if TLM: A("s_memrealtime s[92:93]")
    A(f"s_branch {Lepi}")
    A(f"{Lp}:")
    A(f"v_add_u32 {v(VRD)}, {s(S_BUF)}, {v(VR0)}", f"v_add_u32 {v(VRD+1)}, {s(S_BUF)}, {v(VR1)}", f"v_add_u32 {v(12)}, {s(S_BUF)}, {v(VXS)}")
    A(f"s_xor_b32 {s(S_BUF)}, {s(S_BUF)}, {32768}", f"s_add_u32 {s(S_A)}, {s(S_SEG)}, {NV}")
    dma_x(A, S_A, S_BUF, VL16)
    def mid():
        A("s_waitcnt vmcnt(8)", "s_barrier")
        signal(S_PREV)
    gemm_seg(A, ACC, FR, VRD, True, hook=(VMID, mid))
    A(f"{Lepi}:")
    A(f"s_mul_i32 {s(S_TMP)}, {s(S_SEG)}, 458752", f"s_mul_i32 {s(S_TMP2)}, {s(S_WAVE)}, {7*16384}", f"s_add_u32 {s(S_TMP)}, {s(S_TMP)}, {s(S_TMP2)}",
      f"s_lshl_b32 {s(S_TMP2)}, {s(S_H)}, 10", f"s_add_u32 {s(S_TMP)}, {s(S_TMP)}, {s(S_TMP2)}", f"s_add_u32 {s(S_TMP)}, {s(S_TMP)}, {VOX_OFF:#x}",
      f"s_lshl_b32 {s(S_PREV)}, {s(S_SEG)}, 14", f"s_add_u32 {s(S_PREV)}, {s(S_PREV)}, {PF_OFF + FROFF:#x}")
    A(f"ds_read_b128 {v(FR,4)}, {v(12)}", f"ds_read_b128 {v(FR+4,4)}, {v(12)} offset:16", f"s_mul_i32 {s(S_TMP2)}, {s(S_SEG)}, 28672", f"s_add_u32 {s(S_TMP2)}, {s(S_TMP2)}, s63")
    A("s_waitcnt vmcnt(1) lgkmcnt(0)", "s_barrier")
    b = FR
    A(f"v_swap_b32 {v(b+1)}, {v(b+2)}", f"v_swap_b32 {v(b+2)}, {v(b+4)}", f"v_swap_b32 {v(b+3)}, {v(b+6)}", f"v_swap_b32 {v(b+6)}, {v(b+5)}",
      f"buffer_store_dwordx4 {v(b,4)}, {v(VL16)}, {s(WS,4)}, {s(S_TMP2)} offen sc1", f"buffer_store_dwordx4 {v(b+4,4)}, {v(VL16)}, {s(WS,4)}, {s(S_TMP2)} offen offset:1024 sc1")
    for cb in range(7):
        d = ACC + 8*cb
        for r in range(4): A(f"v_cvt_pk_bf16_f32 {v(PK+4*cb+r)}, {v(d+2*r)}, {v(d+2*r+1)}")
        A(f"buffer_store_dwordx4 {v(PK+4*cb,4)}, {v(VL16)}, {s(WS,4)}, {s(S_TMP)} offen sc1", f"s_add_u32 {s(S_TMP)}, {s(S_TMP)}, 16384")
    Lnf = A.label("Vnf")
    A(f"s_cmp_ge_u32 {s(S_SEG)}, {NV}", f"s_cbranch_scc1 {Lnf}", "s_waitcnt vmcnt(0)")
    prep.wait_counters(A, 0, 32, abort, "V", S_TO, 14, 15)
    signal(S_PREV)
    A(f"s_mov_b32 {s(S_PREV)}, 0x40000000", f"{Lnf}:")
    A(f"s_add_u32 {s(S_SEG)}, {s(S_SEG)}, {NV}", f"s_cmp_lt_u32 {s(S_SEG)}, 64", f"s_cbranch_scc1 {Lp}")
    A("s_waitcnt vmcnt(0)", "s_barrier")
    signal(S_PREV)
    if TLM: A("s_memrealtime s[94:95]")
    MF = 72
    A(f"s_mov_b32 {s(S_SEG)}, {s(S_J)}")
    Lq, Lm, Lmo = A.label("Vq"), A.label("Vm"), A.label("Vmo")
    A(f"{Lq}:")
    for r in range(28): A(f"v_mov_b32 {v(ACC+r)}, 0")
    A(f"s_lshl_b32 {s(S_A)}, {s(S_SEG)}, 13", f"s_add_u32 {s(S_A)}, {s(S_A)}, {MEMS_OFF:#x}", f"s_add_u32 {s(S_B)}, {s(S_A)}, 4096")
    A(f"v_mov_b32 {v(12)}, 7164")
    poll_eq(A, T, 12, S_A, -1, abort, "vm", ne=True, sleep=1)
    A(f"{Lm}:")
    for kb in range(7): A(f"buffer_load_dwordx4 {v(MF+4*kb,4)}, {v(VL16)}, {s(WS,4)}, {s(S_A if kb < 4 else S_B)} offen offset:{1024*(kb%4)} sc1")
    A("s_waitcnt vmcnt(0)")
    for kb in range(7): A(chk4(T, MF+4*kb, kb == 0))
    A(f"v_cmp_eq_u32 vcc, -1, {v(T)}", f"s_cbranch_vccz {Lmo}")
    timeout_step(A, Lm, abort)
    A(f"{Lmo}:")
    for kb in range(7):
        for cb in range(7):
            f = cb*14 + 2*kb
            A(smf(ACC + 4*cb, MF + 4*kb, a_(4*f, 8) if f < 64 else v(120 + 4*(f-64), 8), IDX))
    A(f"s_mul_i32 {s(S_TMP)}, {s(S_SEG)}, 114688", f"s_mul_i32 {s(S_TMP2)}, {s(S_WAVE)}, {7*4096}", f"s_add_u32 {s(S_TMP)}, {s(S_TMP)}, {s(S_TMP2)}",
      f"s_lshl_b32 {s(S_TMP2)}, {s(S_H)}, 8", f"s_add_u32 {s(S_TMP)}, {s(S_TMP)}, {s(S_TMP2)}", f"s_add_u32 {s(S_TMP)}, {s(S_TMP)}, {VPE_OFF:#x}", f"v_lshlrev_b32 {v(13)}, 2, {v(VL)}", "s_nop 1")
    for cb in range(7):
        r = ACC + 4*cb
        A(f"v_add_f32 {v(r)}, {v(r)}, {v(r+1)}", f"v_add_f32 {v(r+2)}, {v(r+2)}, {v(r+3)}", f"v_cvt_pk_bf16_f32 {v(PK+20+cb)}, {v(r)}, {v(r+2)}", f"v_min_u32 {v(PK+20+cb)}, -2, {v(PK+20+cb)}",
          f"buffer_store_dword {v(PK+20+cb)}, {v(13)}, {s(WS,4)}, {s(S_TMP)} offen sc1", f"s_add_u32 {s(S_TMP)}, {s(S_TMP)}, 4096")
    A(f"s_lshl_b32 {s(S_TMP)}, {s(S_SEG)}, 9", f"s_lshl_b32 {s(S_TMP2)}, {s(S_H)}, 4", f"s_add_u32 {s(S_TMP)}, {s(S_TMP)}, {s(S_TMP2)}", f"s_lshl_b32 {s(S_TMP2)}, {s(S_WAVE)}, 2",
      f"s_add_u32 {s(S_TMP)}, {s(S_TMP)}, {s(S_TMP2)}", f"s_add_u32 {s(S_TMP)}, {s(S_TMP)}, {FV_OFF:#x}", f"v_mov_b32 {v(T)}, 1",
      "s_waitcnt vmcnt(0)", "s_mov_b64 exec, 1", f"buffer_store_dword {v(T)}, off, {s(WS,4)}, {s(S_TMP)} sc1", "s_mov_b64 exec, -1")
    A(f"s_add_u32 {s(S_SEG)}, {s(S_SEG)}, {NV}", f"s_cmp_lt_u32 {s(S_SEG)}, 64", f"s_cbranch_scc1 {Lq}", "s_endpgm")

XMIMG = 65536
XRED = 73728

def role_X(A, abort):
    VL, VG, VN, VL16, T, VR0, VK0, VRD, VRD1, VKD, VKM, VRW, VRR, VMW, T2 = range(1, 16)
    ACC, FR, SX, KF = 16, 72, 88, 104
    A("; ---------------- role X")
    lanes(A, VL, VG, VN, VL16)
    divmod_const(A, S_H, S_SEG, S_ROLE, NX)
    A(f"s_mov_b32 {s(S_BUF)}, 0", f"s_mov_b32 {s(S_TO)}, {W_TIMEOUT}")
    dma_x(A, S_SEG, S_BUF, VL16)
    yield_start(A, abort, "x", 16, 17)
    load_weights(A, WA_OFF, VL16, NX, 20)
    A(f"v_mul_u32_u24 {v(VR0)}, {RP}, {v(VN)}", f"v_lshl_add_u32 {v(VR0)}, {v(VG)}, 4, {v(VR0)}")
    A(f"v_lshrrev_b32 {v(T)}, 2, {v(VN)}", f"v_lshlrev_b32 {v(VK0)}, 3, {v(T)}", f"v_and_b32 {v(T)}, 3, {v(VN)}", f"v_add_u32 {v(VK0)}, {v(VK0)}, {v(T)}",
      f"v_mul_u32_u24 {v(VK0)}, {RP}, {v(VK0)}", f"v_lshl_add_u32 {v(VK0)}, {v(VG)}, 3, {v(VK0)}", f"s_mul_i32 {s(S_TMP)}, {s(S_WAVE)}, 224", f"v_add_u32 {v(VK0)}, {s(S_TMP)}, {v(VK0)}")
    A(f"v_lshrrev_b32 {v(T)}, 2, {v(VN)}", f"v_lshlrev_b32 {v(VKM)}, 6, {v(T)}", f"v_and_b32 {v(T)}, 1, {v(VN)}", f"v_lshl_add_u32 {v(VKM)}, {v(T)}, 5, {v(VKM)}",
      f"v_lshl_add_u32 {v(VKM)}, {v(VG)}, 2, {v(VKM)}", f"s_mul_i32 {s(S_TMP)}, {s(S_WAVE)}, 1792", f"s_add_u32 {s(S_TMP)}, {s(S_TMP)}, {XMIMG}", f"v_add_u32 {v(VKM)}, {s(S_TMP)}, {v(VKM)}")
    A(f"v_add_u32 {v(VMW)}, {s(S_TMP)}, {v(VL16)}")
    A(f"s_lshl_b32 {s(S_TMP)}, {s(S_WAVE)}, 12", f"s_add_u32 {s(S_TMP)}, {s(S_TMP)}, {XRED}", f"v_add_u32 {v(VRW)}, {s(S_TMP)}, {v(VL16)}")
    A(f"s_lshl_b32 {s(S_TMP)}, {s(S_WAVE)}, 10", f"s_add_u32 {s(S_TMP)}, {s(S_TMP)}, {XRED}", f"v_add_u32 {v(VRR)}, {s(S_TMP)}, {v(VL16)}")
    A(f"s_mov_b32 {s(S_D)}, 0x40000000")
    Lp = A.label("Xloop")
    A("s_waitcnt vmcnt(0)", "s_barrier")
    if TLM: A("s_memrealtime s[92:93]")
    A(f"{Lp}:")
    A(f"v_add_u32 {v(VRD)}, {s(S_BUF)}, {v(VR0)}", f"v_add_u32 {v(VRD1)}, {16*RP}, {v(VRD)}", f"v_add_u32 {v(VKD)}, {s(S_BUF)}, {v(VK0)}")
    A(f"s_xor_b32 {s(S_BUF)}, {s(S_BUF)}, {32768}", f"s_add_u32 {s(S_A)}, {s(S_SEG)}, {NX}")
    dma_x(A, S_A, S_BUF, VL16)
    def xflag(n):
        A(f"s_waitcnt vmcnt({n})", f"v_mov_b32 {v(T)}, 1", "s_mov_b64 exec, 1", f"buffer_store_dword {v(T)}, off, {s(WS,4)}, {s(S_D)} sc1", "s_mov_b64 exec, -1", "s_nop 3")
    gemm_seg(A, ACC, FR, VRD, False, hook=(VMID, lambda: xflag(8)))
    kreg = lambda cb: KF + 4*cb if cb < 4 else FR + 4*(cb-4)
    for cb in range(7):
        A(f"ds_read_b64 {v(kreg(cb),2)}, {v(VKD)} offset:{32*cb}", f"ds_read_b64 {v(kreg(cb)+2,2)}, {v(VKD)} offset:{32*cb + 4*RP}")
    for cb in range(7):
        for t in range(2):
            d = ACC + 8*cb + 4*t
            A(f"v_cvt_pk_bf16_f32 {v(d)}, {v(d)}, {v(d+1)}", f"v_cvt_pk_bf16_f32 {v(d+1)}, {v(d+2)}, {v(d+3)}")
    for cb in range(7):
        A(f"s_waitcnt lgkmcnt({2*(6-cb)})")
        for kt in range(2):
            for t in range(2):
                A(mfma(SX + 8*kt + 4*t, v(kreg(cb)+2*kt, 2), v(ACC + 8*cb + 4*t, 2), "0" if cb == 0 else None, k16=True))
    A("s_nop 7")
    for kt in range(2):
        for t in range(2): A(f"ds_write_b128 {v(VRW)}, {v(SX + 8*kt + 4*t, 4)} offset:{2048*kt + 1024*t}")
    A("s_waitcnt lgkmcnt(0)", "s_barrier")
    L1 = A.label("Xr1")
    A(f"s_cmp_ge_u32 {s(S_WAVE)}, 2", f"s_cbranch_scc1 {L1}")
    for kt in range(2):
        for w in range(4): A(f"ds_read_b128 {v(FR + 4*w, 4)}, {v(VRR)} offset:{4096*w + 2048*kt}")
        A("s_waitcnt lgkmcnt(0)")
        for r in range(4):
            A(f"v_add_f32 {v(FR+r)}, {v(FR+r)}, {v(FR+4+r)}", f"v_add_f32 {v(FR+8+r)}, {v(FR+8+r)}, {v(FR+12+r)}", f"v_add_f32 {v(SX+4*kt+r)}, {v(FR+r)}, {v(FR+8+r)}")
    A(f"s_lshl_b32 {s(S_TMP)}, {s(S_WAVE)}, 4", f"v_add_u32 {v(T)}, {s(S_TMP)}, {v(VN)}", f"v_lshlrev_b32 {v(T2)}, 3, {v(VG)}", f"v_sub_u32 {v(T)}, {v(T)}, {v(T2)}", f"v_mov_b32 {v(T2)}, 0xf149f2ca")
    for j in range(8):
        A(f"v_cmp_le_i32 vcc, {j}, {v(T)}", "s_nop 1", f"v_cndmask_b32 {v(SX+j)}, {v(T2)}, {v(SX+j)}, vcc")
    A(f"{L1}:")
    Lm, Lmo = A.label("Xm"), A.label("Xmo")
    A(f"s_lshl_b32 {s(S_B)}, {s(S_SEG)}, 13", f"s_mul_i32 {s(S_TMP)}, {s(S_WAVE)}, 1792", f"s_add_u32 {s(S_B)}, {s(S_B)}, {s(S_TMP)}", f"s_add_u32 {s(S_B)}, {s(S_B)}, {MEMS_OFF:#x}")
    A(f"s_lshl_b32 {s(S_C)}, {s(S_SEG)}, 13", f"s_add_u32 {s(S_C)}, {s(S_C)}, {MEMS_OFF + 7164:#x}", f"v_mov_b32 {v(T2)}, 0")
    poll_eq(A, T, T2, S_C, -1, abort, "xg", ne=True, sleep=1)
    A(f"{Lm}:", f"buffer_load_dwordx4 {v(KF,4)}, {v(VL16)}, {s(WS,4)}, {s(S_B)} offen sc1", f"buffer_load_dwordx4 {v(KF+4,4)}, {v(VL16)}, {s(WS,4)}, {s(S_B)} offen offset:768 sc1",
      "s_waitcnt vmcnt(0)", f"v_max3_u32 {v(T)}, {v(KF)}, {v(KF+1)}, {v(KF+2)}", f"v_max3_u32 {v(T)}, {v(T)}, {v(KF+3)}, {v(KF+4)}", f"v_max3_u32 {v(T)}, {v(T)}, {v(KF+5)}, {v(KF+6)}",
      f"v_max_u32 {v(T)}, {v(T)}, {v(KF+7)}", f"v_cmp_eq_u32 vcc, -1, {v(T)}", f"s_cbranch_vccz {Lmo}", f"s_sleep {WSLEEP}")
    timeout_step(A, Lm, abort)
    A(f"{Lmo}:")
    if TLM: A("s_memrealtime s[94:95]")
    A(f"ds_write_b128 {v(VMW)}, {v(KF,4)}", f"ds_write_b128 {v(VMW)}, {v(KF+4,4)} offset:768")
    for cb in range(7):
        A(f"v_add_u32 {v(T)}, {256*cb}, {v(VKM)}", f"ds_read2_b32 {v(FR+2*cb,2)}, {v(T)} offset0:0 offset1:4")
    A("s_waitcnt lgkmcnt(0)")
    for cb in range(7):
        for t in range(2):
            A(mfma(SX + 8 + 4*t, v(FR+2*cb, 2), v(ACC + 8*cb + 4*t, 2), "0" if cb == 0 else None, k16=True))
    A("s_barrier")
    A("s_nop 6")
    for t in range(2): A(f"ds_write_b64 {v(VRW)}, {v(SX + 8 + 4*t, 2)} offset:{1024*t}")
    A("s_waitcnt lgkmcnt(0)", "s_barrier")
    L2 = A.label("Xr2")
    A(f"s_cmp_ge_u32 {s(S_WAVE)}, 2", f"s_cbranch_scc1 {L2}")
    for w in range(4): A(f"ds_read_b64 {v(FR + 2*w, 2)}, {v(VRR)} offset:{4096*w}")
    A("s_waitcnt lgkmcnt(0)")
    for r in range(2):
        A(f"v_add_f32 {v(FR+r)}, {v(FR+r)}, {v(FR+2+r)}", f"v_add_f32 {v(FR+4+r)}, {v(FR+4+r)}, {v(FR+6+r)}", f"v_add_f32 {v(SX+8+r)}, {v(FR+r)}, {v(FR+4+r)}")
    A(f"v_max3_f32 {v(T)}, {v(SX)}, {v(SX+1)}, {v(SX+2)}", f"v_max3_f32 {v(T)}, {v(T)}, {v(SX+3)}, {v(SX+4)}", f"v_max3_f32 {v(T)}, {v(T)}, {v(SX+5)}, {v(SX+6)}",
      f"v_max3_f32 {v(T)}, {v(T)}, {v(SX+7)}, {v(SX+8)}", f"v_max_f32 {v(T)}, {v(T)}, {v(SX+9)}")
    def xred(op):
        for sw in ("v_permlane16_swap_b32", "v_permlane32_swap_b32"):
            A(f"v_mov_b32 {v(T2)}, {v(T)}", "s_nop 1", f"{sw} {v(T)}, {v(T2)}", f"{op} {v(T)}, {v(T)}, {v(T2)}")
    xred("v_max_f32")
    for j in range(10): A(f"v_sub_f32 {v(SX+j)}, {v(SX+j)}, {v(T)}")
    for j in range(10): A(f"v_exp_f32 {v(SX+j)}, {v(SX+j)}")
    A(f"v_add_f32 {v(T)}, {v(SX)}, {v(SX+1)}")
    for j in range(2, 10): A(f"v_add_f32 {v(T)}, {v(T)}, {v(SX+j)}")
    xred("v_add_f32")
    A(f"v_rcp_f32 {v(T)}, {v(T)}", "s_nop 0")
    for j in range(10): A(f"v_mul_f32 {v(SX+j)}, {v(SX+j)}, {v(T)}")
    for r in range(5): A(f"v_cvt_pk_bf16_f32 {v(FR+r)}, {v(SX+2*r)}, {v(SX+2*r+1)}", f"v_min_u32 {v(FR+r)}, -2, {v(FR+r)}")
    A(f"s_mul_i32 {s(S_TMP)}, {s(S_SEG)}, 40960", f"s_mul_i32 {s(S_TMP2)}, {s(S_WAVE)}, 20480", f"s_add_u32 {s(S_TMP)}, {s(S_TMP)}, {s(S_TMP2)}", f"s_add_u32 {s(S_TMP)}, {s(S_TMP)}, {PX_OFF:#x}",
      f"s_lshl_b32 {s(S_TMP2)}, {s(S_H)}, 10", f"s_add_u32 {s(S_TMP2)}, {s(S_TMP2)}, {s(S_TMP)}",
      f"buffer_store_dwordx4 {v(FR,4)}, {v(VL16)}, {s(WS,4)}, {s(S_TMP2)} offen sc1",
      f"s_lshl_b32 {s(S_TMP2)}, {s(S_H)}, 8", f"s_add_u32 {s(S_TMP)}, {s(S_TMP)}, {s(S_TMP2)}", f"s_add_u32 {s(S_TMP)}, {s(S_TMP)}, 16384", f"v_lshlrev_b32 {v(T2)}, 2, {v(VL)}",
      f"buffer_store_dword {v(FR+4)}, {v(T2)}, {s(WS,4)}, {s(S_TMP)} offen sc1")
    A(f"s_lshl_b32 {s(S_TMP)}, {s(S_SEG)}, 9", f"s_lshl_b32 {s(S_TMP2)}, {s(S_WAVE)}, 6", f"s_add_u32 {s(S_TMP)}, {s(S_TMP)}, {s(S_TMP2)}", f"s_lshl_b32 {s(S_TMP2)}, {s(S_H)}, 2",
      f"s_add_u32 {s(S_TMP)}, {s(S_TMP)}, {s(S_TMP2)}", f"s_add_u32 {s(S_D)}, {s(S_TMP)}, {FV_OFF + 256:#x}")
    A(f"{L2}:")
    A("s_barrier")
    A(f"s_add_u32 {s(S_SEG)}, {s(S_SEG)}, {NX}", f"s_cmp_lt_u32 {s(S_SEG)}, 64", f"s_cbranch_scc1 {Lp}")
    xflag(0)
    A("s_endpgm")

def role_PV(A, abort):
    VL, VG, VN, VL16, T, VZ, VF1, VF2, VRW, VRR, VO_ = range(1, 12)
    VOX, VP, PF_, ACC, RD = 16, 80, 96, 116, 132
    S_T, S_J = S_C, S_D
    lanes(A, VL, VG, VN, VL16)
    A(f"s_mul_i32 {s(S_SEG)}, {s(S_ROLE)}, 4682", f"s_lshr_b32 {s(S_SEG)}, {s(S_SEG)}, 16", f"s_mul_i32 {s(S_TMP)}, {s(S_SEG)}, 14", f"s_sub_u32 {s(S_TMP)}, {s(S_ROLE)}, {s(S_TMP)}",
      f"s_and_b32 {s(S_T)}, {s(S_TMP)}, 1", f"s_lshr_b32 {s(S_J)}, {s(S_TMP)}, 1", f"s_mov_b32 {s(S_TO)}, {W_TIMEOUT}")
    A(f"v_mov_b32 {v(VZ)}, 0")
    A(f"v_and_b32 {v(T)}, 3, {v(VL)}", f"v_lshlrev_b32 {v(VF1)}, 2, {v(T)}", f"s_lshl_b32 {s(S_TMP)}, {s(S_T)}, 6", f"s_lshl_b32 {s(S_TMP2)}, {s(S_WAVE)}, 4", f"s_add_u32 {s(S_TMP)}, {s(S_TMP)}, {s(S_TMP2)}",
      f"s_add_u32 {s(S_TMP)}, {s(S_TMP)}, 256", f"v_add_u32 {v(VF1)}, {s(S_TMP)}, {v(VF1)}")
    A(f"v_lshlrev_b32 {v(VF2)}, 2, {v(VN)}", f"s_lshl_b32 {s(S_TMP)}, {s(S_WAVE)}, 6", f"v_add_u32 {v(VF2)}, {s(S_TMP)}, {v(VF2)}",
      f"v_cmp_gt_u32 vcc, 16, {v(VL)}", "s_nop 1", f"v_cndmask_b32 {v(VF1)}, {v(VF1)}, {v(VF2)}, vcc", f"v_lshlrev_b32 {v(VF2)}, 2, {v(VL)}")
    A(f"s_lshl_b32 {s(S_TMP)}, {s(S_WAVE)}, 12", f"v_add_u32 {v(VRW)}, {s(S_TMP)}, {v(VL16)}", f"s_lshl_b32 {s(S_TMP)}, {s(S_WAVE)}, 10", f"v_add_u32 {v(VRR)}, {s(S_TMP)}, {v(VL16)}")
    A(f"v_mul_u32_u24 {v(VO_)}, 1792, {v(VN)}", f"v_lshl_add_u32 {v(VO_)}, {v(VG)}, 3, {v(VO_)}", f"s_mul_i32 {s(S_TMP)}, {s(S_T)}, {16*1792}", f"s_lshl_b32 {s(S_TMP2)}, {s(S_J)}, 7",
      f"s_add_u32 {s(S_TMP)}, {s(S_TMP)}, {s(S_TMP2)}", f"s_lshl_b32 {s(S_TMP2)}, {s(S_WAVE)}, 5", f"s_add_u32 {s(S_TMP)}, {s(S_TMP)}, {s(S_TMP2)}", f"s_add_u32 {s(S_TMP)}, {s(S_TMP)}, 896",
      f"v_add_u32 {v(VO_)}, {s(S_TMP)}, {v(VO_)}")
    yield_start(A, abort, "p", 16, 17)
    Lp = A.label("PVloop")
    A(f"{Lp}:")
    Llast, Lld, Lok, Lpre, Lvx = A.label("PVlast"), A.label("PVld"), A.label("PVok"), A.label("PVpre"), A.label("PVvx")
    A(f"s_lshl_b32 {s(S_B)}, {s(S_SEG)}, 9", f"s_add_u32 {s(S_B)}, {s(S_B)}, {FV_OFF:#x}")
    A(f"s_cmp_ge_u32 {s(S_SEG)}, {PVPRE}", f"s_cbranch_scc1 {Lpre}")
    poll_eq(A, T, VF1, S_B, 1, abort, "f0", sleep=PVS)
    A(f"s_branch {Lvx}", f"{Lpre}:")
    A(f"s_lshl_b32 {s(S_A)}, {s(S_SEG)}, 14", f"s_add_u32 {s(S_A)}, {s(S_A)}, {PF_OFF + FROFF:#x}")
    poll_eq(A, T, VZ, S_A, 15, abort, "cv")
    A(f"{Lvx}:")
    A(f"s_mul_i32 {s(S_TMP)}, {s(S_SEG)}, 458752", f"s_lshl_b32 {s(S_TMP2)}, {s(S_J)}, 16", f"s_add_u32 {s(S_TMP)}, {s(S_TMP)}, {s(S_TMP2)}", f"s_lshl_b32 {s(S_TMP2)}, {s(S_WAVE)}, 12",
      f"s_add_u32 {s(S_TMP)}, {s(S_TMP)}, {s(S_TMP2)}", f"s_add_u32 {s(S_TMP)}, {s(S_TMP)}, {VOX_OFF:#x}")
    for cc in range(4):
        for hh in range(4): A(f"buffer_load_dwordx4 {v(VOX + 16*cc + 4*hh, 4)}, {v(VL16)}, {s(WS,4)}, {s(S_TMP)} offen offset:{1024*hh} sc1")
        A(f"s_add_u32 {s(S_TMP)}, {s(S_TMP)}, 16384")
    A(f"s_cmp_lt_u32 {s(S_SEG)}, {PVPRE}", f"s_cbranch_scc1 {Lld}")
    A(f"s_cmp_eq_u32 {s(S_SEG)}, 63", f"s_cbranch_scc1 {Llast}")
    poll_eq(A, T, VF1, S_B, 1, abort, "fx", sleep=2)
    A(f"s_branch {Lld}", f"{Llast}:", f"s_mov_b32 {s(S_A)}, {MEMS_OFF + 63*8192 + 7164:#x}")
    poll_eq(A, T, VZ, S_A, -1, abort, "pg", ne=True, sleep=1)
    if PVGAP: A(f"s_sleep {PVGAP}")
    A(f"{Lld}:")
    if TLM: A("s_memrealtime s[92:93]")
    A(f"s_mul_i32 {s(S_TMP)}, {s(S_SEG)}, 40960", f"s_mul_i32 {s(S_TMP2)}, {s(S_T)}, 20480", f"s_add_u32 {s(S_TMP)}, {s(S_TMP)}, {s(S_TMP2)}", f"s_add_u32 {s(S_TMP)}, {s(S_TMP)}, {PX_OFF:#x}",
      f"s_lshl_b32 {s(S_TMP2)}, {s(S_WAVE)}, 12", f"s_add_u32 {s(S_TMP2)}, {s(S_TMP2)}, {s(S_TMP)}")
    for hh in range(4): A(f"buffer_load_dwordx4 {v(PF_ + 4*hh, 4)}, {v(VL16)}, {s(WS,4)}, {s(S_TMP2)} offen offset:{1024*hh} sc1")
    A(f"s_lshl_b32 {s(S_TMP2)}, {s(S_WAVE)}, 10", f"s_add_u32 {s(S_TMP)}, {s(S_TMP)}, {s(S_TMP2)}", f"s_add_u32 {s(S_TMP)}, {s(S_TMP)}, 16384")
    for hh in range(4): A(f"buffer_load_dword {v(PF_ + 16 + hh)}, {v(VF2)}, {s(WS,4)}, {s(S_TMP)} offen offset:{256*hh} sc1")
    A(f"s_mul_i32 {s(S_TMP)}, {s(S_SEG)}, 114688", f"s_lshl_b32 {s(S_TMP2)}, {s(S_J)}, 14", f"s_add_u32 {s(S_TMP)}, {s(S_TMP)}, {s(S_TMP2)}", f"s_lshl_b32 {s(S_TMP2)}, {s(S_WAVE)}, 10",
      f"s_add_u32 {s(S_TMP)}, {s(S_TMP)}, {s(S_TMP2)}", f"s_add_u32 {s(S_TMP)}, {s(S_TMP)}, {VPE_OFF:#x}")
    for cc in range(4):
        for hh in range(4): A(f"buffer_load_dword {v(VP + 4*cc + hh)}, {v(VF2)}, {s(WS,4)}, {s(S_TMP)} offen offset:{256*hh} sc1")
        A(f"s_add_u32 {s(S_TMP)}, {s(S_TMP)}, 4096")
    for hh in range(4):
        A(f"s_waitcnt vmcnt({23 - hh})")
        for cc in range(4): A(mfma(ACC + 4*cc, v(VOX + 16*cc + 4*hh, 4), v(PF_ + 4*hh, 4), "0" if hh == 0 else None))
    A("s_waitcnt vmcnt(0)")
    for k in range(9): A(chk4(T, VP + 4*k, k == 0))
    A(f"v_cmp_eq_u32 vcc, -1, {v(T)}", f"s_cbranch_vccz {Lok}")
    timeout_step(A, Lld, abort)
    A(f"{Lok}:")
    for cc in range(4): A(mfma(ACC + 4*cc, v(VP + 4*cc, 4), v(PF_ + 16, 4)))
    A("s_nop 7")
    for cc in range(4): A(f"ds_write_b128 {v(VRW)}, {v(ACC + 4*cc, 4)} offset:{1024*cc}")
    A("s_waitcnt lgkmcnt(0)", "s_barrier")
    for w in range(4): A(f"ds_read_b128 {v(RD + 4*w, 4)}, {v(VRR)} offset:{4096*w}")
    A("s_waitcnt lgkmcnt(0)", "s_barrier")
    for r in range(4):
        A(f"v_add_f32 {v(RD+r)}, {v(RD+r)}, {v(RD+4+r)}", f"v_add_f32 {v(RD+8+r)}, {v(RD+8+r)}, {v(RD+12+r)}", f"v_add_f32 {v(RD+r)}, {v(RD+r)}, {v(RD+8+r)}")
    A(f"v_cvt_pk_bf16_f32 {v(RD+4)}, {v(RD)}, {v(RD+1)}", f"v_cvt_pk_bf16_f32 {v(RD+5)}, {v(RD+2)}, {v(RD+3)}",
      f"s_mul_i32 {s(S_TMP)}, {s(S_SEG)}, {32*1792}", f"buffer_store_dwordx2 {v(RD+4,2)}, {v(VO_)}, {s(OUT,4)}, {s(S_TMP)} offen")
    A(f"s_add_u32 {s(S_SEG)}, {s(S_SEG)}, {NPG}", f"s_cmp_lt_u32 {s(S_SEG)}, 64", f"s_cbranch_scc1 {Lp}", "s_endpgm")

LOIMG = 32768

def role_L(A, abort):
    VL, VG, VN, VL16, T, T2, VR0, VL4, VMK, VON, VO_, VZ, VOA = range(1, 14)
    TB = [16, 72, 128, 184]
    W_ = 240
    PK = 112
    S_W, S_IT, S_KV, S_L2E, S_EPS = S_A, S_B, S_C, S_D, S_H
    A("; ---------------- role L")
    yield_start(A, abort, "l", 14, 15)
    lanes(A, VL, VG, VN, VL16)
    A(f"s_mov_b32 {s(S_BUF)}, 0", f"s_mov_b32 {s(S_TO)}, {W_TIMEOUT}", f"s_mov_b32 {s(S_L2E)}, 0x3fb8aa3b", f"s_mov_b32 {s(S_EPS)}, 0x358637bd")
    dma_x(A, S_ROLE, S_BUF, VL16, XA)
    A(f"v_lshlrev_b32 {v(VL4)}, 2, {v(VL)}", f"v_mov_b32 {v(VZ)}, 0")
    A(f"v_lshrrev_b32 {v(T)}, 2, {v(VN)}", f"v_lshlrev_b32 {v(T2)}, 3, {v(T)}", f"v_and_b32 {v(T)}, 3, {v(VN)}", f"v_add_u32 {v(T2)}, {v(T2)}, {v(T)}",
      f"v_mul_u32_u24 {v(VR0)}, {RP}, {v(T2)}", f"v_lshl_add_u32 {v(VR0)}, {v(VG)}, 4, {v(VR0)}",
      f"v_mul_u32_u24 {v(VO_)}, 1792, {v(T2)}", f"v_lshl_add_u32 {v(VO_)}, {v(VG)}, 3, {v(VO_)}",
      f"s_mul_i32 {s(S_TMP)}, {s(S_ROLE)}, {32*1792}", f"s_mul_i32 {s(S_TMP2)}, {s(S_WAVE)}, 224", f"s_add_u32 {s(S_TMP)}, {s(S_TMP)}, {s(S_TMP2)}", f"v_add_u32 {v(VO_)}, {s(S_TMP)}, {v(VO_)}")
    A(f"v_cmp_gt_u32 vcc, 12, {v(VN)}", "s_nop 1", f"v_cndmask_b32 {v(VMK)}, 0, -1, vcc", f"v_mov_b32 {v(T)}, 0x3f803f80", f"v_cmp_eq_u32 vcc, 12, {v(VN)}", "s_nop 1", f"v_cndmask_b32 {v(VON)}, 0, {v(T)}, vcc")
    A(f"s_lshl_b32 {s(S_TMP)}, {s(S_WAVE)}, 13", f"s_add_u32 {s(S_TMP)}, {s(S_TMP)}, {LOIMG}", f"v_add_u32 {v(VOA)}, {s(S_TMP)}, {v(VL16)}")
    def ldtile(b, off):
        o = [f"s_add_u32 {s(S_TMP)}, {s(S_W)}, {off}"]
        for ks in range(14):
            o.append(f"buffer_load_dwordx4 {v(TB[b]+4*ks,4)}, {v(VL16)}, {s(WS,4)}, {s(S_TMP)} offen offset:{1024*(ks%4)} sc1")
            if ks % 4 == 3: o.append(f"s_add_u32 {s(S_TMP)}, {s(S_TMP)}, 4096")
        return o
    WQ, WO = 64, 68
    srd(A, WQ, 8, 448*1344*2); srd(A, WO, 16, 448*448*2)
    GW, FS, S1, S2, S3 = 72, 73, 74, 75, 76
    A(f"s_lshl_b32 {s(GW)}, {s(S_ROLE)}, 2", f"s_add_u32 {s(GW)}, {s(GW)}, {s(S_WAVE)}", "s_waitcnt lgkmcnt(0)")
    def wq_loads(j, base):
        A(f"s_add_u32 {s(FS)}, {s(GW)}, {256*j}",
          f"s_mul_i32 {s(S1)}, {s(FS)}, 18725", f"s_lshr_b32 {s(S1)}, {s(S1)}, 18", f"s_mul_i32 {s(S2)}, {s(S1)}, 14", f"s_sub_u32 {s(S2)}, {s(FS)}, {s(S2)}", f"s_mul_i32 {s(S2)}, {s(S2)}, {32*2688}",
          f"s_lshr_b32 {s(S3)}, {s(S1)}, 1", f"s_mul_i32 {s(S3)}, {s(S3)}, 56", f"s_add_u32 {s(S2)}, {s(S2)}, {s(S3)}", f"s_and_b32 {s(S1)}, {s(S1)}, 1", f"s_lshl_b32 {s(S1)}, {s(S1)}, 2")
        A(f"v_lshrrev_b32 {v(T)}, 2, {v(VN)}", f"v_lshlrev_b32 {v(T2)}, 3, {v(T)}", f"v_and_b32 {v(T)}, 3, {v(VN)}", f"v_add3_u32 {v(T2)}, {v(T2)}, {v(T)}, {s(S1)}",
          f"v_cmp_lt_u32 vcc, 27, {v(T2)}", f"v_lshlrev_b32 {v(T2)}, 1, {v(T2)}", f"v_mul_u32_u24 {v(T)}, {8*2688}, {v(VG)}", f"v_add_u32 {v(T2)}, {v(T2)}, {v(T)}",
          f"v_mov_b32 {v(T)}, 0x40000000", f"v_cndmask_b32 {v(T2)}, {v(T2)}, {v(T)}, vcc")
        for jj in range(8):
            A(f"buffer_load_ushort {v(base + 4*(jj % 2) + jj//2)}, {v(T2)}, {s(WQ,4)}, {s(S2)} offen", f"s_add_u32 {s(S2)}, {s(S2)}, 2688")
    def wo_loads(j, base):
        A(f"s_add_u32 {s(FS)}, {s(GW)}, {256*j}",
          f"s_lshr_b32 {s(S1)}, {s(FS)}, 4", f"s_lshl_b32 {s(S1)}, {s(S1)}, 5", f"s_and_b32 {s(S2)}, {s(FS)}, 15", f"s_mul_i32 {s(S2)}, {s(S2)}, {28*896}", f"s_add_u32 {s(S2)}, {s(S2)}, {s(S1)}")
        A(f"v_mul_u32_u24 {v(T2)}, {8*896}, {v(VG)}", f"v_lshl_add_u32 {v(T2)}, {v(VN)}, 1, {v(T2)}",
          f"v_cmp_eq_u32 vcc, 3, {v(VG)}", f"v_mov_b32 {v(T)}, 0x40000000", "s_nop 0", f"v_cndmask_b32 {v(T)}, {v(T2)}, {v(T)}, vcc")
        for jj in range(8):
            A(f"buffer_load_ushort {v(base + 4*(jj % 2) + jj//2)}, {v(T2 if jj < 4 else T)}, {s(WO,4)}, {s(S2)} offen", f"s_add_u32 {s(S2)}, {s(S2)}, 896")
    def fin(base, j, off, lim):
        for r in range(4): A(f"v_lshl_or_b32 {v(base+r)}, {v(base+4+r)}, 16, {v(base+r)}")
        A(f"s_add_u32 {s(FS)}, {s(GW)}, {256*j}", f"s_lshl_b32 {s(S1)}, {s(FS)}, 10", f"s_add_u32 {s(S1)}, {s(S1)}, {off:#x}", f"s_cmp_lt_u32 {s(FS)}, {lim}", f"s_cselect_b32 {s(S1)}, {s(S1)}, 0x40000000",
          f"buffer_store_dwordx4 {v(base,4)}, {v(VL16)}, {s(WS,4)}, {s(S1)} offen sc1")
    for j in range(6): wq_loads(j, 16 + 8*j)
    A("s_waitcnt vmcnt(0)")
    for j in range(2): wo_loads(j, 64 + 8*j)
    for j in range(6): fin(16 + 8*j, j, WQF_OFF, 1344)
    A("s_waitcnt vmcnt(6)")
    for j in range(2): fin(64 + 8*j, j, WOF_OFF, 448)
    A("s_waitcnt vmcnt(0)", "s_barrier")
    A(f"s_cmp_eq_u32 {s(S_WAVE)}, 0", f"s_cselect_b32 {s(S1)}, 0, 0x40000000", f"v_mov_b32 {v(T)}, 1", "s_mov_b64 exec, 1", f"buffer_atomic_add {v(T)}, off, {s(DBG,4)}, {s(S1)} offset:40 sc1", "s_mov_b64 exec, -1")
    Lw_, Lwg = A.label("Lw"), A.label("Lwg")
    A(f"{Lw_}:", f"buffer_load_dword {v(T)}, off, {s(DBG,4)}, 0 offset:40 sc1", "s_waitcnt vmcnt(0)", f"v_cmp_ne_u32 vcc, 64, {v(T)}", f"s_cbranch_vccz {Lwg}", "s_sleep 2")
    timeout_step(A, Lw_, abort)
    A(f"{Lwg}:")
    KO, VOF = 32*14336, 64*14336
    toff = [KO, KO + 14336, VOF, VOF + 14336]
    A(f"s_mul_i32 {s(S_W)}, {s(S_WAVE)}, {8*14336}", f"s_add_u32 {s(S_W)}, {s(S_W)}, {WQF_OFF:#x}")
    A("s_waitcnt vmcnt(0)", "s_barrier")
    for b in range(4): A(ldtile(b, toff[b]))
    for tt in range(2):
        for ks in range(14): A(f"ds_read_b128 {a_(56*tt + 4*ks, 4)}, {v(VR0)} offset:{64*ks + 4*RP*tt}")
        A("s_waitcnt lgkmcnt(0)")
    xf = lambda tt, ks: a_(56*tt + 4*ks, 4)
    def phi_pair(dst, a, b, t0):
        p, q, e, f = t0, t0+1, t0+2, t0+3
        return [f"v_cvt_pk_bf16_f32 {v(q)}, {v(a)}, {v(b)}", f"v_lshlrev_b32 {v(p)}, 16, {v(q)}", f"v_and_b32 {v(q)}, 0xffff0000, {v(q)}",
                f"v_mul_f32 {v(e)}, {s(S_L2E)}, {v(p)}", f"v_mul_f32 {v(f)}, {s(S_L2E)}, {v(q)}", f"v_exp_f32 {v(e)}, {v(e)}", f"v_exp_f32 {v(f)}, {v(f)}",
                f"v_add_f32 {v(p)}, 1.0, {v(p)}", f"v_add_f32 {v(q)}, 1.0, {v(q)}", f"v_med3_f32 {v(p)}, {v(p)}, {v(e)}, 1.0", f"v_med3_f32 {v(q)}, {v(q)}, {v(f)}, 1.0",
                f"v_cvt_pk_bf16_f32 {v(q)}, {v(p)}, {v(q)}", f"v_lshlrev_b32 {v(p)}, 16, {v(q)}", f"v_and_b32 {v(q)}, 0xffff0000, {v(q)}",
                f"v_add_f32 {v(p)}, {s(S_EPS)}, {v(p)}", f"v_add_f32 {v(q)}, {s(S_EPS)}, {v(q)}", f"v_cvt_pk_bf16_f32 {v(dst)}, {v(p)}, {v(q)}"]
    A(f"s_mov_b32 {s(S_IT)}, 0", f"s_lshl_b32 {s(S_KV)}, {s(S_WAVE)}, 14", f"s_add_u32 {s(S_KV)}, {s(S_KV)}, {KV_OFF:#x}")
    L1 = A.label("L1")
    A(f"{L1}:")
    A(f"s_add_u32 {s(S_W)}, {s(S_W)}, {2*14336}")
    for b in range(4):
        A("s_waitcnt vmcnt(42)")
        for ks in range(14):
            for tt in range(2): A(mfma(W_ + 4*tt, xf(tt, ks), v(TB[b]+4*ks, 4), "0" if ks == 0 else None))
        A(ldtile(b, toff[b]))
        for r in range(4):
            if b < 2:
                A(phi_pair(W_+8, W_+2*r, W_+2*r+1, W_+9))
                if b == 1: A(f"v_and_b32 {v(W_+8)}, {v(W_+8)}, {v(VMK)}")
            else:
                A(f"v_cvt_pk_bf16_f32 {v(W_+8)}, {v(W_+2*r)}, {v(W_+2*r+1)}")
                if b == 3: A(f"v_or_b32 {v(W_+8)}, {v(W_+8)}, {v(VON)}")
            A(f"v_accvgpr_write_b32 {a_(112 + 4*b + r)}, {v(W_+8)}")
    A("s_nop 1")
    for td in range(2):
        for te in range(2): A(mfma(W_ + 8*td + 4*te, a_(112 + 4*td, 4), a_(120 + 4*te, 4), "0"))
    A("s_waitcnt vmcnt(40)", "s_nop 7")
    for r in range(16): A(f"buffer_atomic_add_f32 {v(W_+r)}, {v(VL4)}, {s(WS,4)}, {s(S_KV)} offen offset:{256*r}")
    A(f"s_add_u32 {s(S_KV)}, {s(S_KV)}, 4096", f"s_add_u32 {s(S_IT)}, {s(S_IT)}, 1", f"s_cmp_lt_u32 {s(S_IT)}, 4", f"s_cbranch_scc1 {L1}")
    A("s_waitcnt vmcnt(0)", "s_barrier")
    if TLM: A("s_memrealtime s[92:93]")
    Ln = A.label("Lns")
    A(f"s_mov_b32 {s(S_KV)}, {CL_OFF:#x}", f"s_cmp_lg_u32 {s(S_WAVE)}, 0", f"s_cbranch_scc1 {Ln}")
    A(f"v_mov_b32 {v(T)}, 1", "s_mov_b64 exec, 1", f"buffer_atomic_add {v(T)}, off, {s(WS,4)}, {s(S_KV)} sc1", "s_mov_b64 exec, -1")
    A(f"{Ln}:")
    A(f"s_mul_i32 {s(S_W)}, {s(S_WAVE)}, {8*14336}", f"s_add_u32 {s(S_W)}, {s(S_W)}, {WQF_OFF:#x}")
    for b in range(2): A(ldtile(b, 14336*b))
    poll_eq(A, T, VZ, S_KV, 64, abort, "cl")
    if TLM: A("s_memrealtime s[94:95]")
    A(f"s_mov_b32 {s(S_IT)}, 0", f"s_lshl_b32 {s(S_KV)}, {s(S_WAVE)}, 14", f"s_add_u32 {s(S_KV)}, {s(S_KV)}, {KV_OFF:#x}")
    Q, KVR, KVT, ZO, PQ, NUM, DEN, TMPS = 128, 144, 160, 168, 172, 180, 188, 192
    L2 = A.label("L2")
    A(f"{L2}:")
    for r in range(16): A(f"buffer_load_dword {v(KVR+r)}, {v(VL4)}, {s(WS,4)}, {s(S_KV)} offen offset:{256*r} sc1")
    A(f"s_add_u32 {s(S_W)}, {s(S_W)}, {2*14336}", "s_waitcnt vmcnt(16)")
    for b in range(2):
        for ks in range(14):
            for tt in range(2): A(mfma(Q + 8*tt + 4*b, v(TB[b]+4*ks, 4), xf(tt, ks), "0" if ks == 0 else None))
    A("s_waitcnt vmcnt(0)")
    for b in range(2): A(ldtile(b, 14336*b))
    for tt in range(2):
        for r in range(4): A(phi_pair(PQ + 4*tt + r, Q + 8*tt + 2*r, Q + 8*tt + 2*r + 1, TMPS))
    for te in range(2):
        for td in range(2):
            for p in range(2): A(f"v_cvt_pk_bf16_f32 {v(KVT + 4*te + 2*td + p)}, {v(KVR + 8*td + 4*te + 2*p)}, {v(KVR + 8*td + 4*te + 2*p + 1)}")
    A("s_nop 1")
    for r in range(4): A(f"v_mov_b32_dpp {v(ZO+r)}, {v(KVT+4+r)} row_newbcast:12 row_mask:0xf bank_mask:0xf")
    A("s_nop 1")
    for tt in range(2):
        for te in range(2): A(mfma(NUM + 4*te, v(KVT + 4*te, 4), v(PQ + 4*tt, 4), "0"))
        A(mfma(DEN, v(ZO, 4), v(PQ + 4*tt, 4), "0"), "s_nop 7")
        d, u = TMPS, TMPS+1
        A(f"v_cvt_pk_bf16_f32 {v(d)}, {v(DEN)}, {v(DEN)}", f"v_and_b32 {v(d)}, 0xffff0000, {v(d)}", f"v_add_f32 {v(d)}, {s(S_EPS)}, {v(d)}",
          f"v_cvt_pk_bf16_f32 {v(d)}, {v(d)}, {v(d)}", f"v_and_b32 {v(d)}, 0xffff0000, {v(d)}", f"v_rcp_f32 {v(d)}, {v(d)}")
        for r in range(4):
            A(f"v_cvt_pk_bf16_f32 {v(u+1)}, {v(NUM+2*r)}, {v(NUM+2*r+1)}", f"v_lshlrev_b32 {v(u)}, 16, {v(u+1)}", f"v_and_b32 {v(u+1)}, 0xffff0000, {v(u+1)}",
              f"v_mul_f32 {v(u)}, {v(u)}, {v(d)}", f"v_mul_f32 {v(u+1)}, {v(u+1)}, {v(d)}", f"v_cvt_pk_bf16_f32 {v(TMPS+4+r)}, {v(u)}, {v(u+1)}")
        A(f"ds_write_b128 {v(VOA)}, {v(TMPS+4,4)} offset:{1024*tt}", "s_waitcnt lgkmcnt(0)")
    A(f"v_add_u32 {v(VOA)}, 2048, {v(VOA)}")
    A(f"s_add_u32 {s(S_KV)}, {s(S_KV)}, 4096", f"s_add_u32 {s(S_IT)}, {s(S_IT)}, 1", f"s_cmp_lt_u32 {s(S_IT)}, 4", f"s_cbranch_scc1 {L2}")
    A("s_waitcnt vmcnt(0)", "s_barrier")
    A(f"s_mul_i32 {s(S_W)}, {s(S_WAVE)}, {7*16384}", f"s_add_u32 {s(S_W)}, {s(S_W)}, {WOF_OFF:#x}")
    def ldwo(c):
        o = []
        for h in range(16):
            if h % 4 == 0: o.append(f"s_add_u32 {s(S_TMP)}, {s(S_W)}, {16384*c + 1024*h}")
            o.append(f"buffer_load_dwordx4 {v(16 + 64*(c % 3) + 4*h, 4)}, {v(VL16)}, {s(WS,4)}, {s(S_TMP)} offen offset:{1024*(h%4)} sc1")
        return o
    A(ldwo(0), ldwo(1))
    for f in range(32):
        A(f"ds_read_b128 {a_(4*f, 4)}, {v(VL16)} offset:{LOIMG + 1024*f}")
        if f % 8 == 7: A("s_waitcnt lgkmcnt(0)")
    for c in range(7):
        if c + 2 < 7: A(ldwo(c+2))
        nyoung = 16*min(2, 6-c) + (2 if c >= 1 else 0) * 0
        A(f"s_waitcnt vmcnt({16*min(2, 6-c)})")
        for h in range(16):
            for tt in range(2): A(mfma(W_ + 4*tt, v(16 + 64*(c % 3) + 4*h, 4), a_(8*h + 4*tt, 4), "0" if h == 0 else None))
        A("s_nop 7")
        for tt in range(2):
            A(f"v_cvt_pk_bf16_f32 {v(W_+8+2*tt)}, {v(W_+4*tt)}, {v(W_+4*tt+1)}", f"v_cvt_pk_bf16_f32 {v(W_+9+2*tt)}, {v(W_+4*tt+2)}, {v(W_+4*tt+3)}")
        A(f"s_mov_b32 {s(S_TMP)}, {4*1792}",
          f"buffer_store_dwordx2 {v(W_+8,2)}, {v(VO_)}, {s(OUT,4)}, 0 offen offset:{32*c}", f"buffer_store_dwordx2 {v(W_+10,2)}, {v(VO_)}, {s(OUT,4)}, {s(S_TMP)} offen offset:{32*c}")
    A("s_endpgm")
```

```python
import sys
from asm import *
from model import *
import rec, workers, prep
from rec import WS, XB, DBG, S_WAVE, S_ROLE, S_TMP, S_TMP2
from workers import OUT, XA

TKL = 0x24000
ORDERS = [("V", "X", "PV", "L"), ("V", "L", "PV", "Z", "X"), ("V", "L", "X", "PV"), ("L", "V", "PV", "Z", "X"), ("V", "PV", "L", "Z", "X")]
def main_kernel(A, name, profile=False):
    NV, NX, NPG = workers.NV, workers.NX, workers.NPG
    kernel_begin(A, name)
    Lexit = A.label("exit")
    Lx0 = A.label("go")
    A("s_cmp_lt_u32 s2, 256", f"s_cbranch_scc1 {Lx0}", "s_endpgm", f"{Lx0}:")
    if rec.CODEPF:
        A("s_getpc_b64 s[30:31]", "Lcode_pc:", f"s_bfe_u32 s45, s2, {0x3 | (rec.CPB << 16):#x}", "s_lshl_b32 s45, s45, 15", "v_lshl_add_u32 v1, v0, 7, s45",
          "v_cmp_gt_u32 vcc, Lcode_end-Lcode_pc, v1", "s_and_saveexec_b64 s[46:47], vcc", "s_cbranch_execz Lcode_skip", "global_load_dword v238, v1, s[30:31]", "Lcode_skip:", "s_mov_b64 exec, s[46:47]")
    srd(A, WS, 96, 0x10000000); srd(A, XB, 24, 1835008); srd(A, DBG, 88, 256); srd(A, OUT, 80, 2048*896*2); srd(A, XA, 0, 1835008)
    prep.prep_srds(A)
    A("v_lshrrev_b32 v1, 6, v0", "s_nop 0", f"v_readfirstlane_b32 {s(S_WAVE)}, v1")
    A("s_getreg_b32 s44, hwreg(HW_REG_XCC_ID)", "s_and_b32 s44, s44, 7")
    if rec.XSCR: A("s_bfe_u32 s45, s2, 0x10004", "s_or_b32 s44, s44, s45")
    A("s_waitcnt lgkmcnt(0)")
    def ticket():
        A("s_lshl_b32 s45, s44, 2", f"s_cmp_eq_u32 {s(S_WAVE)}, 0", "s_cselect_b32 s45, s45, 0x40000000", "v_mov_b32 v220, 1", "s_mov_b64 exec, 1",
          f"buffer_atomic_add v220, off, {s(DBG,4)}, s45 sc0", "s_mov_b64 exec, -1")
        return 1
    prep.prep_body(A, ticket)
    if rec.TLM: A("s_memrealtime s[98:99]")
    Lw, Ld = A.label("notw0"), A.label("rd")
    A(f"s_cmp_lg_u32 {s(S_WAVE)}, 0", f"s_cbranch_scc1 {Lw}")
    A("s_mov_b64 exec, 1",
      f"v_readfirstlane_b32 s61, v220", f"s_lshl_b32 {s(S_TMP2)}, s44, 5", f"s_add_u32 {s(S_TMP2)}, {s(S_TMP2)}, s61", "s_cmp_lt_u32 s61, 32", f"s_cbranch_scc1 {Ld}")
    Lo, Lo2 = A.label("ovw"), A.label("ovg")
    A("v_mov_b32 v1, 1", f"buffer_atomic_add v1, off, {s(DBG,4)}, 0 offset:36 sc0", "s_waitcnt vmcnt(0)", "v_readfirstlane_b32 s61, v1", "s_mov_b32 s62, 300000", f"s_mov_b32 {s(S_TMP2)}, 1000")
    A("s_mov_b64 exec, -1", "v_and_b32 v2, 31, v0", "v_lshlrev_b32 v2, 2, v2")
    A(f"{Lo}:", f"buffer_load_dword v1, v2, {s(DBG,4)}, 0 offen offset:{prep.CNT0} sc1", "s_waitcnt vmcnt(0)", "v_cmp_gt_u32 vcc, 8, v1", f"s_cbranch_vccz {Lo2}",
      "s_sleep 4", "s_sub_u32 s62, s62, 1", f"s_cbranch_scc1 {Ld}", f"s_branch {Lo}")
    A(f"{Lo2}:", f"buffer_load_dwordx4 v[4:7], off, {s(DBG,4)}, 0 sc1", f"buffer_load_dwordx4 v[8:11], off, {s(DBG,4)}, 0 offset:16 sc1", "s_waitcnt vmcnt(0)")
    for x in range(8):
        Ln = A.label("ovn")
        A(f"v_readfirstlane_b32 s63, v{4+x}", "s_min_u32 s63, s63, 32", "s_sub_u32 s62, 32, s63", "s_cmp_ge_u32 s61, s62", f"s_cbranch_scc1 {Ln}",
          f"s_add_u32 {s(S_TMP2)}, s63, s61", f"s_add_u32 {s(S_TMP2)}, {s(S_TMP2)}, {32*x}", f"s_branch {Ld}", f"{Ln}:", "s_sub_u32 s61, s61, s62")
    A(f"{Ld}:", f"v_mov_b32 v1, {s(S_TMP2)}", f"v_mov_b32 v2, {TKL:#x}", "ds_write_b32 v2, v1", "s_waitcnt lgkmcnt(0)", "s_mov_b64 exec, -1")
    A(f"{Lw}:", "s_barrier", f"v_mov_b32 v2, {TKL:#x}", "ds_read_b32 v1, v2", "s_waitcnt lgkmcnt(0)", f"v_readfirstlane_b32 {s(S_ROLE)}, v1", f"s_mov_b32 {s(rec.S_TO)}, {rec.TIMEOUT}")
    if rec.RM1:
        Lm1 = A.label("rm1")
        A(f"s_cmp_ge_u32 {s(S_ROLE)}, 30", f"s_cbranch_scc1 {Lm1}",
          f"s_add_u32 {s(S_TMP)}, {s(S_ROLE)}, 16", f"s_sub_u32 {s(S_TMP2)}, {s(S_ROLE)}, 14", f"s_cmp_lt_u32 {s(S_ROLE)}, 14", f"s_cselect_b32 {s(S_ROLE)}, {s(S_TMP)}, {s(S_TMP2)}", f"{Lm1}:")
    if rec.RM2:
        Lm2 = A.label("rm2")
        A(f"s_cmp_lt_u32 {s(S_ROLE)}, 32", f"s_cbranch_scc1 {Lm2}", f"s_cmp_ge_u32 {s(S_ROLE)}, 160", f"s_cbranch_scc1 {Lm2}",
          f"s_sub_u32 {s(S_TMP)}, {s(S_ROLE)}, 32", f"s_lshr_b32 {s(S_TMP2)}, {s(S_TMP)}, 5", f"s_lshl_b32 {s(S_TMP2)}, {s(S_TMP2)}, 4", f"s_and_b32 {s(S_ROLE)}, {s(S_TMP)}, 15", f"s_add_u32 {s(S_ROLE)}, {s(S_ROLE)}, {s(S_TMP2)}",
          f"s_bitcmp1_b32 {s(S_TMP)}, 4", f"s_cselect_b32 {s(S_TMP)}, 96, 32", f"s_add_u32 {s(S_ROLE)}, {s(S_ROLE)}, {s(S_TMP)}", f"{Lm2}:")
    if rec.ROT:
        Lm = A.label("rm")
        A(f"s_cmp_lt_u32 {s(S_ROLE)}, 32", f"s_cbranch_scc1 {Lm}", f"s_cmp_ge_u32 {s(S_ROLE)}, 256", f"s_cbranch_scc1 {Lm}",
          f"s_add_u32 {s(S_ROLE)}, {s(S_ROLE)}, {rec.ROT}", f"s_sub_u32 {s(S_TMP)}, {s(S_ROLE)}, 224", f"s_cmp_ge_u32 {s(S_ROLE)}, 256", f"s_cselect_b32 {s(S_ROLE)}, {s(S_TMP)}, {s(S_ROLE)}", f"{Lm}:")
    if rec.TLM: A(f"s_mov_b32 s100, {s(S_ROLE)}")
    cnt = {"V": 16*NV, "X": 16*NX, "PV": 14*NPG, "L": 64, "Z": 6}
    ranges = [("A", 16), ("B", 30), ("PF", 32)]
    for n in ORDERS[rec.ORD]: ranges.append((n, ranges[-1][1] + cnt[n]))
    assert ranges[-1][1] <= 256
    L = {n: A.label("role" + n) for n, _ in ranges}
    J = {n: A.label("jmp" + n) for n, _ in ranges}
    for n, hi in ranges: A(f"s_cmp_lt_u32 {s(S_ROLE)}, {hi}", f"s_cbranch_scc1 {J[n]}")
    A(f"{Lexit}:", "s_endpgm")
    lo = 0
    for n, hi in ranges:
        A(f"{J[n]}:")
        if n in ("V", "X", "PV", "L"): A(f"s_sub_u32 {s(S_ROLE)}, {s(S_ROLE)}, {lo}")
        A(f"s_branch {L[n]}" if n != "Z" else "s_endpgm")
        lo = hi
    A("Lteam_code:")
    for R, fn in (("A", rec.role_A), ("B", rec.role_B)):
        A(f"{L[R]}:")
        Ls = [A.label(f"{R}w{w}") for w in range(4)]
        for w in range(1, 4): A(f"s_cmp_eq_u32 {s(S_WAVE)}, {w}", f"s_cbranch_scc1 {Ls[w]}")
        for w in range(4):
            A(f"{Ls[w]}:"); fn(A, w, Lexit, profile)
    Lx2 = A.label("exit2")
    for R, fn in (("PF", rec.role_PF), ("V", workers.role_V), ("X", workers.role_X), ("PV", workers.role_PV), ("L", workers.role_L)):
        A(f"{L[R]}:"); fn(A, Lx2)
    A(f"{Lx2}:", "Lcode_end:", "s_endpgm")
    A(kernel_desc(name))

HDR = open("concat_heads__linear_attn_block__memory_aug_recurrent_mem_tr__prompt.s.ref").read().split("; Override launch")[0] if len(sys.argv) > 2 and sys.argv[2] == "final" else ""
FINAL = bool(HDR)
KNAME = "concat_heads__linear_attn_block__memory_aug_recurrent_mem_tr__prompt_kernel" if FINAL else "main_kernel"
def generate(path, TL=0, PROFILE=0, **kw):
    rec.TLM = workers.TLM = TL
    A = Asm()
    hdr = []
    hdr.append(f"; @launch {'' if FINAL else 'kernel=main_kernel '}grid=(256,1,1) block=(256,1,1) lds=148480")
    A('.amdgcn_target "amdgcn-amd-amdhsa--gfx950"', ".text")
    g = vars(rec); saved = dict(g); g.update(FULL=1, TIMEOUT=300000); g.update(kw)
    def instrument(fn, name, idreg, base, wsreg, wavereg):
        B = Asm(); B.uid = A.uid + 100000
        fn(B, name)
        lines = B.lines
        if TL:
            i0 = lines.index(f"{name}:")
            lines.insert(i0 + 1, "    s_memrealtime s[90:91]\n    s_mov_b32 s92, 0\n    s_mov_b32 s94, 0\n    s_mov_b32 s100, 9999")
            iend = max(i for i, l in enumerate(lines) if l.strip() == "s_endpgm")
            first = True
            for i, l in enumerate(lines):
                if l.strip() == "s_endpgm": lines[i] = f"    s_branch Ltl_{name}"
            stub = f"""Ltl_{name}:
    s_cmp_ge_u32 s2, 256
    s_cbranch_scc1 Ltl2_{name}
    s_memrealtime s[96:97]
    s_load_dwordx2 s[84:85], s[0:1], 96
    s_mov_b32 s86, 0x10000000
    s_mov_b32 s87, 0x00020000
    s_waitcnt lgkmcnt(0)
    s_mov_b64 exec, -1
    v_mov_b32 v4, s98
    v_mov_b32 v5, s92
    v_mov_b32 v6, s94
    v_mov_b32 v7, s96
    s_lshl_b32 s88, {idreg}, 2
    s_add_u32 s88, s88, {wavereg}
    s_lshl_b32 s88, s88, 4
    s_add_u32 s88, s88, {base:#x}
    buffer_store_dwordx4 v[4:7], off, s[84:87], s88
    v_mov_b32 v4, s90
    s_sub_u32 s88, s88, 0x40000
    buffer_store_dword v4, off, s[84:87], s88
Ltl2_{name}:
    s_endpgm"""
            lines.insert(iend + 1, stub)
        A.lines += lines; A.uid = B.uid
    instrument(lambda B, n: main_kernel(B, n, bool(PROFILE)), KNAME, "s100", PROF_OFF + 0x40000, 4, "s16")
    g.update({k: saved[k] for k in list(kw) + ["FULL", "TIMEOUT"]})
    open(path, "w").write(HDR + "\n".join(hdr) + "\n" + A.text())
if __name__ == "__main__":
    generate(sys.argv[1], STAMP=0 if HDR else 1)
```

```python
from asm import *
from model import *

WS, XB, DBG = 4, 8, 12
S_WAVE, S_ROLE, S_STEP, S_MEM, S_MEM2, S_P, S_X, S_VOX, S_TO, S_TMP, S_TMP2, S_P2, S_MEMN = range(16, 29)
S_PROF = 30
NSTEPS = 63
PACCUM = 0
PMASK = 255
TIMEOUT = 40000

def smf(d, a, b, idx, hi=False):
    return f"v_smfmac_f32_16x16x64_bf16 {v(d,4)}, {v(a,4)}, {b}, {v(idx)}" + (" abid:1" if hi else "")

def wreg(f, n=8, sub=0):
    return a_(8*f + sub, n) if f < 32 else v(120 + 8*(f-32) + sub, n)

def lane_consts(A, VL, VG, VN):
    A(f"v_and_b32 {v(VL)}, 63, v0", f"v_lshrrev_b32 {v(VG)}, 4, {v(VL)}", f"v_and_b32 {v(VN)}, 15, {v(VL)}")

def mem_lane_off(A, dst, VG, VN, t):
    A(f"v_lshlrev_b32 {v(dst)}, 8, {v(VG)}", f"v_lshl_add_u32 {v(dst)}, {v(VN)}, 4, {v(dst)}")

def idx_const(A, dst, VN, t):
    A(f"v_and_b32 {v(t)}, 1, {v(VN)}", f"v_mul_u32_u24 {v(dst)}, 0xAAAA, {v(t)}",
      f"v_lshrrev_b32 {v(t)}, 3, {v(VN)}", f"v_mul_u32_u24 {v(t)}, 0xAAAA, {v(t)}",
      f"v_lshl_add_u32 {v(dst)}, {v(t)}, 16, {v(dst)}", f"v_add_u32 {v(dst)}, 0x44444444, {v(dst)}")

def memload(dst, voff, kb):
    so = S_MEM if kb < 4 else S_MEM2
    return f"buffer_load_dwordx4 {v(dst,4)}, {v(voff)}, {s(WS,4)}, {s(so)} offen offset:{(kb%4)*1024} sc1"

def chk4(t, r, first=True):
    if first:
        return [f"v_max3_u32 {v(t)}, {v(r)}, {v(r+1)}, {v(r+2)}", f"v_max_u32 {v(t)}, {v(t)}, {v(r+3)}"]
    return [f"v_max3_u32 {v(t)}, {v(t)}, {v(r)}, {v(r+1)}", f"v_max3_u32 {v(t)}, {v(t)}, {v(r+2)}, {v(r+3)}"]

def timeout_step(A, again, abort):
    A(f"s_sub_u32 {s(S_TO)}, {s(S_TO)}, 1", f"s_cbranch_scc1 {abort}", f"s_branch {again}")

def prof(A, slot, on):
    if on and (PMASK >> slot) & 1:
        A(f"s_memtime {s(S_PROF+2*slot,2)}")

def prof_flush(A, n, vt, vz, role_wave_off):
    A("s_waitcnt lgkmcnt(0)")
    A(f"s_lshl_b32 {s(S_TMP)}, {s(S_ROLE)}, 2", f"s_add_u32 {s(S_TMP)}, {s(S_TMP)}, {s(S_WAVE)}", f"s_lshl_b32 {s(S_TMP)}, {s(S_TMP)}, 6",
      f"s_add_u32 {s(S_TMP)}, {s(S_TMP)}, {s(S_STEP)}", f"s_lshl_b32 {s(S_TMP)}, {s(S_TMP)}, 6", f"s_add_u32 {s(S_TMP)}, {s(S_TMP)}, {PROF_OFF:#x}")
    A(f"v_mov_b32 {v(vz)}, 0")
    for k in range(n):
        A(f"v_mov_b32 {v(vt)}, {s(S_PROF+2*k)}", f"buffer_store_dword {v(vt)}, {v(vz)}, {s(WS,4)}, {s(S_TMP)} offen offset:{4*k}")

def prof_acc(A, n):
    A("s_memtime s[72:73]", "s_waitcnt lgkmcnt(0)")
    for k in range(n):
        A(f"s_sub_u32 {s(S_TMP)}, {s(S_PROF+2*k)}, s71", f"s_add_u32 s{74+k}, s{74+k}, {s(S_TMP)}")
    A(f"s_sub_u32 {s(S_TMP)}, s72, s71", f"s_add_u32 s{74+n}, s{74+n}, {s(S_TMP)}", "s_mov_b32 s71, s72" if PACCUM == 1 else "s_mov_b32 s71, 0")
    Lz = A.label("pz")
    A(f"s_cmp_lg_u32 {s(S_STEP)}, 12", f"s_cbranch_scc1 {Lz}")
    for k in range(n+1): A(f"s_mov_b32 s{74+k}, 0")
    A(f"{Lz}:")
def prof_acc_out(A, n):
    A(f"s_lshl_b32 {s(S_TMP)}, {s(S_ROLE)}, 2", f"s_add_u32 {s(S_TMP)}, {s(S_TMP)}, {s(S_WAVE)}", f"s_lshl_b32 {s(S_TMP)}, {s(S_TMP)}, 6", f"s_add_u32 {s(S_TMP)}, {s(S_TMP)}, {PROF_OFF:#x}")
    for k in range(n+1):
        A(f"v_mov_b32 v0, s{74+k}", f"buffer_store_dword v0, off, {s(WS,4)}, {s(S_TMP)} offset:{4*k}")

def emit_slots(A, slots):
    for sl in slots:
        A(sl['m']); A(sl['pre']); A(sl['valu']); A(sl['post'])

TIMG = 0
TW = 1808
MIMG = 8192
XIMG = 16384
RS = 256
XSL = 20480
A_SLEEP = 0
BBAL = 1
PBH = [4, 14, 5, 15, 3, 13]
PBN = 0
RM1 = 0
PFS = 0
PFW = 0
TSP = 2
VPB = 0
XEARLY = 1
XG1 = 14
XN1 = 8
TPOST = 0
BREL = 9
ROT = 0
CODEPF = 9
CPB = 5
RM2 = 0
ORD = 0
X_FIXVOX = 0
X_XSN = 14
PG1 = 0
PG2 = 0
WFI = 0
FS0 = 0
FSD = 0
B1S = 38
B2S = 47
TRN = 4
X_NOPM = 0
PFA = 3
ATOUCH = 3
VPRE = 0
BTOUCH = 0
BT0 = 1
BTA = 1
TCH0 = 14
TAHEAD = 1
TGATE = 2
XPRE = 14
XPG = 18
X_NOVOX = 0
X_NOV = 0
FPD = 5
PGAP = 30
WARM = 0
B0S = 16
LG = 40
P2W = 10
F2AT = 0
XSCR = 0
EXW = 6
TLM = 0
FROFF = 14336
F1AT = 2
FULL = 0
PB2 = 0
LDFL = 0
F1GO = 1
VOXS = 3
STAMP = 1
XS0 = 10
XSN = 28
D1 = 84
D2 = 18
F2D = 40
F2OFF = 10240
F1OFF = 12288
APW = 2
BPW = 3
F1W = 2
X_NODMA = 0
X_NOH = 0
X_NOTR = 0
X_NOCONV = 0
X_NOB1 = 0
B_SLEEP_M = 4
B_SLEEP_P = 0

def nops(n):
    out = []
    while n > 0:
        k = min(n, 16); out.append(f"s_nop {k-1}"); n -= k
    return out

def flag_ld(r, voff, soff, off):
    return f"buffer_load_dword {v(r)}, {v(voff)}, {s(WS,4)}, {s(soff)} offen offset:{off} sc1"
def flag_poll(A, regs, voff, soff, off, abort, tag, primed=False):
    Lp, Lgo = A.label(tag + "fp"), A.label(tag + "go")
    ld = lambda r: flag_ld(r, voff, soff, off)
    n = len(regs)
    if not primed:
        for r in regs: A(ld(r), f"s_nop {48 // n - 1}")
    A(f"{Lp}:")
    for r in regs:
        A(f"s_waitcnt vmcnt({n-1})", f"v_cmp_eq_u32 vcc, -1, {v(r)}", f"s_cbranch_vccz {Lgo}", ld(r))
    timeout_step(A, Lp, abort)
    A(f"{Lgo}:")

def mkslots(ms):
    return [dict(m=m, pre=[], valu=[], post=[]) for m in ms]

S_SLOW = 47
def read_mode(A, vt):
    if FULL:
        A(f"buffer_load_dword {v(vt)}, off, {s(DBG,4)}, 0 sc1", "s_waitcnt vmcnt(0)", f"v_readfirstlane_b32 {s(S_SLOW)}, {v(vt)}", f"s_cmp_ge_u32 {s(S_SLOW)}, 32", f"s_cselect_b32 {s(S_SLOW)}, 0x40000000, 0")
    else:
        A(f"s_mov_b32 {s(S_SLOW)}, 0x40000000")

def role_A(A, w, abort, profile=False):
    import prep
    WFL = [' sc1', '', ' nt', ' sc1 nt'][WFI]
    MEMR, ACC, HT = 0, 28, 56
    IDX, VMEM, VTW, VTR, VH, VX, TMP, TMP2 = range(112, 120)
    VG, VN, VL = 1, 2, 3
    ko = [(w + i) % 3 for i in range(3)] + [3, 4, 5, 6]
    lane_consts(A, VL, VG, VN)
    idx_const(A, IDX, VN, TMP)
    mem_lane_off(A, VMEM, VG, VN, TMP)
    A(f"v_lshlrev_b32 {v(VTW)}, 4, {v(VN)}", f"v_lshl_add_u32 {v(VTW)}, {v(VG)}, 2, {v(VTW)}", f"v_add_u32 {v(VTW)}, {TIMG + w*TW}, {v(VTW)}")
    A(f"v_and_b32 {v(TMP)}, 1, {v(VG)}", f"v_mul_u32_u24 {v(VTR)}, {2*TW}, {v(TMP)}",
      f"v_lshrrev_b32 {v(TMP)}, 3, {v(VN)}", f"v_lshl_add_u32 {v(VTR)}, {v(TMP)}, 7, {v(VTR)}",
      f"v_bfe_u32 {v(TMP)}, {v(VN)}, 1, 1", f"v_lshl_add_u32 {v(VTR)}, {v(TMP)}, 6, {v(VTR)}",
      f"v_lshrrev_b32 {v(TMP)}, 1, {v(VG)}", f"v_lshl_add_u32 {v(VTR)}, {v(TMP)}, 5, {v(VTR)}",
      f"v_bfe_u32 {v(TMP)}, {v(VN)}, 2, 1", f"v_lshl_add_u32 {v(VTR)}, {v(TMP)}, 4, {v(VTR)}",
      f"v_and_b32 {v(TMP)}, 1, {v(VN)}", f"v_lshl_add_u32 {v(VTR)}, {v(TMP)}, 3, {v(VTR)}")
    if TIMG: A(f"v_add_u32 {v(VTR)}, {TIMG}, {v(VTR)}")
    if w < 3:
        A(f"v_lshlrev_b32 {v(VX)}, 10, {v(VG)}",
          f"v_lshl_add_u32 {v(VX)}, {v(VN)}, {3 if w < 2 else 2}, {v(VX)}", f"v_add_u32 {v(VX)}, {XIMG + (4*w if w < 2 else 128)}, {v(VX)}")
    if w < 2:
        A(f"v_lshlrev_b32 {v(VH)}, 4, {v(VL)}")
    elif w == 2:
        A(f"v_mul_u32_u24 {v(VH)}, 1792, {v(VG)}", f"v_and_b32 {v(TMP)}, 7, {v(VN)}", f"v_lshl_add_u32 {v(VH)}, {v(TMP)}, 5, {v(VH)}",
          f"v_add_u32 {v(VH)}, {MIMG}, {v(VH)}")
    else:
        PXO, PMO = HT + 40, HT + 41
        A(f"v_lshrrev_b32 {v(TMP2)}, 3, {v(VL)}", f"v_mul_u32_u24 {v(VH)}, {RS}, {v(TMP2)}", f"v_and_b32 {v(TMP)}, 7, {v(VL)}",
          f"v_lshl_add_u32 {v(VX)}, {v(TMP)}, 4, {v(VH)}", f"v_add_u32 {v(VX)}, {XIMG}, {v(VX)}",
          f"v_lshl_add_u32 {v(VH)}, {v(TMP)}, 2, {v(VH)}", f"v_add_u32 {v(VH)}, {XIMG + 128}, {v(VH)}")
        A(f"v_and_b32 {v(TMP)}, 3, {v(VL)}", f"v_lshlrev_b32 {v(PXO)}, 3, {v(TMP)}", f"v_lshl_add_u32 {v(PXO)}, {v(TMP2)}, 5, {v(PXO)}",
          f"v_bfe_u32 {v(TMP)}, {v(VL)}, 2, 1", f"v_lshl_add_u32 {v(PXO)}, {v(TMP)}, 8, {v(PXO)}",
          f"s_lshl_b32 {s(S_TMP)}, {s(S_ROLE)}, 9", f"v_add_u32 {v(PXO)}, {s(S_TMP)}, {v(PXO)}")
        A(f"v_lshlrev_b32 {v(PMO)}, 5, {v(TMP2)}",
          f"v_bfe_u32 {v(TMP)}, {v(VL)}, 2, 1", f"v_lshl_add_u32 {v(PMO)}, {v(TMP)}, 8, {v(PMO)}",
          f"v_bfe_u32 {v(TMP)}, {v(VL)}, 1, 1", f"v_lshl_add_u32 {v(PMO)}, {v(TMP)}, 3, {v(PMO)}",
          f"s_lshr_b32 {s(S_TMP)}, {s(S_ROLE)}, 2", f"s_lshl_b32 {s(S_TMP)}, {s(S_TMP)}, 9",
          f"s_and_b32 {s(S_TMP2)}, {s(S_ROLE)}, 1", f"s_lshl_b32 {s(S_TMP2)}, {s(S_TMP2)}, 4", f"s_add_u32 {s(S_TMP)}, {s(S_TMP)}, {s(S_TMP2)}",
          f"s_bfe_u32 {s(S_TMP2)}, {s(S_ROLE)}, 0x10001", f"s_lshl_b32 {s(S_TMP2)}, {s(S_TMP2)}, 2", f"s_add_u32 {s(S_TMP)}, {s(S_TMP)}, {s(S_TMP2)}",
          f"s_add_u32 {s(S_TMP)}, {s(S_TMP)}, 8192", f"v_add_u32 {v(PMO)}, {s(S_TMP)}, {v(PMO)}")
        A(f"v_and_b32 {v(TMP)}, 1, {v(VL)}", f"v_lshl_add_u32 {v(PMO)}, {v(TMP)}, 30, {v(PMO)}")
    if w == APW:
        A(f"v_min_u32 {v(TMP2)}, 13, {v(VL)}", f"v_lshlrev_b32 {v(TMP2)}, 2, {v(TMP2)}", f"s_lshr_b32 {s(S_TMP)}, {s(S_ROLE)}, 2", f"s_lshl_b32 {s(S_TMP)}, {s(S_TMP)}, 8", f"s_add_u32 {s(S_TMP)}, {s(S_TMP)}, {F1OFF}", f"v_add_u32 {v(TMP2)}, {s(S_TMP)}, {v(TMP2)}")
    if w == 3:
        A(f"v_lshlrev_b32 {v(TMP2)}, 7, {v(VL)}", f"s_lshl_b32 {s(S_TMP)}, {s(S_ROLE)}, 2", f"s_add_u32 {s(S_TMP)}, {s(S_TMP)}, {F2OFF}", f"v_add_u32 {v(TMP2)}, {s(S_TMP)}, {v(TMP2)}",
          f"v_cmp_lt_u32 vcc, 13, {v(VL)}", f"v_mov_b32 {v(TMP)}, 0x40000000", "s_nop 0", f"v_cndmask_b32 {v(TMP2)}, {v(TMP2)}, {v(TMP)}, vcc")
    if FULL: prep.wait_tiles(A, s(S_ROLE), 1, abort, "A", S_TO, 4, 5)
    A(f"v_lshlrev_b32 {v(TMP)}, 4, {v(VL)}")
    A(f"s_mul_i32 {s(S_TMP)}, {s(S_ROLE)}, {28*14336}", f"s_add_u32 {s(S_TMP)}, {s(S_TMP)}, {WA_OFF + 7*w*14336}")
    for cb in range(7):
        for p in range(7):
            f = cb*7 + p
            off = cb*14336 + ko[p]*2048
            A(f"s_add_u32 {s(S_TMP2)}, {s(S_TMP)}, {off}")
            for hi in range(2):
                A(f"buffer_load_dwordx4 {wreg(f,4,4*hi)}, {v(TMP)}, {s(WS,4)}, {s(S_TMP2)} offen offset:{1024*hi}{WFL}")
        if cb >= 2: A("s_waitcnt vmcnt(28)")
    A(f"s_mov_b32 {s(S_STEP)}, 0", f"s_mov_b32 {s(S_MEM)}, {MEMF_OFF:#x}", f"s_mov_b32 {s(S_MEM2)}, {MEMF_OFF+4096:#x}",
      f"s_mov_b32 {s(S_P)}, {PF_OFF:#x}", f"s_mov_b32 {s(S_X)}, {XS_OFF + 14336*(w%2):#x}", f"s_mov_b32 {s(S_TO)}, {TIMEOUT}")
    Lstep = A.label(f"A{w}step"); Lpoll = A.label(f"A{w}poll")
    def cv_wait(ahead):
        Lc, Lg = A.label("cvp"), A.label("cvg")
        A(f"s_add_u32 {s(S_TMP2)}, {s(S_P)}, {16384*ahead + FROFF}", f"v_cmp_ne_u32 vcc, 15, {v(TMP2)}", f"s_cbranch_vccz {Lg}")
        A(f"{Lc}:", f"buffer_load_dword {v(TMP2)}, off, {s(WS,4)}, {s(S_TMP2)} sc1", "s_waitcnt vmcnt(0)", f"v_cmp_ne_u32 vcc, 15, {v(TMP2)}", f"s_cbranch_vccz {Lg}", "s_sleep 1")
        timeout_step(A, Lc, abort)
        A(f"{Lg}:", f"s_add_u32 {s(S_TMP2)}, {s(S_TMP2)}, 16384", f"buffer_load_dword {v(TMP2)}, off, {s(WS,4)}, {s(S_TMP2)} sc1")
    if FULL: prep.wait_counters(A, 0, 32, abort, "A", S_TO, 4, 5)
    if w == 3: read_mode(A, 4)
    if FULL and w < 2: A(f"v_mov_b32 {v(TMP2)}, 0")
    if w == 3:
        A(f"v_lshlrev_b32 {v(HT+43)}, 7, {v(VL)}", f"s_lshl_b32 {s(S_VOX)}, {s(S_ROLE)}, {13 + BTOUCH}", f"s_add_u32 {s(S_VOX)}, {s(S_VOX)}, {VOX_OFF + 458752*TAHEAD + (65536 << BTOUCH)*PF_VOX:#x}",
          f"s_cmp_lt_u32 {s(S_ROLE)}, {max(0, (56 >> BTOUCH) - 8*PF_VOX - 16*(ATOUCH-1))}", f"s_cselect_b32 s59, {(131072 << BTOUCH)*max(0, ATOUCH-1)}, 0x40000000")
        A(f"s_cmp_lt_u32 {s(S_ROLE)}, 7", f"s_cselect_b32 s61, {ALT:#x}, 0x40000000", f"s_min_u32 {s(S_TMP)}, {s(S_ROLE)}, 6",
          f"s_lshl_b32 {s(S_TMP)}, {s(S_TMP)}, 10", f"v_add_u32 {v(HT+47)}, {s(S_TMP)}, {v(VMEM)}")
    if w < 2:
        A(f"v_lshrrev_b32 v6, 3, {v(VN)}", "v_lshlrev_b32 v7, 4, v6", f"v_and_b32 v6, 3, {v(VN)}", "v_lshl_add_u32 v7, v6, 2, v7", f"v_bfe_u32 v6, {v(VN)}, 2, 1", "v_lshl_add_u32 v7, v6, 1, v7",
          f"v_add_u32 v7, {w}, v7", "v_mul_u32_u24 v7, 896, v7", f"v_mul_u32_u24 v6, 224, {v(VG)}", "v_add_u32 v7, v7, v6")
        for j in range(14): A(f"buffer_load_dwordx4 {v(HT+4*j,4)}, v7, {s(XB,4)}, 0 offen offset:{16*j}")
        A("s_waitcnt vmcnt(0)")
        for k in range(7):
            b = HT + 8*k
            A(f"v_swap_b32 {v(b+1)}, {v(b+2)}", f"v_swap_b32 {v(b+2)}, {v(b+4)}", f"v_swap_b32 {v(b+3)}, {v(b+6)}", f"v_swap_b32 {v(b+6)}, {v(b+5)}")
    A(f"s_mov_b32 {s(S_PROF+16)}, 0")
    if STAMP: A("s_mov_b32 s58, 0")
    if STAMP and w == 3: A("s_waitcnt vmcnt(0)", "s_memrealtime s[50:51]", "s_memtime s[54:55]")
    if TLM: A("s_waitcnt vmcnt(0)", "s_memrealtime s[92:93]")
    for r in range(28): A(f"v_mov_b32 {v(ACC+r)}, 0")
    if w == 3: A("s_mov_b32 s60, 0x40000000" if FULL else f"s_mov_b32 s60, {s(S_VOX)}")
    A(f"{Lstep}:", "s_barrier")
    prof(A, 0, profile)
    Lfail, Lfail2, Lcont2 = A.label("fail"), A.label("fail2"), A.label("cont2")
    dmas = [3 + w] + ([w] if w < 3 else [])
    nd = len(dmas)
    def issue():
        o = [memload(MEMR + 4*p, VMEM, ko[p]) for p in range(3)] + nops(LG)
        for kb in dmas:
            o += [f"s_mov_b32 m0, {MIMG + (kb - kb % 4)*1024}", "s_nop 0", f"buffer_load_dwordx4 {v(VMEM)}, {s(WS,4)}, {s(S_MEM if kb < 4 else S_MEM2)} offen offset:{(kb%4)*1024} sc1 lds"]
        return o
    B0 = B0S
    rdm = lambda p: f"ds_read_b128 {v(MEMR+4*p,4)}, {v(VMEM)} offset:{MIMG + ko[p]*1024}"
    xld = lambda j: f"buffer_load_dwordx4 {v(HT+4*j,4)}, {v(VH)}, {s(WS,4)}, {s(S_TMP)} offen offset:{1024*(j%4)} sc1"
    A(issue())
    A(f"{Lpoll}:")
    if profile: A(f"s_add_u32 {s(S_PROF+16)}, {s(S_PROF+16)}, 256")
    A(f"s_waitcnt vmcnt({2 + nd})")
    prof(A, 1, profile)
    order = [(cb, p) for p in range(3) for cb in range(7)] + [(cb, p) for cb in range(7) for p in range(3, 7)]
    slots = mkslots([smf(ACC+4*cb, MEMR+4*p, wreg(cb*7+p), IDX) for cb, p in order])
    cmp_ = f"v_cmp_eq_u32 vcc, -1, {v(TMP)}"
    c0, c1, c2 = chk4(TMP, MEMR), chk4(TMP, MEMR + 4), chk4(TMP, MEMR + 8, False)
    for i, o in enumerate(c0 + [cmp_]): slots[i]['valu'].append(o)
    slots[4]['pre'].append(f"s_cbranch_vccnz {Lfail}")
    slots[5]['pre'].append(f"s_waitcnt vmcnt({1 + nd})")
    slots[5]['valu'].append(c1[0]); slots[6]['valu'].append(c1[1])
    slots[P2W]['pre'].append(f"s_waitcnt vmcnt({nd})")
    slots[P2W]['valu'].append(c2[0]); slots[P2W+1]['valu'].append(c2[1]); slots[P2W+2]['valu'].append(cmp_)
    slots[P2W+4]['pre'].append(f"s_cbranch_vccnz {Lfail}")
    assert P2W + 4 <= B0 and 7 <= P2W <= 13
    SACC = MEMR
    if w < 3:
        for r in range(4): slots[16 + r]['valu'].append(f"v_mov_b32 {v(SACC+r)}, 0")
    slots[B0]['pre'] += ["s_waitcnt vmcnt(0)", "s_barrier", rdm(3)]
    for p in range(4, 7): slots[B0 + p - 3]['pre'].append(rdm(p))
    for p in range(3, 7): slots[17 + p]['pre'].append(f"s_waitcnt lgkmcnt({6-p})")
    if w == 2:
        for j in range(14):
            slots[24 + j]['pre'].append(f"ds_read_b128 {v(HT+4*j,4)}, {v(VH)} offset:{256*(j//2)+16*(j%2)}")
    if w == 3 and FULL:
        slots[25]['pre'] += [f"ds_read_b128 {v(HT+48,4)}, {v(HT+47)} offset:{MIMG}", f"s_add_u32 s62, {s(S_MEM)}, s61"]
        slots[32]['pre'] += ["s_waitcnt lgkmcnt(1)", f"buffer_store_dwordx4 {v(HT+48,4)}, {v(HT+47)}, {s(WS,4)}, s62 offen sc1"]
    tch = lambda i: [f"s_add_u32 {s(S_TMP)}, s60, {'s59' if i == ATOUCH - 1 else (131072 << BTOUCH)*i}", f"buffer_load_dword {v(HT+52+i)}, {v(HT+43)}, {s(WS,4)}, {s(S_TMP)} offen sc1"]
    if w == 3 and ATOUCH:
        for i in range(ATOUCH - TPOST): slots[B0 + 1 + TSP*i]['pre'] += tch(i)
    if w < 2:
        nin = 14 - XPRE
        for jj in range(nin):
            j = XPRE + jj
            sl = B0 + 1 + (jj*XSN)//nin
            if j % 4 == 0 or jj == 0: slots[sl]['pre'].append(f"s_add_u32 {s(S_TMP)}, {s(S_X)}, {1024*(j - j % 4)}")
            slots[sl]['pre'].append(xld(j))
    def conv(cb):
        r = ACC + 4*cb
        return [f"v_add_f32 {v(r)}, {v(r)}, {v(r+1)}", f"v_add_f32 {v(r+2)}, {v(r+2)}, {v(r+3)}",
                f"v_cvt_pk_bf16_f32 {v(r)}, {v(r)}, {v(r+2)}", f"ds_write_b32 {v(VTW)}, {v(r)} offset:{256*cb}"]
    for cb in range(6):
        for i, o in enumerate(conv(cb)):
            if 26 + 4*cb + i < 49: slots[26 + 4*cb + i]['valu'].append(o)
    slots[28]['valu'].insert(0, f"v_cmp_u_f32 vcc, {v(ACC)}, {v(ACC+2)}")
    slots[30]['pre'] += [f"s_cbranch_vccnz {Lfail2}", f"{Lcont2}:"]
    TF = lambda k: MEMR + 4 + 4*k if k < 2 else ACC + 4*(k-2)
    def trread(k):
        return [f"ds_read_b64_tr_b16 {v(TF(k)+2*u,2)}, {v(VTR)} offset:{256*k + TW*u}" for u in range(2)]
    slots[41]['pre'] += ["s_waitcnt lgkmcnt(0)", "s_barrier"]
    if w < 3:
        rs = [r for k in range(3) for r in trread(k)]
        for i, r in enumerate(rs): slots[42 + (i*TRN)//6]['pre'].append(r)
    if profile and FSD:
        for k in range(5):
            if FS0 + k*FSD < 49: slots[FS0 + k*FSD]['pre'].insert(0, f"s_memtime {s(S_PROF+4+2*k,2)}")
    elif profile:
        for st, sl in ((2, 13), (3, 27), (4, 48)):
            if (PMASK >> st) & 1: slots[sl]['pre'].append(f"s_memtime {s(S_PROF+2*st,2)}")
    emit_slots(A, slots)
    c6 = conv(6); W5 = conv(5)[3]
    A("s_waitcnt lgkmcnt(0)", "s_barrier", W5)
    if w < 3:
        sm = [smf(SACC, TF(k), v(HT+8*k, 8), IDX, True) for k in range(7)]
        vw = (lambda n: f"s_waitcnt vmcnt({n})") if w < 2 and XPRE < 14 else (lambda n: "")
        r3, r4 = trread(3), trread(4)
        A(vw(12), sm[0], r3, r4[0], c6[0], c6[1], c6[2], c6[3], r4[1], vw(8), sm[1], sm[2], "s_waitcnt lgkmcnt(3)", vw(4), sm[3], "s_waitcnt lgkmcnt(0)", sm[4])
        A("s_waitcnt lgkmcnt(0)", "s_barrier")
        prof(A, 5, profile)
        for k in range(5, 7): A(trread(k))
        A(vw(0))
        for k in range(5, 7):
            A(f"s_waitcnt lgkmcnt({2*(6-k)})", sm[k])
        A("s_nop 7")
        A(f"ds_write2st64_b32 {v(VX)}, {v(SACC)}, {v(SACC+1)} offset0:0 offset1:1",
          f"ds_write2st64_b32 {v(VX)}, {v(SACC+2)}, {v(SACC+3)} offset0:2 offset1:3", "s_waitcnt lgkmcnt(0)", "s_barrier")
        prof(A, 6, profile)
        prof(A, 7, profile)
    else:
        A("s_nop 3", c6)
        A("s_waitcnt lgkmcnt(0)", "s_barrier")
        prof(A, 5, profile)
        if FULL and EXW == 7: A(f"buffer_store_dwordx4 {v(HT+48,4)}, {v(HT+47)}, {s(WS,4)}, s62 offen sc1")
        A(f"s_add_u32 s63, {s(S_P)}, {s(S_SLOW)}", "s_xor_b32 s64, s63, 0x40000000", nops(F2D - 2), f"buffer_store_dword {v(IDX)}, {v(TMP2)}, {s(WS,4)}, s64 offen")
        A("s_barrier")
        X0 = HT; XM = HT+4; MX, L = HT+8, HT+9; N0 = HT+12
        Lslow, Lnorm = A.label("slow"), A.label("norm")
        Y0 = HT + 20; RAW = HT + 28
        A(f"ds_read_b128 {v(X0,4)}, {v(VX)}", f"ds_read_b128 {v(Y0,4)}, {v(VX)} offset:2048", f"ds_read2st64_b32 {v(Y0+4,2)}, {v(VH)} offset0:0 offset1:8")
        prof(A, 6, profile)
        A("s_waitcnt lgkmcnt(1)")
        for j in range(4): A(f"v_add_f32 {v(RAW+j)}, {v(X0+j)}, {v(Y0+j)}")
        A("s_waitcnt lgkmcnt(0)", f"v_add_f32 {v(RAW+4)}, {v(Y0+4)}, {v(Y0+5)}")
        for j in range(5): A(f"v_exp_f32 {v(X0+j)}, {v(RAW+j)}")
        dpps = ["quad_perm:[1,0,3,2]", "quad_perm:[2,3,0,1]", "row_half_mirror"]
        def norm_store(check):
            A(f"v_add_f32 {v(L)}, {v(X0)}, {v(X0+1)}", f"v_add_f32 {v(MX)}, {v(X0+2)}, {v(X0+3)}",
              f"v_add_f32 {v(L)}, {v(L)}, {v(MX)}", f"v_add_f32 {v(L)}, {v(L)}, {v(XM)}")
            for d in dpps: A("s_nop 1", f"v_add_f32_dpp {v(L)}, {v(L)}, {v(L)} {d} row_mask:0xf bank_mask:0xf")
            A(f"v_rcp_f32 {v(N0+5)}, {v(L)}")
            if check: A(f"v_subrev_u32 {v(MX)}, 0x21800000, {v(L)}", f"v_cmp_lt_u32 vcc, 0x3c000000, {v(MX)}")
            else: A("s_nop 0")
            R = N0 + 5
            A(f"v_mul_f32_e64 {v(X0)}, {v(X0)}, {v(R)} clamp", f"v_mul_f32 {v(X0+1)}, {v(X0+1)}, {v(R)}",
              f"v_mul_f32_e64 {v(X0+2)}, {v(X0+2)}, {v(R)} clamp", f"v_mul_f32 {v(X0+3)}, {v(X0+3)}, {v(R)}",
              f"v_cvt_pk_bf16_f32 {v(N0)}, {v(X0)}, {v(X0+1)}", f"v_cvt_pk_bf16_f32 {v(N0+1)}, {v(X0+2)}, {v(X0+3)}",
              f"v_mul_f32_dpp {v(N0+3)}, {v(XM)}, {v(R)} quad_perm:[1,0,3,2] row_mask:0xf bank_mask:0xf")
            if check: A(f"s_cbranch_vccnz {Lslow}")
            A(f"v_mul_f32_e64 {v(XM)}, {v(XM)}, {v(R)} clamp",
              f"buffer_store_dwordx2 {v(N0,2)}, {v(PXO)}, {s(WS,4)}, s64 offen",
              f"v_cvt_pk_bf16_f32 {v(N0+2)}, {v(XM)}, {v(N0+3)}",
              f"buffer_store_dword {v(N0+2)}, {v(PMO)}, {s(WS,4)}, s64 offen")
        norm_store(True)
        A(f"{Lnorm}:")
        A(f"buffer_store_dwordx2 {v(N0,2)}, {v(PXO)}, {s(WS,4)}, s63 offen sc1", f"buffer_store_dword {v(N0+2)}, {v(PMO)}, {s(WS,4)}, s63 offen sc1",
          f"buffer_store_dword {v(IDX)}, {v(TMP2)}, {s(WS,4)}, s63 offen sc1")
        prof(A, 7, profile)
    if profile and PACCUM: prof_acc(A, 8)
    elif profile:
        prof_flush(A, 9, TMP, MEMR, 0)
        A(f"s_mov_b32 {s(S_PROF+16)}, 0")
    zs = [f"v_mov_b32 {v(ACC+r)}, 0" for r in range(28)]
    if TLM and w == 3:
        Lt = A.label("tl")
        A(f"s_lshl_b32 {s(S_TMP)}, {s(S_ROLE)}, 2", f"s_cmp_eq_u32 {s(S_ROLE)}, 15", f"s_cselect_b32 {s(S_TMP)}, 62, {s(S_TMP)}", f"s_cmp_lg_u32 {s(S_STEP)}, {s(S_TMP)}", f"s_cbranch_scc1 {Lt}", "s_memrealtime s[94:95]", f"{Lt}:")
    if not XEARLY:
        A("s_barrier", zs)
        if w < 2:
            if FULL: cv_wait(1)
            for j in range(min(XPRE, X_XSN)):
                if j % 4 == 0: A(f"s_add_u32 {s(S_TMP)}, {s(S_X)}, {28672 + 1024*j}")
                A(xld(j), nops(XPG))
    elif w < 2:
        if FULL: cv_wait(1)
        el = 0
        for j in range(14):
            if j % 4 == 0: A(f"s_add_u32 {s(S_TMP)}, {s(S_X)}, {28672 + 1024*j}")
            A(xld(j))
            gap = XG1 if j < XN1 else XPG
            if j == 13: gap = 0
            nz = min(len(zs), gap) if el >= 70 else 0
            A(zs[:nz], nops(gap - nz)); zs = zs[nz:]
            el += gap + 2
        A(zs)
    elif w == 2: A(nops(70), zs)
    else: A(zs)
    if w == 3:
        if FULL: A(f"s_add_u32 {s(S_TMP)}, {s(S_P)}, {16384*(TAHEAD+1) + FROFF}", f"buffer_load_dword {v(TMP)}, off, {s(WS,4)}, {s(S_TMP)} sc1")
        for i in range(ATOUCH - TPOST, ATOUCH): A(tch(i))
        A(f"s_add_u32 s60, {s(S_VOX)}, 458752")
        if FULL:
            A(f"s_waitcnt vmcnt({TPOST})",
              f"v_readfirstlane_b32 {s(S_TMP)}, {v(TMP)}", f"s_cmp_eq_u32 {s(S_TMP)}, 15", "s_cselect_b32 s60, s60, 0x40000000")
        if FULL and EXW == 5:
            A(f"ds_read_b128 {v(HT+48,4)}, {v(HT+47)} offset:{MIMG}", f"s_add_u32 {s(S_TMP)}, {s(S_MEM)}, s61", "s_waitcnt lgkmcnt(0)",
              f"buffer_store_dwordx4 {v(HT+48,4)}, {v(HT+47)}, {s(WS,4)}, {s(S_TMP)} offen sc1")
    if w == APW:
        if TGATE != 1: flag_poll(A, list(range(8, 8 + FPD)), TMP2, S_P, 0, abort, "A")
        A(nops(D1))
    A(f"s_add_u32 {s(S_MEM)}, {s(S_MEM)}, 8192", f"s_add_u32 {s(S_MEM2)}, {s(S_MEM2)}, 8192", f"s_add_u32 {s(S_P)}, {s(S_P)}, 16384",
      f"s_add_u32 {s(S_X)}, {s(S_X)}, {32*896}", f"s_add_u32 {s(S_VOX)}, {s(S_VOX)}, 458752",
      f"s_add_u32 {s(S_STEP)}, {s(S_STEP)}, 1", f"s_cmp_lt_u32 {s(S_STEP)}, {NSTEPS}", f"s_cbranch_scc1 {Lstep}")
    if profile and PACCUM: prof_acc_out(A, 8)
    if STAMP: A("v_mov_b32 v0, s58", "s_mov_b64 exec, 1", f"buffer_atomic_add v0, off, {s(DBG,4)}, 0 offset:52", "s_mov_b64 exec, -1")
    if STAMP and w == 3:
        A("s_memrealtime s[52:53]", "s_memtime s[56:57]", "s_waitcnt lgkmcnt(0)", "s_sub_u32 s52, s52, s50", "s_sub_u32 s56, s56, s54", "v_mov_b32 v0, s52", "v_mov_b32 v1, s56",
          f"s_lshl_b32 {s(S_TMP)}, {s(S_ROLE)}, {10 if FULL else 3}", (f"buffer_store_dword v0, off, {s(DBG,4)}, {s(S_TMP)} offset:60" if FULL else f"buffer_store_dwordx2 v[0:1], off, {s(DBG,4)}, {s(S_TMP)} offset:64"))
    A("s_endpgm")
    A(f"{Lfail2}:")
    for p in range(3, 7): A(chk4(TMP, MEMR + 4*p, p == 3))
    A(cmp_, f"s_cbranch_vccz {Lcont2}", "s_waitcnt lgkmcnt(0)", "s_barrier")
    if STAMP: A(f"s_add_u32 s58, s58, 0x10000")
    A(f"{Lfail}:", issue(), f"s_sub_u32 {s(S_TO)}, {s(S_TO)}, 1", f"s_cbranch_scc1 {abort}")
    if STAMP: A(f"s_add_u32 s58, s58, 1")
    for r in range(28): A(f"v_mov_b32 {v(ACC+r)}, 0")
    A(f"s_branch {Lpoll}")
    if w == 3:
        A(f"{Lslow}:")
        A(f"v_max3_f32 {v(MX)}, {v(RAW)}, {v(RAW+1)}, {v(RAW+2)}", f"v_max3_f32 {v(MX)}, {v(MX)}, {v(RAW+3)}, {v(RAW+4)}")
        for d in dpps: A("s_nop 1", f"v_max_f32_dpp {v(MX)}, {v(MX)}, {v(MX)} {d} row_mask:0xf bank_mask:0xf")
        for j in range(5): A(f"v_sub_f32 {v(X0+j)}, {v(RAW+j)}, {v(MX)}")
        for j in range(5): A(f"v_exp_f32 {v(X0+j)}, {v(X0+j)}")
        A("s_nop 0")
        norm_store(False)
        A(f"s_branch {Lnorm}")

BW7 = 0
BMIMG = 57344
BVIMG = 65536
DB = 65

def role_B(A, w, abort, profile=False):
    import prep
    WFL = [' sc1', '', ' nt', ' sc1 nt'][WFI]
    pv = w < 2
    c, M = w % 2, w // 2
    NR = 6 if pv else 8
    WV0 = 256 - 8*(7*NR - 32)
    wrg = lambda f, n=8, sub=0: a_(8*f + sub, n) if f < 32 else v(WV0 + 8*(f-32) + sub, n)
    MEMR, ACC, VP = 0, 40, 48
    IDX, VL16, TMP, TMP2, VLV, VF2 = range(56, 62)
    if pv:
        VP2, VOX, SB, AC7, PACC, VST, R0 = 64, 72, 136, 152, 168, 164, 165
        assert 166 <= WV0
    VG, VN, VL = 1, 2, 3
    own = [2*w, 2*w+1] if w < 3 else [6]
    lane_consts(A, VL, VG, VN)
    idx_const(A, IDX, VN, TMP)
    A(f"v_lshlrev_b32 {v(VL16)}, 4, {v(VL)}", f"v_add_u32 {v(VLV)}, {BVIMG + 2048*c}, {v(VL16)}")
    A(f"s_sub_u32 {s(S_TMP)}, {s(S_ROLE)}, 16")
    if pv:
        A(f"v_lshlrev_b32 {v(VF2)}, 2, {v(VN)}", f"s_lshl_b32 {s(S_TMP2)}, {s(S_TMP)}, 7", f"s_add_u32 {s(S_TMP2)}, {s(S_TMP2)}, {F2OFF - 8192}", f"v_add_u32 {v(VF2)}, {s(S_TMP2)}, {v(VF2)}")
        VF1 = 166
        A(f"v_lshlrev_b32 {v(VF1)}, 8, {v(VL)}", f"s_lshl_b32 {s(S_TMP2)}, {s(S_TMP)}, 2", f"s_add_u32 {s(S_TMP2)}, {s(S_TMP2)}, {F1OFF - 8192}", f"v_add_u32 {v(VF1)}, {s(S_TMP2)}, {v(VF1)}",
          f"v_cmp_lt_u32 vcc, 3, {v(VL)}", f"v_mov_b32 {v(TMP)}, 0x40000000", "s_nop 0", f"v_cndmask_b32 {v(VF1)}, {v(VF1)}, {v(TMP)}, vcc")
        A(f"v_lshlrev_b32 {v(VST)}, 6, {v(VG)}", f"v_and_b32 {v(TMP)}, 1, {v(VN)}", f"v_lshl_add_u32 {v(VST)}, {v(TMP)}, 5, {v(VST)}",
          f"v_bfe_u32 {v(TMP)}, {v(VN)}, 1, 1", f"v_lshl_add_u32 {v(VST)}, {v(TMP)}, 4, {v(VST)}", f"v_lshrrev_b32 {v(TMP)}, 2, {v(VN)}", f"v_lshl_add_u32 {v(VST)}, {v(TMP)}, 2, {v(VST)}")
    A(f"s_mul_i32 {s(S_VOX)}, {s(S_TMP)}, {16*1024}",
      f"s_lshl_b32 {s(S_MEMN)}, {s(S_TMP)}, 8", f"s_add_u32 {s(S_MEMN)}, {s(S_MEMN)}, {MEMF_OFF + 8192 + 256*14*c:#x}",
      f"s_mul_i32 {s(S_TMP)}, {s(S_TMP)}, {14336}", f"s_add_u32 {s(S_TMP)}, {s(S_TMP)}, {WB_OFF + (8*M*28 + 14*c)*14336:#x}",
      f"s_add_u32 {s(S_VOX)}, {s(S_VOX)}, {VOX_OFF + 16384*14*c:#x}")
    if FULL: prep.wait_tiles(A, 16, 16, abort, "B", S_TO, 4, 5)
    stg = [4, 64]
    if pv:
        for u in (6, 7):
            for kb in range(7):
                A(f"s_add_u32 {s(S_TMP2)}, {s(S_TMP)}, {u*28*14336 + kb*2048}")
                for hi in range(2):
                    d = v(64+8*kb+4*hi,4) if u == 6 else a_(200+8*kb+4*hi,4)
                    A(f"buffer_load_dwordx4 {d}, {v(VL16)}, {s(WS,4)}, {s(S_TMP2)} offen offset:{1024*hi}{WFL}")
    for u in range(NR):
        for kb in range(7):
            f = u*7 + kb
            A(f"s_add_u32 {s(S_TMP2)}, {s(S_TMP)}, {u*28*14336 + kb*2048}")
            for hi in range(2):
                A(f"buffer_load_dwordx4 {wrg(f,4,4*hi)}, {v(VL16)}, {s(WS,4)}, {s(S_TMP2)} offen offset:{1024*hi}{WFL}")
        if u >= 2 or pv: A("s_waitcnt vmcnt(28)")
        if pv and u == 1:
            for j in range(14): A(f"ds_write_b128 {v(VL16)}, {v(64+4*j,4)} offset:{BW7 + 2*w*14336 + j*1024}")
            for j in range(14): A(f"ds_write_b128 {v(VL16)}, {a_(200+4*j,4)} offset:{BW7 + (2*w+1)*14336 + j*1024}")
            A("s_waitcnt lgkmcnt(0)")
    if FULL: prep.wait_counters(A, 0, 32, abort, "B", S_TO, 4, 5)
    if pv: read_mode(A, 4)
    A(f"s_mov_b32 {s(S_STEP)}, 0", f"s_mov_b32 {s(S_MEM)}, {MEMF_OFF:#x}", f"s_mov_b32 {s(S_MEM2)}, {MEMF_OFF+4096:#x}",
      f"s_mov_b32 {s(S_P)}, {PF_OFF:#x}", f"s_mov_b32 {s(S_X)}, {PF_OFF + 4096:#x}", f"s_mov_b32 {s(S_P2)}, {PF_OFF + 8192:#x}", f"s_mov_b32 {s(S_TO)}, {TIMEOUT}")
    S_EM, S_FR, S_ODD = 64, 65, 66
    A(f"s_mov_b32 {s(S_FR)}, {PF_OFF + FROFF:#x}", f"s_mov_b32 {s(S_ODD)}, 0xaaaaaaaa", f"s_mov_b32 {s(S_ODD+1)}, 0xaaaaaaaa")
    A("s_waitcnt vmcnt(0) lgkmcnt(0)")
    if TLM: A("s_memrealtime s[92:93]")
    A(f"s_mov_b32 {s(S_PROF+10)}, 0")
    if STAMP: A("s_mov_b32 s58, 0", "s_mov_b32 s59, 0")
    if STAMP and w == 0: A("s_memtime s[54:55]")
    Lstep, Lpoll, Lok2 = [A.label(f"B{w}{x}") for x in ("step", "poll", "ok2")]
    mreg = lambda kb: MEMR + 4*kb
    mld = lambda kb: memload(mreg(kb), VL16, kb)
    if pv:
        voxld = lambda hh: f"buffer_load_dwordx4 {v(VOX + 4*hh, 4)}, {v(VL16)}, {s(WS,4)}, {s(S_TMP)} offen offset:{1024*(hh%4)} sc1"
        def bcv(ahead):
            if not FULL: return
            Lc, Lg = A.label("bcv"), A.label("bcg")
            A(f"v_cmp_ne_u32 vcc, 15, {v(TMP2)}", f"s_add_u32 {s(S_TMP2)}, {s(S_FR)}, {16384*ahead}", f"s_cbranch_vccz {Lg}")
            A(f"{Lc}:", f"buffer_load_dword {v(TMP2)}, off, {s(WS,4)}, {s(S_TMP2)} sc1", "s_waitcnt vmcnt(0)", f"v_cmp_ne_u32 vcc, 15, {v(TMP2)}", f"s_cbranch_vccz {Lg}", "s_sleep 1")
            timeout_step(A, Lc, abort)
            A(f"{Lg}:")
        def voxpre(add):
            if VPRE: bcv(1 if add else 0)
            for hh in range(VPRE):
                if hh % 4 == 0: A(f"s_add_u32 {s(S_TMP)}, {s(S_VOX)}, {add + 1024*hh}")
                A(voxld(hh))
        A(f"v_mov_b32 {v(TMP2)}, 0")
        voxpre(0)
    else:
        A(f"v_lshlrev_b32 {v(VF2)}, 3, {v(VL16)}", f"v_mov_b32 {v(TMP2)}, 0")
        A(f"s_sub_u32 {s(S_TMP)}, {s(S_ROLE)}, 16", f"s_cmp_lt_u32 {s(S_TMP)}, 7", f"s_cselect_b32 s70, {ALT:#x}, 0x40000000", f"s_min_u32 {s(S_TMP)}, {s(S_TMP)}, 6",
          f"s_lshl_b32 {s(S_TMP)}, {s(S_TMP)}, 10", f"v_add_u32 {v(32)}, {s(S_TMP)}, {v(VL16)}")
    A(f"s_branch {Lpoll}", f"{Lstep}:", nops(DB))
    A(f"{Lpoll}:")
    for kb in own:
        A(f"s_mov_b32 m0, {BMIMG + (kb - kb % 4)*1024}", "s_nop 0", f"buffer_load_dwordx4 {v(VL16)}, {s(WS,4)}, {s(S_MEM if kb < 4 else S_MEM2)} offen offset:{(kb%4)*1024} sc1 lds")
    for r in range(8): A(f"v_mov_b32 {v(ACC+r)}, 0")
    if pv:
        SU = ([0], [2, 3, 1])[w] if BBAL else [2*w, 2*w+1]
        stq = [(8 + i, kb) for kb in range(7) for i in range(len(SU))]
        rd = lambda n: [f"ds_read_b128 {v(SB + 8*(n % 2) + 4*hi, 4)}, {v(VL16)} offset:{BW7 + SU[stq[n][0] - 8]*14336 + stq[n][1]*2048 + hi*1024}" for hi in range(2)]
        for j in range(4*len(SU)): A(f"v_mov_b32 {v(AC7+j)}, 0")
        for j in range(4): A(f"v_mov_b32 {v(PACC+j)}, 0")
        A(rd(0), rd(1))
        if not VPRE: bcv(0)
    A("s_waitcnt vmcnt(0)", "s_barrier")
    if PACCUM: prof(A, 6, profile)
    korder = list(range(7))
    for kb in korder: A(f"ds_read_b128 {v(mreg(kb),4)}, {v(VL16)} offset:{BMIMG + kb*1024}")
    if not PB2: prof(A, 1, profile)
    cv = lambda r, u: [f"v_add_f32 {v(r)}, {v(r)}, {v(r+1)}", f"v_add_f32 {v(r+2)}, {v(r+2)}, {v(r+3)}", f"v_cvt_pk_bf16_f32 {v(VP+u)}, {v(r)}, {v(r+2)}"]
    ms, ustart = [], []
    if pv:
        reg = [(u, kb) for u in range(6) for kb in korder]
        per = 42 // len(stq)
        seq = []
        for i, x in enumerate(reg):
            seq.append(x)
            if i % per == per - 1 - (per > 3): seq.append(stq[i // per])
    else:
        seq = [(u, kb) for u in range(8) for kb in korder]
    nst = 0
    for (u, kb) in seq:
        if u < NR: ms.append(smf(ACC + 4*(u % 2), mreg(kb), wrg(u*7+kb), IDX))
        else:
            ms.append(smf(AC7 + 4*(u-8), mreg(kb), v(SB + 8*(nst % 2), 8), IDX)); nst += 1
    slots = mkslots(ms)
    Lretry, Lcont = A.label("Bretry"), A.label("Bcont")
    last = {u: max(i for i, x in enumerate(seq) if x[0] == u) for u in range(NR)}
    first = {u: min(i for i, x in enumerate(seq) if x[0] == u) for u in range(NR)}
    tail = []
    for u in range(NR):
        r = ACC + 4*(u % 2)
        ops = cv(r, u) + ([f"v_mov_b32 {v(r+j)}, 0" for j in range(4)] if u + 2 < NR else [])
        st = last[u] + 2
        if st + 3 > len(slots): tail += ops; continue
        lim = first[u+2] - 2 if u + 2 < NR else len(slots) - 1
        for i, o in enumerate(ops): slots[min(st + i, lim)]['valu'].append(o)
    if pv:
        sts = [i for i, x in enumerate(seq) if x[0] >= 8]
        NS, NSL = len(sts), len(slots)
        for n, i in enumerate(sts):
            if n + 2 < NS: slots[i+1]['pre'] += rd(n+2)
            if n >= 2: slots[i-1]['pre'].append(f"s_waitcnt lgkmcnt({2 if n + 1 < NS else 0})")
        FR_ = list(range(28, 28 + FPD))
        fl0 = NSL - 1 - 3*(FPD - 1)
        def place(lo, ops):
            while lo < NSL - 1 and len(slots[lo]['pre']) + len(ops) > 2: lo += 1
            slots[lo]['pre'] += ops
            return lo
        span = (fl0 - 3 if w == 0 else NSL - 6) - 9
        prevsl = 0
        for hh in range(VPRE, 0 if X_NOVOX else 16):
            sl = max(prevsl + 1, 9 + (span*(hh - VPRE)) // (16 - VPRE))
            ops = ([f"s_add_u32 {s(S_TMP)}, {s(S_VOX)}, {1024*hh}"] if hh % 4 == 0 else []) + [voxld(hh)]
            prevsl = place(sl, ops)
        for i, su in enumerate(SU):
            r = AC7 + 4*i
            if su // 2 == w: tail += cv(r, 6 + su % 2)
            else: tail += cv(r, 0)[:2] + [f"v_cvt_pk_bf16_f32 {v(r)}, {v(r)}, {v(r+2)}", f"ds_write_b32 {v(VLV)}, {v(r)} offset:2048", "s_waitcnt lgkmcnt(0)"]
        if FULL: place(prevsl + 1 if w else 30, [f"s_add_u32 {s(S_TMP2)}, {s(S_FR)}, 16384", f"buffer_load_dword {v(TMP2)}, off, {s(WS,4)}, {s(S_TMP2)} sc1"])
        for i, r in enumerate(FR_):
            if w == 0: slots[fl0 + 3*i]['pre'].append(flag_ld(r, VF2, S_P2, 0))
        place(20, [f"s_add_u32 s60, {s(S_MEMN)}, {s(S_SLOW)}"]); place(22, [f"s_add_u32 s61, {s(S_P2)}, {s(S_SLOW)}"]); place(26, ["s_xor_b32 s62, s60, 0x40000000"]); place(28, ["s_xor_b32 s63, s61, 0x40000000"])
    if not pv and BTOUCH:
        if FULL:
            slots[BT0]['pre'] += [f"v_readfirstlane_b32 {s(S_TMP2)}, {v(TMP2)}", f"s_add_u32 {s(S_TMP)}, {s(S_VOX)}, {458752*BTA + 8192}", f"s_cmp_eq_u32 {s(S_TMP2)}, 15", f"s_cselect_b32 {s(S_TMP)}, {s(S_TMP)}, 0x40000000",
                                  f"s_add_u32 {s(S_TMP2)}, {s(S_FR)}, {16384*(BTA+1)}", f"buffer_load_dword {v(TMP2)}, off, {s(WS,4)}, {s(S_TMP2)} sc1"]
        else: slots[BT0]['pre'].append(f"s_add_u32 {s(S_TMP)}, {s(S_VOX)}, {458752*BTA + 8192}")
        slots[BT0]['pre'].append(f"buffer_load_dword {v(62)}, {v(VF2)}, {s(WS,4)}, {s(S_TMP)} offen sc1")
    if FULL and w == EXW:
        A(f"ds_read_b128 {v(28,4)}, {v(32)} offset:{BMIMG}", f"s_add_u32 {s(S_EM)}, {s(S_MEM)}, s70")
        slots[3]['pre'].append(f"buffer_store_dwordx4 {v(28,4)}, {v(32)}, {s(WS,4)}, {s(S_EM)} offen sc1")
    where = [i for i, sl in enumerate(slots) if any(o.startswith(f"v_cvt_pk_bf16_f32 {v(VP)},") for o in sl['valu'])][0]
    slots[where]['valu'].insert(0, f"v_cmp_u_f32 vcc, {v(ACC)}, {v(ACC+2)}")
    slots[where+2]['pre'] += [f"s_cbranch_vccnz {Lretry}", f"{Lcont}:"]
    seen = 0
    A("s_waitcnt lgkmcnt(6)")
    for i, (u, kb) in enumerate(seq[:12]):
        nxt = seq[i+1]
        if nxt[0] == 0 and nxt[1] > seen:
            seen = nxt[1]
            extra = sum(1 for sl in slots[:i+1] for o in sl['pre'] if o.startswith("ds_read"))
            slots[i]['pre'].append(f"s_waitcnt lgkmcnt({6 - seen + extra})")
    if profile and FSD:
        for k in range(5):
            if FS0 + k*FSD < len(slots): slots[FS0 + k*FSD]['pre'].insert(0, f"s_memtime {s(S_PROF+4+2*k,2)}")
    if X_NOV:
        for sl in slots: sl['m'] = ""
    emit_slots(A, slots)
    if PACCUM: prof(A, 7, profile)
    A("s_nop 7", tail)
    if not pv:
        A(f"ds_write_b128 {v(VLV)}, {v(VP,4)}", f"ds_write_b128 {v(VLV)}, {v(VP+4,4)} offset:1024", "s_waitcnt lgkmcnt(0)")
    if not PB2: prof(A, 2, profile)
    if not pv:
        A("s_barrier", "s_barrier")
    else:
        vprd = [f"ds_read_b128 {v(VP2,4)}, {v(VLV)}", f"ds_read_b128 {v(VP2+4,4)}, {v(VLV)} offset:1024"] + ([f"ds_read_b32 {v(VP+7)}, {v(VLV)} offset:4096"] if BBAL and w == 0 else [])
        if w == 0:
            flag_poll(A, FR_, VF2, S_P2, 0, abort, "B", primed=True)
            A(f"buffer_store_dword {v(IDX)}, {v(VF1)}, {s(WS,4)}, s63 offen")
            A(nops(D2))
        else: A("s_barrier")
        prof(A, 0, profile)
        porder = [(c*4 + i) % 8 for i in range(8)] + [8, 9]
        pld = lambda k: f"buffer_load_dwordx4 {v(4*k,4)}, {v(VL16)}, {s(WS,4)}, {s([S_P, S_X, S_P2][k//4])} offen offset:{1024*(k%4)} sc1"
        bop = lambda k: v(VOX + 8*k, 8) if k < 8 else v(VP if k == 8 else VP2, 8)
        Lpp, Lbad = A.label("pp"), A.label("bad")
        for i, k in enumerate(porder):
            A(pld(k))
            if w == 0 and i == BREL: A("s_barrier")
        A(vprd)
        A(f"{Lpp}:")
        if profile and not FSD: A(f"s_add_u32 {s(S_PROF+10)}, {s(S_PROF+10)}, 1")
        A("s_waitcnt lgkmcnt(0)")
        for i, k in enumerate(porder):
            A(f"s_waitcnt vmcnt({9-i})")
            if i == 0: prof(A, 3, profile)
            if i == 9 and PB2: prof(A, 1, profile)
            A(smf(PACC, 4*k, bop(k), IDX))
        Lgood = A.label("good")
        a, b = PACC, PACC+2
        A(f"s_mov_b64 vcc, {s(S_ODD,2)}", "s_nop 6")
        A(f"v_add_f32 {v(a)}, {v(a)}, {v(a+1)}", f"v_add_f32 {v(b)}, {v(b)}, {v(b+1)}", f"v_cmp_u_f32 {s(68,2)}, {v(a)}, {v(b)}",
          f"v_cndmask_b32_dpp {v(b+1)}, {v(a)}, {v(b)}, vcc quad_perm:[1,0,3,2] row_mask:0xf bank_mask:0xf", "s_not_b64 vcc, vcc",
          f"v_cndmask_b32_dpp {v(a+1)}, {v(b)}, {v(a)}, vcc quad_perm:[1,0,3,2] row_mask:0xf bank_mask:0xf",
          f"s_cmp_lg_u64 {s(68,2)}, 0", f"v_cvt_pk_bf16_f32 {v(R0)}, {v(a+1)}, {v(b+1)}", f"s_cbranch_scc1 {Lbad}", f"{Lgood}:",
          f"buffer_store_dword {v(R0)}, {v(VST)}, {s(WS,4)}, s62 offen")
        A(f"buffer_store_dword {v(R0)}, {v(VST)}, {s(WS,4)}, s60 offen sc1", f"buffer_store_dword {v(IDX)}, {v(VF1)}, {s(WS,4)}, s61 offen sc1" if w == 0 else "")
        if FULL:
            Lq = A.label("Bq")
            A(f"s_add_u32 {s(S_EM)}, {s(S_MEMN)}, {ALT:#x}", f"s_cmp_lg_u32 {s(S_STEP)}, {NSTEPS-1}", f"s_cbranch_scc1 {Lq}", f"buffer_store_dword {v(R0)}, {v(VST)}, {s(WS,4)}, {s(S_EM)} offen sc1", f"{Lq}:")
        prof(A, 4, profile)
        A("s_barrier")
        voxpre(458752)
    if profile and PACCUM: prof_acc(A, 8)
    elif profile:
        prof_flush(A, 6, TMP, TMP2, 0)
        A(f"s_mov_b32 {s(S_PROF+10)}, 0")
    A(f"s_add_u32 {s(S_MEM)}, {s(S_MEM)}, 8192", f"s_add_u32 {s(S_MEM2)}, {s(S_MEM2)}, 8192", f"s_add_u32 {s(S_MEMN)}, {s(S_MEMN)}, 8192",
      f"s_add_u32 {s(S_P)}, {s(S_P)}, 16384", f"s_add_u32 {s(S_P2)}, {s(S_P2)}, 16384", f"s_add_u32 {s(S_X)}, {s(S_X)}, 16384", f"s_add_u32 {s(S_VOX)}, {s(S_VOX)}, {0 if X_FIXVOX else 28*16*1024}",
      f"s_add_u32 {s(S_FR)}, {s(S_FR)}, 16384",
      f"s_add_u32 {s(S_STEP)}, {s(S_STEP)}, 1", f"s_cmp_lt_u32 {s(S_STEP)}, {NSTEPS}", f"s_cbranch_scc1 {Lstep}")
    if profile and PACCUM: prof_acc_out(A, 8)
    if STAMP: A("v_mov_b32 v0, s58", "v_mov_b32 v1, s59", "s_mov_b64 exec, 1", f"buffer_atomic_add v0, off, {s(DBG,4)}, 0 offset:56", f"buffer_atomic_add v1, off, {s(DBG,4)}, 0 offset:48", "s_mov_b64 exec, -1")
    if STAMP and w == 0 and not FULL:
        A("s_memtime s[56:57]", "s_waitcnt lgkmcnt(0)", "s_sub_u32 s56, s56, s54", "v_mov_b32 v1, s56",
          f"s_lshl_b32 {s(S_TMP)}, {s(S_ROLE)}, 2", f"buffer_store_dword v1, off, {s(DBG,4)}, {s(S_TMP)} offset:128")
    A("s_endpgm")
    A(f"{Lretry}:")
    for kb in range(7): A(chk4(TMP, mreg(kb), kb == 0))
    A(f"v_cmp_eq_u32 vcc, -1, {v(TMP)}", f"s_cbranch_vccz {Lcont}", "s_waitcnt lgkmcnt(0)", "s_barrier")
    if STAMP: A("s_add_u32 s58, s58, 1")
    timeout_step(A, Lpoll, abort)
    if pv:
        A(f"{Lbad}:")
        for k in range(10): A(chk4(TMP, 4*k, k == 0))
        A(f"v_min_u32 {v(R0)}, -2, {v(R0)}", f"v_cmp_eq_u32 vcc, -1, {v(TMP)}", f"s_cbranch_vccz {Lgood}")
        if STAMP: A("s_add_u32 s59, s59, 1")
        for k in porder: A(pld(k))
        for r in range(4): A(f"v_mov_b32 {v(PACC+r)}, 0")
        timeout_step(A, Lpp, abort)

def role_PF(A, abort):
    import prep
    WFL = [' sc1', '', ' nt', ' sc1 nt'][WFI]
    AHEAD = PFA
    A("; ---------------- prefetcher")
    if FULL:
        prep.wait_tiles(A, 16, 16, abort, "P", S_TO, 4, 5)
    A("v_and_b32 v3, 63, v0", "v_lshlrev_b32 v1, 7, v3", "v_mov_b32 v2, 0", "v_mov_b32 v12, 0")
    A(f"s_sub_u32 {s(S_TMP2)}, {s(S_ROLE)}, 30", f"s_lshl_b32 {s(S_TMP2)}, {s(S_TMP2)}, 2", f"s_add_u32 {s(S_TMP2)}, {s(S_TMP2)}, {s(S_WAVE)}")
    A(f"s_lshl_b32 {s(S_TMP2)}, {s(S_TMP2)}, 13")
    A(f"s_mov_b32 {s(S_STEP)}, 0", f"s_mov_b32 {s(S_TO)}, {TIMEOUT}")
    if FULL:
        for hd in PBH[:PBN]:
            A(f"s_add_u32 {s(S_TMP)}, {s(S_TMP2)}, {WB_OFF + hd*28*14336:#x}")
            for i in range(7):
                if i == 6: A(f"s_cmp_eq_u32 {s(S_TMP2)}, 0", f"s_cselect_b32 {s(S_TMP)}, {s(S_TMP)}, 0x40000000")
                A(f"buffer_load_dword v{16+i}, v1, {s(WS,4)}, {s(S_TMP)} offen sc1", f"s_add_u32 {s(S_TMP)}, {s(S_TMP)}, 65536")
        prep.wait_counters(A, 0, 32, abort, "P", S_TO, 4, 5, sleep=30)
        A(f"s_mov_b32 {s(S_P)}, {PF_OFF + FROFF:#x}")
    A(f"s_add_u32 {s(S_X)}, {s(S_TMP2)}, {XS_OFF:#x}", f"s_mov_b32 {s(S_P2)}, 28672")
    L1, L2 = A.label("pf1"), A.label("pf2")
    A(f"s_cmp_lt_u32 {s(S_TMP2)}, {4*8192}", f"s_cbranch_scc1 {L2}")
    A(f"s_mov_b32 {s(S_X)}, {MEMF_OFF + 8192:#x}", f"s_mov_b32 {s(S_P2)}, 8192")
    A(f"s_cmp_eq_u32 {s(S_TMP2)}, {4*8192}", f"s_cbranch_scc1 {L2}")
    A(f"s_and_b32 {s(S_X)}, {s(S_TMP2)}, 8192", f"s_add_u32 {s(S_X)}, {s(S_X)}, {PF_OFF:#x}", f"s_mov_b32 {s(S_P2)}, 16384")
    A(f"{L2}:")
    A(f"s_lshl_b32 {s(S_VOX)}, {s(S_TMP2)}, {BTOUCH}", f"s_add_u32 {s(S_VOX)}, {s(S_VOX)}, {VOX_OFF:#x}", f"s_cmp_eq_u32 {s(S_TMP2)}, {7*8192}",
      f"s_cselect_b32 {s(S_X)}, 0x40000000, {s(S_X)}", f"s_mov_b32 {s(S_MEM)}, {MEMF_OFF - AHEAD*8192:#x}")
    Lstep, Lpoll, Lgo = A.label("pfstep"), A.label("pfpoll"), A.label("pfgo")
    if FULL and CODEPF:
        Lc0, Lc1 = A.label("pfw"), A.label("pfg")
        A(f"{Lc0}:", f"buffer_load_dword v12, off, {s(WS,4)}, {s(S_P)} sc1", "s_waitcnt vmcnt(0)", "v_cmp_eq_u32 vcc, -1, v12", f"s_cbranch_vccz {Lc1}", "s_sleep 8")
        timeout_step(A, Lc0, abort)
        A(f"{Lc1}:", "s_getpc_b64 s[30:31]", "Lpf_pc:", "s_sub_u32 s30, s30, Lpf_pc-Lteam_code", "s_subb_u32 s31, s31, 0", f"v_add_u32 v13, {s(S_TMP2)}, v1", "v_min_u32 v13, Lpf_pc-Lteam_code, v13",
          "global_load_dword v14, v13, s[30:31]")
    A("v_mov_b32 v4, -1")
    A(f"{Lstep}:", f"s_cmp_lt_u32 {s(S_STEP)}, {AHEAD+1}", f"s_cbranch_scc1 {Lgo}")
    A("v_cmp_eq_u32 vcc, -1, v4", f"s_cbranch_vccz {Lgo}")
    A(f"{Lpoll}:", f"buffer_load_dword v4, v2, {s(WS,4)}, {s(S_MEM)} offen sc1", "s_waitcnt vmcnt(0)", "v_cmp_eq_u32 vcc, -1, v4", f"s_cbranch_vccz {Lgo}", "s_sleep 2")
    timeout_step(A, Lpoll, abort)
    A(f"{Lgo}:")
    if FULL:
        Lc, Lcg = A.label("pfc"), A.label("pfcg")
        A("v_cmp_ne_u32 vcc, 15, v12", f"s_cbranch_vccz {Lcg}")
        A(f"{Lc}:", f"buffer_load_dword v12, off, {s(WS,4)}, {s(S_P)} sc1", "s_waitcnt vmcnt(0)", "v_cmp_ne_u32 vcc, 15, v12", f"s_cbranch_vccz {Lcg}", "s_sleep 2")
        timeout_step(A, Lc, abort)
        A(f"{Lcg}:", f"s_add_u32 {s(S_P)}, {s(S_P)}, 16384", f"buffer_load_dword v12, off, {s(WS,4)}, {s(S_P)} sc1")
    if PFW:
        Lw1, Lw2 = A.label("pw1"), A.label("pw2")
        A(f"s_mov_b32 s70, {s(S_WAVE)}", f"{Lw1}:", "s_sub_u32 s70, s70, 1", f"s_cbranch_scc1 {Lw2}", f"s_sleep {PFW}", f"s_branch {Lw1}", f"{Lw2}:")
    A(f"s_add_u32 {s(S_MEM)}, {s(S_MEM)}, 8192", f"buffer_load_dword v4, v2, {s(WS,4)}, {s(S_MEM)} offen sc1")
    A(f"buffer_load_dword v5, v1, {s(WS,4)}, {s(S_X)} offen sc1")
    for j in range(PF_VOX):
        if PFS: A(f"s_sleep {PFS}")
        A(f"s_add_u32 {s(S_TMP)}, {s(S_VOX)}, {(65536 << BTOUCH)*j}", f"buffer_load_dword v{6+j}, v1, {s(WS,4)}, {s(S_TMP)} offen sc1")
    A(f"s_add_u32 {s(S_X)}, {s(S_X)}, {s(S_P2)}", f"s_add_u32 {s(S_VOX)}, {s(S_VOX)}, {28*16*1024}",
      f"s_waitcnt vmcnt({1 + PF_VOX})",
      f"s_add_u32 {s(S_STEP)}, {s(S_STEP)}, 1", f"s_cmp_lt_u32 {s(S_STEP)}, {NSTEPS + 1}", f"s_cbranch_scc1 {Lstep}", "s_endpgm")

PF_VOX = 2
def rec_kernel(A, name, profile=False):
    kernel_begin(A, name)
    Lexit = A.label("exit")
    A("s_cmp_ge_u32 s2, 256", f"s_cbranch_scc1 {Lexit}")
    srd(A, WS, 96, 0x10000000); srd(A, XB, 24, 1835008); srd(A, DBG, 88, 256)
    A(f"s_getreg_b32 {s(S_TMP)}, hwreg(HW_REG_XCC_ID)", f"s_and_b32 {s(S_TMP)}, {s(S_TMP)}, 15", f"s_cmp_lg_u32 {s(S_TMP)}, 0", f"s_cbranch_scc1 {Lexit}")
    A("v_lshrrev_b32 v1, 6, v0", "s_nop 0", f"v_readfirstlane_b32 {s(S_WAVE)}, v1", "s_waitcnt lgkmcnt(0)")
    Lw = A.label("notw0")
    A(f"s_cmp_lg_u32 {s(S_WAVE)}, 0", f"s_cbranch_scc1 {Lw}")
    A("v_mov_b32 v1, 1", "v_mov_b32 v2, 0", "s_mov_b64 exec, 1",
      f"buffer_atomic_add v1, v2, {s(DBG,4)}, 0 offen sc0", "s_waitcnt vmcnt(0)", "ds_write_b32 v2, v1 offset:32768", "s_waitcnt lgkmcnt(0)", "s_mov_b64 exec, -1")
    A(f"{Lw}:", "s_barrier", "v_mov_b32 v2, 0", "ds_read_b32 v1, v2 offset:32768", "s_waitcnt lgkmcnt(0)", f"v_readfirstlane_b32 {s(S_ROLE)}, v1", "s_barrier")
    LPF = A.label("rolePF")
    A(f"s_cmp_ge_u32 {s(S_ROLE)}, 32", f"s_cbranch_scc1 {Lexit}")
    A(f"s_cmp_ge_u32 {s(S_ROLE)}, 30", f"s_cbranch_scc1 {LPF}")
    LB = A.label("roleB")
    A(f"s_cmp_ge_u32 {s(S_ROLE)}, 16", f"s_cbranch_scc1 {LB}")
    for R, fn in (("A", role_A), ("B", role_B)):
        if R == "B": A(f"{LB}:")
        Ls = [A.label(f"{R}w{w}") for w in range(4)]
        for w in range(1, 4):
            A(f"s_cmp_eq_u32 {s(S_WAVE)}, {w}", f"s_cbranch_scc1 {Ls[w]}")
        for w in range(4):
            A(f"{Ls[w]}:")
            fn(A, w, Lexit, profile)
    A(f"{LPF}:")
    role_PF(A, Lexit)
    A(f"{Lexit}:", "s_endpgm")
    A(kernel_desc(name))

def generate(path, profile=False, **kw):
    g = globals(); saved = {k: g[k] for k in kw}
    g.update(kw)
    A = Asm()
    A("; @launch kernel=rec_kernel grid=(256,1,1) block=(256,1,1) lds=131072")
    A('.amdgcn_target "amdgcn-amd-amdhsa--gfx950"', ".text")
    rec_kernel(A, "rec_kernel", profile=bool(profile))
    t = A.text().replace("    ; @launch", "; @launch")
    if profile == 2: t = t.replace("s_memtime", "s_memrealtime")
    if LDFL == 1: t = t.replace(" sc1\n", " nt\n")
    if LDFL == 2: t = t.replace(" sc1\n", " sc0 sc1\n")
    open(path, "w").write(t)
    g.update(saved)

if __name__ == "__main__":
    import sys
    generate(sys.argv[1], len(sys.argv) > 2)
```

```python
from asm import *
from model import *
import prep
from rec import WS, XB, DBG, S_WAVE, S_ROLE, S_TO, S_TMP, S_TMP2, wreg, timeout_step, TIMEOUT, idx_const, chk4, smf, FROFF
OUT, XA = 48, 52
S_SEG, S_H, S_A, S_B, S_C, S_D, S_BUF = range(56, 63)
NV, NX, NPG = 4, 3, 3
RP = 912
XBUF = 32*RP
W_TIMEOUT = 300000
WTOUCH = 0
XDELAY = 2
YSLEEP = 30
YSEG = 3
PVPRE = 0
YSEGL = 3
VLEAD = 16
OFL = ['', ' sc1', ' nt']
OFI = 0
PVS = 4
VLA = 5
PVGAP = 10
VDELAY = 0
WSLEEP = 4
TLM = 0

def mfma(d, a, b, c=None, k16=False):
    op = "v_mfma_f32_16x16x16_bf16" if k16 else "v_mfma_f32_16x16x32_bf16"
    return f"{op} {v(d,4)}, {a}, {b}, " + (v(d,4) if c is None else c)
def wr4(f):
    return a_(4*f, 4) if f < 64 else v(120 + 4*(f-64), 4)

def lanes(A, VL, VG, VN, VL16):
    A(f"v_and_b32 {v(VL)}, 63, v0", f"v_lshrrev_b32 {v(VG)}, 4, {v(VL)}", f"v_and_b32 {v(VN)}, 15, {v(VL)}", f"v_lshlrev_b32 {v(VL16)}, 4, {v(VL)}")

def load_weights(A, base, VL16, share=0, vt=16, touch_only=False):
    if share and WTOUCH:
        n = -(-49 // (share*4))
        A(f"v_lshlrev_b32 {v(vt)}, 3, {v(VL16)}", f"s_lshl_b32 {s(S_TMP2)}, {s(S_SEG)}, 2", f"s_add_u32 {s(S_TMP2)}, {s(S_TMP2)}, {s(S_WAVE)}", f"s_lshl_b32 {s(S_TMP2)}, {s(S_TMP2)}, 13",
          f"s_mul_i32 {s(S_TMP)}, {s(S_H)}, {28*14336}", f"s_add_u32 {s(S_TMP)}, {s(S_TMP)}, {s(S_TMP2)}", f"s_add_u32 {s(S_TMP)}, {s(S_TMP)}, {base:#x}")
        for i in range(n):
            if (i+1)*share*4 > 49:
                A(f"s_cmp_lt_u32 {s(S_TMP2)}, {(49 - i*share*4)*8192}", f"s_cselect_b32 {s(S_TMP)}, {s(S_TMP)}, 0x40000000")
            A(f"buffer_load_dword {v(vt+1+i)}, {v(vt)}, {s(WS,4)}, {s(S_TMP)} offen sc1", f"s_add_u32 {s(S_TMP)}, {s(S_TMP)}, {share*4*8192}")
    A(f"s_mul_i32 {s(S_TMP)}, {s(S_H)}, {28*14336}", f"s_mul_i32 {s(S_TMP2)}, {s(S_WAVE)}, {7*14336}", f"s_add_u32 {s(S_TMP)}, {s(S_TMP)}, {s(S_TMP2)}",
      f"s_add_u32 {s(S_TMP)}, {s(S_TMP)}, {base:#x}")
    if touch_only: return
    for f in range(98):
        A(f"buffer_load_dwordx4 {wr4(f)}, {v(VL16)}, {s(WS,4)}, {s(S_TMP)} offen offset:{1024*(f%4)} sc1")
        if f % 4 == 3: A(f"s_add_u32 {s(S_TMP)}, {s(S_TMP)}, 4096")
        if f % 16 == 15 and f > 30: A("s_waitcnt vmcnt(32)")

def dma_x(A, seg_s, buf_s, VL16, XB=XB):
    A(f"s_mul_i32 {s(S_TMP)}, {s(seg_s)}, 28672", f"s_mul_i32 {s(S_TMP2)}, {s(S_WAVE)}, {8*896}", f"s_add_u32 {s(S_TMP)}, {s(S_TMP)}, {s(S_TMP2)}",
      f"s_mul_i32 {s(S_TMP2)}, {s(S_WAVE)}, {8*RP}", f"s_add_u32 {s(S_TMP2)}, {s(S_TMP2)}, {s(buf_s)}",
      "s_mov_b32 exec_hi, 0x00ffffff")
    for r in range(8):
        A(f"s_mov_b32 m0, {s(S_TMP2)}", f"s_add_u32 {s(S_TMP2)}, {s(S_TMP2)}, {RP}", f"buffer_load_dwordx4 {v(VL16)}, {s(XB,4)}, {s(S_TMP)} offen lds", f"s_add_u32 {s(S_TMP)}, {s(S_TMP)}, 896")
    A("s_mov_b32 exec_hi, -1")

def poll_eq(A, vt, voff, soff, want, abort, tag, ne=False, sleep=None):
    Lp, Lgo = A.label(tag + "p"), A.label(tag + "go")
    A(f"{Lp}:", f"buffer_load_dword {v(vt)}, {v(voff)}, {s(WS,4)}, {s(soff)} offen sc1", "s_waitcnt vmcnt(0)",
      f"v_cmp_{'eq' if ne else 'ne'}_u32 vcc, {want}, {v(vt)}", f"s_cbranch_vccz {Lgo}", f"s_sleep {sleep or WSLEEP}")
    timeout_step(A, Lp, abort)
    A(f"{Lgo}:")

def divmod_const(A, q, r, x, d):
    m = (65536 + d - 1) // d
    assert all((i*m) >> 16 == i // d for i in range(256))
    A(f"s_mul_i32 {s(q)}, {s(x)}, {m}", f"s_lshr_b32 {s(q)}, {s(q)}, 16", f"s_mul_i32 {s(r)}, {s(q)}, {d}", f"s_sub_u32 {s(r)}, {s(x)}, {s(r)}")

VMID = 4
def yield_start(A, abort, tag, va, vt):
    for _ in range(XDELAY): A("s_sleep 127")
    if not XDELAY: prep.wait_tiles(A, 16, 16, abort, tag, S_TO, vt, va, st=(68, 69, 70))
    prep.wait_counters(A, 0, 32, abort, tag, S_TO, vt, va, sleep=YSLEEP)
    if YSEG < 0: return
    Lg = A.label("ys")
    A(f"s_cmp_lg_u32 {s(S_WAVE)}, 0", f"s_cbranch_scc1 {Lg}", f"v_mov_b32 {v(va)}, 0", f"s_mov_b32 {s(S_A)}, {PF_OFF + FROFF + 16384*(YSEGL if tag == 'l' else YSEG):#x}")
    poll_eq(A, vt, va, S_A, 15, abort, tag + "y", sleep=YSLEEP)
    A(f"{Lg}:", "s_barrier")

def gemm_seg(A, ACC, FR, VRD, x_is_A, hook=None, every=None):
    rd = lambda ks: [f"ds_read_b128 {v(FR + 8*(ks % 2) + 4*t, 4)}, {v(VRD+t)} offset:{64*ks}" for t in range(2)]
    A(rd(0))
    for ks in range(14):
        if hook and hook[0] == ks: hook[1]()
        if every: every(ks)
        if ks + 1 < 14: A(rd(ks+1), "s_waitcnt lgkmcnt(2)")
        else: A("s_waitcnt lgkmcnt(0)")
        for cb in range(7):
            for t in range(2):
                xf, wf = v(FR + 8*(ks % 2) + 4*t, 4), wr4(cb*14 + ks)
                a, b = (xf, wf) if x_is_A else (wf, xf)
                A(mfma(ACC + 8*cb + 4*t, a, b, "0" if ks == 0 else None))

def role_V(A, abort):
    VL, VG, VN, VL16, T, VR0, VR1, VRD, VRD1, IDX = range(1, 11)
    ACC, FR, PK = 16, 72, 88
    S_J, S_PREV = S_C, S_D
    A("; ---------------- role V")
    lanes(A, VL, VG, VN, VL16)
    divmod_const(A, S_H, S_SEG, S_ROLE, NV)
    A(f"s_mov_b32 {s(S_J)}, {s(S_SEG)}", f"s_mov_b32 {s(S_BUF)}, 0", f"s_mov_b32 {s(S_PREV)}, 0x40000000", f"s_mov_b32 {s(S_TO)}, {W_TIMEOUT}")
    dma_x(A, S_SEG, S_BUF, VL16)
    A(f"s_mov_b32 {s(S_BUF)}, 32768", f"s_add_u32 {s(S_A)}, {s(S_SEG)}, {NV}")
    dma_x(A, S_A, S_BUF, VL16)
    VXS = 11
    A(f"v_lshrrev_b32 {v(T)}, 3, {v(VN)}", f"v_lshlrev_b32 {v(VXS)}, 4, {v(T)}", f"v_and_b32 {v(T)}, 3, {v(VN)}", f"v_lshl_add_u32 {v(VXS)}, {v(T)}, 2, {v(VXS)}",
      f"v_bfe_u32 {v(T)}, {v(VN)}, 2, 1", f"v_lshl_add_u32 {v(VXS)}, {v(T)}, 1, {v(VXS)}", f"v_mul_u32_u24 {v(VXS)}, {RP}, {v(VXS)}",
      f"v_mul_u32_u24 {v(T)}, 224, {v(VG)}", f"v_add_u32 {v(VXS)}, {v(VXS)}, {v(T)}",
      f"s_cmp_ge_u32 {s(S_H)}, 7", f"s_cselect_b32 {s(S_TMP)}, {RP - 7*32}, 0", f"s_lshl_b32 {s(S_TMP2)}, {s(S_H)}, 5", f"s_add_u32 {s(S_TMP)}, {s(S_TMP)}, {s(S_TMP2)}", f"v_add_u32 {v(VXS)}, {s(S_TMP)}, {v(VXS)}",
      f"s_lshl_b32 s63, {s(S_H)}, 11", f"s_add_u32 s63, s63, {XS_OFF:#x}", f"s_cmp_lt_u32 {s(S_H)}, 14", "s_cselect_b32 s63, s63, 0x40000000", f"s_cmp_eq_u32 {s(S_WAVE)}, 3", "s_cselect_b32 s63, s63, 0x40000000")
    A(f"v_lshrrev_b32 {v(T)}, 2, {v(VN)}", f"v_lshlrev_b32 {v(VR0)}, 3, {v(T)}", f"v_and_b32 {v(T)}, 3, {v(VN)}", f"v_add_u32 {v(VR0)}, {v(VR0)}, {v(T)}",
      f"v_mul_u32_u24 {v(VR0)}, {RP}, {v(VR0)}", f"v_lshl_add_u32 {v(VR0)}, {v(VG)}, 4, {v(VR0)}", f"v_add_u32 {v(VR1)}, {4*RP}, {v(VR0)}")
    idx_const(A, IDX, VN, T)
    def signal(so):
        A(f"s_cmp_eq_u32 {s(S_WAVE)}, 0", f"s_cselect_b32 {s(S_B)}, {s(so)}, 0x40000000",
          f"v_mov_b32 {v(T)}, 1", "s_mov_b64 exec, 1", f"buffer_atomic_add {v(T)}, off, {s(WS,4)}, {s(S_B)} sc1", "s_mov_b64 exec, -1", "s_nop 3")
    Lp, Lepi = A.label("Vloop"), A.label("Vepi")
    A(f"v_mov_b32 {v(VRD)}, {v(VR0)}", f"v_mov_b32 {v(VRD+1)}, {v(VR1)}", f"v_mov_b32 {v(12)}, {v(VXS)}", "s_waitcnt vmcnt(0)", f"s_add_u32 {s(S_A)}, {s(S_H)}, 16")
    prep.wait_tiles(A, s(S_A), 1, abort, "V", S_TO, 14, 15, st=(68, 69, 70))
    load_weights(A, WB_OFF, VL16, NV, 100, touch_only=True)
    def wld(ks):
        return [x for cb in range(7) for x in (f"s_add_u32 {s(S_TMP2)}, {s(S_TMP)}, {cb*14336 + 1024*ks}", f"buffer_load_dwordx4 {wr4(cb*14 + ks)}, {v(VL16)}, {s(WS,4)}, {s(S_TMP2)} offen sc1")]
    for ks in range(VLA): A(wld(ks))
    def first(ks):
        if ks + VLA < 14: A(wld(ks + VLA))
        A(f"s_waitcnt vmcnt({7*min(VLA, 13 - ks)})")
    gemm_seg(A, ACC, FR, VRD, True, every=first)
    if TLM: A("s_memrealtime s[92:93]")
    A(f"s_branch {Lepi}")
    A(f"{Lp}:")
    A(f"v_add_u32 {v(VRD)}, {s(S_BUF)}, {v(VR0)}", f"v_add_u32 {v(VRD+1)}, {s(S_BUF)}, {v(VR1)}", f"v_add_u32 {v(12)}, {s(S_BUF)}, {v(VXS)}")
    A(f"s_xor_b32 {s(S_BUF)}, {s(S_BUF)}, {32768}", f"s_add_u32 {s(S_A)}, {s(S_SEG)}, {NV}")
    dma_x(A, S_A, S_BUF, VL16)
    def mid():
        A("s_waitcnt vmcnt(8)", "s_barrier")
        signal(S_PREV)
    gemm_seg(A, ACC, FR, VRD, True, hook=(VMID, mid))
    A(f"{Lepi}:")
    A(f"s_mul_i32 {s(S_TMP)}, {s(S_SEG)}, 458752", f"s_mul_i32 {s(S_TMP2)}, {s(S_WAVE)}, {7*16384}", f"s_add_u32 {s(S_TMP)}, {s(S_TMP)}, {s(S_TMP2)}",
      f"s_lshl_b32 {s(S_TMP2)}, {s(S_H)}, 10", f"s_add_u32 {s(S_TMP)}, {s(S_TMP)}, {s(S_TMP2)}", f"s_add_u32 {s(S_TMP)}, {s(S_TMP)}, {VOX_OFF:#x}",
      f"s_lshl_b32 {s(S_PREV)}, {s(S_SEG)}, 14", f"s_add_u32 {s(S_PREV)}, {s(S_PREV)}, {PF_OFF + FROFF:#x}")
    A(f"ds_read_b128 {v(FR,4)}, {v(12)}", f"ds_read_b128 {v(FR+4,4)}, {v(12)} offset:16", f"s_mul_i32 {s(S_TMP2)}, {s(S_SEG)}, 28672", f"s_add_u32 {s(S_TMP2)}, {s(S_TMP2)}, s63")
    A("s_waitcnt vmcnt(1) lgkmcnt(0)", "s_barrier")
    b = FR
    A(f"v_swap_b32 {v(b+1)}, {v(b+2)}", f"v_swap_b32 {v(b+2)}, {v(b+4)}", f"v_swap_b32 {v(b+3)}, {v(b+6)}", f"v_swap_b32 {v(b+6)}, {v(b+5)}",
      f"buffer_store_dwordx4 {v(b,4)}, {v(VL16)}, {s(WS,4)}, {s(S_TMP2)} offen sc1", f"buffer_store_dwordx4 {v(b+4,4)}, {v(VL16)}, {s(WS,4)}, {s(S_TMP2)} offen offset:1024 sc1")
    for cb in range(7):
        d = ACC + 8*cb
        for r in range(4): A(f"v_cvt_pk_bf16_f32 {v(PK+4*cb+r)}, {v(d+2*r)}, {v(d+2*r+1)}")
        A(f"buffer_store_dwordx4 {v(PK+4*cb,4)}, {v(VL16)}, {s(WS,4)}, {s(S_TMP)} offen sc1", f"s_add_u32 {s(S_TMP)}, {s(S_TMP)}, 16384")
    Lnf = A.label("Vnf")
    A(f"s_cmp_ge_u32 {s(S_SEG)}, {NV}", f"s_cbranch_scc1 {Lnf}", "s_waitcnt vmcnt(0)")
    prep.wait_counters(A, 0, 32, abort, "V", S_TO, 14, 15)
    signal(S_PREV)
    A(f"s_mov_b32 {s(S_PREV)}, 0x40000000", f"{Lnf}:")
    A(f"s_add_u32 {s(S_SEG)}, {s(S_SEG)}, {NV}", f"s_cmp_lt_u32 {s(S_SEG)}, {VLEAD}", f"s_cbranch_scc1 {Lp}")
    A("s_waitcnt vmcnt(0)", "s_barrier")
    signal(S_PREV)
    A(f"s_mov_b32 {s(S_PREV)}, 0x40000000")
    if TLM: A("s_memrealtime s[94:95]")
    MF = 72
    Lq, Lm, Lmo = A.label("Vq"), A.label("Vm"), A.label("Vmo")
    A(f"{Lq}:")
    for r in range(28): A(f"v_mov_b32 {v(ACC+r)}, 0")
    A(f"s_lshl_b32 {s(S_A)}, {s(S_J)}, 13", f"s_add_u32 {s(S_A)}, {s(S_A)}, {MEMS_OFF:#x}", f"s_add_u32 {s(S_B)}, {s(S_A)}, 4096")
    A(f"v_mov_b32 {v(12)}, 7164")
    poll_eq(A, T, 12, S_A, -1, abort, "vm", ne=True, sleep=1)
    A(f"{Lm}:")
    for kb in range(7): A(f"buffer_load_dwordx4 {v(MF+4*kb,4)}, {v(VL16)}, {s(WS,4)}, {s(S_A if kb < 4 else S_B)} offen offset:{1024*(kb%4)} sc1")
    A("s_waitcnt vmcnt(0)")
    for kb in range(7): A(chk4(T, MF+4*kb, kb == 0))
    A(f"v_cmp_eq_u32 vcc, -1, {v(T)}", f"s_cbranch_vccz {Lmo}")
    timeout_step(A, Lm, abort)
    A(f"{Lmo}:")
    for kb in range(7):
        for cb in range(7):
            f = cb*14 + 2*kb
            A(smf(ACC + 4*cb, MF + 4*kb, a_(4*f, 8) if f < 64 else v(120 + 4*(f-64), 8), IDX))
    A(f"s_mul_i32 {s(S_TMP)}, {s(S_J)}, 114688", f"s_mul_i32 {s(S_TMP2)}, {s(S_WAVE)}, {7*4096}", f"s_add_u32 {s(S_TMP)}, {s(S_TMP)}, {s(S_TMP2)}",
      f"s_lshl_b32 {s(S_TMP2)}, {s(S_H)}, 8", f"s_add_u32 {s(S_TMP)}, {s(S_TMP)}, {s(S_TMP2)}", f"s_add_u32 {s(S_TMP)}, {s(S_TMP)}, {VPE_OFF:#x}", f"v_lshlrev_b32 {v(13)}, 2, {v(VL)}", "s_nop 1")
    for cb in range(7):
        r = ACC + 4*cb
        A(f"v_add_f32 {v(r)}, {v(r)}, {v(r+1)}", f"v_add_f32 {v(r+2)}, {v(r+2)}, {v(r+3)}", f"v_cvt_pk_bf16_f32 {v(PK+20+cb)}, {v(r)}, {v(r+2)}", f"v_min_u32 {v(PK+20+cb)}, -2, {v(PK+20+cb)}",
          f"buffer_store_dword {v(PK+20+cb)}, {v(13)}, {s(WS,4)}, {s(S_TMP)} offen sc1", f"s_add_u32 {s(S_TMP)}, {s(S_TMP)}, 4096")
    A(f"s_lshl_b32 {s(S_TMP)}, {s(S_J)}, 9", f"s_lshl_b32 {s(S_TMP2)}, {s(S_H)}, 4", f"s_add_u32 {s(S_TMP)}, {s(S_TMP)}, {s(S_TMP2)}", f"s_lshl_b32 {s(S_TMP2)}, {s(S_WAVE)}, 2",
      f"s_add_u32 {s(S_TMP)}, {s(S_TMP)}, {s(S_TMP2)}", f"s_add_u32 {s(S_TMP)}, {s(S_TMP)}, {FV_OFF:#x}", f"v_mov_b32 {v(T)}, 1",
      "s_waitcnt vmcnt(0)", "s_mov_b64 exec, 1", f"buffer_store_dword {v(T)}, off, {s(WS,4)}, {s(S_TMP)} sc1", "s_mov_b64 exec, -1")
    A(f"s_add_u32 {s(S_J)}, {s(S_J)}, {NV}", f"s_cmp_lt_u32 {s(S_SEG)}, 64", f"s_cbranch_scc1 {Lp}", f"s_cmp_lt_u32 {s(S_J)}, 64", f"s_cbranch_scc1 {Lq}", "s_endpgm")

XMIMG = 65536
XRED = 73728

def role_X(A, abort):
    VL, VG, VN, VL16, T, VR0, VK0, VRD, VRD1, VKD, VKM, VRW, VRR, VMW, T2 = range(1, 16)
    ACC, FR, SX, KF = 16, 72, 88, 104
    A("; ---------------- role X")
    lanes(A, VL, VG, VN, VL16)
    divmod_const(A, S_H, S_SEG, S_ROLE, NX)
    A(f"s_mov_b32 {s(S_BUF)}, 0", f"s_mov_b32 {s(S_TO)}, {W_TIMEOUT}")
    dma_x(A, S_SEG, S_BUF, VL16)
    yield_start(A, abort, "x", 16, 17)
    load_weights(A, WA_OFF, VL16, NX, 20)
    A(f"v_mul_u32_u24 {v(VR0)}, {RP}, {v(VN)}", f"v_lshl_add_u32 {v(VR0)}, {v(VG)}, 4, {v(VR0)}")
    A(f"v_lshrrev_b32 {v(T)}, 2, {v(VN)}", f"v_lshlrev_b32 {v(VK0)}, 3, {v(T)}", f"v_and_b32 {v(T)}, 3, {v(VN)}", f"v_add_u32 {v(VK0)}, {v(VK0)}, {v(T)}",
      f"v_mul_u32_u24 {v(VK0)}, {RP}, {v(VK0)}", f"v_lshl_add_u32 {v(VK0)}, {v(VG)}, 3, {v(VK0)}", f"s_mul_i32 {s(S_TMP)}, {s(S_WAVE)}, 224", f"v_add_u32 {v(VK0)}, {s(S_TMP)}, {v(VK0)}")
    A(f"v_lshrrev_b32 {v(T)}, 2, {v(VN)}", f"v_lshlrev_b32 {v(VKM)}, 6, {v(T)}", f"v_and_b32 {v(T)}, 1, {v(VN)}", f"v_lshl_add_u32 {v(VKM)}, {v(T)}, 5, {v(VKM)}",
      f"v_lshl_add_u32 {v(VKM)}, {v(VG)}, 2, {v(VKM)}", f"s_mul_i32 {s(S_TMP)}, {s(S_WAVE)}, 1792", f"s_add_u32 {s(S_TMP)}, {s(S_TMP)}, {XMIMG}", f"v_add_u32 {v(VKM)}, {s(S_TMP)}, {v(VKM)}")
    A(f"v_add_u32 {v(VMW)}, {s(S_TMP)}, {v(VL16)}")
    A(f"s_lshl_b32 {s(S_TMP)}, {s(S_WAVE)}, 12", f"s_add_u32 {s(S_TMP)}, {s(S_TMP)}, {XRED}", f"v_add_u32 {v(VRW)}, {s(S_TMP)}, {v(VL16)}")
    A(f"s_lshl_b32 {s(S_TMP)}, {s(S_WAVE)}, 10", f"s_add_u32 {s(S_TMP)}, {s(S_TMP)}, {XRED}", f"v_add_u32 {v(VRR)}, {s(S_TMP)}, {v(VL16)}")
    A(f"s_mov_b32 {s(S_D)}, 0x40000000")
    Lp = A.label("Xloop")
    A("s_waitcnt vmcnt(0)", "s_barrier")
    if TLM: A("s_memrealtime s[92:93]")
    A(f"{Lp}:")
    A(f"v_add_u32 {v(VRD)}, {s(S_BUF)}, {v(VR0)}", f"v_add_u32 {v(VRD1)}, {16*RP}, {v(VRD)}", f"v_add_u32 {v(VKD)}, {s(S_BUF)}, {v(VK0)}")
    A(f"s_xor_b32 {s(S_BUF)}, {s(S_BUF)}, {32768}", f"s_add_u32 {s(S_A)}, {s(S_SEG)}, {NX}")
    dma_x(A, S_A, S_BUF, VL16)
    def xflag(n):
        A(f"s_waitcnt vmcnt({n})", f"v_mov_b32 {v(T)}, 1", "s_mov_b64 exec, 1", f"buffer_store_dword {v(T)}, off, {s(WS,4)}, {s(S_D)} sc1", "s_mov_b64 exec, -1", "s_nop 3")
    gemm_seg(A, ACC, FR, VRD, False, hook=(VMID, lambda: xflag(8)))
    kreg = lambda cb: KF + 4*cb if cb < 4 else FR + 4*(cb-4)
    for cb in range(7):
        A(f"ds_read_b64 {v(kreg(cb),2)}, {v(VKD)} offset:{32*cb}", f"ds_read_b64 {v(kreg(cb)+2,2)}, {v(VKD)} offset:{32*cb + 4*RP}")
    for cb in range(7):
        for t in range(2):
            d = ACC + 8*cb + 4*t
            A(f"v_cvt_pk_bf16_f32 {v(d)}, {v(d)}, {v(d+1)}", f"v_cvt_pk_bf16_f32 {v(d+1)}, {v(d+2)}, {v(d+3)}")
    for cb in range(7):
        A(f"s_waitcnt lgkmcnt({2*(6-cb)})")
        for kt in range(2):
            for t in range(2):
                A(mfma(SX + 8*kt + 4*t, v(kreg(cb)+2*kt, 2), v(ACC + 8*cb + 4*t, 2), "0" if cb == 0 else None, k16=True))
    A("s_nop 7")
    for kt in range(2):
        for t in range(2): A(f"ds_write_b128 {v(VRW)}, {v(SX + 8*kt + 4*t, 4)} offset:{2048*kt + 1024*t}")
    A("s_waitcnt lgkmcnt(0)", "s_barrier")
    L1 = A.label("Xr1")
    A(f"s_cmp_ge_u32 {s(S_WAVE)}, 2", f"s_cbranch_scc1 {L1}")
    for kt in range(2):
        for w in range(4): A(f"ds_read_b128 {v(FR + 4*w, 4)}, {v(VRR)} offset:{4096*w + 2048*kt}")
        A("s_waitcnt lgkmcnt(0)")
        for r in range(4):
            A(f"v_add_f32 {v(FR+r)}, {v(FR+r)}, {v(FR+4+r)}", f"v_add_f32 {v(FR+8+r)}, {v(FR+8+r)}, {v(FR+12+r)}", f"v_add_f32 {v(SX+4*kt+r)}, {v(FR+r)}, {v(FR+8+r)}")
    A(f"s_lshl_b32 {s(S_TMP)}, {s(S_WAVE)}, 4", f"v_add_u32 {v(T)}, {s(S_TMP)}, {v(VN)}", f"v_lshlrev_b32 {v(T2)}, 3, {v(VG)}", f"v_sub_u32 {v(T)}, {v(T)}, {v(T2)}", f"v_mov_b32 {v(T2)}, 0xf149f2ca")
    for j in range(8):
        A(f"v_cmp_le_i32 vcc, {j}, {v(T)}", "s_nop 1", f"v_cndmask_b32 {v(SX+j)}, {v(T2)}, {v(SX+j)}, vcc")
    A(f"{L1}:")
    Lm, Lmo = A.label("Xm"), A.label("Xmo")
    A(f"s_lshl_b32 {s(S_B)}, {s(S_SEG)}, 13", f"s_mul_i32 {s(S_TMP)}, {s(S_WAVE)}, 1792", f"s_add_u32 {s(S_B)}, {s(S_B)}, {s(S_TMP)}", f"s_add_u32 {s(S_B)}, {s(S_B)}, {MEMS_OFF:#x}")
    A(f"s_lshl_b32 {s(S_C)}, {s(S_SEG)}, 13", f"s_add_u32 {s(S_C)}, {s(S_C)}, {MEMS_OFF + 7164:#x}", f"v_mov_b32 {v(T2)}, 0")
    poll_eq(A, T, T2, S_C, -1, abort, "xg", ne=True, sleep=1)
    A(f"{Lm}:", f"buffer_load_dwordx4 {v(KF,4)}, {v(VL16)}, {s(WS,4)}, {s(S_B)} offen sc1", f"buffer_load_dwordx4 {v(KF+4,4)}, {v(VL16)}, {s(WS,4)}, {s(S_B)} offen offset:768 sc1",
      "s_waitcnt vmcnt(0)", f"v_max3_u32 {v(T)}, {v(KF)}, {v(KF+1)}, {v(KF+2)}", f"v_max3_u32 {v(T)}, {v(T)}, {v(KF+3)}, {v(KF+4)}", f"v_max3_u32 {v(T)}, {v(T)}, {v(KF+5)}, {v(KF+6)}",
      f"v_max_u32 {v(T)}, {v(T)}, {v(KF+7)}", f"v_cmp_eq_u32 vcc, -1, {v(T)}", f"s_cbranch_vccz {Lmo}", f"s_sleep {WSLEEP}")
    timeout_step(A, Lm, abort)
    A(f"{Lmo}:")
    if TLM: A("s_memrealtime s[94:95]")
    A(f"ds_write_b128 {v(VMW)}, {v(KF,4)}", f"ds_write_b128 {v(VMW)}, {v(KF+4,4)} offset:768")
    for cb in range(7):
        A(f"v_add_u32 {v(T)}, {256*cb}, {v(VKM)}", f"ds_read2_b32 {v(FR+2*cb,2)}, {v(T)} offset0:0 offset1:4")
    A("s_waitcnt lgkmcnt(0)")
    for cb in range(7):
        for t in range(2):
            A(mfma(SX + 8 + 4*t, v(FR+2*cb, 2), v(ACC + 8*cb + 4*t, 2), "0" if cb == 0 else None, k16=True))
    A("s_barrier")
    A("s_nop 6")
    for t in range(2): A(f"ds_write_b64 {v(VRW)}, {v(SX + 8 + 4*t, 2)} offset:{1024*t}")
    A("s_waitcnt lgkmcnt(0)", "s_barrier")
    L2 = A.label("Xr2")
    A(f"s_cmp_ge_u32 {s(S_WAVE)}, 2", f"s_cbranch_scc1 {L2}")
    for w in range(4): A(f"ds_read_b64 {v(FR + 2*w, 2)}, {v(VRR)} offset:{4096*w}")
    A("s_waitcnt lgkmcnt(0)")
    for r in range(2):
        A(f"v_add_f32 {v(FR+r)}, {v(FR+r)}, {v(FR+2+r)}", f"v_add_f32 {v(FR+4+r)}, {v(FR+4+r)}, {v(FR+6+r)}", f"v_add_f32 {v(SX+8+r)}, {v(FR+r)}, {v(FR+4+r)}")
    A(f"v_max3_f32 {v(T)}, {v(SX)}, {v(SX+1)}, {v(SX+2)}", f"v_max3_f32 {v(T)}, {v(T)}, {v(SX+3)}, {v(SX+4)}", f"v_max3_f32 {v(T)}, {v(T)}, {v(SX+5)}, {v(SX+6)}",
      f"v_max3_f32 {v(T)}, {v(T)}, {v(SX+7)}, {v(SX+8)}", f"v_max_f32 {v(T)}, {v(T)}, {v(SX+9)}")
    def xred(op):
        for sw in ("v_permlane16_swap_b32", "v_permlane32_swap_b32"):
            A(f"v_mov_b32 {v(T2)}, {v(T)}", "s_nop 1", f"{sw} {v(T)}, {v(T2)}", f"{op} {v(T)}, {v(T)}, {v(T2)}")
    xred("v_max_f32")
    for j in range(10): A(f"v_sub_f32 {v(SX+j)}, {v(SX+j)}, {v(T)}")
    for j in range(10): A(f"v_exp_f32 {v(SX+j)}, {v(SX+j)}")
    A(f"v_add_f32 {v(T)}, {v(SX)}, {v(SX+1)}")
    for j in range(2, 10): A(f"v_add_f32 {v(T)}, {v(T)}, {v(SX+j)}")
    xred("v_add_f32")
    A(f"v_rcp_f32 {v(T)}, {v(T)}", "s_nop 0")
    for j in range(10): A(f"v_mul_f32 {v(SX+j)}, {v(SX+j)}, {v(T)}")
    for r in range(5): A(f"v_cvt_pk_bf16_f32 {v(FR+r)}, {v(SX+2*r)}, {v(SX+2*r+1)}", f"v_min_u32 {v(FR+r)}, -2, {v(FR+r)}")
    A(f"s_mul_i32 {s(S_TMP)}, {s(S_SEG)}, 40960", f"s_mul_i32 {s(S_TMP2)}, {s(S_WAVE)}, 20480", f"s_add_u32 {s(S_TMP)}, {s(S_TMP)}, {s(S_TMP2)}", f"s_add_u32 {s(S_TMP)}, {s(S_TMP)}, {PX_OFF:#x}",
      f"s_lshl_b32 {s(S_TMP2)}, {s(S_H)}, 10", f"s_add_u32 {s(S_TMP2)}, {s(S_TMP2)}, {s(S_TMP)}",
      f"buffer_store_dwordx4 {v(FR,4)}, {v(VL16)}, {s(WS,4)}, {s(S_TMP2)} offen sc1",
      f"s_lshl_b32 {s(S_TMP2)}, {s(S_H)}, 8", f"s_add_u32 {s(S_TMP)}, {s(S_TMP)}, {s(S_TMP2)}", f"s_add_u32 {s(S_TMP)}, {s(S_TMP)}, 16384", f"v_lshlrev_b32 {v(T2)}, 2, {v(VL)}",
      f"buffer_store_dword {v(FR+4)}, {v(T2)}, {s(WS,4)}, {s(S_TMP)} offen sc1")
    A(f"s_lshl_b32 {s(S_TMP)}, {s(S_SEG)}, 9", f"s_lshl_b32 {s(S_TMP2)}, {s(S_WAVE)}, 6", f"s_add_u32 {s(S_TMP)}, {s(S_TMP)}, {s(S_TMP2)}", f"s_lshl_b32 {s(S_TMP2)}, {s(S_H)}, 2",
      f"s_add_u32 {s(S_TMP)}, {s(S_TMP)}, {s(S_TMP2)}", f"s_add_u32 {s(S_D)}, {s(S_TMP)}, {FV_OFF + 256:#x}")
    A(f"{L2}:")
    A("s_barrier")
    A(f"s_add_u32 {s(S_SEG)}, {s(S_SEG)}, {NX}", f"s_cmp_lt_u32 {s(S_SEG)}, 64", f"s_cbranch_scc1 {Lp}")
    xflag(0)
    A("s_endpgm")

def role_PV(A, abort):
    VL, VG, VN, VL16, T, VZ, VF1, VF2, VRW, VRR, VO_ = range(1, 12)
    VOX, VP, PF_, ACC, RD = 16, 80, 96, 116, 132
    S_T, S_J = S_C, S_D
    lanes(A, VL, VG, VN, VL16)
    A(f"s_mul_i32 {s(S_SEG)}, {s(S_ROLE)}, 4682", f"s_lshr_b32 {s(S_SEG)}, {s(S_SEG)}, 16", f"s_mul_i32 {s(S_TMP)}, {s(S_SEG)}, 14", f"s_sub_u32 {s(S_TMP)}, {s(S_ROLE)}, {s(S_TMP)}",
      f"s_and_b32 {s(S_T)}, {s(S_TMP)}, 1", f"s_lshr_b32 {s(S_J)}, {s(S_TMP)}, 1", f"s_mov_b32 {s(S_TO)}, {W_TIMEOUT}")
    A(f"v_mov_b32 {v(VZ)}, 0")
    A(f"v_and_b32 {v(T)}, 3, {v(VL)}", f"v_lshlrev_b32 {v(VF1)}, 2, {v(T)}", f"s_lshl_b32 {s(S_TMP)}, {s(S_T)}, 6", f"s_lshl_b32 {s(S_TMP2)}, {s(S_WAVE)}, 4", f"s_add_u32 {s(S_TMP)}, {s(S_TMP)}, {s(S_TMP2)}",
      f"s_add_u32 {s(S_TMP)}, {s(S_TMP)}, 256", f"v_add_u32 {v(VF1)}, {s(S_TMP)}, {v(VF1)}")
    A(f"v_lshlrev_b32 {v(VF2)}, 2, {v(VN)}", f"s_lshl_b32 {s(S_TMP)}, {s(S_WAVE)}, 6", f"v_add_u32 {v(VF2)}, {s(S_TMP)}, {v(VF2)}",
      f"v_cmp_gt_u32 vcc, 16, {v(VL)}", "s_nop 1", f"v_cndmask_b32 {v(VF1)}, {v(VF1)}, {v(VF2)}, vcc", f"v_lshlrev_b32 {v(VF2)}, 2, {v(VL)}")
    A(f"s_lshl_b32 {s(S_TMP)}, {s(S_WAVE)}, 12", f"v_add_u32 {v(VRW)}, {s(S_TMP)}, {v(VL16)}", f"s_lshl_b32 {s(S_TMP)}, {s(S_WAVE)}, 10", f"v_add_u32 {v(VRR)}, {s(S_TMP)}, {v(VL16)}")
    A(f"v_mul_u32_u24 {v(VO_)}, 1792, {v(VN)}", f"v_lshl_add_u32 {v(VO_)}, {v(VG)}, 3, {v(VO_)}", f"s_mul_i32 {s(S_TMP)}, {s(S_T)}, {16*1792}", f"s_lshl_b32 {s(S_TMP2)}, {s(S_J)}, 7",
      f"s_add_u32 {s(S_TMP)}, {s(S_TMP)}, {s(S_TMP2)}", f"s_lshl_b32 {s(S_TMP2)}, {s(S_WAVE)}, 5", f"s_add_u32 {s(S_TMP)}, {s(S_TMP)}, {s(S_TMP2)}", f"s_add_u32 {s(S_TMP)}, {s(S_TMP)}, 896",
      f"v_add_u32 {v(VO_)}, {s(S_TMP)}, {v(VO_)}")
    yield_start(A, abort, "p", 16, 17)
    Lp = A.label("PVloop")
    A(f"{Lp}:")
    Llast, Lld, Lok, Lpre, Lvx = A.label("PVlast"), A.label("PVld"), A.label("PVok"), A.label("PVpre"), A.label("PVvx")
    A(f"s_lshl_b32 {s(S_B)}, {s(S_SEG)}, 9", f"s_add_u32 {s(S_B)}, {s(S_B)}, {FV_OFF:#x}")
    A(f"s_cmp_ge_u32 {s(S_SEG)}, {PVPRE}", f"s_cbranch_scc1 {Lpre}")
    poll_eq(A, T, VF1, S_B, 1, abort, "f0", sleep=PVS)
    A(f"s_branch {Lvx}", f"{Lpre}:")
    A(f"s_lshl_b32 {s(S_A)}, {s(S_SEG)}, 14", f"s_add_u32 {s(S_A)}, {s(S_A)}, {PF_OFF + FROFF:#x}")
    poll_eq(A, T, VZ, S_A, 15, abort, "cv")
    A(f"{Lvx}:")
    A(f"s_mul_i32 {s(S_TMP)}, {s(S_SEG)}, 458752", f"s_lshl_b32 {s(S_TMP2)}, {s(S_J)}, 16", f"s_add_u32 {s(S_TMP)}, {s(S_TMP)}, {s(S_TMP2)}", f"s_lshl_b32 {s(S_TMP2)}, {s(S_WAVE)}, 12",
      f"s_add_u32 {s(S_TMP)}, {s(S_TMP)}, {s(S_TMP2)}", f"s_add_u32 {s(S_TMP)}, {s(S_TMP)}, {VOX_OFF:#x}")
    for cc in range(4):
        for hh in range(4): A(f"buffer_load_dwordx4 {v(VOX + 16*cc + 4*hh, 4)}, {v(VL16)}, {s(WS,4)}, {s(S_TMP)} offen offset:{1024*hh} sc1")
        A(f"s_add_u32 {s(S_TMP)}, {s(S_TMP)}, 16384")
    A(f"s_cmp_lt_u32 {s(S_SEG)}, {PVPRE}", f"s_cbranch_scc1 {Lld}")
    A(f"s_cmp_eq_u32 {s(S_SEG)}, 63", f"s_cbranch_scc1 {Llast}")
    poll_eq(A, T, VF1, S_B, 1, abort, "fx", sleep=2)
    A(f"s_branch {Lld}", f"{Llast}:", f"s_mov_b32 {s(S_A)}, {MEMS_OFF + 63*8192 + 7164:#x}")
    poll_eq(A, T, VZ, S_A, -1, abort, "pg", ne=True, sleep=1)
    if PVGAP: A(f"s_sleep {PVGAP}")
    A(f"{Lld}:")
    if TLM: A("s_memrealtime s[92:93]")
    A(f"s_mul_i32 {s(S_TMP)}, {s(S_SEG)}, 40960", f"s_mul_i32 {s(S_TMP2)}, {s(S_T)}, 20480", f"s_add_u32 {s(S_TMP)}, {s(S_TMP)}, {s(S_TMP2)}", f"s_add_u32 {s(S_TMP)}, {s(S_TMP)}, {PX_OFF:#x}",
      f"s_lshl_b32 {s(S_TMP2)}, {s(S_WAVE)}, 12", f"s_add_u32 {s(S_TMP2)}, {s(S_TMP2)}, {s(S_TMP)}")
    for hh in range(4): A(f"buffer_load_dwordx4 {v(PF_ + 4*hh, 4)}, {v(VL16)}, {s(WS,4)}, {s(S_TMP2)} offen offset:{1024*hh} sc1")
    A(f"s_lshl_b32 {s(S_TMP2)}, {s(S_WAVE)}, 10", f"s_add_u32 {s(S_TMP)}, {s(S_TMP)}, {s(S_TMP2)}", f"s_add_u32 {s(S_TMP)}, {s(S_TMP)}, 16384")
    for hh in range(4): A(f"buffer_load_dword {v(PF_ + 16 + hh)}, {v(VF2)}, {s(WS,4)}, {s(S_TMP)} offen offset:{256*hh} sc1")
    A(f"s_mul_i32 {s(S_TMP)}, {s(S_SEG)}, 114688", f"s_lshl_b32 {s(S_TMP2)}, {s(S_J)}, 14", f"s_add_u32 {s(S_TMP)}, {s(S_TMP)}, {s(S_TMP2)}", f"s_lshl_b32 {s(S_TMP2)}, {s(S_WAVE)}, 10",
      f"s_add_u32 {s(S_TMP)}, {s(S_TMP)}, {s(S_TMP2)}", f"s_add_u32 {s(S_TMP)}, {s(S_TMP)}, {VPE_OFF:#x}")
    for cc in range(4):
        for hh in range(4): A(f"buffer_load_dword {v(VP + 4*cc + hh)}, {v(VF2)}, {s(WS,4)}, {s(S_TMP)} offen offset:{256*hh} sc1")
        A(f"s_add_u32 {s(S_TMP)}, {s(S_TMP)}, 4096")
    for hh in range(4):
        A(f"s_waitcnt vmcnt({23 - hh})")
        for cc in range(4): A(mfma(ACC + 4*cc, v(VOX + 16*cc + 4*hh, 4), v(PF_ + 4*hh, 4), "0" if hh == 0 else None))
    A("s_waitcnt vmcnt(0)")
    for k in range(9): A(chk4(T, VP + 4*k, k == 0))
    A(f"v_cmp_eq_u32 vcc, -1, {v(T)}", f"s_cbranch_vccz {Lok}")
    timeout_step(A, Lld, abort)
    A(f"{Lok}:")
    for cc in range(4): A(mfma(ACC + 4*cc, v(VP + 4*cc, 4), v(PF_ + 16, 4)))
    A("s_nop 7")
    for cc in range(4): A(f"ds_write_b128 {v(VRW)}, {v(ACC + 4*cc, 4)} offset:{1024*cc}")
    A("s_waitcnt lgkmcnt(0)", "s_barrier")
    for w in range(4): A(f"ds_read_b128 {v(RD + 4*w, 4)}, {v(VRR)} offset:{4096*w}")
    A("s_waitcnt lgkmcnt(0)", "s_barrier")
    for r in range(4):
        A(f"v_add_f32 {v(RD+r)}, {v(RD+r)}, {v(RD+4+r)}", f"v_add_f32 {v(RD+8+r)}, {v(RD+8+r)}, {v(RD+12+r)}", f"v_add_f32 {v(RD+r)}, {v(RD+r)}, {v(RD+8+r)}")
    A(f"v_cvt_pk_bf16_f32 {v(RD+4)}, {v(RD)}, {v(RD+1)}", f"v_cvt_pk_bf16_f32 {v(RD+5)}, {v(RD+2)}, {v(RD+3)}",
      f"s_mul_i32 {s(S_TMP)}, {s(S_SEG)}, {32*1792}", f"buffer_store_dwordx2 {v(RD+4,2)}, {v(VO_)}, {s(OUT,4)}, {s(S_TMP)} offen{OFL[OFI]}")
    A(f"s_add_u32 {s(S_SEG)}, {s(S_SEG)}, {NPG}", f"s_cmp_lt_u32 {s(S_SEG)}, 64", f"s_cbranch_scc1 {Lp}", "s_endpgm")

LOIMG = 32768

def role_L(A, abort):
    VL, VG, VN, VL16, T, T2, VR0, VL4, VMK, VON, VO_, VZ, VOA = range(1, 14)
    TB = [16, 72, 128, 184]
    W_ = 240
    PK = 112
    S_W, S_IT, S_KV, S_L2E, S_EPS = S_A, S_B, S_C, S_D, S_H
    A("; ---------------- role L")
    yield_start(A, abort, "l", 14, 15)
    lanes(A, VL, VG, VN, VL16)
    A(f"s_mov_b32 {s(S_BUF)}, 0", f"s_mov_b32 {s(S_TO)}, {W_TIMEOUT}", f"s_mov_b32 {s(S_L2E)}, 0x3fb8aa3b", f"s_mov_b32 {s(S_EPS)}, 0x358637bd")
    dma_x(A, S_ROLE, S_BUF, VL16, XA)
    A(f"v_lshlrev_b32 {v(VL4)}, 2, {v(VL)}", f"v_mov_b32 {v(VZ)}, 0")
    A(f"v_lshrrev_b32 {v(T)}, 2, {v(VN)}", f"v_lshlrev_b32 {v(T2)}, 3, {v(T)}", f"v_and_b32 {v(T)}, 3, {v(VN)}", f"v_add_u32 {v(T2)}, {v(T2)}, {v(T)}",
      f"v_mul_u32_u24 {v(VR0)}, {RP}, {v(T2)}", f"v_lshl_add_u32 {v(VR0)}, {v(VG)}, 4, {v(VR0)}",
      f"v_mul_u32_u24 {v(VO_)}, 1792, {v(T2)}", f"v_lshl_add_u32 {v(VO_)}, {v(VG)}, 3, {v(VO_)}",
      f"s_mul_i32 {s(S_TMP)}, {s(S_ROLE)}, {32*1792}", f"s_mul_i32 {s(S_TMP2)}, {s(S_WAVE)}, 224", f"s_add_u32 {s(S_TMP)}, {s(S_TMP)}, {s(S_TMP2)}", f"v_add_u32 {v(VO_)}, {s(S_TMP)}, {v(VO_)}")
    A(f"v_cmp_gt_u32 vcc, 12, {v(VN)}", "s_nop 1", f"v_cndmask_b32 {v(VMK)}, 0, -1, vcc", f"v_mov_b32 {v(T)}, 0x3f803f80", f"v_cmp_eq_u32 vcc, 12, {v(VN)}", "s_nop 1", f"v_cndmask_b32 {v(VON)}, 0, {v(T)}, vcc")
    A(f"s_lshl_b32 {s(S_TMP)}, {s(S_WAVE)}, 13", f"s_add_u32 {s(S_TMP)}, {s(S_TMP)}, {LOIMG}", f"v_add_u32 {v(VOA)}, {s(S_TMP)}, {v(VL16)}")
    def ldtile(b, off):
        o = [f"s_add_u32 {s(S_TMP)}, {s(S_W)}, {off}"]
        for ks in range(14):
            o.append(f"buffer_load_dwordx4 {v(TB[b]+4*ks,4)}, {v(VL16)}, {s(WS,4)}, {s(S_TMP)} offen offset:{1024*(ks%4)} sc1")
            if ks % 4 == 3: o.append(f"s_add_u32 {s(S_TMP)}, {s(S_TMP)}, 4096")
        return o
    WQ, WO = 64, 68
    srd(A, WQ, 8, 448*1344*2); srd(A, WO, 16, 448*448*2)
    GW, FS, S1, S2, S3 = 72, 73, 74, 75, 76
    A(f"s_lshl_b32 {s(GW)}, {s(S_ROLE)}, 2", f"s_add_u32 {s(GW)}, {s(GW)}, {s(S_WAVE)}", "s_waitcnt lgkmcnt(0)")
    def wq_loads(j, base):
        A(f"s_add_u32 {s(FS)}, {s(GW)}, {256*j}",
          f"s_mul_i32 {s(S1)}, {s(FS)}, 18725", f"s_lshr_b32 {s(S1)}, {s(S1)}, 18", f"s_mul_i32 {s(S2)}, {s(S1)}, 14", f"s_sub_u32 {s(S2)}, {s(FS)}, {s(S2)}", f"s_mul_i32 {s(S2)}, {s(S2)}, {32*2688}",
          f"s_lshr_b32 {s(S3)}, {s(S1)}, 1", f"s_mul_i32 {s(S3)}, {s(S3)}, 56", f"s_add_u32 {s(S2)}, {s(S2)}, {s(S3)}", f"s_and_b32 {s(S1)}, {s(S1)}, 1", f"s_lshl_b32 {s(S1)}, {s(S1)}, 2")
        A(f"v_lshrrev_b32 {v(T)}, 2, {v(VN)}", f"v_lshlrev_b32 {v(T2)}, 3, {v(T)}", f"v_and_b32 {v(T)}, 3, {v(VN)}", f"v_add3_u32 {v(T2)}, {v(T2)}, {v(T)}, {s(S1)}",
          f"v_cmp_lt_u32 vcc, 27, {v(T2)}", f"v_lshlrev_b32 {v(T2)}, 1, {v(T2)}", f"v_mul_u32_u24 {v(T)}, {8*2688}, {v(VG)}", f"v_add_u32 {v(T2)}, {v(T2)}, {v(T)}",
          f"v_mov_b32 {v(T)}, 0x40000000", f"v_cndmask_b32 {v(T2)}, {v(T2)}, {v(T)}, vcc")
        for jj in range(8):
            A(f"buffer_load_ushort {v(base + 4*(jj % 2) + jj//2)}, {v(T2)}, {s(WQ,4)}, {s(S2)} offen", f"s_add_u32 {s(S2)}, {s(S2)}, 2688")
    def wo_loads(j, base):
        A(f"s_add_u32 {s(FS)}, {s(GW)}, {256*j}",
          f"s_lshr_b32 {s(S1)}, {s(FS)}, 4", f"s_lshl_b32 {s(S1)}, {s(S1)}, 5", f"s_and_b32 {s(S2)}, {s(FS)}, 15", f"s_mul_i32 {s(S2)}, {s(S2)}, {28*896}", f"s_add_u32 {s(S2)}, {s(S2)}, {s(S1)}")
        A(f"v_mul_u32_u24 {v(T2)}, {8*896}, {v(VG)}", f"v_lshl_add_u32 {v(T2)}, {v(VN)}, 1, {v(T2)}",
          f"v_cmp_eq_u32 vcc, 3, {v(VG)}", f"v_mov_b32 {v(T)}, 0x40000000", "s_nop 0", f"v_cndmask_b32 {v(T)}, {v(T2)}, {v(T)}, vcc")
        for jj in range(8):
            A(f"buffer_load_ushort {v(base + 4*(jj % 2) + jj//2)}, {v(T2 if jj < 4 else T)}, {s(WO,4)}, {s(S2)} offen", f"s_add_u32 {s(S2)}, {s(S2)}, 896")
    def fin(base, j, off, lim):
        for r in range(4): A(f"v_lshl_or_b32 {v(base+r)}, {v(base+4+r)}, 16, {v(base+r)}")
        A(f"s_add_u32 {s(FS)}, {s(GW)}, {256*j}", f"s_lshl_b32 {s(S1)}, {s(FS)}, 10", f"s_add_u32 {s(S1)}, {s(S1)}, {off:#x}", f"s_cmp_lt_u32 {s(FS)}, {lim}", f"s_cselect_b32 {s(S1)}, {s(S1)}, 0x40000000",
          f"buffer_store_dwordx4 {v(base,4)}, {v(VL16)}, {s(WS,4)}, {s(S1)} offen sc1")
    for j in range(6): wq_loads(j, 16 + 8*j)
    A("s_waitcnt vmcnt(0)")
    for j in range(2): wo_loads(j, 64 + 8*j)
    for j in range(6): fin(16 + 8*j, j, WQF_OFF, 1344)
    A("s_waitcnt vmcnt(6)")
    for j in range(2): fin(64 + 8*j, j, WOF_OFF, 448)
    A("s_waitcnt vmcnt(0)", "s_barrier")
    A(f"s_cmp_eq_u32 {s(S_WAVE)}, 0", f"s_cselect_b32 {s(S1)}, 0, 0x40000000", f"v_mov_b32 {v(T)}, 1", "s_mov_b64 exec, 1", f"buffer_atomic_add {v(T)}, off, {s(DBG,4)}, {s(S1)} offset:40 sc1", "s_mov_b64 exec, -1")
    Lw_, Lwg = A.label("Lw"), A.label("Lwg")
    A(f"{Lw_}:", f"buffer_load_dword {v(T)}, off, {s(DBG,4)}, 0 offset:40 sc1", "s_waitcnt vmcnt(0)", f"v_cmp_ne_u32 vcc, 64, {v(T)}", f"s_cbranch_vccz {Lwg}", "s_sleep 2")
    timeout_step(A, Lw_, abort)
    A(f"{Lwg}:")
    KO, VOF = 32*14336, 64*14336
    toff = [KO, KO + 14336, VOF, VOF + 14336]
    A(f"s_mul_i32 {s(S_W)}, {s(S_WAVE)}, {8*14336}", f"s_add_u32 {s(S_W)}, {s(S_W)}, {WQF_OFF:#x}")
    A("s_waitcnt vmcnt(0)", "s_barrier")
    for b in range(4): A(ldtile(b, toff[b]))
    for tt in range(2):
        for ks in range(14): A(f"ds_read_b128 {a_(56*tt + 4*ks, 4)}, {v(VR0)} offset:{64*ks + 4*RP*tt}")
        A("s_waitcnt lgkmcnt(0)")
    xf = lambda tt, ks: a_(56*tt + 4*ks, 4)
    def phi_pair(dst, a, b, t0):
        p, q, e, f = t0, t0+1, t0+2, t0+3
        return [f"v_cvt_pk_bf16_f32 {v(q)}, {v(a)}, {v(b)}", f"v_lshlrev_b32 {v(p)}, 16, {v(q)}", f"v_and_b32 {v(q)}, 0xffff0000, {v(q)}",
                f"v_mul_f32 {v(e)}, {s(S_L2E)}, {v(p)}", f"v_mul_f32 {v(f)}, {s(S_L2E)}, {v(q)}", f"v_exp_f32 {v(e)}, {v(e)}", f"v_exp_f32 {v(f)}, {v(f)}",
                f"v_add_f32 {v(p)}, 1.0, {v(p)}", f"v_add_f32 {v(q)}, 1.0, {v(q)}", f"v_med3_f32 {v(p)}, {v(p)}, {v(e)}, 1.0", f"v_med3_f32 {v(q)}, {v(q)}, {v(f)}, 1.0",
                f"v_cvt_pk_bf16_f32 {v(q)}, {v(p)}, {v(q)}", f"v_lshlrev_b32 {v(p)}, 16, {v(q)}", f"v_and_b32 {v(q)}, 0xffff0000, {v(q)}",
                f"v_add_f32 {v(p)}, {s(S_EPS)}, {v(p)}", f"v_add_f32 {v(q)}, {s(S_EPS)}, {v(q)}", f"v_cvt_pk_bf16_f32 {v(dst)}, {v(p)}, {v(q)}"]
    A(f"s_mov_b32 {s(S_IT)}, 0", f"s_lshl_b32 {s(S_KV)}, {s(S_WAVE)}, 14", f"s_add_u32 {s(S_KV)}, {s(S_KV)}, {KV_OFF:#x}")
    L1 = A.label("L1")
    A(f"{L1}:")
    A(f"s_add_u32 {s(S_W)}, {s(S_W)}, {2*14336}")
    for b in range(4):
        A("s_waitcnt vmcnt(42)")
        for ks in range(14):
            for tt in range(2): A(mfma(W_ + 4*tt, xf(tt, ks), v(TB[b]+4*ks, 4), "0" if ks == 0 else None))
        A(ldtile(b, toff[b]))
        for r in range(4):
            if b < 2:
                A(phi_pair(W_+8, W_+2*r, W_+2*r+1, W_+9))
                if b == 1: A(f"v_and_b32 {v(W_+8)}, {v(W_+8)}, {v(VMK)}")
            else:
                A(f"v_cvt_pk_bf16_f32 {v(W_+8)}, {v(W_+2*r)}, {v(W_+2*r+1)}")
                if b == 3: A(f"v_or_b32 {v(W_+8)}, {v(W_+8)}, {v(VON)}")
            A(f"v_accvgpr_write_b32 {a_(112 + 4*b + r)}, {v(W_+8)}")
    A("s_nop 1")
    for td in range(2):
        for te in range(2): A(mfma(W_ + 8*td + 4*te, a_(112 + 4*td, 4), a_(120 + 4*te, 4), "0"))
    A("s_waitcnt vmcnt(40)", "s_nop 7")
    for r in range(16): A(f"buffer_atomic_add_f32 {v(W_+r)}, {v(VL4)}, {s(WS,4)}, {s(S_KV)} offen offset:{256*r}")
    A(f"s_add_u32 {s(S_KV)}, {s(S_KV)}, 4096", f"s_add_u32 {s(S_IT)}, {s(S_IT)}, 1", f"s_cmp_lt_u32 {s(S_IT)}, 4", f"s_cbranch_scc1 {L1}")
    A("s_waitcnt vmcnt(0)", "s_barrier")
    if TLM: A("s_memrealtime s[92:93]")
    Ln = A.label("Lns")
    A(f"s_mov_b32 {s(S_KV)}, {CL_OFF:#x}", f"s_cmp_lg_u32 {s(S_WAVE)}, 0", f"s_cbranch_scc1 {Ln}")
    A(f"v_mov_b32 {v(T)}, 1", "s_mov_b64 exec, 1", f"buffer_atomic_add {v(T)}, off, {s(WS,4)}, {s(S_KV)} sc1", "s_mov_b64 exec, -1")
    A(f"{Ln}:")
    A(f"s_mul_i32 {s(S_W)}, {s(S_WAVE)}, {8*14336}", f"s_add_u32 {s(S_W)}, {s(S_W)}, {WQF_OFF:#x}")
    for b in range(2): A(ldtile(b, 14336*b))
    poll_eq(A, T, VZ, S_KV, 64, abort, "cl")
    if TLM: A("s_memrealtime s[94:95]")
    A(f"s_mov_b32 {s(S_IT)}, 0", f"s_lshl_b32 {s(S_KV)}, {s(S_WAVE)}, 14", f"s_add_u32 {s(S_KV)}, {s(S_KV)}, {KV_OFF:#x}")
    Q, KVR, KVT, ZO, PQ, NUM, DEN, TMPS = 128, 144, 160, 168, 172, 180, 188, 192
    L2 = A.label("L2")
    A(f"{L2}:")
    for r in range(16): A(f"buffer_load_dword {v(KVR+r)}, {v(VL4)}, {s(WS,4)}, {s(S_KV)} offen offset:{256*r} sc1")
    A(f"s_add_u32 {s(S_W)}, {s(S_W)}, {2*14336}", "s_waitcnt vmcnt(16)")
    for b in range(2):
        for ks in range(14):
            for tt in range(2): A(mfma(Q + 8*tt + 4*b, v(TB[b]+4*ks, 4), xf(tt, ks), "0" if ks == 0 else None))
    A("s_waitcnt vmcnt(0)")
    for b in range(2): A(ldtile(b, 14336*b))
    for tt in range(2):
        for r in range(4): A(phi_pair(PQ + 4*tt + r, Q + 8*tt + 2*r, Q + 8*tt + 2*r + 1, TMPS))
    for te in range(2):
        for td in range(2):
            for p in range(2): A(f"v_cvt_pk_bf16_f32 {v(KVT + 4*te + 2*td + p)}, {v(KVR + 8*td + 4*te + 2*p)}, {v(KVR + 8*td + 4*te + 2*p + 1)}")
    A("s_nop 1")
    for r in range(4): A(f"v_mov_b32_dpp {v(ZO+r)}, {v(KVT+4+r)} row_newbcast:12 row_mask:0xf bank_mask:0xf")
    A("s_nop 1")
    for tt in range(2):
        for te in range(2): A(mfma(NUM + 4*te, v(KVT + 4*te, 4), v(PQ + 4*tt, 4), "0"))
        A(mfma(DEN, v(ZO, 4), v(PQ + 4*tt, 4), "0"), "s_nop 7")
        d, u = TMPS, TMPS+1
        A(f"v_cvt_pk_bf16_f32 {v(d)}, {v(DEN)}, {v(DEN)}", f"v_and_b32 {v(d)}, 0xffff0000, {v(d)}", f"v_add_f32 {v(d)}, {s(S_EPS)}, {v(d)}",
          f"v_cvt_pk_bf16_f32 {v(d)}, {v(d)}, {v(d)}", f"v_and_b32 {v(d)}, 0xffff0000, {v(d)}", f"v_rcp_f32 {v(d)}, {v(d)}")
        for r in range(4):
            A(f"v_cvt_pk_bf16_f32 {v(u+1)}, {v(NUM+2*r)}, {v(NUM+2*r+1)}", f"v_lshlrev_b32 {v(u)}, 16, {v(u+1)}", f"v_and_b32 {v(u+1)}, 0xffff0000, {v(u+1)}",
              f"v_mul_f32 {v(u)}, {v(u)}, {v(d)}", f"v_mul_f32 {v(u+1)}, {v(u+1)}, {v(d)}", f"v_cvt_pk_bf16_f32 {v(TMPS+4+r)}, {v(u)}, {v(u+1)}")
        A(f"ds_write_b128 {v(VOA)}, {v(TMPS+4,4)} offset:{1024*tt}", "s_waitcnt lgkmcnt(0)")
    A(f"v_add_u32 {v(VOA)}, 2048, {v(VOA)}")
    A(f"s_add_u32 {s(S_KV)}, {s(S_KV)}, 4096", f"s_add_u32 {s(S_IT)}, {s(S_IT)}, 1", f"s_cmp_lt_u32 {s(S_IT)}, 4", f"s_cbranch_scc1 {L2}")
    A("s_waitcnt vmcnt(0)", "s_barrier")
    A(f"s_mul_i32 {s(S_W)}, {s(S_WAVE)}, {7*16384}", f"s_add_u32 {s(S_W)}, {s(S_W)}, {WOF_OFF:#x}")
    def ldwo(c):
        o = []
        for h in range(16):
            if h % 4 == 0: o.append(f"s_add_u32 {s(S_TMP)}, {s(S_W)}, {16384*c + 1024*h}")
            o.append(f"buffer_load_dwordx4 {v(16 + 64*(c % 3) + 4*h, 4)}, {v(VL16)}, {s(WS,4)}, {s(S_TMP)} offen offset:{1024*(h%4)} sc1")
        return o
    A(ldwo(0), ldwo(1))
    for f in range(32):
        A(f"ds_read_b128 {a_(4*f, 4)}, {v(VL16)} offset:{LOIMG + 1024*f}")
        if f % 8 == 7: A("s_waitcnt lgkmcnt(0)")
    for c in range(7):
        if c + 2 < 7: A(ldwo(c+2))
        nyoung = 16*min(2, 6-c) + (2 if c >= 1 else 0) * 0
        A(f"s_waitcnt vmcnt({16*min(2, 6-c)})")
        for h in range(16):
            for tt in range(2): A(mfma(W_ + 4*tt, v(16 + 64*(c % 3) + 4*h, 4), a_(8*h + 4*tt, 4), "0" if h == 0 else None))
        A("s_nop 7")
        for tt in range(2):
            A(f"v_cvt_pk_bf16_f32 {v(W_+8+2*tt)}, {v(W_+4*tt)}, {v(W_+4*tt+1)}", f"v_cvt_pk_bf16_f32 {v(W_+9+2*tt)}, {v(W_+4*tt+2)}, {v(W_+4*tt+3)}")
        A(f"s_mov_b32 {s(S_TMP)}, {4*1792}",
          f"buffer_store_dwordx2 {v(W_+8,2)}, {v(VO_)}, {s(OUT,4)}, 0 offen offset:{32*c}{OFL[OFI]}", f"buffer_store_dwordx2 {v(W_+10,2)}, {v(VO_)}, {s(OUT,4)}, {s(S_TMP)} offen offset:{32*c}{OFL[OFI]}")
    A("s_endpgm")
```

```python
import sys
sys.argv = [sys.argv[0], "x", "final"] + sys.argv[1:]
import gen, workers, prep
for i, cfg in enumerate(sys.argv[3:]):
    kw = {kv.split("=")[0]: int(kv.split("=")[1]) for kv in cfg.split(",") if kv}
    saved = []
    for m in (workers, prep):
        for k in list(kw):
            if hasattr(m, k) and not hasattr(gen.rec, k):
                saved.append((m, k, getattr(m, k))); setattr(m, k, kw.pop(k))
    gen.generate(f"v{i}.s", STAMP=0, **kw)
    for m, k, v in saved: setattr(m, k, v)
```

```python
from asm import *
from model import *
from rec import WS, DBG, S_WAVE
PT = 0
SL = 62
HMAP = 0
WW = 1
FLAGS = 1
WALL = 0
TKQ = 2
QST = 2
QOF = 1
UPF = 3
MSWAP = 0
ADELAY = 0
CSLEEP = 12
TOUCH = 1
CNT0 = 64

def prep_srds(A):
    W1, W2, M0S = 64, 68, 72
    S_MH = 33
    if HMAP == 0:
        A("s_and_b32 s37, s2, 7", f"s_lshl_b32 {s(S_MH)}, s37, 2", "s_lshr_b32 s37, s2, 6", f"s_add_u32 {s(S_MH)}, {s(S_MH)}, s37")
    elif HMAP == 1:
        A(f"s_and_b32 {s(S_MH)}, s2, 3", "s_lshr_b32 s37, s2, 6", "s_lshl_b32 s37, s37, 2", f"s_add_u32 {s(S_MH)}, {s(S_MH)}, s37", "s_bfe_u32 s37, s2, 0x10002", "s_lshl_b32 s37, s37, 4", f"s_add_u32 {s(S_MH)}, {s(S_MH)}, s37")
    else:
        A(f"s_and_b32 {s(S_MH)}, s2, 7", "s_lshr_b32 s37, s2, 6", "s_lshl_b32 s37, s37, 3", f"s_add_u32 {s(S_MH)}, {s(S_MH)}, s37")
    A(f"s_xor_b32 {s(S_MH)}, {s(S_MH)}, {MSWAP}")
    srd(A, M0S, 32, 7168)
    LmB, LmJ = A.label("matB"), A.label("matJ")
    A(f"s_cmp_ge_u32 {s(S_MH)}, 16", f"s_cbranch_scc1 {LmB}")
    srd(A, W1, 40, 3670016); srd(A, W2, 48, 3670016)
    A(f"s_branch {LmJ}", f"{LmB}:")
    srd(A, W1, 56, 3670016); srd(A, W2, 64, 3670016)
    A(f"{LmJ}:")

def prep_body(A, after_loads=None):
    W1, W2, M0S = 64, 68, 72
    S_W = S_WAVE
    S_MH, S_H, S_RH, S_CQ, S_T, S_T2, S_G, S_OUT, S_X, GW = range(33, 43)
    S_A0, S_A1, S_B0, S_BJ, S_BQ, S_B3, S_LD, S_RD, S_Q = 84, 85, 86, 87, 88, 89, 56, 57, 58
    VL, VG, VN, T, T2, VA, VB, VL16 = range(1, 9)
    VRA = 10
    VRB = 200
    CA, CB = 12, 224
    SLOT = 49152
    ACC, AF, BF = 16, 128, 160
    A(f"s_and_b32 {s(S_H)}, {s(S_MH)}, 15", f"s_bfe_u32 {s(S_RH)}, s2, 0x10005", f"s_bfe_u32 {s(S_CQ)}, s2, 0x20003")
    A(f"v_and_b32 {v(VL)}, 63, v0", f"v_lshrrev_b32 {v(VG)}, 4, {v(VL)}", f"v_and_b32 {v(VN)}, 15, {v(VL)}", f"v_lshlrev_b32 {v(VL16)}, 4, {v(VL)}")
    A(f"v_lshrrev_b32 {v(T)}, 3, {v(VL)}", f"v_and_b32 {v(T2)}, 7, {v(VL)}", f"v_xor_b32 {v(T2)}, {v(T2)}, {v(T)}", f"v_lshlrev_b32 {v(VA)}, 13, {v(T)}", f"v_lshl_add_u32 {v(VA)}, {v(T2)}, 4, {v(VA)}")
    A(f"s_mul_i32 {s(S_T)}, {s(S_RH)}, 7", f"s_add_u32 {s(S_T)}, {s(S_T)}, {s(S_W)}", f"s_lshl_b32 {s(S_OUT)}, {s(S_T)}, 10",
      f"s_lshl_b32 {s(S_T)}, {s(S_T)}, 18", f"s_lshl_b32 {s(S_T2)}, {s(S_H)}, 9", f"s_add_u32 {s(S_A0)}, {s(S_T)}, {s(S_T2)}",
      f"s_add_u32 {s(S_A1)}, {s(S_A0)}, {4*32*8192}", f"s_cmp_eq_u32 {s(S_W)}, 3", f"s_cselect_b32 {s(S_A1)}, 0x40000000, {s(S_A1)}")
    L = [A.label("pb%d" % i) for i in range(4)]
    A(f"s_cmp_ge_u32 {s(S_MH)}, 16", f"s_cbranch_scc1 {L[0]}")
    A(f"s_mul_i32 {s(S_T)}, {s(S_CQ)}, 112", f"s_lshl_b32 {s(S_G)}, {s(S_W)}, 5", f"s_add_u32 {s(S_T)}, {s(S_T)}, {s(S_G)}", f"s_lshl_b32 {s(S_T)}, {s(S_T)}, 13",
      f"s_add_u32 {s(S_B0)}, {s(S_T)}, {s(S_T2)}", f"s_mov_b32 {s(S_BJ)}, {8*8192}", f"s_mov_b32 {s(S_BQ)}, 128", f"s_cmp_eq_u32 {s(S_W)}, 3", f"s_cselect_b32 {s(S_B3)}, 0x40000000, 0",
      f"v_mov_b32 {v(VB)}, {v(VA)}", f"v_mov_b32 {v(VB+2)}, {v(VA)}")
    A(f"s_branch {L[1]}", f"{L[0]}:")
    A(f"s_mul_i32 {s(S_T)}, {s(S_H)}, 229376", f"s_mul_i32 {s(S_G)}, {s(S_CQ)}, 224", f"s_add_u32 {s(S_T)}, {s(S_T)}, {s(S_G)}",
      f"s_mul_i32 {s(S_G)}, {s(S_W)}, {16*896}", f"s_add_u32 {s(S_B0)}, {s(S_T)}, {s(S_G)}", f"s_mov_b32 {s(S_BJ)}, {4*896}", f"s_mov_b32 {s(S_BQ)}, {64*896}", f"s_mov_b32 {s(S_B3)}, 0",
      f"v_lshlrev_b32 {v(T)}, 1, {v(VG)}", f"v_xor_b32 {v(T)}, {v(T)}, {v(VN)}", f"v_mul_u32_u24 {v(T2)}, 896, {v(VG)}", f"v_lshl_add_u32 {v(VB)}, {v(T)}, 4, {v(T2)}",
      f"v_xor_b32 {v(T)}, 8, {v(T)}", f"v_lshl_add_u32 {v(VB+2)}, {v(T)}, 4, {v(T2)}")
    A(f"{L[1]}:")
    A(f"s_lshl_b32 {s(S_LD)}, {s(S_W)}, 12", f"s_lshl_b32 {s(S_RD)}, {s(S_W)}, 13", f"s_mul_i32 s59, {s(S_H)}, {QST}", f"s_add_u32 s59, s59, {QOF}")
    def loads(q):
        base = SLOT*(q % 3)
        G = []
        pre = ["s_and_b32 s60, s59, 3", "s_add_u32 s59, s59, 1", f"s_mul_i32 {s(S_T)}, s60, {s(S_BQ)}", f"s_add_u32 {s(S_T)}, {s(S_T)}, {s(S_B0)}", "s_lshl_b32 s60, s60, 7",
               f"s_add_u32 s61, s60, {s(S_A1)}", f"s_add_u32 s60, s60, {s(S_A0)}"]
        for j in range(4):
            g = pre if j == 0 else [f"s_add_u32 {s(S_T)}, {s(S_T)}, {s(S_BJ)}"]
            if j == 2: g = g + [f"s_add_u32 {s(S_T)}, {s(S_T)}, {s(S_B3)}"]
            G.append([f"s_add_u32 m0, {s(S_LD)}, {base + 1024*j}"] + g + [f"buffer_load_dwordx4 {v(VB + (j & 2))}, {s(W2,4)}, {s(S_T)} offen lds"])
        for half in range(2):
            for j in range(4):
                G.append([f"s_add_u32 m0, {s(S_RD)}, {base + 16384 + 4096*half + 1024*j}", f"s_add_u32 {s(S_T)}, s{60 + half}, {j*8*8192}", f"buffer_load_dwordx4 {v(VA)}, {s(W1,4)}, {s(S_T)} offen lds"])
        return G
    if PT == 1: A("s_memrealtime s[76:77]")
    A(loads(0), loads(1))
    A(f"s_lshl_b32 {s(GW)}, s2, 2", f"s_add_u32 {s(GW)}, {s(GW)}, {s(S_W)}")
    A(f"v_lshrrev_b32 {v(T)}, 1, {v(VN)}", f"v_mul_u32_u24 {v(T2)}, 896, {v(T)}", f"v_lshl_add_u32 {v(T2)}, {v(VG)}, 5, {v(T2)}", f"v_and_b32 {v(T)}, 1, {v(VN)}", f"v_lshl_add_u32 {v(T2)}, {v(T)}, 2, {v(T2)}")
    A(f"s_lshl_b32 {s(S_T)}, s2, 7", f"s_lshl_b32 {s(S_X)}, s2, 10", f"s_add_u32 {s(S_X)}, {s(S_X)}, {MEMF_OFF:#x}",
      "s_cmp_lt_u32 s2, 7", f"s_cselect_b32 {s(S_X)}, {s(S_X)}, 0x40000000", f"s_cmp_eq_u32 {s(S_W)}, 3", f"s_cselect_b32 {s(S_X)}, {s(S_X)}, 0x40000000")
    for q in range(4): A(f"buffer_load_dword {v(216+q)}, {v(T2)}, {s(M0S,4)}, {s(S_T)} offen offset:{8*q}")
    A(f"v_lshrrev_b32 v237, 3, {v(VL)}", "v_lshlrev_b32 v237, 8, v237", f"v_and_b32 {v(T)}, 7, {v(VL)}", f"v_lshl_add_u32 v237, {v(T)}, 2, v237",
      f"s_mov_b32 {s(S_T)}, {FLAGP_OFF:#x}", f"s_mov_b32 {s(S_T2)}, {FLAGP_OFF + 4096:#x}")
    for k in range(4): A(f"buffer_load_dword v{232+k}, v237, {s(WS,4)}, {s(S_T if k < 2 else S_T2)} offen offset:{2048*(k%2)} sc1")
    A(f"s_lshl_b32 s63, {s(S_MH)}, 8", f"s_bfe_u32 {s(S_T)}, s2, 0x30003", f"s_lshl_b32 {s(S_T)}, {s(S_T)}, 2", f"s_add_u32 s63, s63, {s(S_T)}", f"s_add_u32 s63, s63, {FLAGP_OFF:#x}",
      f"buffer_load_dword v236, off, {s(WS,4)}, s63 sc1")
    nm = 9
    A(f"v_lshrrev_b32 {v(T)}, 2, {v(VN)}", f"v_lshlrev_b32 {v(VRA)}, 10, {v(T)}", f"v_and_b32 {v(T)}, 3, {v(VN)}", f"v_lshl_add_u32 {v(VRA)}, {v(T)}, 7, {v(VRA)}",
      f"v_xor_b32 {v(T)}, {v(T)}, {v(VG)}", f"v_lshl_add_u32 {v(VRA)}, {v(T)}, 4, {v(VRA)}", f"s_lshl_b32 {s(S_T)}, {s(S_W)}, 13", f"s_add_u32 {s(S_T)}, {s(S_T)}, 16384", f"v_add_u32 {v(VRA)}, {s(S_T)}, {v(VRA)}")
    for r in range(4): A(f"v_mov_b32 {v(208+r)}, -1", f"v_mov_b32 {v(212+r)}, 0")
    A(f"s_mul_i32 {s(S_T)}, {s(S_H)}, 28", f"s_mul_i32 {s(S_T2)}, {s(S_CQ)}, 7", f"s_add_u32 {s(S_T)}, {s(S_T)}, {s(S_T2)}", f"s_mul_i32 {s(S_T)}, {s(S_T)}, 14336",
      f"s_add_u32 {s(S_OUT)}, {s(S_OUT)}, {s(S_T)}", f"s_cmp_ge_u32 {s(S_MH)}, 16", f"s_cselect_b32 {s(S_T)}, {WB_OFF:#x}, {WA_OFF:#x}", f"s_add_u32 {s(S_OUT)}, {s(S_OUT)}, {s(S_T)}")
    A(f"s_add_u32 {s(S_G)}, {s(S_OUT)}, 4096", f"s_cmp_eq_u32 {s(S_W)}, 3", f"s_cselect_b32 {s(S_G)}, 0x40000000, {s(S_G)}")
    sc = int(np.float32(LOG2E / 16).view(np.uint32))
    def gemm(isb):
        n = 2 if isb else 1
        if isb:
            A(f"v_lshrrev_b32 {v(T)}, 2, {v(VN)}", f"v_lshl_add_u32 {v(T2)}, {v(VG)}, 3, {v(T)}", f"v_lshlrev_b32 {v(T2)}, 8, {v(T2)}", f"v_and_b32 {v(13)}, 1, {v(VN)}", f"v_lshl_add_u32 {v(T2)}, {v(13)}, 3, {v(T2)}",
              f"v_lshlrev_b32 {v(T)}, 1, {v(T)}", f"v_and_b32 {v(15)}, 1, {v(VG)}", f"v_lshl_add_u32 {v(T)}, {v(15)}, 3, {v(T)}", f"v_bfe_u32 {v(15)}, {v(VN)}, 1, 1", f"v_or_b32 {v(T)}, {v(T)}, {v(15)}")
            for cb in range(7): A(f"v_xor_b32 {v(15)}, {2*cb}, {v(T)}", f"v_lshl_add_u32 {v(VRB+cb)}, {v(15)}, 4, {v(T2)}")
            nb = 7
        else:
            A(f"v_and_b32 {v(T)}, 7, {v(VN)}", f"v_xor_b32 {v(T)}, {v(T)}, {v(VG)}", f"v_lshlrev_b32 {v(T2)}, 7, {v(VN)}", f"v_lshl_add_u32 {v(VRB)}, {v(T)}, 4, {v(T2)}", f"v_xor_b32 {v(VRB+1)}, 64, {v(VRB)}")
            nb = 2
        if not isb: A(f"s_mov_b32 s62, {sc:#x}")
        def fills():
            G = []
            ms = (MEMS_OFF - MEMF_OFF) // 1024
            for j in range(2):
                g = [f"s_lshl_b32 {s(S_T2)}, {s(GW)}, 10", f"s_add_u32 {s(S_T2)}, {s(S_T2)}, {MEMF_OFF + (j << 20):#x}"]
                for base in (0, ms):
                    if base // 1024 == j:
                        g += [f"s_sub_u32 s43, {s(GW)}, {base % 1024}", "s_cmp_lt_u32 s43, 7", f"s_cselect_b32 {s(S_T2)}, 0x40000000, {s(S_T2)}"]
                G.append(g + [f"buffer_store_dwordx4 {v(208,4)}, {v(VL16)}, {s(WS,4)}, {s(S_T2)} offen sc1"])
            G.append([f"s_lshl_b32 {s(S_T)}, {s(GW)}, 10", f"s_add_u32 {s(S_T)}, {s(S_T)}, {ZERO_OFF:#x}", f"s_cmp_lt_u32 {s(GW)}, {ZERO_BYTES//1024}", f"s_cselect_b32 {s(S_T)}, {s(S_T)}, 0x40000000",
                      f"buffer_store_dwordx4 {v(212,4)}, {v(VL16)}, {s(WS,4)}, {s(S_T)} offen sc1"])
            G.append([f"s_sub_u32 s43, {s(GW)}, 256", f"s_lshl_b32 {s(S_T)}, s43, 10", f"s_mov_b32 {s(S_T2)}, {PX_OFF + SL*40960 - 112*(64-SL)*1024:#x}", f"s_cmp_lt_u32 s43, {112*(64-SL)}", f"s_cselect_b32 {s(S_T2)}, {VPE_OFF + SL*114688:#x}, {s(S_T2)}"])
            G.append([f"s_add_u32 {s(S_T)}, {s(S_T)}, {s(S_T2)}", f"s_cmp_lt_u32 s43, {152*(64-SL)}", f"s_cselect_b32 {s(S_T)}, {s(S_T)}, 0x40000000",
                      f"buffer_store_dwordx4 {v(208,4)}, {v(VL16)}, {s(WS,4)}, {s(S_T)} offen sc1"])
            G.append([f"v_min_u32 {v(216+k)}, -2, {v(216+k)}" for k in range(4)] + [f"buffer_store_dwordx4 {v(216,4)}, {v(VL16)}, {s(WS,4)}, {s(S_X)} offen sc1"])
            G.append([f"s_add_u32 {s(S_X)}, {s(S_X)}, {ALT:#x}", f"buffer_store_dwordx4 {v(216,4)}, {v(VL16)}, {s(WS,4)}, {s(S_X)} offen sc1"])
            return G
        def epi(cb):
            o = []
            for half in range(2):
                d = ACC + 16*cb + 8*half
                if not isb: o += [f"v_mul_f32 {v(d+r)}, s62, {v(d+r)}" for r in range(8)]
                o += [f"v_cvt_pk_bf16_f32 {v(d+r)}, {v(d+2*r)}, {v(d+2*r+1)}" for r in range(4)]
                so = S_OUT if half == 0 else S_G
                o += [f"buffer_store_dwordx4 {v(d,4)}, {v(VL16)}, {s(WS,4)}, {s(so)} offen sc1", f"s_add_u32 {s(so)}, {s(so)}, 14336"]
            return o
        for q in range(4):
            base = SLOT*(q % 3)
            A(f"s_waitcnt vmcnt({[12 + nm, 12, 12, 7][q]})", "s_barrier")
            if PT == 1 and q in (0, 3): A(f"s_memrealtime s[{78 if q == 0 else 80}:{79 if q == 0 else 81}]")
            A(f"v_add_u32 {v(CA)}, {base}, {v(VRA)}")
            for k in range(nb): A(f"v_add_u32 {v(CB+k)}, {base}, {v(VRB+k)}")
            def rdB(i):
                cb, el = i // 2, i % 2
                if isb: return [f"ds_read_b64_tr_b16 {v(BF + 4*(i % 4) + 2*u, 2)}, {v(CB+cb)} offset:{(32*el + 4*u)*256}" for u in range(2)]
                return [f"ds_read_b128 {v(BF + 4*(i % 4), 4)}, {v(CB+el)} offset:{cb*2048}"]
            for f in range(8):
                half, t_, el = f // 4, (f // 2) % 2, f % 2
                A(f"ds_read_b128 {v(AF+4*f,4)}, {v(CA)} offset:{half*4096 + t_*512 + 64*(el ^ t_)}")
            for i in range(3): A(rdB(i))
            G = loads(q+2) if q < 2 else (fills() if q == 2 else [])
            if q == 2: after_loads(); A("s_nop 3")
            pend = []
            for i in range(14):
                cb, el = i // 2, i % 2
                if i + 3 < 14: A(rdB(i+3), f"s_waitcnt lgkmcnt({3*n})")
                else: A(f"s_waitcnt lgkmcnt({(13-i)*n})")
                if q == 3 and el == 1 and cb > 0: pend += epi(cb-1)
                for half in range(2):
                    for t_ in range(2):
                        d = ACC + 16*cb + 8*half + 4*t_
                        A(f"v_mfma_f32_16x16x32_bf16 {v(d,4)}, {v(AF + 16*half + 8*t_ + 4*el, 4)}, {v(BF + 4*(i % 4), 4)}, " + ("0" if q == 0 and el == 0 else v(d,4)))
                        if half == 0 and t_ == 0 and G: A(G.pop(0))
                        for _ in range(2 if isb else 4):
                            if pend: A(pend.pop(0))
            if q == 3: A(pend, "s_nop 7", epi(6))
    A(f"s_cmp_ge_u32 {s(S_MH)}, 16", f"s_cbranch_scc1 {L[2]}")
    gemm(False)
    A(f"s_branch {L[3]}", f"{L[2]}:")
    gemm(True)
    A(f"{L[3]}:")
    if PT == 1: A("s_memrealtime s[82:83]")
    A("s_waitcnt vmcnt(0)", "s_barrier")
    if PT:
        A("s_waitcnt lgkmcnt(0)", "v_mov_b32 v12, s76", "v_mov_b32 v13, s78", "v_mov_b32 v14, s80", "v_mov_b32 v15, s82",
          f"s_lshl_b32 {s(S_T)}, {s(GW)}, 4", f"s_add_u32 {s(S_T)}, {s(S_T)}, {PROF_OFF + 0x80000:#x}", f"buffer_store_dwordx4 v[12:15], off, {s(WS,4)}, {s(S_T)}")
    A(f"s_lshl_b32 {s(S_T)}, {s(S_MH)}, 2", f"s_cmp_eq_u32 {s(S_W)}, 0", f"s_cselect_b32 {s(S_T)}, {s(S_T)}, 0x40000000",
      "s_cselect_b32 s63, s63, 0x40000000", "v_add_u32 v236, 1, v236",
      f"v_mov_b32 {v(T)}, 1", "s_mov_b64 exec, 1", f"buffer_store_dword v236, off, {s(WS,4)}, s63 sc1", f"buffer_atomic_add {v(T)}, off, {s(DBG,4)}, {s(S_T)} offset:{CNT0} sc1", "s_mov_b64 exec, -1")

def wait_tiles(A, lo, n, abort, tag, S_TO, vt, va, st=(60, 61, 62)):
    if not FLAGS: return wait_counters(A, lo, n, abort, tag, S_TO, vt, va)
    a, b, c = st
    Lp, Lgo, Lfb = A.label(tag + "tw"), A.label(tag + "tg"), A.label(tag + "tf")
    A(f"s_cmp_lg_u32 {s(S_WAVE)}, 0", f"s_cbranch_scc1 {Lfb}", f"s_mov_b32 s{c}, 64")
    if n == 1:
        A(f"s_lshr_b32 s{a}, {lo}, 3", f"v_mov_b32 {v(va)}, v232")
        for k in range(1, 4): A(f"s_cmp_eq_u32 s{a}, {k}", "s_cselect_b64 vcc, -1, 0", f"v_cndmask_b32 {v(va)}, {v(va)}, v{232+k}, vcc")
        A(f"s_lshl_b32 s{a}, s{a}, 11", f"s_add_u32 s{a}, s{a}, {FLAGP_OFF:#x}", f"s_and_b32 s{b}, {lo}, 7", f"s_lshl_b32 s{b}, s{b}, 3", "s_mov_b64 exec, 0xff", f"s_lshl_b64 exec, exec, s{b}")
        A(f"{Lp}:", f"buffer_load_dword {v(vt)}, v237, {s(WS,4)}, s{a} offen sc1", "s_waitcnt vmcnt(0)", f"v_cmp_eq_u32 vcc, {v(vt)}, {v(va)}", f"s_cbranch_vccz {Lgo}")
    else:
        A(f"s_mov_b32 s{a}, {FLAGP_OFF + 4096:#x}")
        A(f"{Lp}:", f"buffer_load_dword {v(vt)}, v237, {s(WS,4)}, s{a} offen sc1", f"buffer_load_dword {v(va)}, v237, {s(WS,4)}, s{a} offen offset:2048 sc1", "s_waitcnt vmcnt(0)",
          f"v_cmp_eq_u32 s[66:67], {v(vt)}, v234", f"v_cmp_eq_u32 vcc, {v(va)}, v235", "s_nop 1", "s_or_b64 vcc, vcc, s[66:67]", f"s_cbranch_scc0 {Lgo}")
    A(f"s_sleep {CSLEEP}", f"s_sub_u32 s{c}, s{c}, 1", f"s_cbranch_scc0 {Lp}", "s_mov_b64 exec, -1")
    A(f"{Lfb}:")
    Lj = A.label("tj")
    wait_counters(A, lo, n, abort, tag, S_TO, vt, va)
    A(f"s_branch {Lj}", f"{Lgo}:", "s_mov_b64 exec, -1", "s_barrier", f"{Lj}:")
def wait_tiles_wave(A, setup, abort, tag, S_TO, vt, va, st=(60, 61, 62)):
    from rec import timeout_step
    a, b, c = st
    Lp, Lgo, Lf = A.label(tag + "ww"), A.label(tag + "wg"), A.label(tag + "wf")
    setup(a, b)
    A(f"v_mov_b32 {v(va)}, v232", f"s_mov_b32 s{c}, 64")
    for k in range(1, 4): A(f"s_cmp_eq_u32 s{a}, {k}", "s_cselect_b64 vcc, -1, 0", f"v_cndmask_b32 {v(va)}, {v(va)}, v{232+k}, vcc")
    A(f"s_lshl_b32 s{a}, s{a}, 11", f"s_add_u32 s{a}, s{a}, {FLAGP_OFF:#x}")
    A(f"{Lp}:", f"buffer_load_dword {v(vt)}, v237, {s(WS,4)}, s{a} offen sc1", "s_waitcnt vmcnt(0)", f"v_cmp_eq_u32 vcc, {v(vt)}, {v(va)}", f"s_cbranch_vccz {Lgo}")
    A(f"s_sleep {CSLEEP}", f"s_sub_u32 s{c}, s{c}, 1", f"s_cbranch_scc0 {Lp}", "s_mov_b64 exec, -1")
    A(f"v_and_b32 {v(va)}, 31, v0", f"v_lshlrev_b32 {v(va)}, 2, {v(va)}")
    A(f"{Lf}:", f"buffer_load_dword {v(vt)}, {v(va)}, {s(DBG,4)}, 0 offen offset:{CNT0} sc1", "s_waitcnt vmcnt(0)", f"v_cmp_gt_u32 vcc, 8, {v(vt)}", f"s_cbranch_vccz {Lgo}", "s_sleep 30")
    timeout_step(A, Lf, abort)
    A(f"{Lgo}:", "s_mov_b64 exec, -1")

def one_matrix(A, mh):
    def setup(a, b):
        A(f"s_lshr_b32 s{a}, {mh}, 3", f"s_and_b32 s{b}, {mh}, 7", f"s_lshl_b32 s{b}, s{b}, 3", f"s_add_u32 s{b}, s{b}, {s(S_WAVE)}", "s_mov_b64 exec, 0x11", f"s_lshl_b64 exec, exec, s{b}")
    return setup
PREP_LDS = 256*288 + 64*1088

def wait_counters(A, lo, n, abort, tag, S_TO, vt=1, va=2, sleep=None):
    from rec import timeout_step
    if WALL:
        if n == 32 and tag in "ABVX": return
        lo, n = 0, 32
    Lp, Lgo = A.label(tag + "cw"), A.label(tag + "cg")
    A(f"s_cmp_lg_u32 {s(S_WAVE)}, 0", f"s_cbranch_scc1 {Lgo}")
    A(f"v_and_b32 {v(va)}, {n-1}, v0", f"v_add_lshl_u32 {v(va)}, {v(va)}, {lo}, 2")
    A(f"{Lp}:", f"buffer_load_dword {v(vt)}, {v(va)}, {s(DBG,4)}, 0 offen offset:{CNT0} sc1", "s_waitcnt vmcnt(0)", f"v_cmp_gt_u32 vcc, 8, {v(vt)}", f"s_cbranch_vccz {Lgo}", f"s_sleep {sleep or CSLEEP}")
    timeout_step(A, Lp, abort)
    A(f"{Lgo}:", "s_barrier")
```

```python
from asm import *
from model import *

WS, XB, DBG = 4, 8, 12
S_WAVE, S_ROLE, S_STEP, S_MEM, S_MEM2, S_P, S_X, S_VOX, S_TO, S_TMP, S_TMP2, S_P2, S_MEMN = range(16, 29)
S_PROF = 30
NSTEPS = 63
PACCUM = 0
PMASK = 255
TIMEOUT = 40000

def smf(d, a, b, idx, hi=False):
    return f"v_smfmac_f32_16x16x64_bf16 {v(d,4)}, {v(a,4)}, {b}, {v(idx)}" + (" abid:1" if hi else "")

def wreg(f, n=8, sub=0):
    return a_(8*f + sub, n) if f < 32 else v(120 + 8*(f-32) + sub, n)

def lane_consts(A, VL, VG, VN):
    A(f"v_and_b32 {v(VL)}, 63, v0", f"v_lshrrev_b32 {v(VG)}, 4, {v(VL)}", f"v_and_b32 {v(VN)}, 15, {v(VL)}")

def mem_lane_off(A, dst, VG, VN, t):
    A(f"v_lshlrev_b32 {v(dst)}, 8, {v(VG)}", f"v_lshl_add_u32 {v(dst)}, {v(VN)}, 4, {v(dst)}")

def idx_const(A, dst, VN, t):
    A(f"v_and_b32 {v(t)}, 1, {v(VN)}", f"v_mul_u32_u24 {v(dst)}, 0xAAAA, {v(t)}",
      f"v_lshrrev_b32 {v(t)}, 3, {v(VN)}", f"v_mul_u32_u24 {v(t)}, 0xAAAA, {v(t)}",
      f"v_lshl_add_u32 {v(dst)}, {v(t)}, 16, {v(dst)}", f"v_add_u32 {v(dst)}, 0x44444444, {v(dst)}")

def memload(dst, voff, kb):
    so = S_MEM if kb < 4 else S_MEM2
    return f"buffer_load_dwordx4 {v(dst,4)}, {v(voff)}, {s(WS,4)}, {s(so)} offen offset:{(kb%4)*1024} sc1"

def chk4(t, r, first=True):
    if first:
        return [f"v_max3_u32 {v(t)}, {v(r)}, {v(r+1)}, {v(r+2)}", f"v_max_u32 {v(t)}, {v(t)}, {v(r+3)}"]
    return [f"v_max3_u32 {v(t)}, {v(t)}, {v(r)}, {v(r+1)}", f"v_max3_u32 {v(t)}, {v(t)}, {v(r+2)}, {v(r+3)}"]

def timeout_step(A, again, abort):
    A(f"s_sub_u32 {s(S_TO)}, {s(S_TO)}, 1", f"s_cbranch_scc1 {abort}", f"s_branch {again}")

def prof(A, slot, on):
    if on and (PMASK >> slot) & 1:
        A(f"s_memtime {s(S_PROF+2*slot,2)}")

def prof_flush(A, n, vt, vz, role_wave_off):
    A("s_waitcnt lgkmcnt(0)")
    A(f"s_lshl_b32 {s(S_TMP)}, {s(S_ROLE)}, 2", f"s_add_u32 {s(S_TMP)}, {s(S_TMP)}, {s(S_WAVE)}", f"s_lshl_b32 {s(S_TMP)}, {s(S_TMP)}, 6",
      f"s_add_u32 {s(S_TMP)}, {s(S_TMP)}, {s(S_STEP)}", f"s_lshl_b32 {s(S_TMP)}, {s(S_TMP)}, 6", f"s_add_u32 {s(S_TMP)}, {s(S_TMP)}, {PROF_OFF:#x}")
    A(f"v_mov_b32 {v(vz)}, 0")
    for k in range(n):
        A(f"v_mov_b32 {v(vt)}, {s(S_PROF+2*k)}", f"buffer_store_dword {v(vt)}, {v(vz)}, {s(WS,4)}, {s(S_TMP)} offen offset:{4*k}")

def prof_acc(A, n):
    A("s_memtime s[72:73]", "s_waitcnt lgkmcnt(0)")
    for k in range(n):
        A(f"s_sub_u32 {s(S_TMP)}, {s(S_PROF+2*k)}, s71", f"s_add_u32 s{74+k}, s{74+k}, {s(S_TMP)}")
    A(f"s_sub_u32 {s(S_TMP)}, s72, s71", f"s_add_u32 s{74+n}, s{74+n}, {s(S_TMP)}", "s_mov_b32 s71, s72" if PACCUM == 1 else "s_mov_b32 s71, 0")
    Lz = A.label("pz")
    A(f"s_cmp_lg_u32 {s(S_STEP)}, 12", f"s_cbranch_scc1 {Lz}")
    for k in range(n+1): A(f"s_mov_b32 s{74+k}, 0")
    A(f"{Lz}:")
def prof_acc_out(A, n):
    A(f"s_lshl_b32 {s(S_TMP)}, {s(S_ROLE)}, 2", f"s_add_u32 {s(S_TMP)}, {s(S_TMP)}, {s(S_WAVE)}", f"s_lshl_b32 {s(S_TMP)}, {s(S_TMP)}, 6", f"s_add_u32 {s(S_TMP)}, {s(S_TMP)}, {PROF_OFF:#x}")
    for k in range(n+1):
        A(f"v_mov_b32 v0, s{74+k}", f"buffer_store_dword v0, off, {s(WS,4)}, {s(S_TMP)} offset:{4*k}")

def emit_slots(A, slots):
    for sl in slots:
        A(sl['m']); A(sl['pre']); A(sl['valu']); A(sl['post'])

TIMG = 0
TW = 1808
MIMG = 8192
XIMG = 16384
RS = 256
XSL = 20480
A_SLEEP = 0
DIAGX = 0
DIAGY = 0
BDYN = 1
PK = 1
TAILV = 1
PFI = 0
TLS = 2
AWIN = 0
AW0 = 0
BBAL = 1
PBH = [4, 14, 5, 15, 3, 13]
PBN = 0
RM1 = 0
PFS = 0
PFW = 0
TSP = 2
VPB = 0
XEARLY = 1
XG1 = 14
XN1 = 8
TPOST = 0
BREL = 9
ROT = 0
CODEPF = 9
CPB = 5
RM2 = 0
ORD = 0
X_FIXVOX = 0
X_XSN = 14
PG1 = 10
PG2 = 0
WFI = 0
FS0 = 0
FSD = 0
B1S = 38
B2S = 47
TRN = 4
X_NOPM = 0
PFA = 3
ATOUCH = 3
VPRE = 0
BTOUCH = 0
BT0 = 1
BTA = 1
TCH0 = 14
TAHEAD = 1
TGATE = 2
XPRE = 14
XPG = 18
X_NOVOX = 0
X_NOV = 0
FPD = 5
PGAP = 30
WARM = 0
B0S = 16
LG = 40
P2W = 10
F2AT = 0
XSCR = 0
EXW = 6
TLM = 0
FROFF = 14336
F1AT = 2
FULL = 0
PB2 = 0
LDFL = 0
F1GO = 1
VOXS = 3
STAMP = 1
XS0 = 10
XSN = 28
D1 = 84
D2 = 18
F2D = 42
F2OFF = 10240
F1OFF = 12288
APW = 2
BPW = 3
F1W = 2
X_NODMA = 0
X_NOH = 0
X_NOTR = 0
X_NOCONV = 0
X_NOB1 = 0
B_SLEEP_M = 4
B_SLEEP_P = 0

def nops(n):
    out = []
    while n > 0:
        k = min(n, 16); out.append(f"s_nop {k-1}"); n -= k
    return out

def flag_ld(r, voff, soff, off):
    return f"buffer_load_dword {v(r)}, {v(voff)}, {s(WS,4)}, {s(soff)} offen offset:{off} sc1"
def flag_poll(A, regs, voff, soff, off, abort, tag, primed=False):
    Lp, Lgo = A.label(tag + "fp"), A.label(tag + "go")
    ld = lambda r: flag_ld(r, voff, soff, off)
    n = len(regs)
    if not primed:
        for r in regs: A(ld(r), f"s_nop {48 // n - 1}")
    A(f"{Lp}:")
    for r in regs:
        A(f"s_waitcnt vmcnt({n-1})", f"v_cmp_eq_u32 vcc, -1, {v(r)}", f"s_cbranch_vccz {Lgo}", ld(r))
    timeout_step(A, Lp, abort)
    A(f"{Lgo}:")

def mkslots(ms):
    return [dict(m=m, pre=[], valu=[], post=[]) for m in ms]

S_SLOW = 47
def read_mode(A, vt):
    if FULL:
        A(f"buffer_load_dword {v(vt)}, off, {s(DBG,4)}, 0 sc1", "s_waitcnt vmcnt(0)", f"v_readfirstlane_b32 {s(S_SLOW)}, {v(vt)}", f"s_cmp_ge_u32 {s(S_SLOW)}, 32", f"s_cselect_b32 {s(S_SLOW)}, 0x40000000, 0")
    else:
        A(f"s_mov_b32 {s(S_SLOW)}, 0x40000000")

def role_A(A, w, abort, profile=False):
    import prep
    WFL = [' sc1', '', ' nt', ' sc1 nt'][WFI]
    MEMR, ACC, HT = 0, 28, 56
    IDX, VMEM, VTW, VTR, VH, VX, TMP, TMP2 = range(112, 120)
    VG, VN, VL = 1, 2, 3
    ko = [(w + i) % 3 for i in range(3)] + [3, 4, 5, 6]
    lane_consts(A, VL, VG, VN)
    idx_const(A, IDX, VN, TMP)
    mem_lane_off(A, VMEM, VG, VN, TMP)
    A(f"v_lshlrev_b32 {v(VTW)}, 4, {v(VN)}", f"v_lshl_add_u32 {v(VTW)}, {v(VG)}, 2, {v(VTW)}", f"v_add_u32 {v(VTW)}, {TIMG + w*TW}, {v(VTW)}")
    A(f"v_and_b32 {v(TMP)}, 1, {v(VG)}", f"v_mul_u32_u24 {v(VTR)}, {2*TW}, {v(TMP)}",
      f"v_lshrrev_b32 {v(TMP)}, 3, {v(VN)}", f"v_lshl_add_u32 {v(VTR)}, {v(TMP)}, 7, {v(VTR)}",
      f"v_bfe_u32 {v(TMP)}, {v(VN)}, 1, 1", f"v_lshl_add_u32 {v(VTR)}, {v(TMP)}, 6, {v(VTR)}",
      f"v_lshrrev_b32 {v(TMP)}, 1, {v(VG)}", f"v_lshl_add_u32 {v(VTR)}, {v(TMP)}, 5, {v(VTR)}",
      f"v_bfe_u32 {v(TMP)}, {v(VN)}, 2, 1", f"v_lshl_add_u32 {v(VTR)}, {v(TMP)}, 4, {v(VTR)}",
      f"v_and_b32 {v(TMP)}, 1, {v(VN)}", f"v_lshl_add_u32 {v(VTR)}, {v(TMP)}, 3, {v(VTR)}")
    if TIMG: A(f"v_add_u32 {v(VTR)}, {TIMG}, {v(VTR)}")
    if w < 3:
        A(f"v_lshlrev_b32 {v(VX)}, 10, {v(VG)}",
          f"v_lshl_add_u32 {v(VX)}, {v(VN)}, {3 if w < 2 else 2}, {v(VX)}", f"v_add_u32 {v(VX)}, {XIMG + (4*w if w < 2 else 128)}, {v(VX)}")
    if w < 2:
        A(f"v_lshlrev_b32 {v(VH)}, 4, {v(VL)}")
    elif w == 2:
        A(f"v_mul_u32_u24 {v(VH)}, 1792, {v(VG)}", f"v_and_b32 {v(TMP)}, 7, {v(VN)}", f"v_lshl_add_u32 {v(VH)}, {v(TMP)}, 5, {v(VH)}",
          f"v_add_u32 {v(VH)}, {MIMG}, {v(VH)}")
    else:
        PXO, PMO = HT + 40, HT + 41
        A(f"v_lshrrev_b32 {v(TMP2)}, 3, {v(VL)}", f"v_mul_u32_u24 {v(VH)}, {RS}, {v(TMP2)}", f"v_and_b32 {v(TMP)}, 7, {v(VL)}",
          f"v_lshl_add_u32 {v(VX)}, {v(TMP)}, 4, {v(VH)}", f"v_add_u32 {v(VX)}, {XIMG}, {v(VX)}",
          f"v_lshl_add_u32 {v(VH)}, {v(TMP)}, 2, {v(VH)}", f"v_add_u32 {v(VH)}, {XIMG + 128}, {v(VH)}")
        A(f"v_and_b32 {v(TMP)}, 3, {v(VL)}", f"v_lshlrev_b32 {v(PXO)}, 3, {v(TMP)}", f"v_lshl_add_u32 {v(PXO)}, {v(TMP2)}, 5, {v(PXO)}",
          f"v_bfe_u32 {v(TMP)}, {v(VL)}, 2, 1", f"v_lshl_add_u32 {v(PXO)}, {v(TMP)}, 8, {v(PXO)}",
          f"s_lshl_b32 {s(S_TMP)}, {s(S_ROLE)}, 9", f"v_add_u32 {v(PXO)}, {s(S_TMP)}, {v(PXO)}")
        A(f"v_lshlrev_b32 {v(PMO)}, 5, {v(TMP2)}",
          f"v_bfe_u32 {v(TMP)}, {v(VL)}, 2, 1", f"v_lshl_add_u32 {v(PMO)}, {v(TMP)}, 8, {v(PMO)}",
          f"v_bfe_u32 {v(TMP)}, {v(VL)}, 1, 1", f"v_lshl_add_u32 {v(PMO)}, {v(TMP)}, 3, {v(PMO)}",
          f"s_lshr_b32 {s(S_TMP)}, {s(S_ROLE)}, 2", f"s_lshl_b32 {s(S_TMP)}, {s(S_TMP)}, 9",
          f"s_and_b32 {s(S_TMP2)}, {s(S_ROLE)}, 1", f"s_lshl_b32 {s(S_TMP2)}, {s(S_TMP2)}, 4", f"s_add_u32 {s(S_TMP)}, {s(S_TMP)}, {s(S_TMP2)}",
          f"s_bfe_u32 {s(S_TMP2)}, {s(S_ROLE)}, 0x10001", f"s_lshl_b32 {s(S_TMP2)}, {s(S_TMP2)}, 2", f"s_add_u32 {s(S_TMP)}, {s(S_TMP)}, {s(S_TMP2)}",
          f"s_add_u32 {s(S_TMP)}, {s(S_TMP)}, 8192", f"v_add_u32 {v(PMO)}, {s(S_TMP)}, {v(PMO)}")
        A(f"v_and_b32 {v(TMP)}, 1, {v(VL)}", f"v_lshl_add_u32 {v(PMO)}, {v(TMP)}, 30, {v(PMO)}")
    if w == APW:
        A(f"v_min_u32 {v(TMP2)}, 13, {v(VL)}", f"v_lshlrev_b32 {v(TMP2)}, 2, {v(TMP2)}", f"s_lshr_b32 {s(S_TMP)}, {s(S_ROLE)}, 2", f"s_lshl_b32 {s(S_TMP)}, {s(S_TMP)}, 8", f"s_add_u32 {s(S_TMP)}, {s(S_TMP)}, {F1OFF}", f"v_add_u32 {v(TMP2)}, {s(S_TMP)}, {v(TMP2)}")
    if w == 3:
        A(f"v_lshlrev_b32 {v(TMP2)}, 7, {v(VL)}", f"s_lshl_b32 {s(S_TMP)}, {s(S_ROLE)}, 2", f"s_add_u32 {s(S_TMP)}, {s(S_TMP)}, {F2OFF}", f"v_add_u32 {v(TMP2)}, {s(S_TMP)}, {v(TMP2)}",
          f"v_cmp_lt_u32 vcc, 13, {v(VL)}", f"v_mov_b32 {v(TMP)}, 0x40000000", "s_nop 0", f"v_cndmask_b32 {v(TMP2)}, {v(TMP2)}, {v(TMP)}, vcc")
    if FULL and prep.WW: prep.wait_tiles_wave(A, prep.one_matrix(A, s(S_ROLE)), abort, "A", S_TO, 4, 5)
    elif FULL: prep.wait_tiles(A, s(S_ROLE), 1, abort, "A", S_TO, 4, 5)
    A(f"v_lshlrev_b32 {v(TMP)}, 4, {v(VL)}")
    A(f"s_mul_i32 {s(S_TMP)}, {s(S_ROLE)}, {28*14336}", f"s_add_u32 {s(S_TMP)}, {s(S_TMP)}, {WA_OFF + 7*w*14336}")
    for cb in range(7):
        for p in range(7):
            f = cb*7 + p
            off = cb*14336 + ko[p]*2048
            A(f"s_add_u32 {s(S_TMP2)}, {s(S_TMP)}, {off}")
            for hi in range(2):
                A(f"buffer_load_dwordx4 {wreg(f,4,4*hi)}, {v(TMP)}, {s(WS,4)}, {s(S_TMP2)} offen offset:{1024*hi}{WFL}")
            if AWIN and f >= AW0: A(f"s_waitcnt vmcnt({AWIN})")
        if cb >= 2: A("s_waitcnt vmcnt(28)")
    A(f"s_mov_b32 {s(S_STEP)}, 0", f"s_mov_b32 {s(S_MEM)}, {MEMF_OFF:#x}", f"s_mov_b32 {s(S_MEM2)}, {MEMF_OFF+4096:#x}",
      f"s_mov_b32 {s(S_P)}, {PF_OFF:#x}", f"s_mov_b32 {s(S_X)}, {XS_OFF + 14336*(w%2):#x}", f"s_mov_b32 {s(S_TO)}, {TIMEOUT}")
    Lstep = A.label(f"A{w}step"); Lpoll = A.label(f"A{w}poll")
    def cv_wait(ahead):
        Lc, Lg = A.label("cvp"), A.label("cvg")
        A(f"s_add_u32 {s(S_TMP2)}, {s(S_P)}, {16384*ahead + FROFF}", f"v_cmp_ne_u32 vcc, 15, {v(TMP2)}", f"s_cbranch_vccz {Lg}")
        A(f"{Lc}:", f"buffer_load_dword {v(TMP2)}, off, {s(WS,4)}, {s(S_TMP2)} sc1", "s_waitcnt vmcnt(0)", f"v_cmp_ne_u32 vcc, 15, {v(TMP2)}", f"s_cbranch_vccz {Lg}", "s_sleep 1")
        timeout_step(A, Lc, abort)
        A(f"{Lg}:", f"s_add_u32 {s(S_TMP2)}, {s(S_TMP2)}, 16384", f"buffer_load_dword {v(TMP2)}, off, {s(WS,4)}, {s(S_TMP2)} sc1")
    if FULL: prep.wait_counters(A, 0, 32, abort, "A", S_TO, 4, 5)
    if w == 3: read_mode(A, 4)
    if FULL and w < 2: A(f"v_mov_b32 {v(TMP2)}, 0")
    if w == 3:
        A(f"v_lshlrev_b32 {v(HT+43)}, 7, {v(VL)}", f"s_lshl_b32 {s(S_VOX)}, {s(S_ROLE)}, {13 + BTOUCH}", f"s_add_u32 {s(S_VOX)}, {s(S_VOX)}, {VOX_OFF + 458752*TAHEAD + (65536 << BTOUCH)*PF_VOX:#x}",
          f"s_cmp_lt_u32 {s(S_ROLE)}, {max(0, (56 >> BTOUCH) - 8*PF_VOX - 16*(ATOUCH-1))}", f"s_cselect_b32 s59, {(131072 << BTOUCH)*max(0, ATOUCH-1)}, 0x40000000")
        A(f"s_cmp_lt_u32 {s(S_ROLE)}, 7", f"s_cselect_b32 s61, {ALT:#x}, 0x40000000", f"s_min_u32 {s(S_TMP)}, {s(S_ROLE)}, 6",
          f"s_lshl_b32 {s(S_TMP)}, {s(S_TMP)}, 10", f"v_add_u32 {v(HT+47)}, {s(S_TMP)}, {v(VMEM)}")
    if w < 2:
        A(f"v_lshrrev_b32 v6, 3, {v(VN)}", "v_lshlrev_b32 v7, 4, v6", f"v_and_b32 v6, 3, {v(VN)}", "v_lshl_add_u32 v7, v6, 2, v7", f"v_bfe_u32 v6, {v(VN)}, 2, 1", "v_lshl_add_u32 v7, v6, 1, v7",
          f"v_add_u32 v7, {w}, v7", "v_mul_u32_u24 v7, 896, v7", f"v_mul_u32_u24 v6, 224, {v(VG)}", "v_add_u32 v7, v7, v6")
        for j in range(14): A(f"buffer_load_dwordx4 {v(HT+4*j,4)}, v7, {s(XB,4)}, 0 offen offset:{16*j}")
        A("s_waitcnt vmcnt(0)")
        for k in range(7):
            b = HT + 8*k
            A(f"v_swap_b32 {v(b+1)}, {v(b+2)}", f"v_swap_b32 {v(b+2)}, {v(b+4)}", f"v_swap_b32 {v(b+3)}, {v(b+6)}", f"v_swap_b32 {v(b+6)}, {v(b+5)}")
    A(f"s_mov_b32 {s(S_PROF+16)}, 0")
    if STAMP: A("s_mov_b32 s58, 0")
    if STAMP and w == 3: A("s_waitcnt vmcnt(0)", "s_memrealtime s[50:51]", "s_memtime s[54:55]")
    if TLM: A("s_waitcnt vmcnt(0)", "s_memrealtime s[92:93]")
    for r in range(28): A(f"v_mov_b32 {v(ACC+r)}, 0")
    if w == 3: A("s_mov_b32 s60, 0x40000000" if FULL else f"s_mov_b32 s60, {s(S_VOX)}")
    A(f"{Lstep}:", "s_barrier")
    prof(A, 0, profile)
    Lfail, Lfail2, Lcont2 = A.label("fail"), A.label("fail2"), A.label("cont2")
    dmas = [3 + w] + ([w] if w < 3 else [])
    nd = len(dmas)
    def issue():
        o = [memload(MEMR, VMEM, ko[0])] + nops(PG1) + [memload(MEMR + 4, VMEM, ko[1])] + nops(PG1) + [memload(MEMR + 8, VMEM, ko[2])] + nops(LG - 2*PG1)
        for kb in dmas:
            o += [f"s_mov_b32 m0, {MIMG + (kb - kb % 4)*1024}", "s_nop 0", f"buffer_load_dwordx4 {v(VMEM)}, {s(WS,4)}, {s(S_MEM if kb < 4 else S_MEM2)} offen offset:{(kb%4)*1024} sc1 lds"]
        return o
    B0 = B0S
    rdm = lambda p: f"ds_read_b128 {v(MEMR+4*p,4)}, {v(VMEM)} offset:{MIMG + ko[p]*1024}"
    xld = lambda j: f"buffer_load_dwordx4 {v(HT+4*j,4)}, {v(VH)}, {s(WS,4)}, {s(S_TMP)} offen offset:{1024*(j%4)} sc1"
    A(issue())
    A(f"{Lpoll}:")
    if profile: A(f"s_add_u32 {s(S_PROF+16)}, {s(S_PROF+16)}, 256")
    A(f"s_waitcnt vmcnt({2 + nd})")
    prof(A, 1, profile)
    order = [(cb, p) for p in range(3) for cb in range(7)] + [(cb, p) for cb in range(7) for p in range(3, 7)]
    slots = mkslots([smf(ACC+4*cb, MEMR+4*p, wreg(cb*7+p), IDX) for cb, p in order])
    cmp_ = f"v_cmp_eq_u32 vcc, -1, {v(TMP)}"
    c0, c1, c2 = chk4(TMP, MEMR), chk4(TMP, MEMR + 4), chk4(TMP, MEMR + 8, False)
    for i, o in enumerate(c0 + [cmp_]): slots[i]['valu'].append(o)
    slots[4]['pre'].append(f"s_cbranch_vccnz {Lfail}")
    slots[5]['pre'].append(f"s_waitcnt vmcnt({1 + nd})")
    slots[5]['valu'].append(c1[0]); slots[6]['valu'].append(c1[1])
    slots[P2W]['pre'].append(f"s_waitcnt vmcnt({nd})")
    slots[P2W]['valu'].append(c2[0]); slots[P2W+1]['valu'].append(c2[1]); slots[P2W+2]['valu'].append(cmp_)
    slots[P2W+4]['pre'].append(f"s_cbranch_vccnz {Lfail}")
    assert P2W + 4 <= B0 and 7 <= P2W <= 13
    SACC = MEMR
    if w < 3:
        for r in range(4): slots[16 + r]['valu'].append(f"v_mov_b32 {v(SACC+r)}, 0")
    slots[B0]['pre'] += ["s_waitcnt vmcnt(0)", "s_barrier", rdm(3)]
    for p in range(4, 7): slots[B0 + p - 3]['pre'].append(rdm(p))
    for p in range(3, 7): slots[17 + p]['pre'].append(f"s_waitcnt lgkmcnt({6-p})")
    if w == 2:
        for j in range(14):
            slots[24 + j]['pre'].append(f"ds_read_b128 {v(HT+4*j,4)}, {v(VH)} offset:{256*(j//2)+16*(j%2)}")
    if w == 3 and FULL:
        slots[25]['pre'] += [f"ds_read_b128 {v(HT+48,4)}, {v(HT+47)} offset:{MIMG}", f"s_add_u32 s62, {s(S_MEM)}, s61"]
        slots[32]['pre'] += ["s_waitcnt lgkmcnt(1)", f"buffer_store_dwordx4 {v(HT+48,4)}, {v(HT+47)}, {s(WS,4)}, s62 offen sc1"]
    tch = lambda i: [f"s_add_u32 {s(S_TMP)}, s60, {'s59' if i == ATOUCH - 1 else (131072 << BTOUCH)*i}", f"buffer_load_dword {v(HT+52+i)}, {v(HT+43)}, {s(WS,4)}, {s(S_TMP)} offen sc1"]
    if w == 3 and ATOUCH:
        for i in range(ATOUCH - TPOST): slots[B0 + 1 + TSP*i]['pre'] += tch(i)
    if w < 2:
        nin = 14 - XPRE
        for jj in range(nin):
            j = XPRE + jj
            sl = B0 + 1 + (jj*XSN)//nin
            if j % 4 == 0 or jj == 0: slots[sl]['pre'].append(f"s_add_u32 {s(S_TMP)}, {s(S_X)}, {1024*(j - j % 4)}")
            slots[sl]['pre'].append(xld(j))
    def conv(cb):
        r = ACC + 4*cb
        return [f"v_add_f32 {v(r)}, {v(r)}, {v(r+1)}", f"v_add_f32 {v(r+2)}, {v(r+2)}, {v(r+3)}",
                f"v_cvt_pk_bf16_f32 {v(r)}, {v(r)}, {v(r+2)}", f"ds_write_b32 {v(VTW)}, {v(r)} offset:{256*cb}"]
    for cb in range(6):
        for i, o in enumerate(conv(cb)):
            if 26 + 4*cb + i < 49: slots[26 + 4*cb + i]['valu'].append(o)
    slots[28]['valu'].insert(0, f"v_cmp_u_f32 vcc, {v(ACC)}, {v(ACC+2)}")
    slots[30]['pre'] += [f"s_cbranch_vccnz {Lfail2}", f"{Lcont2}:"]
    TF = lambda k: MEMR + 4 + 4*k if k < 2 else ACC + 4*(k-2)
    def trread(k):
        return [f"ds_read_b64_tr_b16 {v(TF(k)+2*u,2)}, {v(VTR)} offset:{256*k + TW*u}" for u in range(2)]
    slots[41]['pre'] += ["s_waitcnt lgkmcnt(0)", "s_barrier"]
    if w < 3:
        rs = [r for k in range(3) for r in trread(k)]
        for i, r in enumerate(rs): slots[42 + (i*TRN)//6]['pre'].append(r)
    if profile and FSD:
        for k in range(5):
            if FS0 + k*FSD < 49: slots[FS0 + k*FSD]['pre'].insert(0, f"s_memtime {s(S_PROF+4+2*k,2)}")
    elif profile:
        for st, sl in ((2, 13), (3, 27), (4, 48)):
            if (PMASK >> st) & 1: slots[sl]['pre'].append(f"s_memtime {s(S_PROF+2*st,2)}")
    if TAILV == 1:
        ny = 1 + sum(1 for sl in slots[42:46] for o in sl['pre'] if o.startswith("ds_"))
        slots[46]['pre'] += [f"s_waitcnt lgkmcnt({ny})", "s_barrier"]
        if w < 3:
            slots[47]['pre'].append(trread(3)[0]); slots[48]['pre'].append(trread(3)[1])
    emit_slots(A, slots)
    c6 = conv(6); W5 = conv(5)[3]
    if TAILV == 0: A("s_waitcnt lgkmcnt(0)", "s_barrier", W5)
    if w < 3:
        sm = [smf(SACC, TF(k), v(HT+8*k, 8), IDX, True) for k in range(7)]
        if TAILV == 0:
            r3, r4 = trread(3), trread(4)
            A(sm[0], r3, r4[0], c6[0], c6[1], c6[2], c6[3], r4[1], sm[1], sm[2], "s_waitcnt lgkmcnt(3)", sm[3], "s_waitcnt lgkmcnt(0)", sm[4])
            k0 = 5
        elif TAILV == 1:
            A("s_waitcnt lgkmcnt(2)", sm[0], W5, "s_nop 2", c6, sm[1], sm[2], "s_waitcnt lgkmcnt(2)", sm[3])
            k0 = 4
        else:
            A("s_waitcnt lgkmcnt(0)", sm[0], W5, "s_nop 3", c6, sm[1], sm[2])
            k0 = 3
        A("s_waitcnt lgkmcnt(0)", "s_barrier")
        prof(A, 5, profile)
        for k in range(k0, 7): A(trread(k))
        for k in range(k0, 7):
            A(f"s_waitcnt lgkmcnt({2*(6-k)})", sm[k])
        A("s_nop 7")
        A(f"ds_write2st64_b32 {v(VX)}, {v(SACC)}, {v(SACC+1)} offset0:0 offset1:1",
          f"ds_write2st64_b32 {v(VX)}, {v(SACC+2)}, {v(SACC+3)} offset0:2 offset1:3", "s_waitcnt lgkmcnt(0)", "s_barrier")
        prof(A, 6, profile)
        prof(A, 7, profile)
    else:
        A(["s_nop 3"] if TAILV == 0 else ["s_nop 1", W5, "s_nop 3"], c6)
        A("s_waitcnt lgkmcnt(0)", "s_barrier")
        prof(A, 5, profile)
        if FULL and EXW == 7: A(f"buffer_store_dwordx4 {v(HT+48,4)}, {v(HT+47)}, {s(WS,4)}, s62 offen sc1")
        A(f"s_add_u32 s63, {s(S_P)}, {s(S_SLOW)}", "s_xor_b32 s64, s63, 0x40000000", nops(F2D - 2), f"buffer_store_dword {v(IDX)}, {v(TMP2)}, {s(WS,4)}, s64 offen")
        A("s_barrier")
        X0 = HT; XM = HT+4; MX, L = HT+8, HT+9; N0 = HT+12
        Lslow, Lnorm = A.label("slow"), A.label("norm")
        Y0 = HT + 20; RAW = HT + 28
        A(f"ds_read_b128 {v(X0,4)}, {v(VX)}", f"ds_read_b128 {v(Y0,4)}, {v(VX)} offset:2048", f"ds_read2st64_b32 {v(Y0+4,2)}, {v(VH)} offset0:0 offset1:8")
        prof(A, 6, profile)
        A("s_waitcnt lgkmcnt(1)")
        if PK: A(f"v_pk_add_f32 {v(RAW,2)}, {v(X0,2)}, {v(Y0,2)}", f"v_pk_add_f32 {v(RAW+2,2)}, {v(X0+2,2)}, {v(Y0+2,2)}")
        else:
            for j in range(4): A(f"v_add_f32 {v(RAW+j)}, {v(X0+j)}, {v(Y0+j)}")
        for j in range(2): A(f"v_exp_f32 {v(X0+j)}, {v(RAW+j)}")
        A("s_waitcnt lgkmcnt(0)", f"v_add_f32 {v(RAW+4)}, {v(Y0+4)}, {v(Y0+5)}")
        for j in range(2, 5): A(f"v_exp_f32 {v(X0+j)}, {v(RAW+j)}")
        dpps = ["quad_perm:[1,0,3,2]", "quad_perm:[2,3,0,1]", "row_half_mirror"]
        def norm_store(check):
            if PK: A(f"v_pk_add_f32 {v(MX,2)}, {v(X0,2)}, {v(X0+2,2)}")
            else: A(f"v_add_f32 {v(L)}, {v(X0)}, {v(X0+1)}", f"v_add_f32 {v(MX)}, {v(X0+2)}, {v(X0+3)}")
            A(f"v_add_f32 {v(L)}, {v(L)}, {v(MX)}", f"v_add_f32 {v(L)}, {v(L)}, {v(XM)}")
            for i, d in enumerate(dpps):
                A([f"v_mov_b32_dpp {v(XM+1)}, {v(XM)} quad_perm:[1,0,3,2] row_mask:0xf bank_mask:0xf", "s_nop 0"] if i == 0 else "s_nop 1",
                  f"v_add_f32_dpp {v(L)}, {v(L)}, {v(L)} {d} row_mask:0xf bank_mask:0xf")
            R = N0 + 4
            pm = lambda r: f"v_pk_mul_f32 {v(r,2)}, {v(r,2)}, {v(R,2)} op_sel_hi:[1,0] clamp"
            A(f"v_rcp_f32 {v(R)}, {v(L)}", f"v_subrev_u32 {v(MX)}, 0x21800000, {v(L)}" if check else "s_nop 0", pm(X0), pm(X0+2))
            if check: A(f"v_cmp_lt_u32 vcc, 0x3c000000, {v(MX)}")
            A(f"v_cvt_pk_bf16_f32 {v(N0)}, {v(X0)}, {v(X0+1)}", f"v_cvt_pk_bf16_f32 {v(N0+1)}, {v(X0+2)}, {v(X0+3)}", pm(XM), f"v_cvt_pk_bf16_f32 {v(N0+2)}, {v(XM)}, {v(XM+1)}")
            if check: A(f"s_cbranch_vccnz {Lslow}")
            A(f"buffer_store_dwordx2 {v(N0,2)}, {v(PXO)}, {s(WS,4)}, s64 offen", f"buffer_store_dword {v(N0+2)}, {v(PMO)}, {s(WS,4)}, s64 offen")
        norm_store(True)
        A(f"{Lnorm}:")
        A(f"buffer_store_dwordx2 {v(N0,2)}, {v(PXO)}, {s(WS,4)}, s63 offen sc1", f"buffer_store_dword {v(N0+2)}, {v(PMO)}, {s(WS,4)}, s63 offen sc1",
          f"buffer_store_dword {v(IDX)}, {v(TMP2)}, {s(WS,4)}, s63 offen sc1")
        prof(A, 7, profile)
    if profile and PACCUM: prof_acc(A, 8)
    elif profile:
        prof_flush(A, 9, TMP, MEMR, 0)
        A(f"s_mov_b32 {s(S_PROF+16)}, 0")
    zs = [f"v_mov_b32 {v(ACC+r)}, 0" for r in range(28)]
    if TLM and w == 3:
        Lt = A.label("tl")
        A(f"s_lshl_b32 {s(S_TMP)}, {s(S_ROLE)}, {TLS}", f"s_cmp_eq_u32 {s(S_ROLE)}, 15", f"s_cselect_b32 {s(S_TMP)}, 62, {s(S_TMP)}", f"s_cmp_lg_u32 {s(S_STEP)}, {s(S_TMP)}", f"s_cbranch_scc1 {Lt}", "s_memrealtime s[94:95]", f"{Lt}:")
    if not XEARLY:
        A("s_barrier", zs)
        if w < 2:
            if FULL: cv_wait(1)
            for j in range(min(XPRE, X_XSN)):
                if j % 4 == 0: A(f"s_add_u32 {s(S_TMP)}, {s(S_X)}, {28672 + 1024*j}")
                A(xld(j), nops(XPG))
    elif w < 2:
        if FULL: cv_wait(1)
        el = 0
        for j in range(14):
            if j % 4 == 0: A(f"s_add_u32 {s(S_TMP)}, {s(S_X)}, {28672 + 1024*j}")
            A(xld(j))
            gap = XG1 if j < XN1 else XPG
            if j == 13: gap = 0
            nz = min(len(zs), gap) if el >= 70 else 0
            A(zs[:nz], nops(gap - nz)); zs = zs[nz:]
            el += gap + 2
        A(zs)
    elif w == 2: A(nops(70), zs)
    else: A(zs)
    if w == 3:
        if FULL: A(f"s_add_u32 {s(S_TMP)}, {s(S_P)}, {16384*(TAHEAD+1) + FROFF}", f"buffer_load_dword {v(TMP)}, off, {s(WS,4)}, {s(S_TMP)} sc1")
        for i in range(ATOUCH - TPOST, ATOUCH): A(tch(i))
        A(f"s_add_u32 s60, {s(S_VOX)}, 458752")
        if FULL:
            A(f"s_waitcnt vmcnt({TPOST})",
              f"v_readfirstlane_b32 {s(S_TMP)}, {v(TMP)}", f"s_cmp_eq_u32 {s(S_TMP)}, 15", "s_cselect_b32 s60, s60, 0x40000000")
        if FULL and EXW == 5:
            A(f"ds_read_b128 {v(HT+48,4)}, {v(HT+47)} offset:{MIMG}", f"s_add_u32 {s(S_TMP)}, {s(S_MEM)}, s61", "s_waitcnt lgkmcnt(0)",
              f"buffer_store_dwordx4 {v(HT+48,4)}, {v(HT+47)}, {s(WS,4)}, {s(S_TMP)} offen sc1")
    if w == APW:
        if TGATE != 1: flag_poll(A, list(range(8, 8 + FPD)), TMP2, S_P, 0, abort, "A")
        A(nops(D1))
    A(f"s_add_u32 {s(S_MEM)}, {s(S_MEM)}, 8192", f"s_add_u32 {s(S_MEM2)}, {s(S_MEM2)}, 8192", f"s_add_u32 {s(S_P)}, {s(S_P)}, 16384",
      f"s_add_u32 {s(S_X)}, {s(S_X)}, {32*896}", f"s_add_u32 {s(S_VOX)}, {s(S_VOX)}, 458752",
      f"s_add_u32 {s(S_STEP)}, {s(S_STEP)}, 1", f"s_cmp_lt_u32 {s(S_STEP)}, {NSTEPS}", f"s_cbranch_scc1 {Lstep}")
    if profile and PACCUM: prof_acc_out(A, 8)
    if STAMP: A("v_mov_b32 v0, s58", "s_mov_b64 exec, 1", f"buffer_atomic_add v0, off, {s(DBG,4)}, 0 offset:52", "s_mov_b64 exec, -1")
    if STAMP and w == 3:
        A("s_memrealtime s[52:53]", "s_memtime s[56:57]", "s_waitcnt lgkmcnt(0)", "s_sub_u32 s52, s52, s50", "s_sub_u32 s56, s56, s54", "v_mov_b32 v0, s52", "v_mov_b32 v1, s56",
          f"s_lshl_b32 {s(S_TMP)}, {s(S_ROLE)}, {10 if FULL else 3}", (f"buffer_store_dword v0, off, {s(DBG,4)}, {s(S_TMP)} offset:60" if FULL else f"buffer_store_dwordx2 v[0:1], off, {s(DBG,4)}, {s(S_TMP)} offset:64"))
    A("s_endpgm")
    A(f"{Lfail2}:")
    for p in range(3, 7): A(chk4(TMP, MEMR + 4*p, p == 3))
    A(cmp_, f"s_cbranch_vccz {Lcont2}", "s_waitcnt lgkmcnt(0)", "s_barrier")
    if STAMP: A(f"s_add_u32 s58, s58, 0x10000")
    A(f"{Lfail}:", issue(), f"s_sub_u32 {s(S_TO)}, {s(S_TO)}, 1", f"s_cbranch_scc1 {abort}")
    if STAMP: A(f"s_add_u32 s58, s58, 1")
    for r in range(28): A(f"v_mov_b32 {v(ACC+r)}, 0")
    A(f"s_branch {Lpoll}")
    if w == 3:
        A(f"{Lslow}:")
        A(f"v_max3_f32 {v(MX)}, {v(RAW)}, {v(RAW+1)}, {v(RAW+2)}", f"v_max3_f32 {v(MX)}, {v(MX)}, {v(RAW+3)}, {v(RAW+4)}")
        for d in dpps: A("s_nop 1", f"v_max_f32_dpp {v(MX)}, {v(MX)}, {v(MX)} {d} row_mask:0xf bank_mask:0xf")
        for j in range(5): A(f"v_sub_f32 {v(X0+j)}, {v(RAW+j)}, {v(MX)}")
        for j in range(5): A(f"v_exp_f32 {v(X0+j)}, {v(X0+j)}")
        A("s_nop 0")
        norm_store(False)
        A(f"s_branch {Lnorm}")

BW7 = 0
BMIMG = 57344
BVIMG = 65536
DB = 60

def role_B(A, w, abort, profile=False):
    import prep
    WFL = [' sc1', '', ' nt', ' sc1 nt'][WFI]
    pv = w < 2
    c, M = w % 2, w // 2
    NR = 6 if pv else 8
    WV0 = 256 - 8*(7*NR - 32)
    wrg = lambda f, n=8, sub=0: a_(8*f + sub, n) if f < 32 else v(WV0 + 8*(f-32) + sub, n)
    MEMR, ACC, VP = 0, 40, 48
    IDX, VL16, TMP, TMP2, VLV, VF2 = range(56, 62)
    if pv:
        VP2, VOX, SB, AC7, PACC, VST, R0 = 64, 72, 136, 152, 168, 164, 165
        assert 166 <= WV0
    VG, VN, VL = 1, 2, 3
    own = [2*w, 2*w+1] if w < 3 else [6]
    lane_consts(A, VL, VG, VN)
    idx_const(A, IDX, VN, TMP)
    A(f"v_lshlrev_b32 {v(VL16)}, 4, {v(VL)}", f"v_add_u32 {v(VLV)}, {BVIMG + 2048*c}, {v(VL16)}")
    A(f"s_sub_u32 {s(S_TMP)}, {s(S_ROLE)}, 16")
    if pv:
        A(f"v_lshlrev_b32 {v(VF2)}, 2, {v(VN)}", f"s_lshl_b32 {s(S_TMP2)}, {s(S_TMP)}, 7", f"s_add_u32 {s(S_TMP2)}, {s(S_TMP2)}, {F2OFF - 8192}", f"v_add_u32 {v(VF2)}, {s(S_TMP2)}, {v(VF2)}")
        VF1 = 166
        A(f"v_lshlrev_b32 {v(VF1)}, 8, {v(VL)}", f"s_lshl_b32 {s(S_TMP2)}, {s(S_TMP)}, 2", f"s_add_u32 {s(S_TMP2)}, {s(S_TMP2)}, {F1OFF - 8192}", f"v_add_u32 {v(VF1)}, {s(S_TMP2)}, {v(VF1)}",
          f"v_cmp_lt_u32 vcc, 3, {v(VL)}", f"v_mov_b32 {v(TMP)}, 0x40000000", "s_nop 0", f"v_cndmask_b32 {v(VF1)}, {v(VF1)}, {v(TMP)}, vcc")
        A(f"v_lshlrev_b32 {v(VST)}, 6, {v(VG)}", f"v_and_b32 {v(TMP)}, 1, {v(VN)}", f"v_lshl_add_u32 {v(VST)}, {v(TMP)}, 5, {v(VST)}",
          f"v_bfe_u32 {v(TMP)}, {v(VN)}, 1, 1", f"v_lshl_add_u32 {v(VST)}, {v(TMP)}, 4, {v(VST)}", f"v_lshrrev_b32 {v(TMP)}, 2, {v(VN)}", f"v_lshl_add_u32 {v(VST)}, {v(TMP)}, 2, {v(VST)}")
    A(f"s_mul_i32 {s(S_VOX)}, {s(S_TMP)}, {16*1024}",
      f"s_lshl_b32 {s(S_MEMN)}, {s(S_TMP)}, 8", f"s_add_u32 {s(S_MEMN)}, {s(S_MEMN)}, {MEMF_OFF + 8192 + 256*14*c:#x}",
      f"s_mul_i32 {s(S_TMP)}, {s(S_TMP)}, {14336}", f"s_add_u32 {s(S_TMP)}, {s(S_TMP)}, {WB_OFF + (8*M*28 + 14*c)*14336:#x}",
      f"s_add_u32 {s(S_VOX)}, {s(S_VOX)}, {VOX_OFF + 16384*14*c:#x}")
    def unit_loads(u):
        for kb in range(7):
            A(f"s_add_u32 {s(S_TMP2)}, {s(S_TMP)}, {u*28*14336 + kb*2048}")
            if u >= NR: A(f"s_mov_b32 m0, {BW7 + (2*w + u - 6)*14336 + kb*2048}", "s_nop 0")
            for hi in range(2):
                if u < NR: A(f"buffer_load_dwordx4 {wrg(u*7+kb,4,4*hi)}, {v(VL16)}, {s(WS,4)}, {s(S_TMP2)} offen offset:{1024*hi}{WFL}")
                else: A(f"buffer_load_dwordx4 {v(VL16)}, {s(WS,4)}, {s(S_TMP2)} offen offset:{1024*hi}{WFL} lds")
    if FULL and BDYN:
        Lw, Lc, Lg, Ld = [A.label("bd" + x) for x in "wcgd"]
        A(f"v_mov_b32 v5, v{234 + M}", "v_mov_b32 v6, v237", "v_and_b32 v7, 31, v0", "v_lshlrev_b32 v7, 2, v7",
          f"s_cmp_ge_u32 {s(S_ROLE)}, 23", f"s_cselect_b32 s60, {2*c + 1}, {2*c}", "s_mov_b32 s61, 0xff", "s_mov_b32 s62, 64", f"s_mov_b32 s63, {FLAGP_OFF + 2048*(2 + M):#x}")
        A(f"{Lw}:", "s_sub_u32 s62, s62, 1", f"s_cbranch_scc1 {Lc}",
          f"buffer_load_dword v4, v6, {s(WS,4)}, s63 offen sc1", "s_waitcnt vmcnt(0)", "v_cmp_eq_u32 vcc, v4, v5", "s_nop 1", "s_lshr_b64 s[66:67], vcc, s60", "s_lshr_b64 s[68:69], s[66:67], 4",
          "s_or_b64 s[66:67], s[66:67], s[68:69]", f"s_branch {Lg}")
        A(f"{Lc}:", f"buffer_load_dword v4, v7, {s(DBG,4)}, 0 offen offset:{prep.CNT0} sc1", "s_waitcnt vmcnt(0)", "v_cmp_gt_u32 vcc, 8, v4", "s_mov_b64 s[66:67], 0", f"s_cbranch_vccz {Lg}", "s_sleep 30")
        timeout_step(A, Lc, abort)
        A(f"{Lg}:", "s_mov_b32 s70, s61")
        for u in range(8):
            Ln = A.label("bu")
            A(f"s_bitcmp0_b32 s61, {u}", f"s_cbranch_scc1 {Ln}", f"s_bitcmp1_b64 s[66:67], {8*u}", f"s_cbranch_scc1 {Ln}", f"s_bitset0_b32 s61, {u}")
            unit_loads(u)
            A("s_waitcnt vmcnt(28)", f"{Ln}:")
        A("s_cmp_eq_u32 s61, 0", f"s_cbranch_scc1 {Ld}", "s_cmp_lg_u32 s61, s70", f"s_cbranch_scc1 {Lw}", f"s_sleep {prep.CSLEEP}", f"s_branch {Lw}", f"{Ld}:")
    else:
        def bsetup(a, b):
            A(f"s_mov_b32 s{a}, {2 + M}", f"s_cmp_ge_u32 {s(S_ROLE)}, 23", f"s_cselect_b32 s{b}, {2*c + 1}, {2*c}", "s_mov_b32 exec_lo, 0x11111111", "s_mov_b32 exec_hi, 0x11111111", f"s_lshl_b64 exec, exec, s{b}")
        if FULL: prep.wait_tiles_wave(A, bsetup, abort, "B", S_TO, 4, 5)
        for u in range(8):
            unit_loads(u)
            A("s_waitcnt vmcnt(28)")
    A("s_waitcnt vmcnt(0)")
    if FULL: prep.wait_counters(A, 0, 32, abort, "B", S_TO, 4, 5)
    if pv: read_mode(A, 4)
    if DIAGX:
        Lz = A.label("dg")
        A(f"{Lz}:", "s_memrealtime s[76:77]", "s_waitcnt lgkmcnt(0)", "s_sub_u32 s76, s76, s90", f"s_cmp_lt_u32 s76, {DIAGX}", f"s_cbranch_scc1 {Lz}")
    A(f"s_mov_b32 {s(S_STEP)}, 0", f"s_mov_b32 {s(S_MEM)}, {MEMF_OFF:#x}", f"s_mov_b32 {s(S_MEM2)}, {MEMF_OFF+4096:#x}",
      f"s_mov_b32 {s(S_P)}, {PF_OFF:#x}", f"s_mov_b32 {s(S_X)}, {PF_OFF + 4096:#x}", f"s_mov_b32 {s(S_P2)}, {PF_OFF + 8192:#x}", f"s_mov_b32 {s(S_TO)}, {TIMEOUT}")
    S_EM, S_FR, S_ODD = 64, 65, 66
    A(f"s_mov_b32 {s(S_FR)}, {PF_OFF + FROFF:#x}", f"s_mov_b32 {s(S_ODD)}, 0xaaaaaaaa", f"s_mov_b32 {s(S_ODD+1)}, 0xaaaaaaaa")
    A("s_waitcnt vmcnt(0) lgkmcnt(0)")
    if TLM: A("s_memrealtime s[92:93]")
    A(f"s_mov_b32 {s(S_PROF+10)}, 0")
    if STAMP: A("s_mov_b32 s58, 0", "s_mov_b32 s59, 0")
    if STAMP and w == 0: A("s_memtime s[54:55]")
    Lstep, Lpoll, Lok2 = [A.label(f"B{w}{x}") for x in ("step", "poll", "ok2")]
    mreg = lambda kb: MEMR + 4*kb
    mld = lambda kb: memload(mreg(kb), VL16, kb)
    if pv:
        voxld = lambda hh: f"buffer_load_dwordx4 {v(VOX + 4*hh, 4)}, {v(VL16)}, {s(WS,4)}, {s(S_TMP)} offen offset:{1024*(hh%4)} sc1"
        def bcv(ahead):
            if not FULL: return
            Lc, Lg = A.label("bcv"), A.label("bcg")
            A(f"v_cmp_ne_u32 vcc, 15, {v(TMP2)}", f"s_add_u32 {s(S_TMP2)}, {s(S_FR)}, {16384*ahead}", f"s_cbranch_vccz {Lg}")
            A(f"{Lc}:", f"buffer_load_dword {v(TMP2)}, off, {s(WS,4)}, {s(S_TMP2)} sc1", "s_waitcnt vmcnt(0)", f"v_cmp_ne_u32 vcc, 15, {v(TMP2)}", f"s_cbranch_vccz {Lg}", "s_sleep 1")
            timeout_step(A, Lc, abort)
            A(f"{Lg}:")
        def voxpre(add):
            if VPRE: bcv(1 if add else 0)
            for hh in range(VPRE):
                if hh % 4 == 0: A(f"s_add_u32 {s(S_TMP)}, {s(S_VOX)}, {add + 1024*hh}")
                A(voxld(hh))
        A(f"v_mov_b32 {v(TMP2)}, 0")
        voxpre(0)
    else:
        A(f"v_lshlrev_b32 {v(VF2)}, 3, {v(VL16)}", f"v_mov_b32 {v(TMP2)}, 0")
        A(f"s_sub_u32 {s(S_TMP)}, {s(S_ROLE)}, 16", f"s_cmp_lt_u32 {s(S_TMP)}, 7", f"s_cselect_b32 s70, {ALT:#x}, 0x40000000", f"s_min_u32 {s(S_TMP)}, {s(S_TMP)}, 6",
          f"s_lshl_b32 {s(S_TMP)}, {s(S_TMP)}, 10", f"v_add_u32 {v(32)}, {s(S_TMP)}, {v(VL16)}")
    A(f"s_branch {Lpoll}", f"{Lstep}:", nops(DB))
    A(f"{Lpoll}:")
    for kb in own:
        A(f"s_mov_b32 m0, {BMIMG + (kb - kb % 4)*1024}", "s_nop 0", f"buffer_load_dwordx4 {v(VL16)}, {s(WS,4)}, {s(S_MEM if kb < 4 else S_MEM2)} offen offset:{(kb%4)*1024} sc1 lds")
    for r in range(8): A(f"v_mov_b32 {v(ACC+r)}, 0")
    if pv:
        SU = ([0], [2, 3, 1])[w] if BBAL else [2*w, 2*w+1]
        stq = [(8 + i, kb) for kb in range(7) for i in range(len(SU))]
        rd = lambda n: [f"ds_read_b128 {v(SB + 8*(n % 2) + 4*hi, 4)}, {v(VL16)} offset:{BW7 + SU[stq[n][0] - 8]*14336 + stq[n][1]*2048 + hi*1024}" for hi in range(2)]
        for j in range(4*len(SU)): A(f"v_mov_b32 {v(AC7+j)}, 0")
        for j in range(4): A(f"v_mov_b32 {v(PACC+j)}, 0")
        A(rd(0), rd(1))
        if not VPRE: bcv(0)
    A("s_waitcnt vmcnt(0)", "s_barrier")
    if PACCUM: prof(A, 6, profile)
    korder = list(range(7))
    for kb in korder: A(f"ds_read_b128 {v(mreg(kb),4)}, {v(VL16)} offset:{BMIMG + kb*1024}")
    if not PB2: prof(A, 1, profile)
    cv = lambda r, u: [f"v_add_f32 {v(r)}, {v(r)}, {v(r+1)}", f"v_add_f32 {v(r+2)}, {v(r+2)}, {v(r+3)}", f"v_cvt_pk_bf16_f32 {v(VP+u)}, {v(r)}, {v(r+2)}"]
    ms, ustart = [], []
    if pv:
        reg = [(u, kb) for u in range(6) for kb in korder]
        per = 42 // len(stq)
        seq = []
        for i, x in enumerate(reg):
            seq.append(x)
            if i % per == per - 1 - (per > 3): seq.append(stq[i // per])
    else:
        seq = [(u, kb) for u in range(8) for kb in korder]
    nst = 0
    for (u, kb) in seq:
        if u < NR: ms.append(smf(ACC + 4*(u % 2), mreg(kb), wrg(u*7+kb), IDX))
        else:
            ms.append(smf(AC7 + 4*(u-8), mreg(kb), v(SB + 8*(nst % 2), 8), IDX)); nst += 1
    slots = mkslots(ms)
    Lretry, Lcont = A.label("Bretry"), A.label("Bcont")
    last = {u: max(i for i, x in enumerate(seq) if x[0] == u) for u in range(NR)}
    first = {u: min(i for i, x in enumerate(seq) if x[0] == u) for u in range(NR)}
    tail = []
    for u in range(NR):
        r = ACC + 4*(u % 2)
        ops = cv(r, u) + ([f"v_mov_b32 {v(r+j)}, 0" for j in range(4)] if u + 2 < NR else [])
        st = last[u] + 2
        if st + 3 > len(slots): tail += ops; continue
        lim = first[u+2] - 2 if u + 2 < NR else len(slots) - 1
        for i, o in enumerate(ops): slots[min(st + i, lim)]['valu'].append(o)
    if pv:
        sts = [i for i, x in enumerate(seq) if x[0] >= 8]
        NS, NSL = len(sts), len(slots)
        for n, i in enumerate(sts):
            if n + 2 < NS: slots[i+1]['pre'] += rd(n+2)
            if n >= 2: slots[i-1]['pre'].append(f"s_waitcnt lgkmcnt({2 if n + 1 < NS else 0})")
        FR_ = list(range(28, 28 + FPD))
        fl0 = NSL - 1 - 3*(FPD - 1)
        def place(lo, ops):
            while lo < NSL - 1 and len(slots[lo]['pre']) + len(ops) > 2: lo += 1
            slots[lo]['pre'] += ops
            return lo
        span = (fl0 - 3 if w == 0 else NSL - 6) - 9
        prevsl = 0
        for hh in range(VPRE, 0 if X_NOVOX else 16):
            sl = max(prevsl + 1, 9 + (span*(hh - VPRE)) // (16 - VPRE))
            ops = ([f"s_add_u32 {s(S_TMP)}, {s(S_VOX)}, {1024*hh}"] if hh % 4 == 0 else []) + [voxld(hh)]
            prevsl = place(sl, ops)
        for i, su in enumerate(SU):
            r = AC7 + 4*i
            if su // 2 == w: tail += cv(r, 6 + su % 2)
            else: tail += cv(r, 0)[:2] + [f"v_cvt_pk_bf16_f32 {v(r)}, {v(r)}, {v(r+2)}", f"ds_write_b32 {v(VLV)}, {v(r)} offset:2048", "s_waitcnt lgkmcnt(0)"]
        if FULL: place(prevsl + 1 if w else 30, [f"s_add_u32 {s(S_TMP2)}, {s(S_FR)}, 16384", f"buffer_load_dword {v(TMP2)}, off, {s(WS,4)}, {s(S_TMP2)} sc1"])
        for i, r in enumerate(FR_):
            if w == 0: slots[fl0 + 3*i]['pre'].append(flag_ld(r, VF2, S_P2, 0))
        place(20, [f"s_add_u32 s60, {s(S_MEMN)}, {s(S_SLOW)}"]); place(22, [f"s_add_u32 s61, {s(S_P2)}, {s(S_SLOW)}"]); place(26, ["s_xor_b32 s62, s60, 0x40000000"]); place(28, ["s_xor_b32 s63, s61, 0x40000000"])
    if not pv and BTOUCH:
        if FULL:
            slots[BT0]['pre'] += [f"v_readfirstlane_b32 {s(S_TMP2)}, {v(TMP2)}", f"s_add_u32 {s(S_TMP)}, {s(S_VOX)}, {458752*BTA + 8192}", f"s_cmp_eq_u32 {s(S_TMP2)}, 15", f"s_cselect_b32 {s(S_TMP)}, {s(S_TMP)}, 0x40000000",
                                  f"s_add_u32 {s(S_TMP2)}, {s(S_FR)}, {16384*(BTA+1)}", f"buffer_load_dword {v(TMP2)}, off, {s(WS,4)}, {s(S_TMP2)} sc1"]
        else: slots[BT0]['pre'].append(f"s_add_u32 {s(S_TMP)}, {s(S_VOX)}, {458752*BTA + 8192}")
        slots[BT0]['pre'].append(f"buffer_load_dword {v(62)}, {v(VF2)}, {s(WS,4)}, {s(S_TMP)} offen sc1")
    if FULL and w == EXW:
        A(f"ds_read_b128 {v(28,4)}, {v(32)} offset:{BMIMG}", f"s_add_u32 {s(S_EM)}, {s(S_MEM)}, s70")
        slots[3]['pre'].append(f"buffer_store_dwordx4 {v(28,4)}, {v(32)}, {s(WS,4)}, {s(S_EM)} offen sc1")
    where = [i for i, sl in enumerate(slots) if any(o.startswith(f"v_cvt_pk_bf16_f32 {v(VP)},") for o in sl['valu'])][0]
    slots[where]['valu'].insert(0, f"v_cmp_u_f32 vcc, {v(ACC)}, {v(ACC+2)}")
    slots[where+2]['pre'] += [f"s_cbranch_vccnz {Lretry}", f"{Lcont}:"]
    seen = 0
    A("s_waitcnt lgkmcnt(6)")
    for i, (u, kb) in enumerate(seq[:12]):
        nxt = seq[i+1]
        if nxt[0] == 0 and nxt[1] > seen:
            seen = nxt[1]
            extra = sum(1 for sl in slots[:i+1] for o in sl['pre'] if o.startswith("ds_read"))
            slots[i]['pre'].append(f"s_waitcnt lgkmcnt({6 - seen + extra})")
    if profile and FSD:
        for k in range(5):
            if FS0 + k*FSD < len(slots): slots[FS0 + k*FSD]['pre'].insert(0, f"s_memtime {s(S_PROF+4+2*k,2)}")
    if X_NOV:
        for sl in slots: sl['m'] = ""
    emit_slots(A, slots)
    if PACCUM: prof(A, 7, profile)
    A("s_nop 7", tail)
    if not pv:
        A(f"ds_write_b128 {v(VLV)}, {v(VP,4)}", f"ds_write_b128 {v(VLV)}, {v(VP+4,4)} offset:1024", "s_waitcnt lgkmcnt(0)")
    if not PB2: prof(A, 2, profile)
    if not pv:
        A("s_barrier", "s_barrier")
    else:
        vprd = [f"ds_read_b128 {v(VP2,4)}, {v(VLV)}", f"ds_read_b128 {v(VP2+4,4)}, {v(VLV)} offset:1024"] + ([f"ds_read_b32 {v(VP+7)}, {v(VLV)} offset:4096"] if BBAL and w == 0 else [])
        if w == 0:
            flag_poll(A, FR_, VF2, S_P2, 0, abort, "B", primed=True)
            A(f"buffer_store_dword {v(IDX)}, {v(VF1)}, {s(WS,4)}, s63 offen")
            A(nops(D2))
        else: A("s_barrier")
        prof(A, 0, profile)
        porder = [(c*4 + i) % 8 for i in range(8)] + [8, 9]
        pld = lambda k: f"buffer_load_dwordx4 {v(4*k,4)}, {v(VL16)}, {s(WS,4)}, {s([S_P, S_X, S_P2][k//4])} offen offset:{1024*(k%4)} sc1"
        bop = lambda k: v(VOX + 8*k, 8) if k < 8 else v(VP if k == 8 else VP2, 8)
        Lpp, Lbad = A.label("pp"), A.label("bad")
        for i, k in enumerate(porder):
            A(pld(k))
            if w == 0 and i == BREL: A("s_barrier")
        A(vprd)
        A(f"{Lpp}:")
        if profile and not FSD: A(f"s_add_u32 {s(S_PROF+10)}, {s(S_PROF+10)}, 1")
        A("s_waitcnt lgkmcnt(0)")
        for i, k in enumerate(porder):
            A(f"s_waitcnt vmcnt({9-i})")
            if i == 0: prof(A, 3, profile)
            if i == 9 and PB2: prof(A, 1, profile)
            A(smf(PACC, 4*k, bop(k), IDX))
        Lgood = A.label("good")
        a, b = PACC, PACC+2
        A(f"s_mov_b64 vcc, {s(S_ODD,2)}", "s_nop 6")
        A(f"v_add_f32 {v(a)}, {v(a)}, {v(a+1)}", f"v_add_f32 {v(b)}, {v(b)}, {v(b+1)}", f"v_cmp_u_f32 {s(68,2)}, {v(a)}, {v(b)}",
          f"v_cndmask_b32_dpp {v(b+1)}, {v(a)}, {v(b)}, vcc quad_perm:[1,0,3,2] row_mask:0xf bank_mask:0xf", "s_not_b64 vcc, vcc",
          f"v_cndmask_b32_dpp {v(a+1)}, {v(b)}, {v(a)}, vcc quad_perm:[1,0,3,2] row_mask:0xf bank_mask:0xf",
          f"s_cmp_lg_u64 {s(68,2)}, 0", f"v_cvt_pk_bf16_f32 {v(R0)}, {v(a+1)}, {v(b+1)}", f"s_cbranch_scc1 {Lbad}", f"{Lgood}:",
          f"buffer_store_dword {v(R0)}, {v(VST)}, {s(WS,4)}, s62 offen")
        A(f"buffer_store_dword {v(R0)}, {v(VST)}, {s(WS,4)}, s60 offen sc1", f"buffer_store_dword {v(IDX)}, {v(VF1)}, {s(WS,4)}, s61 offen sc1" if w == 0 else "")
        if FULL:
            Lq = A.label("Bq")
            A(f"s_add_u32 {s(S_EM)}, {s(S_MEMN)}, {ALT:#x}", f"s_cmp_lg_u32 {s(S_STEP)}, {NSTEPS-1}", f"s_cbranch_scc1 {Lq}", f"buffer_store_dword {v(R0)}, {v(VST)}, {s(WS,4)}, {s(S_EM)} offen sc1", f"{Lq}:")
        prof(A, 4, profile)
        A("s_barrier")
        voxpre(458752)
    if profile and PACCUM: prof_acc(A, 8)
    elif profile:
        prof_flush(A, 6, TMP, TMP2, 0)
        A(f"s_mov_b32 {s(S_PROF+10)}, 0")
    A(f"s_add_u32 {s(S_MEM)}, {s(S_MEM)}, 8192", f"s_add_u32 {s(S_MEM2)}, {s(S_MEM2)}, 8192", f"s_add_u32 {s(S_MEMN)}, {s(S_MEMN)}, 8192",
      f"s_add_u32 {s(S_P)}, {s(S_P)}, 16384", f"s_add_u32 {s(S_P2)}, {s(S_P2)}, 16384", f"s_add_u32 {s(S_X)}, {s(S_X)}, 16384", f"s_add_u32 {s(S_VOX)}, {s(S_VOX)}, {0 if X_FIXVOX else 28*16*1024}",
      f"s_add_u32 {s(S_FR)}, {s(S_FR)}, 16384",
      f"s_add_u32 {s(S_STEP)}, {s(S_STEP)}, 1", f"s_cmp_lt_u32 {s(S_STEP)}, {NSTEPS}", f"s_cbranch_scc1 {Lstep}")
    if profile and PACCUM: prof_acc_out(A, 8)
    if STAMP: A("v_mov_b32 v0, s58", "v_mov_b32 v1, s59", "s_mov_b64 exec, 1", f"buffer_atomic_add v0, off, {s(DBG,4)}, 0 offset:56", f"buffer_atomic_add v1, off, {s(DBG,4)}, 0 offset:48", "s_mov_b64 exec, -1")
    if STAMP and w == 0 and not FULL:
        A("s_memtime s[56:57]", "s_waitcnt lgkmcnt(0)", "s_sub_u32 s56, s56, s54", "v_mov_b32 v1, s56",
          f"s_lshl_b32 {s(S_TMP)}, {s(S_ROLE)}, 2", f"buffer_store_dword v1, off, {s(DBG,4)}, {s(S_TMP)} offset:128")
    A("s_endpgm")
    A(f"{Lretry}:")
    for kb in range(7): A(chk4(TMP, mreg(kb), kb == 0))
    A(f"v_cmp_eq_u32 vcc, -1, {v(TMP)}", f"s_cbranch_vccz {Lcont}", "s_waitcnt lgkmcnt(0)", "s_barrier")
    if STAMP: A("s_add_u32 s58, s58, 1")
    timeout_step(A, Lpoll, abort)
    if pv:
        A(f"{Lbad}:")
        for k in range(10): A(chk4(TMP, 4*k, k == 0))
        A(f"v_min_u32 {v(R0)}, -2, {v(R0)}", f"v_cmp_eq_u32 vcc, -1, {v(TMP)}", f"s_cbranch_vccz {Lgood}")
        if STAMP: A("s_add_u32 s59, s59, 1")
        for k in porder: A(pld(k))
        for r in range(4): A(f"v_mov_b32 {v(PACC+r)}, 0")
        timeout_step(A, Lpp, abort)

def role_PF(A, abort):
    import prep
    WFL = [' sc1', '', ' nt', ' sc1 nt'][WFI]
    AHEAD = PFA
    A("; ---------------- prefetcher")
    if FULL:
        prep.wait_tiles(A, 16, 16, abort, "P", S_TO, 4, 5)
    A("v_and_b32 v3, 63, v0", "v_lshlrev_b32 v1, 7, v3", "v_mov_b32 v2, 0", "v_mov_b32 v12, 0")
    A(f"s_sub_u32 {s(S_TMP2)}, {s(S_ROLE)}, 30", f"s_lshl_b32 {s(S_TMP2)}, {s(S_TMP2)}, 2", f"s_add_u32 {s(S_TMP2)}, {s(S_TMP2)}, {s(S_WAVE)}")
    A(f"s_lshl_b32 {s(S_TMP2)}, {s(S_TMP2)}, 13")
    A(f"s_mov_b32 {s(S_STEP)}, 0", f"s_mov_b32 {s(S_TO)}, {TIMEOUT}")
    if FULL:
        for hd in PBH[:PBN]:
            A(f"s_add_u32 {s(S_TMP)}, {s(S_TMP2)}, {WB_OFF + hd*28*14336:#x}")
            for i in range(7):
                if i == 6: A(f"s_cmp_eq_u32 {s(S_TMP2)}, 0", f"s_cselect_b32 {s(S_TMP)}, {s(S_TMP)}, 0x40000000")
                A(f"buffer_load_dword v{16+i}, v1, {s(WS,4)}, {s(S_TMP)} offen sc1", f"s_add_u32 {s(S_TMP)}, {s(S_TMP)}, 65536")
        prep.wait_counters(A, 0, 32, abort, "P", S_TO, 4, 5, sleep=30)
        A(f"s_mov_b32 {s(S_P)}, {PF_OFF + FROFF:#x}")
    A(f"s_add_u32 {s(S_X)}, {s(S_TMP2)}, {XS_OFF:#x}", f"s_mov_b32 {s(S_P2)}, 28672")
    L1, L2 = A.label("pf1"), A.label("pf2")
    A(f"s_cmp_lt_u32 {s(S_TMP2)}, {4*8192}", f"s_cbranch_scc1 {L2}")
    A(f"s_mov_b32 {s(S_X)}, {MEMF_OFF + 8192:#x}", f"s_mov_b32 {s(S_P2)}, 8192")
    A(f"s_cmp_eq_u32 {s(S_TMP2)}, {4*8192}", f"s_cbranch_scc1 {L2}")
    A(f"s_and_b32 {s(S_X)}, {s(S_TMP2)}, 8192", f"s_add_u32 {s(S_X)}, {s(S_X)}, {PF_OFF:#x}", f"s_mov_b32 {s(S_P2)}, 16384")
    A(f"{L2}:")
    A(f"s_lshl_b32 {s(S_VOX)}, {s(S_TMP2)}, {BTOUCH}", f"s_add_u32 {s(S_VOX)}, {s(S_VOX)}, {VOX_OFF:#x}", f"s_cmp_eq_u32 {s(S_TMP2)}, {7*8192}",
      f"s_cselect_b32 {s(S_X)}, 0x40000000, {s(S_X)}", f"s_mov_b32 {s(S_MEM)}, {MEMF_OFF - AHEAD*8192:#x}")
    Lstep, Lpoll, Lgo = A.label("pfstep"), A.label("pfpoll"), A.label("pfgo")
    if FULL and CODEPF:
        Lc0, Lc1 = A.label("pfw"), A.label("pfg")
        A(f"{Lc0}:", f"buffer_load_dword v12, off, {s(WS,4)}, {s(S_P)} sc1", "s_waitcnt vmcnt(0)", "v_cmp_eq_u32 vcc, -1, v12", f"s_cbranch_vccz {Lc1}", "s_sleep 8")
        timeout_step(A, Lc0, abort)
        A(f"{Lc1}:", "s_getpc_b64 s[30:31]", "Lpf_pc:", "s_sub_u32 s30, s30, Lpf_pc-Lteam_code", "s_subb_u32 s31, s31, 0", f"v_add_u32 v13, {s(S_TMP2)}, v1", "v_min_u32 v13, Lpf_pc-Lteam_code, v13",
          "global_load_dword v14, v13, s[30:31]")
    A("v_mov_b32 v4, -1")
    A(f"{Lstep}:", f"s_cmp_lt_u32 {s(S_STEP)}, {AHEAD+1}", f"s_cbranch_scc1 {Lgo}")
    A("v_cmp_eq_u32 vcc, -1, v4", f"s_cbranch_vccz {Lgo}")
    A(f"{Lpoll}:", f"buffer_load_dword v4, v2, {s(WS,4)}, {s(S_MEM)} offen sc1", "s_waitcnt vmcnt(0)", "v_cmp_eq_u32 vcc, -1, v4", f"s_cbranch_vccz {Lgo}", "s_sleep 2")
    timeout_step(A, Lpoll, abort)
    A(f"{Lgo}:")
    if FULL:
        Lc, Lcg = A.label("pfc"), A.label("pfcg")
        A("v_cmp_ne_u32 vcc, 15, v12", f"s_cbranch_vccz {Lcg}")
        A(f"{Lc}:", f"buffer_load_dword v12, off, {s(WS,4)}, {s(S_P)} sc1", "s_waitcnt vmcnt(0)", "v_cmp_ne_u32 vcc, 15, v12", f"s_cbranch_vccz {Lcg}", "s_sleep 2")
        timeout_step(A, Lc, abort)
        A(f"{Lcg}:", f"s_add_u32 {s(S_P)}, {s(S_P)}, 16384", f"buffer_load_dword v12, off, {s(WS,4)}, {s(S_P)} sc1")
    if PFW:
        Lw1, Lw2 = A.label("pw1"), A.label("pw2")
        A(f"s_mov_b32 s70, {s(S_WAVE)}", f"{Lw1}:", "s_sub_u32 s70, s70, 1", f"s_cbranch_scc1 {Lw2}", f"s_sleep {PFW}", f"s_branch {Lw1}", f"{Lw2}:")
    if PFI:
        Le = A.label("pfe")
        A(f"s_cmp_ge_u32 {s(S_STEP)}, {PFI}", f"s_cbranch_scc1 {Le}")
        for j in range(PF_VOX, 7):
            A(f"s_add_u32 {s(S_TMP)}, {s(S_VOX)}, {65536*j}", f"buffer_load_dword v{16+j}, v1, {s(WS,4)}, {s(S_TMP)} offen sc1")
        A(f"{Le}:")
    A(f"s_add_u32 {s(S_MEM)}, {s(S_MEM)}, 8192", f"buffer_load_dword v4, v2, {s(WS,4)}, {s(S_MEM)} offen sc1")
    A(f"buffer_load_dword v5, v1, {s(WS,4)}, {s(S_X)} offen sc1")
    for j in range(PF_VOX):
        if PFS: A(f"s_sleep {PFS}")
        A(f"s_add_u32 {s(S_TMP)}, {s(S_VOX)}, {(65536 << BTOUCH)*j}", f"buffer_load_dword v{6+j}, v1, {s(WS,4)}, {s(S_TMP)} offen sc1")
    A(f"s_add_u32 {s(S_X)}, {s(S_X)}, {s(S_P2)}", f"s_add_u32 {s(S_VOX)}, {s(S_VOX)}, {28*16*1024}",
      f"s_waitcnt vmcnt({1 + PF_VOX})",
      f"s_add_u32 {s(S_STEP)}, {s(S_STEP)}, 1", f"s_cmp_lt_u32 {s(S_STEP)}, {NSTEPS + 1}", f"s_cbranch_scc1 {Lstep}")
    if DIAGY:
        Lz = A.label("dg")
        A(f"{Lz}:", "s_memrealtime s[76:77]", "s_waitcnt lgkmcnt(0)", "s_sub_u32 s76, s76, s90", f"s_cmp_lt_u32 s76, {DIAGY}", f"s_cbranch_scc1 {Lz}")
    A("s_endpgm")

PF_VOX = 2
def rec_kernel(A, name, profile=False):
    kernel_begin(A, name)
    Lexit = A.label("exit")
    A("s_cmp_ge_u32 s2, 256", f"s_cbranch_scc1 {Lexit}")
    srd(A, WS, 96, 0x10000000); srd(A, XB, 24, 1835008); srd(A, DBG, 88, 256)
    A(f"s_getreg_b32 {s(S_TMP)}, hwreg(HW_REG_XCC_ID)", f"s_and_b32 {s(S_TMP)}, {s(S_TMP)}, 15", f"s_cmp_lg_u32 {s(S_TMP)}, 0", f"s_cbranch_scc1 {Lexit}")
    A("v_lshrrev_b32 v1, 6, v0", "s_nop 0", f"v_readfirstlane_b32 {s(S_WAVE)}, v1", "s_waitcnt lgkmcnt(0)")
    Lw = A.label("notw0")
    A(f"s_cmp_lg_u32 {s(S_WAVE)}, 0", f"s_cbranch_scc1 {Lw}")
    A("v_mov_b32 v1, 1", "v_mov_b32 v2, 0", "s_mov_b64 exec, 1",
      f"buffer_atomic_add v1, v2, {s(DBG,4)}, 0 offen sc0", "s_waitcnt vmcnt(0)", "ds_write_b32 v2, v1 offset:32768", "s_waitcnt lgkmcnt(0)", "s_mov_b64 exec, -1")
    A(f"{Lw}:", "s_barrier", "v_mov_b32 v2, 0", "ds_read_b32 v1, v2 offset:32768", "s_waitcnt lgkmcnt(0)", f"v_readfirstlane_b32 {s(S_ROLE)}, v1", "s_barrier")
    LPF = A.label("rolePF")
    A(f"s_cmp_ge_u32 {s(S_ROLE)}, 32", f"s_cbranch_scc1 {Lexit}")
    A(f"s_cmp_ge_u32 {s(S_ROLE)}, 30", f"s_cbranch_scc1 {LPF}")
    LB = A.label("roleB")
    A(f"s_cmp_ge_u32 {s(S_ROLE)}, 16", f"s_cbranch_scc1 {LB}")
    for R, fn in (("A", role_A), ("B", role_B)):
        if R == "B": A(f"{LB}:")
        Ls = [A.label(f"{R}w{w}") for w in range(4)]
        for w in range(1, 4):
            A(f"s_cmp_eq_u32 {s(S_WAVE)}, {w}", f"s_cbranch_scc1 {Ls[w]}")
        for w in range(4):
            A(f"{Ls[w]}:")
            fn(A, w, Lexit, profile)
    A(f"{LPF}:")
    role_PF(A, Lexit)
    A(f"{Lexit}:", "s_endpgm")
    A(kernel_desc(name))

def generate(path, profile=False, **kw):
    g = globals(); saved = {k: g[k] for k in kw}
    g.update(kw)
    A = Asm()
    A("; @launch kernel=rec_kernel grid=(256,1,1) block=(256,1,1) lds=131072")
    A('.amdgcn_target "amdgcn-amd-amdhsa--gfx950"', ".text")
    rec_kernel(A, "rec_kernel", profile=bool(profile))
    t = A.text().replace("    ; @launch", "; @launch")
    if profile == 2: t = t.replace("s_memtime", "s_memrealtime")
    if LDFL == 1: t = t.replace(" sc1\n", " nt\n")
    if LDFL == 2: t = t.replace(" sc1\n", " sc0 sc1\n")
    open(path, "w").write(t)
    g.update(saved)

if __name__ == "__main__":
    import sys
    generate(sys.argv[1], len(sys.argv) > 2)
```

```python
from asm import *
from model import *
import prep
from rec import WS, XB, DBG, S_WAVE, S_ROLE, S_TO, S_TMP, S_TMP2, wreg, timeout_step, TIMEOUT, idx_const, chk4, smf, FROFF
OUT, XA = 48, 52
S_SEG, S_H, S_A, S_B, S_C, S_D, S_BUF = range(56, 63)
NV, NX, NPG = 4, 3, 3
RP = 912
XBUF = 32*RP
W_TIMEOUT = 300000
WTOUCH = 0
XDELAY = 2
YSLEEP = 30
YSEG = 3
PVPRE = 0
YSEGL = 3
GLAST = 62
XNOY = 0
VLEAD = 16
OFL = ['', ' sc1', ' nt']
OFI = 0
PVS = 4
VLA = 5
PVGAP = 0
VDELAY = 0
WSLEEP = 4
TLM = 0

def mfma(d, a, b, c=None, k16=False):
    op = "v_mfma_f32_16x16x16_bf16" if k16 else "v_mfma_f32_16x16x32_bf16"
    return f"{op} {v(d,4)}, {a}, {b}, " + (v(d,4) if c is None else c)
def wr4(f):
    return a_(4*f, 4) if f < 64 else v(120 + 4*(f-64), 4)

def lanes(A, VL, VG, VN, VL16):
    A(f"v_and_b32 {v(VL)}, 63, v0", f"v_lshrrev_b32 {v(VG)}, 4, {v(VL)}", f"v_and_b32 {v(VN)}, 15, {v(VL)}", f"v_lshlrev_b32 {v(VL16)}, 4, {v(VL)}")

def load_weights(A, base, VL16, share=0, vt=16, touch_only=False):
    if share and WTOUCH:
        n = -(-49 // (share*4))
        A(f"v_lshlrev_b32 {v(vt)}, 3, {v(VL16)}", f"s_lshl_b32 {s(S_TMP2)}, {s(S_SEG)}, 2", f"s_add_u32 {s(S_TMP2)}, {s(S_TMP2)}, {s(S_WAVE)}", f"s_lshl_b32 {s(S_TMP2)}, {s(S_TMP2)}, 13",
          f"s_mul_i32 {s(S_TMP)}, {s(S_H)}, {28*14336}", f"s_add_u32 {s(S_TMP)}, {s(S_TMP)}, {s(S_TMP2)}", f"s_add_u32 {s(S_TMP)}, {s(S_TMP)}, {base:#x}")
        for i in range(n):
            if (i+1)*share*4 > 49:
                A(f"s_cmp_lt_u32 {s(S_TMP2)}, {(49 - i*share*4)*8192}", f"s_cselect_b32 {s(S_TMP)}, {s(S_TMP)}, 0x40000000")
            A(f"buffer_load_dword {v(vt+1+i)}, {v(vt)}, {s(WS,4)}, {s(S_TMP)} offen sc1", f"s_add_u32 {s(S_TMP)}, {s(S_TMP)}, {share*4*8192}")
    A(f"s_mul_i32 {s(S_TMP)}, {s(S_H)}, {28*14336}", f"s_mul_i32 {s(S_TMP2)}, {s(S_WAVE)}, {7*14336}", f"s_add_u32 {s(S_TMP)}, {s(S_TMP)}, {s(S_TMP2)}",
      f"s_add_u32 {s(S_TMP)}, {s(S_TMP)}, {base:#x}")
    if touch_only: return
    for f in range(98):
        A(f"buffer_load_dwordx4 {wr4(f)}, {v(VL16)}, {s(WS,4)}, {s(S_TMP)} offen offset:{1024*(f%4)} sc1")
        if f % 4 == 3: A(f"s_add_u32 {s(S_TMP)}, {s(S_TMP)}, 4096")
        if f % 16 == 15 and f > 30: A("s_waitcnt vmcnt(32)")

def dma_x(A, seg_s, buf_s, VL16, XB=XB):
    A(f"s_mul_i32 {s(S_TMP)}, {s(seg_s)}, 28672", f"s_mul_i32 {s(S_TMP2)}, {s(S_WAVE)}, {8*896}", f"s_add_u32 {s(S_TMP)}, {s(S_TMP)}, {s(S_TMP2)}",
      f"s_mul_i32 {s(S_TMP2)}, {s(S_WAVE)}, {8*RP}", f"s_add_u32 {s(S_TMP2)}, {s(S_TMP2)}, {s(buf_s)}",
      "s_mov_b32 exec_hi, 0x00ffffff")
    for r in range(8):
        A(f"s_mov_b32 m0, {s(S_TMP2)}", f"s_add_u32 {s(S_TMP2)}, {s(S_TMP2)}, {RP}", f"buffer_load_dwordx4 {v(VL16)}, {s(XB,4)}, {s(S_TMP)} offen lds", f"s_add_u32 {s(S_TMP)}, {s(S_TMP)}, 896")
    A("s_mov_b32 exec_hi, -1")

def dma_x_spread(A, seg_s, buf_s, VL16, sa=71, sb=72):
    A(f"s_mul_i32 s{sa}, {s(seg_s)}, 28672", f"s_mul_i32 s{sb}, {s(S_WAVE)}, {8*896}", f"s_add_u32 s{sa}, s{sa}, s{sb}",
      f"s_mul_i32 s{sb}, {s(S_WAVE)}, {8*RP}", f"s_add_u32 s{sb}, s{sb}, {s(buf_s)}")
    def hook(ks):
        if ks < 8:
            A(f"s_mov_b32 m0, s{sb}", "s_mov_b32 exec_hi, 0x00ffffff", f"buffer_load_dwordx4 {v(VL16)}, {s(XB,4)}, s{sa} offen lds", "s_mov_b32 exec_hi, -1",
              f"s_add_u32 s{sb}, s{sb}, {RP}", f"s_add_u32 s{sa}, s{sa}, 896")
    return hook

def poll_eq(A, vt, voff, soff, want, abort, tag, ne=False, sleep=None):
    Lp, Lgo = A.label(tag + "p"), A.label(tag + "go")
    A(f"{Lp}:", f"buffer_load_dword {v(vt)}, {v(voff)}, {s(WS,4)}, {s(soff)} offen sc1", "s_waitcnt vmcnt(0)",
      f"v_cmp_{'eq' if ne else 'ne'}_u32 vcc, {want}, {v(vt)}", f"s_cbranch_vccz {Lgo}", f"s_sleep {sleep or WSLEEP}")
    timeout_step(A, Lp, abort)
    A(f"{Lgo}:")

def divmod_const(A, q, r, x, d):
    m = (65536 + d - 1) // d
    assert all((i*m) >> 16 == i // d for i in range(256))
    A(f"s_mul_i32 {s(q)}, {s(x)}, {m}", f"s_lshr_b32 {s(q)}, {s(q)}, 16", f"s_mul_i32 {s(r)}, {s(q)}, {d}", f"s_sub_u32 {s(r)}, {s(x)}, {s(r)}")

VMID = 4
def yield_start(A, abort, tag, va, vt):
    for _ in range(XDELAY): A("s_sleep 127")
    if not XDELAY: prep.wait_tiles(A, 16, 16, abort, tag, S_TO, vt, va, st=(68, 69, 70))
    prep.wait_counters(A, 0, 32, abort, tag, S_TO, vt, va, sleep=YSLEEP)
    if YSEG < 0 or (tag == "x" and XNOY): return
    Lg = A.label("ys")
    A(f"s_cmp_lg_u32 {s(S_WAVE)}, 0", f"s_cbranch_scc1 {Lg}", f"v_mov_b32 {v(va)}, 0", f"s_mov_b32 {s(S_A)}, {PF_OFF + FROFF + 16384*(YSEGL if tag == 'l' else YSEG):#x}")
    poll_eq(A, vt, va, S_A, 15, abort, tag + "y", sleep=YSLEEP)
    A(f"{Lg}:", "s_barrier")

def gemm_seg(A, ACC, FR, VRD, x_is_A, hook=None, every=None):
    rd = lambda ks: [f"ds_read_b128 {v(FR + 8*(ks % 2) + 4*t, 4)}, {v(VRD+t)} offset:{64*ks}" for t in range(2)]
    A(rd(0))
    for ks in range(14):
        if hook and hook[0] == ks: hook[1]()
        if every: every(ks)
        if ks + 1 < 14: A(rd(ks+1), "s_waitcnt lgkmcnt(2)")
        else: A("s_waitcnt lgkmcnt(0)")
        for cb in range(7):
            for t in range(2):
                xf, wf = v(FR + 8*(ks % 2) + 4*t, 4), wr4(cb*14 + ks)
                a, b = (xf, wf) if x_is_A else (wf, xf)
                A(mfma(ACC + 8*cb + 4*t, a, b, "0" if ks == 0 else None))

def role_V(A, abort):
    VL, VG, VN, VL16, T, VR0, VR1, VRD, VRD1, IDX = range(1, 11)
    ACC, FR, PK = 16, 72, 88
    S_J, S_PREV = S_C, S_D
    A("; ---------------- role V")
    lanes(A, VL, VG, VN, VL16)
    divmod_const(A, S_H, S_SEG, S_ROLE, NV)
    A(f"s_mov_b32 {s(S_J)}, {s(S_SEG)}", f"s_mov_b32 {s(S_BUF)}, 0", f"s_mov_b32 {s(S_PREV)}, 0x40000000", f"s_mov_b32 {s(S_TO)}, {W_TIMEOUT}")
    dma_x(A, S_SEG, S_BUF, VL16)
    A(f"s_mov_b32 {s(S_BUF)}, 32768", f"s_add_u32 {s(S_A)}, {s(S_SEG)}, {NV}")
    dma_x(A, S_A, S_BUF, VL16)
    VXS = 11
    A(f"v_lshrrev_b32 {v(T)}, 3, {v(VN)}", f"v_lshlrev_b32 {v(VXS)}, 4, {v(T)}", f"v_and_b32 {v(T)}, 3, {v(VN)}", f"v_lshl_add_u32 {v(VXS)}, {v(T)}, 2, {v(VXS)}",
      f"v_bfe_u32 {v(T)}, {v(VN)}, 2, 1", f"v_lshl_add_u32 {v(VXS)}, {v(T)}, 1, {v(VXS)}", f"v_mul_u32_u24 {v(VXS)}, {RP}, {v(VXS)}",
      f"v_mul_u32_u24 {v(T)}, 224, {v(VG)}", f"v_add_u32 {v(VXS)}, {v(VXS)}, {v(T)}",
      f"s_cmp_ge_u32 {s(S_H)}, 7", f"s_cselect_b32 {s(S_TMP)}, {RP - 7*32}, 0", f"s_lshl_b32 {s(S_TMP2)}, {s(S_H)}, 5", f"s_add_u32 {s(S_TMP)}, {s(S_TMP)}, {s(S_TMP2)}", f"v_add_u32 {v(VXS)}, {s(S_TMP)}, {v(VXS)}",
      f"s_lshl_b32 s63, {s(S_H)}, 11", f"s_add_u32 s63, s63, {XS_OFF:#x}", f"s_cmp_lt_u32 {s(S_H)}, 14", "s_cselect_b32 s63, s63, 0x40000000", f"s_cmp_eq_u32 {s(S_WAVE)}, 3", "s_cselect_b32 s63, s63, 0x40000000")
    A(f"v_lshrrev_b32 {v(T)}, 2, {v(VN)}", f"v_lshlrev_b32 {v(VR0)}, 3, {v(T)}", f"v_and_b32 {v(T)}, 3, {v(VN)}", f"v_add_u32 {v(VR0)}, {v(VR0)}, {v(T)}",
      f"v_mul_u32_u24 {v(VR0)}, {RP}, {v(VR0)}", f"v_lshl_add_u32 {v(VR0)}, {v(VG)}, 4, {v(VR0)}", f"v_add_u32 {v(VR1)}, {4*RP}, {v(VR0)}")
    idx_const(A, IDX, VN, T)
    def signal(so):
        A(f"s_cmp_eq_u32 {s(S_WAVE)}, 0", f"s_cselect_b32 {s(S_B)}, {s(so)}, 0x40000000",
          f"v_mov_b32 {v(T)}, 1", "s_mov_b64 exec, 1", f"buffer_atomic_add {v(T)}, off, {s(WS,4)}, {s(S_B)} sc1", "s_mov_b64 exec, -1", "s_nop 3")
    Lp, Lepi = A.label("Vloop"), A.label("Vepi")
    A(f"v_mov_b32 {v(VRD)}, {v(VR0)}", f"v_mov_b32 {v(VRD+1)}, {v(VR1)}", f"v_mov_b32 {v(12)}, {v(VXS)}", "s_waitcnt vmcnt(0)", f"s_add_u32 {s(S_A)}, {s(S_H)}, 16")
    if prep.WW:
        A("s_barrier")
        prep.wait_tiles_wave(A, prep.one_matrix(A, s(S_A)), abort, "V", S_TO, 14, 15, st=(68, 69, 70))
    else: prep.wait_tiles(A, s(S_A), 1, abort, "V", S_TO, 14, 15, st=(68, 69, 70))
    load_weights(A, WB_OFF, VL16, NV, 100, touch_only=True)
    def wld(ks):
        return [x for cb in range(7) for x in (f"s_add_u32 {s(S_TMP2)}, {s(S_TMP)}, {cb*14336 + 1024*ks}", f"buffer_load_dwordx4 {wr4(cb*14 + ks)}, {v(VL16)}, {s(WS,4)}, {s(S_TMP2)} offen sc1")]
    for ks in range(VLA): A(wld(ks))
    def first(ks):
        if ks + VLA < 14: A(wld(ks + VLA))
        A(f"s_waitcnt vmcnt({7*min(VLA, 13 - ks)})")
    gemm_seg(A, ACC, FR, VRD, True, every=first)
    if TLM: A("s_memrealtime s[92:93]")
    A(f"s_branch {Lepi}")
    A(f"{Lp}:")
    A(f"v_add_u32 {v(VRD)}, {s(S_BUF)}, {v(VR0)}", f"v_add_u32 {v(VRD+1)}, {s(S_BUF)}, {v(VR1)}", f"v_add_u32 {v(12)}, {s(S_BUF)}, {v(VXS)}")
    A(f"s_xor_b32 {s(S_BUF)}, {s(S_BUF)}, {32768}", f"s_add_u32 {s(S_A)}, {s(S_SEG)}, {NV}")
    dh = dma_x_spread(A, S_A, S_BUF, VL16)
    def mid():
        A("s_waitcnt vmcnt(8)", "s_barrier")
        signal(S_PREV)
    gemm_seg(A, ACC, FR, VRD, True, hook=(8, mid), every=dh)
    A(f"{Lepi}:")
    A(f"s_mul_i32 {s(S_TMP)}, {s(S_SEG)}, 458752", f"s_mul_i32 {s(S_TMP2)}, {s(S_WAVE)}, {7*16384}", f"s_add_u32 {s(S_TMP)}, {s(S_TMP)}, {s(S_TMP2)}",
      f"s_lshl_b32 {s(S_TMP2)}, {s(S_H)}, 10", f"s_add_u32 {s(S_TMP)}, {s(S_TMP)}, {s(S_TMP2)}", f"s_add_u32 {s(S_TMP)}, {s(S_TMP)}, {VOX_OFF:#x}",
      f"s_lshl_b32 {s(S_PREV)}, {s(S_SEG)}, 14", f"s_add_u32 {s(S_PREV)}, {s(S_PREV)}, {PF_OFF + FROFF:#x}")
    A(f"ds_read_b128 {v(FR,4)}, {v(12)}", f"ds_read_b128 {v(FR+4,4)}, {v(12)} offset:16", f"s_mul_i32 {s(S_TMP2)}, {s(S_SEG)}, 28672", f"s_add_u32 {s(S_TMP2)}, {s(S_TMP2)}, s63")
    A("s_waitcnt vmcnt(1) lgkmcnt(0)", "s_barrier")
    b = FR
    A(f"v_swap_b32 {v(b+1)}, {v(b+2)}", f"v_swap_b32 {v(b+2)}, {v(b+4)}", f"v_swap_b32 {v(b+3)}, {v(b+6)}", f"v_swap_b32 {v(b+6)}, {v(b+5)}",
      f"buffer_store_dwordx4 {v(b,4)}, {v(VL16)}, {s(WS,4)}, {s(S_TMP2)} offen sc1", f"buffer_store_dwordx4 {v(b+4,4)}, {v(VL16)}, {s(WS,4)}, {s(S_TMP2)} offen offset:1024 sc1")
    for cb in range(7):
        d = ACC + 8*cb
        for r in range(4): A(f"v_cvt_pk_bf16_f32 {v(PK+4*cb+r)}, {v(d+2*r)}, {v(d+2*r+1)}")
        A(f"buffer_store_dwordx4 {v(PK+4*cb,4)}, {v(VL16)}, {s(WS,4)}, {s(S_TMP)} offen sc1", f"s_add_u32 {s(S_TMP)}, {s(S_TMP)}, 16384")
    Lnf = A.label("Vnf")
    A(f"s_cmp_ge_u32 {s(S_SEG)}, {NV}", f"s_cbranch_scc1 {Lnf}", "s_waitcnt vmcnt(0)")
    prep.wait_counters(A, 0, 32, abort, "V", S_TO, 14, 15)
    signal(S_PREV)
    A(f"s_mov_b32 {s(S_PREV)}, 0x40000000", f"{Lnf}:")
    A(f"s_add_u32 {s(S_SEG)}, {s(S_SEG)}, {NV}", f"s_cmp_lt_u32 {s(S_SEG)}, {VLEAD}", f"s_cbranch_scc1 {Lp}")
    A("s_waitcnt vmcnt(0)", "s_barrier")
    signal(S_PREV)
    A(f"s_mov_b32 {s(S_PREV)}, 0x40000000")
    if TLM: A("s_memrealtime s[94:95]")
    MF = 72
    Lq, Lm, Lmo = A.label("Vq"), A.label("Vm"), A.label("Vmo")
    A(f"{Lq}:")
    for r in range(28): A(f"v_mov_b32 {v(ACC+r)}, 0")
    A(f"s_lshl_b32 {s(S_A)}, {s(S_J)}, 13", f"s_add_u32 {s(S_A)}, {s(S_A)}, {MEMS_OFF:#x}", f"s_add_u32 {s(S_B)}, {s(S_A)}, 4096")
    A(f"v_mov_b32 {v(12)}, 7164", f"s_min_u32 {s(S_TMP)}, {s(S_A)}, {MEMS_OFF + 8192*GLAST:#x}")
    poll_eq(A, T, 12, S_TMP, -1, abort, "vm", ne=True, sleep=1)
    A(f"{Lm}:")
    for kb in range(7): A(f"buffer_load_dwordx4 {v(MF+4*kb,4)}, {v(VL16)}, {s(WS,4)}, {s(S_A if kb < 4 else S_B)} offen offset:{1024*(kb%4)} sc1")
    A("s_waitcnt vmcnt(0)")
    for kb in range(7): A(chk4(T, MF+4*kb, kb == 0))
    A(f"v_cmp_eq_u32 vcc, -1, {v(T)}", f"s_cbranch_vccz {Lmo}")
    timeout_step(A, Lm, abort)
    A(f"{Lmo}:")
    for kb in range(7):
        for cb in range(7):
            f = cb*14 + 2*kb
            A(smf(ACC + 4*cb, MF + 4*kb, a_(4*f, 8) if f < 64 else v(120 + 4*(f-64), 8), IDX))
    A(f"s_mul_i32 {s(S_TMP)}, {s(S_J)}, 114688", f"s_mul_i32 {s(S_TMP2)}, {s(S_WAVE)}, {7*4096}", f"s_add_u32 {s(S_TMP)}, {s(S_TMP)}, {s(S_TMP2)}",
      f"s_lshl_b32 {s(S_TMP2)}, {s(S_H)}, 8", f"s_add_u32 {s(S_TMP)}, {s(S_TMP)}, {s(S_TMP2)}", f"s_add_u32 {s(S_TMP)}, {s(S_TMP)}, {VPE_OFF:#x}", f"v_lshlrev_b32 {v(13)}, 2, {v(VL)}", "s_nop 1")
    for cb in range(7):
        r = ACC + 4*cb
        A(f"v_add_f32 {v(r)}, {v(r)}, {v(r+1)}", f"v_add_f32 {v(r+2)}, {v(r+2)}, {v(r+3)}", f"v_cvt_pk_bf16_f32 {v(PK+20+cb)}, {v(r)}, {v(r+2)}", f"v_min_u32 {v(PK+20+cb)}, -2, {v(PK+20+cb)}",
          f"buffer_store_dword {v(PK+20+cb)}, {v(13)}, {s(WS,4)}, {s(S_TMP)} offen sc1", f"s_add_u32 {s(S_TMP)}, {s(S_TMP)}, 4096")
    A(f"s_lshl_b32 {s(S_TMP)}, {s(S_J)}, 9", f"s_lshl_b32 {s(S_TMP2)}, {s(S_H)}, 4", f"s_add_u32 {s(S_TMP)}, {s(S_TMP)}, {s(S_TMP2)}", f"s_lshl_b32 {s(S_TMP2)}, {s(S_WAVE)}, 2",
      f"s_add_u32 {s(S_TMP)}, {s(S_TMP)}, {s(S_TMP2)}", f"s_add_u32 {s(S_TMP)}, {s(S_TMP)}, {FV_OFF:#x}", f"v_mov_b32 {v(T)}, 1",
      "s_waitcnt vmcnt(0)", "s_mov_b64 exec, 1", f"buffer_store_dword {v(T)}, off, {s(WS,4)}, {s(S_TMP)} sc1", "s_mov_b64 exec, -1")
    A(f"s_add_u32 {s(S_J)}, {s(S_J)}, {NV}", f"s_cmp_lt_u32 {s(S_SEG)}, 64", f"s_cbranch_scc1 {Lp}", f"s_cmp_lt_u32 {s(S_J)}, 64", f"s_cbranch_scc1 {Lq}", "s_endpgm")

XMIMG = 65536
XRED = 73728

def role_X(A, abort):
    VL, VG, VN, VL16, T, VR0, VK0, VRD, VRD1, VKD, VKM, VRW, VRR, VMW, T2 = range(1, 16)
    ACC, FR, SX, KF = 16, 72, 88, 104
    A("; ---------------- role X")
    lanes(A, VL, VG, VN, VL16)
    divmod_const(A, S_H, S_SEG, S_ROLE, NX)
    A(f"s_mov_b32 {s(S_BUF)}, 0", f"s_mov_b32 {s(S_TO)}, {W_TIMEOUT}")
    dma_x(A, S_SEG, S_BUF, VL16)
    yield_start(A, abort, "x", 16, 17)
    load_weights(A, WA_OFF, VL16, NX, 20)
    A(f"v_mul_u32_u24 {v(VR0)}, {RP}, {v(VN)}", f"v_lshl_add_u32 {v(VR0)}, {v(VG)}, 4, {v(VR0)}")
    A(f"v_lshrrev_b32 {v(T)}, 2, {v(VN)}", f"v_lshlrev_b32 {v(VK0)}, 3, {v(T)}", f"v_and_b32 {v(T)}, 3, {v(VN)}", f"v_add_u32 {v(VK0)}, {v(VK0)}, {v(T)}",
      f"v_mul_u32_u24 {v(VK0)}, {RP}, {v(VK0)}", f"v_lshl_add_u32 {v(VK0)}, {v(VG)}, 3, {v(VK0)}", f"s_mul_i32 {s(S_TMP)}, {s(S_WAVE)}, 224", f"v_add_u32 {v(VK0)}, {s(S_TMP)}, {v(VK0)}")
    A(f"v_lshrrev_b32 {v(T)}, 2, {v(VN)}", f"v_lshlrev_b32 {v(VKM)}, 6, {v(T)}", f"v_and_b32 {v(T)}, 1, {v(VN)}", f"v_lshl_add_u32 {v(VKM)}, {v(T)}, 5, {v(VKM)}",
      f"v_lshl_add_u32 {v(VKM)}, {v(VG)}, 2, {v(VKM)}", f"s_mul_i32 {s(S_TMP)}, {s(S_WAVE)}, 1792", f"s_add_u32 {s(S_TMP)}, {s(S_TMP)}, {XMIMG}", f"v_add_u32 {v(VKM)}, {s(S_TMP)}, {v(VKM)}")
    A(f"v_add_u32 {v(VMW)}, {s(S_TMP)}, {v(VL16)}")
    A(f"s_lshl_b32 {s(S_TMP)}, {s(S_WAVE)}, 12", f"s_add_u32 {s(S_TMP)}, {s(S_TMP)}, {XRED}", f"v_add_u32 {v(VRW)}, {s(S_TMP)}, {v(VL16)}")
    A(f"s_lshl_b32 {s(S_TMP)}, {s(S_WAVE)}, 10", f"s_add_u32 {s(S_TMP)}, {s(S_TMP)}, {XRED}", f"v_add_u32 {v(VRR)}, {s(S_TMP)}, {v(VL16)}")
    A(f"s_mov_b32 {s(S_D)}, 0x40000000")
    Lp = A.label("Xloop")
    A("s_waitcnt vmcnt(0)", "s_barrier")
    if TLM: A("s_memrealtime s[92:93]")
    A(f"{Lp}:")
    A(f"v_add_u32 {v(VRD)}, {s(S_BUF)}, {v(VR0)}", f"v_add_u32 {v(VRD1)}, {16*RP}, {v(VRD)}", f"v_add_u32 {v(VKD)}, {s(S_BUF)}, {v(VK0)}")
    A(f"s_xor_b32 {s(S_BUF)}, {s(S_BUF)}, {32768}", f"s_add_u32 {s(S_A)}, {s(S_SEG)}, {NX}")
    dh = dma_x_spread(A, S_A, S_BUF, VL16)
    def xflag(n):
        A(f"s_waitcnt vmcnt({n})", f"v_mov_b32 {v(T)}, 1", "s_mov_b64 exec, 1", f"buffer_store_dword {v(T)}, off, {s(WS,4)}, {s(S_D)} sc1", "s_mov_b64 exec, -1", "s_nop 3")
    gemm_seg(A, ACC, FR, VRD, False, hook=(VMID, lambda: xflag(VMID)), every=dh)
    kreg = lambda cb: KF + 4*cb if cb < 4 else FR + 4*(cb-4)
    for cb in range(7):
        A(f"ds_read_b64 {v(kreg(cb),2)}, {v(VKD)} offset:{32*cb}", f"ds_read_b64 {v(kreg(cb)+2,2)}, {v(VKD)} offset:{32*cb + 4*RP}")
    for cb in range(7):
        for t in range(2):
            d = ACC + 8*cb + 4*t
            A(f"v_cvt_pk_bf16_f32 {v(d)}, {v(d)}, {v(d+1)}", f"v_cvt_pk_bf16_f32 {v(d+1)}, {v(d+2)}, {v(d+3)}")
    for cb in range(7):
        A(f"s_waitcnt lgkmcnt({2*(6-cb)})")
        for kt in range(2):
            for t in range(2):
                A(mfma(SX + 8*kt + 4*t, v(kreg(cb)+2*kt, 2), v(ACC + 8*cb + 4*t, 2), "0" if cb == 0 else None, k16=True))
    A("s_nop 7")
    for kt in range(2):
        for t in range(2): A(f"ds_write_b128 {v(VRW)}, {v(SX + 8*kt + 4*t, 4)} offset:{2048*kt + 1024*t}")
    A("s_waitcnt lgkmcnt(0)", "s_barrier")
    L1 = A.label("Xr1")
    A(f"s_cmp_ge_u32 {s(S_WAVE)}, 2", f"s_cbranch_scc1 {L1}")
    for kt in range(2):
        for w in range(4): A(f"ds_read_b128 {v(FR + 4*w, 4)}, {v(VRR)} offset:{4096*w + 2048*kt}")
        A("s_waitcnt lgkmcnt(0)")
        for r in range(4):
            A(f"v_add_f32 {v(FR+r)}, {v(FR+r)}, {v(FR+4+r)}", f"v_add_f32 {v(FR+8+r)}, {v(FR+8+r)}, {v(FR+12+r)}", f"v_add_f32 {v(SX+4*kt+r)}, {v(FR+r)}, {v(FR+8+r)}")
    A(f"s_lshl_b32 {s(S_TMP)}, {s(S_WAVE)}, 4", f"v_add_u32 {v(T)}, {s(S_TMP)}, {v(VN)}", f"v_lshlrev_b32 {v(T2)}, 3, {v(VG)}", f"v_sub_u32 {v(T)}, {v(T)}, {v(T2)}", f"v_mov_b32 {v(T2)}, 0xf149f2ca")
    for j in range(8):
        A(f"v_cmp_le_i32 vcc, {j}, {v(T)}", "s_nop 1", f"v_cndmask_b32 {v(SX+j)}, {v(T2)}, {v(SX+j)}, vcc")
    A(f"{L1}:")
    Lm, Lmo = A.label("Xm"), A.label("Xmo")
    A(f"s_lshl_b32 {s(S_B)}, {s(S_SEG)}, 13", f"s_mul_i32 {s(S_TMP)}, {s(S_WAVE)}, 1792", f"s_add_u32 {s(S_B)}, {s(S_B)}, {s(S_TMP)}", f"s_add_u32 {s(S_B)}, {s(S_B)}, {MEMS_OFF:#x}")
    A(f"s_min_u32 {s(S_C)}, {s(S_SEG)}, {GLAST}", f"s_lshl_b32 {s(S_C)}, {s(S_C)}, 13", f"s_add_u32 {s(S_C)}, {s(S_C)}, {MEMS_OFF + 7164:#x}", f"v_mov_b32 {v(T2)}, 0")
    poll_eq(A, T, T2, S_C, -1, abort, "xg", ne=True, sleep=1)
    A(f"{Lm}:", f"buffer_load_dwordx4 {v(KF,4)}, {v(VL16)}, {s(WS,4)}, {s(S_B)} offen sc1", f"buffer_load_dwordx4 {v(KF+4,4)}, {v(VL16)}, {s(WS,4)}, {s(S_B)} offen offset:768 sc1",
      "s_waitcnt vmcnt(0)", f"v_max3_u32 {v(T)}, {v(KF)}, {v(KF+1)}, {v(KF+2)}", f"v_max3_u32 {v(T)}, {v(T)}, {v(KF+3)}, {v(KF+4)}", f"v_max3_u32 {v(T)}, {v(T)}, {v(KF+5)}, {v(KF+6)}",
      f"v_max_u32 {v(T)}, {v(T)}, {v(KF+7)}", f"v_cmp_eq_u32 vcc, -1, {v(T)}", f"s_cbranch_vccz {Lmo}")
    timeout_step(A, Lm, abort)
    A(f"{Lmo}:")
    if TLM: A("s_memrealtime s[94:95]")
    A(f"ds_write_b128 {v(VMW)}, {v(KF,4)}", f"ds_write_b128 {v(VMW)}, {v(KF+4,4)} offset:768")
    for cb in range(7):
        A(f"v_add_u32 {v(T)}, {256*cb}, {v(VKM)}", f"ds_read2_b32 {v(FR+2*cb,2)}, {v(T)} offset0:0 offset1:4")
    A("s_waitcnt lgkmcnt(0)")
    for cb in range(7):
        for t in range(2):
            A(mfma(SX + 8 + 4*t, v(FR+2*cb, 2), v(ACC + 8*cb + 4*t, 2), "0" if cb == 0 else None, k16=True))
    A("s_barrier")
    A("s_nop 6")
    for t in range(2): A(f"ds_write_b64 {v(VRW)}, {v(SX + 8 + 4*t, 2)} offset:{1024*t}")
    A("s_waitcnt lgkmcnt(0)", "s_barrier")
    L2 = A.label("Xr2")
    A(f"s_cmp_ge_u32 {s(S_WAVE)}, 2", f"s_cbranch_scc1 {L2}")
    for w in range(4): A(f"ds_read_b64 {v(FR + 2*w, 2)}, {v(VRR)} offset:{4096*w}")
    A("s_waitcnt lgkmcnt(0)")
    for r in range(2):
        A(f"v_add_f32 {v(FR+r)}, {v(FR+r)}, {v(FR+2+r)}", f"v_add_f32 {v(FR+4+r)}, {v(FR+4+r)}, {v(FR+6+r)}", f"v_add_f32 {v(SX+8+r)}, {v(FR+r)}, {v(FR+4+r)}")
    A(f"v_max3_f32 {v(T)}, {v(SX)}, {v(SX+1)}, {v(SX+2)}", f"v_max3_f32 {v(T)}, {v(T)}, {v(SX+3)}, {v(SX+4)}", f"v_max3_f32 {v(T)}, {v(T)}, {v(SX+5)}, {v(SX+6)}",
      f"v_max3_f32 {v(T)}, {v(T)}, {v(SX+7)}, {v(SX+8)}", f"v_max_f32 {v(T)}, {v(T)}, {v(SX+9)}")
    def xred(op):
        for sw in ("v_permlane16_swap_b32", "v_permlane32_swap_b32"):
            A(f"v_mov_b32 {v(T2)}, {v(T)}", "s_nop 1", f"{sw} {v(T)}, {v(T2)}", f"{op} {v(T)}, {v(T)}, {v(T2)}")
    xred("v_max_f32")
    for j in range(10): A(f"v_sub_f32 {v(SX+j)}, {v(SX+j)}, {v(T)}")
    for j in range(10): A(f"v_exp_f32 {v(SX+j)}, {v(SX+j)}")
    A(f"v_add_f32 {v(T)}, {v(SX)}, {v(SX+1)}")
    for j in range(2, 10): A(f"v_add_f32 {v(T)}, {v(T)}, {v(SX+j)}")
    xred("v_add_f32")
    A(f"v_rcp_f32 {v(T)}, {v(T)}", "s_nop 0")
    for j in range(10): A(f"v_mul_f32 {v(SX+j)}, {v(SX+j)}, {v(T)}")
    for r in range(5): A(f"v_cvt_pk_bf16_f32 {v(FR+r)}, {v(SX+2*r)}, {v(SX+2*r+1)}", f"v_min_u32 {v(FR+r)}, -2, {v(FR+r)}")
    A(f"s_mul_i32 {s(S_TMP)}, {s(S_SEG)}, 40960", f"s_mul_i32 {s(S_TMP2)}, {s(S_WAVE)}, 20480", f"s_add_u32 {s(S_TMP)}, {s(S_TMP)}, {s(S_TMP2)}", f"s_add_u32 {s(S_TMP)}, {s(S_TMP)}, {PX_OFF:#x}",
      f"s_lshl_b32 {s(S_TMP2)}, {s(S_H)}, 10", f"s_add_u32 {s(S_TMP2)}, {s(S_TMP2)}, {s(S_TMP)}",
      f"buffer_store_dwordx4 {v(FR,4)}, {v(VL16)}, {s(WS,4)}, {s(S_TMP2)} offen sc1",
      f"s_lshl_b32 {s(S_TMP2)}, {s(S_H)}, 8", f"s_add_u32 {s(S_TMP)}, {s(S_TMP)}, {s(S_TMP2)}", f"s_add_u32 {s(S_TMP)}, {s(S_TMP)}, 16384", f"v_lshlrev_b32 {v(T2)}, 2, {v(VL)}",
      f"buffer_store_dword {v(FR+4)}, {v(T2)}, {s(WS,4)}, {s(S_TMP)} offen sc1")
    A(f"s_lshl_b32 {s(S_TMP)}, {s(S_SEG)}, 9", f"s_lshl_b32 {s(S_TMP2)}, {s(S_WAVE)}, 6", f"s_add_u32 {s(S_TMP)}, {s(S_TMP)}, {s(S_TMP2)}", f"s_lshl_b32 {s(S_TMP2)}, {s(S_H)}, 2",
      f"s_add_u32 {s(S_TMP)}, {s(S_TMP)}, {s(S_TMP2)}", f"s_add_u32 {s(S_D)}, {s(S_TMP)}, {FV_OFF + 256:#x}")
    A(f"{L2}:")
    A("s_barrier")
    A(f"s_add_u32 {s(S_SEG)}, {s(S_SEG)}, {NX}", f"s_cmp_lt_u32 {s(S_SEG)}, 64", f"s_cbranch_scc1 {Lp}")
    xflag(0)
    A("s_endpgm")

def role_PV(A, abort):
    VL, VG, VN, VL16, T, VZ, VF1, VF2, VRW, VRR, VO_ = range(1, 12)
    VOX, VP, PF_, ACC, RD = 16, 80, 96, 116, 132
    S_T, S_J = S_C, S_D
    lanes(A, VL, VG, VN, VL16)
    A(f"s_mul_i32 {s(S_SEG)}, {s(S_ROLE)}, 4682", f"s_lshr_b32 {s(S_SEG)}, {s(S_SEG)}, 16", f"s_mul_i32 {s(S_TMP)}, {s(S_SEG)}, 14", f"s_sub_u32 {s(S_TMP)}, {s(S_ROLE)}, {s(S_TMP)}",
      f"s_and_b32 {s(S_T)}, {s(S_TMP)}, 1", f"s_lshr_b32 {s(S_J)}, {s(S_TMP)}, 1", f"s_mov_b32 {s(S_TO)}, {W_TIMEOUT}")
    A(f"v_mov_b32 {v(VZ)}, 0")
    A(f"v_and_b32 {v(T)}, 3, {v(VL)}", f"v_lshlrev_b32 {v(VF1)}, 2, {v(T)}", f"s_lshl_b32 {s(S_TMP)}, {s(S_T)}, 6", f"s_lshl_b32 {s(S_TMP2)}, {s(S_WAVE)}, 4", f"s_add_u32 {s(S_TMP)}, {s(S_TMP)}, {s(S_TMP2)}",
      f"s_add_u32 {s(S_TMP)}, {s(S_TMP)}, 256", f"v_add_u32 {v(VF1)}, {s(S_TMP)}, {v(VF1)}")
    A(f"v_lshlrev_b32 {v(VF2)}, 2, {v(VN)}", f"s_lshl_b32 {s(S_TMP)}, {s(S_WAVE)}, 6", f"v_add_u32 {v(VF2)}, {s(S_TMP)}, {v(VF2)}",
      f"v_cmp_gt_u32 vcc, 16, {v(VL)}", "s_nop 1", f"v_cndmask_b32 {v(VF1)}, {v(VF1)}, {v(VF2)}, vcc", f"v_lshlrev_b32 {v(VF2)}, 2, {v(VL)}")
    A(f"s_lshl_b32 {s(S_TMP)}, {s(S_WAVE)}, 12", f"v_add_u32 {v(VRW)}, {s(S_TMP)}, {v(VL16)}", f"s_lshl_b32 {s(S_TMP)}, {s(S_WAVE)}, 10", f"v_add_u32 {v(VRR)}, {s(S_TMP)}, {v(VL16)}")
    A(f"v_mul_u32_u24 {v(VO_)}, 1792, {v(VN)}", f"v_lshl_add_u32 {v(VO_)}, {v(VG)}, 3, {v(VO_)}", f"s_mul_i32 {s(S_TMP)}, {s(S_T)}, {16*1792}", f"s_lshl_b32 {s(S_TMP2)}, {s(S_J)}, 7",
      f"s_add_u32 {s(S_TMP)}, {s(S_TMP)}, {s(S_TMP2)}", f"s_lshl_b32 {s(S_TMP2)}, {s(S_WAVE)}, 5", f"s_add_u32 {s(S_TMP)}, {s(S_TMP)}, {s(S_TMP2)}", f"s_add_u32 {s(S_TMP)}, {s(S_TMP)}, 896",
      f"v_add_u32 {v(VO_)}, {s(S_TMP)}, {v(VO_)}")
    yield_start(A, abort, "p", 16, 17)
    Lp = A.label("PVloop")
    A(f"{Lp}:")
    Llast, Lld, Lok, Lpre, Lvx = A.label("PVlast"), A.label("PVld"), A.label("PVok"), A.label("PVpre"), A.label("PVvx")
    A(f"s_lshl_b32 {s(S_B)}, {s(S_SEG)}, 9", f"s_add_u32 {s(S_B)}, {s(S_B)}, {FV_OFF:#x}")
    A(f"s_cmp_ge_u32 {s(S_SEG)}, {PVPRE}", f"s_cbranch_scc1 {Lpre}")
    poll_eq(A, T, VF1, S_B, 1, abort, "f0", sleep=PVS)
    A(f"s_branch {Lvx}", f"{Lpre}:")
    A(f"s_lshl_b32 {s(S_A)}, {s(S_SEG)}, 14", f"s_add_u32 {s(S_A)}, {s(S_A)}, {PF_OFF + FROFF:#x}")
    poll_eq(A, T, VZ, S_A, 15, abort, "cv")
    A(f"{Lvx}:")
    A(f"s_mul_i32 {s(S_TMP)}, {s(S_SEG)}, 458752", f"s_lshl_b32 {s(S_TMP2)}, {s(S_J)}, 16", f"s_add_u32 {s(S_TMP)}, {s(S_TMP)}, {s(S_TMP2)}", f"s_lshl_b32 {s(S_TMP2)}, {s(S_WAVE)}, 12",
      f"s_add_u32 {s(S_TMP)}, {s(S_TMP)}, {s(S_TMP2)}", f"s_add_u32 {s(S_TMP)}, {s(S_TMP)}, {VOX_OFF:#x}")
    for cc in range(4):
        for hh in range(4): A(f"buffer_load_dwordx4 {v(VOX + 16*cc + 4*hh, 4)}, {v(VL16)}, {s(WS,4)}, {s(S_TMP)} offen offset:{1024*hh} sc1")
        A(f"s_add_u32 {s(S_TMP)}, {s(S_TMP)}, 16384")
    A(f"s_cmp_lt_u32 {s(S_SEG)}, {PVPRE}", f"s_cbranch_scc1 {Lld}")
    A(f"s_cmp_ge_u32 {s(S_SEG)}, {prep.SL}", f"s_cbranch_scc1 {Llast}")
    poll_eq(A, T, VF1, S_B, 1, abort, "fx", sleep=2)
    A(f"s_branch {Lld}", f"{Llast}:", f"s_lshl_b32 {s(S_A)}, {s(S_SEG)}, 13", f"s_add_u32 {s(S_A)}, {s(S_A)}, {MEMS_OFF + 7164:#x}")
    poll_eq(A, T, VZ, S_A, -1, abort, "pg", ne=True, sleep=1)
    if PVGAP: A(f"s_sleep {PVGAP}")
    A(f"{Lld}:")
    if TLM: A("s_memrealtime s[92:93]")
    A(f"s_mul_i32 {s(S_TMP)}, {s(S_SEG)}, 40960", f"s_mul_i32 {s(S_TMP2)}, {s(S_T)}, 20480", f"s_add_u32 {s(S_TMP)}, {s(S_TMP)}, {s(S_TMP2)}", f"s_add_u32 {s(S_TMP)}, {s(S_TMP)}, {PX_OFF:#x}",
      f"s_lshl_b32 {s(S_TMP2)}, {s(S_WAVE)}, 12", f"s_add_u32 {s(S_TMP2)}, {s(S_TMP2)}, {s(S_TMP)}")
    for hh in range(4): A(f"buffer_load_dwordx4 {v(PF_ + 4*hh, 4)}, {v(VL16)}, {s(WS,4)}, {s(S_TMP2)} offen offset:{1024*hh} sc1")
    A(f"s_lshl_b32 {s(S_TMP2)}, {s(S_WAVE)}, 10", f"s_add_u32 {s(S_TMP)}, {s(S_TMP)}, {s(S_TMP2)}", f"s_add_u32 {s(S_TMP)}, {s(S_TMP)}, 16384")
    for hh in range(4): A(f"buffer_load_dword {v(PF_ + 16 + hh)}, {v(VF2)}, {s(WS,4)}, {s(S_TMP)} offen offset:{256*hh} sc1")
    A(f"s_mul_i32 {s(S_TMP)}, {s(S_SEG)}, 114688", f"s_lshl_b32 {s(S_TMP2)}, {s(S_J)}, 14", f"s_add_u32 {s(S_TMP)}, {s(S_TMP)}, {s(S_TMP2)}", f"s_lshl_b32 {s(S_TMP2)}, {s(S_WAVE)}, 10",
      f"s_add_u32 {s(S_TMP)}, {s(S_TMP)}, {s(S_TMP2)}", f"s_add_u32 {s(S_TMP)}, {s(S_TMP)}, {VPE_OFF:#x}")
    for cc in range(4):
        for hh in range(4): A(f"buffer_load_dword {v(VP + 4*cc + hh)}, {v(VF2)}, {s(WS,4)}, {s(S_TMP)} offen offset:{256*hh} sc1")
        A(f"s_add_u32 {s(S_TMP)}, {s(S_TMP)}, 4096")
    for hh in range(4):
        A(f"s_waitcnt vmcnt({23 - hh})")
        for cc in range(4): A(mfma(ACC + 4*cc, v(VOX + 16*cc + 4*hh, 4), v(PF_ + 4*hh, 4), "0" if hh == 0 else None))
    A("s_waitcnt vmcnt(0)")
    for k in range(9): A(chk4(T, VP + 4*k, k == 0))
    A(f"v_cmp_eq_u32 vcc, -1, {v(T)}", f"s_cbranch_vccz {Lok}")
    timeout_step(A, Lld, abort)
    A(f"{Lok}:")
    for cc in range(4): A(mfma(ACC + 4*cc, v(VP + 4*cc, 4), v(PF_ + 16, 4)))
    A("s_nop 7")
    for cc in range(4): A(f"ds_write_b128 {v(VRW)}, {v(ACC + 4*cc, 4)} offset:{1024*cc}")
    A("s_waitcnt lgkmcnt(0)", "s_barrier")
    for w in range(4): A(f"ds_read_b128 {v(RD + 4*w, 4)}, {v(VRR)} offset:{4096*w}")
    A("s_waitcnt lgkmcnt(0)", "s_barrier")
    for r in range(4):
        A(f"v_add_f32 {v(RD+r)}, {v(RD+r)}, {v(RD+4+r)}", f"v_add_f32 {v(RD+8+r)}, {v(RD+8+r)}, {v(RD+12+r)}", f"v_add_f32 {v(RD+r)}, {v(RD+r)}, {v(RD+8+r)}")
    A(f"v_cvt_pk_bf16_f32 {v(RD+4)}, {v(RD)}, {v(RD+1)}", f"v_cvt_pk_bf16_f32 {v(RD+5)}, {v(RD+2)}, {v(RD+3)}",
      f"s_mul_i32 {s(S_TMP)}, {s(S_SEG)}, {32*1792}", f"buffer_store_dwordx2 {v(RD+4,2)}, {v(VO_)}, {s(OUT,4)}, {s(S_TMP)} offen{OFL[OFI]}")
    A(f"s_add_u32 {s(S_SEG)}, {s(S_SEG)}, {NPG}", f"s_cmp_lt_u32 {s(S_SEG)}, 64", f"s_cbranch_scc1 {Lp}", "s_endpgm")

LOIMG = 32768

def role_L(A, abort):
    VL, VG, VN, VL16, T, T2, VR0, VL4, VMK, VON, VO_, VZ, VOA = range(1, 14)
    TB = [16, 72, 128, 184]
    W_ = 240
    PK = 112
    S_W, S_IT, S_KV, S_L2E, S_EPS = S_A, S_B, S_C, S_D, S_H
    A("; ---------------- role L")
    yield_start(A, abort, "l", 14, 15)
    lanes(A, VL, VG, VN, VL16)
    A(f"s_mov_b32 {s(S_BUF)}, 0", f"s_mov_b32 {s(S_TO)}, {W_TIMEOUT}", f"s_mov_b32 {s(S_L2E)}, 0x3fb8aa3b", f"s_mov_b32 {s(S_EPS)}, 0x358637bd")
    dma_x(A, S_ROLE, S_BUF, VL16, XA)
    A(f"v_lshlrev_b32 {v(VL4)}, 2, {v(VL)}", f"v_mov_b32 {v(VZ)}, 0")
    A(f"v_lshrrev_b32 {v(T)}, 2, {v(VN)}", f"v_lshlrev_b32 {v(T2)}, 3, {v(T)}", f"v_and_b32 {v(T)}, 3, {v(VN)}", f"v_add_u32 {v(T2)}, {v(T2)}, {v(T)}",
      f"v_mul_u32_u24 {v(VR0)}, {RP}, {v(T2)}", f"v_lshl_add_u32 {v(VR0)}, {v(VG)}, 4, {v(VR0)}",
      f"v_mul_u32_u24 {v(VO_)}, 1792, {v(T2)}", f"v_lshl_add_u32 {v(VO_)}, {v(VG)}, 3, {v(VO_)}",
      f"s_mul_i32 {s(S_TMP)}, {s(S_ROLE)}, {32*1792}", f"s_mul_i32 {s(S_TMP2)}, {s(S_WAVE)}, 224", f"s_add_u32 {s(S_TMP)}, {s(S_TMP)}, {s(S_TMP2)}", f"v_add_u32 {v(VO_)}, {s(S_TMP)}, {v(VO_)}")
    A(f"v_cmp_gt_u32 vcc, 12, {v(VN)}", "s_nop 1", f"v_cndmask_b32 {v(VMK)}, 0, -1, vcc", f"v_mov_b32 {v(T)}, 0x3f803f80", f"v_cmp_eq_u32 vcc, 12, {v(VN)}", "s_nop 1", f"v_cndmask_b32 {v(VON)}, 0, {v(T)}, vcc")
    A(f"s_lshl_b32 {s(S_TMP)}, {s(S_WAVE)}, 13", f"s_add_u32 {s(S_TMP)}, {s(S_TMP)}, {LOIMG}", f"v_add_u32 {v(VOA)}, {s(S_TMP)}, {v(VL16)}")
    def ldtile(b, off):
        o = [f"s_add_u32 {s(S_TMP)}, {s(S_W)}, {off}"]
        for ks in range(14):
            o.append(f"buffer_load_dwordx4 {v(TB[b]+4*ks,4)}, {v(VL16)}, {s(WS,4)}, {s(S_TMP)} offen offset:{1024*(ks%4)} sc1")
            if ks % 4 == 3: o.append(f"s_add_u32 {s(S_TMP)}, {s(S_TMP)}, 4096")
        return o
    WQ, WO = 64, 68
    srd(A, WQ, 8, 448*1344*2); srd(A, WO, 16, 448*448*2)
    GW, FS, S1, S2, S3 = 72, 73, 74, 75, 76
    A(f"s_lshl_b32 {s(GW)}, {s(S_ROLE)}, 2", f"s_add_u32 {s(GW)}, {s(GW)}, {s(S_WAVE)}", "s_waitcnt lgkmcnt(0)")
    def wq_loads(j, base):
        A(f"s_add_u32 {s(FS)}, {s(GW)}, {256*j}",
          f"s_mul_i32 {s(S1)}, {s(FS)}, 18725", f"s_lshr_b32 {s(S1)}, {s(S1)}, 18", f"s_mul_i32 {s(S2)}, {s(S1)}, 14", f"s_sub_u32 {s(S2)}, {s(FS)}, {s(S2)}", f"s_mul_i32 {s(S2)}, {s(S2)}, {32*2688}",
          f"s_lshr_b32 {s(S3)}, {s(S1)}, 1", f"s_mul_i32 {s(S3)}, {s(S3)}, 56", f"s_add_u32 {s(S2)}, {s(S2)}, {s(S3)}", f"s_and_b32 {s(S1)}, {s(S1)}, 1", f"s_lshl_b32 {s(S1)}, {s(S1)}, 2")
        A(f"v_lshrrev_b32 {v(T)}, 2, {v(VN)}", f"v_lshlrev_b32 {v(T2)}, 3, {v(T)}", f"v_and_b32 {v(T)}, 3, {v(VN)}", f"v_add3_u32 {v(T2)}, {v(T2)}, {v(T)}, {s(S1)}",
          f"v_cmp_lt_u32 vcc, 27, {v(T2)}", f"v_lshlrev_b32 {v(T2)}, 1, {v(T2)}", f"v_mul_u32_u24 {v(T)}, {8*2688}, {v(VG)}", f"v_add_u32 {v(T2)}, {v(T2)}, {v(T)}",
          f"v_mov_b32 {v(T)}, 0x40000000", f"v_cndmask_b32 {v(T2)}, {v(T2)}, {v(T)}, vcc")
        for jj in range(8):
            A(f"buffer_load_ushort {v(base + 4*(jj % 2) + jj//2)}, {v(T2)}, {s(WQ,4)}, {s(S2)} offen", f"s_add_u32 {s(S2)}, {s(S2)}, 2688")
    def wo_loads(j, base):
        A(f"s_add_u32 {s(FS)}, {s(GW)}, {256*j}",
          f"s_lshr_b32 {s(S1)}, {s(FS)}, 4", f"s_lshl_b32 {s(S1)}, {s(S1)}, 5", f"s_and_b32 {s(S2)}, {s(FS)}, 15", f"s_mul_i32 {s(S2)}, {s(S2)}, {28*896}", f"s_add_u32 {s(S2)}, {s(S2)}, {s(S1)}")
        A(f"v_mul_u32_u24 {v(T2)}, {8*896}, {v(VG)}", f"v_lshl_add_u32 {v(T2)}, {v(VN)}, 1, {v(T2)}",
          f"v_cmp_eq_u32 vcc, 3, {v(VG)}", f"v_mov_b32 {v(T)}, 0x40000000", "s_nop 0", f"v_cndmask_b32 {v(T)}, {v(T2)}, {v(T)}, vcc")
        for jj in range(8):
            A(f"buffer_load_ushort {v(base + 4*(jj % 2) + jj//2)}, {v(T2 if jj < 4 else T)}, {s(WO,4)}, {s(S2)} offen", f"s_add_u32 {s(S2)}, {s(S2)}, 896")
    def fin(base, j, off, lim):
        for r in range(4): A(f"v_lshl_or_b32 {v(base+r)}, {v(base+4+r)}, 16, {v(base+r)}")
        A(f"s_add_u32 {s(FS)}, {s(GW)}, {256*j}", f"s_lshl_b32 {s(S1)}, {s(FS)}, 10", f"s_add_u32 {s(S1)}, {s(S1)}, {off:#x}", f"s_cmp_lt_u32 {s(FS)}, {lim}", f"s_cselect_b32 {s(S1)}, {s(S1)}, 0x40000000",
          f"buffer_store_dwordx4 {v(base,4)}, {v(VL16)}, {s(WS,4)}, {s(S1)} offen sc1")
    for j in range(6): wq_loads(j, 16 + 8*j)
    A("s_waitcnt vmcnt(0)")
    for j in range(2): wo_loads(j, 64 + 8*j)
    for j in range(6): fin(16 + 8*j, j, WQF_OFF, 1344)
    A("s_waitcnt vmcnt(6)")
    for j in range(2): fin(64 + 8*j, j, WOF_OFF, 448)
    A("s_waitcnt vmcnt(0)", "s_barrier")
    A(f"s_cmp_eq_u32 {s(S_WAVE)}, 0", f"s_cselect_b32 {s(S1)}, 0, 0x40000000", f"v_mov_b32 {v(T)}, 1", "s_mov_b64 exec, 1", f"buffer_atomic_add {v(T)}, off, {s(DBG,4)}, {s(S1)} offset:40 sc1", "s_mov_b64 exec, -1")
    Lw_, Lwg = A.label("Lw"), A.label("Lwg")
    A(f"{Lw_}:", f"buffer_load_dword {v(T)}, off, {s(DBG,4)}, 0 offset:40 sc1", "s_waitcnt vmcnt(0)", f"v_cmp_ne_u32 vcc, 64, {v(T)}", f"s_cbranch_vccz {Lwg}", "s_sleep 2")
    timeout_step(A, Lw_, abort)
    A(f"{Lwg}:")
    KO, VOF = 32*14336, 64*14336
    toff = [KO, KO + 14336, VOF, VOF + 14336]
    A(f"s_mul_i32 {s(S_W)}, {s(S_WAVE)}, {8*14336}", f"s_add_u32 {s(S_W)}, {s(S_W)}, {WQF_OFF:#x}")
    A("s_waitcnt vmcnt(0)", "s_barrier")
    for b in range(4): A(ldtile(b, toff[b]))
    for tt in range(2):
        for ks in range(14): A(f"ds_read_b128 {a_(56*tt + 4*ks, 4)}, {v(VR0)} offset:{64*ks + 4*RP*tt}")
        A("s_waitcnt lgkmcnt(0)")
    xf = lambda tt, ks: a_(56*tt + 4*ks, 4)
    def phi_pair(dst, a, b, t0):
        p, q, e, f = t0, t0+1, t0+2, t0+3
        return [f"v_cvt_pk_bf16_f32 {v(q)}, {v(a)}, {v(b)}", f"v_lshlrev_b32 {v(p)}, 16, {v(q)}", f"v_and_b32 {v(q)}, 0xffff0000, {v(q)}",
                f"v_mul_f32 {v(e)}, {s(S_L2E)}, {v(p)}", f"v_mul_f32 {v(f)}, {s(S_L2E)}, {v(q)}", f"v_exp_f32 {v(e)}, {v(e)}", f"v_exp_f32 {v(f)}, {v(f)}",
                f"v_add_f32 {v(p)}, 1.0, {v(p)}", f"v_add_f32 {v(q)}, 1.0, {v(q)}", f"v_med3_f32 {v(p)}, {v(p)}, {v(e)}, 1.0", f"v_med3_f32 {v(q)}, {v(q)}, {v(f)}, 1.0",
                f"v_cvt_pk_bf16_f32 {v(q)}, {v(p)}, {v(q)}", f"v_lshlrev_b32 {v(p)}, 16, {v(q)}", f"v_and_b32 {v(q)}, 0xffff0000, {v(q)}",
                f"v_add_f32 {v(p)}, {s(S_EPS)}, {v(p)}", f"v_add_f32 {v(q)}, {s(S_EPS)}, {v(q)}", f"v_cvt_pk_bf16_f32 {v(dst)}, {v(p)}, {v(q)}"]
    A(f"s_mov_b32 {s(S_IT)}, 0", f"s_lshl_b32 {s(S_KV)}, {s(S_WAVE)}, 14", f"s_add_u32 {s(S_KV)}, {s(S_KV)}, {KV_OFF:#x}")
    L1 = A.label("L1")
    A(f"{L1}:")
    A(f"s_add_u32 {s(S_W)}, {s(S_W)}, {2*14336}")
    for b in range(4):
        A("s_waitcnt vmcnt(42)")
        for ks in range(14):
            for tt in range(2): A(mfma(W_ + 4*tt, xf(tt, ks), v(TB[b]+4*ks, 4), "0" if ks == 0 else None))
        A(ldtile(b, toff[b]))
        for r in range(4):
            if b < 2:
                A(phi_pair(W_+8, W_+2*r, W_+2*r+1, W_+9))
                if b == 1: A(f"v_and_b32 {v(W_+8)}, {v(W_+8)}, {v(VMK)}")
            else:
                A(f"v_cvt_pk_bf16_f32 {v(W_+8)}, {v(W_+2*r)}, {v(W_+2*r+1)}")
                if b == 3: A(f"v_or_b32 {v(W_+8)}, {v(W_+8)}, {v(VON)}")
            A(f"v_accvgpr_write_b32 {a_(112 + 4*b + r)}, {v(W_+8)}")
    A("s_nop 1")
    for td in range(2):
        for te in range(2): A(mfma(W_ + 8*td + 4*te, a_(112 + 4*td, 4), a_(120 + 4*te, 4), "0"))
    A("s_waitcnt vmcnt(40)", "s_nop 7")
    for r in range(16): A(f"buffer_atomic_add_f32 {v(W_+r)}, {v(VL4)}, {s(WS,4)}, {s(S_KV)} offen offset:{256*r}")
    A(f"s_add_u32 {s(S_KV)}, {s(S_KV)}, 4096", f"s_add_u32 {s(S_IT)}, {s(S_IT)}, 1", f"s_cmp_lt_u32 {s(S_IT)}, 4", f"s_cbranch_scc1 {L1}")
    A("s_waitcnt vmcnt(0)", "s_barrier")
    if TLM: A("s_memrealtime s[92:93]")
    Ln = A.label("Lns")
    A(f"s_mov_b32 {s(S_KV)}, {CL_OFF:#x}", f"s_cmp_lg_u32 {s(S_WAVE)}, 0", f"s_cbranch_scc1 {Ln}")
    A(f"v_mov_b32 {v(T)}, 1", "s_mov_b64 exec, 1", f"buffer_atomic_add {v(T)}, off, {s(WS,4)}, {s(S_KV)} sc1", "s_mov_b64 exec, -1")
    A(f"{Ln}:")
    A(f"s_mul_i32 {s(S_W)}, {s(S_WAVE)}, {8*14336}", f"s_add_u32 {s(S_W)}, {s(S_W)}, {WQF_OFF:#x}")
    for b in range(2): A(ldtile(b, 14336*b))
    poll_eq(A, T, VZ, S_KV, 64, abort, "cl")
    if TLM: A("s_memrealtime s[94:95]")
    A(f"s_mov_b32 {s(S_IT)}, 0", f"s_lshl_b32 {s(S_KV)}, {s(S_WAVE)}, 14", f"s_add_u32 {s(S_KV)}, {s(S_KV)}, {KV_OFF:#x}")
    Q, KVR, KVT, ZO, PQ, NUM, DEN, TMPS = 128, 144, 160, 168, 172, 180, 188, 192
    L2 = A.label("L2")
    A(f"{L2}:")
    for r in range(16): A(f"buffer_load_dword {v(KVR+r)}, {v(VL4)}, {s(WS,4)}, {s(S_KV)} offen offset:{256*r} sc1")
    A(f"s_add_u32 {s(S_W)}, {s(S_W)}, {2*14336}", "s_waitcnt vmcnt(16)")
    for b in range(2):
        for ks in range(14):
            for tt in range(2): A(mfma(Q + 8*tt + 4*b, v(TB[b]+4*ks, 4), xf(tt, ks), "0" if ks == 0 else None))
    A("s_waitcnt vmcnt(0)")
    for b in range(2): A(ldtile(b, 14336*b))
    for tt in range(2):
        for r in range(4): A(phi_pair(PQ + 4*tt + r, Q + 8*tt + 2*r, Q + 8*tt + 2*r + 1, TMPS))
    for te in range(2):
        for td in range(2):
            for p in range(2): A(f"v_cvt_pk_bf16_f32 {v(KVT + 4*te + 2*td + p)}, {v(KVR + 8*td + 4*te + 2*p)}, {v(KVR + 8*td + 4*te + 2*p + 1)}")
    A("s_nop 1")
    for r in range(4): A(f"v_mov_b32_dpp {v(ZO+r)}, {v(KVT+4+r)} row_newbcast:12 row_mask:0xf bank_mask:0xf")
    A("s_nop 1")
    for tt in range(2):
        for te in range(2): A(mfma(NUM + 4*te, v(KVT + 4*te, 4), v(PQ + 4*tt, 4), "0"))
        A(mfma(DEN, v(ZO, 4), v(PQ + 4*tt, 4), "0"), "s_nop 7")
        d, u = TMPS, TMPS+1
        A(f"v_cvt_pk_bf16_f32 {v(d)}, {v(DEN)}, {v(DEN)}", f"v_and_b32 {v(d)}, 0xffff0000, {v(d)}", f"v_add_f32 {v(d)}, {s(S_EPS)}, {v(d)}",
          f"v_cvt_pk_bf16_f32 {v(d)}, {v(d)}, {v(d)}", f"v_and_b32 {v(d)}, 0xffff0000, {v(d)}", f"v_rcp_f32 {v(d)}, {v(d)}")
        for r in range(4):
            A(f"v_cvt_pk_bf16_f32 {v(u+1)}, {v(NUM+2*r)}, {v(NUM+2*r+1)}", f"v_lshlrev_b32 {v(u)}, 16, {v(u+1)}", f"v_and_b32 {v(u+1)}, 0xffff0000, {v(u+1)}",
              f"v_mul_f32 {v(u)}, {v(u)}, {v(d)}", f"v_mul_f32 {v(u+1)}, {v(u+1)}, {v(d)}", f"v_cvt_pk_bf16_f32 {v(TMPS+4+r)}, {v(u)}, {v(u+1)}")
        A(f"ds_write_b128 {v(VOA)}, {v(TMPS+4,4)} offset:{1024*tt}", "s_waitcnt lgkmcnt(0)")
    A(f"v_add_u32 {v(VOA)}, 2048, {v(VOA)}")
    A(f"s_add_u32 {s(S_KV)}, {s(S_KV)}, 4096", f"s_add_u32 {s(S_IT)}, {s(S_IT)}, 1", f"s_cmp_lt_u32 {s(S_IT)}, 4", f"s_cbranch_scc1 {L2}")
    A("s_waitcnt vmcnt(0)", "s_barrier")
    A(f"s_mul_i32 {s(S_W)}, {s(S_WAVE)}, {7*16384}", f"s_add_u32 {s(S_W)}, {s(S_W)}, {WOF_OFF:#x}")
    def ldwo(c):
        o = []
        for h in range(16):
            if h % 4 == 0: o.append(f"s_add_u32 {s(S_TMP)}, {s(S_W)}, {16384*c + 1024*h}")
            o.append(f"buffer_load_dwordx4 {v(16 + 64*(c % 3) + 4*h, 4)}, {v(VL16)}, {s(WS,4)}, {s(S_TMP)} offen offset:{1024*(h%4)} sc1")
        return o
    A(ldwo(0), ldwo(1))
    for f in range(32):
        A(f"ds_read_b128 {a_(4*f, 4)}, {v(VL16)} offset:{LOIMG + 1024*f}")
        if f % 8 == 7: A("s_waitcnt lgkmcnt(0)")
    for c in range(7):
        if c + 2 < 7: A(ldwo(c+2))
        nyoung = 16*min(2, 6-c) + (2 if c >= 1 else 0) * 0
        A(f"s_waitcnt vmcnt({16*min(2, 6-c)})")
        for h in range(16):
            for tt in range(2): A(mfma(W_ + 4*tt, v(16 + 64*(c % 3) + 4*h, 4), a_(8*h + 4*tt, 4), "0" if h == 0 else None))
        A("s_nop 7")
        for tt in range(2):
            A(f"v_cvt_pk_bf16_f32 {v(W_+8+2*tt)}, {v(W_+4*tt)}, {v(W_+4*tt+1)}", f"v_cvt_pk_bf16_f32 {v(W_+9+2*tt)}, {v(W_+4*tt+2)}, {v(W_+4*tt+3)}")
        A(f"s_mov_b32 {s(S_TMP)}, {4*1792}",
          f"buffer_store_dwordx2 {v(W_+8,2)}, {v(VO_)}, {s(OUT,4)}, 0 offen offset:{32*c}{OFL[OFI]}", f"buffer_store_dwordx2 {v(W_+10,2)}, {v(VO_)}, {s(OUT,4)}, {s(S_TMP)} offen offset:{32*c}{OFL[OFI]}")
    A("s_endpgm")
```

```python
import sys
from asm import *
from model import *
import rec, workers, prep
from rec import WS, XB, DBG, S_WAVE, S_ROLE, S_TMP, S_TMP2
from workers import OUT, XA

TKL = 0x24000
ORDERS = [("V", "X", "PV", "L"), ("V", "L", "PV", "Z", "X"), ("V", "L", "X", "PV"), ("L", "V", "PV", "Z", "X"), ("V", "PV", "L", "Z", "X")]
def main_kernel(A, name, profile=False):
    NV, NX, NPG = workers.NV, workers.NX, workers.NPG
    kernel_begin(A, name)
    Lexit = A.label("exit")
    Lx0 = A.label("go")
    A("s_cmp_lt_u32 s2, 256", f"s_cbranch_scc1 {Lx0}", "s_endpgm", f"{Lx0}:")
    if rec.DIAGX or rec.DIAGY: A("s_memrealtime s[90:91]")
    if rec.CODEPF:
        A("s_getpc_b64 s[30:31]", "Lcode_pc:", f"s_bfe_u32 s45, s2, {0x3 | (rec.CPB << 16):#x}", "s_lshl_b32 s45, s45, 15", "v_lshl_add_u32 v1, v0, 7, s45",
          "v_cmp_gt_u32 vcc, Lcode_end-Lcode_pc, v1", "s_and_saveexec_b64 s[46:47], vcc", "s_cbranch_execz Lcode_skip", "global_load_dword v238, v1, s[30:31]", "Lcode_skip:", "s_mov_b64 exec, s[46:47]")
    srd(A, WS, 96, 0x10000000); srd(A, XB, 24, 1835008); srd(A, DBG, 88, 256); srd(A, OUT, 80, 2048*896*2); srd(A, XA, 0, 1835008)
    prep.prep_srds(A)
    A("v_lshrrev_b32 v1, 6, v0", "s_nop 0", f"v_readfirstlane_b32 {s(S_WAVE)}, v1")
    A("s_getreg_b32 s44, hwreg(HW_REG_XCC_ID)", "s_and_b32 s44, s44, 7")
    if rec.XSCR: A("s_bfe_u32 s45, s2, 0x10004", "s_or_b32 s44, s44, s45")
    A("s_waitcnt lgkmcnt(0)")
    def ticket():
        A("s_lshl_b32 s45, s44, 2", f"s_cmp_eq_u32 {s(S_WAVE)}, 0", "s_cselect_b32 s45, s45, 0x40000000", "v_mov_b32 v220, 1", "s_mov_b64 exec, 1",
          f"buffer_atomic_add v220, off, {s(DBG,4)}, s45 sc0", "s_mov_b64 exec, -1")
        return 1
    prep.prep_body(A, ticket)
    if rec.TLM: A("s_memrealtime s[98:99]")
    Lw, Ld = A.label("notw0"), A.label("rd")
    A(f"s_cmp_lg_u32 {s(S_WAVE)}, 0", f"s_cbranch_scc1 {Lw}")
    A("s_mov_b64 exec, 1",
      f"v_readfirstlane_b32 s61, v220", f"s_lshl_b32 {s(S_TMP2)}, s44, 5", f"s_add_u32 {s(S_TMP2)}, {s(S_TMP2)}, s61", "s_cmp_lt_u32 s61, 32", f"s_cbranch_scc1 {Ld}")
    Lo, Lo2 = A.label("ovw"), A.label("ovg")
    A("v_mov_b32 v1, 1", f"buffer_atomic_add v1, off, {s(DBG,4)}, 0 offset:36 sc0", "s_waitcnt vmcnt(0)", "v_readfirstlane_b32 s61, v1", "s_mov_b32 s62, 300000", f"s_mov_b32 {s(S_TMP2)}, 1000")
    A("s_mov_b64 exec, -1", "v_and_b32 v2, 31, v0", "v_lshlrev_b32 v2, 2, v2")
    A(f"{Lo}:", f"buffer_load_dword v1, v2, {s(DBG,4)}, 0 offen offset:{prep.CNT0} sc1", "s_waitcnt vmcnt(0)", "v_cmp_gt_u32 vcc, 8, v1", f"s_cbranch_vccz {Lo2}",
      "s_sleep 4", "s_sub_u32 s62, s62, 1", f"s_cbranch_scc1 {Ld}", f"s_branch {Lo}")
    A(f"{Lo2}:", f"buffer_load_dwordx4 v[4:7], off, {s(DBG,4)}, 0 sc1", f"buffer_load_dwordx4 v[8:11], off, {s(DBG,4)}, 0 offset:16 sc1", "s_waitcnt vmcnt(0)")
    for x in range(8):
        Ln = A.label("ovn")
        A(f"v_readfirstlane_b32 s63, v{4+x}", "s_min_u32 s63, s63, 32", "s_sub_u32 s62, 32, s63", "s_cmp_ge_u32 s61, s62", f"s_cbranch_scc1 {Ln}",
          f"s_add_u32 {s(S_TMP2)}, s63, s61", f"s_add_u32 {s(S_TMP2)}, {s(S_TMP2)}, {32*x}", f"s_branch {Ld}", f"{Ln}:", "s_sub_u32 s61, s61, s62")
    A(f"{Ld}:", f"v_mov_b32 v1, {s(S_TMP2)}", f"v_mov_b32 v2, {TKL:#x}", "ds_write_b32 v2, v1", "s_waitcnt lgkmcnt(0)", "s_mov_b64 exec, -1")
    A(f"{Lw}:", "s_barrier", f"v_mov_b32 v2, {TKL:#x}", "ds_read_b32 v1, v2", "s_waitcnt lgkmcnt(0)", f"v_readfirstlane_b32 {s(S_ROLE)}, v1", f"s_mov_b32 {s(rec.S_TO)}, {rec.TIMEOUT}")
    if rec.RM1:
        Lm1 = A.label("rm1")
        A(f"s_cmp_ge_u32 {s(S_ROLE)}, 30", f"s_cbranch_scc1 {Lm1}",
          f"s_add_u32 {s(S_TMP)}, {s(S_ROLE)}, 16", f"s_sub_u32 {s(S_TMP2)}, {s(S_ROLE)}, 14", f"s_cmp_lt_u32 {s(S_ROLE)}, 14", f"s_cselect_b32 {s(S_ROLE)}, {s(S_TMP)}, {s(S_TMP2)}", f"{Lm1}:")
    if rec.RM2:
        Lm2 = A.label("rm2")
        A(f"s_cmp_lt_u32 {s(S_ROLE)}, 32", f"s_cbranch_scc1 {Lm2}", f"s_cmp_ge_u32 {s(S_ROLE)}, 160", f"s_cbranch_scc1 {Lm2}",
          f"s_sub_u32 {s(S_TMP)}, {s(S_ROLE)}, 32", f"s_lshr_b32 {s(S_TMP2)}, {s(S_TMP)}, 5", f"s_lshl_b32 {s(S_TMP2)}, {s(S_TMP2)}, 4", f"s_and_b32 {s(S_ROLE)}, {s(S_TMP)}, 15", f"s_add_u32 {s(S_ROLE)}, {s(S_ROLE)}, {s(S_TMP2)}",
          f"s_bitcmp1_b32 {s(S_TMP)}, 4", f"s_cselect_b32 {s(S_TMP)}, 96, 32", f"s_add_u32 {s(S_ROLE)}, {s(S_ROLE)}, {s(S_TMP)}", f"{Lm2}:")
    if rec.ROT:
        Lm = A.label("rm")
        A(f"s_cmp_lt_u32 {s(S_ROLE)}, 32", f"s_cbranch_scc1 {Lm}", f"s_cmp_ge_u32 {s(S_ROLE)}, 256", f"s_cbranch_scc1 {Lm}",
          f"s_add_u32 {s(S_ROLE)}, {s(S_ROLE)}, {rec.ROT}", f"s_sub_u32 {s(S_TMP)}, {s(S_ROLE)}, 224", f"s_cmp_ge_u32 {s(S_ROLE)}, 256", f"s_cselect_b32 {s(S_ROLE)}, {s(S_TMP)}, {s(S_ROLE)}", f"{Lm}:")
    if rec.TLM: A(f"s_mov_b32 s100, {s(S_ROLE)}")
    cnt = {"V": 16*NV, "X": 16*NX, "PV": 14*NPG, "L": 64, "Z": 6}
    ranges = [("A", 16), ("B", 30), ("PF", 32)]
    for n in ORDERS[rec.ORD]: ranges.append((n, ranges[-1][1] + cnt[n]))
    assert ranges[-1][1] <= 256
    L = {n: A.label("role" + n) for n, _ in ranges}
    J = {n: A.label("jmp" + n) for n, _ in ranges}
    for n, hi in ranges: A(f"s_cmp_lt_u32 {s(S_ROLE)}, {hi}", f"s_cbranch_scc1 {J[n]}")
    A(f"{Lexit}:", "s_endpgm")
    lo = 0
    for n, hi in ranges:
        A(f"{J[n]}:")
        if n in ("V", "X", "PV", "L"): A(f"s_sub_u32 {s(S_ROLE)}, {s(S_ROLE)}, {lo}")
        A(f"s_branch {L[n]}" if n != "Z" else "s_endpgm")
        lo = hi
    A("Lteam_code:")
    for R, fn in (("A", rec.role_A), ("B", rec.role_B)):
        A(f"{L[R]}:")
        Ls = [A.label(f"{R}w{w}") for w in range(4)]
        for w in range(1, 4): A(f"s_cmp_eq_u32 {s(S_WAVE)}, {w}", f"s_cbranch_scc1 {Ls[w]}")
        for w in range(4):
            A(f"{Ls[w]}:"); fn(A, w, Lexit, profile)
    Lx2 = A.label("exit2")
    for R, fn in (("PF", rec.role_PF), ("V", workers.role_V), ("X", workers.role_X), ("PV", workers.role_PV), ("L", workers.role_L)):
        A(f"{L[R]}:"); fn(A, Lx2)
    A(f"{Lx2}:", "Lcode_end:", "s_endpgm")
    A(kernel_desc(name))

HDR = open("concat_heads__linear_attn_block__memory_aug_recurrent_mem_tr__prompt.s.ref").read().split("; Override launch")[0] if len(sys.argv) > 2 and sys.argv[2] == "final" else ""
FINAL = bool(HDR)
DOC = """;
;   V / X / PV: x B_h and mem B_h, causal softmax of the token rows, their output;  L: the linear-attention branch
"""
KNAME = "concat_heads__linear_attn_block__memory_aug_recurrent_mem_tr__prompt_kernel" if FINAL else "main_kernel"
def generate(path, TL=0, PROFILE=0, **kw):
    rec.TLM = workers.TLM = TL
    A = Asm()
    hdr = []
    hdr.append(f"; @launch {'' if FINAL else 'kernel=main_kernel '}grid=(256,1,1) block=(256,1,1) lds=148480")
    A('.amdgcn_target "amdgcn-amd-amdhsa--gfx950"', ".text")
    g = vars(rec); saved = dict(g); g.update(FULL=1, TIMEOUT=300000); g.update(kw)
    def instrument(fn, name, idreg, base, wsreg, wavereg):
        B = Asm(); B.uid = A.uid + 100000
        fn(B, name)
        lines = B.lines
        if TL:
            i0 = lines.index(f"{name}:")
            lines.insert(i0 + 1, "    s_memrealtime s[90:91]\n    s_mov_b32 s92, 0\n    s_mov_b32 s94, 0\n    s_mov_b32 s100, 9999")
            iend = max(i for i, l in enumerate(lines) if l.strip() == "s_endpgm")
            first = True
            for i, l in enumerate(lines):
                if l.strip() == "s_endpgm": lines[i] = f"    s_branch Ltl_{name}"
            stub = f"""Ltl_{name}:
    s_cmp_ge_u32 s2, 256
    s_cbranch_scc1 Ltl2_{name}
    s_memrealtime s[96:97]
    s_load_dwordx2 s[84:85], s[0:1], 96
    s_mov_b32 s86, 0x10000000
    s_mov_b32 s87, 0x00020000
    s_waitcnt lgkmcnt(0)
    s_mov_b64 exec, -1
    v_mov_b32 v4, s98
    v_mov_b32 v5, s92
    v_mov_b32 v6, s94
    v_mov_b32 v7, s96
    s_lshl_b32 s88, {idreg}, 2
    s_add_u32 s88, s88, {wavereg}
    s_lshl_b32 s88, s88, 4
    s_add_u32 s88, s88, {base:#x}
    buffer_store_dwordx4 v[4:7], off, s[84:87], s88
    v_mov_b32 v4, s90
    s_sub_u32 s88, s88, 0x40000
    buffer_store_dword v4, off, s[84:87], s88
Ltl2_{name}:
    s_endpgm"""
            lines.insert(iend + 1, stub)
        A.lines += lines; A.uid = B.uid
    instrument(lambda B, n: main_kernel(B, n, bool(PROFILE)), KNAME, "s100", PROF_OFF + 0x40000, 4, "s16")
    g.update({k: saved[k] for k in list(kw) + ["FULL", "TIMEOUT"]})
    open(path, "w").write(HDR + "\n".join(hdr) + "\n" + (DOC if FINAL else "") + A.text())
if __name__ == "__main__":
    generate(sys.argv[1], STAMP=0 if HDR else 1)
```

```python
from asm import *
from model import *
from rec import WS, DBG, S_WAVE
PT = 0
LCOPY = 0
SL = 62
HMAP = 0
WW = 1
FLAGS = 1
WALL = 0
TKQ = 2
QST = 2
QOF = 1
UPF = 3
MSWAP = 0
ADELAY = 0
CSLEEP = 12
TOUCH = 1
CNT0 = 64

def prep_srds(A):
    W1, W2, M0S = 64, 68, 72
    S_MH = 33
    if HMAP == 0:
        A("s_and_b32 s37, s2, 7", f"s_lshl_b32 {s(S_MH)}, s37, 2", "s_lshr_b32 s37, s2, 6", f"s_add_u32 {s(S_MH)}, {s(S_MH)}, s37")
    elif HMAP == 1:
        A(f"s_and_b32 {s(S_MH)}, s2, 3", "s_lshr_b32 s37, s2, 6", "s_lshl_b32 s37, s37, 2", f"s_add_u32 {s(S_MH)}, {s(S_MH)}, s37", "s_bfe_u32 s37, s2, 0x10002", "s_lshl_b32 s37, s37, 4", f"s_add_u32 {s(S_MH)}, {s(S_MH)}, s37")
    else:
        A(f"s_and_b32 {s(S_MH)}, s2, 7", "s_lshr_b32 s37, s2, 6", "s_lshl_b32 s37, s37, 3", f"s_add_u32 {s(S_MH)}, {s(S_MH)}, s37")
    A(f"s_xor_b32 {s(S_MH)}, {s(S_MH)}, {MSWAP}")
    srd(A, M0S, 32, 7168)
    LmB, LmJ = A.label("matB"), A.label("matJ")
    A(f"s_cmp_ge_u32 {s(S_MH)}, 16", f"s_cbranch_scc1 {LmB}")
    srd(A, W1, 40, 3670016); srd(A, W2, 48, 3670016)
    A(f"s_branch {LmJ}", f"{LmB}:")
    srd(A, W1, 56, 3670016); srd(A, W2, 64, 3670016)
    A(f"{LmJ}:")

def prep_body(A, after_loads=None):
    W1, W2, M0S = 64, 68, 72
    S_W = S_WAVE
    S_MH, S_H, S_RH, S_CQ, S_T, S_T2, S_G, S_OUT, S_X, GW = range(33, 43)
    S_A0, S_A1, S_B0, S_BJ, S_BQ, S_B3, S_LD, S_RD, S_Q = 84, 85, 86, 87, 88, 89, 56, 57, 58
    VL, VG, VN, T, T2, VA, VB, VL16 = range(1, 9)
    VRA = 10
    VRB = 200
    CA, CB = 12, 224
    SLOT = 49152
    ACC, AF, BF = 16, 128, 160
    A(f"s_and_b32 {s(S_H)}, {s(S_MH)}, 15", f"s_bfe_u32 {s(S_RH)}, s2, 0x10005", f"s_bfe_u32 {s(S_CQ)}, s2, 0x20003")
    A(f"v_and_b32 {v(VL)}, 63, v0", f"v_lshrrev_b32 {v(VG)}, 4, {v(VL)}", f"v_and_b32 {v(VN)}, 15, {v(VL)}", f"v_lshlrev_b32 {v(VL16)}, 4, {v(VL)}")
    A(f"v_lshrrev_b32 {v(T)}, 3, {v(VL)}", f"v_and_b32 {v(T2)}, 7, {v(VL)}", f"v_xor_b32 {v(T2)}, {v(T2)}, {v(T)}", f"v_lshlrev_b32 {v(VA)}, 13, {v(T)}", f"v_lshl_add_u32 {v(VA)}, {v(T2)}, 4, {v(VA)}")
    A(f"s_mul_i32 {s(S_T)}, {s(S_RH)}, 7", f"s_add_u32 {s(S_T)}, {s(S_T)}, {s(S_W)}", f"s_lshl_b32 {s(S_OUT)}, {s(S_T)}, 10",
      f"s_lshl_b32 {s(S_T)}, {s(S_T)}, 18", f"s_lshl_b32 {s(S_T2)}, {s(S_H)}, 9", f"s_add_u32 {s(S_A0)}, {s(S_T)}, {s(S_T2)}",
      f"s_add_u32 {s(S_A1)}, {s(S_A0)}, {4*32*8192}", f"s_cmp_eq_u32 {s(S_W)}, 3", f"s_cselect_b32 {s(S_A1)}, 0x40000000, {s(S_A1)}")
    L = [A.label("pb%d" % i) for i in range(4)]
    A(f"s_cmp_ge_u32 {s(S_MH)}, 16", f"s_cbranch_scc1 {L[0]}")
    A(f"s_mul_i32 {s(S_T)}, {s(S_CQ)}, 112", f"s_lshl_b32 {s(S_G)}, {s(S_W)}, 5", f"s_add_u32 {s(S_T)}, {s(S_T)}, {s(S_G)}", f"s_lshl_b32 {s(S_T)}, {s(S_T)}, 13",
      f"s_add_u32 {s(S_B0)}, {s(S_T)}, {s(S_T2)}", f"s_mov_b32 {s(S_BJ)}, {8*8192}", f"s_mov_b32 {s(S_BQ)}, 128", f"s_cmp_eq_u32 {s(S_W)}, 3", f"s_cselect_b32 {s(S_B3)}, 0x40000000, 0",
      f"v_mov_b32 {v(VB)}, {v(VA)}", f"v_mov_b32 {v(VB+2)}, {v(VA)}")
    A(f"s_branch {L[1]}", f"{L[0]}:")
    A(f"s_mul_i32 {s(S_T)}, {s(S_H)}, 229376", f"s_mul_i32 {s(S_G)}, {s(S_CQ)}, 224", f"s_add_u32 {s(S_T)}, {s(S_T)}, {s(S_G)}",
      f"s_mul_i32 {s(S_G)}, {s(S_W)}, {16*896}", f"s_add_u32 {s(S_B0)}, {s(S_T)}, {s(S_G)}", f"s_mov_b32 {s(S_BJ)}, {4*896}", f"s_mov_b32 {s(S_BQ)}, {64*896}", f"s_mov_b32 {s(S_B3)}, 0",
      f"v_lshlrev_b32 {v(T)}, 1, {v(VG)}", f"v_xor_b32 {v(T)}, {v(T)}, {v(VN)}", f"v_mul_u32_u24 {v(T2)}, 896, {v(VG)}", f"v_lshl_add_u32 {v(VB)}, {v(T)}, 4, {v(T2)}",
      f"v_xor_b32 {v(T)}, 8, {v(T)}", f"v_lshl_add_u32 {v(VB+2)}, {v(T)}, 4, {v(T2)}")
    A(f"{L[1]}:")
    A(f"s_lshl_b32 {s(S_LD)}, {s(S_W)}, 12", f"s_lshl_b32 {s(S_RD)}, {s(S_W)}, 13", f"s_mul_i32 s59, {s(S_H)}, {QST}", f"s_add_u32 s59, s59, {QOF}")
    def loads(q):
        base = SLOT*(q % 3)
        G = []
        pre = ["s_and_b32 s60, s59, 3", "s_add_u32 s59, s59, 1", f"s_mul_i32 {s(S_T)}, s60, {s(S_BQ)}", f"s_add_u32 {s(S_T)}, {s(S_T)}, {s(S_B0)}", "s_lshl_b32 s60, s60, 7",
               f"s_add_u32 s61, s60, {s(S_A1)}", f"s_add_u32 s60, s60, {s(S_A0)}"]
        for j in range(4):
            g = pre if j == 0 else [f"s_add_u32 {s(S_T)}, {s(S_T)}, {s(S_BJ)}"]
            if j == 2: g = g + [f"s_add_u32 {s(S_T)}, {s(S_T)}, {s(S_B3)}"]
            G.append([f"s_add_u32 m0, {s(S_LD)}, {base + 1024*j}"] + g + [f"buffer_load_dwordx4 {v(VB + (j & 2))}, {s(W2,4)}, {s(S_T)} offen lds"])
        for half in range(2):
            for j in range(4):
                G.append([f"s_add_u32 m0, {s(S_RD)}, {base + 16384 + 4096*half + 1024*j}", f"s_add_u32 {s(S_T)}, s{60 + half}, {j*8*8192}", f"buffer_load_dwordx4 {v(VA)}, {s(W1,4)}, {s(S_T)} offen lds"])
        return G
    if PT == 1: A("s_memrealtime s[76:77]")
    A(loads(0), loads(1))
    A(f"s_lshl_b32 {s(GW)}, s2, 2", f"s_add_u32 {s(GW)}, {s(GW)}, {s(S_W)}")
    A(f"v_lshrrev_b32 {v(T)}, 1, {v(VN)}", f"v_mul_u32_u24 {v(T2)}, 896, {v(T)}", f"v_lshl_add_u32 {v(T2)}, {v(VG)}, 5, {v(T2)}", f"v_and_b32 {v(T)}, 1, {v(VN)}", f"v_lshl_add_u32 {v(T2)}, {v(T)}, 2, {v(T2)}")
    A(f"s_lshl_b32 {s(S_T)}, s2, 7", f"s_lshl_b32 {s(S_X)}, s2, 10", f"s_add_u32 {s(S_X)}, {s(S_X)}, {MEMF_OFF:#x}",
      "s_cmp_lt_u32 s2, 7", f"s_cselect_b32 {s(S_X)}, {s(S_X)}, 0x40000000", f"s_cmp_eq_u32 {s(S_W)}, 3", f"s_cselect_b32 {s(S_X)}, {s(S_X)}, 0x40000000")
    for q in range(4): A(f"buffer_load_dword {v(216+q)}, {v(T2)}, {s(M0S,4)}, {s(S_T)} offen offset:{8*q}")
    A(f"v_lshrrev_b32 v237, 3, {v(VL)}", "v_lshlrev_b32 v237, 8, v237", f"v_and_b32 {v(T)}, 7, {v(VL)}", f"v_lshl_add_u32 v237, {v(T)}, 2, v237",
      f"s_mov_b32 {s(S_T)}, {FLAGP_OFF:#x}", f"s_mov_b32 {s(S_T2)}, {FLAGP_OFF + 4096:#x}")
    for k in range(4): A(f"buffer_load_dword v{232+k}, v237, {s(WS,4)}, {s(S_T if k < 2 else S_T2)} offen offset:{2048*(k%2)} sc1")
    A(f"s_lshl_b32 s63, {s(S_MH)}, 8", f"s_bfe_u32 {s(S_T)}, s2, 0x30003", f"s_lshl_b32 {s(S_T)}, {s(S_T)}, 2", f"s_add_u32 s63, s63, {s(S_T)}", f"s_add_u32 s63, s63, {FLAGP_OFF:#x}",
      f"buffer_load_dword v236, off, {s(WS,4)}, s63 sc1")
    nm = 9
    A(f"v_lshrrev_b32 {v(T)}, 2, {v(VN)}", f"v_lshlrev_b32 {v(VRA)}, 10, {v(T)}", f"v_and_b32 {v(T)}, 3, {v(VN)}", f"v_lshl_add_u32 {v(VRA)}, {v(T)}, 7, {v(VRA)}",
      f"v_xor_b32 {v(T)}, {v(T)}, {v(VG)}", f"v_lshl_add_u32 {v(VRA)}, {v(T)}, 4, {v(VRA)}", f"s_lshl_b32 {s(S_T)}, {s(S_W)}, 13", f"s_add_u32 {s(S_T)}, {s(S_T)}, 16384", f"v_add_u32 {v(VRA)}, {s(S_T)}, {v(VRA)}")
    for r in range(4): A(f"v_mov_b32 {v(208+r)}, -1", f"v_mov_b32 {v(212+r)}, 0")
    A(f"s_mul_i32 {s(S_T)}, {s(S_H)}, 28", f"s_mul_i32 {s(S_T2)}, {s(S_CQ)}, 7", f"s_add_u32 {s(S_T)}, {s(S_T)}, {s(S_T2)}", f"s_mul_i32 {s(S_T)}, {s(S_T)}, 14336",
      f"s_add_u32 {s(S_OUT)}, {s(S_OUT)}, {s(S_T)}", f"s_cmp_ge_u32 {s(S_MH)}, 16", f"s_cselect_b32 {s(S_T)}, {WB_OFF:#x}, {WA_OFF:#x}", f"s_add_u32 {s(S_OUT)}, {s(S_OUT)}, {s(S_T)}")
    A(f"s_add_u32 {s(S_G)}, {s(S_OUT)}, 4096", f"s_cmp_eq_u32 {s(S_W)}, 3", f"s_cselect_b32 {s(S_G)}, 0x40000000, {s(S_G)}")
    sc = int(np.float32(LOG2E / 16).view(np.uint32))
    def gemm(isb):
        n = 2 if isb else 1
        if isb:
            A(f"v_lshrrev_b32 {v(T)}, 2, {v(VN)}", f"v_lshl_add_u32 {v(T2)}, {v(VG)}, 3, {v(T)}", f"v_lshlrev_b32 {v(T2)}, 8, {v(T2)}", f"v_and_b32 {v(13)}, 1, {v(VN)}", f"v_lshl_add_u32 {v(T2)}, {v(13)}, 3, {v(T2)}",
              f"v_lshlrev_b32 {v(T)}, 1, {v(T)}", f"v_and_b32 {v(15)}, 1, {v(VG)}", f"v_lshl_add_u32 {v(T)}, {v(15)}, 3, {v(T)}", f"v_bfe_u32 {v(15)}, {v(VN)}, 1, 1", f"v_or_b32 {v(T)}, {v(T)}, {v(15)}")
            for cb in range(7): A(f"v_xor_b32 {v(15)}, {2*cb}, {v(T)}", f"v_lshl_add_u32 {v(VRB+cb)}, {v(15)}, 4, {v(T2)}")
            nb = 7
        else:
            A(f"v_and_b32 {v(T)}, 7, {v(VN)}", f"v_xor_b32 {v(T)}, {v(T)}, {v(VG)}", f"v_lshlrev_b32 {v(T2)}, 7, {v(VN)}", f"v_lshl_add_u32 {v(VRB)}, {v(T)}, 4, {v(T2)}", f"v_xor_b32 {v(VRB+1)}, 64, {v(VRB)}")
            nb = 2
        if not isb: A(f"s_mov_b32 s62, {sc:#x}")
        def fills():
            G = []
            ms = (MEMS_OFF - MEMF_OFF) // 1024
            for j in range(2):
                g = [f"s_lshl_b32 {s(S_T2)}, {s(GW)}, 10", f"s_add_u32 {s(S_T2)}, {s(S_T2)}, {MEMF_OFF + (j << 20):#x}"]
                for base in (0, ms):
                    if base // 1024 == j:
                        g += [f"s_sub_u32 s43, {s(GW)}, {base % 1024}", "s_cmp_lt_u32 s43, 7", f"s_cselect_b32 {s(S_T2)}, 0x40000000, {s(S_T2)}"]
                G.append(g + [f"buffer_store_dwordx4 {v(208,4)}, {v(VL16)}, {s(WS,4)}, {s(S_T2)} offen sc1"])
            G.append([f"s_lshl_b32 {s(S_T)}, {s(GW)}, 10", f"s_add_u32 {s(S_T)}, {s(S_T)}, {ZERO_OFF:#x}", f"s_cmp_lt_u32 {s(GW)}, {ZERO_BYTES//1024}", f"s_cselect_b32 {s(S_T)}, {s(S_T)}, 0x40000000",
                      f"buffer_store_dwordx4 {v(212,4)}, {v(VL16)}, {s(WS,4)}, {s(S_T)} offen sc1"])
            G.append([f"s_sub_u32 s43, {s(GW)}, 256", f"s_lshl_b32 {s(S_T)}, s43, 10", f"s_mov_b32 {s(S_T2)}, {PX_OFF + SL*40960 - 112*(64-SL)*1024:#x}", f"s_cmp_lt_u32 s43, {112*(64-SL)}", f"s_cselect_b32 {s(S_T2)}, {VPE_OFF + SL*114688:#x}, {s(S_T2)}"])
            G.append([f"s_add_u32 {s(S_T)}, {s(S_T)}, {s(S_T2)}", f"s_cmp_lt_u32 s43, {152*(64-SL)}", f"s_cselect_b32 {s(S_T)}, {s(S_T)}, 0x40000000",
                      f"buffer_store_dwordx4 {v(208,4)}, {v(VL16)}, {s(WS,4)}, {s(S_T)} offen sc1"])
            G.append([f"v_min_u32 {v(216+k)}, -2, {v(216+k)}" for k in range(4)] + [f"buffer_store_dwordx4 {v(216,4)}, {v(VL16)}, {s(WS,4)}, {s(S_X)} offen sc1"])
            G.append([f"s_add_u32 {s(S_X)}, {s(S_X)}, {ALT:#x}", f"buffer_store_dwordx4 {v(216,4)}, {v(VL16)}, {s(WS,4)}, {s(S_X)} offen sc1"])
            return G
        def epi(cb):
            o = []
            for half in range(2):
                d = ACC + 16*cb + 8*half
                if not isb: o += [f"v_mul_f32 {v(d+r)}, s62, {v(d+r)}" for r in range(8)]
                o += [f"v_cvt_pk_bf16_f32 {v(d+r)}, {v(d+2*r)}, {v(d+2*r+1)}" for r in range(4)]
                so = S_OUT if half == 0 else S_G
                o += [f"buffer_store_dwordx4 {v(d,4)}, {v(VL16)}, {s(WS,4)}, {s(so)} offen sc1", f"s_add_u32 {s(so)}, {s(so)}, 14336"]
            return o
        for q in range(4):
            base = SLOT*(q % 3)
            A(f"s_waitcnt vmcnt({[12 + nm, 12, 12, 7][q]})", "s_barrier")
            if PT == 1 and q in (0, 3): A(f"s_memrealtime s[{78 if q == 0 else 80}:{79 if q == 0 else 81}]")
            A(f"v_add_u32 {v(CA)}, {base}, {v(VRA)}")
            for k in range(nb): A(f"v_add_u32 {v(CB+k)}, {base}, {v(VRB+k)}")
            def rdB(i):
                cb, el = i // 2, i % 2
                if isb: return [f"ds_read_b64_tr_b16 {v(BF + 4*(i % 4) + 2*u, 2)}, {v(CB+cb)} offset:{(32*el + 4*u)*256}" for u in range(2)]
                return [f"ds_read_b128 {v(BF + 4*(i % 4), 4)}, {v(CB+el)} offset:{cb*2048}"]
            for f in range(8):
                half, t_, el = f // 4, (f // 2) % 2, f % 2
                A(f"ds_read_b128 {v(AF+4*f,4)}, {v(CA)} offset:{half*4096 + t_*512 + 64*(el ^ t_)}")
            for i in range(3): A(rdB(i))
            G = loads(q+2) if q < 2 else (fills() if q == 2 else [])
            if q == 2: after_loads(); A("s_nop 3")
            pend = []
            for i in range(14):
                cb, el = i // 2, i % 2
                if i + 3 < 14: A(rdB(i+3), f"s_waitcnt lgkmcnt({3*n})")
                else: A(f"s_waitcnt lgkmcnt({(13-i)*n})")
                if q == 3 and el == 1 and cb > 0: pend += epi(cb-1)
                for half in range(2):
                    for t_ in range(2):
                        d = ACC + 16*cb + 8*half + 4*t_
                        A(f"v_mfma_f32_16x16x32_bf16 {v(d,4)}, {v(AF + 16*half + 8*t_ + 4*el, 4)}, {v(BF + 4*(i % 4), 4)}, " + ("0" if q == 0 and el == 0 else v(d,4)))
                        if half == 0 and t_ == 0 and G: A(G.pop(0))
                        for _ in range(2 if isb else 4):
                            if pend: A(pend.pop(0))
            if q == 3: A(pend, "s_nop 7", epi(6))
    A(f"s_cmp_ge_u32 {s(S_MH)}, 16", f"s_cbranch_scc1 {L[2]}")
    gemm(False)
    A(f"s_branch {L[3]}", f"{L[2]}:")
    gemm(True)
    A(f"{L[3]}:")
    if PT == 1: A("s_memrealtime s[82:83]")
    A("s_waitcnt vmcnt(0)", "s_barrier")
    if PT:
        A("s_waitcnt lgkmcnt(0)", "v_mov_b32 v12, s76", "v_mov_b32 v13, s78", "v_mov_b32 v14, s80", "v_mov_b32 v15, s82",
          f"s_lshl_b32 {s(S_T)}, {s(GW)}, 4", f"s_add_u32 {s(S_T)}, {s(S_T)}, {PROF_OFF + 0x80000:#x}", f"buffer_store_dwordx4 v[12:15], off, {s(WS,4)}, {s(S_T)}")
    A(f"s_lshl_b32 {s(S_T)}, {s(S_MH)}, 2", f"s_cmp_eq_u32 {s(S_W)}, 0", f"s_cselect_b32 {s(S_T)}, {s(S_T)}, 0x40000000",
      "s_cselect_b32 s63, s63, 0x40000000", "v_add_u32 v236, 1, v236",
      f"v_mov_b32 {v(T)}, 1", "s_mov_b64 exec, 1", f"buffer_store_dword v236, off, {s(WS,4)}, s63 sc1", f"buffer_atomic_add {v(T)}, off, {s(DBG,4)}, {s(S_T)} offset:{CNT0} sc1", "s_mov_b64 exec, -1")
    if LCOPY:
        Lk = A.label("nokeep")
        A("s_cmp_lg_u32 s44, 0", f"s_cbranch_scc1 {Lk}")
        for cb in range(6, -1, -1):
            for half in range(2):
                so = S_OUT if half == 0 else S_G
                A(f"s_sub_u32 {s(so)}, {s(so)}, 14336", f"buffer_store_dwordx4 {v(ACC + 16*cb + 8*half, 4)}, {v(VL16)}, {s(WS,4)}, {s(so)} offen")
        A(f"{Lk}:")

def wait_tiles(A, lo, n, abort, tag, S_TO, vt, va, st=(60, 61, 62)):
    if not FLAGS: return wait_counters(A, lo, n, abort, tag, S_TO, vt, va)
    a, b, c = st
    Lp, Lgo, Lfb = A.label(tag + "tw"), A.label(tag + "tg"), A.label(tag + "tf")
    A(f"s_cmp_lg_u32 {s(S_WAVE)}, 0", f"s_cbranch_scc1 {Lfb}", f"s_mov_b32 s{c}, 64")
    if n == 1:
        A(f"s_lshr_b32 s{a}, {lo}, 3", f"v_mov_b32 {v(va)}, v232")
        for k in range(1, 4): A(f"s_cmp_eq_u32 s{a}, {k}", "s_cselect_b64 vcc, -1, 0", f"v_cndmask_b32 {v(va)}, {v(va)}, v{232+k}, vcc")
        A(f"s_lshl_b32 s{a}, s{a}, 11", f"s_add_u32 s{a}, s{a}, {FLAGP_OFF:#x}", f"s_and_b32 s{b}, {lo}, 7", f"s_lshl_b32 s{b}, s{b}, 3", "s_mov_b64 exec, 0xff", f"s_lshl_b64 exec, exec, s{b}")
        A(f"{Lp}:", f"buffer_load_dword {v(vt)}, v237, {s(WS,4)}, s{a} offen sc1", "s_waitcnt vmcnt(0)", f"v_cmp_eq_u32 vcc, {v(vt)}, {v(va)}", f"s_cbranch_vccz {Lgo}")
    else:
        A(f"s_mov_b32 s{a}, {FLAGP_OFF + 4096:#x}")
        A(f"{Lp}:", f"buffer_load_dword {v(vt)}, v237, {s(WS,4)}, s{a} offen sc1", f"buffer_load_dword {v(va)}, v237, {s(WS,4)}, s{a} offen offset:2048 sc1", "s_waitcnt vmcnt(0)",
          f"v_cmp_eq_u32 s[66:67], {v(vt)}, v234", f"v_cmp_eq_u32 vcc, {v(va)}, v235", "s_nop 1", "s_or_b64 vcc, vcc, s[66:67]", f"s_cbranch_scc0 {Lgo}")
    A(f"s_sleep {CSLEEP}", f"s_sub_u32 s{c}, s{c}, 1", f"s_cbranch_scc0 {Lp}", "s_mov_b64 exec, -1")
    A(f"{Lfb}:")
    Lj = A.label("tj")
    wait_counters(A, lo, n, abort, tag, S_TO, vt, va)
    A(f"s_branch {Lj}", f"{Lgo}:", "s_mov_b64 exec, -1", "s_barrier", f"{Lj}:")
def wait_tiles_wave(A, setup, abort, tag, S_TO, vt, va, st=(60, 61, 62)):
    from rec import timeout_step
    a, b, c = st
    Lp, Lgo, Lf = A.label(tag + "ww"), A.label(tag + "wg"), A.label(tag + "wf")
    setup(a, b)
    A(f"v_mov_b32 {v(va)}, v232", f"s_mov_b32 s{c}, 64")
    for k in range(1, 4): A(f"s_cmp_eq_u32 s{a}, {k}", "s_cselect_b64 vcc, -1, 0", f"v_cndmask_b32 {v(va)}, {v(va)}, v{232+k}, vcc")
    A(f"s_lshl_b32 s{a}, s{a}, 11", f"s_add_u32 s{a}, s{a}, {FLAGP_OFF:#x}")
    A(f"{Lp}:", f"buffer_load_dword {v(vt)}, v237, {s(WS,4)}, s{a} offen sc1", "s_waitcnt vmcnt(0)", f"v_cmp_eq_u32 vcc, {v(vt)}, {v(va)}", f"s_cbranch_vccz {Lgo}")
    A(f"s_sleep {CSLEEP}", f"s_sub_u32 s{c}, s{c}, 1", f"s_cbranch_scc0 {Lp}", "s_mov_b64 exec, -1")
    A(f"v_and_b32 {v(va)}, 31, v0", f"v_lshlrev_b32 {v(va)}, 2, {v(va)}")
    A(f"{Lf}:", f"buffer_load_dword {v(vt)}, {v(va)}, {s(DBG,4)}, 0 offen offset:{CNT0} sc1", "s_waitcnt vmcnt(0)", f"v_cmp_gt_u32 vcc, 8, {v(vt)}", f"s_cbranch_vccz {Lgo}", "s_sleep 30")
    timeout_step(A, Lf, abort)
    A(f"{Lgo}:", "s_mov_b64 exec, -1")

def one_matrix(A, mh):
    def setup(a, b):
        A(f"s_lshr_b32 s{a}, {mh}, 3", f"s_and_b32 s{b}, {mh}, 7", f"s_lshl_b32 s{b}, s{b}, 3", f"s_add_u32 s{b}, s{b}, {s(S_WAVE)}", "s_mov_b64 exec, 0x11", f"s_lshl_b64 exec, exec, s{b}")
    return setup
PREP_LDS = 256*288 + 64*1088

def wait_counters(A, lo, n, abort, tag, S_TO, vt=1, va=2, sleep=None, sleep_first=False):
    from rec import timeout_step
    if WALL:
        if n == 32 and tag in "ABVX": return
        lo, n = 0, 32
    Lp, Lgo = A.label(tag + "cw"), A.label(tag + "cg")
    A(f"s_cmp_lg_u32 {s(S_WAVE)}, 0", f"s_cbranch_scc1 {Lgo}")
    A(f"v_and_b32 {v(va)}, {n-1}, v0", f"v_add_lshl_u32 {v(va)}, {v(va)}, {lo}, 2")
    sl = f"s_sleep {sleep or CSLEEP}"
    A(f"{Lp}:", [sl, sl] if sleep_first else "", f"buffer_load_dword {v(vt)}, {v(va)}, {s(DBG,4)}, 0 offen offset:{CNT0} sc1", "s_waitcnt vmcnt(0)", f"v_cmp_gt_u32 vcc, 8, {v(vt)}", f"s_cbranch_vccz {Lgo}", "" if sleep_first else sl)
    if sleep_first: A(f"s_sub_u32 {s(S_TO)}, {s(S_TO)}, 40", f"s_cbranch_scc1 {abort}", f"s_branch {Lp}")
    else: timeout_step(A, Lp, abort)
    A(f"{Lgo}:", "s_barrier")
```

```python
from asm import *
from model import *

WS, XB, DBG = 4, 8, 12
S_WAVE, S_ROLE, S_STEP, S_MEM, S_MEM2, S_P, S_X, S_VOX, S_TO, S_TMP, S_TMP2, S_P2, S_MEMN = range(16, 29)
S_PROF = 30
NSTEPS = 63
PACCUM = 0
PMASK = 255
TIMEOUT = 40000

def smf(d, a, b, idx, hi=False):
    return f"v_smfmac_f32_16x16x64_bf16 {v(d,4)}, {v(a,4)}, {b}, {v(idx)}" + (" abid:1" if hi else "")

def wreg(f, n=8, sub=0):
    return a_(8*f + sub, n) if f < 32 else v(120 + 8*(f-32) + sub, n)

def lane_consts(A, VL, VG, VN):
    A(f"v_and_b32 {v(VL)}, 63, v0", f"v_lshrrev_b32 {v(VG)}, 4, {v(VL)}", f"v_and_b32 {v(VN)}, 15, {v(VL)}")

def mem_lane_off(A, dst, VG, VN, t):
    A(f"v_lshlrev_b32 {v(dst)}, 8, {v(VG)}", f"v_lshl_add_u32 {v(dst)}, {v(VN)}, 4, {v(dst)}")

def idx_const(A, dst, VN, t):
    A(f"v_and_b32 {v(t)}, 1, {v(VN)}", f"v_mul_u32_u24 {v(dst)}, 0xAAAA, {v(t)}",
      f"v_lshrrev_b32 {v(t)}, 3, {v(VN)}", f"v_mul_u32_u24 {v(t)}, 0xAAAA, {v(t)}",
      f"v_lshl_add_u32 {v(dst)}, {v(t)}, 16, {v(dst)}", f"v_add_u32 {v(dst)}, 0x44444444, {v(dst)}")

def memload(dst, voff, kb):
    so = S_MEM if kb < 4 else S_MEM2
    return f"buffer_load_dwordx4 {v(dst,4)}, {v(voff)}, {s(WS,4)}, {s(so)} offen offset:{(kb%4)*1024} sc1"

def chk4(t, r, first=True):
    if first:
        return [f"v_max3_u32 {v(t)}, {v(r)}, {v(r+1)}, {v(r+2)}", f"v_max_u32 {v(t)}, {v(t)}, {v(r+3)}"]
    return [f"v_max3_u32 {v(t)}, {v(t)}, {v(r)}, {v(r+1)}", f"v_max3_u32 {v(t)}, {v(t)}, {v(r+2)}, {v(r+3)}"]

def timeout_step(A, again, abort):
    A(f"s_sub_u32 {s(S_TO)}, {s(S_TO)}, 1", f"s_cbranch_scc1 {abort}", f"s_branch {again}")

def prof(A, slot, on):
    if on and (PMASK >> slot) & 1:
        A(f"s_memtime {s(S_PROF+2*slot,2)}")

def prof_flush(A, n, vt, vz, role_wave_off):
    A("s_waitcnt lgkmcnt(0)")
    A(f"s_lshl_b32 {s(S_TMP)}, {s(S_ROLE)}, 2", f"s_add_u32 {s(S_TMP)}, {s(S_TMP)}, {s(S_WAVE)}", f"s_lshl_b32 {s(S_TMP)}, {s(S_TMP)}, 6",
      f"s_add_u32 {s(S_TMP)}, {s(S_TMP)}, {s(S_STEP)}", f"s_lshl_b32 {s(S_TMP)}, {s(S_TMP)}, 6", f"s_add_u32 {s(S_TMP)}, {s(S_TMP)}, {PROF_OFF:#x}")
    A(f"v_mov_b32 {v(vz)}, 0")
    for k in range(n):
        A(f"v_mov_b32 {v(vt)}, {s(S_PROF+2*k)}", f"buffer_store_dword {v(vt)}, {v(vz)}, {s(WS,4)}, {s(S_TMP)} offen offset:{4*k}")

def prof_acc(A, n):
    A("s_memtime s[72:73]", "s_waitcnt lgkmcnt(0)")
    for k in range(n):
        A(f"s_sub_u32 {s(S_TMP)}, {s(S_PROF+2*k)}, s71", f"s_add_u32 s{74+k}, s{74+k}, {s(S_TMP)}")
    A(f"s_sub_u32 {s(S_TMP)}, s72, s71", f"s_add_u32 s{74+n}, s{74+n}, {s(S_TMP)}", "s_mov_b32 s71, s72" if PACCUM == 1 else "s_mov_b32 s71, 0")
    Lz = A.label("pz")
    A(f"s_cmp_lg_u32 {s(S_STEP)}, 12", f"s_cbranch_scc1 {Lz}")
    for k in range(n+1): A(f"s_mov_b32 s{74+k}, 0")
    A(f"{Lz}:")
def prof_acc_out(A, n):
    A(f"s_lshl_b32 {s(S_TMP)}, {s(S_ROLE)}, 2", f"s_add_u32 {s(S_TMP)}, {s(S_TMP)}, {s(S_WAVE)}", f"s_lshl_b32 {s(S_TMP)}, {s(S_TMP)}, 6", f"s_add_u32 {s(S_TMP)}, {s(S_TMP)}, {PROF_OFF:#x}")
    for k in range(n+1):
        A(f"v_mov_b32 v0, s{74+k}", f"buffer_store_dword v0, off, {s(WS,4)}, {s(S_TMP)} offset:{4*k}")

def emit_slots(A, slots):
    for sl in slots:
        A(sl['m']); A(sl['pre']); A(sl['valu']); A(sl['post'])

TIMG = 0
TW = 1808
MIMG = 8192
XIMG = 16384
RS = 256
XSL = 20480
A_SLEEP = 0
ALGN = 0
PAD4 = 0
BG1 = 70
BG2 = 65
BWIN = 28
DIAGX = 0
DIAGY = 0
BDYN = 1
PK = 1
TAILV = 1
PFI = 0
TLS = 2
AWIN = 0
AW0 = 0
BBAL = 1
PBH = [4, 14, 5, 15, 3, 13]
PBN = 0
RM1 = 0
PFS = 0
PFW = 0
TSP = 2
VPB = 0
XEARLY = 1
XG1 = 14
XN1 = 8
TPOST = 0
BREL = 9
ROT = 0
CODEPF = 9
CPB = 5
RM2 = 0
ORD = 0
X_FIXVOX = 0
X_XSN = 14
PG1 = 10
PG2 = 0
WFI = 0
FS0 = 0
FSD = 0
B1S = 38
B2S = 47
TRN = 4
X_NOPM = 0
PFA = 3
ATOUCH = 3
VPRE = 0
BTOUCH = 0
BT0 = 1
BTA = 1
TCH0 = 14
TAHEAD = 1
TGATE = 2
XPRE = 14
XPG = 18
X_NOVOX = 0
X_NOV = 0
FPD = 5
PGAP = 30
WARM = 0
B0S = 16
LG = 46
P2W = 10
F2AT = 0
XSCR = 0
EXW = 6
TLM = 0
FROFF = 14336
F1AT = 2
FULL = 0
PB2 = 0
LDFL = 0
F1GO = 1
VOXS = 3
STAMP = 1
XS0 = 10
XSN = 28
D1 = 84
D2 = 18
F2D = 42
F2OFF = 10240
F1OFF = 12288
APW = 2
BPW = 3
F1W = 2
X_NODMA = 0
X_NOH = 0
X_NOTR = 0
X_NOCONV = 0
X_NOB1 = 0
B_SLEEP_M = 4
B_SLEEP_P = 0

def nops(n):
    out = []
    while n > 0:
        k = min(n, 16); out.append(f"s_nop {k-1}"); n -= k
    return out

def flag_ld(r, voff, soff, off):
    return f"buffer_load_dword {v(r)}, {v(voff)}, {s(WS,4)}, {s(soff)} offen offset:{off} sc1"
def flag_poll(A, regs, voff, soff, off, abort, tag, primed=False):
    Lp, Lgo = A.label(tag + "fp"), A.label(tag + "go")
    ld = lambda r: flag_ld(r, voff, soff, off)
    n = len(regs)
    if not primed:
        for r in regs: A(ld(r), f"s_nop {48 // n - 1}")
    A(f"{Lp}:")
    for r in regs:
        A(f"s_waitcnt vmcnt({n-1})", f"v_cmp_eq_u32 vcc, -1, {v(r)}", f"s_cbranch_vccz {Lgo}", ld(r))
    timeout_step(A, Lp, abort)
    A(f"{Lgo}:")

def mkslots(ms):
    return [dict(m=m, pre=[], valu=[], post=[]) for m in ms]

S_SLOW = 47
def read_mode(A, vt):
    if FULL:
        A(f"buffer_load_dword {v(vt)}, off, {s(DBG,4)}, 0 sc1", "s_waitcnt vmcnt(0)", f"v_readfirstlane_b32 {s(S_SLOW)}, {v(vt)}", f"s_cmp_ge_u32 {s(S_SLOW)}, 32", f"s_cselect_b32 {s(S_SLOW)}, 0x40000000, 0")
    else:
        A(f"s_mov_b32 {s(S_SLOW)}, 0x40000000")

def role_A(A, w, abort, profile=False):
    import prep
    WFL = [' sc1', '', ' nt', ' sc1 nt'][WFI]
    MEMR, ACC, HT = 0, 28, 56
    IDX, VMEM, VTW, VTR, VH, VX, TMP, TMP2 = range(112, 120)
    VG, VN, VL = 1, 2, 3
    ko = [(w + i) % 3 for i in range(3)] + [3, 4, 5, 6]
    lane_consts(A, VL, VG, VN)
    idx_const(A, IDX, VN, TMP)
    mem_lane_off(A, VMEM, VG, VN, TMP)
    A(f"v_lshlrev_b32 {v(VTW)}, 4, {v(VN)}", f"v_lshl_add_u32 {v(VTW)}, {v(VG)}, 2, {v(VTW)}", f"v_add_u32 {v(VTW)}, {TIMG + w*TW}, {v(VTW)}")
    A(f"v_and_b32 {v(TMP)}, 1, {v(VG)}", f"v_mul_u32_u24 {v(VTR)}, {2*TW}, {v(TMP)}",
      f"v_lshrrev_b32 {v(TMP)}, 3, {v(VN)}", f"v_lshl_add_u32 {v(VTR)}, {v(TMP)}, 7, {v(VTR)}",
      f"v_bfe_u32 {v(TMP)}, {v(VN)}, 1, 1", f"v_lshl_add_u32 {v(VTR)}, {v(TMP)}, 6, {v(VTR)}",
      f"v_lshrrev_b32 {v(TMP)}, 1, {v(VG)}", f"v_lshl_add_u32 {v(VTR)}, {v(TMP)}, 5, {v(VTR)}",
      f"v_bfe_u32 {v(TMP)}, {v(VN)}, 2, 1", f"v_lshl_add_u32 {v(VTR)}, {v(TMP)}, 4, {v(VTR)}",
      f"v_and_b32 {v(TMP)}, 1, {v(VN)}", f"v_lshl_add_u32 {v(VTR)}, {v(TMP)}, 3, {v(VTR)}")
    if TIMG: A(f"v_add_u32 {v(VTR)}, {TIMG}, {v(VTR)}")
    if w < 3:
        A(f"v_lshlrev_b32 {v(VX)}, 10, {v(VG)}",
          f"v_lshl_add_u32 {v(VX)}, {v(VN)}, {3 if w < 2 else 2}, {v(VX)}", f"v_add_u32 {v(VX)}, {XIMG + (4*w if w < 2 else 128)}, {v(VX)}")
    if w < 2:
        A(f"v_lshlrev_b32 {v(VH)}, 4, {v(VL)}")
    elif w == 2:
        A(f"v_mul_u32_u24 {v(VH)}, 1792, {v(VG)}", f"v_and_b32 {v(TMP)}, 7, {v(VN)}", f"v_lshl_add_u32 {v(VH)}, {v(TMP)}, 5, {v(VH)}",
          f"v_add_u32 {v(VH)}, {MIMG}, {v(VH)}")
    else:
        PXO, PMO = HT + 40, HT + 41
        A(f"v_lshrrev_b32 {v(TMP2)}, 3, {v(VL)}", f"v_mul_u32_u24 {v(VH)}, {RS}, {v(TMP2)}", f"v_and_b32 {v(TMP)}, 7, {v(VL)}",
          f"v_lshl_add_u32 {v(VX)}, {v(TMP)}, 4, {v(VH)}", f"v_add_u32 {v(VX)}, {XIMG}, {v(VX)}",
          f"v_lshl_add_u32 {v(VH)}, {v(TMP)}, 2, {v(VH)}", f"v_add_u32 {v(VH)}, {XIMG + 128}, {v(VH)}")
        A(f"v_and_b32 {v(TMP)}, 3, {v(VL)}", f"v_lshlrev_b32 {v(PXO)}, 3, {v(TMP)}", f"v_lshl_add_u32 {v(PXO)}, {v(TMP2)}, 5, {v(PXO)}",
          f"v_bfe_u32 {v(TMP)}, {v(VL)}, 2, 1", f"v_lshl_add_u32 {v(PXO)}, {v(TMP)}, 8, {v(PXO)}",
          f"s_lshl_b32 {s(S_TMP)}, {s(S_ROLE)}, 9", f"v_add_u32 {v(PXO)}, {s(S_TMP)}, {v(PXO)}")
        A(f"v_lshlrev_b32 {v(PMO)}, 5, {v(TMP2)}",
          f"v_bfe_u32 {v(TMP)}, {v(VL)}, 2, 1", f"v_lshl_add_u32 {v(PMO)}, {v(TMP)}, 8, {v(PMO)}",
          f"v_bfe_u32 {v(TMP)}, {v(VL)}, 1, 1", f"v_lshl_add_u32 {v(PMO)}, {v(TMP)}, 3, {v(PMO)}",
          f"s_lshr_b32 {s(S_TMP)}, {s(S_ROLE)}, 2", f"s_lshl_b32 {s(S_TMP)}, {s(S_TMP)}, 9",
          f"s_and_b32 {s(S_TMP2)}, {s(S_ROLE)}, 1", f"s_lshl_b32 {s(S_TMP2)}, {s(S_TMP2)}, 4", f"s_add_u32 {s(S_TMP)}, {s(S_TMP)}, {s(S_TMP2)}",
          f"s_bfe_u32 {s(S_TMP2)}, {s(S_ROLE)}, 0x10001", f"s_lshl_b32 {s(S_TMP2)}, {s(S_TMP2)}, 2", f"s_add_u32 {s(S_TMP)}, {s(S_TMP)}, {s(S_TMP2)}",
          f"s_add_u32 {s(S_TMP)}, {s(S_TMP)}, 8192", f"v_add_u32 {v(PMO)}, {s(S_TMP)}, {v(PMO)}")
        A(f"v_and_b32 {v(TMP)}, 1, {v(VL)}", f"v_lshl_add_u32 {v(PMO)}, {v(TMP)}, 30, {v(PMO)}")
    if w == APW:
        A(f"v_min_u32 {v(TMP2)}, 13, {v(VL)}", f"v_lshlrev_b32 {v(TMP2)}, 2, {v(TMP2)}", f"s_lshr_b32 {s(S_TMP)}, {s(S_ROLE)}, 2", f"s_lshl_b32 {s(S_TMP)}, {s(S_TMP)}, 8", f"s_add_u32 {s(S_TMP)}, {s(S_TMP)}, {F1OFF}", f"v_add_u32 {v(TMP2)}, {s(S_TMP)}, {v(TMP2)}")
    if w == 3:
        A(f"v_lshlrev_b32 {v(TMP2)}, 7, {v(VL)}", f"s_lshl_b32 {s(S_TMP)}, {s(S_ROLE)}, 2", f"s_add_u32 {s(S_TMP)}, {s(S_TMP)}, {F2OFF}", f"v_add_u32 {v(TMP2)}, {s(S_TMP)}, {v(TMP2)}",
          f"v_cmp_lt_u32 vcc, 13, {v(VL)}", f"v_mov_b32 {v(TMP)}, 0x40000000", "s_nop 0", f"v_cndmask_b32 {v(TMP2)}, {v(TMP2)}, {v(TMP)}, vcc")
    if FULL and prep.WW: prep.wait_tiles_wave(A, prep.one_matrix(A, s(S_ROLE)), abort, "A", S_TO, 4, 5)
    elif FULL: prep.wait_tiles(A, s(S_ROLE), 1, abort, "A", S_TO, 4, 5)
    A(f"v_lshlrev_b32 {v(TMP)}, 4, {v(VL)}")
    A(f"s_mul_i32 {s(S_TMP)}, {s(S_ROLE)}, {28*14336}", f"s_add_u32 {s(S_TMP)}, {s(S_TMP)}, {WA_OFF + 7*w*14336}")
    for cb in range(7):
        for p in range(7):
            f = cb*7 + p
            off = cb*14336 + ko[p]*2048
            A(f"s_add_u32 {s(S_TMP2)}, {s(S_TMP)}, {off}")
            for hi in range(2):
                A(f"buffer_load_dwordx4 {wreg(f,4,4*hi)}, {v(TMP)}, {s(WS,4)}, {s(S_TMP2)} offen offset:{1024*hi}{WFL}")
            if AWIN and f >= AW0: A(f"s_waitcnt vmcnt({AWIN})")
        if cb >= 2: A("s_waitcnt vmcnt(28)")
    A(f"s_mov_b32 {s(S_STEP)}, 0", f"s_mov_b32 {s(S_MEM)}, {MEMF_OFF:#x}", f"s_mov_b32 {s(S_MEM2)}, {MEMF_OFF+4096:#x}",
      f"s_mov_b32 {s(S_P)}, {PF_OFF:#x}", f"s_mov_b32 {s(S_X)}, {XS_OFF + 14336*(w%2):#x}", f"s_mov_b32 {s(S_TO)}, {TIMEOUT}")
    Lstep = A.label(f"A{w}step"); Lpoll = A.label(f"A{w}poll")
    def cv_wait(ahead):
        Lc, Lg = A.label("cvp"), A.label("cvg")
        A(f"s_add_u32 {s(S_TMP2)}, {s(S_P)}, {16384*ahead + FROFF}", f"v_cmp_ne_u32 vcc, 15, {v(TMP2)}", f"s_cbranch_vccz {Lg}")
        A(f"{Lc}:", f"buffer_load_dword {v(TMP2)}, off, {s(WS,4)}, {s(S_TMP2)} sc1", "s_waitcnt vmcnt(0)", f"v_cmp_ne_u32 vcc, 15, {v(TMP2)}", f"s_cbranch_vccz {Lg}", "s_sleep 1")
        timeout_step(A, Lc, abort)
        A(f"{Lg}:", f"s_add_u32 {s(S_TMP2)}, {s(S_TMP2)}, 16384", f"buffer_load_dword {v(TMP2)}, off, {s(WS,4)}, {s(S_TMP2)} sc1")
    if FULL: prep.wait_counters(A, 0, 32, abort, "A", S_TO, 4, 5)
    if w == 3: read_mode(A, 4)
    if FULL and w < 2: A(f"v_mov_b32 {v(TMP2)}, 0")
    if w == 3:
        A(f"v_lshlrev_b32 {v(HT+43)}, 7, {v(VL)}", f"s_lshl_b32 {s(S_VOX)}, {s(S_ROLE)}, {13 + BTOUCH}", f"s_add_u32 {s(S_VOX)}, {s(S_VOX)}, {VOX_OFF + 458752*TAHEAD + (65536 << BTOUCH)*PF_VOX:#x}",
          f"s_cmp_lt_u32 {s(S_ROLE)}, {max(0, (56 >> BTOUCH) - 8*PF_VOX - 16*(ATOUCH-1))}", f"s_cselect_b32 s59, {(131072 << BTOUCH)*max(0, ATOUCH-1)}, 0x40000000")
        A(f"s_cmp_lt_u32 {s(S_ROLE)}, 7", f"s_cselect_b32 s61, {ALT:#x}, 0x40000000", f"s_min_u32 {s(S_TMP)}, {s(S_ROLE)}, 6",
          f"s_lshl_b32 {s(S_TMP)}, {s(S_TMP)}, 10", f"v_add_u32 {v(HT+47)}, {s(S_TMP)}, {v(VMEM)}")
    if w < 2:
        A(f"v_lshrrev_b32 v6, 3, {v(VN)}", "v_lshlrev_b32 v7, 4, v6", f"v_and_b32 v6, 3, {v(VN)}", "v_lshl_add_u32 v7, v6, 2, v7", f"v_bfe_u32 v6, {v(VN)}, 2, 1", "v_lshl_add_u32 v7, v6, 1, v7",
          f"v_add_u32 v7, {w}, v7", "v_mul_u32_u24 v7, 896, v7", f"v_mul_u32_u24 v6, 224, {v(VG)}", "v_add_u32 v7, v7, v6")
        for j in range(14): A(f"buffer_load_dwordx4 {v(HT+4*j,4)}, v7, {s(XB,4)}, 0 offen offset:{16*j}")
        A("s_waitcnt vmcnt(0)")
        for k in range(7):
            b = HT + 8*k
            A(f"v_swap_b32 {v(b+1)}, {v(b+2)}", f"v_swap_b32 {v(b+2)}, {v(b+4)}", f"v_swap_b32 {v(b+3)}, {v(b+6)}", f"v_swap_b32 {v(b+6)}, {v(b+5)}")
    A(f"s_mov_b32 {s(S_PROF+16)}, 0")
    if STAMP: A("s_mov_b32 s58, 0")
    if STAMP and w == 3: A("s_waitcnt vmcnt(0)", "s_memrealtime s[50:51]", "s_memtime s[54:55]")
    if TLM: A("s_waitcnt vmcnt(0)", "s_memrealtime s[92:93]")
    for r in range(28): A(f"v_mov_b32 {v(ACC+r)}, 0")
    if w == 3: A("s_mov_b32 s60, 0x40000000" if FULL else f"s_mov_b32 s60, {s(S_VOX)}")
    if ALGN: A(f".p2align {ALGN}")
    if PAD4: A("s_nop 0")
    A(f"{Lstep}:", "s_barrier")
    prof(A, 0, profile)
    Lfail, Lfail2, Lcont2 = A.label("fail"), A.label("fail2"), A.label("cont2")
    dmas = [3 + w] + ([w] if w < 3 else [])
    nd = len(dmas)
    def issue():
        o = [memload(MEMR, VMEM, ko[0])] + nops(PG1) + [memload(MEMR + 4, VMEM, ko[1])] + nops(PG1) + [memload(MEMR + 8, VMEM, ko[2])] + nops(LG - 2*PG1)
        for kb in dmas:
            o += [f"s_mov_b32 m0, {MIMG + (kb - kb % 4)*1024}", "s_nop 0", f"buffer_load_dwordx4 {v(VMEM)}, {s(WS,4)}, {s(S_MEM if kb < 4 else S_MEM2)} offen offset:{(kb%4)*1024} sc1 lds"]
        return o
    B0 = B0S
    rdm = lambda p: f"ds_read_b128 {v(MEMR+4*p,4)}, {v(VMEM)} offset:{MIMG + ko[p]*1024}"
    xld = lambda j: f"buffer_load_dwordx4 {v(HT+4*j,4)}, {v(VH)}, {s(WS,4)}, {s(S_TMP)} offen offset:{1024*(j%4)} sc1"
    A(issue())
    A(f"{Lpoll}:")
    if profile: A(f"s_add_u32 {s(S_PROF+16)}, {s(S_PROF+16)}, 256")
    A(f"s_waitcnt vmcnt({2 + nd})")
    prof(A, 1, profile)
    order = [(cb, p) for p in range(3) for cb in range(7)] + [(cb, p) for cb in range(7) for p in range(3, 7)]
    slots = mkslots([smf(ACC+4*cb, MEMR+4*p, wreg(cb*7+p), IDX) for cb, p in order])
    cmp_ = f"v_cmp_eq_u32 vcc, -1, {v(TMP)}"
    c0, c1, c2 = chk4(TMP, MEMR), chk4(TMP, MEMR + 4), chk4(TMP, MEMR + 8, False)
    for i, o in enumerate(c0 + [cmp_]): slots[i]['valu'].append(o)
    slots[4]['pre'].append(f"s_cbranch_vccnz {Lfail}")
    slots[5]['pre'].append(f"s_waitcnt vmcnt({1 + nd})")
    slots[5]['valu'].append(c1[0]); slots[6]['valu'].append(c1[1])
    slots[P2W]['pre'].append(f"s_waitcnt vmcnt({nd})")
    slots[P2W]['valu'].append(c2[0]); slots[P2W+1]['valu'].append(c2[1]); slots[P2W+2]['valu'].append(cmp_)
    slots[P2W+4]['pre'].append(f"s_cbranch_vccnz {Lfail}")
    assert P2W + 4 <= B0 and 7 <= P2W <= 13
    SACC = MEMR
    if w < 3:
        for r in range(4): slots[16 + r]['valu'].append(f"v_mov_b32 {v(SACC+r)}, 0")
    slots[B0]['pre'] += ["s_waitcnt vmcnt(0)", "s_barrier", rdm(3)]
    for p in range(4, 7): slots[B0 + p - 3]['pre'].append(rdm(p))
    for p in range(3, 7): slots[17 + p]['pre'].append(f"s_waitcnt lgkmcnt({6-p})")
    if w == 2:
        for j in range(14):
            slots[24 + j]['pre'].append(f"ds_read_b128 {v(HT+4*j,4)}, {v(VH)} offset:{256*(j//2)+16*(j%2)}")
    if w == 3 and FULL:
        slots[25]['pre'] += [f"ds_read_b128 {v(HT+48,4)}, {v(HT+47)} offset:{MIMG}", f"s_add_u32 s62, {s(S_MEM)}, s61"]
        slots[32]['pre'] += ["s_waitcnt lgkmcnt(1)", f"buffer_store_dwordx4 {v(HT+48,4)}, {v(HT+47)}, {s(WS,4)}, s62 offen sc1"]
    tch = lambda i: [f"s_add_u32 {s(S_TMP)}, s60, {'s59' if i == ATOUCH - 1 else (131072 << BTOUCH)*i}", f"buffer_load_dword {v(HT+52+i)}, {v(HT+43)}, {s(WS,4)}, {s(S_TMP)} offen sc1"]
    if w == 3 and ATOUCH:
        for i in range(ATOUCH - TPOST): slots[B0 + 1 + TSP*i]['pre'] += tch(i)
    if w < 2:
        nin = 14 - XPRE
        for jj in range(nin):
            j = XPRE + jj
            sl = B0 + 1 + (jj*XSN)//nin
            if j % 4 == 0 or jj == 0: slots[sl]['pre'].append(f"s_add_u32 {s(S_TMP)}, {s(S_X)}, {1024*(j - j % 4)}")
            slots[sl]['pre'].append(xld(j))
    def conv(cb):
        r = ACC + 4*cb
        return [f"v_add_f32 {v(r)}, {v(r)}, {v(r+1)}", f"v_add_f32 {v(r+2)}, {v(r+2)}, {v(r+3)}",
                f"v_cvt_pk_bf16_f32 {v(r)}, {v(r)}, {v(r+2)}", f"ds_write_b32 {v(VTW)}, {v(r)} offset:{256*cb}"]
    for cb in range(6):
        for i, o in enumerate(conv(cb)):
            if 26 + 4*cb + i < 49: slots[26 + 4*cb + i]['valu'].append(o)
    slots[28]['valu'].insert(0, f"v_cmp_u_f32 vcc, {v(ACC)}, {v(ACC+2)}")
    slots[30]['pre'] += [f"s_cbranch_vccnz {Lfail2}", f"{Lcont2}:"]
    TF = lambda k: MEMR + 4 + 4*k if k < 2 else ACC + 4*(k-2)
    def trread(k):
        return [f"ds_read_b64_tr_b16 {v(TF(k)+2*u,2)}, {v(VTR)} offset:{256*k + TW*u}" for u in range(2)]
    slots[41]['pre'] += ["s_waitcnt lgkmcnt(0)", "s_barrier"]
    if w < 3:
        rs = [r for k in range(3) for r in trread(k)]
        for i, r in enumerate(rs): slots[42 + (i*TRN)//6]['pre'].append(r)
    if profile and FSD:
        for k in range(5):
            if FS0 + k*FSD < 49: slots[FS0 + k*FSD]['pre'].insert(0, f"s_memtime {s(S_PROF+4+2*k,2)}")
    elif profile:
        for st, sl in ((2, 13), (3, 27), (4, 48)):
            if (PMASK >> st) & 1: slots[sl]['pre'].append(f"s_memtime {s(S_PROF+2*st,2)}")
    if TAILV == 1:
        ny = 1 + sum(1 for sl in slots[42:46] for o in sl['pre'] if o.startswith("ds_"))
        slots[46]['pre'] += [f"s_waitcnt lgkmcnt({ny})", "s_barrier"]
        if w < 3:
            slots[47]['pre'].append(trread(3)[0]); slots[48]['pre'].append(trread(3)[1])
    emit_slots(A, slots)
    c6 = conv(6); W5 = conv(5)[3]
    if TAILV == 0: A("s_waitcnt lgkmcnt(0)", "s_barrier", W5)
    if w < 3:
        sm = [smf(SACC, TF(k), v(HT+8*k, 8), IDX, True) for k in range(7)]
        if TAILV == 0:
            r3, r4 = trread(3), trread(4)
            A(sm[0], r3, r4[0], c6[0], c6[1], c6[2], c6[3], r4[1], sm[1], sm[2], "s_waitcnt lgkmcnt(3)", sm[3], "s_waitcnt lgkmcnt(0)", sm[4])
            k0 = 5
        elif TAILV == 1:
            A("s_waitcnt lgkmcnt(2)", sm[0], W5, "s_nop 2", c6, sm[1], sm[2], "s_waitcnt lgkmcnt(2)", sm[3])
            k0 = 4
        else:
            A("s_waitcnt lgkmcnt(0)", sm[0], W5, "s_nop 3", c6, sm[1], sm[2])
            k0 = 3
        A("s_waitcnt lgkmcnt(0)", "s_barrier")
        prof(A, 5, profile)
        for k in range(k0, 7): A(trread(k))
        for k in range(k0, 7):
            A(f"s_waitcnt lgkmcnt({2*(6-k)})", sm[k])
        A("s_nop 7")
        A(f"ds_write2st64_b32 {v(VX)}, {v(SACC)}, {v(SACC+1)} offset0:0 offset1:1",
          f"ds_write2st64_b32 {v(VX)}, {v(SACC+2)}, {v(SACC+3)} offset0:2 offset1:3", "s_waitcnt lgkmcnt(0)", "s_barrier")
        prof(A, 6, profile)
        prof(A, 7, profile)
    else:
        A(["s_nop 3"] if TAILV == 0 else ["s_nop 1", W5, "s_nop 3"], c6)
        A("s_waitcnt lgkmcnt(0)", "s_barrier")
        prof(A, 5, profile)
        if FULL and EXW == 7: A(f"buffer_store_dwordx4 {v(HT+48,4)}, {v(HT+47)}, {s(WS,4)}, s62 offen sc1")
        A(f"s_add_u32 s63, {s(S_P)}, {s(S_SLOW)}", "s_xor_b32 s64, s63, 0x40000000", nops(F2D - 2), f"buffer_store_dword {v(IDX)}, {v(TMP2)}, {s(WS,4)}, s64 offen")
        A("s_barrier")
        X0 = HT; XM = HT+4; MX, L = HT+8, HT+9; N0 = HT+12
        Lslow, Lnorm = A.label("slow"), A.label("norm")
        Y0 = HT + 20; RAW = HT + 28
        A(f"ds_read_b128 {v(X0,4)}, {v(VX)}", f"ds_read_b128 {v(Y0,4)}, {v(VX)} offset:2048", f"ds_read2st64_b32 {v(Y0+4,2)}, {v(VH)} offset0:0 offset1:8")
        prof(A, 6, profile)
        A("s_waitcnt lgkmcnt(1)")
        if PK: A(f"v_pk_add_f32 {v(RAW,2)}, {v(X0,2)}, {v(Y0,2)}", f"v_pk_add_f32 {v(RAW+2,2)}, {v(X0+2,2)}, {v(Y0+2,2)}")
        else:
            for j in range(4): A(f"v_add_f32 {v(RAW+j)}, {v(X0+j)}, {v(Y0+j)}")
        for j in range(2): A(f"v_exp_f32 {v(X0+j)}, {v(RAW+j)}")
        A("s_waitcnt lgkmcnt(0)", f"v_add_f32 {v(RAW+4)}, {v(Y0+4)}, {v(Y0+5)}")
        for j in range(2, 5): A(f"v_exp_f32 {v(X0+j)}, {v(RAW+j)}")
        dpps = ["quad_perm:[1,0,3,2]", "quad_perm:[2,3,0,1]", "row_half_mirror"]
        def norm_store(check):
            if PK: A(f"v_pk_add_f32 {v(MX,2)}, {v(X0,2)}, {v(X0+2,2)}")
            else: A(f"v_add_f32 {v(L)}, {v(X0)}, {v(X0+1)}", f"v_add_f32 {v(MX)}, {v(X0+2)}, {v(X0+3)}")
            A(f"v_add_f32 {v(L)}, {v(L)}, {v(MX)}", f"v_add_f32 {v(L)}, {v(L)}, {v(XM)}")
            for i, d in enumerate(dpps):
                A([f"v_mov_b32_dpp {v(XM+1)}, {v(XM)} quad_perm:[1,0,3,2] row_mask:0xf bank_mask:0xf", "s_nop 0"] if i == 0 else "s_nop 1",
                  f"v_add_f32_dpp {v(L)}, {v(L)}, {v(L)} {d} row_mask:0xf bank_mask:0xf")
            R = N0 + 4
            pm = lambda r: f"v_pk_mul_f32 {v(r,2)}, {v(r,2)}, {v(R,2)} op_sel_hi:[1,0] clamp"
            A(f"v_rcp_f32 {v(R)}, {v(L)}", f"v_subrev_u32 {v(MX)}, 0x21800000, {v(L)}" if check else "s_nop 0", pm(X0), pm(X0+2))
            if check: A(f"v_cmp_lt_u32 vcc, 0x3c000000, {v(MX)}")
            A(f"v_cvt_pk_bf16_f32 {v(N0)}, {v(X0)}, {v(X0+1)}", f"v_cvt_pk_bf16_f32 {v(N0+1)}, {v(X0+2)}, {v(X0+3)}", pm(XM), f"v_cvt_pk_bf16_f32 {v(N0+2)}, {v(XM)}, {v(XM+1)}")
            if check: A(f"s_cbranch_vccnz {Lslow}")
            A(f"buffer_store_dwordx2 {v(N0,2)}, {v(PXO)}, {s(WS,4)}, s64 offen", f"buffer_store_dword {v(N0+2)}, {v(PMO)}, {s(WS,4)}, s64 offen")
        norm_store(True)
        A(f"{Lnorm}:")
        A(f"buffer_store_dwordx2 {v(N0,2)}, {v(PXO)}, {s(WS,4)}, s63 offen sc1", f"buffer_store_dword {v(N0+2)}, {v(PMO)}, {s(WS,4)}, s63 offen sc1",
          f"buffer_store_dword {v(IDX)}, {v(TMP2)}, {s(WS,4)}, s63 offen sc1")
        prof(A, 7, profile)
    if profile and PACCUM: prof_acc(A, 8)
    elif profile:
        prof_flush(A, 9, TMP, MEMR, 0)
        A(f"s_mov_b32 {s(S_PROF+16)}, 0")
    zs = [f"v_mov_b32 {v(ACC+r)}, 0" for r in range(28)]
    if TLM and w == 3:
        Lt = A.label("tl")
        A(f"s_lshl_b32 {s(S_TMP)}, {s(S_ROLE)}, {TLS}", f"s_cmp_eq_u32 {s(S_ROLE)}, 15", f"s_cselect_b32 {s(S_TMP)}, 62, {s(S_TMP)}", f"s_cmp_lg_u32 {s(S_STEP)}, {s(S_TMP)}", f"s_cbranch_scc1 {Lt}", "s_memrealtime s[94:95]", f"{Lt}:")
    if not XEARLY:
        A("s_barrier", zs)
        if w < 2:
            if FULL: cv_wait(1)
            for j in range(min(XPRE, X_XSN)):
                if j % 4 == 0: A(f"s_add_u32 {s(S_TMP)}, {s(S_X)}, {28672 + 1024*j}")
                A(xld(j), nops(XPG))
    elif w < 2:
        if FULL: cv_wait(1)
        el = 0
        for j in range(14):
            if j % 4 == 0: A(f"s_add_u32 {s(S_TMP)}, {s(S_X)}, {28672 + 1024*j}")
            A(xld(j))
            gap = XG1 if j < XN1 else XPG
            if j == 13: gap = 0
            nz = min(len(zs), gap) if el >= 70 else 0
            A(zs[:nz], nops(gap - nz)); zs = zs[nz:]
            el += gap + 2
        A(zs)
    elif w == 2: A(nops(70), zs)
    else: A(zs)
    if w == 3:
        if FULL: A(f"s_add_u32 {s(S_TMP)}, {s(S_P)}, {16384*(TAHEAD+1) + FROFF}", f"buffer_load_dword {v(TMP)}, off, {s(WS,4)}, {s(S_TMP)} sc1")
        for i in range(ATOUCH - TPOST, ATOUCH): A(tch(i))
        A(f"s_add_u32 s60, {s(S_VOX)}, 458752")
        if FULL:
            A(f"s_waitcnt vmcnt({TPOST})",
              f"v_readfirstlane_b32 {s(S_TMP)}, {v(TMP)}", f"s_cmp_eq_u32 {s(S_TMP)}, 15", "s_cselect_b32 s60, s60, 0x40000000")
        if FULL and EXW == 5:
            A(f"ds_read_b128 {v(HT+48,4)}, {v(HT+47)} offset:{MIMG}", f"s_add_u32 {s(S_TMP)}, {s(S_MEM)}, s61", "s_waitcnt lgkmcnt(0)",
              f"buffer_store_dwordx4 {v(HT+48,4)}, {v(HT+47)}, {s(WS,4)}, {s(S_TMP)} offen sc1")
    if w == APW:
        if TGATE != 1: flag_poll(A, list(range(8, 8 + FPD)), TMP2, S_P, 0, abort, "A")
        A(nops(D1))
    A(f"s_add_u32 {s(S_MEM)}, {s(S_MEM)}, 8192", f"s_add_u32 {s(S_MEM2)}, {s(S_MEM2)}, 8192", f"s_add_u32 {s(S_P)}, {s(S_P)}, 16384",
      f"s_add_u32 {s(S_X)}, {s(S_X)}, {32*896}", f"s_add_u32 {s(S_VOX)}, {s(S_VOX)}, 458752",
      f"s_add_u32 {s(S_STEP)}, {s(S_STEP)}, 1", f"s_cmp_lt_u32 {s(S_STEP)}, {NSTEPS}", f"s_cbranch_scc1 {Lstep}")
    if profile and PACCUM: prof_acc_out(A, 8)
    if STAMP: A("v_mov_b32 v0, s58", "s_mov_b64 exec, 1", f"buffer_atomic_add v0, off, {s(DBG,4)}, 0 offset:52", "s_mov_b64 exec, -1")
    if STAMP and w == 3:
        A("s_memrealtime s[52:53]", "s_memtime s[56:57]", "s_waitcnt lgkmcnt(0)", "s_sub_u32 s52, s52, s50", "s_sub_u32 s56, s56, s54", "v_mov_b32 v0, s52", "v_mov_b32 v1, s56",
          f"s_lshl_b32 {s(S_TMP)}, {s(S_ROLE)}, {10 if FULL else 3}", (f"buffer_store_dword v0, off, {s(DBG,4)}, {s(S_TMP)} offset:60" if FULL else f"buffer_store_dwordx2 v[0:1], off, {s(DBG,4)}, {s(S_TMP)} offset:64"))
    A("s_endpgm")
    A(f"{Lfail2}:")
    for p in range(3, 7): A(chk4(TMP, MEMR + 4*p, p == 3))
    A(cmp_, f"s_cbranch_vccz {Lcont2}", "s_waitcnt lgkmcnt(0)", "s_barrier")
    if STAMP: A(f"s_add_u32 s58, s58, 0x10000")
    A(f"{Lfail}:", issue(), f"s_sub_u32 {s(S_TO)}, {s(S_TO)}, 1", f"s_cbranch_scc1 {abort}")
    if STAMP: A(f"s_add_u32 s58, s58, 1")
    for r in range(28): A(f"v_mov_b32 {v(ACC+r)}, 0")
    A(f"s_branch {Lpoll}")
    if w == 3:
        A(f"{Lslow}:")
        A(f"v_max3_f32 {v(MX)}, {v(RAW)}, {v(RAW+1)}, {v(RAW+2)}", f"v_max3_f32 {v(MX)}, {v(MX)}, {v(RAW+3)}, {v(RAW+4)}")
        for d in dpps: A("s_nop 1", f"v_max_f32_dpp {v(MX)}, {v(MX)}, {v(MX)} {d} row_mask:0xf bank_mask:0xf")
        for j in range(5): A(f"v_sub_f32 {v(X0+j)}, {v(RAW+j)}, {v(MX)}")
        for j in range(5): A(f"v_exp_f32 {v(X0+j)}, {v(X0+j)}")
        A("s_nop 0")
        norm_store(False)
        A(f"s_branch {Lnorm}")

BW7 = 0
BMIMG = 57344
BVIMG = 65536
DB = 60

def role_B(A, w, abort, profile=False):
    import prep
    WFL = [' sc1', '', ' nt', ' sc1 nt'][WFI]
    pv = w < 2
    c, M = w % 2, w // 2
    NR = 6 if pv else 8
    WV0 = 256 - 8*(7*NR - 32)
    wrg = lambda f, n=8, sub=0: a_(8*f + sub, n) if f < 32 else v(WV0 + 8*(f-32) + sub, n)
    MEMR, ACC, VP = 0, 40, 48
    IDX, VL16, TMP, TMP2, VLV, VF2 = range(56, 62)
    if pv:
        VP2, VOX, SB, AC7, PACC, VST, R0 = 64, 72, 136, 152, 168, 164, 165
        assert 166 <= WV0
    VG, VN, VL = 1, 2, 3
    own = [2*w, 2*w+1] if w < 3 else [6]
    lane_consts(A, VL, VG, VN)
    idx_const(A, IDX, VN, TMP)
    A(f"v_lshlrev_b32 {v(VL16)}, 4, {v(VL)}", f"v_add_u32 {v(VLV)}, {BVIMG + 2048*c}, {v(VL16)}")
    A(f"s_sub_u32 {s(S_TMP)}, {s(S_ROLE)}, 16")
    if pv:
        A(f"v_lshlrev_b32 {v(VF2)}, 2, {v(VN)}", f"s_lshl_b32 {s(S_TMP2)}, {s(S_TMP)}, 7", f"s_add_u32 {s(S_TMP2)}, {s(S_TMP2)}, {F2OFF - 8192}", f"v_add_u32 {v(VF2)}, {s(S_TMP2)}, {v(VF2)}")
        VF1 = 166
        A(f"v_lshlrev_b32 {v(VF1)}, 8, {v(VL)}", f"s_lshl_b32 {s(S_TMP2)}, {s(S_TMP)}, 2", f"s_add_u32 {s(S_TMP2)}, {s(S_TMP2)}, {F1OFF - 8192}", f"v_add_u32 {v(VF1)}, {s(S_TMP2)}, {v(VF1)}",
          f"v_cmp_lt_u32 vcc, 3, {v(VL)}", f"v_mov_b32 {v(TMP)}, 0x40000000", "s_nop 0", f"v_cndmask_b32 {v(VF1)}, {v(VF1)}, {v(TMP)}, vcc")
        A(f"v_lshlrev_b32 {v(VST)}, 6, {v(VG)}", f"v_and_b32 {v(TMP)}, 1, {v(VN)}", f"v_lshl_add_u32 {v(VST)}, {v(TMP)}, 5, {v(VST)}",
          f"v_bfe_u32 {v(TMP)}, {v(VN)}, 1, 1", f"v_lshl_add_u32 {v(VST)}, {v(TMP)}, 4, {v(VST)}", f"v_lshrrev_b32 {v(TMP)}, 2, {v(VN)}", f"v_lshl_add_u32 {v(VST)}, {v(TMP)}, 2, {v(VST)}")
    A(f"s_mul_i32 {s(S_VOX)}, {s(S_TMP)}, {16*1024}",
      f"s_lshl_b32 {s(S_MEMN)}, {s(S_TMP)}, 8", f"s_add_u32 {s(S_MEMN)}, {s(S_MEMN)}, {MEMF_OFF + 8192 + 256*14*c:#x}",
      f"s_mul_i32 {s(S_TMP)}, {s(S_TMP)}, {14336}", f"s_add_u32 {s(S_TMP)}, {s(S_TMP)}, {WB_OFF + (8*M*28 + 14*c)*14336:#x}",
      f"s_add_u32 {s(S_VOX)}, {s(S_VOX)}, {VOX_OFF + 16384*14*c:#x}")
    def unit_loads(u):
        for kb in range(7):
            A(f"s_add_u32 {s(S_TMP2)}, {s(S_TMP)}, {u*28*14336 + kb*2048}")
            if u >= NR: A(f"s_mov_b32 m0, {BW7 + (2*w + u - 6)*14336 + kb*2048}", "s_nop 0")
            for hi in range(2):
                if u < NR: A(f"buffer_load_dwordx4 {wrg(u*7+kb,4,4*hi)}, {v(VL16)}, {s(WS,4)}, {s(S_TMP2)} offen offset:{1024*hi}{WFL}")
                else: A(f"buffer_load_dwordx4 {v(VL16)}, {s(WS,4)}, {s(S_TMP2)} offen offset:{1024*hi}{WFL} lds")
    if FULL and BDYN:
        Lw, Lc, Lg, Ld = [A.label("bd" + x) for x in "wcgd"]
        A(f"v_mov_b32 v5, v{234 + M}", "v_mov_b32 v6, v237", "v_and_b32 v7, 31, v0", "v_lshlrev_b32 v7, 2, v7",
          f"s_cmp_ge_u32 {s(S_ROLE)}, 23", f"s_cselect_b32 s60, {2*c + 1}, {2*c}", "s_mov_b32 s61, 0xff", "s_mov_b32 s62, 64", f"s_mov_b32 s63, {FLAGP_OFF + 2048*(2 + M):#x}")
        A(f"{Lw}:", "s_sub_u32 s62, s62, 1", f"s_cbranch_scc1 {Lc}",
          f"buffer_load_dword v4, v6, {s(WS,4)}, s63 offen sc1", "s_waitcnt vmcnt(0)", "v_cmp_eq_u32 vcc, v4, v5", "s_nop 1", "s_lshr_b64 s[66:67], vcc, s60", "s_lshr_b64 s[68:69], s[66:67], 4",
          "s_or_b64 s[66:67], s[66:67], s[68:69]", f"s_branch {Lg}")
        A(f"{Lc}:", f"buffer_load_dword v4, v7, {s(DBG,4)}, 0 offen offset:{prep.CNT0} sc1", "s_waitcnt vmcnt(0)", "v_cmp_gt_u32 vcc, 8, v4", "s_mov_b64 s[66:67], 0", f"s_cbranch_vccz {Lg}", "s_sleep 30")
        timeout_step(A, Lc, abort)
        A(f"{Lg}:", "s_mov_b32 s70, s61")
        for u in range(8):
            Ln = A.label("bu")
            A(f"s_bitcmp0_b32 s61, {u}", f"s_cbranch_scc1 {Ln}", f"s_bitcmp1_b64 s[66:67], {8*u}", f"s_cbranch_scc1 {Ln}", f"s_bitset0_b32 s61, {u}")
            unit_loads(u)
            A(f"s_waitcnt vmcnt({BWIN})", f"{Ln}:")
        A("s_cmp_eq_u32 s61, 0", f"s_cbranch_scc1 {Ld}", "s_cmp_lg_u32 s61, s70", f"s_cbranch_scc1 {Lw}", f"s_sleep {prep.CSLEEP}", f"s_branch {Lw}", f"{Ld}:")
    else:
        def bsetup(a, b):
            A(f"s_mov_b32 s{a}, {2 + M}", f"s_cmp_ge_u32 {s(S_ROLE)}, 23", f"s_cselect_b32 s{b}, {2*c + 1}, {2*c}", "s_mov_b32 exec_lo, 0x11111111", "s_mov_b32 exec_hi, 0x11111111", f"s_lshl_b64 exec, exec, s{b}")
        if FULL: prep.wait_tiles_wave(A, bsetup, abort, "B", S_TO, 4, 5)
        for u in range(8):
            unit_loads(u)
            A("s_waitcnt vmcnt(28)")
    A("s_waitcnt vmcnt(0)")
    if FULL: prep.wait_counters(A, 0, 32, abort, "B", S_TO, 4, 5)
    if pv: read_mode(A, 4)
    if DIAGX:
        Lz = A.label("dg")
        A(f"{Lz}:", "s_memrealtime s[76:77]", "s_waitcnt lgkmcnt(0)", "s_sub_u32 s76, s76, s90", f"s_cmp_lt_u32 s76, {DIAGX}", f"s_cbranch_scc1 {Lz}")
    A(f"s_mov_b32 {s(S_STEP)}, 0", f"s_mov_b32 {s(S_MEM)}, {MEMF_OFF:#x}", f"s_mov_b32 {s(S_MEM2)}, {MEMF_OFF+4096:#x}",
      f"s_mov_b32 {s(S_P)}, {PF_OFF:#x}", f"s_mov_b32 {s(S_X)}, {PF_OFF + 4096:#x}", f"s_mov_b32 {s(S_P2)}, {PF_OFF + 8192:#x}", f"s_mov_b32 {s(S_TO)}, {TIMEOUT}")
    S_EM, S_FR, S_ODD = 64, 65, 66
    A(f"s_mov_b32 {s(S_FR)}, {PF_OFF + FROFF:#x}", f"s_mov_b32 {s(S_ODD)}, 0xaaaaaaaa", f"s_mov_b32 {s(S_ODD+1)}, 0xaaaaaaaa")
    A("s_waitcnt vmcnt(0) lgkmcnt(0)")
    if TLM: A("s_memrealtime s[92:93]")
    A(f"s_mov_b32 {s(S_PROF+10)}, 0")
    if STAMP: A("s_mov_b32 s58, 0", "s_mov_b32 s59, 0")
    if STAMP and w == 0: A("s_memtime s[54:55]")
    Lstep, Lpoll, Lok2 = [A.label(f"B{w}{x}") for x in ("step", "poll", "ok2")]
    mreg = lambda kb: MEMR + 4*kb
    mld = lambda kb: memload(mreg(kb), VL16, kb)
    if pv:
        voxld = lambda hh: f"buffer_load_dwordx4 {v(VOX + 4*hh, 4)}, {v(VL16)}, {s(WS,4)}, {s(S_TMP)} offen offset:{1024*(hh%4)} sc1"
        def bcv(ahead):
            if not FULL: return
            Lc, Lg = A.label("bcv"), A.label("bcg")
            A(f"v_cmp_ne_u32 vcc, 15, {v(TMP2)}", f"s_add_u32 {s(S_TMP2)}, {s(S_FR)}, {16384*ahead}", f"s_cbranch_vccz {Lg}")
            A(f"{Lc}:", f"buffer_load_dword {v(TMP2)}, off, {s(WS,4)}, {s(S_TMP2)} sc1", "s_waitcnt vmcnt(0)", f"v_cmp_ne_u32 vcc, 15, {v(TMP2)}", f"s_cbranch_vccz {Lg}", "s_sleep 1")
            timeout_step(A, Lc, abort)
            A(f"{Lg}:")
        def voxpre(add):
            if VPRE: bcv(1 if add else 0)
            for hh in range(VPRE):
                if hh % 4 == 0: A(f"s_add_u32 {s(S_TMP)}, {s(S_VOX)}, {add + 1024*hh}")
                A(voxld(hh))
        A(f"v_mov_b32 {v(TMP2)}, 0")
        voxpre(0)
    else:
        A(f"v_lshlrev_b32 {v(VF2)}, 3, {v(VL16)}", f"v_mov_b32 {v(TMP2)}, 0")
        A(f"s_sub_u32 {s(S_TMP)}, {s(S_ROLE)}, 16", f"s_cmp_lt_u32 {s(S_TMP)}, 7", f"s_cselect_b32 s70, {ALT:#x}, 0x40000000", f"s_min_u32 {s(S_TMP)}, {s(S_TMP)}, 6",
          f"s_lshl_b32 {s(S_TMP)}, {s(S_TMP)}, 10", f"v_add_u32 {v(32)}, {s(S_TMP)}, {v(VL16)}")
        A(f"v_lshrrev_b32 v33, 4, {v(VL16)}", "v_min_u32 v33, 13, v33", "v_lshlrev_b32 v33, 2, v33", f"s_and_b32 {s(S_TMP)}, {s(S_ROLE)}, 3", f"s_lshl_b32 {s(S_TMP)}, {s(S_TMP)}, 8",
          f"s_add_u32 {s(S_TMP)}, {s(S_TMP)}, {F1OFF}", f"v_add_u32 v33, {s(S_TMP)}, v33")
    A(f"s_branch {Lpoll}", f".p2align {ALGN}" if ALGN else "", "s_nop 0" if PAD4 else "", f"{Lstep}:", nops(DB))
    A(f"{Lpoll}:")
    for kb in own:
        A(f"s_mov_b32 m0, {BMIMG + (kb - kb % 4)*1024}", "s_nop 0", f"buffer_load_dwordx4 {v(VL16)}, {s(WS,4)}, {s(S_MEM if kb < 4 else S_MEM2)} offen offset:{(kb%4)*1024} sc1 lds")
    for r in range(8): A(f"v_mov_b32 {v(ACC+r)}, 0")
    if pv:
        SU = ([0], [2, 3, 1])[w] if BBAL else [2*w, 2*w+1]
        stq = [(8 + i, kb) for kb in range(7) for i in range(len(SU))]
        rd = lambda n: [f"ds_read_b128 {v(SB + 8*(n % 2) + 4*hi, 4)}, {v(VL16)} offset:{BW7 + SU[stq[n][0] - 8]*14336 + stq[n][1]*2048 + hi*1024}" for hi in range(2)]
        for j in range(4*len(SU)): A(f"v_mov_b32 {v(AC7+j)}, 0")
        for j in range(4): A(f"v_mov_b32 {v(PACC+j)}, 0")
        A(rd(0), rd(1))
        if not VPRE: bcv(0)
    A("s_waitcnt vmcnt(0)", "s_barrier")
    if PACCUM: prof(A, 6, profile)
    korder = list(range(7))
    for kb in korder: A(f"ds_read_b128 {v(mreg(kb),4)}, {v(VL16)} offset:{BMIMG + kb*1024}")
    if not PB2: prof(A, 1, profile)
    cv = lambda r, u: [f"v_add_f32 {v(r)}, {v(r)}, {v(r+1)}", f"v_add_f32 {v(r+2)}, {v(r+2)}, {v(r+3)}", f"v_cvt_pk_bf16_f32 {v(VP+u)}, {v(r)}, {v(r+2)}"]
    ms, ustart = [], []
    if pv:
        reg = [(u, kb) for u in range(6) for kb in korder]
        per = 42 // len(stq)
        seq = []
        for i, x in enumerate(reg):
            seq.append(x)
            if i % per == per - 1 - (per > 3): seq.append(stq[i // per])
    else:
        seq = [(u, kb) for u in range(8) for kb in korder]
    nst = 0
    for (u, kb) in seq:
        if u < NR: ms.append(smf(ACC + 4*(u % 2), mreg(kb), wrg(u*7+kb), IDX))
        else:
            ms.append(smf(AC7 + 4*(u-8), mreg(kb), v(SB + 8*(nst % 2), 8), IDX)); nst += 1
    slots = mkslots(ms)
    Lretry, Lcont = A.label("Bretry"), A.label("Bcont")
    last = {u: max(i for i, x in enumerate(seq) if x[0] == u) for u in range(NR)}
    first = {u: min(i for i, x in enumerate(seq) if x[0] == u) for u in range(NR)}
    tail = []
    for u in range(NR):
        r = ACC + 4*(u % 2)
        ops = cv(r, u) + ([f"v_mov_b32 {v(r+j)}, 0" for j in range(4)] if u + 2 < NR else [])
        st = last[u] + 2
        if st + 3 > len(slots): tail += ops; continue
        lim = first[u+2] - 2 if u + 2 < NR else len(slots) - 1
        for i, o in enumerate(ops): slots[min(st + i, lim)]['valu'].append(o)
    if pv:
        sts = [i for i, x in enumerate(seq) if x[0] >= 8]
        NS, NSL = len(sts), len(slots)
        for n, i in enumerate(sts):
            if n + 2 < NS: slots[i+1]['pre'] += rd(n+2)
            if n >= 2: slots[i-1]['pre'].append(f"s_waitcnt lgkmcnt({2 if n + 1 < NS else 0})")
        FR_ = list(range(28, 28 + FPD))
        fl0 = NSL - 1 - 3*(FPD - 1)
        def place(lo, ops):
            while lo < NSL - 1 and len(slots[lo]['pre']) + len(ops) > 2: lo += 1
            slots[lo]['pre'] += ops
            return lo
        span = (fl0 - 3 if w == 0 else NSL - 6) - 9
        prevsl = 0
        for hh in range(VPRE, 0 if X_NOVOX else 16):
            sl = max(prevsl + 1, 9 + (span*(hh - VPRE)) // (16 - VPRE))
            ops = ([f"s_add_u32 {s(S_TMP)}, {s(S_VOX)}, {1024*hh}"] if hh % 4 == 0 else []) + [voxld(hh)]
            prevsl = place(sl, ops)
        for i, su in enumerate(SU):
            r = AC7 + 4*i
            if su // 2 == w: tail += cv(r, 6 + su % 2)
            else: tail += cv(r, 0)[:2] + [f"v_cvt_pk_bf16_f32 {v(r)}, {v(r)}, {v(r+2)}", f"ds_write_b32 {v(VLV)}, {v(r)} offset:2048", "s_waitcnt lgkmcnt(0)"]
        if FULL: place(prevsl + 1 if w else 30, [f"s_add_u32 {s(S_TMP2)}, {s(S_FR)}, 16384", f"buffer_load_dword {v(TMP2)}, off, {s(WS,4)}, {s(S_TMP2)} sc1"])
        for i, r in enumerate(FR_):
            if w == 0: slots[fl0 + 3*i]['pre'].append(flag_ld(r, VF2, S_P2, 0))
        place(20, [f"s_add_u32 s60, {s(S_MEMN)}, {s(S_SLOW)}"]); place(22, [f"s_add_u32 s61, {s(S_P2)}, {s(S_SLOW)}"]); place(26, ["s_xor_b32 s62, s60, 0x40000000"]); place(28, ["s_xor_b32 s63, s61, 0x40000000"])
    if not pv and BTOUCH:
        if FULL:
            slots[BT0]['pre'] += [f"v_readfirstlane_b32 {s(S_TMP2)}, {v(TMP2)}", f"s_add_u32 {s(S_TMP)}, {s(S_VOX)}, {458752*BTA + 8192}", f"s_cmp_eq_u32 {s(S_TMP2)}, 15", f"s_cselect_b32 {s(S_TMP)}, {s(S_TMP)}, 0x40000000",
                                  f"s_add_u32 {s(S_TMP2)}, {s(S_FR)}, {16384*(BTA+1)}", f"buffer_load_dword {v(TMP2)}, off, {s(WS,4)}, {s(S_TMP2)} sc1"]
        else: slots[BT0]['pre'].append(f"s_add_u32 {s(S_TMP)}, {s(S_VOX)}, {458752*BTA + 8192}")
        slots[BT0]['pre'].append(f"buffer_load_dword {v(62)}, {v(VF2)}, {s(WS,4)}, {s(S_TMP)} offen sc1")
    if FULL and w == EXW:
        A(f"ds_read_b128 {v(28,4)}, {v(32)} offset:{BMIMG}", f"s_add_u32 {s(S_EM)}, {s(S_MEM)}, s70")
        slots[3]['pre'].append(f"buffer_store_dwordx4 {v(28,4)}, {v(32)}, {s(WS,4)}, {s(S_EM)} offen sc1")
    where = [i for i, sl in enumerate(slots) if any(o.startswith(f"v_cvt_pk_bf16_f32 {v(VP)},") for o in sl['valu'])][0]
    slots[where]['valu'].insert(0, f"v_cmp_u_f32 vcc, {v(ACC)}, {v(ACC+2)}")
    slots[where+2]['pre'] += [f"s_cbranch_vccnz {Lretry}", f"{Lcont}:"]
    seen = 0
    A("s_waitcnt lgkmcnt(6)")
    for i, (u, kb) in enumerate(seq[:12]):
        nxt = seq[i+1]
        if nxt[0] == 0 and nxt[1] > seen:
            seen = nxt[1]
            extra = sum(1 for sl in slots[:i+1] for o in sl['pre'] if o.startswith("ds_read"))
            slots[i]['pre'].append(f"s_waitcnt lgkmcnt({6 - seen + extra})")
    if profile and FSD:
        for k in range(5):
            if FS0 + k*FSD < len(slots): slots[FS0 + k*FSD]['pre'].insert(0, f"s_memtime {s(S_PROF+4+2*k,2)}")
    if X_NOV:
        for sl in slots: sl['m'] = ""
    emit_slots(A, slots)
    if PACCUM: prof(A, 7, profile)
    A("s_nop 7", tail)
    if not pv:
        A(f"ds_write_b128 {v(VLV)}, {v(VP,4)}", f"ds_write_b128 {v(VLV)}, {v(VP+4,4)} offset:1024", "s_waitcnt lgkmcnt(0)")
    if not PB2: prof(A, 2, profile)
    if not pv:
        A("s_barrier")
        if w == 3 and BG1:
            Lo = A.label("bgo")
            A(nops(BG1), flag_ld(28, 33, S_P, 0), "s_waitcnt vmcnt(0)", "v_cmp_eq_u32 vcc, -1, v28", f"s_cbranch_vccz {Lo}")
            flag_poll(A, list(range(28, 28 + 4)), 33, S_P, 0, abort, "G")
            A(nops(BG2), f"{Lo}:")
        A("s_barrier")
    else:
        vprd = [f"ds_read_b128 {v(VP2,4)}, {v(VLV)}", f"ds_read_b128 {v(VP2+4,4)}, {v(VLV)} offset:1024"] + ([f"ds_read_b32 {v(VP+7)}, {v(VLV)} offset:4096"] if BBAL and w == 0 else [])
        if w == 0:
            flag_poll(A, FR_, VF2, S_P2, 0, abort, "B", primed=True)
            A(f"buffer_store_dword {v(IDX)}, {v(VF1)}, {s(WS,4)}, s63 offen")
            A(nops(D2))
        else: A("s_barrier")
        prof(A, 0, profile)
        porder = [(c*4 + i) % 8 for i in range(8)] + [8, 9]
        pld = lambda k: f"buffer_load_dwordx4 {v(4*k,4)}, {v(VL16)}, {s(WS,4)}, {s([S_P, S_X, S_P2][k//4])} offen offset:{1024*(k%4)} sc1"
        bop = lambda k: v(VOX + 8*k, 8) if k < 8 else v(VP if k == 8 else VP2, 8)
        Lpp, Lbad = A.label("pp"), A.label("bad")
        for i, k in enumerate(porder):
            A(pld(k))
            if w == 0 and i == BREL: A("s_barrier")
        A(vprd)
        A(f"{Lpp}:")
        if profile and not FSD: A(f"s_add_u32 {s(S_PROF+10)}, {s(S_PROF+10)}, 1")
        A("s_waitcnt lgkmcnt(0)")
        for i, k in enumerate(porder):
            A(f"s_waitcnt vmcnt({9-i})")
            if i == 0: prof(A, 3, profile)
            if i == 9 and PB2: prof(A, 1, profile)
            A(smf(PACC, 4*k, bop(k), IDX))
        Lgood = A.label("good")
        a, b = PACC, PACC+2
        A(f"s_mov_b64 vcc, {s(S_ODD,2)}", "s_nop 6")
        A(f"v_add_f32 {v(a)}, {v(a)}, {v(a+1)}", f"v_add_f32 {v(b)}, {v(b)}, {v(b+1)}", f"v_cmp_u_f32 {s(68,2)}, {v(a)}, {v(b)}",
          f"v_cndmask_b32_dpp {v(b+1)}, {v(a)}, {v(b)}, vcc quad_perm:[1,0,3,2] row_mask:0xf bank_mask:0xf", "s_not_b64 vcc, vcc",
          f"v_cndmask_b32_dpp {v(a+1)}, {v(b)}, {v(a)}, vcc quad_perm:[1,0,3,2] row_mask:0xf bank_mask:0xf",
          f"s_cmp_lg_u64 {s(68,2)}, 0", f"v_cvt_pk_bf16_f32 {v(R0)}, {v(a+1)}, {v(b+1)}", f"s_cbranch_scc1 {Lbad}", f"{Lgood}:",
          f"buffer_store_dword {v(R0)}, {v(VST)}, {s(WS,4)}, s62 offen")
        A(f"buffer_store_dword {v(R0)}, {v(VST)}, {s(WS,4)}, s60 offen sc1", f"buffer_store_dword {v(IDX)}, {v(VF1)}, {s(WS,4)}, s61 offen sc1" if w == 0 else "")
        if FULL:
            Lq = A.label("Bq")
            A(f"s_add_u32 {s(S_EM)}, {s(S_MEMN)}, {ALT:#x}", f"s_cmp_lg_u32 {s(S_STEP)}, {NSTEPS-1}", f"s_cbranch_scc1 {Lq}", f"buffer_store_dword {v(R0)}, {v(VST)}, {s(WS,4)}, {s(S_EM)} offen sc1", f"{Lq}:")
        prof(A, 4, profile)
        A("s_barrier")
        voxpre(458752)
    if profile and PACCUM: prof_acc(A, 8)
    elif profile:
        prof_flush(A, 6, TMP, TMP2, 0)
        A(f"s_mov_b32 {s(S_PROF+10)}, 0")
    A(f"s_add_u32 {s(S_MEM)}, {s(S_MEM)}, 8192", f"s_add_u32 {s(S_MEM2)}, {s(S_MEM2)}, 8192", f"s_add_u32 {s(S_MEMN)}, {s(S_MEMN)}, 8192",
      f"s_add_u32 {s(S_P)}, {s(S_P)}, 16384", f"s_add_u32 {s(S_P2)}, {s(S_P2)}, 16384", f"s_add_u32 {s(S_X)}, {s(S_X)}, 16384", f"s_add_u32 {s(S_VOX)}, {s(S_VOX)}, {0 if X_FIXVOX else 28*16*1024}",
      f"s_add_u32 {s(S_FR)}, {s(S_FR)}, 16384",
      f"s_add_u32 {s(S_STEP)}, {s(S_STEP)}, 1", f"s_cmp_lt_u32 {s(S_STEP)}, {NSTEPS}", f"s_cbranch_scc1 {Lstep}")
    if profile and PACCUM: prof_acc_out(A, 8)
    if STAMP: A("v_mov_b32 v0, s58", "v_mov_b32 v1, s59", "s_mov_b64 exec, 1", f"buffer_atomic_add v0, off, {s(DBG,4)}, 0 offset:56", f"buffer_atomic_add v1, off, {s(DBG,4)}, 0 offset:48", "s_mov_b64 exec, -1")
    if STAMP and w == 0 and not FULL:
        A("s_memtime s[56:57]", "s_waitcnt lgkmcnt(0)", "s_sub_u32 s56, s56, s54", "v_mov_b32 v1, s56",
          f"s_lshl_b32 {s(S_TMP)}, {s(S_ROLE)}, 2", f"buffer_store_dword v1, off, {s(DBG,4)}, {s(S_TMP)} offset:128")
    A("s_endpgm")
    A(f"{Lretry}:")
    for kb in range(7): A(chk4(TMP, mreg(kb), kb == 0))
    A(f"v_cmp_eq_u32 vcc, -1, {v(TMP)}", f"s_cbranch_vccz {Lcont}", "s_waitcnt lgkmcnt(0)", "s_barrier")
    if STAMP: A("s_add_u32 s58, s58, 1")
    timeout_step(A, Lpoll, abort)
    if pv:
        A(f"{Lbad}:")
        for k in range(10): A(chk4(TMP, 4*k, k == 0))
        A(f"v_min_u32 {v(R0)}, -2, {v(R0)}", f"v_cmp_eq_u32 vcc, -1, {v(TMP)}", f"s_cbranch_vccz {Lgood}")
        if STAMP: A("s_add_u32 s59, s59, 1")
        for k in porder: A(pld(k))
        for r in range(4): A(f"v_mov_b32 {v(PACC+r)}, 0")
        timeout_step(A, Lpp, abort)

def role_PF(A, abort):
    import prep
    WFL = [' sc1', '', ' nt', ' sc1 nt'][WFI]
    AHEAD = PFA
    A("; ---------------- prefetcher")
    if FULL:
        prep.wait_tiles(A, 16, 16, abort, "P", S_TO, 4, 5)
    A("v_and_b32 v3, 63, v0", "v_lshlrev_b32 v1, 7, v3", "v_mov_b32 v2, 0", "v_mov_b32 v12, 0")
    A(f"s_sub_u32 {s(S_TMP2)}, {s(S_ROLE)}, 30", f"s_lshl_b32 {s(S_TMP2)}, {s(S_TMP2)}, 2", f"s_add_u32 {s(S_TMP2)}, {s(S_TMP2)}, {s(S_WAVE)}")
    A(f"s_lshl_b32 {s(S_TMP2)}, {s(S_TMP2)}, 13")
    A(f"s_mov_b32 {s(S_STEP)}, 0", f"s_mov_b32 {s(S_TO)}, {TIMEOUT}")
    if FULL:
        for hd in PBH[:PBN]:
            A(f"s_add_u32 {s(S_TMP)}, {s(S_TMP2)}, {WB_OFF + hd*28*14336:#x}")
            for i in range(7):
                if i == 6: A(f"s_cmp_eq_u32 {s(S_TMP2)}, 0", f"s_cselect_b32 {s(S_TMP)}, {s(S_TMP)}, 0x40000000")
                A(f"buffer_load_dword v{16+i}, v1, {s(WS,4)}, {s(S_TMP)} offen sc1", f"s_add_u32 {s(S_TMP)}, {s(S_TMP)}, 65536")
        prep.wait_counters(A, 0, 32, abort, "P", S_TO, 4, 5, sleep=30)
        A(f"s_mov_b32 {s(S_P)}, {PF_OFF + FROFF:#x}")
    A(f"s_add_u32 {s(S_X)}, {s(S_TMP2)}, {XS_OFF:#x}", f"s_mov_b32 {s(S_P2)}, 28672")
    L1, L2 = A.label("pf1"), A.label("pf2")
    A(f"s_cmp_lt_u32 {s(S_TMP2)}, {4*8192}", f"s_cbranch_scc1 {L2}")
    A(f"s_mov_b32 {s(S_X)}, {MEMF_OFF + 8192:#x}", f"s_mov_b32 {s(S_P2)}, 8192")
    A(f"s_cmp_eq_u32 {s(S_TMP2)}, {4*8192}", f"s_cbranch_scc1 {L2}")
    A(f"s_and_b32 {s(S_X)}, {s(S_TMP2)}, 8192", f"s_add_u32 {s(S_X)}, {s(S_X)}, {PF_OFF:#x}", f"s_mov_b32 {s(S_P2)}, 16384")
    A(f"{L2}:")
    A(f"s_lshl_b32 {s(S_VOX)}, {s(S_TMP2)}, {BTOUCH}", f"s_add_u32 {s(S_VOX)}, {s(S_VOX)}, {VOX_OFF:#x}", f"s_cmp_eq_u32 {s(S_TMP2)}, {7*8192}",
      f"s_cselect_b32 {s(S_X)}, 0x40000000, {s(S_X)}", f"s_mov_b32 {s(S_MEM)}, {MEMF_OFF - AHEAD*8192:#x}")
    Lstep, Lpoll, Lgo = A.label("pfstep"), A.label("pfpoll"), A.label("pfgo")
    if FULL and CODEPF:
        Lc0, Lc1 = A.label("pfw"), A.label("pfg")
        A(f"{Lc0}:", f"buffer_load_dword v12, off, {s(WS,4)}, {s(S_P)} sc1", "s_waitcnt vmcnt(0)", "v_cmp_eq_u32 vcc, -1, v12", f"s_cbranch_vccz {Lc1}", "s_sleep 8")
        timeout_step(A, Lc0, abort)
        A(f"{Lc1}:", "s_getpc_b64 s[30:31]", "Lpf_pc:", "s_sub_u32 s30, s30, Lpf_pc-Lteam_code", "s_subb_u32 s31, s31, 0", f"v_add_u32 v13, {s(S_TMP2)}, v1", "v_min_u32 v13, Lpf_pc-Lteam_code, v13",
          "global_load_dword v14, v13, s[30:31]")
    A("v_mov_b32 v4, -1")
    A(f"{Lstep}:", f"s_cmp_lt_u32 {s(S_STEP)}, {AHEAD+1}", f"s_cbranch_scc1 {Lgo}")
    A("v_cmp_eq_u32 vcc, -1, v4", f"s_cbranch_vccz {Lgo}")
    A(f"{Lpoll}:", f"buffer_load_dword v4, v2, {s(WS,4)}, {s(S_MEM)} offen sc1", "s_waitcnt vmcnt(0)", "v_cmp_eq_u32 vcc, -1, v4", f"s_cbranch_vccz {Lgo}", "s_sleep 2")
    timeout_step(A, Lpoll, abort)
    A(f"{Lgo}:")
    if FULL:
        Lc, Lcg = A.label("pfc"), A.label("pfcg")
        A("v_cmp_ne_u32 vcc, 15, v12", f"s_cbranch_vccz {Lcg}")
        A(f"{Lc}:", f"buffer_load_dword v12, off, {s(WS,4)}, {s(S_P)} sc1", "s_waitcnt vmcnt(0)", "v_cmp_ne_u32 vcc, 15, v12", f"s_cbranch_vccz {Lcg}", "s_sleep 2")
        timeout_step(A, Lc, abort)
        A(f"{Lcg}:", f"s_add_u32 {s(S_P)}, {s(S_P)}, 16384", f"buffer_load_dword v12, off, {s(WS,4)}, {s(S_P)} sc1")
    if PFW:
        Lw1, Lw2 = A.label("pw1"), A.label("pw2")
        A(f"s_mov_b32 s70, {s(S_WAVE)}", f"{Lw1}:", "s_sub_u32 s70, s70, 1", f"s_cbranch_scc1 {Lw2}", f"s_sleep {PFW}", f"s_branch {Lw1}", f"{Lw2}:")
    if PFI:
        Le = A.label("pfe")
        A(f"s_cmp_ge_u32 {s(S_STEP)}, {PFI}", f"s_cbranch_scc1 {Le}")
        for j in range(PF_VOX, 7):
            A(f"s_add_u32 {s(S_TMP)}, {s(S_VOX)}, {65536*j}", f"buffer_load_dword v{16+j}, v1, {s(WS,4)}, {s(S_TMP)} offen sc1")
        A(f"{Le}:")
    A(f"s_add_u32 {s(S_MEM)}, {s(S_MEM)}, 8192", f"buffer_load_dword v4, v2, {s(WS,4)}, {s(S_MEM)} offen sc1")
    A(f"buffer_load_dword v5, v1, {s(WS,4)}, {s(S_X)} offen sc1")
    for j in range(PF_VOX):
        if PFS: A(f"s_sleep {PFS}")
        A(f"s_add_u32 {s(S_TMP)}, {s(S_VOX)}, {(65536 << BTOUCH)*j}", f"buffer_load_dword v{6+j}, v1, {s(WS,4)}, {s(S_TMP)} offen sc1")
    A(f"s_add_u32 {s(S_X)}, {s(S_X)}, {s(S_P2)}", f"s_add_u32 {s(S_VOX)}, {s(S_VOX)}, {28*16*1024}",
      f"s_waitcnt vmcnt({1 + PF_VOX})",
      f"s_add_u32 {s(S_STEP)}, {s(S_STEP)}, 1", f"s_cmp_lt_u32 {s(S_STEP)}, {NSTEPS + 1}", f"s_cbranch_scc1 {Lstep}")
    if DIAGY:
        Lz = A.label("dg")
        A(f"{Lz}:", "s_memrealtime s[76:77]", "s_waitcnt lgkmcnt(0)", "s_sub_u32 s76, s76, s90", f"s_cmp_lt_u32 s76, {DIAGY}", f"s_cbranch_scc1 {Lz}")
    A("s_endpgm")

PF_VOX = 2
def rec_kernel(A, name, profile=False):
    kernel_begin(A, name)
    Lexit = A.label("exit")
    A("s_cmp_ge_u32 s2, 256", f"s_cbranch_scc1 {Lexit}")
    srd(A, WS, 96, 0x10000000); srd(A, XB, 24, 1835008); srd(A, DBG, 88, 256)
    A(f"s_getreg_b32 {s(S_TMP)}, hwreg(HW_REG_XCC_ID)", f"s_and_b32 {s(S_TMP)}, {s(S_TMP)}, 15", f"s_cmp_lg_u32 {s(S_TMP)}, 0", f"s_cbranch_scc1 {Lexit}")
    A("v_lshrrev_b32 v1, 6, v0", "s_nop 0", f"v_readfirstlane_b32 {s(S_WAVE)}, v1", "s_waitcnt lgkmcnt(0)")
    Lw = A.label("notw0")
    A(f"s_cmp_lg_u32 {s(S_WAVE)}, 0", f"s_cbranch_scc1 {Lw}")
    A("v_mov_b32 v1, 1", "v_mov_b32 v2, 0", "s_mov_b64 exec, 1",
      f"buffer_atomic_add v1, v2, {s(DBG,4)}, 0 offen sc0", "s_waitcnt vmcnt(0)", "ds_write_b32 v2, v1 offset:32768", "s_waitcnt lgkmcnt(0)", "s_mov_b64 exec, -1")
    A(f"{Lw}:", "s_barrier", "v_mov_b32 v2, 0", "ds_read_b32 v1, v2 offset:32768", "s_waitcnt lgkmcnt(0)", f"v_readfirstlane_b32 {s(S_ROLE)}, v1", "s_barrier")
    LPF = A.label("rolePF")
    A(f"s_cmp_ge_u32 {s(S_ROLE)}, 32", f"s_cbranch_scc1 {Lexit}")
    A(f"s_cmp_ge_u32 {s(S_ROLE)}, 30", f"s_cbranch_scc1 {LPF}")
    LB = A.label("roleB")
    A(f"s_cmp_ge_u32 {s(S_ROLE)}, 16", f"s_cbranch_scc1 {LB}")
    for R, fn in (("A", role_A), ("B", role_B)):
        if R == "B": A(f"{LB}:")
        Ls = [A.label(f"{R}w{w}") for w in range(4)]
        for w in range(1, 4):
            A(f"s_cmp_eq_u32 {s(S_WAVE)}, {w}", f"s_cbranch_scc1 {Ls[w]}")
        for w in range(4):
            A(f"{Ls[w]}:")
            fn(A, w, Lexit, profile)
    A(f"{LPF}:")
    role_PF(A, Lexit)
    A(f"{Lexit}:", "s_endpgm")
    A(kernel_desc(name))

def generate(path, profile=False, **kw):
    g = globals(); saved = {k: g[k] for k in kw}
    g.update(kw)
    A = Asm()
    A("; @launch kernel=rec_kernel grid=(256,1,1) block=(256,1,1) lds=131072")
    A('.amdgcn_target "amdgcn-amd-amdhsa--gfx950"', ".text")
    rec_kernel(A, "rec_kernel", profile=bool(profile))
    t = A.text().replace("    ; @launch", "; @launch")
    if profile == 2: t = t.replace("s_memtime", "s_memrealtime")
    if LDFL == 1: t = t.replace(" sc1\n", " nt\n")
    if LDFL == 2: t = t.replace(" sc1\n", " sc0 sc1\n")
    open(path, "w").write(t)
    g.update(saved)

if __name__ == "__main__":
    import sys
    generate(sys.argv[1], len(sys.argv) > 2)
```

```python
from asm import *
from model import *
import prep
from rec import WS, XB, DBG, S_WAVE, S_ROLE, S_TO, S_TMP, S_TMP2, wreg, timeout_step, TIMEOUT, idx_const, chk4, smf, FROFF
OUT, XA = 48, 52
S_SEG, S_H, S_A, S_B, S_C, S_D, S_BUF = range(56, 63)
NV, NX, NPG = 4, 3, 3
RP = 912
XBUF = 32*RP
W_TIMEOUT = 300000
WTOUCH = 0
XDELAY = 2
YSLEEP = 30
YSEG = 3
PVPRE = 0
YSEGL = 3
YS1 = 127
X_NOL = 0
GLAST = 62
XNOY = 0
VLEAD = 16
OFL = ['', ' sc1', ' nt']
OFI = 0
PVS = 4
VLA = 5
PVGAP = 0
VDELAY = 0
WSLEEP = 4
TLM = 0

def mfma(d, a, b, c=None, k16=False):
    op = "v_mfma_f32_16x16x16_bf16" if k16 else "v_mfma_f32_16x16x32_bf16"
    return f"{op} {v(d,4)}, {a}, {b}, " + (v(d,4) if c is None else c)
def wr4(f):
    return a_(4*f, 4) if f < 64 else v(120 + 4*(f-64), 4)

def lanes(A, VL, VG, VN, VL16):
    A(f"v_and_b32 {v(VL)}, 63, v0", f"v_lshrrev_b32 {v(VG)}, 4, {v(VL)}", f"v_and_b32 {v(VN)}, 15, {v(VL)}", f"v_lshlrev_b32 {v(VL16)}, 4, {v(VL)}")

def load_weights(A, base, VL16, share=0, vt=16, touch_only=False):
    if share and WTOUCH:
        n = -(-49 // (share*4))
        A(f"v_lshlrev_b32 {v(vt)}, 3, {v(VL16)}", f"s_lshl_b32 {s(S_TMP2)}, {s(S_SEG)}, 2", f"s_add_u32 {s(S_TMP2)}, {s(S_TMP2)}, {s(S_WAVE)}", f"s_lshl_b32 {s(S_TMP2)}, {s(S_TMP2)}, 13",
          f"s_mul_i32 {s(S_TMP)}, {s(S_H)}, {28*14336}", f"s_add_u32 {s(S_TMP)}, {s(S_TMP)}, {s(S_TMP2)}", f"s_add_u32 {s(S_TMP)}, {s(S_TMP)}, {base:#x}")
        for i in range(n):
            if (i+1)*share*4 > 49:
                A(f"s_cmp_lt_u32 {s(S_TMP2)}, {(49 - i*share*4)*8192}", f"s_cselect_b32 {s(S_TMP)}, {s(S_TMP)}, 0x40000000")
            A(f"buffer_load_dword {v(vt+1+i)}, {v(vt)}, {s(WS,4)}, {s(S_TMP)} offen sc1", f"s_add_u32 {s(S_TMP)}, {s(S_TMP)}, {share*4*8192}")
    A(f"s_mul_i32 {s(S_TMP)}, {s(S_H)}, {28*14336}", f"s_mul_i32 {s(S_TMP2)}, {s(S_WAVE)}, {7*14336}", f"s_add_u32 {s(S_TMP)}, {s(S_TMP)}, {s(S_TMP2)}",
      f"s_add_u32 {s(S_TMP)}, {s(S_TMP)}, {base:#x}")
    if touch_only: return
    for f in range(98):
        A(f"buffer_load_dwordx4 {wr4(f)}, {v(VL16)}, {s(WS,4)}, {s(S_TMP)} offen offset:{1024*(f%4)} sc1")
        if f % 4 == 3: A(f"s_add_u32 {s(S_TMP)}, {s(S_TMP)}, 4096")
        if f % 16 == 15 and f > 30: A("s_waitcnt vmcnt(32)")

def dma_x(A, seg_s, buf_s, VL16, XB=XB):
    A(f"s_mul_i32 {s(S_TMP)}, {s(seg_s)}, 28672", f"s_mul_i32 {s(S_TMP2)}, {s(S_WAVE)}, {8*896}", f"s_add_u32 {s(S_TMP)}, {s(S_TMP)}, {s(S_TMP2)}",
      f"s_mul_i32 {s(S_TMP2)}, {s(S_WAVE)}, {8*RP}", f"s_add_u32 {s(S_TMP2)}, {s(S_TMP2)}, {s(buf_s)}",
      "s_mov_b32 exec_hi, 0x00ffffff")
    for r in range(8):
        A(f"s_mov_b32 m0, {s(S_TMP2)}", f"s_add_u32 {s(S_TMP2)}, {s(S_TMP2)}, {RP}", f"buffer_load_dwordx4 {v(VL16)}, {s(XB,4)}, {s(S_TMP)} offen lds", f"s_add_u32 {s(S_TMP)}, {s(S_TMP)}, 896")
    A("s_mov_b32 exec_hi, -1")

def dma_x_spread(A, seg_s, buf_s, VL16, sa=71, sb=72):
    A(f"s_mul_i32 s{sa}, {s(seg_s)}, 28672", f"s_mul_i32 s{sb}, {s(S_WAVE)}, {8*896}", f"s_add_u32 s{sa}, s{sa}, s{sb}",
      f"s_mul_i32 s{sb}, {s(S_WAVE)}, {8*RP}", f"s_add_u32 s{sb}, s{sb}, {s(buf_s)}")
    def hook(ks):
        if ks < 8:
            A(f"s_mov_b32 m0, s{sb}", "s_mov_b32 exec_hi, 0x00ffffff", f"buffer_load_dwordx4 {v(VL16)}, {s(XB,4)}, s{sa} offen lds", "s_mov_b32 exec_hi, -1",
              f"s_add_u32 s{sb}, s{sb}, {RP}", f"s_add_u32 s{sa}, s{sa}, 896")
    return hook

def poll_eq(A, vt, voff, soff, want, abort, tag, ne=False, sleep=None):
    Lp, Lgo = A.label(tag + "p"), A.label(tag + "go")
    A(f"{Lp}:", f"buffer_load_dword {v(vt)}, {v(voff)}, {s(WS,4)}, {s(soff)} offen sc1", "s_waitcnt vmcnt(0)",
      f"v_cmp_{'eq' if ne else 'ne'}_u32 vcc, {want}, {v(vt)}", f"s_cbranch_vccz {Lgo}", f"s_sleep {sleep or WSLEEP}")
    timeout_step(A, Lp, abort)
    A(f"{Lgo}:")

def divmod_const(A, q, r, x, d):
    m = (65536 + d - 1) // d
    assert all((i*m) >> 16 == i // d for i in range(256))
    A(f"s_mul_i32 {s(q)}, {s(x)}, {m}", f"s_lshr_b32 {s(q)}, {s(q)}, 16", f"s_mul_i32 {s(r)}, {s(q)}, {d}", f"s_sub_u32 {s(r)}, {s(x)}, {s(r)}")

VMID = 4
def yield_start(A, abort, tag, va, vt):
    prep.wait_counters(A, 0, 32, abort, tag, S_TO, vt, va, sleep=YS1, sleep_first=True)
    if YSEG < 0 or (tag == "x" and XNOY): return
    Lg = A.label("ys")
    A(f"s_cmp_lg_u32 {s(S_WAVE)}, 0", f"s_cbranch_scc1 {Lg}", f"v_mov_b32 {v(va)}, 0", f"s_mov_b32 {s(S_A)}, {PF_OFF + FROFF + 16384*(YSEGL if tag == 'l' else YSEG):#x}")
    poll_eq(A, vt, va, S_A, 15, abort, tag + "y", sleep=YSLEEP)
    A(f"{Lg}:", "s_barrier")

def gemm_seg(A, ACC, FR, VRD, x_is_A, hook=None, every=None):
    rd = lambda ks: [f"ds_read_b128 {v(FR + 8*(ks % 2) + 4*t, 4)}, {v(VRD+t)} offset:{64*ks}" for t in range(2)]
    A(rd(0))
    for ks in range(14):
        if hook and hook[0] == ks: hook[1]()
        if every: every(ks)
        if ks + 1 < 14: A(rd(ks+1), "s_waitcnt lgkmcnt(2)")
        else: A("s_waitcnt lgkmcnt(0)")
        for cb in range(7):
            for t in range(2):
                xf, wf = v(FR + 8*(ks % 2) + 4*t, 4), wr4(cb*14 + ks)
                a, b = (xf, wf) if x_is_A else (wf, xf)
                A(mfma(ACC + 8*cb + 4*t, a, b, "0" if ks == 0 else None))

def role_V(A, abort):
    VL, VG, VN, VL16, T, VR0, VR1, VRD, VRD1, IDX = range(1, 11)
    ACC, FR, PK = 16, 72, 88
    S_J, S_PREV = S_C, S_D
    A("; ---------------- role V")
    lanes(A, VL, VG, VN, VL16)
    divmod_const(A, S_H, S_SEG, S_ROLE, NV)
    A(f"s_mov_b32 {s(S_J)}, {s(S_SEG)}", f"s_mov_b32 {s(S_BUF)}, 0", f"s_mov_b32 {s(S_PREV)}, 0x40000000", f"s_mov_b32 {s(S_TO)}, {W_TIMEOUT}")
    dma_x(A, S_SEG, S_BUF, VL16)
    A(f"s_mov_b32 {s(S_BUF)}, 32768", f"s_add_u32 {s(S_A)}, {s(S_SEG)}, {NV}")
    dma_x(A, S_A, S_BUF, VL16)
    VXS = 11
    A(f"v_lshrrev_b32 {v(T)}, 3, {v(VN)}", f"v_lshlrev_b32 {v(VXS)}, 4, {v(T)}", f"v_and_b32 {v(T)}, 3, {v(VN)}", f"v_lshl_add_u32 {v(VXS)}, {v(T)}, 2, {v(VXS)}",
      f"v_bfe_u32 {v(T)}, {v(VN)}, 2, 1", f"v_lshl_add_u32 {v(VXS)}, {v(T)}, 1, {v(VXS)}", f"v_mul_u32_u24 {v(VXS)}, {RP}, {v(VXS)}",
      f"v_mul_u32_u24 {v(T)}, 224, {v(VG)}", f"v_add_u32 {v(VXS)}, {v(VXS)}, {v(T)}",
      f"s_cmp_ge_u32 {s(S_H)}, 7", f"s_cselect_b32 {s(S_TMP)}, {RP - 7*32}, 0", f"s_lshl_b32 {s(S_TMP2)}, {s(S_H)}, 5", f"s_add_u32 {s(S_TMP)}, {s(S_TMP)}, {s(S_TMP2)}", f"v_add_u32 {v(VXS)}, {s(S_TMP)}, {v(VXS)}",
      f"s_lshl_b32 s63, {s(S_H)}, 11", f"s_add_u32 s63, s63, {XS_OFF:#x}", f"s_cmp_lt_u32 {s(S_H)}, 14", "s_cselect_b32 s63, s63, 0x40000000", f"s_cmp_eq_u32 {s(S_WAVE)}, 3", "s_cselect_b32 s63, s63, 0x40000000")
    A(f"v_lshrrev_b32 {v(T)}, 2, {v(VN)}", f"v_lshlrev_b32 {v(VR0)}, 3, {v(T)}", f"v_and_b32 {v(T)}, 3, {v(VN)}", f"v_add_u32 {v(VR0)}, {v(VR0)}, {v(T)}",
      f"v_mul_u32_u24 {v(VR0)}, {RP}, {v(VR0)}", f"v_lshl_add_u32 {v(VR0)}, {v(VG)}, 4, {v(VR0)}", f"v_add_u32 {v(VR1)}, {4*RP}, {v(VR0)}")
    idx_const(A, IDX, VN, T)
    def signal(so):
        A(f"s_cmp_eq_u32 {s(S_WAVE)}, 0", f"s_cselect_b32 {s(S_B)}, {s(so)}, 0x40000000",
          f"v_mov_b32 {v(T)}, 1", "s_mov_b64 exec, 1", f"buffer_atomic_add {v(T)}, off, {s(WS,4)}, {s(S_B)} sc1", "s_mov_b64 exec, -1", "s_nop 3")
    Lp, Lepi = A.label("Vloop"), A.label("Vepi")
    A(f"v_mov_b32 {v(VRD)}, {v(VR0)}", f"v_mov_b32 {v(VRD+1)}, {v(VR1)}", f"v_mov_b32 {v(12)}, {v(VXS)}", "s_waitcnt vmcnt(0)", f"s_add_u32 {s(S_A)}, {s(S_H)}, 16")
    if prep.WW:
        A("s_barrier")
        prep.wait_tiles_wave(A, prep.one_matrix(A, s(S_A)), abort, "V", S_TO, 14, 15, st=(68, 69, 70))
    else: prep.wait_tiles(A, s(S_A), 1, abort, "V", S_TO, 14, 15, st=(68, 69, 70))
    load_weights(A, WB_OFF, VL16, NV, 100, touch_only=True)
    def wld(ks):
        return [x for cb in range(7) for x in (f"s_add_u32 {s(S_TMP2)}, {s(S_TMP)}, {cb*14336 + 1024*ks}", f"buffer_load_dwordx4 {wr4(cb*14 + ks)}, {v(VL16)}, {s(WS,4)}, {s(S_TMP2)} offen sc1")]
    for ks in range(VLA): A(wld(ks))
    def first(ks):
        if ks + VLA < 14: A(wld(ks + VLA))
        A(f"s_waitcnt vmcnt({7*min(VLA, 13 - ks)})")
    gemm_seg(A, ACC, FR, VRD, True, every=first)
    if TLM: A("s_memrealtime s[92:93]")
    A(f"s_branch {Lepi}")
    A(f"{Lp}:")
    A(f"v_add_u32 {v(VRD)}, {s(S_BUF)}, {v(VR0)}", f"v_add_u32 {v(VRD+1)}, {s(S_BUF)}, {v(VR1)}", f"v_add_u32 {v(12)}, {s(S_BUF)}, {v(VXS)}")
    A(f"s_xor_b32 {s(S_BUF)}, {s(S_BUF)}, {32768}", f"s_add_u32 {s(S_A)}, {s(S_SEG)}, {NV}")
    dh = dma_x_spread(A, S_A, S_BUF, VL16)
    def mid():
        A("s_waitcnt vmcnt(8)", "s_barrier")
        signal(S_PREV)
    gemm_seg(A, ACC, FR, VRD, True, hook=(8, mid), every=dh)
    A(f"{Lepi}:")
    A(f"s_mul_i32 {s(S_TMP)}, {s(S_SEG)}, 458752", f"s_mul_i32 {s(S_TMP2)}, {s(S_WAVE)}, {7*16384}", f"s_add_u32 {s(S_TMP)}, {s(S_TMP)}, {s(S_TMP2)}",
      f"s_lshl_b32 {s(S_TMP2)}, {s(S_H)}, 10", f"s_add_u32 {s(S_TMP)}, {s(S_TMP)}, {s(S_TMP2)}", f"s_add_u32 {s(S_TMP)}, {s(S_TMP)}, {VOX_OFF:#x}",
      f"s_lshl_b32 {s(S_PREV)}, {s(S_SEG)}, 14", f"s_add_u32 {s(S_PREV)}, {s(S_PREV)}, {PF_OFF + FROFF:#x}")
    A(f"ds_read_b128 {v(FR,4)}, {v(12)}", f"ds_read_b128 {v(FR+4,4)}, {v(12)} offset:16", f"s_mul_i32 {s(S_TMP2)}, {s(S_SEG)}, 28672", f"s_add_u32 {s(S_TMP2)}, {s(S_TMP2)}, s63")
    A("s_waitcnt vmcnt(1) lgkmcnt(0)", "s_barrier")
    b = FR
    A(f"v_swap_b32 {v(b+1)}, {v(b+2)}", f"v_swap_b32 {v(b+2)}, {v(b+4)}", f"v_swap_b32 {v(b+3)}, {v(b+6)}", f"v_swap_b32 {v(b+6)}, {v(b+5)}",
      f"buffer_store_dwordx4 {v(b,4)}, {v(VL16)}, {s(WS,4)}, {s(S_TMP2)} offen sc1", f"buffer_store_dwordx4 {v(b+4,4)}, {v(VL16)}, {s(WS,4)}, {s(S_TMP2)} offen offset:1024 sc1")
    for cb in range(7):
        d = ACC + 8*cb
        for r in range(4): A(f"v_cvt_pk_bf16_f32 {v(PK+4*cb+r)}, {v(d+2*r)}, {v(d+2*r+1)}")
        A(f"buffer_store_dwordx4 {v(PK+4*cb,4)}, {v(VL16)}, {s(WS,4)}, {s(S_TMP)} offen sc1", f"s_add_u32 {s(S_TMP)}, {s(S_TMP)}, 16384")
    Lnf = A.label("Vnf")
    A(f"s_cmp_ge_u32 {s(S_SEG)}, {NV}", f"s_cbranch_scc1 {Lnf}", "s_waitcnt vmcnt(0)")
    prep.wait_counters(A, 0, 32, abort, "V", S_TO, 14, 15)
    signal(S_PREV)
    A(f"s_mov_b32 {s(S_PREV)}, 0x40000000", f"{Lnf}:")
    A(f"s_add_u32 {s(S_SEG)}, {s(S_SEG)}, {NV}", f"s_cmp_lt_u32 {s(S_SEG)}, {VLEAD}", f"s_cbranch_scc1 {Lp}")
    A("s_waitcnt vmcnt(0)", "s_barrier")
    signal(S_PREV)
    A(f"s_mov_b32 {s(S_PREV)}, 0x40000000")
    if TLM: A("s_memrealtime s[94:95]")
    MF = 72
    Lq, Lm, Lmo = A.label("Vq"), A.label("Vm"), A.label("Vmo")
    A(f"{Lq}:")
    for r in range(28): A(f"v_mov_b32 {v(ACC+r)}, 0")
    A(f"s_lshl_b32 {s(S_A)}, {s(S_J)}, 13", f"s_add_u32 {s(S_A)}, {s(S_A)}, {MEMS_OFF:#x}", f"s_add_u32 {s(S_B)}, {s(S_A)}, 4096")
    A(f"v_mov_b32 {v(12)}, 7164", f"s_min_u32 {s(S_TMP)}, {s(S_A)}, {MEMS_OFF + 8192*GLAST:#x}")
    poll_eq(A, T, 12, S_TMP, -1, abort, "vm", ne=True, sleep=1)
    A(f"{Lm}:")
    for kb in range(7): A(f"buffer_load_dwordx4 {v(MF+4*kb,4)}, {v(VL16)}, {s(WS,4)}, {s(S_A if kb < 4 else S_B)} offen offset:{1024*(kb%4)} sc1")
    A("s_waitcnt vmcnt(0)")
    for kb in range(7): A(chk4(T, MF+4*kb, kb == 0))
    A(f"v_cmp_eq_u32 vcc, -1, {v(T)}", f"s_cbranch_vccz {Lmo}")
    timeout_step(A, Lm, abort)
    A(f"{Lmo}:")
    for kb in range(7):
        for cb in range(7):
            f = cb*14 + 2*kb
            A(smf(ACC + 4*cb, MF + 4*kb, a_(4*f, 8) if f < 64 else v(120 + 4*(f-64), 8), IDX))
    A(f"s_mul_i32 {s(S_TMP)}, {s(S_J)}, 114688", f"s_mul_i32 {s(S_TMP2)}, {s(S_WAVE)}, {7*4096}", f"s_add_u32 {s(S_TMP)}, {s(S_TMP)}, {s(S_TMP2)}",
      f"s_lshl_b32 {s(S_TMP2)}, {s(S_H)}, 8", f"s_add_u32 {s(S_TMP)}, {s(S_TMP)}, {s(S_TMP2)}", f"s_add_u32 {s(S_TMP)}, {s(S_TMP)}, {VPE_OFF:#x}", f"v_lshlrev_b32 {v(13)}, 2, {v(VL)}", "s_nop 1")
    for cb in range(7):
        r = ACC + 4*cb
        A(f"v_add_f32 {v(r)}, {v(r)}, {v(r+1)}", f"v_add_f32 {v(r+2)}, {v(r+2)}, {v(r+3)}", f"v_cvt_pk_bf16_f32 {v(PK+20+cb)}, {v(r)}, {v(r+2)}", f"v_min_u32 {v(PK+20+cb)}, -2, {v(PK+20+cb)}",
          f"buffer_store_dword {v(PK+20+cb)}, {v(13)}, {s(WS,4)}, {s(S_TMP)} offen sc1", f"s_add_u32 {s(S_TMP)}, {s(S_TMP)}, 4096")
    A(f"s_lshl_b32 {s(S_TMP)}, {s(S_J)}, 9", f"s_lshl_b32 {s(S_TMP2)}, {s(S_H)}, 4", f"s_add_u32 {s(S_TMP)}, {s(S_TMP)}, {s(S_TMP2)}", f"s_lshl_b32 {s(S_TMP2)}, {s(S_WAVE)}, 2",
      f"s_add_u32 {s(S_TMP)}, {s(S_TMP)}, {s(S_TMP2)}", f"s_add_u32 {s(S_TMP)}, {s(S_TMP)}, {FV_OFF:#x}", f"v_mov_b32 {v(T)}, 1",
      "s_waitcnt vmcnt(0)", "s_mov_b64 exec, 1", f"buffer_store_dword {v(T)}, off, {s(WS,4)}, {s(S_TMP)} sc1", "s_mov_b64 exec, -1")
    A(f"s_add_u32 {s(S_J)}, {s(S_J)}, {NV}", f"s_cmp_lt_u32 {s(S_SEG)}, 64", f"s_cbranch_scc1 {Lp}", f"s_cmp_lt_u32 {s(S_J)}, 64", f"s_cbranch_scc1 {Lq}", "s_endpgm")

XMIMG = 65536
XRED = 73728

def role_X(A, abort):
    VL, VG, VN, VL16, T, VR0, VK0, VRD, VRD1, VKD, VKM, VRW, VRR, VMW, T2 = range(1, 16)
    ACC, FR, SX, KF = 16, 72, 88, 104
    A("; ---------------- role X")
    if X_NOL == 3: A("s_endpgm")
    lanes(A, VL, VG, VN, VL16)
    divmod_const(A, S_H, S_SEG, S_ROLE, NX)
    A(f"s_mov_b32 {s(S_BUF)}, 0", f"s_mov_b32 {s(S_TO)}, {W_TIMEOUT}")
    dma_x(A, S_SEG, S_BUF, VL16)
    yield_start(A, abort, "x", 16, 17)
    load_weights(A, WA_OFF, VL16, NX, 20)
    A(f"v_mul_u32_u24 {v(VR0)}, {RP}, {v(VN)}", f"v_lshl_add_u32 {v(VR0)}, {v(VG)}, 4, {v(VR0)}")
    A(f"v_lshrrev_b32 {v(T)}, 2, {v(VN)}", f"v_lshlrev_b32 {v(VK0)}, 3, {v(T)}", f"v_and_b32 {v(T)}, 3, {v(VN)}", f"v_add_u32 {v(VK0)}, {v(VK0)}, {v(T)}",
      f"v_mul_u32_u24 {v(VK0)}, {RP}, {v(VK0)}", f"v_lshl_add_u32 {v(VK0)}, {v(VG)}, 3, {v(VK0)}", f"s_mul_i32 {s(S_TMP)}, {s(S_WAVE)}, 224", f"v_add_u32 {v(VK0)}, {s(S_TMP)}, {v(VK0)}")
    A(f"v_lshrrev_b32 {v(T)}, 2, {v(VN)}", f"v_lshlrev_b32 {v(VKM)}, 6, {v(T)}", f"v_and_b32 {v(T)}, 1, {v(VN)}", f"v_lshl_add_u32 {v(VKM)}, {v(T)}, 5, {v(VKM)}",
      f"v_lshl_add_u32 {v(VKM)}, {v(VG)}, 2, {v(VKM)}", f"s_mul_i32 {s(S_TMP)}, {s(S_WAVE)}, 1792", f"s_add_u32 {s(S_TMP)}, {s(S_TMP)}, {XMIMG}", f"v_add_u32 {v(VKM)}, {s(S_TMP)}, {v(VKM)}")
    A(f"v_add_u32 {v(VMW)}, {s(S_TMP)}, {v(VL16)}")
    A(f"s_lshl_b32 {s(S_TMP)}, {s(S_WAVE)}, 12", f"s_add_u32 {s(S_TMP)}, {s(S_TMP)}, {XRED}", f"v_add_u32 {v(VRW)}, {s(S_TMP)}, {v(VL16)}")
    A(f"s_lshl_b32 {s(S_TMP)}, {s(S_WAVE)}, 10", f"s_add_u32 {s(S_TMP)}, {s(S_TMP)}, {XRED}", f"v_add_u32 {v(VRR)}, {s(S_TMP)}, {v(VL16)}")
    A(f"s_mov_b32 {s(S_D)}, 0x40000000")
    Lp = A.label("Xloop")
    A("s_waitcnt vmcnt(0)", "s_barrier")
    if TLM: A("s_memrealtime s[92:93]")
    A(f"{Lp}:")
    A(f"v_add_u32 {v(VRD)}, {s(S_BUF)}, {v(VR0)}", f"v_add_u32 {v(VRD1)}, {16*RP}, {v(VRD)}", f"v_add_u32 {v(VKD)}, {s(S_BUF)}, {v(VK0)}")
    A(f"s_xor_b32 {s(S_BUF)}, {s(S_BUF)}, {32768}", f"s_add_u32 {s(S_A)}, {s(S_SEG)}, {NX}")
    dh = dma_x_spread(A, S_A, S_BUF, VL16)
    def xflag(n):
        A(f"s_waitcnt vmcnt({n})", f"v_mov_b32 {v(T)}, 1", "s_mov_b64 exec, 1", f"buffer_store_dword {v(T)}, off, {s(WS,4)}, {s(S_D)} sc1", "s_mov_b64 exec, -1", "s_nop 3")
    gemm_seg(A, ACC, FR, VRD, False, hook=(VMID, lambda: xflag(VMID)), every=dh)
    kreg = lambda cb: KF + 4*cb if cb < 4 else FR + 4*(cb-4)
    for cb in range(7):
        A(f"ds_read_b64 {v(kreg(cb),2)}, {v(VKD)} offset:{32*cb}", f"ds_read_b64 {v(kreg(cb)+2,2)}, {v(VKD)} offset:{32*cb + 4*RP}")
    for cb in range(7):
        for t in range(2):
            d = ACC + 8*cb + 4*t
            A(f"v_cvt_pk_bf16_f32 {v(d)}, {v(d)}, {v(d+1)}", f"v_cvt_pk_bf16_f32 {v(d+1)}, {v(d+2)}, {v(d+3)}")
    for cb in range(7):
        A(f"s_waitcnt lgkmcnt({2*(6-cb)})")
        for kt in range(2):
            for t in range(2):
                A(mfma(SX + 8*kt + 4*t, v(kreg(cb)+2*kt, 2), v(ACC + 8*cb + 4*t, 2), "0" if cb == 0 else None, k16=True))
    A("s_nop 7")
    for kt in range(2):
        for t in range(2): A(f"ds_write_b128 {v(VRW)}, {v(SX + 8*kt + 4*t, 4)} offset:{2048*kt + 1024*t}")
    A("s_waitcnt lgkmcnt(0)", "s_barrier")
    L1 = A.label("Xr1")
    A(f"s_cmp_ge_u32 {s(S_WAVE)}, 2", f"s_cbranch_scc1 {L1}")
    for kt in range(2):
        for w in range(4): A(f"ds_read_b128 {v(FR + 4*w, 4)}, {v(VRR)} offset:{4096*w + 2048*kt}")
        A("s_waitcnt lgkmcnt(0)")
        for r in range(4):
            A(f"v_add_f32 {v(FR+r)}, {v(FR+r)}, {v(FR+4+r)}", f"v_add_f32 {v(FR+8+r)}, {v(FR+8+r)}, {v(FR+12+r)}", f"v_add_f32 {v(SX+4*kt+r)}, {v(FR+r)}, {v(FR+8+r)}")
    A(f"s_lshl_b32 {s(S_TMP)}, {s(S_WAVE)}, 4", f"v_add_u32 {v(T)}, {s(S_TMP)}, {v(VN)}", f"v_lshlrev_b32 {v(T2)}, 3, {v(VG)}", f"v_sub_u32 {v(T)}, {v(T)}, {v(T2)}", f"v_mov_b32 {v(T2)}, 0xf149f2ca")
    for j in range(8):
        A(f"v_cmp_le_i32 vcc, {j}, {v(T)}", "s_nop 1", f"v_cndmask_b32 {v(SX+j)}, {v(T2)}, {v(SX+j)}, vcc")
    A(f"{L1}:")
    Lm, Lmo = A.label("Xm"), A.label("Xmo")
    A(f"s_lshl_b32 {s(S_B)}, {s(S_SEG)}, 13", f"s_mul_i32 {s(S_TMP)}, {s(S_WAVE)}, 1792", f"s_add_u32 {s(S_B)}, {s(S_B)}, {s(S_TMP)}", f"s_add_u32 {s(S_B)}, {s(S_B)}, {MEMS_OFF:#x}")
    A(f"s_min_u32 {s(S_C)}, {s(S_SEG)}, {GLAST}", f"s_lshl_b32 {s(S_C)}, {s(S_C)}, 13", f"s_add_u32 {s(S_C)}, {s(S_C)}, {MEMS_OFF + 7164:#x}", f"v_mov_b32 {v(T2)}, 0")
    poll_eq(A, T, T2, S_C, -1, abort, "xg", ne=True, sleep=1)
    A(f"{Lm}:", f"buffer_load_dwordx4 {v(KF,4)}, {v(VL16)}, {s(WS,4)}, {s(S_B)} offen sc1", f"buffer_load_dwordx4 {v(KF+4,4)}, {v(VL16)}, {s(WS,4)}, {s(S_B)} offen offset:768 sc1",
      "s_waitcnt vmcnt(0)", f"v_max3_u32 {v(T)}, {v(KF)}, {v(KF+1)}, {v(KF+2)}", f"v_max3_u32 {v(T)}, {v(T)}, {v(KF+3)}, {v(KF+4)}", f"v_max3_u32 {v(T)}, {v(T)}, {v(KF+5)}, {v(KF+6)}",
      f"v_max_u32 {v(T)}, {v(T)}, {v(KF+7)}", f"v_cmp_eq_u32 vcc, -1, {v(T)}", f"s_cbranch_vccz {Lmo}")
    timeout_step(A, Lm, abort)
    A(f"{Lmo}:")
    if TLM: A("s_memrealtime s[94:95]")
    A(f"ds_write_b128 {v(VMW)}, {v(KF,4)}", f"ds_write_b128 {v(VMW)}, {v(KF+4,4)} offset:768")
    for cb in range(7):
        A(f"v_add_u32 {v(T)}, {256*cb}, {v(VKM)}", f"ds_read2_b32 {v(FR+2*cb,2)}, {v(T)} offset0:0 offset1:4")
    A("s_waitcnt lgkmcnt(0)")
    for cb in range(7):
        for t in range(2):
            A(mfma(SX + 8 + 4*t, v(FR+2*cb, 2), v(ACC + 8*cb + 4*t, 2), "0" if cb == 0 else None, k16=True))
    A("s_barrier")
    A("s_nop 6")
    for t in range(2): A(f"ds_write_b64 {v(VRW)}, {v(SX + 8 + 4*t, 2)} offset:{1024*t}")
    A("s_waitcnt lgkmcnt(0)", "s_barrier")
    L2 = A.label("Xr2")
    A(f"s_cmp_ge_u32 {s(S_WAVE)}, 2", f"s_cbranch_scc1 {L2}")
    for w in range(4): A(f"ds_read_b64 {v(FR + 2*w, 2)}, {v(VRR)} offset:{4096*w}")
    A("s_waitcnt lgkmcnt(0)")
    for r in range(2):
        A(f"v_add_f32 {v(FR+r)}, {v(FR+r)}, {v(FR+2+r)}", f"v_add_f32 {v(FR+4+r)}, {v(FR+4+r)}, {v(FR+6+r)}", f"v_add_f32 {v(SX+8+r)}, {v(FR+r)}, {v(FR+4+r)}")
    A(f"v_max3_f32 {v(T)}, {v(SX)}, {v(SX+1)}, {v(SX+2)}", f"v_max3_f32 {v(T)}, {v(T)}, {v(SX+3)}, {v(SX+4)}", f"v_max3_f32 {v(T)}, {v(T)}, {v(SX+5)}, {v(SX+6)}",
      f"v_max3_f32 {v(T)}, {v(T)}, {v(SX+7)}, {v(SX+8)}", f"v_max_f32 {v(T)}, {v(T)}, {v(SX+9)}")
    def xred(op):
        for sw in ("v_permlane16_swap_b32", "v_permlane32_swap_b32"):
            A(f"v_mov_b32 {v(T2)}, {v(T)}", "s_nop 1", f"{sw} {v(T)}, {v(T2)}", f"{op} {v(T)}, {v(T)}, {v(T2)}")
    xred("v_max_f32")
    for j in range(10): A(f"v_sub_f32 {v(SX+j)}, {v(SX+j)}, {v(T)}")
    for j in range(10): A(f"v_exp_f32 {v(SX+j)}, {v(SX+j)}")
    A(f"v_add_f32 {v(T)}, {v(SX)}, {v(SX+1)}")
    for j in range(2, 10): A(f"v_add_f32 {v(T)}, {v(T)}, {v(SX+j)}")
    xred("v_add_f32")
    A(f"v_rcp_f32 {v(T)}, {v(T)}", "s_nop 0")
    for j in range(10): A(f"v_mul_f32 {v(SX+j)}, {v(SX+j)}, {v(T)}")
    for r in range(5): A(f"v_cvt_pk_bf16_f32 {v(FR+r)}, {v(SX+2*r)}, {v(SX+2*r+1)}", f"v_min_u32 {v(FR+r)}, -2, {v(FR+r)}")
    A(f"s_mul_i32 {s(S_TMP)}, {s(S_SEG)}, 40960", f"s_mul_i32 {s(S_TMP2)}, {s(S_WAVE)}, 20480", f"s_add_u32 {s(S_TMP)}, {s(S_TMP)}, {s(S_TMP2)}", f"s_add_u32 {s(S_TMP)}, {s(S_TMP)}, {PX_OFF:#x}",
      f"s_lshl_b32 {s(S_TMP2)}, {s(S_H)}, 10", f"s_add_u32 {s(S_TMP2)}, {s(S_TMP2)}, {s(S_TMP)}",
      f"buffer_store_dwordx4 {v(FR,4)}, {v(VL16)}, {s(WS,4)}, {s(S_TMP2)} offen sc1",
      f"s_lshl_b32 {s(S_TMP2)}, {s(S_H)}, 8", f"s_add_u32 {s(S_TMP)}, {s(S_TMP)}, {s(S_TMP2)}", f"s_add_u32 {s(S_TMP)}, {s(S_TMP)}, 16384", f"v_lshlrev_b32 {v(T2)}, 2, {v(VL)}",
      f"buffer_store_dword {v(FR+4)}, {v(T2)}, {s(WS,4)}, {s(S_TMP)} offen sc1")
    A(f"s_lshl_b32 {s(S_TMP)}, {s(S_SEG)}, 9", f"s_lshl_b32 {s(S_TMP2)}, {s(S_WAVE)}, 6", f"s_add_u32 {s(S_TMP)}, {s(S_TMP)}, {s(S_TMP2)}", f"s_lshl_b32 {s(S_TMP2)}, {s(S_H)}, 2",
      f"s_add_u32 {s(S_TMP)}, {s(S_TMP)}, {s(S_TMP2)}", f"s_add_u32 {s(S_D)}, {s(S_TMP)}, {FV_OFF + 256:#x}")
    A(f"{L2}:")
    A("s_barrier")
    A(f"s_add_u32 {s(S_SEG)}, {s(S_SEG)}, {NX}", f"s_cmp_lt_u32 {s(S_SEG)}, 64", f"s_cbranch_scc1 {Lp}")
    xflag(0)
    A("s_endpgm")

def role_PV(A, abort):
    VL, VG, VN, VL16, T, VZ, VF1, VF2, VRW, VRR, VO_ = range(1, 12)
    VOX, VP, PF_, ACC, RD = 16, 80, 96, 116, 132
    S_T, S_J = S_C, S_D
    if X_NOL in (3, 4): A("s_endpgm")
    lanes(A, VL, VG, VN, VL16)
    A(f"s_mul_i32 {s(S_SEG)}, {s(S_ROLE)}, 4682", f"s_lshr_b32 {s(S_SEG)}, {s(S_SEG)}, 16", f"s_mul_i32 {s(S_TMP)}, {s(S_SEG)}, 14", f"s_sub_u32 {s(S_TMP)}, {s(S_ROLE)}, {s(S_TMP)}",
      f"s_and_b32 {s(S_T)}, {s(S_TMP)}, 1", f"s_lshr_b32 {s(S_J)}, {s(S_TMP)}, 1", f"s_mov_b32 {s(S_TO)}, {W_TIMEOUT}")
    A(f"v_mov_b32 {v(VZ)}, 0")
    A(f"v_and_b32 {v(T)}, 3, {v(VL)}", f"v_lshlrev_b32 {v(VF1)}, 2, {v(T)}", f"s_lshl_b32 {s(S_TMP)}, {s(S_T)}, 6", f"s_lshl_b32 {s(S_TMP2)}, {s(S_WAVE)}, 4", f"s_add_u32 {s(S_TMP)}, {s(S_TMP)}, {s(S_TMP2)}",
      f"s_add_u32 {s(S_TMP)}, {s(S_TMP)}, 256", f"v_add_u32 {v(VF1)}, {s(S_TMP)}, {v(VF1)}")
    A(f"v_lshlrev_b32 {v(VF2)}, 2, {v(VN)}", f"s_lshl_b32 {s(S_TMP)}, {s(S_WAVE)}, 6", f"v_add_u32 {v(VF2)}, {s(S_TMP)}, {v(VF2)}",
      f"v_cmp_gt_u32 vcc, 16, {v(VL)}", "s_nop 1", f"v_cndmask_b32 {v(VF1)}, {v(VF1)}, {v(VF2)}, vcc", f"v_lshlrev_b32 {v(VF2)}, 2, {v(VL)}")
    A(f"s_lshl_b32 {s(S_TMP)}, {s(S_WAVE)}, 12", f"v_add_u32 {v(VRW)}, {s(S_TMP)}, {v(VL16)}", f"s_lshl_b32 {s(S_TMP)}, {s(S_WAVE)}, 10", f"v_add_u32 {v(VRR)}, {s(S_TMP)}, {v(VL16)}")
    A(f"v_mul_u32_u24 {v(VO_)}, 1792, {v(VN)}", f"v_lshl_add_u32 {v(VO_)}, {v(VG)}, 3, {v(VO_)}", f"s_mul_i32 {s(S_TMP)}, {s(S_T)}, {16*1792}", f"s_lshl_b32 {s(S_TMP2)}, {s(S_J)}, 7",
      f"s_add_u32 {s(S_TMP)}, {s(S_TMP)}, {s(S_TMP2)}", f"s_lshl_b32 {s(S_TMP2)}, {s(S_WAVE)}, 5", f"s_add_u32 {s(S_TMP)}, {s(S_TMP)}, {s(S_TMP2)}", f"s_add_u32 {s(S_TMP)}, {s(S_TMP)}, 896",
      f"v_add_u32 {v(VO_)}, {s(S_TMP)}, {v(VO_)}")
    yield_start(A, abort, "p", 16, 17)
    Lp = A.label("PVloop")
    A(f"{Lp}:")
    Llast, Lld, Lok, Lpre, Lvx = A.label("PVlast"), A.label("PVld"), A.label("PVok"), A.label("PVpre"), A.label("PVvx")
    A(f"s_lshl_b32 {s(S_B)}, {s(S_SEG)}, 9", f"s_add_u32 {s(S_B)}, {s(S_B)}, {FV_OFF:#x}")
    A(f"s_cmp_ge_u32 {s(S_SEG)}, {PVPRE}", f"s_cbranch_scc1 {Lpre}")
    poll_eq(A, T, VF1, S_B, 1, abort, "f0", sleep=PVS)
    A(f"s_branch {Lvx}", f"{Lpre}:")
    A(f"s_lshl_b32 {s(S_A)}, {s(S_SEG)}, 14", f"s_add_u32 {s(S_A)}, {s(S_A)}, {PF_OFF + FROFF:#x}")
    poll_eq(A, T, VZ, S_A, 15, abort, "cv")
    A(f"{Lvx}:")
    A(f"s_mul_i32 {s(S_TMP)}, {s(S_SEG)}, 458752", f"s_lshl_b32 {s(S_TMP2)}, {s(S_J)}, 16", f"s_add_u32 {s(S_TMP)}, {s(S_TMP)}, {s(S_TMP2)}", f"s_lshl_b32 {s(S_TMP2)}, {s(S_WAVE)}, 12",
      f"s_add_u32 {s(S_TMP)}, {s(S_TMP)}, {s(S_TMP2)}", f"s_add_u32 {s(S_TMP)}, {s(S_TMP)}, {VOX_OFF:#x}")
    for cc in range(4):
        for hh in range(4): A(f"buffer_load_dwordx4 {v(VOX + 16*cc + 4*hh, 4)}, {v(VL16)}, {s(WS,4)}, {s(S_TMP)} offen offset:{1024*hh} sc1")
        A(f"s_add_u32 {s(S_TMP)}, {s(S_TMP)}, 16384")
    A(f"s_cmp_lt_u32 {s(S_SEG)}, {PVPRE}", f"s_cbranch_scc1 {Lld}")
    A(f"s_cmp_ge_u32 {s(S_SEG)}, {prep.SL}", f"s_cbranch_scc1 {Llast}")
    poll_eq(A, T, VF1, S_B, 1, abort, "fx", sleep=2)
    A(f"s_branch {Lld}", f"{Llast}:", f"s_lshl_b32 {s(S_A)}, {s(S_SEG)}, 13", f"s_add_u32 {s(S_A)}, {s(S_A)}, {MEMS_OFF + 7164:#x}")
    poll_eq(A, T, VZ, S_A, -1, abort, "pg", ne=True, sleep=1)
    if PVGAP: A(f"s_sleep {PVGAP}")
    A(f"{Lld}:")
    if TLM: A("s_memrealtime s[92:93]")
    A(f"s_mul_i32 {s(S_TMP)}, {s(S_SEG)}, 40960", f"s_mul_i32 {s(S_TMP2)}, {s(S_T)}, 20480", f"s_add_u32 {s(S_TMP)}, {s(S_TMP)}, {s(S_TMP2)}", f"s_add_u32 {s(S_TMP)}, {s(S_TMP)}, {PX_OFF:#x}",
      f"s_lshl_b32 {s(S_TMP2)}, {s(S_WAVE)}, 12", f"s_add_u32 {s(S_TMP2)}, {s(S_TMP2)}, {s(S_TMP)}")
    for hh in range(4): A(f"buffer_load_dwordx4 {v(PF_ + 4*hh, 4)}, {v(VL16)}, {s(WS,4)}, {s(S_TMP2)} offen offset:{1024*hh} sc1")
    A(f"s_lshl_b32 {s(S_TMP2)}, {s(S_WAVE)}, 10", f"s_add_u32 {s(S_TMP)}, {s(S_TMP)}, {s(S_TMP2)}", f"s_add_u32 {s(S_TMP)}, {s(S_TMP)}, 16384")
    for hh in range(4): A(f"buffer_load_dword {v(PF_ + 16 + hh)}, {v(VF2)}, {s(WS,4)}, {s(S_TMP)} offen offset:{256*hh} sc1")
    A(f"s_mul_i32 {s(S_TMP)}, {s(S_SEG)}, 114688", f"s_lshl_b32 {s(S_TMP2)}, {s(S_J)}, 14", f"s_add_u32 {s(S_TMP)}, {s(S_TMP)}, {s(S_TMP2)}", f"s_lshl_b32 {s(S_TMP2)}, {s(S_WAVE)}, 10",
      f"s_add_u32 {s(S_TMP)}, {s(S_TMP)}, {s(S_TMP2)}", f"s_add_u32 {s(S_TMP)}, {s(S_TMP)}, {VPE_OFF:#x}")
    for cc in range(4):
        for hh in range(4): A(f"buffer_load_dword {v(VP + 4*cc + hh)}, {v(VF2)}, {s(WS,4)}, {s(S_TMP)} offen offset:{256*hh} sc1")
        A(f"s_add_u32 {s(S_TMP)}, {s(S_TMP)}, 4096")
    for hh in range(4):
        A(f"s_waitcnt vmcnt({23 - hh})")
        for cc in range(4): A(mfma(ACC + 4*cc, v(VOX + 16*cc + 4*hh, 4), v(PF_ + 4*hh, 4), "0" if hh == 0 else None))
    A("s_waitcnt vmcnt(0)")
    for k in range(9): A(chk4(T, VP + 4*k, k == 0))
    A(f"v_cmp_eq_u32 vcc, -1, {v(T)}", f"s_cbranch_vccz {Lok}")
    timeout_step(A, Lld, abort)
    A(f"{Lok}:")
    for cc in range(4): A(mfma(ACC + 4*cc, v(VP + 4*cc, 4), v(PF_ + 16, 4)))
    A("s_nop 7")
    for cc in range(4): A(f"ds_write_b128 {v(VRW)}, {v(ACC + 4*cc, 4)} offset:{1024*cc}")
    A("s_waitcnt lgkmcnt(0)", "s_barrier")
    for w in range(4): A(f"ds_read_b128 {v(RD + 4*w, 4)}, {v(VRR)} offset:{4096*w}")
    A("s_waitcnt lgkmcnt(0)", "s_barrier")
    for r in range(4):
        A(f"v_add_f32 {v(RD+r)}, {v(RD+r)}, {v(RD+4+r)}", f"v_add_f32 {v(RD+8+r)}, {v(RD+8+r)}, {v(RD+12+r)}", f"v_add_f32 {v(RD+r)}, {v(RD+r)}, {v(RD+8+r)}")
    A(f"v_cvt_pk_bf16_f32 {v(RD+4)}, {v(RD)}, {v(RD+1)}", f"v_cvt_pk_bf16_f32 {v(RD+5)}, {v(RD+2)}, {v(RD+3)}",
      f"s_mul_i32 {s(S_TMP)}, {s(S_SEG)}, {32*1792}", f"buffer_store_dwordx2 {v(RD+4,2)}, {v(VO_)}, {s(OUT,4)}, {s(S_TMP)} offen{OFL[OFI]}")
    A(f"s_add_u32 {s(S_SEG)}, {s(S_SEG)}, {NPG}", f"s_cmp_lt_u32 {s(S_SEG)}, 64", f"s_cbranch_scc1 {Lp}", "s_endpgm")

LOIMG = 32768

def role_L(A, abort):
    VL, VG, VN, VL16, T, T2, VR0, VL4, VMK, VON, VO_, VZ, VOA = range(1, 14)
    TB = [16, 72, 128, 184]
    W_ = 240
    PK = 112
    S_W, S_IT, S_KV, S_L2E, S_EPS = S_A, S_B, S_C, S_D, S_H
    A("; ---------------- role L")
    if X_NOL == 1: A("s_endpgm")
    yield_start(A, abort, "l", 14, 15)
    lanes(A, VL, VG, VN, VL16)
    A(f"s_mov_b32 {s(S_BUF)}, 0", f"s_mov_b32 {s(S_TO)}, {W_TIMEOUT}", f"s_mov_b32 {s(S_L2E)}, 0x3fb8aa3b", f"s_mov_b32 {s(S_EPS)}, 0x358637bd")
    dma_x(A, S_ROLE, S_BUF, VL16, XA)
    A(f"v_lshlrev_b32 {v(VL4)}, 2, {v(VL)}", f"v_mov_b32 {v(VZ)}, 0")
    A(f"v_lshrrev_b32 {v(T)}, 2, {v(VN)}", f"v_lshlrev_b32 {v(T2)}, 3, {v(T)}", f"v_and_b32 {v(T)}, 3, {v(VN)}", f"v_add_u32 {v(T2)}, {v(T2)}, {v(T)}",
      f"v_mul_u32_u24 {v(VR0)}, {RP}, {v(T2)}", f"v_lshl_add_u32 {v(VR0)}, {v(VG)}, 4, {v(VR0)}",
      f"v_mul_u32_u24 {v(VO_)}, 1792, {v(T2)}", f"v_lshl_add_u32 {v(VO_)}, {v(VG)}, 3, {v(VO_)}",
      f"s_mul_i32 {s(S_TMP)}, {s(S_ROLE)}, {32*1792}", f"s_mul_i32 {s(S_TMP2)}, {s(S_WAVE)}, 224", f"s_add_u32 {s(S_TMP)}, {s(S_TMP)}, {s(S_TMP2)}", f"v_add_u32 {v(VO_)}, {s(S_TMP)}, {v(VO_)}")
    A(f"v_cmp_gt_u32 vcc, 12, {v(VN)}", "s_nop 1", f"v_cndmask_b32 {v(VMK)}, 0, -1, vcc", f"v_mov_b32 {v(T)}, 0x3f803f80", f"v_cmp_eq_u32 vcc, 12, {v(VN)}", "s_nop 1", f"v_cndmask_b32 {v(VON)}, 0, {v(T)}, vcc")
    A(f"s_lshl_b32 {s(S_TMP)}, {s(S_WAVE)}, 13", f"s_add_u32 {s(S_TMP)}, {s(S_TMP)}, {LOIMG}", f"v_add_u32 {v(VOA)}, {s(S_TMP)}, {v(VL16)}")
    def ldtile(b, off):
        o = [f"s_add_u32 {s(S_TMP)}, {s(S_W)}, {off}"]
        for ks in range(14):
            o.append(f"buffer_load_dwordx4 {v(TB[b]+4*ks,4)}, {v(VL16)}, {s(WS,4)}, {s(S_TMP)} offen offset:{1024*(ks%4)} sc1")
            if ks % 4 == 3: o.append(f"s_add_u32 {s(S_TMP)}, {s(S_TMP)}, 4096")
        return o
    WQ, WO = 64, 68
    srd(A, WQ, 8, 448*1344*2); srd(A, WO, 16, 448*448*2)
    GW, FS, S1, S2, S3 = 72, 73, 74, 75, 76
    A(f"s_lshl_b32 {s(GW)}, {s(S_ROLE)}, 2", f"s_add_u32 {s(GW)}, {s(GW)}, {s(S_WAVE)}", "s_waitcnt lgkmcnt(0)")
    def wq_loads(j, base):
        A(f"s_add_u32 {s(FS)}, {s(GW)}, {256*j}",
          f"s_mul_i32 {s(S1)}, {s(FS)}, 18725", f"s_lshr_b32 {s(S1)}, {s(S1)}, 18", f"s_mul_i32 {s(S2)}, {s(S1)}, 14", f"s_sub_u32 {s(S2)}, {s(FS)}, {s(S2)}", f"s_mul_i32 {s(S2)}, {s(S2)}, {32*2688}",
          f"s_lshr_b32 {s(S3)}, {s(S1)}, 1", f"s_mul_i32 {s(S3)}, {s(S3)}, 56", f"s_add_u32 {s(S2)}, {s(S2)}, {s(S3)}", f"s_and_b32 {s(S1)}, {s(S1)}, 1", f"s_lshl_b32 {s(S1)}, {s(S1)}, 2")
        A(f"v_lshrrev_b32 {v(T)}, 2, {v(VN)}", f"v_lshlrev_b32 {v(T2)}, 3, {v(T)}", f"v_and_b32 {v(T)}, 3, {v(VN)}", f"v_add3_u32 {v(T2)}, {v(T2)}, {v(T)}, {s(S1)}",
          f"v_cmp_lt_u32 vcc, 27, {v(T2)}", f"v_lshlrev_b32 {v(T2)}, 1, {v(T2)}", f"v_mul_u32_u24 {v(T)}, {8*2688}, {v(VG)}", f"v_add_u32 {v(T2)}, {v(T2)}, {v(T)}",
          f"v_mov_b32 {v(T)}, 0x40000000", f"v_cndmask_b32 {v(T2)}, {v(T2)}, {v(T)}, vcc")
        for jj in range(8):
            A(f"buffer_load_ushort {v(base + 4*(jj % 2) + jj//2)}, {v(T2)}, {s(WQ,4)}, {s(S2)} offen", f"s_add_u32 {s(S2)}, {s(S2)}, 2688")
    def wo_loads(j, base):
        A(f"s_add_u32 {s(FS)}, {s(GW)}, {256*j}",
          f"s_lshr_b32 {s(S1)}, {s(FS)}, 4", f"s_lshl_b32 {s(S1)}, {s(S1)}, 5", f"s_and_b32 {s(S2)}, {s(FS)}, 15", f"s_mul_i32 {s(S2)}, {s(S2)}, {28*896}", f"s_add_u32 {s(S2)}, {s(S2)}, {s(S1)}")
        A(f"v_mul_u32_u24 {v(T2)}, {8*896}, {v(VG)}", f"v_lshl_add_u32 {v(T2)}, {v(VN)}, 1, {v(T2)}",
          f"v_cmp_eq_u32 vcc, 3, {v(VG)}", f"v_mov_b32 {v(T)}, 0x40000000", "s_nop 0", f"v_cndmask_b32 {v(T)}, {v(T2)}, {v(T)}, vcc")
        for jj in range(8):
            A(f"buffer_load_ushort {v(base + 4*(jj % 2) + jj//2)}, {v(T2 if jj < 4 else T)}, {s(WO,4)}, {s(S2)} offen", f"s_add_u32 {s(S2)}, {s(S2)}, 896")
    def fin(base, j, off, lim):
        for r in range(4): A(f"v_lshl_or_b32 {v(base+r)}, {v(base+4+r)}, 16, {v(base+r)}")
        A(f"s_add_u32 {s(FS)}, {s(GW)}, {256*j}", f"s_lshl_b32 {s(S1)}, {s(FS)}, 10", f"s_add_u32 {s(S1)}, {s(S1)}, {off:#x}", f"s_cmp_lt_u32 {s(FS)}, {lim}", f"s_cselect_b32 {s(S1)}, {s(S1)}, 0x40000000",
          f"buffer_store_dwordx4 {v(base,4)}, {v(VL16)}, {s(WS,4)}, {s(S1)} offen sc1")
    for j in range(6): wq_loads(j, 16 + 8*j)
    A("s_waitcnt vmcnt(0)")
    for j in range(2): wo_loads(j, 64 + 8*j)
    for j in range(6): fin(16 + 8*j, j, WQF_OFF, 1344)
    A("s_waitcnt vmcnt(6)")
    for j in range(2): fin(64 + 8*j, j, WOF_OFF, 448)
    A("s_waitcnt vmcnt(0)", "s_barrier")
    A(f"s_cmp_eq_u32 {s(S_WAVE)}, 0", f"s_cselect_b32 {s(S1)}, 0, 0x40000000", f"v_mov_b32 {v(T)}, 1", "s_mov_b64 exec, 1", f"buffer_atomic_add {v(T)}, off, {s(DBG,4)}, {s(S1)} offset:40 sc1", "s_mov_b64 exec, -1")
    Lw_, Lwg = A.label("Lw"), A.label("Lwg")
    A(f"{Lw_}:", f"buffer_load_dword {v(T)}, off, {s(DBG,4)}, 0 offset:40 sc1", "s_waitcnt vmcnt(0)", f"v_cmp_ne_u32 vcc, 64, {v(T)}", f"s_cbranch_vccz {Lwg}", "s_sleep 2")
    timeout_step(A, Lw_, abort)
    A(f"{Lwg}:")
    KO, VOF = 32*14336, 64*14336
    toff = [KO, KO + 14336, VOF, VOF + 14336]
    A(f"s_mul_i32 {s(S_W)}, {s(S_WAVE)}, {8*14336}", f"s_add_u32 {s(S_W)}, {s(S_W)}, {WQF_OFF:#x}")
    A("s_waitcnt vmcnt(0)", "s_barrier")
    for b in range(4): A(ldtile(b, toff[b]))
    for tt in range(2):
        for ks in range(14): A(f"ds_read_b128 {a_(56*tt + 4*ks, 4)}, {v(VR0)} offset:{64*ks + 4*RP*tt}")
        A("s_waitcnt lgkmcnt(0)")
    xf = lambda tt, ks: a_(56*tt + 4*ks, 4)
    def phi_pair(dst, a, b, t0):
        p, q, e, f = t0, t0+1, t0+2, t0+3
        return [f"v_cvt_pk_bf16_f32 {v(q)}, {v(a)}, {v(b)}", f"v_lshlrev_b32 {v(p)}, 16, {v(q)}", f"v_and_b32 {v(q)}, 0xffff0000, {v(q)}",
                f"v_mul_f32 {v(e)}, {s(S_L2E)}, {v(p)}", f"v_mul_f32 {v(f)}, {s(S_L2E)}, {v(q)}", f"v_exp_f32 {v(e)}, {v(e)}", f"v_exp_f32 {v(f)}, {v(f)}",
                f"v_add_f32 {v(p)}, 1.0, {v(p)}", f"v_add_f32 {v(q)}, 1.0, {v(q)}", f"v_med3_f32 {v(p)}, {v(p)}, {v(e)}, 1.0", f"v_med3_f32 {v(q)}, {v(q)}, {v(f)}, 1.0",
                f"v_cvt_pk_bf16_f32 {v(q)}, {v(p)}, {v(q)}", f"v_lshlrev_b32 {v(p)}, 16, {v(q)}", f"v_and_b32 {v(q)}, 0xffff0000, {v(q)}",
                f"v_add_f32 {v(p)}, {s(S_EPS)}, {v(p)}", f"v_add_f32 {v(q)}, {s(S_EPS)}, {v(q)}", f"v_cvt_pk_bf16_f32 {v(dst)}, {v(p)}, {v(q)}"]
    A(f"s_mov_b32 {s(S_IT)}, 0", f"s_lshl_b32 {s(S_KV)}, {s(S_WAVE)}, 14", f"s_add_u32 {s(S_KV)}, {s(S_KV)}, {KV_OFF:#x}")
    L1 = A.label("L1")
    A(f"{L1}:")
    A(f"s_add_u32 {s(S_W)}, {s(S_W)}, {2*14336}")
    for b in range(4):
        A("s_waitcnt vmcnt(42)")
        for ks in range(14):
            for tt in range(2): A(mfma(W_ + 4*tt, xf(tt, ks), v(TB[b]+4*ks, 4), "0" if ks == 0 else None))
        A(ldtile(b, toff[b]))
        for r in range(4):
            if b < 2:
                A(phi_pair(W_+8, W_+2*r, W_+2*r+1, W_+9))
                if b == 1: A(f"v_and_b32 {v(W_+8)}, {v(W_+8)}, {v(VMK)}")
            else:
                A(f"v_cvt_pk_bf16_f32 {v(W_+8)}, {v(W_+2*r)}, {v(W_+2*r+1)}")
                if b == 3: A(f"v_or_b32 {v(W_+8)}, {v(W_+8)}, {v(VON)}")
            A(f"v_accvgpr_write_b32 {a_(112 + 4*b + r)}, {v(W_+8)}")
    A("s_nop 1")
    for td in range(2):
        for te in range(2): A(mfma(W_ + 8*td + 4*te, a_(112 + 4*td, 4), a_(120 + 4*te, 4), "0"))
    A("s_waitcnt vmcnt(40)", "s_nop 7")
    for r in range(16 if X_NOL != 2 else 0): A(f"buffer_atomic_add_f32 {v(W_+r)}, {v(VL4)}, {s(WS,4)}, {s(S_KV)} offen offset:{256*r}")
    A(f"s_add_u32 {s(S_KV)}, {s(S_KV)}, 4096", f"s_add_u32 {s(S_IT)}, {s(S_IT)}, 1", f"s_cmp_lt_u32 {s(S_IT)}, 4", f"s_cbranch_scc1 {L1}")
    A("s_waitcnt vmcnt(0)", "s_barrier")
    if TLM: A("s_memrealtime s[92:93]")
    Ln = A.label("Lns")
    A(f"s_mov_b32 {s(S_KV)}, {CL_OFF:#x}", f"s_cmp_lg_u32 {s(S_WAVE)}, 0", f"s_cbranch_scc1 {Ln}")
    A(f"v_mov_b32 {v(T)}, 1", "s_mov_b64 exec, 1", f"buffer_atomic_add {v(T)}, off, {s(WS,4)}, {s(S_KV)} sc1", "s_mov_b64 exec, -1")
    A(f"{Ln}:")
    A(f"s_mul_i32 {s(S_W)}, {s(S_WAVE)}, {8*14336}", f"s_add_u32 {s(S_W)}, {s(S_W)}, {WQF_OFF:#x}")
    for b in range(2): A(ldtile(b, 14336*b))
    poll_eq(A, T, VZ, S_KV, 64, abort, "cl")
    if TLM: A("s_memrealtime s[94:95]")
    A(f"s_mov_b32 {s(S_IT)}, 0", f"s_lshl_b32 {s(S_KV)}, {s(S_WAVE)}, 14", f"s_add_u32 {s(S_KV)}, {s(S_KV)}, {KV_OFF:#x}")
    Q, KVR, KVT, ZO, PQ, NUM, DEN, TMPS = 128, 144, 160, 168, 172, 180, 188, 192
    L2 = A.label("L2")
    A(f"{L2}:")
    for r in range(16): A(f"buffer_load_dword {v(KVR+r)}, {v(VL4)}, {s(WS,4)}, {s(S_KV)} offen offset:{256*r} sc1")
    A(f"s_add_u32 {s(S_W)}, {s(S_W)}, {2*14336}", "s_waitcnt vmcnt(16)")
    for b in range(2):
        for ks in range(14):
            for tt in range(2): A(mfma(Q + 8*tt + 4*b, v(TB[b]+4*ks, 4), xf(tt, ks), "0" if ks == 0 else None))
    A("s_waitcnt vmcnt(0)")
    for b in range(2): A(ldtile(b, 14336*b))
    for tt in range(2):
        for r in range(4): A(phi_pair(PQ + 4*tt + r, Q + 8*tt + 2*r, Q + 8*tt + 2*r + 1, TMPS))
    for te in range(2):
        for td in range(2):
            for p in range(2): A(f"v_cvt_pk_bf16_f32 {v(KVT + 4*te + 2*td + p)}, {v(KVR + 8*td + 4*te + 2*p)}, {v(KVR + 8*td + 4*te + 2*p + 1)}")
    A("s_nop 1")
    for r in range(4): A(f"v_mov_b32_dpp {v(ZO+r)}, {v(KVT+4+r)} row_newbcast:12 row_mask:0xf bank_mask:0xf")
    A("s_nop 1")
    for tt in range(2):
        for te in range(2): A(mfma(NUM + 4*te, v(KVT + 4*te, 4), v(PQ + 4*tt, 4), "0"))
        A(mfma(DEN, v(ZO, 4), v(PQ + 4*tt, 4), "0"), "s_nop 7")
        d, u = TMPS, TMPS+1
        A(f"v_cvt_pk_bf16_f32 {v(d)}, {v(DEN)}, {v(DEN)}", f"v_and_b32 {v(d)}, 0xffff0000, {v(d)}", f"v_add_f32 {v(d)}, {s(S_EPS)}, {v(d)}",
          f"v_cvt_pk_bf16_f32 {v(d)}, {v(d)}, {v(d)}", f"v_and_b32 {v(d)}, 0xffff0000, {v(d)}", f"v_rcp_f32 {v(d)}, {v(d)}")
        for r in range(4):
            A(f"v_cvt_pk_bf16_f32 {v(u+1)}, {v(NUM+2*r)}, {v(NUM+2*r+1)}", f"v_lshlrev_b32 {v(u)}, 16, {v(u+1)}", f"v_and_b32 {v(u+1)}, 0xffff0000, {v(u+1)}",
              f"v_mul_f32 {v(u)}, {v(u)}, {v(d)}", f"v_mul_f32 {v(u+1)}, {v(u+1)}, {v(d)}", f"v_cvt_pk_bf16_f32 {v(TMPS+4+r)}, {v(u)}, {v(u+1)}")
        A(f"ds_write_b128 {v(VOA)}, {v(TMPS+4,4)} offset:{1024*tt}", "s_waitcnt lgkmcnt(0)")
    A(f"v_add_u32 {v(VOA)}, 2048, {v(VOA)}")
    A(f"s_add_u32 {s(S_KV)}, {s(S_KV)}, 4096", f"s_add_u32 {s(S_IT)}, {s(S_IT)}, 1", f"s_cmp_lt_u32 {s(S_IT)}, 4", f"s_cbranch_scc1 {L2}")
    A("s_waitcnt vmcnt(0)", "s_barrier")
    A(f"s_mul_i32 {s(S_W)}, {s(S_WAVE)}, {7*16384}", f"s_add_u32 {s(S_W)}, {s(S_W)}, {WOF_OFF:#x}")
    def ldwo(c):
        o = []
        for h in range(16):
            if h % 4 == 0: o.append(f"s_add_u32 {s(S_TMP)}, {s(S_W)}, {16384*c + 1024*h}")
            o.append(f"buffer_load_dwordx4 {v(16 + 64*(c % 3) + 4*h, 4)}, {v(VL16)}, {s(WS,4)}, {s(S_TMP)} offen offset:{1024*(h%4)} sc1")
        return o
    A(ldwo(0), ldwo(1))
    for f in range(32):
        A(f"ds_read_b128 {a_(4*f, 4)}, {v(VL16)} offset:{LOIMG + 1024*f}")
        if f % 8 == 7: A("s_waitcnt lgkmcnt(0)")
    for c in range(7):
        if c + 2 < 7: A(ldwo(c+2))
        nyoung = 16*min(2, 6-c) + (2 if c >= 1 else 0) * 0
        A(f"s_waitcnt vmcnt({16*min(2, 6-c)})")
        for h in range(16):
            for tt in range(2): A(mfma(W_ + 4*tt, v(16 + 64*(c % 3) + 4*h, 4), a_(8*h + 4*tt, 4), "0" if h == 0 else None))
        A("s_nop 7")
        for tt in range(2):
            A(f"v_cvt_pk_bf16_f32 {v(W_+8+2*tt)}, {v(W_+4*tt)}, {v(W_+4*tt+1)}", f"v_cvt_pk_bf16_f32 {v(W_+9+2*tt)}, {v(W_+4*tt+2)}, {v(W_+4*tt+3)}")
        A(f"s_mov_b32 {s(S_TMP)}, {4*1792}",
          f"buffer_store_dwordx2 {v(W_+8,2)}, {v(VO_)}, {s(OUT,4)}, 0 offen offset:{32*c}{OFL[OFI]}", f"buffer_store_dwordx2 {v(W_+10,2)}, {v(VO_)}, {s(OUT,4)}, {s(S_TMP)} offen offset:{32*c}{OFL[OFI]}")
    A("s_endpgm")
```
